```python
import torch

def _softmax(x, axis=-1):
    return torch.softmax(x, dim=axis)
def _gelu(x):
    return torch.nn.functional.gelu(x, approximate="tanh")
def _silu(x):
    return torch.nn.functional.silu(x)
def _sigmoid(x):
    return torch.sigmoid(x)
def _layernorm(x, axis=-1, eps=1e-5):
    m = x.mean(dim=axis, keepdim=True)
    v = x.var(dim=axis, keepdim=True, unbiased=False)
    return (x - m) / torch.sqrt(v + eps)
def _scatter_add(tgt, idx, src, axis=0):
    return tgt.clone().index_add_(axis, idx, src)
def _segment_sum(src, seg, n):
    out = torch.zeros((n,) + src.shape[1:], dtype=src.dtype)
    return out.index_add_(0, seg, src)
def _pad(x, pw):
    flat = tuple(v for pair in reversed(pw) for v in pair)
    return torch.nn.functional.pad(x, flat)

kernel_name = 'gated_mix__linear_attn_block__dense_activation_relu__prompt'

def setup_inputs():

    _w = (lambda a: (lambda t: t.to(torch.bfloat16) if t.is_floating_point() else t)(torch.as_tensor(a)))
    def _A_setup():
        B, S, D = 1, 2048, 1024
        return {
            "x": _w((lambda *s: torch.randn(*s, dtype=torch.bfloat16) * 0.05)(B, S, D)),
            "wqkv": _w((lambda *s: torch.randn(*s, dtype=torch.bfloat16) * 0.8)(D, 3 * D)),
            "wo": _w((lambda *s: torch.randn(*s, dtype=torch.bfloat16) * 0.2)(D, D)),
        }
    _A_in = _A_setup()

    def _B_setup():
        B, S, D, Dff = 1, 2048, 1024, 3584
        return {
            "x": _w((lambda *s: torch.randn(*s, dtype=torch.bfloat16) * 0.05)(B, S, D)),
            "w1": _w((lambda *s: torch.randn(*s, dtype=torch.bfloat16) * 0.05)(D, Dff)),
            "w2": _w((lambda *s: torch.randn(*s, dtype=torch.bfloat16) * 0.05)(Dff, D)),
        }
    _B_in = _B_setup()

    return {
        "A_x": _A_in["x"],
        "A_wqkv": _A_in["wqkv"],
        "A_wo": _A_in["wo"],
        "B_x": _B_in["x"],
        "B_w1": _B_in["w1"],
        "B_w2": _B_in["w2"],
        "gate_w": _w((lambda *s: torch.randn(*s, dtype=torch.bfloat16) * 0.05)(1024) * 16.0),
    }

def reference(A_x, A_wqkv, A_wo, B_x, B_w1, B_w2, gate_w):
    def _A_ref(x, wqkv, wo):
        B, S, D = x.shape
        H = 32; Dh = D // H
        qkv = (lambda x, *d: x.permute(*d))((x @ wqkv).reshape(B, S, 3, H, Dh), 2, 0, 3, 1, 4)
        q, k, v = qkv[0], qkv[1], qkv[2]
        phi = lambda t: torch.where(t > 0, t + 1, torch.exp(t)) + 1e-6
        pq, pk = phi(q), phi(k)
        kv = torch.einsum("bhsd,bhse->bhde", pk, v)
        z = torch.einsum("bhsd->bhd", pk)
        num = torch.einsum("bhqd,bhde->bhqe", pq, kv)
        den = torch.einsum("bhqd,bhd->bhq", pq, z)[..., None] + 1e-6
        o = num / den
        return (lambda x, *d: x.permute(*d))(o, 0, 2, 1, 3).reshape(B, S, D) @ wo

    def _B_ref(x, w1, w2):
        h = torch.einsum("bsd,df->bsf", x, w1)
        zero = torch.zeros_like(h)
        h = torch.maximum(h, zero)
        return torch.einsum("bsf,fd->bsd", h, w2)

    x = A_x
    g = _sigmoid((x * gate_w).sum(-1, keepdims=True))
    a = _A_ref(x, A_wqkv, A_wo)
    b = _B_ref(x, B_w1, B_w2)
    return g * a + (1 - g) * b
```

```python
import sys

NAME = "gated_mix__linear_attn_block__dense_activation_relu__prompt_kernel"

WS_HO = 0
WS_PART = 0x1200000
WS_KVP = 0x1A00000
WS_KVF = 0x1B80000
WS_FLAG = 0x1C00000
F_P, F_H, F_KV1, F_KV2, F_O = 0, 0x8000, 0x8800, 0x9000, 0x9800
WS_PROF = 0x1D00000

UNIT = 4224; BLK = 1056
XSLOT = 8 * UNIT
XRING = 3 * XSLOT
WSLOT = 3 * UNIT + 1024
WBASE = XRING
LDS_GW = WBASE + 4 * WSLOT
LDS_G = LDS_GW + 4096
P2A = 16384
P2SLOT = P2A + 4 * UNIT
P2RING = 4 * P2SLOT
LDS_TOTAL = 163840

SPIN = 100000


class G:
    def __init__(self, **opt):
        self.L = []
        self.o = dict(prof=False, krot=True, pfw=True)
        self.o.update(opt)
        self.uid = 0

    def a(self, s):
        for ln in s.split("\n"):
            ln = ln.strip()
            if ln:
                self.L.append(ln if ln.endswith(":") or ln.startswith(".") else "    " + ln)

    def lab(self, p):
        self.uid += 1
        return f"L_{p}_{self.uid}"

    def stamp(self, n):
        if self.o['prof']:
            self.a(f"s_memrealtime s[{70+2*n}:{71+2*n}]")

    def text(self):
        return "\n".join(self.L) + "\n"


def vr(b, n=4):
    return f"v[{b}:{b+n-1}]"


def mfma(d, a, b, c=None):
    return f"v_mfma_f32_16x16x32_bf16 {vr(d)}, {vr(a)}, {vr(b)}, {vr(d) if c is None else c}"


S_WAVE, S_MB8, S_QD, S_C, S_PAIR, S_MB16, S_CB, S_KH, S_PHI, S_XCD = 3, 36, 37, 38, 39, 40, 41, 42, 43, 44
SRD_WS = 20


def srd(g, d, base, nbytes):
    g.a(f"s_mov_b32 s{d}, s{base}\ns_mov_b32 s{d+1}, s{base+1}\ns_mov_b32 s{d+2}, {hex(nbytes)}\ns_mov_b32 s{d+3}, 0x20000")


def prologue(g):
    a = g.a
    a("s_cmp_ge_u32 s2, 256\ns_cbranch_scc1 L_exit")
    g.stamp(0)
    a("s_load_dwordx16 s[4:19], s[0:1], 0")
    a("s_load_dwordx4 s[24:27], s[0:1], 64")
    a("v_lshrrev_b32 v1, 6, v0\nv_and_b32 v0, 63, v0")
    a(f"s_and_b32 s{S_XCD}, s2, 7\ns_lshr_b32 s30, s2, 3")
    a(f"v_readfirstlane_b32 s{S_WAVE}, v1")
    a(f"s_lshr_b32 s31, s{S_XCD}, 2\ns_and_b32 s32, s{S_XCD}, 3")
    a(f"s_and_b32 s33, s30, 3\ns_lshl_b32 s{S_MB8}, s31, 2\ns_add_u32 s{S_MB8}, s{S_MB8}, s33")
    a("s_lshr_b32 s33, s30, 2")
    a(f"s_lshr_b32 s34, s33, 2\ns_lshl_b32 s{S_QD}, s32, 1\ns_add_u32 s{S_QD}, s{S_QD}, s34")
    a(f"s_and_b32 s{S_C}, s33, 3")
    a(f"s_and_b32 s34, s33, 1\ns_lshl_b32 s{S_PAIR}, s{S_QD}, 1\ns_add_u32 s{S_PAIR}, s{S_PAIR}, s34")
    a(f"s_lshl_b32 s{S_MB16}, s{S_MB8}, 1\ns_add_u32 s{S_MB16}, s{S_MB16}, s34")
    a(f"s_and_b32 s34, s32, 1\ns_lshl_b32 s34, s34, 2\ns_lshr_b32 s{S_CB}, s33, 1\ns_add_u32 s{S_CB}, s{S_CB}, s34")
    a(f"s_lshr_b32 s{S_KH}, s32, 1")
    if g.o['krot']:
        a(f"s_lshl_b32 s34, s31, 1\ns_add_u32 s34, s34, s32\ns_lshl_b32 s34, s34, 2\ns_and_b32 s{S_PHI}, s34, 15")
    else:
        a(f"s_mov_b32 s{S_PHI}, 0")
    a("s_waitcnt lgkmcnt(0)")
    srd(g, SRD_WS, 26, 0x10000000)
    a(f"s_cmp_ge_u32 s{S_WAVE}, 6\ns_cbranch_scc1 L_helper")
    a(f"s_cmp_ge_u32 s{S_WAVE}, 4\ns_cbranch_scc1 L_loader")


VX, VW, VQ = 1, 2, 3
WB = lambda n: 8 + 4 * (n % 4)
XLO = lambda b, i: 24 + 8 * b + 4 * i
XHI = lambda i: 40 + 4 * (i - 2)
AC = lambda j, i: 48 + (j * 4 + i) * 4


def p1_wread(t, j):
    n = 13 * t + j
    slot = (t % 4) * WSLOT
    if j < 12:
        return [f"ds_read_b64_tr_b16 v[{WB(n)+2*w}:{WB(n)+2*w+1}], v{VW} offset:{slot + (j//4)*UNIT + (j%4)*32 + w*256}" for w in range(2)]
    return [f"ds_read_b64_tr_b16 v[{WB(n)+2*w}:{WB(n)+2*w+1}], v{VQ} offset:{slot + w*256}" for w in range(2)]


def p1_xreg(t, i):
    return XLO(t % 2, i) if i < 2 else XHI(i)


def p1_xread(t, i):
    return f"ds_read_b128 {vr(p1_xreg(t,i))}, v{VX} offset:{(i>>1)*UNIT + (i&1)*512 + (t%2)*64}"


def p1_loop(g, kv):
    a = g.a
    L = g.lab("p1")
    seq = []
    for t in range(4):
        s = []
        s += [(0, 0), (0, 1), (1, 1), (1, 0), (1, 2), (1, 3), (0, 3), (0, 2)]
        for j in range(2, 11):
            o = [2, 3, 0, 1] if j % 2 == 0 else [1, 0, 3, 2]
            s += [(j, i) for i in o]
        s += [(11, 2), (11, 3), (12, 3), (12, 2), (12, 1), (12, 0), (11, 0), (11, 1)]
        post = [[] for _ in s]
        rd = lambda j, tt=t: [('W', tt, j, x) for x in p1_wread(tt, j)]
        r = rd(2); post[0].append(r[0]); post[1].append(r[1])
        r = rd(3); post[2].append(r[0]); post[3].append(r[1])
        r = rd(4); post[8].append(r[0]); post[9].append(r[1])
        r = rd(5); post[10].append(r[0]); post[11].append(r[1])
        for j in range(3, 10):
            base = 8 + (j - 2) * 4
            r = rd(j + 3); post[base].append(r[0]); post[base + 1].append(r[1])
        b10 = 8 + 8 * 4
        if t % 2 == 1:
            post[b10 - 2].append(('S', f"s_add_u32 s46, s46, {XSLOT}"))
            post[b10 - 2].append(('S', f"s_cmp_eq_u32 s46, {XRING}"))
            post[b10 - 1].append(('S', f"s_cselect_b32 s47, s48, s49"))
            post[b10 - 1].append(('S', f"s_cselect_b32 s46, 0, s46"))
            post[b10].append(('S', f"v_add_u32 v{VX}, s47, v{VX}"))
        post[b10 + 2].append(('BAR',))
        tn = t + 1
        r0 = [('W', tn, 0, x) for x in p1_wread(tn, 0)]
        r1 = [('W', tn, 1, x) for x in p1_wread(tn, 1)]
        post[b10 + 3] += [r0[0], r0[1]]
        post[44] += [('X', tn, 0, p1_xread(tn, 0)), ('X', tn, 1, p1_xread(tn, 1))]
        post[45] += [r1[0]]
        post[46] += [r1[1]]
        post[47] += [('X', tn, 2, p1_xread(tn, 2))]
        post[48] += [('X', tn, 3, p1_xread(tn, 3))]
        if t == 3:
            post[49].append(('S', "s_sub_u32 s45, s45, 1"))
            post[50].append(('S', "s_cmp_lg_u32 s45, 0"))
        for (j, i), p in zip(s, post):
            seq.append(((t, j, i), p))
    q = [('W', 0, 0), ('W', 0, 0), ('X', 0, 0), ('X', 0, 1), ('W', 0, 1), ('W', 0, 1), ('X', 0, 2), ('X', 0, 3)]
    a(f".p2align 6\n{L}:")
    for (t, j, i), p in seq:
        need = [k for k, e in enumerate(q) if e == ('W', t, j) or e == ('X', t, i)]
        if need:
            k = max(need)
            a(f"s_waitcnt lgkmcnt({len(q)-1-k})")
            q = q[k + 1:]
        n = 13 * t + j
        if kv and j < 8:
            a(mfma(AC(j, i), p1_xreg(t, i), WB(n)))
        else:
            a(mfma(AC(j, i), WB(n), p1_xreg(t, i)))
        for e in p:
            if e[0] == 'S':
                a(e[1])
            elif e[0] == 'BAR':
                a("s_waitcnt lgkmcnt(0)\ns_barrier"); q = []
            else:
                a(e[3]); q.append((e[0], e[1] % 4, e[2]))
    a(f"s_cbranch_scc1 {L}")


def p1_first_reads(g):
    for x in p1_wread(0, 0): g.a(x)
    g.a(p1_xread(0, 0)); g.a(p1_xread(0, 1))
    for x in p1_wread(0, 1): g.a(x)
    g.a(p1_xread(0, 2)); g.a(p1_xread(0, 3))


def h_line_store(g, j0, soff):
    a = g.a
    for i in range(4):
        for p in range(2):
            d = AC(j0 + 2 * p, i); e = AC(j0 + 2 * p + 1, i)
            a(f"v_cvt_pk_bf16_f32 v{d}, v{d}, v{d+1}\nv_cvt_pk_bf16_f32 v{d+1}, v{d+2}, v{d+3}")
            a(f"v_cvt_pk_bf16_f32 v{d+2}, v{e}, v{e+1}\nv_cvt_pk_bf16_f32 v{d+3}, v{e+2}, v{e+3}")
            for r in range(4): a(f"v_pk_max_i16 v{d+r}, v{d+r}, 0")
            a(f"buffer_store_dwordx4 {vr(d)}, v4, s[{SRD_WS}:{SRD_WS+3}], s{soff} offen offset:{(i&1)*2048+p*1024} sc1")
        if i == 1: a(f"s_add_u32 s{soff}, s{soff}, 4096")


def h_quarter_store(g, soff):
    a = g.a
    for i in range(4):
        d = AC(12, i)
        a(f"v_cvt_pk_bf16_f32 v{d}, v{d}, v{d+1}\nv_cvt_pk_bf16_f32 v{d+1}, v{d+2}, v{d+3}")
        for r in range(2): a(f"v_pk_max_i16 v{d+r}, v{d+r}, 0")
        a(f"buffer_store_dwordx2 v[{d}:{d+1}], v4, s[{SRD_WS}:{SRD_WS+3}], s{soff} offen offset:{(i&1)*2048} sc1")
        if i == 1: a(f"s_add_u32 s{soff}, s{soff}, 4096")


def phi_regs(g, regs, tmp):
    a = g.a
    for b in range(0, len(regs), 8):
        rs = regs[b:b + 8]
        for k, r in enumerate(rs): a(f"v_mul_f32 v{tmp+k}, s50, v{r}")
        for k, r in enumerate(rs):
            a(f"v_exp_f32 v{tmp+k}, v{tmp+k} clamp")
            a(f"v_max_f32 v{r}, s51, v{r}")
        for k, r in enumerate(rs): a(f"v_add_f32 v{r}, v{r}, v{tmp+k}")


def pack8(g, d, e):
    g.a(f"v_cvt_pk_bf16_f32 v{d}, v{d}, v{d+1}\nv_cvt_pk_bf16_f32 v{d+1}, v{d+2}, v{d+3}")
    g.a(f"v_cvt_pk_bf16_f32 v{d+2}, v{e}, v{e+1}\nv_cvt_pk_bf16_f32 v{d+3}, v{e+2}, v{e+3}")


VA2, VW2 = 1, 2
AF = lambda b, i: 96 + 16 * b + 4 * i
WF = lambda b, j: 128 + 16 * b + 4 * j
ACC = lambda j, i: 160 + (j * 4 + i) * 4
ACD = lambda j, i: 224 + (j * 4 + i) * 4
PQ = lambda i, h: AC(2 * h, i)
KVF = lambda f: 8 + 4 * f
PP = lambda j, i: 8 + (j * 4 + i) * 4


def p2_reads(b, kk, nj):
    R = []
    def rw(j):
        for w in range(2):
            R.append(f"ds_read_b64_tr_b16 v[{WF(b,j)+2*w}:{WF(b,j)+2*w+1}], v{VW2} offset:{((j>>1)*2+kk)*UNIT + (j&1)*32 + w*256}")
    rw(0)
    for i in range(4): R.append(f"ds_read_b128 {vr(AF(b,i))}, v{VA2} offset:{i*2048+kk*1024}")
    for j in range(1, nj): rw(j)
    return R


def p2_loop(g, nj, iters):
    a = g.a
    acc = ACC if nj == 4 else ACD
    L = g.lab("p2")
    a(f"s_mov_b32 s45, {iters}")
    a(f".p2align 3\n{L}:")
    rpg = 1 if nj == 4 else 2
    for b in range(2):
        R = p2_reads(1 - b, 1 - b, nj)
        extra = []
        if b == 0:
            extra = [f"s_add_u32 s46, s46, {P2SLOT}", f"s_cmp_eq_u32 s46, {P2RING}", "s_cselect_b32 s47, s48, s49",
                     "s_cselect_b32 s46, 0, s46", f"v_add_u32 v{VA2}, s47, v{VA2}", f"v_add_u32 v{VW2}, s47, v{VW2}"]
        else:
            extra = ["s_sub_u32 s45, s45, 1", "s_cmp_lg_u32 s45, 0"]
        n = 0
        for j in range(nj):
            for i in (range(4) if j % 2 == 0 else range(3, -1, -1)):
                a(mfma(acc(j, i), WF(b, j), AF(b, i)))
                if b == 1 and n == 0:
                    a("s_barrier")
                    a(R.pop(0))
                elif R:
                    for _ in range(rpg):
                        if R: a(R.pop(0))
                else:
                    for _ in range(2):
                        if extra: a(extra.pop(0))
                n += 1
        assert not R
        for e in extra: a(e)
        a("s_waitcnt lgkmcnt(0)")
    a(f"s_cbranch_scc1 {L}")


def compute(g):
    a = g.a
    a("v_and_b32 v4, 15, v0\nv_lshrrev_b32 v5, 4, v0")
    a("v_bfe_u32 v6, v4, 3, 1\nv_bfe_u32 v7, v4, 1, 1\nv_lshl_add_u32 v6, v6, 1, v7")
    a(f"v_mul_u32_u24 v{VX}, {BLK}, v6")
    a("v_bfe_u32 v6, v4, 2, 1\nv_and_b32 v7, 1, v4\nv_lshl_add_u32 v6, v6, 1, v7")
    a(f"v_lshl_add_u32 v{VX}, v6, 7, v{VX}\nv_lshl_add_u32 v{VX}, v5, 4, v{VX}")
    a(f"s_mul_i32 s45, s{S_WAVE}, {2*UNIT}\nv_add_u32 v{VX}, s45, v{VX}")
    a("v_and_b32 v6, 1, v5\nv_bfe_u32 v7, v4, 3, 1\nv_lshl_add_u32 v6, v6, 1, v7")
    a(f"v_mul_u32_u24 v{VW}, {BLK}, v6")
    a("v_lshrrev_b32 v6, 1, v5\nv_bfe_u32 v7, v4, 2, 1\nv_lshl_add_u32 v6, v6, 2, v7")
    a(f"v_lshl_add_u32 v{VW}, v6, 7, v{VW}\nv_and_b32 v6, 3, v4\nv_lshl_add_u32 v{VW}, v6, 3, v{VW}")
    a(f"v_add_u32 v{VW}, {WBASE}, v{VW}")
    a(f"v_lshrrev_b32 v6, 5, v0\nv_and_b32 v7, 31, v0\nv_lshlrev_b32 v7, 3, v7\nv_lshl_add_u32 v{VQ}, v6, 9, v7")
    a(f"v_add_u32 v{VQ}, {WBASE+3*UNIT}, v{VQ}")
    for r in range(48, 256): a(f"v_mov_b32 v{r}, 0")
    a(f"s_mov_b32 s45, 8\ns_mov_b32 s46, 0\ns_mov_b32 s48, {(-2*XSLOT) & 0xffffffff}\ns_mov_b32 s49, {XSLOT}")
    a("s_mov_b32 s50, 0x3fb8aa3b\ns_mov_b32 s51, 0x358637bd")
    a(f"s_lshl_b32 s52, s{S_MB8}, 15\ns_lshl_b32 s53, s{S_WAVE}, 13\ns_add_u32 s52, s52, s53")
    a(f"s_mul_i32 s53, s{S_QD}, 7")
    a(f"s_add_u32 s54, s53, 6\ns_lshl_b32 s54, s54, 18\ns_add_u32 s54, s54, s52")
    a(f"s_lshr_b32 s55, s{S_C}, 1\ns_lshl_b32 s55, s55, 10\ns_add_u32 s54, s54, s55")
    a(f"s_and_b32 s55, s{S_C}, 1\ns_lshl_b32 s55, s55, 3\ns_add_u32 s54, s54, s55")
    a("v_lshlrev_b32 v4, 4, v0")
    a("s_barrier")
    g.stamp(1)
    p1_first_reads(g)
    a(f"s_cmp_ge_u32 s{S_C}, 2\ns_cbranch_scc1 L_cq")
    p1_loop(g, True)
    g.stamp(2)
    a(f"s_add_u32 s55, s53, s{S_C}\ns_lshl_b32 s55, s55, 18\ns_add_u32 s55, s55, s52")
    a("s_waitcnt lgkmcnt(0)\ns_nop 4")
    h_line_store(g, 8, 55)
    h_quarter_store(g, 54)
    phi_regs(g, list(range(AC(0, 0), AC(4, 0))), 8)
    for s in range(8):
        for p in range(2): pack8(g, AC(s, 2 * p), AC(s, 2 * p + 1))
    for r in range(8, 12): a(f"v_mov_b32 v{r}, 0x3f803f80")
    T = lambda t: 176 + 4 * t
    a("s_nop 1")
    for p in range(2):
        for h in range(2):
            for dt in range(2):
                for e in range(3):
                    t = 2 * (3 * h + e) + dt
                    a(mfma(T(t), AC(2 * h + dt, 2 * p), AC(4 + 2 * h + e, 2 * p) if e < 2 else 8, "0" if p == 0 else None))
    a(f"s_mul_i32 s55, s{S_WAVE}, {P2SLOT}\nv_add_u32 v5, s55, v4")
    a("s_nop 7")
    for t in range(12): a(f"ds_write_b128 v5, {vr(T(t))} offset:{t*1024}")
    a("s_waitcnt vmcnt(0) lgkmcnt(0)\ns_barrier")
    g.stamp(3)
    a(f"s_mul_i32 s55, s{S_WAVE}, 3072\nv_add_u32 v5, s55, v4\nv_add_u32 v6, {2*P2SLOT}, v5")
    for w in range(4):
        for t in range(3):
            a(f"ds_read_b128 {vr(48+(w*3+t)*4)}, v{5+(w>>1)} offset:{(w&1)*P2SLOT+t*1024}")
    a(f"s_lshl_b32 s56, s{S_PAIR}, 3\ns_add_u32 s56, s56, s{S_MB8}\ns_mul_i32 s56, s56, 12288\ns_add_u32 s56, s56, s55\ns_add_u32 s56, s56, {WS_KVP}")
    a("s_waitcnt lgkmcnt(0)")
    for r in range(12): a(f"v_add_f32 v{48+r}, v{48+r}, v{60+r}\nv_add_f32 v{72+r}, v{72+r}, v{84+r}")
    for r in range(12): a(f"v_add_f32 v{48+r}, v{48+r}, v{72+r}")
    for t in range(3): a(f"buffer_store_dwordx4 {vr(48+4*t)}, v4, s[{SRD_WS}:{SRD_WS+3}], s56 offen offset:{t*1024} sc1")
    a("s_branch L_cjoin")
    a("L_cq:")
    p1_loop(g, False)
    g.stamp(2)
    a(f"s_lshl_b32 s55, s{S_C}, 1\ns_add_u32 s55, s55, s53\ns_sub_u32 s55, s55, 2\ns_lshl_b32 s55, s55, 18\ns_add_u32 s55, s55, s52\ns_add_u32 s56, s55, 0x40000")
    a("s_waitcnt lgkmcnt(0)\ns_nop 4")
    h_line_store(g, 4, 55)
    h_line_store(g, 8, 56)
    h_quarter_store(g, 54)
    phi_regs(g, list(range(AC(0, 0), AC(4, 0))), 8)
    for h in range(2):
        for i in range(4): pack8(g, AC(2 * h, i), AC(2 * h + 1, i))
    a("s_waitcnt vmcnt(0)\ns_barrier")
    g.stamp(3)
    a("L_cjoin:")
    a(f"s_lshr_b32 s57, s{S_WAVE}, 1\ns_and_b32 s58, s{S_WAVE}, 1")
    a(f"s_lshl_b32 s55, s57, 13\nv_add_u32 v{VA2}, s55, v4")
    a(f"s_lshl_b32 s55, s58, 6\ns_add_u32 s55, s55, {(P2A-WBASE) & 0xffffffff}\nv_add_u32 v{VW2}, s55, v{VW2}")
    for r in range(160, 256): a(f"v_mov_b32 v{r}, 0")
    a(f"s_mov_b32 s46, 0\ns_mov_b32 s48, {(-3*P2SLOT) & 0xffffffff}\ns_mov_b32 s49, {P2SLOT}")
    a("s_barrier")
    g.stamp(4)
    a("s_barrier")
    g.stamp(5)
    for x in p2_reads(0, 0, 4): a(x)
    a("s_waitcnt vmcnt(0) lgkmcnt(0)")
    a(f"s_cmp_ge_u32 s{S_C}, 2\ns_cbranch_scc1 L_c2q")
    p2_loop(g, 4, 28)
    a("s_branch L_c2join")
    a("L_c2q:")
    p2_loop(g, 4, 13)
    a(f"s_mul_i32 s55, s{S_PAIR}, 6144\ns_add_u32 s55, s55, {WS_KVF}\ns_add_u32 s56, s55, 4096")
    for f in range(6):
        a(f"buffer_load_dwordx4 {vr(KVF(f))}, v4, s[{SRD_WS}:{SRD_WS+3}], s{55+(f>>2)} offen offset:{(f&3)*1024} sc1")
    p2_loop(g, 4, 2)
    a(f"s_add_u32 s55, s{S_PAIR}, 56\ns_lshl_b32 s55, s55, 18\ns_add_u32 s55, s55, s52")
    a("s_waitcnt vmcnt(0)")
    TM = [32, 64]
    for i in range(4):
        for h in range(2):
            t = TM[h]
            for e in range(3): a(mfma(t + 4 * e, KVF(3 * h + e), PQ(i, h), "0"))
        a("s_nop 4")
        for h in range(2):
            t = TM[h]
            if h == 1: pass
            a(f"v_add_f32 v{t+8}, s51, v{t+8}\nv_rcp_f32 v{t+8}, v{t+8}\ns_nop 0")
            for r in range(8): a(f"v_mul_f32 v{t+r}, v{t+r}, v{t+8}")
            d = PQ(i, h)
            for r in range(4): a(f"v_cvt_pk_bf16_f32 v{d+r}, v{t+2*r}, v{t+2*r+1}")
            a(f"buffer_store_dwordx4 {vr(d)}, v4, s[{SRD_WS}:{SRD_WS+3}], s55 offen offset:{(i&1)*2048+h*1024} sc1")
        if i == 1: a("s_add_u32 s55, s55, 4096")
    p2_loop(g, 4, 3)
    a("s_waitcnt vmcnt(0)")
    p2_loop(g, 4, 10)
    a("L_c2join:")
    g.stamp(6)
    a(f"s_lshl_b32 s55, s2, 15\ns_lshl_b32 s56, s{S_WAVE}, 13\ns_add_u32 s55, s55, s56\ns_add_u32 s55, s55, {WS_PART}")
    a("s_xor_b32 s59, s55, 0x10000\ns_add_u32 s56, s55, 4096\ns_add_u32 s60, s59, 4096\ns_nop 4")
    for j in range(2):
        for i in range(4):
            a(f"buffer_store_dwordx4 {vr(ACC(2+j,i))}, v4, s[{SRD_WS}:{SRD_WS+3}], s{55+j} offen offset:{i*1024} sc1")
    p2_loop(g, 2, 5)
    a("s_waitcnt vmcnt(0)")
    p2_loop(g, 2, 6)
    for j in range(2):
        for i in range(4):
            a(f"buffer_load_dwordx4 {vr(PP(j,i))}, v4, s[{SRD_WS}:{SRD_WS+3}], s{59+j} offen offset:{i*1024} sc1")
    p2_loop(g, 2, 5)
    g.stamp(7)
    srd(g, 28, 18, 2048 * 1024 * 2)
    a(f"v_and_b32 v5, 15, v0\ns_lshl_b32 s55, s57, 8\ns_add_u32 s55, s55, {LDS_G}\nv_lshl_add_u32 v6, v5, 2, s55")
    for i in range(4): a(f"ds_read_b32 v{40+i}, v6 offset:{i*64}")
    a("v_lshlrev_b32 v5, 11, v5\nv_bfe_u32 v6, v0, 4, 1\nv_lshl_add_u32 v5, v6, 5, v5\nv_lshrrev_b32 v6, 5, v0\nv_lshl_add_u32 v5, v6, 4, v5")
    a(f"s_lshl_b32 s55, s{S_MB16}, 18\ns_lshl_b32 s56, s57, 17\ns_add_u32 s55, s55, s56")
    a(f"s_lshl_b32 s56, s{S_CB}, 8\ns_add_u32 s55, s55, s56\ns_lshl_b32 s56, s{S_KH}, 7\ns_add_u32 s55, s55, s56\ns_lshl_b32 s56, s58, 6\ns_add_u32 s55, s55, s56")
    a("s_waitcnt vmcnt(0) lgkmcnt(0)")
    for i in range(4):
        for j in range(2):
            for r in range(4): a(f"v_add_f32 v{PP(j,i)+r}, v{PP(j,i)+r}, v{ACC(j,i)+r}")
        for j in range(2):
            for r in range(4): a(f"v_sub_f32 v{ACD(j,i)+r}, v{ACD(j,i)+r}, v{PP(j,i)+r}")
        for j in range(2):
            for r in range(4): a(f"v_fmac_f32 v{PP(j,i)+r}, v{40+i}, v{ACD(j,i)+r}")
        d = PP(0, i)
        pack8(g, d, PP(1, i))
        a(f"s_nop 1\nv_permlane16_swap_b32 v{d}, v{d+2}\nv_permlane16_swap_b32 v{d+1}, v{d+3}")
        a(f"buffer_store_dwordx4 {vr(d)}, v5, s[28:31], s55 offen")
        if i < 3: a("s_add_u32 s55, s55, 0x8000")
    if g.o['prof']:
        a("s_waitcnt vmcnt(0)")
        g.stamp(8)
        a(f"s_waitcnt lgkmcnt(0)\ns_cmp_lg_u32 s{S_WAVE}, 0\ns_cbranch_scc1 L_exit")
        a(f"s_lshl_b32 s55, s2, 6\ns_add_u32 s55, s55, {WS_PROF}\nv_mov_b32 v5, 0")
        for n in range(9):
            a(f"v_mov_b32 v6, s{70+2*n}\nbuffer_store_dword v6, v5, s[{SRD_WS}:{SRD_WS+3}], s55 offen offset:{4*n}\ns_nop 1")
    a("s_endpgm")


def loader(g):
    a = g.a
    a("L_loader:")
    LW = 45
    a(f"s_sub_u32 s{LW}, s{S_WAVE}, 4")
    srd(g, 28, 4, 2048 * 1024 * 2)
    srd(g, 48, 6, 1024 * 3072 * 2)
    srd(g, 56, 12, 1024 * 3584 * 2)
    a(f"s_cmp_ge_u32 s{S_C}, 2")
    a(f"s_cselect_b32 s52, s12, s6\ns_cselect_b32 s53, s13, s7\ns_cselect_b32 s54, s58, s50\ns_mov_b32 s55, 0x20000")
    a("s_movk_i32 s60, 6144\ns_cselect_b32 s60, 7168, s60")
    a("v_lshrrev_b32 v1, 5, v0\nv_bfe_u32 v2, v0, 4, 1\nv_lshlrev_b32 v1, 4, v1\nv_lshl_add_u32 v1, v2, 2, v1\nv_bfe_u32 v2, v0, 3, 1\nv_add_u32 v1, v1, v2")
    a(f"s_lshl_b32 s61, s{LW}, 3\nv_add_u32 v1, s61, v1\nv_and_b32 v2, 7, v0\nv_lshlrev_b32 v2, 4, v2")
    a(f"s_lshl_b32 s61, s{S_MB8}, 19\nv_lshl_add_u32 v4, v1, 11, v2\nv_add_u32 v4, s61, v4\nv_add_u32 v5, 4096, v4")
    a(f"s_cmp_ge_u32 s{S_C}, 2\ns_cselect_b32 s61, 0, 2048\ns_lshl_b32 s62, s{S_PAIR}, 7\ns_add_u32 s61, s61, s62")
    a("v_mul_u32_u24 v6, 6144, v1\nv_add3_u32 v6, v6, v2, s61\nv_add_u32 v7, 12288, v6")
    a(f"s_mul_i32 s63, s{S_QD}, 7\ns_lshl_b32 s64, s{S_C}, 1\ns_add_u32 s64, s64, s63\ns_sub_u32 s65, s64, 2\ns_lshl_b32 s65, s65, 7\ns_add_u32 s62, s62, 4096")
    a(f"s_cmp_ge_u32 s{S_C}, 2\ns_cselect_b32 s61, s65, s62")
    a("v_mul_lo_u32 v8, v1, s60\nv_add3_u32 v8, v8, v2, s61\ns_lshl_b32 s62, s60, 1\nv_add_u32 v9, s62, v8")
    a(f"s_sub_u32 s64, s64, 1\ns_add_u32 s65, s63, s{S_C}\ns_cmp_ge_u32 s{S_C}, 2\ns_cselect_b32 s61, s64, s65\ns_lshl_b32 s61, s61, 7")
    a("v_mul_u32_u24 v10, 7168, v1\nv_add3_u32 v10, v10, v2, s61\nv_add_u32 v11, 14336, v10")
    a("v_bfe_u32 v12, v0, 4, 1\nv_bfe_u32 v13, v0, 3, 1\nv_lshlrev_b32 v12, 2, v12\nv_lshl_add_u32 v12, v13, 3, v12\nv_bfe_u32 v13, v0, 1, 2\nv_add_u32 v12, v12, v13")
    a(f"s_lshl_b32 s61, s{LW}, 4\nv_add_u32 v12, s61, v12\nv_mul_u32_u24 v12, 7168, v12\nv_and_b32 v13, 1, v0\nv_lshl_add_u32 v12, v13, 4, v12")
    a(f"s_add_u32 s61, s63, 6\ns_lshl_b32 s61, s61, 7\ns_lshl_b32 s62, s{S_C}, 5\ns_add_u32 s61, s61, s62\nv_add_u32 v12, s61, v12")
    a("s_lshl_b32 s60, s60, 5")
    a(f"s_mul_i32 s66, s{LW}, {2*BLK}")
    a(f"s_mov_b32 s61, s66\ns_lshl_b32 s62, s{S_PHI}, 7\ns_mov_b32 s63, 0\ns_lshl_b32 s64, s{S_PHI}, 1\ns_add_u32 s65, s66, {WBASE}")
    a(f"s_add_u32 s67, s66, {XRING}\ns_add_u32 s68, s66, {WBASE+4*WSLOT}")
    a(f"s_lshl_b32 s69, s{LW}, 9\ns_sub_u32 s69, s69, s66\ns_add_u32 s69, s69, {3*UNIT}")

    def xhalf():
        a("s_add_u32 s46, s62, s63\ns_mov_b32 m0, s61")
        for u in range(4):
            if u: a(f"s_add_u32 m0, m0, {UNIT-BLK}\ns_add_u32 s46, s46, 0x10000")
            else: a("s_nop 0")
            a("buffer_load_dwordx4 v4, s[28:31], s46 offen lds")
            a(f"s_add_u32 m0, m0, {BLK}\ns_nop 0")
            a("buffer_load_dwordx4 v5, s[28:31], s46 offen lds")
        a(f"s_add_u32 s61, s61, {4*UNIT}\ns_cmp_eq_u32 s61, s67\ns_cselect_b32 s61, s66, s61")
        a("s_xor_b32 s63, s63, 0x40000\ns_cselect_b32 s47, 0, 128\ns_add_u32 s62, s62, s47\ns_and_b32 s62, s62, 2047")

    def wslab():
        a(f"s_mul_i32 s46, s64, {32*6144}\ns_mul_i32 s47, s64, s60\ns_mul_i32 s35, s64, {32*7168}\ns_mov_b32 m0, s65")
        for ln, (sr, so) in enumerate([(48, 46), (52, 47), (56, 35)]):
            if ln: a(f"s_add_u32 m0, m0, {UNIT-BLK}")
            a("s_nop 0")
            a(f"buffer_load_dwordx4 v{6+2*ln}, s[{sr}:{sr+3}], s{so} offen lds")
            a(f"s_add_u32 m0, m0, {BLK}\ns_nop 0")
            a(f"buffer_load_dwordx4 v{7+2*ln}, s[{sr}:{sr+3}], s{so} offen lds")
        a("s_add_u32 m0, s65, s69\ns_mov_b32 exec_hi, 0")
        a("buffer_load_dwordx4 v12, s[56:59], s35 offen lds")
        a("s_mov_b32 exec_hi, -1")
        a(f"s_add_u32 s65, s65, {WSLOT}\ns_cmp_eq_u32 s65, s68\ns_cselect_b32 s65, s67, s65")
        a("s_add_u32 s64, s64, 1\ns_and_b32 s64, s64, 31")

    xhalf(); wslab(); xhalf(); wslab(); xhalf()
    a("s_waitcnt vmcnt(15)\ns_barrier")
    wslab(); xhalf(); wslab(); xhalf()
    a("s_mov_b32 s34, 27")
    a("L_l1:")
    a("s_waitcnt vmcnt(30)\ns_barrier")
    wslab(); xhalf()
    a("s_sub_u32 s34, s34, 1\ns_cmp_lg_u32 s34, 0\ns_cbranch_scc1 L_l1")
    a("s_waitcnt vmcnt(30)\ns_barrier")
    wslab()
    srd(g, 48, 14, 3584 * 1024 * 2)
    srd(g, 52, 8, 1024 * 1024 * 2)
    a("v_lshrrev_b32 v1, 5, v0\nv_bfe_u32 v3, v0, 4, 1\nv_lshlrev_b32 v1, 3, v1\nv_lshl_add_u32 v1, v3, 4, v1\nv_bfe_u32 v3, v0, 3, 1\nv_add_u32 v1, v1, v3")
    a(f"s_lshl_b32 s61, s{LW}, 2\nv_add_u32 v1, s61, v1")
    a(f"s_lshl_b32 s61, s{S_CB}, 8\ns_lshl_b32 s62, s{S_KH}, 7\ns_add_u32 s61, s61, s62")
    a("v_lshl_add_u32 v14, v1, 11, v2\nv_add_u32 v14, s61, v14\nv_add_u32 v15, 4096, v14\nv_xor_b32 v16, 128, v14\nv_xor_b32 v17, 128, v15")
    a(f"s_lshl_b32 s61, s{S_MB16}, 14\ns_lshl_b32 s62, s{LW}, 13\ns_add_u32 s61, s61, s62\nv_lshlrev_b32 v18, 4, v0\nv_add_u32 v18, s61, v18")
    a(f"s_lshl_b32 s67, s{LW}, 13\ns_mov_b32 s61, s67\ns_mul_i32 s62, s{S_KH}, {28*262144}")
    a(f"s_add_u32 s66, s66, {P2A}\ns_mov_b32 s63, s66\ns_mul_i32 s64, s{S_KH}, {28*131072}")
    a(f"s_add_u32 s68, s67, {P2RING}\ns_add_u32 s69, s66, {P2RING}")
    a("s_waitcnt vmcnt(22)\ns_barrier\ns_waitcnt vmcnt(7)\ns_barrier\ns_waitcnt vmcnt(0)\ns_barrier\ns_barrier")

    def astage():
        a("s_mov_b32 m0, s61\ns_add_u32 s46, s62, 4096")
        for n in range(4): a(f"buffer_load_dwordx4 v18, s[{SRD_WS}:{SRD_WS+3}], s62 offen offset:{n*1024} sc1 lds")
        a("s_add_u32 m0, m0, 4096\ns_nop 0")
        for n in range(4): a(f"buffer_load_dwordx4 v18, s[{SRD_WS}:{SRD_WS+3}], s46 offen offset:{n*1024} sc1 lds")
        a(f"s_add_u32 s62, s62, 0x40000\ns_add_u32 s61, s61, {P2SLOT}\ns_cmp_eq_u32 s61, s68\ns_cselect_b32 s61, s67, s61")

    def wstage(sr, lines):
        a("s_mov_b32 m0, s63\ns_add_u32 s46, s64, 0x10000")
        first = True
        for ln in range(lines):
            for kk in range(2):
                if not first: a(f"s_add_u32 m0, m0, {UNIT-BLK}\ns_nop 0")
                first = False
                a(f"buffer_load_dwordx4 v{14+2*ln}, s[{sr}:{sr+3}], s{46 if kk else 64} offen lds")
                a(f"s_add_u32 m0, m0, {BLK}\ns_nop 0")
                a(f"buffer_load_dwordx4 v{15+2*ln}, s[{sr}:{sr+3}], s{46 if kk else 64} offen lds")
        a(f"s_add_u32 s64, s64, 0x20000\ns_add_u32 s63, s63, {P2SLOT}\ns_cmp_eq_u32 s63, s69\ns_cselect_b32 s63, s66, s63")

    for s in range(4): wstage(48, 2)
    a("s_barrier\ns_barrier")
    for s in range(4): astage()
    a("s_waitcnt vmcnt(24)\ns_barrier")
    a("s_waitcnt vmcnt(16)\ns_barrier")
    astage(); wstage(48, 2)
    a("s_waitcnt vmcnt(24)\ns_barrier")
    astage(); wstage(48, 2)
    a("s_mov_b32 s34, 22")
    a("L_l2:")
    a("s_waitcnt vmcnt(32)\ns_barrier")
    astage(); wstage(48, 2)
    a("s_sub_u32 s34, s34, 1\ns_cmp_lg_u32 s34, 0\ns_cbranch_scc1 L_l2")
    a(f"s_mov_b32 s62, {56*262144}\ns_mov_b32 s64, 0")
    a("s_waitcnt vmcnt(32)\ns_barrier")
    astage(); wstage(52, 1)
    a("s_waitcnt vmcnt(28)\ns_barrier")
    astage(); wstage(52, 1)
    a("s_mov_b32 s34, 14")
    a("L_l3:")
    a("s_waitcnt vmcnt(24)\ns_barrier")
    astage(); wstage(52, 1)
    a("s_sub_u32 s34, s34, 1\ns_cmp_lg_u32 s34, 0\ns_cbranch_scc1 L_l3")
    a("s_waitcnt vmcnt(24)\ns_barrier\ns_waitcnt vmcnt(12)\ns_barrier\ns_waitcnt vmcnt(0)\ns_barrier\ns_barrier")
    a("s_endpgm")


def helper(g):
    a = g.a
    W = f"s[{SRD_WS}:{SRD_WS+3}]"
    a("L_helper:")
    HW = 45
    a(f"s_sub_u32 s{HW}, s{S_WAVE}, 6")
    srd(g, 28, 16, 2048)
    srd(g, 48, 24, 256)
    a("v_lshlrev_b32 v4, 4, v0\nv_lshlrev_b32 v5, 2, v0\nv_mov_b32 v6, 0\nv_mov_b32 v7, 1")
    a(f"s_lshl_b32 s46, s{HW}, 11\ns_add_u32 s46, s46, {LDS_GW}\ns_mov_b32 m0, s46\ns_nop 0")
    a("buffer_load_dwordx4 v4, s[28:31], 0 offen lds\nbuffer_load_dwordx4 v4, s[28:31], 0 offen offset:1024 lds")
    a(f"s_getpc_b64 s[52:53]\nL_pc:\ns_sub_u32 s52, s52, L_pc-{NAME}\ns_subb_u32 s53, s53, 0")
    a(f"s_mov_b32 s54, L_codeend-{NAME}\ns_mov_b32 s55, 0x20000")
    a(f"s_lshr_b32 s47, s2, 3\ns_and_b32 s47, s47, 3\ns_lshl_b32 s47, s47, 1\ns_add_u32 s47, s47, s{HW}\ns_lshl_b32 s47, s47, 13\nv_lshlrev_b32 v8, 7, v0")
    a("buffer_load_dword v9, v8, s[52:55], s47 offen")
    a(f"s_cmp_lg_u32 s{HW}, 0\ns_cbranch_scc1 L_h_noinit")
    a(f"s_lshl_b32 s47, s2, 7\ns_add_u32 s47, s47, {WS_FLAG}\ns_mov_b32 exec_hi, 0")
    a(f"buffer_store_dword v6, v5, {W}, s47 offen sc1")
    a(f"s_cmp_ge_u32 s2, 56\ns_cbranch_scc1 L_h_i2\ns_add_u32 s47, s47, {F_H}")
    a(f"buffer_store_dword v6, v5, {W}, s47 offen sc1")
    a("L_h_i2:\ns_waitcnt vmcnt(0)\ns_mov_b32 exec_lo, 1")
    a(f"s_lshl_b32 s47, s{S_XCD}, 5")
    a("buffer_atomic_add v7, v6, s[48:51], s47 offen sc1")
    a("s_mov_b64 exec, -1")
    a("L_h_noinit:")
    a(f"s_and_b32 s47, s{S_MB16}, 1\ns_lshl_b32 s47, s47, 1\ns_add_u32 s47, s47, s{HW}\ns_mul_i32 s47, s47, {2*UNIT}\nv_add_u32 v10, s47, v4")
    a(f"v_and_b32 v11, 7, v0\nv_lshlrev_b32 v11, 4, v11\nv_add_u32 v11, s46, v11")
    for r in range(16, 24): a(f"v_mov_b32 v{r}, 0")
    a(f"s_lshl_b32 s56, s{S_PHI}, 7\ns_mov_b32 s57, 0\ns_mov_b32 s34, 16")
    if g.o['pfw']:
        srd(g, 60, 14, 3584 * 1024 * 2)
        srd(g, 64, 8, 1024 * 1024 * 2)
    a("s_waitcnt vmcnt(0)")
    a("L_h1:")
    for u in range(2):
        a("s_barrier")
        if u == 0:
            a("v_add_u32 v12, s56, v11\nv_add_u32 v13, s57, v10")
            a("ds_read_b128 v[24:27], v12")
        for j in range(4): a(f"ds_read_b128 {vr(28+4*j)}, v13 offset:{u*UNIT+j*BLK}")
        if u == 1 and g.o['pfw']:
            l1, l2, l3 = g.lab("pf"), g.lab("pf"), g.lab("pf")
            a(f"s_lshl_b32 s47, s2, 1\ns_add_u32 s47, s47, s{HW}\ns_lshl_b32 s47, s47, 13")
            a(f"s_cmp_lg_u32 s34, 9\ns_cbranch_scc1 {l1}\nbuffer_load_dword v9, v8, s[60:63], s47 offen\n{l1}:")
            a(f"s_cmp_lg_u32 s34, 4\ns_cbranch_scc1 {l3}\nbuffer_load_dword v9, v8, s[64:67], s47 offen\n{l3}:")
            a(f"s_cmp_lg_u32 s34, 7\ns_cbranch_scc1 {l2}\ns_add_u32 s47, s47, 0x400000\nbuffer_load_dword v9, v8, s[60:63], s47 offen\n{l2}:")
        a("s_waitcnt lgkmcnt(0)")
        for r in range(4):
            for j in range(4): a(f"v_dot2_f32_bf16 v{16+4*u+j}, v{28+4*j+r}, v{24+r}, v{16+4*u+j}")
    a(f"s_add_u32 s56, s56, 128\ns_and_b32 s56, s56, 2047\ns_add_u32 s57, s57, {XSLOT}\ns_cmp_eq_u32 s57, {XRING}\ns_cselect_b32 s57, 0, s57")
    a("s_sub_u32 s34, s34, 1\ns_cmp_lg_u32 s34, 0\ns_cbranch_scc1 L_h1")
    a("s_barrier")
    for pat in ["quad_perm:[1,0,3,2]", "quad_perm:[2,3,0,1]", "row_half_mirror"]:
        a("s_nop 1")
        for r in range(16, 24): a(f"v_add_f32_dpp v{r}, v{r}, v{r} {pat} row_mask:0xf bank_mask:0xf")
    for r in range(16, 24): a(f"v_mul_f32 v{r}, 0xbfb8aa3b, v{r}")
    for r in range(16, 24): a(f"v_exp_f32 v{r}, v{r}")
    for r in range(16, 24): a(f"v_add_f32 v{r}, 1.0, v{r}")
    for r in range(16, 24): a(f"v_rcp_f32 v{r}, v{r}")
    a("v_lshrrev_b32 v12, 5, v0\nv_bfe_u32 v13, v0, 4, 1\nv_lshlrev_b32 v12, 4, v12\nv_lshl_add_u32 v12, v13, 2, v12\nv_bfe_u32 v13, v0, 3, 1\nv_add_u32 v12, v12, v13")
    a(f"s_lshl_b32 s47, s{HW}, 8\ns_add_u32 s47, s47, {LDS_G}\nv_lshl_add_u32 v12, v12, 2, s47")
    for u in range(2):
        for j in range(4): a(f"ds_write_b32 v12, v{16+4*u+j} offset:{(32*u+8*(j>>1)+2*(j&1))*4}")
    a(f"s_cmp_lg_u32 s{HW}, 0\ns_cbranch_scc1 L_h_idle")

    def poll_issue(srdtxt, soff, vaddr=5):
        a(f"buffer_load_dword v14, v{vaddr}, {srdtxt}, s{soff} offen sc1")

    def poll_check(srdtxt, soff, nl, val, vaddr=5):
        l0, l1 = g.lab("poll"), g.lab("pollok")
        a(f"s_mov_b32 s35, {SPIN}\n{l0}:\ns_waitcnt vmcnt(0)")
        a(f"v_cmp_ne_u32 vcc, {val}, v14\ns_nop 1\ns_and_b32 s33, vcc_lo, {hex((1<<nl)-1)}\ns_cbranch_scc0 {l1}")
        a(f"s_sub_u32 s35, s35, 1\ns_cbranch_scc1 {l1}")
        poll_issue(srdtxt, soff, vaddr)
        a(f"s_branch {l0}\n{l1}:")

    def setflag(soff):
        a(f"s_mov_b64 exec, 1\nbuffer_store_dword v7, v6, {W}, s{soff} offen sc1\ns_mov_b64 exec, -1")

    def bars(n):
        for _ in range(n): a("s_barrier")

    a("v_lshlrev_b32 v15, 5, v0\ns_mov_b32 s47, 0\nv_min_u32 v5, 60, v5")
    poll_issue("s[48:51]", 47, 15)
    poll_check("s[48:51]", 47, 8, 32, 15)
    a(f"s_lshl_b32 s52, s{S_MB8}, 1\ns_lshr_b32 s53, s{S_QD}, 2\ns_add_u32 s53, s53, s52\ns_lshl_b32 s53, s53, 7\ns_add_u32 s53, s53, {WS_FLAG+F_H}")
    a(f"s_and_b32 s54, s{S_QD}, 3\ns_lshl_b32 s54, s54, 2\ns_add_u32 s54, s54, s{S_C}\ns_lshl_b32 s54, s54, 2\ns_add_u32 s53, s53, s54")
    a(f"s_add_u32 s52, s52, s{S_KH}\ns_lshl_b32 s52, s52, 7\ns_add_u32 s52, s52, {WS_FLAG+F_H}")
    a(f"s_lshl_b32 s54, s{S_PAIR}, 7\ns_add_u32 s54, s54, {WS_FLAG+F_KV1}\ns_add_u32 s55, s54, {F_KV2-F_KV1}")
    a(f"s_lshl_b32 s47, s{S_MB8}, 2\ns_add_u32 s56, s54, s47\ns_add_u32 s57, s55, s47")
    a(f"s_lshl_b32 s58, s{S_MB8}, 7\ns_add_u32 s58, s58, {WS_FLAG+F_O}\ns_lshl_b32 s47, s{S_PAIR}, 2\ns_add_u32 s59, s58, s47")
    a(f"s_lshl_b32 s60, s2, 7\ns_add_u32 s60, s60, {WS_FLAG+F_P}\ns_xor_b32 s61, s60, 0x100")
    a("s_waitcnt lgkmcnt(0)\ns_barrier")
    setflag(53)
    poll_issue(W, 52); poll_check(W, 52, 16, 1)
    bars(3)
    a(f"s_cmp_ge_u32 s{S_C}, 2\ns_cbranch_scc1 L_h_q")
    setflag(56)
    a(f"s_cmp_ge_u32 s{S_MB8}, 6\ns_cbranch_scc1 L_h_kvidle")
    bars(2)
    poll_issue(W, 54)
    bars(2)
    poll_check(W, 54, 8, 1)
    a(f"s_mul_i32 s47, s{S_PAIR}, {8*12288}\ns_lshl_b32 s46, s{S_MB8}, 11\ns_add_u32 s47, s47, s46\ns_add_u32 s47, s47, {WS_KVP}")
    for m in range(8):
        for dt in range(2): a(f"buffer_load_dwordx4 {vr(32+(m*2+dt)*4)}, v4, {W}, s47 offen offset:{dt*1024} sc1")
        if m < 7: a("s_add_u32 s47, s47, 12288")
    bars(2)
    a("s_waitcnt vmcnt(0)")
    for st in (32, 16, 8):
        for r in range(st): a(f"v_add_f32 v{32+r}, v{32+r}, v{32+st+r}")
    for r in range(4): a(f"v_cvt_pk_bf16_f32 v{32+r}, v{32+2*r}, v{33+2*r}")
    a(f"s_mul_i32 s47, s{S_PAIR}, 6144\ns_lshl_b32 s46, s{S_MB8}, 10\ns_add_u32 s47, s47, s46\ns_add_u32 s47, s47, {WS_KVF}")
    a(f"buffer_store_dwordx4 v[32:35], v4, {W}, s47 offen sc1")
    bars(2)
    a("s_waitcnt vmcnt(0)")
    setflag(57)
    bars(13)
    a("s_branch L_h_join")
    a("L_h_kvidle:")
    bars(21)
    a("s_branch L_h_join")
    a("L_h_q:")
    bars(9)
    poll_issue(W, 55)
    bars(2)
    poll_check(W, 55, 6, 1)
    bars(7)
    setflag(59)
    bars(3)
    a("L_h_join:")
    poll_issue(W, 58)
    bars(2)
    poll_check(W, 58, 16, 1)
    bars(10)
    setflag(60)
    bars(2)
    poll_issue(W, 61)
    bars(2)
    poll_check(W, 61, 1, 1)
    bars(6)
    a("s_endpgm")
    a("L_h_idle:")
    a("s_waitcnt vmcnt(0) lgkmcnt(0)\ns_endpgm")


HEADER = open("gated_mix__linear_attn_block__dense_activation_relu__prompt.s.ref").read().split("; Override")[0] \
    if __name__ == "__main__" else ""


def build(**opt):
    g = G(**opt)
    g.L.append(f"; @launch grid=(256,1,1) block=(512,1,1) lds={LDS_TOTAL}")
    g.a(f'.amdgcn_target "amdgcn-amd-amdhsa--gfx950"\n.text\n.globl {NAME}\n.p2align 8\n.type {NAME},@function\n{NAME}:')
    prologue(g)
    compute(g)
    loader(g)
    helper(g)
    g.a("L_exit:\ns_endpgm\nL_codeend:")
    g.L.append(f""".section .rodata,"a"
.p2align 6
.amdhsa_kernel {NAME}
  .amdhsa_next_free_vgpr 256
  .amdhsa_next_free_sgpr 102
  .amdhsa_accum_offset 256
  .amdhsa_group_segment_fixed_size 0
  .amdhsa_kernarg_size 80
  .amdhsa_user_sgpr_count 2
  .amdhsa_user_sgpr_kernarg_segment_ptr 1
  .amdhsa_system_sgpr_workgroup_id_x 1
.end_amdhsa_kernel""")
    return g.text()


if __name__ == "__main__":
    out = sys.argv[1]
    opt = {}
    for kv in sys.argv[2:]:
        k, v = kv.split("=")
        opt[k] = eval(v)
    open(out, "w").write(HEADER + build(**opt))
```

```python
import sys

NAME = "gated_mix__linear_attn_block__dense_activation_relu__prompt_kernel"

WS_HO = 0
WS_PART = 0x1200000
WS_KVP = 0x1A00000
WS_KVF = 0x1B80000
WS_FLAG = 0x1C00000
F_P, F_H, F_KV1, F_KV2, F_O = 0, 0x8000, 0x8800, 0x9000, 0x9800
WS_PROF = 0x1D00000

UNIT = 4224; BLK = 1056
XSLOT = 8 * UNIT
XRING = 3 * XSLOT
WSLOT = 3 * UNIT + 1024
WBASE = XRING
LDS_GW = WBASE + 4 * WSLOT
LDS_G = LDS_GW + 4096
P2A = 16384
P2SLOT = P2A + 4 * UNIT
P2RING = 4 * P2SLOT
LDS_TOTAL = 163840

SPIN = 100000


class G:
    def __init__(self, **opt):
        self.L = []
        self.o = dict(prof=False, krot=True, pfw=True)
        self.o.update(opt)
        self.uid = 0

    def a(self, s):
        for ln in s.split("\n"):
            ln = ln.strip()
            if ln:
                self.L.append(ln if ln.endswith(":") or ln.startswith(".") else "    " + ln)

    def lab(self, p):
        self.uid += 1
        return f"L_{p}_{self.uid}"

    def stamp(self, n):
        if self.o['prof']:
            self.a(f"s_memrealtime s[{70+2*n}:{71+2*n}]")

    def text(self):
        return "\n".join(self.L) + "\n"


def vr(b, n=4):
    return f"v[{b}:{b+n-1}]"


def mfma(d, a, b, c=None):
    return f"v_mfma_f32_16x16x32_bf16 {vr(d)}, {vr(a)}, {vr(b)}, {vr(d) if c is None else c}"


S_WAVE, S_MB8, S_QD, S_C, S_PAIR, S_MB16, S_CB, S_KH, S_PHI, S_XCD = 3, 36, 37, 38, 39, 40, 41, 42, 43, 44
SRD_WS = 20


def srd(g, d, base, nbytes):
    g.a(f"s_mov_b32 s{d}, s{base}\ns_mov_b32 s{d+1}, s{base+1}\ns_mov_b32 s{d+2}, {hex(nbytes)}\ns_mov_b32 s{d+3}, 0x20000")


def prologue(g):
    a = g.a
    a("s_cmp_ge_u32 s2, 256\ns_cbranch_scc1 L_exit")
    g.stamp(0)
    a("s_load_dwordx16 s[4:19], s[0:1], 0")
    a("s_load_dwordx4 s[24:27], s[0:1], 64")
    a("v_lshrrev_b32 v1, 6, v0\nv_and_b32 v0, 63, v0")
    a(f"s_and_b32 s{S_XCD}, s2, 7\ns_lshr_b32 s30, s2, 3")
    a(f"v_readfirstlane_b32 s{S_WAVE}, v1")
    a(f"s_lshr_b32 s31, s{S_XCD}, 2\ns_and_b32 s32, s{S_XCD}, 3")
    a(f"s_and_b32 s33, s30, 3\ns_lshl_b32 s{S_MB8}, s31, 2\ns_add_u32 s{S_MB8}, s{S_MB8}, s33")
    a("s_lshr_b32 s33, s30, 2")
    a(f"s_lshr_b32 s34, s33, 2\ns_lshl_b32 s{S_QD}, s32, 1\ns_add_u32 s{S_QD}, s{S_QD}, s34")
    a(f"s_and_b32 s{S_C}, s33, 3")
    a(f"s_and_b32 s34, s33, 1\ns_lshl_b32 s{S_PAIR}, s{S_QD}, 1\ns_add_u32 s{S_PAIR}, s{S_PAIR}, s34")
    a(f"s_lshl_b32 s{S_MB16}, s{S_MB8}, 1\ns_add_u32 s{S_MB16}, s{S_MB16}, s34")
    a(f"s_and_b32 s34, s32, 1\ns_lshl_b32 s34, s34, 2\ns_lshr_b32 s{S_CB}, s33, 1\ns_add_u32 s{S_CB}, s{S_CB}, s34")
    a(f"s_lshr_b32 s{S_KH}, s32, 1")
    if g.o['krot']:
        a(f"s_lshl_b32 s34, s31, 1\ns_add_u32 s34, s34, s32\ns_lshl_b32 s34, s34, 2\ns_and_b32 s{S_PHI}, s34, 15")
    else:
        a(f"s_mov_b32 s{S_PHI}, 0")
    a("s_waitcnt lgkmcnt(0)")
    srd(g, SRD_WS, 26, 0x10000000)
    a(f"s_cmp_ge_u32 s{S_WAVE}, 6\ns_cbranch_scc1 L_helper")
    a(f"s_cmp_ge_u32 s{S_WAVE}, 4\ns_cbranch_scc1 L_loader")


VX, VW, VQ = 1, 2, 3
WB = lambda n: 8 + 4 * (n % 4)
XLO = lambda b, i: 24 + 8 * b + 4 * i
XHI = lambda i: 40 + 4 * (i - 2)
AC = lambda j, i: 48 + (j * 4 + i) * 4


def p1_wread(t, j):
    n = 13 * t + j
    slot = (t % 4) * WSLOT
    if j < 12:
        return [f"ds_read_b64_tr_b16 v[{WB(n)+2*w}:{WB(n)+2*w+1}], v{VW} offset:{slot + (j//4)*UNIT + (j%4)*32 + w*256}" for w in range(2)]
    return [f"ds_read_b64_tr_b16 v[{WB(n)+2*w}:{WB(n)+2*w+1}], v{VQ} offset:{slot + w*256}" for w in range(2)]


def p1_xreg(t, i):
    return XLO(t % 2, i) if i < 2 else XHI(i)


def p1_xread(t, i):
    return f"ds_read_b128 {vr(p1_xreg(t,i))}, v{VX} offset:{(i>>1)*UNIT + (i&1)*512 + (t%2)*64}"


def p1_loop(g, kv):
    a = g.a
    L = g.lab("p1")
    seq = []
    for t in range(4):
        s = []
        s += [(0, 0), (0, 1), (1, 1), (1, 0), (1, 2), (1, 3), (0, 3), (0, 2)]
        for j in range(2, 11):
            o = [2, 3, 0, 1] if j % 2 == 0 else [1, 0, 3, 2]
            s += [(j, i) for i in o]
        s += [(11, 2), (11, 3), (12, 3), (12, 2), (12, 1), (12, 0), (11, 0), (11, 1)]
        post = [[] for _ in s]
        rd = lambda j, tt=t: [('W', tt, j, x) for x in p1_wread(tt, j)]
        r = rd(2); post[0].append(r[0]); post[1].append(r[1])
        r = rd(3); post[2].append(r[0]); post[3].append(r[1])
        r = rd(4); post[8].append(r[0]); post[9].append(r[1])
        r = rd(5); post[10].append(r[0]); post[11].append(r[1])
        for j in range(3, 10):
            base = 8 + (j - 2) * 4
            r = rd(j + 3); post[base].append(r[0]); post[base + 1].append(r[1])
        b10 = 8 + 8 * 4
        if t % 2 == 1:
            post[b10 - 2].append(('S', f"s_add_u32 s46, s46, {XSLOT}"))
            post[b10 - 2].append(('S', f"s_cmp_eq_u32 s46, {XRING}"))
            post[b10 - 1].append(('S', f"s_cselect_b32 s47, s48, s49"))
            post[b10 - 1].append(('S', f"s_cselect_b32 s46, 0, s46"))
            post[b10].append(('S', f"v_add_u32 v{VX}, s47, v{VX}"))
        post[b10 + 2].append(('BAR',))
        tn = t + 1
        r0 = [('W', tn, 0, x) for x in p1_wread(tn, 0)]
        r1 = [('W', tn, 1, x) for x in p1_wread(tn, 1)]
        post[b10 + 3] += [r0[0], r0[1]]
        post[44] += [('X', tn, 0, p1_xread(tn, 0)), ('X', tn, 1, p1_xread(tn, 1))]
        post[45] += [r1[0]]
        post[46] += [r1[1]]
        post[47] += [('X', tn, 2, p1_xread(tn, 2))]
        post[48] += [('X', tn, 3, p1_xread(tn, 3))]
        if t == 3:
            post[49].append(('S', "s_sub_u32 s45, s45, 1"))
            post[50].append(('S', "s_cmp_lg_u32 s45, 0"))
        for (j, i), p in zip(s, post):
            seq.append(((t, j, i), p))
    q = [('W', 0, 0), ('W', 0, 0), ('X', 0, 0), ('X', 0, 1), ('W', 0, 1), ('W', 0, 1), ('X', 0, 2), ('X', 0, 3)]
    a(f".p2align 6\n{L}:")
    for (t, j, i), p in seq:
        need = [k for k, e in enumerate(q) if e == ('W', t, j) or e == ('X', t, i)]
        if need:
            k = max(need)
            a(f"s_waitcnt lgkmcnt({len(q)-1-k})")
            q = q[k + 1:]
        n = 13 * t + j
        if kv and j < 8:
            a(mfma(AC(j, i), p1_xreg(t, i), WB(n)))
        else:
            a(mfma(AC(j, i), WB(n), p1_xreg(t, i)))
        for e in p:
            if e[0] == 'S':
                a(e[1])
            elif e[0] == 'BAR':
                a("s_waitcnt lgkmcnt(0)\ns_barrier"); q = []
            else:
                a(e[3]); q.append((e[0], e[1] % 4, e[2]))
    a(f"s_cbranch_scc1 {L}")


def p1_first_reads(g):
    for x in p1_wread(0, 0): g.a(x)
    g.a(p1_xread(0, 0)); g.a(p1_xread(0, 1))
    for x in p1_wread(0, 1): g.a(x)
    g.a(p1_xread(0, 2)); g.a(p1_xread(0, 3))


def h_line_store(g, j0, soff):
    a = g.a
    for i in range(4):
        for p in range(2):
            d = AC(j0 + 2 * p, i); e = AC(j0 + 2 * p + 1, i)
            a(f"v_cvt_pk_bf16_f32 v{d}, v{d}, v{d+1}\nv_cvt_pk_bf16_f32 v{d+1}, v{d+2}, v{d+3}")
            a(f"v_cvt_pk_bf16_f32 v{d+2}, v{e}, v{e+1}\nv_cvt_pk_bf16_f32 v{d+3}, v{e+2}, v{e+3}")
            for r in range(4): a(f"v_pk_max_i16 v{d+r}, v{d+r}, 0")
            a(f"buffer_store_dwordx4 {vr(d)}, v4, s[{SRD_WS}:{SRD_WS+3}], s{soff} offen offset:{(i&1)*2048+p*1024} sc1")
        if i == 1: a(f"s_add_u32 s{soff}, s{soff}, 4096")


def h_quarter_store(g, soff):
    a = g.a
    for i in range(4):
        d = AC(12, i)
        a(f"v_cvt_pk_bf16_f32 v{d}, v{d}, v{d+1}\nv_cvt_pk_bf16_f32 v{d+1}, v{d+2}, v{d+3}")
        for r in range(2): a(f"v_pk_max_i16 v{d+r}, v{d+r}, 0")
        a(f"buffer_store_dwordx2 v[{d}:{d+1}], v4, s[{SRD_WS}:{SRD_WS+3}], s{soff} offen offset:{(i&1)*2048} sc1")
        if i == 1: a(f"s_add_u32 s{soff}, s{soff}, 4096")


def phi_regs(g, regs, tmp):
    a = g.a
    for b in range(0, len(regs), 8):
        rs = regs[b:b + 8]
        for k, r in enumerate(rs): a(f"v_mul_f32 v{tmp+k}, s50, v{r}")
        for k, r in enumerate(rs):
            a(f"v_exp_f32 v{tmp+k}, v{tmp+k} clamp")
            a(f"v_max_f32 v{r}, s51, v{r}")
        for k, r in enumerate(rs): a(f"v_add_f32 v{r}, v{r}, v{tmp+k}")


def pack8(g, d, e):
    g.a(f"v_cvt_pk_bf16_f32 v{d}, v{d}, v{d+1}\nv_cvt_pk_bf16_f32 v{d+1}, v{d+2}, v{d+3}")
    g.a(f"v_cvt_pk_bf16_f32 v{d+2}, v{e}, v{e+1}\nv_cvt_pk_bf16_f32 v{d+3}, v{e+2}, v{e+3}")


VA2, VW2 = 1, 2
AF = lambda b, i: 96 + 16 * b + 4 * i
WF = lambda b, j: 128 + 16 * b + 4 * j
ACC = lambda j, i: 160 + (j * 4 + i) * 4
ACD = lambda j, i: 224 + (j * 4 + i) * 4
PQ = lambda i, h: AC(2 * h, i)
KVF = lambda f: 8 + 4 * f
PP = lambda j, i: 8 + (j * 4 + i) * 4


def p2_reads(b, kk, nj):
    R = []
    def rw(j):
        for w in range(2):
            R.append(f"ds_read_b64_tr_b16 v[{WF(b,j)+2*w}:{WF(b,j)+2*w+1}], v{VW2} offset:{((j>>1)*2+kk)*UNIT + (j&1)*32 + w*256}")
    rw(0)
    for i in range(4): R.append(f"ds_read_b128 {vr(AF(b,i))}, v{VA2} offset:{i*2048+kk*1024}")
    for j in range(1, nj): rw(j)
    return R


def p2_loop(g, nj, iters):
    a = g.a
    acc = ACC if nj == 4 else ACD
    L = g.lab("p2")
    a(f"s_mov_b32 s45, {iters}")
    a(f".p2align 3\n{L}:")
    rpg = 1 if nj == 4 else 2
    for b in range(2):
        R = p2_reads(1 - b, 1 - b, nj)
        extra = []
        if b == 0:
            extra = [f"s_add_u32 s46, s46, {P2SLOT}", f"s_cmp_eq_u32 s46, {P2RING}", "s_cselect_b32 s47, s48, s49",
                     "s_cselect_b32 s46, 0, s46", f"v_add_u32 v{VA2}, s47, v{VA2}", f"v_add_u32 v{VW2}, s47, v{VW2}"]
        else:
            extra = ["s_sub_u32 s45, s45, 1", "s_cmp_lg_u32 s45, 0"]
        n = 0
        for j in range(nj):
            for i in (range(4) if j % 2 == 0 else range(3, -1, -1)):
                a(mfma(acc(j, i), WF(b, j), AF(b, i)))
                if b == 1 and n == 0:
                    a("s_barrier")
                    a(R.pop(0))
                elif R:
                    for _ in range(rpg):
                        if R: a(R.pop(0))
                else:
                    for _ in range(2):
                        if extra: a(extra.pop(0))
                n += 1
        assert not R
        for e in extra: a(e)
        a("s_waitcnt lgkmcnt(0)")
    a(f"s_cbranch_scc1 {L}")


def compute(g):
    a = g.a
    a("v_and_b32 v4, 15, v0\nv_lshrrev_b32 v5, 4, v0")
    a("v_bfe_u32 v6, v4, 3, 1\nv_bfe_u32 v7, v4, 1, 1\nv_lshl_add_u32 v6, v6, 1, v7")
    a(f"v_mul_u32_u24 v{VX}, {BLK}, v6")
    a("v_bfe_u32 v6, v4, 2, 1\nv_and_b32 v7, 1, v4\nv_lshl_add_u32 v6, v6, 1, v7")
    a(f"v_lshl_add_u32 v{VX}, v6, 7, v{VX}\nv_lshl_add_u32 v{VX}, v5, 4, v{VX}")
    a(f"s_mul_i32 s45, s{S_WAVE}, {2*UNIT}\nv_add_u32 v{VX}, s45, v{VX}")
    a("v_and_b32 v6, 1, v5\nv_bfe_u32 v7, v4, 3, 1\nv_lshl_add_u32 v6, v6, 1, v7")
    a(f"v_mul_u32_u24 v{VW}, {BLK}, v6")
    a("v_lshrrev_b32 v6, 1, v5\nv_bfe_u32 v7, v4, 2, 1\nv_lshl_add_u32 v6, v6, 2, v7")
    a(f"v_lshl_add_u32 v{VW}, v6, 7, v{VW}\nv_and_b32 v6, 3, v4\nv_lshl_add_u32 v{VW}, v6, 3, v{VW}")
    a(f"v_add_u32 v{VW}, {WBASE}, v{VW}")
    a(f"v_lshrrev_b32 v6, 5, v0\nv_and_b32 v7, 31, v0\nv_lshlrev_b32 v7, 3, v7\nv_lshl_add_u32 v{VQ}, v6, 9, v7")
    a(f"v_add_u32 v{VQ}, {WBASE+3*UNIT}, v{VQ}")
    for r in range(48, 256): a(f"v_mov_b32 v{r}, 0")
    a(f"s_mov_b32 s45, 8\ns_mov_b32 s46, 0\ns_mov_b32 s48, {(-2*XSLOT) & 0xffffffff}\ns_mov_b32 s49, {XSLOT}")
    a("s_mov_b32 s50, 0x3fb8aa3b\ns_mov_b32 s51, 0x358637bd")
    a(f"s_lshl_b32 s52, s{S_MB8}, 15\ns_lshl_b32 s53, s{S_WAVE}, 13\ns_add_u32 s52, s52, s53")
    a(f"s_mul_i32 s53, s{S_QD}, 7")
    a(f"s_add_u32 s54, s53, 6\ns_lshl_b32 s54, s54, 18\ns_add_u32 s54, s54, s52")
    a(f"s_lshr_b32 s55, s{S_C}, 1\ns_lshl_b32 s55, s55, 10\ns_add_u32 s54, s54, s55")
    a(f"s_and_b32 s55, s{S_C}, 1\ns_lshl_b32 s55, s55, 3\ns_add_u32 s54, s54, s55")
    a("v_lshlrev_b32 v4, 4, v0")
    a("s_barrier")
    g.stamp(1)
    p1_first_reads(g)
    a(f"s_cmp_ge_u32 s{S_C}, 2\ns_cbranch_scc1 L_cq")
    p1_loop(g, True)
    g.stamp(2)
    a(f"s_add_u32 s55, s53, s{S_C}\ns_lshl_b32 s55, s55, 18\ns_add_u32 s55, s55, s52")
    a("s_waitcnt lgkmcnt(0)\ns_nop 4")
    h_line_store(g, 8, 55)
    h_quarter_store(g, 54)
    phi_regs(g, list(range(AC(0, 0), AC(4, 0))), 8)
    for s in range(8):
        for p in range(2): pack8(g, AC(s, 2 * p), AC(s, 2 * p + 1))
    for r in range(8, 12): a(f"v_mov_b32 v{r}, 0x3f803f80")
    T = lambda t: 176 + 4 * t
    a("s_nop 1")
    for p in range(2):
        for h in range(2):
            for dt in range(2):
                for e in range(3):
                    t = 2 * (3 * h + e) + dt
                    a(mfma(T(t), AC(2 * h + dt, 2 * p), AC(4 + 2 * h + e, 2 * p) if e < 2 else 8, "0" if p == 0 else None))
    a(f"s_mul_i32 s55, s{S_WAVE}, {P2SLOT}\nv_add_u32 v5, s55, v4")
    a("s_nop 7")
    for t in range(12): a(f"ds_write_b128 v5, {vr(T(t))} offset:{t*1024}")
    a("s_waitcnt vmcnt(0) lgkmcnt(0)\ns_barrier")
    g.stamp(3)
    a(f"s_mul_i32 s55, s{S_WAVE}, 3072\nv_add_u32 v5, s55, v4\nv_add_u32 v6, {2*P2SLOT}, v5")
    for w in range(4):
        for t in range(3):
            a(f"ds_read_b128 {vr(48+(w*3+t)*4)}, v{5+(w>>1)} offset:{(w&1)*P2SLOT+t*1024}")
    a(f"s_lshl_b32 s56, s{S_PAIR}, 3\ns_add_u32 s56, s56, s{S_MB8}\ns_mul_i32 s56, s56, 12288\ns_add_u32 s56, s56, s55\ns_add_u32 s56, s56, {WS_KVP}")
    a("s_waitcnt lgkmcnt(0)")
    for r in range(12): a(f"v_add_f32 v{48+r}, v{48+r}, v{60+r}\nv_add_f32 v{72+r}, v{72+r}, v{84+r}")
    for r in range(12): a(f"v_add_f32 v{48+r}, v{48+r}, v{72+r}")
    for t in range(3): a(f"buffer_store_dwordx4 {vr(48+4*t)}, v4, s[{SRD_WS}:{SRD_WS+3}], s56 offen offset:{t*1024} sc1")
    a("s_branch L_cjoin")
    a("L_cq:")
    p1_loop(g, False)
    g.stamp(2)
    a(f"s_lshl_b32 s55, s{S_C}, 1\ns_add_u32 s55, s55, s53\ns_sub_u32 s55, s55, 2\ns_lshl_b32 s55, s55, 18\ns_add_u32 s55, s55, s52\ns_add_u32 s56, s55, 0x40000")
    a("s_waitcnt lgkmcnt(0)\ns_nop 4")
    h_line_store(g, 4, 55)
    h_line_store(g, 8, 56)
    h_quarter_store(g, 54)
    phi_regs(g, list(range(AC(0, 0), AC(4, 0))), 8)
    for h in range(2):
        for i in range(4): pack8(g, AC(2 * h, i), AC(2 * h + 1, i))
    a("s_waitcnt vmcnt(0)\ns_barrier")
    g.stamp(3)
    a("L_cjoin:")
    a(f"s_lshr_b32 s57, s{S_WAVE}, 1\ns_and_b32 s58, s{S_WAVE}, 1")
    a(f"s_lshl_b32 s55, s57, 13\nv_add_u32 v{VA2}, s55, v4")
    a(f"s_lshl_b32 s55, s58, 6\ns_add_u32 s55, s55, {(P2A-WBASE) & 0xffffffff}\nv_add_u32 v{VW2}, s55, v{VW2}")
    for r in range(160, 256): a(f"v_mov_b32 v{r}, 0")
    a(f"s_mov_b32 s46, 0\ns_mov_b32 s48, {(-3*P2SLOT) & 0xffffffff}\ns_mov_b32 s49, {P2SLOT}")
    a("s_barrier")
    g.stamp(4)
    a("s_barrier")
    g.stamp(5)
    for x in p2_reads(0, 0, 4): a(x)
    a("s_waitcnt vmcnt(0) lgkmcnt(0)")
    a(f"s_cmp_ge_u32 s{S_C}, 2\ns_cbranch_scc1 L_c2q")
    p2_loop(g, 4, 28)
    a("s_branch L_c2join")
    a("L_c2q:")
    p2_loop(g, 4, 13)
    a(f"s_mul_i32 s55, s{S_PAIR}, 6144\ns_add_u32 s55, s55, {WS_KVF}\ns_add_u32 s56, s55, 4096")
    for f in range(6):
        a(f"buffer_load_dwordx4 {vr(KVF(f))}, v4, s[{SRD_WS}:{SRD_WS+3}], s{55+(f>>2)} offen offset:{(f&3)*1024} sc1")
    p2_loop(g, 4, 2)
    a(f"s_add_u32 s55, s{S_PAIR}, 56\ns_lshl_b32 s55, s55, 18\ns_add_u32 s55, s55, s52")
    a("s_waitcnt vmcnt(0)")
    TM = [32, 64]
    for i in range(4):
        for h in range(2):
            t = TM[h]
            for e in range(3): a(mfma(t + 4 * e, KVF(3 * h + e), PQ(i, h), "0"))
        a("s_nop 4")
        for h in range(2):
            t = TM[h]
            if h == 1: pass
            a(f"v_add_f32 v{t+8}, s51, v{t+8}\nv_rcp_f32 v{t+8}, v{t+8}\ns_nop 0")
            for r in range(8): a(f"v_mul_f32 v{t+r}, v{t+r}, v{t+8}")
            d = PQ(i, h)
            for r in range(4): a(f"v_cvt_pk_bf16_f32 v{d+r}, v{t+2*r}, v{t+2*r+1}")
            a(f"buffer_store_dwordx4 {vr(d)}, v4, s[{SRD_WS}:{SRD_WS+3}], s55 offen offset:{(i&1)*2048+h*1024} sc1")
        if i == 1: a("s_add_u32 s55, s55, 4096")
    p2_loop(g, 4, 3)
    a("s_waitcnt vmcnt(0)")
    p2_loop(g, 4, 10)
    a("L_c2join:")
    g.stamp(6)
    a(f"s_lshl_b32 s55, s2, 15\ns_lshl_b32 s56, s{S_WAVE}, 13\ns_add_u32 s55, s55, s56\ns_add_u32 s55, s55, {WS_PART}")
    a("s_xor_b32 s59, s55, 0x10000\ns_add_u32 s56, s55, 4096\ns_add_u32 s60, s59, 4096\ns_nop 4")
    for j in range(2):
        for i in range(4):
            a(f"buffer_store_dwordx4 {vr(ACC(2+j,i))}, v4, s[{SRD_WS}:{SRD_WS+3}], s{55+j} offen offset:{i*1024} sc1")
    p2_loop(g, 2, 5)
    a("s_waitcnt vmcnt(0)")
    p2_loop(g, 2, 6)
    for j in range(2):
        for i in range(4):
            a(f"buffer_load_dwordx4 {vr(PP(j,i))}, v4, s[{SRD_WS}:{SRD_WS+3}], s{59+j} offen offset:{i*1024} sc1")
    p2_loop(g, 2, 5)
    g.stamp(7)
    srd(g, 28, 18, 2048 * 1024 * 2)
    a(f"v_and_b32 v5, 15, v0\ns_lshl_b32 s55, s57, 8\ns_add_u32 s55, s55, {LDS_G}\nv_lshl_add_u32 v6, v5, 2, s55")
    for i in range(4): a(f"ds_read_b32 v{40+i}, v6 offset:{i*64}")
    a("v_lshlrev_b32 v5, 11, v5\nv_bfe_u32 v6, v0, 4, 1\nv_lshl_add_u32 v5, v6, 5, v5\nv_lshrrev_b32 v6, 5, v0\nv_lshl_add_u32 v5, v6, 4, v5")
    a(f"s_lshl_b32 s55, s{S_MB16}, 18\ns_lshl_b32 s56, s57, 17\ns_add_u32 s55, s55, s56")
    a(f"s_lshl_b32 s56, s{S_CB}, 8\ns_add_u32 s55, s55, s56\ns_lshl_b32 s56, s{S_KH}, 7\ns_add_u32 s55, s55, s56\ns_lshl_b32 s56, s58, 6\ns_add_u32 s55, s55, s56")
    a("s_waitcnt vmcnt(0) lgkmcnt(0)")
    for i in range(4):
        for j in range(2):
            for r in range(4): a(f"v_add_f32 v{PP(j,i)+r}, v{PP(j,i)+r}, v{ACC(j,i)+r}")
        for j in range(2):
            for r in range(4): a(f"v_sub_f32 v{ACD(j,i)+r}, v{ACD(j,i)+r}, v{PP(j,i)+r}")
        for j in range(2):
            for r in range(4): a(f"v_fmac_f32 v{PP(j,i)+r}, v{40+i}, v{ACD(j,i)+r}")
        d = PP(0, i)
        pack8(g, d, PP(1, i))
        a(f"s_nop 1\nv_permlane16_swap_b32 v{d}, v{d+2}\nv_permlane16_swap_b32 v{d+1}, v{d+3}")
        a(f"buffer_store_dwordx4 {vr(d)}, v5, s[28:31], s55 offen")
        if i < 3: a("s_add_u32 s55, s55, 0x8000")
    if g.o['prof']:
        a("s_waitcnt vmcnt(0)")
        g.stamp(8)
        a(f"s_waitcnt lgkmcnt(0)\ns_cmp_lg_u32 s{S_WAVE}, 0\ns_cbranch_scc1 L_exit")
        a(f"s_lshl_b32 s55, s2, 6\ns_add_u32 s55, s55, {WS_PROF}\nv_mov_b32 v5, 0")
        for n in range(9):
            a(f"v_mov_b32 v6, s{70+2*n}\nbuffer_store_dword v6, v5, s[{SRD_WS}:{SRD_WS+3}], s55 offen offset:{4*n}\ns_nop 1")
        if g.o.get('dbgprof'):
            srd(g, 28, 24, 256)
            a("s_mov_b64 exec, 1\ns_not_b32 s55, s70\nv_mov_b32 v6, s55\nbuffer_atomic_umax v6, v5, s[28:31], 0 offen offset:4 sc1\ns_nop 1")
            for n in range(9):
                w = n+2 if n+2<8 else n+3
                a(f"v_mov_b32 v6, s{70+2*n}\nbuffer_atomic_umax v6, v5, s[28:31], 0 offen offset:{4*w} sc1\ns_nop 1")
    a("s_endpgm")


def loader(g):
    a = g.a
    a("L_loader:")
    LW = 45
    a(f"s_sub_u32 s{LW}, s{S_WAVE}, 4")
    srd(g, 28, 4, 2048 * 1024 * 2)
    srd(g, 48, 6, 1024 * 3072 * 2)
    srd(g, 56, 12, 1024 * 3584 * 2)
    a(f"s_cmp_ge_u32 s{S_C}, 2")
    a(f"s_cselect_b32 s52, s12, s6\ns_cselect_b32 s53, s13, s7\ns_cselect_b32 s54, s58, s50\ns_mov_b32 s55, 0x20000")
    a("s_movk_i32 s60, 6144\ns_cselect_b32 s60, 7168, s60")
    a("v_lshrrev_b32 v1, 5, v0\nv_bfe_u32 v2, v0, 4, 1\nv_lshlrev_b32 v1, 4, v1\nv_lshl_add_u32 v1, v2, 2, v1\nv_bfe_u32 v2, v0, 3, 1\nv_add_u32 v1, v1, v2")
    a(f"s_lshl_b32 s61, s{LW}, 3\nv_add_u32 v1, s61, v1\nv_and_b32 v2, 7, v0\nv_lshlrev_b32 v2, 4, v2")
    a(f"s_lshl_b32 s61, s{S_MB8}, 19\nv_lshl_add_u32 v4, v1, 11, v2\nv_add_u32 v4, s61, v4\nv_add_u32 v5, 4096, v4")
    a(f"s_cmp_ge_u32 s{S_C}, 2\ns_cselect_b32 s61, 0, 2048\ns_lshl_b32 s62, s{S_PAIR}, 7\ns_add_u32 s61, s61, s62")
    a("v_mul_u32_u24 v6, 6144, v1\nv_add3_u32 v6, v6, v2, s61\nv_add_u32 v7, 12288, v6")
    a(f"s_mul_i32 s63, s{S_QD}, 7\ns_lshl_b32 s64, s{S_C}, 1\ns_add_u32 s64, s64, s63\ns_sub_u32 s65, s64, 2\ns_lshl_b32 s65, s65, 7\ns_add_u32 s62, s62, 4096")
    a(f"s_cmp_ge_u32 s{S_C}, 2\ns_cselect_b32 s61, s65, s62")
    a("v_mul_lo_u32 v8, v1, s60\nv_add3_u32 v8, v8, v2, s61\ns_lshl_b32 s62, s60, 1\nv_add_u32 v9, s62, v8")
    a(f"s_sub_u32 s64, s64, 1\ns_add_u32 s65, s63, s{S_C}\ns_cmp_ge_u32 s{S_C}, 2\ns_cselect_b32 s61, s64, s65\ns_lshl_b32 s61, s61, 7")
    a("v_mul_u32_u24 v10, 7168, v1\nv_add3_u32 v10, v10, v2, s61\nv_add_u32 v11, 14336, v10")
    a("v_bfe_u32 v12, v0, 4, 1\nv_bfe_u32 v13, v0, 3, 1\nv_lshlrev_b32 v12, 2, v12\nv_lshl_add_u32 v12, v13, 3, v12\nv_bfe_u32 v13, v0, 1, 2\nv_add_u32 v12, v12, v13")
    a(f"s_lshl_b32 s61, s{LW}, 4\nv_add_u32 v12, s61, v12\nv_mul_u32_u24 v12, 7168, v12\nv_and_b32 v13, 1, v0\nv_lshl_add_u32 v12, v13, 4, v12")
    a(f"s_add_u32 s61, s63, 6\ns_lshl_b32 s61, s61, 7\ns_lshl_b32 s62, s{S_C}, 5\ns_add_u32 s61, s61, s62\nv_add_u32 v12, s61, v12")
    a("s_lshl_b32 s60, s60, 5")
    a(f"s_mul_i32 s66, s{LW}, {2*BLK}")
    a(f"s_mov_b32 s61, s66\ns_lshl_b32 s62, s{S_PHI}, 7\ns_mov_b32 s63, 0\ns_lshl_b32 s64, s{S_PHI}, 1\ns_add_u32 s65, s66, {WBASE}")
    a(f"s_add_u32 s67, s66, {XRING}\ns_add_u32 s68, s66, {WBASE+4*WSLOT}")
    a(f"s_lshl_b32 s69, s{LW}, 9\ns_sub_u32 s69, s69, s66\ns_add_u32 s69, s69, {3*UNIT}")

    def xhalf():
        a("s_add_u32 s46, s62, s63\ns_mov_b32 m0, s61")
        for u in range(4):
            if u: a(f"s_add_u32 m0, m0, {UNIT-BLK}\ns_add_u32 s46, s46, 0x10000")
            else: a("s_nop 0")
            a("buffer_load_dwordx4 v4, s[28:31], s46 offen lds")
            a(f"s_add_u32 m0, m0, {BLK}\ns_nop 0")
            a("buffer_load_dwordx4 v5, s[28:31], s46 offen lds")
        a(f"s_add_u32 s61, s61, {4*UNIT}\ns_cmp_eq_u32 s61, s67\ns_cselect_b32 s61, s66, s61")
        a("s_xor_b32 s63, s63, 0x40000\ns_cselect_b32 s47, 0, 128\ns_add_u32 s62, s62, s47\ns_and_b32 s62, s62, 2047")

    def wslab():
        a(f"s_mul_i32 s46, s64, {32*6144}\ns_mul_i32 s47, s64, s60\ns_mul_i32 s35, s64, {32*7168}\ns_mov_b32 m0, s65")
        for ln, (sr, so) in enumerate([(48, 46), (52, 47), (56, 35)]):
            if ln: a(f"s_add_u32 m0, m0, {UNIT-BLK}")
            a("s_nop 0")
            a(f"buffer_load_dwordx4 v{6+2*ln}, s[{sr}:{sr+3}], s{so} offen lds")
            a(f"s_add_u32 m0, m0, {BLK}\ns_nop 0")
            a(f"buffer_load_dwordx4 v{7+2*ln}, s[{sr}:{sr+3}], s{so} offen lds")
        a("s_add_u32 m0, s65, s69\ns_mov_b32 exec_hi, 0")
        a("buffer_load_dwordx4 v12, s[56:59], s35 offen lds")
        a("s_mov_b32 exec_hi, -1")
        a(f"s_add_u32 s65, s65, {WSLOT}\ns_cmp_eq_u32 s65, s68\ns_cselect_b32 s65, s67, s65")
        a("s_add_u32 s64, s64, 1\ns_and_b32 s64, s64, 31")

    xhalf(); wslab(); xhalf(); wslab(); xhalf()
    a("s_waitcnt vmcnt(15)\ns_barrier")
    wslab(); xhalf(); wslab(); xhalf()
    a("s_mov_b32 s34, 27")
    a("L_l1:")
    a("s_waitcnt vmcnt(30)\ns_barrier")
    wslab(); xhalf()
    a("s_sub_u32 s34, s34, 1\ns_cmp_lg_u32 s34, 0\ns_cbranch_scc1 L_l1")
    a("s_waitcnt vmcnt(30)\ns_barrier")
    wslab()
    srd(g, 48, 14, 3584 * 1024 * 2)
    srd(g, 52, 8, 1024 * 1024 * 2)
    a("v_lshrrev_b32 v1, 5, v0\nv_bfe_u32 v3, v0, 4, 1\nv_lshlrev_b32 v1, 3, v1\nv_lshl_add_u32 v1, v3, 4, v1\nv_bfe_u32 v3, v0, 3, 1\nv_add_u32 v1, v1, v3")
    a(f"s_lshl_b32 s61, s{LW}, 2\nv_add_u32 v1, s61, v1")
    a(f"s_lshl_b32 s61, s{S_CB}, 8\ns_lshl_b32 s62, s{S_KH}, 7\ns_add_u32 s61, s61, s62")
    a("v_lshl_add_u32 v14, v1, 11, v2\nv_add_u32 v14, s61, v14\nv_add_u32 v15, 4096, v14\nv_xor_b32 v16, 128, v14\nv_xor_b32 v17, 128, v15")
    a(f"s_lshl_b32 s61, s{S_MB16}, 14\ns_lshl_b32 s62, s{LW}, 13\ns_add_u32 s61, s61, s62\nv_lshlrev_b32 v18, 4, v0\nv_add_u32 v18, s61, v18")
    a(f"s_lshl_b32 s67, s{LW}, 13\ns_mov_b32 s61, s67\ns_mul_i32 s62, s{S_KH}, {28*262144}")
    a(f"s_add_u32 s66, s66, {P2A}\ns_mov_b32 s63, s66\ns_mul_i32 s64, s{S_KH}, {28*131072}")
    a(f"s_add_u32 s68, s67, {P2RING}\ns_add_u32 s69, s66, {P2RING}")
    a("s_waitcnt vmcnt(22)\ns_barrier\ns_waitcnt vmcnt(7)\ns_barrier\ns_waitcnt vmcnt(0)\ns_barrier\ns_barrier")

    def astage():
        a("s_mov_b32 m0, s61\ns_add_u32 s46, s62, 4096")
        for n in range(4): a(f"buffer_load_dwordx4 v18, s[{SRD_WS}:{SRD_WS+3}], s62 offen offset:{n*1024} sc1 lds")
        a("s_add_u32 m0, m0, 4096\ns_nop 0")
        for n in range(4): a(f"buffer_load_dwordx4 v18, s[{SRD_WS}:{SRD_WS+3}], s46 offen offset:{n*1024} sc1 lds")
        a(f"s_add_u32 s62, s62, 0x40000\ns_add_u32 s61, s61, {P2SLOT}\ns_cmp_eq_u32 s61, s68\ns_cselect_b32 s61, s67, s61")

    def wstage(sr, lines):
        a("s_mov_b32 m0, s63\ns_add_u32 s46, s64, 0x10000")
        first = True
        for ln in range(lines):
            for kk in range(2):
                if not first: a(f"s_add_u32 m0, m0, {UNIT-BLK}\ns_nop 0")
                first = False
                a(f"buffer_load_dwordx4 v{14+2*ln}, s[{sr}:{sr+3}], s{46 if kk else 64} offen lds")
                a(f"s_add_u32 m0, m0, {BLK}\ns_nop 0")
                a(f"buffer_load_dwordx4 v{15+2*ln}, s[{sr}:{sr+3}], s{46 if kk else 64} offen lds")
        a(f"s_add_u32 s64, s64, 0x20000\ns_add_u32 s63, s63, {P2SLOT}\ns_cmp_eq_u32 s63, s69\ns_cselect_b32 s63, s66, s63")

    for s in range(4): wstage(48, 2)
    a("s_barrier\ns_barrier")
    for s in range(4): astage()
    a("s_waitcnt vmcnt(24)\ns_barrier")
    a("s_waitcnt vmcnt(16)\ns_barrier")
    astage(); wstage(48, 2)
    a("s_waitcnt vmcnt(24)\ns_barrier")
    astage(); wstage(48, 2)
    a("s_mov_b32 s34, 22")
    a("L_l2:")
    a("s_waitcnt vmcnt(32)\ns_barrier")
    astage(); wstage(48, 2)
    a("s_sub_u32 s34, s34, 1\ns_cmp_lg_u32 s34, 0\ns_cbranch_scc1 L_l2")
    a(f"s_mov_b32 s62, {56*262144}\ns_mov_b32 s64, 0")
    a("s_waitcnt vmcnt(32)\ns_barrier")
    astage(); wstage(52, 1)
    a("s_waitcnt vmcnt(28)\ns_barrier")
    astage(); wstage(52, 1)
    a("s_mov_b32 s34, 14")
    a("L_l3:")
    a("s_waitcnt vmcnt(24)\ns_barrier")
    astage(); wstage(52, 1)
    a("s_sub_u32 s34, s34, 1\ns_cmp_lg_u32 s34, 0\ns_cbranch_scc1 L_l3")
    a("s_waitcnt vmcnt(24)\ns_barrier\ns_waitcnt vmcnt(12)\ns_barrier\ns_waitcnt vmcnt(0)\ns_barrier\ns_barrier")
    a("s_endpgm")


def helper(g):
    a = g.a
    W = f"s[{SRD_WS}:{SRD_WS+3}]"
    a("L_helper:")
    HW = 45
    a(f"s_sub_u32 s{HW}, s{S_WAVE}, 6")
    srd(g, 28, 16, 2048)
    srd(g, 48, 24, 256)
    a("v_lshlrev_b32 v4, 4, v0\nv_lshlrev_b32 v5, 2, v0\nv_mov_b32 v6, 0\nv_mov_b32 v7, 1")
    a(f"s_lshl_b32 s46, s{HW}, 11\ns_add_u32 s46, s46, {LDS_GW}\ns_mov_b32 m0, s46\ns_nop 0")
    a("buffer_load_dwordx4 v4, s[28:31], 0 offen lds\nbuffer_load_dwordx4 v4, s[28:31], 0 offen offset:1024 lds")
    a(f"s_getpc_b64 s[52:53]\nL_pc:\ns_sub_u32 s52, s52, L_pc-{NAME}\ns_subb_u32 s53, s53, 0")
    a(f"s_mov_b32 s54, L_codeend-{NAME}\ns_mov_b32 s55, 0x20000")
    a(f"s_lshr_b32 s47, s2, 3\ns_and_b32 s47, s47, 3\ns_lshl_b32 s47, s47, 1\ns_add_u32 s47, s47, s{HW}\ns_lshl_b32 s47, s47, 13\nv_lshlrev_b32 v8, 7, v0")
    a("buffer_load_dword v9, v8, s[52:55], s47 offen")
    a(f"s_cmp_lg_u32 s{HW}, 0\ns_cbranch_scc1 L_h_noinit")
    a(f"s_lshl_b32 s47, s2, 7\ns_add_u32 s47, s47, {WS_FLAG}\ns_mov_b32 exec_hi, 0")
    a(f"buffer_store_dword v6, v5, {W}, s47 offen sc1")
    a(f"s_cmp_ge_u32 s2, 56\ns_cbranch_scc1 L_h_i2\ns_add_u32 s47, s47, {F_H}")
    a(f"buffer_store_dword v6, v5, {W}, s47 offen sc1")
    a("L_h_i2:\ns_waitcnt vmcnt(0)\ns_mov_b32 exec_lo, 1")
    a(f"s_lshl_b32 s47, s{S_XCD}, 5")
    a("buffer_atomic_add v7, v6, s[48:51], s47 offen sc1")
    a("s_mov_b64 exec, -1")
    a("L_h_noinit:")
    a(f"s_and_b32 s47, s{S_MB16}, 1\ns_lshl_b32 s47, s47, 1\ns_add_u32 s47, s47, s{HW}\ns_mul_i32 s47, s47, {2*UNIT}\nv_add_u32 v10, s47, v4")
    a(f"v_and_b32 v11, 7, v0\nv_lshlrev_b32 v11, 4, v11\nv_add_u32 v11, s46, v11")
    for r in range(16, 24): a(f"v_mov_b32 v{r}, 0")
    a(f"s_lshl_b32 s56, s{S_PHI}, 7\ns_mov_b32 s57, 0\ns_mov_b32 s34, 16")
    if g.o['pfw']:
        srd(g, 60, 14, 3584 * 1024 * 2)
        srd(g, 64, 8, 1024 * 1024 * 2)
    a("s_waitcnt vmcnt(0)")
    a("L_h1:")
    for u in range(2):
        a("s_barrier")
        if u == 0:
            a("v_add_u32 v12, s56, v11\nv_add_u32 v13, s57, v10")
            a("ds_read_b128 v[24:27], v12")
        for j in range(4): a(f"ds_read_b128 {vr(28+4*j)}, v13 offset:{u*UNIT+j*BLK}")
        if u == 1 and g.o['pfw']:
            l1, l2, l3 = g.lab("pf"), g.lab("pf"), g.lab("pf")
            a(f"s_lshl_b32 s47, s2, 1\ns_add_u32 s47, s47, s{HW}\ns_lshl_b32 s47, s47, 13")
            a(f"s_cmp_lg_u32 s34, 9\ns_cbranch_scc1 {l1}\nbuffer_load_dword v9, v8, s[60:63], s47 offen\n{l1}:")
            a(f"s_cmp_lg_u32 s34, 4\ns_cbranch_scc1 {l3}\nbuffer_load_dword v9, v8, s[64:67], s47 offen\n{l3}:")
            a(f"s_cmp_lg_u32 s34, 7\ns_cbranch_scc1 {l2}\ns_add_u32 s47, s47, 0x400000\nbuffer_load_dword v9, v8, s[60:63], s47 offen\n{l2}:")
        a("s_waitcnt lgkmcnt(0)")
        for r in range(4):
            for j in range(4): a(f"v_dot2_f32_bf16 v{16+4*u+j}, v{28+4*j+r}, v{24+r}, v{16+4*u+j}")
    a(f"s_add_u32 s56, s56, 128\ns_and_b32 s56, s56, 2047\ns_add_u32 s57, s57, {XSLOT}\ns_cmp_eq_u32 s57, {XRING}\ns_cselect_b32 s57, 0, s57")
    a("s_sub_u32 s34, s34, 1\ns_cmp_lg_u32 s34, 0\ns_cbranch_scc1 L_h1")
    a("s_barrier")
    for pat in ["quad_perm:[1,0,3,2]", "quad_perm:[2,3,0,1]", "row_half_mirror"]:
        a("s_nop 1")
        for r in range(16, 24): a(f"v_add_f32_dpp v{r}, v{r}, v{r} {pat} row_mask:0xf bank_mask:0xf")
    for r in range(16, 24): a(f"v_mul_f32 v{r}, 0xbfb8aa3b, v{r}")
    for r in range(16, 24): a(f"v_exp_f32 v{r}, v{r}")
    for r in range(16, 24): a(f"v_add_f32 v{r}, 1.0, v{r}")
    for r in range(16, 24): a(f"v_rcp_f32 v{r}, v{r}")
    a("v_lshrrev_b32 v12, 5, v0\nv_bfe_u32 v13, v0, 4, 1\nv_lshlrev_b32 v12, 4, v12\nv_lshl_add_u32 v12, v13, 2, v12\nv_bfe_u32 v13, v0, 3, 1\nv_add_u32 v12, v12, v13")
    a(f"s_lshl_b32 s47, s{HW}, 8\ns_add_u32 s47, s47, {LDS_G}\nv_lshl_add_u32 v12, v12, 2, s47")
    for u in range(2):
        for j in range(4): a(f"ds_write_b32 v12, v{16+4*u+j} offset:{(32*u+8*(j>>1)+2*(j&1))*4}")
    a(f"s_cmp_lg_u32 s{HW}, 0\ns_cbranch_scc1 L_h_idle")

    def poll_issue(srdtxt, soff, vaddr=5):
        a(f"buffer_load_dword v14, v{vaddr}, {srdtxt}, s{soff} offen sc1")

    def poll_check(srdtxt, soff, nl, val, vaddr=5, cmp="ne"):
        l0, l1 = g.lab("poll"), g.lab("pollok")
        a(f"s_mov_b32 s35, {SPIN}\n{l0}:\ns_waitcnt vmcnt(0)")
        a(f"v_cmp_{cmp}_u32 vcc, {val}, v14\ns_nop 1\ns_and_b32 s33, vcc_lo, {hex((1<<nl)-1)}\ns_cbranch_scc0 {l1}")
        a(f"s_sub_u32 s35, s35, 1\ns_cbranch_scc1 {l1}")
        poll_issue(srdtxt, soff, vaddr)
        a(f"s_branch {l0}\n{l1}:")

    def setflag(soff):
        a(f"s_mov_b64 exec, 1\nbuffer_store_dword v7, v6, {W}, s{soff} offen sc1\ns_mov_b64 exec, -1")

    def bars(n):
        for _ in range(n): a("s_barrier")

    a("v_lshlrev_b32 v15, 5, v0\ns_mov_b32 s47, 0\nv_min_u32 v5, 60, v5")
    poll_issue("s[48:51]", 47, 15)
    poll_check("s[48:51]", 47, 8, 32, 15, "gt")
    a(f"s_lshl_b32 s52, s{S_MB8}, 1\ns_lshr_b32 s53, s{S_QD}, 2\ns_add_u32 s53, s53, s52\ns_lshl_b32 s53, s53, 7\ns_add_u32 s53, s53, {WS_FLAG+F_H}")
    a(f"s_and_b32 s54, s{S_QD}, 3\ns_lshl_b32 s54, s54, 2\ns_add_u32 s54, s54, s{S_C}\ns_lshl_b32 s54, s54, 2\ns_add_u32 s53, s53, s54")
    a(f"s_add_u32 s52, s52, s{S_KH}\ns_lshl_b32 s52, s52, 7\ns_add_u32 s52, s52, {WS_FLAG+F_H}")
    a(f"s_lshl_b32 s54, s{S_PAIR}, 7\ns_add_u32 s54, s54, {WS_FLAG+F_KV1}\ns_add_u32 s55, s54, {F_KV2-F_KV1}")
    a(f"s_lshl_b32 s47, s{S_MB8}, 2\ns_add_u32 s56, s54, s47\ns_add_u32 s57, s55, s47")
    a(f"s_lshl_b32 s58, s{S_MB8}, 7\ns_add_u32 s58, s58, {WS_FLAG+F_O}\ns_lshl_b32 s47, s{S_PAIR}, 2\ns_add_u32 s59, s58, s47")
    a(f"s_lshl_b32 s60, s2, 7\ns_add_u32 s60, s60, {WS_FLAG+F_P}\ns_xor_b32 s61, s60, 0x100")
    a("s_waitcnt lgkmcnt(0)\ns_barrier")
    setflag(53)
    poll_issue(W, 52); poll_check(W, 52, 16, 1)
    bars(3)
    a(f"s_cmp_ge_u32 s{S_C}, 2\ns_cbranch_scc1 L_h_q")
    setflag(56)
    a(f"s_cmp_ge_u32 s{S_MB8}, 6\ns_cbranch_scc1 L_h_kvidle")
    bars(2)
    poll_issue(W, 54)
    bars(2)
    poll_check(W, 54, 8, 1)
    a(f"s_mul_i32 s47, s{S_PAIR}, {8*12288}\ns_lshl_b32 s46, s{S_MB8}, 11\ns_add_u32 s47, s47, s46\ns_add_u32 s47, s47, {WS_KVP}")
    for m in range(8):
        for dt in range(2): a(f"buffer_load_dwordx4 {vr(32+(m*2+dt)*4)}, v4, {W}, s47 offen offset:{dt*1024} sc1")
        if m < 7: a("s_add_u32 s47, s47, 12288")
    bars(2)
    a("s_waitcnt vmcnt(0)")
    for st in (32, 16, 8):
        for r in range(st): a(f"v_add_f32 v{32+r}, v{32+r}, v{32+st+r}")
    for r in range(4): a(f"v_cvt_pk_bf16_f32 v{32+r}, v{32+2*r}, v{33+2*r}")
    a(f"s_mul_i32 s47, s{S_PAIR}, 6144\ns_lshl_b32 s46, s{S_MB8}, 10\ns_add_u32 s47, s47, s46\ns_add_u32 s47, s47, {WS_KVF}")
    a(f"buffer_store_dwordx4 v[32:35], v4, {W}, s47 offen sc1")
    bars(2)
    a("s_waitcnt vmcnt(0)")
    setflag(57)
    bars(13)
    a("s_branch L_h_join")
    a("L_h_kvidle:")
    bars(21)
    a("s_branch L_h_join")
    a("L_h_q:")
    bars(9)
    poll_issue(W, 55)
    bars(2)
    poll_check(W, 55, 6, 1)
    bars(7)
    setflag(59)
    bars(3)
    a("L_h_join:")
    poll_issue(W, 58)
    bars(2)
    poll_check(W, 58, 16, 1)
    bars(10)
    setflag(60)
    bars(2)
    poll_issue(W, 61)
    bars(2)
    poll_check(W, 61, 1, 1)
    bars(6)
    a("s_endpgm")
    a("L_h_idle:")
    a("s_waitcnt vmcnt(0) lgkmcnt(0)\ns_endpgm")


HEADER = open("gated_mix__linear_attn_block__dense_activation_relu__prompt.s.ref").read().split("; Override")[0] \
    if __name__ == "__main__" else ""


def build(**opt):
    g = G(**opt)
    g.L.append(f"; @launch grid=(256,1,1) block=(512,1,1) lds={LDS_TOTAL}")
    g.a(f'.amdgcn_target "amdgcn-amd-amdhsa--gfx950"\n.text\n.globl {NAME}\n.p2align 8\n.type {NAME},@function\n{NAME}:')
    prologue(g)
    compute(g)
    loader(g)
    helper(g)
    g.a("L_exit:\ns_endpgm\nL_codeend:")
    g.L.append(f""".section .rodata,"a"
.p2align 6
.amdhsa_kernel {NAME}
  .amdhsa_next_free_vgpr 256
  .amdhsa_next_free_sgpr 102
  .amdhsa_accum_offset 256
  .amdhsa_group_segment_fixed_size 0
  .amdhsa_kernarg_size 80
  .amdhsa_user_sgpr_count 2
  .amdhsa_user_sgpr_kernarg_segment_ptr 1
  .amdhsa_system_sgpr_workgroup_id_x 1
.end_amdhsa_kernel""")
    return g.text()


if __name__ == "__main__":
    out = sys.argv[1]
    opt = {}
    for kv in sys.argv[2:]:
        k, v = kv.split("=")
        opt[k] = eval(v)
    open(out, "w").write(HEADER + build(**opt))
```

```python
import sys

NAME = "gated_mix__linear_attn_block__dense_activation_relu__prompt_kernel"

WS_HO = 0
WS_PART = 0x3000000
WS_KVP = 0x2400000
WS_KVF = 0x2580000
WS_FLAG = 0x2600000
F_H1, F_H2, F_X, F_P = 0, 512, 1024, 1536
F_G = 0x80000
WS_PROF = 0x2700000
ORD1 = [0, 1, 2, 4, 7, 8, 9, 11]
ORD2 = [3, 5, 10, 12, 6, 13]

UNIT = 4224; BLK = 1056
XSLOT = 8 * UNIT
XRING = 3 * XSLOT
WSLOT = 3 * UNIT + 1024
WBASE = XRING
LDS_G = 163328
ST0 = 128
P2A = 16384
P2SLOT = P2A + 4 * UNIT
P2RING = 4 * P2SLOT
P2B = 512
P2END = P2B + P2RING
LDS_TOTAL = 163840

SPIN = 100000


class G:
    def __init__(self, **opt):
        self.L = []
        self.o = dict(prof=False, krot=False, pfw=True, pf1=True, lead=3, pfw0=2, pfwr=50, early2=0, k1=13, h1=3, odens=3, b16=True)
        self.o.update(opt)
        self.uid = 0
        self.info = {}
        self.st = {'since': 0}

    def a(self, s):
        for ln in s.split("\n"):
            ln = ln.strip()
            if ln:
                self.L.append(ln if ln.endswith(":") or ln.startswith(".") else "    " + ln)

    def lab(self, p):
        self.uid += 1
        return f"L_{p}_{self.uid}"

    def stamp(self, n):
        if self.o['prof'] == 'min' and n not in (0, 8): return
        if self.o['prof']:
            self.a(f"{'s_memtime' if self.o['prof']=='cyc' else 's_memrealtime'} s[{70+2*n}:{71+2*n}]")

    def text(self):
        return "\n".join(self.L) + "\n"


class VM:
    def __init__(self, a, init=()):
        self.a = a; self.q = list(init)
    def op(self, text, tag):
        self.a(text); self.q.append(tag)
        assert len(self.q) <= 63, "vmcnt overflow"
    def mark(self, tag, n):
        self.q += [tag] * n
        assert len(self.q) <= 63, "vmcnt overflow"
    def wait(self, *tags):
        k = max([i for i, t in enumerate(self.q) if t in tags], default=-1)
        if k >= 0:
            self.a(f"s_waitcnt vmcnt({len(self.q)-1-k})"); self.q = self.q[k + 1:]


def vr(b, n=4):
    return f"v[{b}:{b+n-1}]"


def mfma(d, a, b, c=None):
    return f"v_mfma_f32_16x16x32_bf16 {vr(d)}, {vr(a)}, {vr(b)}, {vr(d) if c is None else c}"


S_WAVE, S_MB8, S_QD, S_C, S_PAIR, S_MB16, S_CB, S_KH, S_PHI, S_XCD = 3, 36, 37, 38, 39, 40, 41, 42, 43, 44
SRD_WS = 20


def srd(g, d, base, nbytes):
    g.a(f"s_mov_b32 s{d}, s{base}\ns_mov_b32 s{d+1}, s{base+1}\ns_mov_b32 s{d+2}, {hex(nbytes)}\ns_mov_b32 s{d+3}, 0x20000")


def prof_dump(g, wave, row):
    if not g.o['prof'] or (row and (g.o['prof'] == 'min' or g.o.get('trace'))): return
    a = g.a
    l = g.lab("pd")
    a(f"s_waitcnt lgkmcnt(0)\ns_cmp_lg_u32 s{S_WAVE}, {wave}\ns_cbranch_scc1 {l}")
    a(f"s_lshl_b32 s33, s2, 6\ns_add_u32 s33, s33, {WS_PROF + row*16384}\nv_mov_b32 v5, 0")
    for n in range(16):
        a(f"v_mov_b32 v6, s{70+2*n}\nbuffer_store_dword v6, v5, s[{SRD_WS}:{SRD_WS+3}], s33 offen offset:{4*n}\ns_nop 1")
    a(f"{l}:")


def prologue(g):
    a = g.a
    a("s_cmp_ge_u32 s2, 256\ns_cbranch_scc1 L_exit")
    if g.o['prof']:
        for n in range(70, 102): a(f"s_mov_b32 s{n}, 0")
    g.stamp(0)
    a("s_load_dwordx16 s[4:19], s[0:1], 0")
    a("s_load_dwordx4 s[24:27], s[0:1], 64")
    a("v_lshrrev_b32 v1, 6, v0\nv_and_b32 v0, 63, v0")
    a(f"s_and_b32 s{S_XCD}, s2, 7\ns_lshr_b32 s30, s2, 3")
    a(f"v_readfirstlane_b32 s{S_WAVE}, v1")
    a(f"s_lshr_b32 s31, s{S_XCD}, 2\ns_and_b32 s32, s{S_XCD}, 3")
    a(f"s_and_b32 s33, s30, 3\ns_lshl_b32 s{S_MB8}, s31, 2\ns_add_u32 s{S_MB8}, s{S_MB8}, s33")
    a("s_lshr_b32 s33, s30, 2")
    a(f"s_lshr_b32 s34, s33, 2\ns_lshl_b32 s{S_QD}, s32, 1\ns_add_u32 s{S_QD}, s{S_QD}, s34")
    a(f"s_and_b32 s{S_C}, s33, 3")
    a(f"s_and_b32 s34, s33, 1\ns_lshl_b32 s{S_PAIR}, s{S_QD}, 1\ns_add_u32 s{S_PAIR}, s{S_PAIR}, s34")
    a(f"s_lshl_b32 s{S_MB16}, s{S_MB8}, 1\ns_add_u32 s{S_MB16}, s{S_MB16}, s34")
    a(f"s_and_b32 s34, s32, 1\ns_lshl_b32 s34, s34, 2\ns_lshr_b32 s{S_CB}, s33, 1\ns_xor_b32 s{S_CB}, s{S_CB}, {g.o.get('cbx', 1)}\ns_add_u32 s{S_CB}, s{S_CB}, s34")
    a(f"s_lshr_b32 s{S_KH}, s32, 1")
    if g.o['krot']:
        a(f"s_lshl_b32 s34, s31, 1\ns_add_u32 s34, s34, s32\ns_lshl_b32 s34, s34, 2\ns_and_b32 s{S_PHI}, s34, 15")
    else:
        a(f"s_mov_b32 s{S_PHI}, 0")
    a(f"s_cmp_lt_u32 s{S_WAVE}, 4\ns_cbranch_scc1 L_compute")
    a(f"s_cmp_ge_u32 s{S_WAVE}, 6\ns_cbranch_scc1 L_helper")


W = f"s[{SRD_WS}:{SRD_WS+3}]"


def lane_goodcol(g, d, t):
    g.a(f"v_lshrrev_b32 v{d}, 4, v0\nv_and_b32 v{t}, 15, v0\nv_lshlrev_b32 v{t}, 4, v{t}\nv_lshl_add_u32 v{d}, v{d}, 9, v{t}")


def lane_h(g, d, t, so):
    g.a(f"v_bfe_u32 v{d}, v0, 1, 3\nv_and_b32 v{t}, 1, v0\nv_lshlrev_b32 v{t}, 7, v{t}\nv_lshl_add_u32 v{d}, v{d}, 16, v{t}")
    g.a(f"s_and_b32 s{so}, s2, 31\ns_lshl_b32 s{so}, s{so}, 3\ns_and_b32 s33, s{S_MB16}, 1\ns_add_u32 s{so}, s{so}, s33\ns_lshl_b32 s{so}, s{so}, 8\ns_add_u32 s{so}, s{so}, {WS_FLAG}")


def poll_check(g, issue, reg, nl, val, cmp="ne", pre=None):
    a = g.a
    l0, l1 = g.lab("poll"), g.lab("pollok")
    a(f"s_mov_b32 s35, {SPIN}\n{l0}:\ns_waitcnt vmcnt(0)")
    if pre: pre()
    a(f"v_cmp_{cmp}_u32 vcc, {val}, v{reg}\ns_nop 1")
    if nl == 64: a("s_cmp_lg_u64 vcc, 0")
    else: a(f"s_and_b32 s33, vcc_lo, {hex((1<<nl)-1)}")
    a(f"s_cbranch_scc0 {l1}")
    a(f"s_sub_u32 s35, s35, 1\ns_cbranch_scc1 {l1}")
    if g.o.get('psleep'): a(f"s_sleep {g.o['psleep']}")
    issue()
    a(f"s_branch {l0}\n{l1}:")


def setflags(g, one, *soffs):
    g.a("s_mov_b64 exec, 1")
    for so in soffs: g.a(f"buffer_store_dword v{one}, off, {W}, s{so} sc1")
    g.a("s_mov_b64 exec, -1")


VX, VW, VQ = 1, 2, 3
WB = lambda n: 8 + 4 * (n % 4)
XLO = lambda b, i: 24 + 8 * b + 4 * i
XHI = lambda i: 40 + 4 * (i - 2)
AC = lambda j, i: 48 + (j * 4 + i) * 4


PERM = {True: [8, 9, 10, 11, 0, 1, 2, 3, 12, 4, 5, 6, 7], False: [4, 5, 6, 7, 8, 9, 10, 11, 12, 0, 1, 2, 3]}


def p1_wread(t, j, n):
    slot = (t % 4) * WSLOT
    if j < 12:
        return [f"ds_read_b64_tr_b16 v[{WB(n)+2*w}:{WB(n)+2*w+1}], v{VW} offset:{slot + (j//4)*UNIT + (j%4)*32 + w*256}" for w in range(2)]
    return [f"ds_read_b64_tr_b16 v[{WB(n)+2*w}:{WB(n)+2*w+1}], v{VQ} offset:{slot + w*256}" for w in range(2)]


def p1_xreg(par, i):
    return XLO(par % 2, i) if i < 2 else XHI(i)


def p1_xread(t, i, par, vx=VX):
    return f"ds_read_b128 {vr(p1_xreg(par,i))}, v{vx} offset:{(i>>1)*UNIT + (i&1)*512 + (t%2)*64}"


def pass_order(nt):
    s = [(0, 0), (0, 1), (1, 1), (1, 0), (1, 2), (1, 3), (0, 3), (0, 2)]
    for j in range(2, nt - 2):
        s += [(j, i) for i in ([2, 3, 0, 1] if j % 2 == 0 else [1, 0, 3, 2])]
    u, v = nt - 2, nt - 1
    return s + [(u, 2), (u, 3), (v, 3), (v, 2), (v, 1), (v, 0), (u, 0), (u, 1)]


def p1_mfma(kv, tile, i, wreg, xreg):
    return mfma(AC(tile, i), xreg, wreg) if (kv and tile < 8) else mfma(AC(tile, i), wreg, xreg)


Q0 = [('W', 0, 0), ('W', 0, 0), ('X', 0, 0), ('X', 0, 1), ('W', 0, 1), ('W', 0, 1), ('X', 0, 2), ('X', 0, 3)]


def p1_loop(g, kv):
    a = g.a
    P = PERM[kv]
    L = g.lab("p1")
    seq = []
    for t in range(4):
        s = pass_order(13)
        post = [[] for _ in s]
        rd = lambda j, tt=t: [('W', tt, j, x) for x in p1_wread(tt, P[j], 13 * tt + j)]
        r = rd(2); post[0].append(r[0]); post[1].append(r[1])
        r = rd(3); post[2].append(r[0]); post[3].append(r[1])
        r = rd(4); post[8].append(r[0]); post[9].append(r[1])
        r = rd(5); post[10].append(r[0]); post[11].append(r[1])
        for j in range(3, 10):
            base = 8 + (j - 2) * 4
            r = rd(j + 3); post[base].append(r[0]); post[base + 1].append(r[1])
        b10 = 40
        if t % 2 == 1:
            post[b10 - 2].append(('S', f"s_add_u32 s46, s46, {XSLOT}"))
            post[b10 - 2].append(('S', f"s_cmp_eq_u32 s46, {XRING}"))
            post[b10 - 1].append(('S', f"s_cselect_b32 s47, s48, s49"))
            post[b10 - 1].append(('S', f"s_cselect_b32 s46, 0, s46"))
            post[b10].append(('S', f"v_add_u32 v{VX}, s47, v{VX}"))
        post[b10 + 2].append(('BAR',))
        tn = t + 1
        r0, r1 = rd(0, tn), rd(1, tn)
        post[b10 + 3] += [r0[0], r0[1]]
        post[44] += [('X', tn, 0, p1_xread(tn, 0, tn)), ('X', tn, 1, p1_xread(tn, 1, tn))]
        post[45] += [r1[0]]
        post[46] += [r1[1]]
        post[47] += [('X', tn, 2, p1_xread(tn, 2, tn))]
        post[48] += [('X', tn, 3, p1_xread(tn, 3, tn))]
        if t == 3:
            post[49].append(('S', "s_sub_u32 s45, s45, 1"))
            post[50].append(('S', "s_cmp_lg_u32 s45, 0"))
        for (j, i), p in zip(s, post):
            seq.append(((t, j, i), p))
    for x in p1_wread(0, P[0], 0): a(x)
    a(p1_xread(0, 0, 0)); a(p1_xread(0, 1, 0))
    for x in p1_wread(0, P[1], 1): a(x)
    a(p1_xread(0, 2, 0)); a(p1_xread(0, 3, 0))
    q = list(Q0)
    a(f".p2align 6\n{L}:")
    for (t, j, i), p in seq:
        need = [k for k, e in enumerate(q) if e == ('W', t, j) or e == ('X', t, i)]
        if need:
            k = max(need)
            a(f"s_waitcnt lgkmcnt({len(q)-1-k})")
            q = q[k + 1:]
        a(p1_mfma(kv, P[j], i, WB(13 * t + j), p1_xreg(t, i)))
        for e in p:
            if e[0] == 'S':
                a(e[1])
            elif e[0] == 'BAR':
                a("s_waitcnt lgkmcnt(0)\ns_barrier"); q = []
            else:
                a(e[3]); q.append((e[0], e[1] % 4, e[2]))
    assert q == Q0
    a(f"s_cbranch_scc1 {L}")


def p1_tail(g, kv, extra, extra2):
    a = g.a
    P = PERM[kv]
    a(f"v_add_u32 v5, {(-2*XSLOT) & 0xffffffff}, v{VX}")
    passes = [(t, grp) for grp in (P[:4], P[4:9], P[9:]) for t in range(28, 32)]
    M = []; start = []; n0 = 0; last = {}
    reads = []
    for p, (t, tiles) in enumerate(passes):
        start.append(len(M))
        o = pass_order(len(tiles))
        base = len(M)
        for j, tile in enumerate(tiles):
            first = base + min(k for k, e in enumerate(o) if e[0] == j)
            if not (p == 0 and j < 2):
                for x in p1_wread(t, tile, n0 + j):
                    reads.append(dict(key=('W', p, j), text=x, after=last.get(WB(n0 + j), -1), first=first, t=t))
            last[WB(n0 + j)] = base + max(k for k, e in enumerate(o) if e[0] == j)
        for i in range(4):
            first = base + min(k for k, e in enumerate(o) if e[1] == i)
            if p > 0:
                reads.append(dict(key=('X', p, i), text=p1_xread(t, i, p, VX if t < 30 else 5), after=max(last.get(p1_xreg(p, i), -1), first - 14), first=first, t=t))
            last[p1_xreg(p, i)] = base + max(k for k, e in enumerate(o) if e[1] == i)
        for (j, i) in o:
            M.append((p, j, i, p1_mfma(kv, tiles[j], i, WB(n0 + j), p1_xreg(p, i))))
        n0 += len(tiles)
    V1, V2 = start[1] + 3, start[2] + 5
    R1, R2 = start[10] - 3, len(M) - 5
    for r in reads:
        if r['t'] == 30: r['after'] = max(r['after'], V1)
        if r['t'] == 31: r['after'] = max(r['after'], V2)
    reads.sort(key=lambda r: r['first'])
    q = list(Q0); since = 0
    dens = g.o.get('tdens', 3)
    def wait(pred):
        nonlocal q
        need = [k for k, e in enumerate(q) if pred(e)]
        if need:
            a(f"s_waitcnt lgkmcnt({len(q)-1-max(need)})"); q = q[max(need) + 1:]
            return 1
        return 0
    for k, (p, j, i, txt) in enumerate(M):
        assert not [r for r in reads if r['first'] <= k], "read scheduled too late"
        w = wait(lambda e: e == ('W', p, j) or e == ('X', p, i))
        a(txt); since += 1 + w
        used = 0
        if k in (V1, V2): a("s_barrier"); used += 1
        if k in (R1, R2):
            lim = 9 if k == R1 else 11
            assert not [r for r in reads if r['key'][1] <= lim]
            used += 1 + wait(lambda e: e[1] <= lim); a("s_barrier")
        nr = 0
        while used < 2:
            c = [r for r in reads if r['after'] <= k]
            if not c or (nr and c[0]['first'] - k > 9): break
            a(c[0]['text']); q.append(c[0]['key']); reads.remove(c[0]); used += 1; nr += 1
        since += used
        if k == start[8] + 3:
            extra += extra2; dens = g.o.get('tdens2', 3)
        if k >= start[4] + 3:
            while used < dens and extra:
                if isinstance(extra[0], int):
                    if k >= start[8] - extra[0]: extra.pop(0); continue
                    break
                x = extra.pop(0); a(x); used += 2 if x.startswith("v_exp") else 1
    for x in extra:
        if isinstance(x, str): a(x)


def h_cvt(d, a0, a1):
    src = [a0, a0 + 2] + ([a1, a1 + 2] if a1 is not None else [])
    return [f"v_cvt_pk_bf16_f32 v{d+r}, v{x}, v{x+1}" for r, x in enumerate(src)] + [f"v_pk_max_i16 v{d+r}, v{d+r}, 0" for r in range(len(src))]


def h_line_store(j0, soff):
    o = []
    for i in (2, 3, 0, 1):
        o.append(f"s_add_u32 s56, s{soff}, {4096*i}")
        for p in range(2):
            d = AC(j0 + 2 * p, i)
            o += h_cvt(d, d, AC(j0 + 2 * p + 1, i))
            o.append(f"buffer_store_dwordx4 {vr(d)}, v7, {W}, s56 offen offset:{p*2048} sc1")
    return o


def phi_regs(regs, tmp):
    o = [f"v_mul_f32 v{tmp+k}, s50, v{r}" for k, r in enumerate(regs)]
    for k, r in enumerate(regs): o += [f"v_exp_f32 v{tmp+k}, v{tmp+k} clamp", f"v_max_f32 v{r}, s51, v{r}"]
    return o + [f"v_add_f32 v{r}, v{r}, v{tmp+k}" for k, r in enumerate(regs)]


def pack8(d, e):
    return [f"v_cvt_pk_bf16_f32 v{d}, v{d}, v{d+1}", f"v_cvt_pk_bf16_f32 v{d+1}, v{d+2}, v{d+3}",
            f"v_cvt_pk_bf16_f32 v{d+2}, v{e}, v{e+1}", f"v_cvt_pk_bf16_f32 v{d+3}, v{e+2}, v{e+3}"]


def flagops(one, *soffs):
    return "s_mov_b64 exec, 1\n" + "".join(f"buffer_store_dword v{one}, off, {W}, s{so} sc1\n" for so in soffs) + "s_mov_b64 exec, -1"


VA2, VW2 = 1, 2
AF = lambda b, i: 112 + 16 * b + 4 * i
WF = lambda b, j: 144 + 16 * b + 4 * j
ACC = lambda j, i: 176 + (j * 4 + i) * 4
DA = lambda b, kk, i: (8, 112)[b] + 16 * kk + 4 * i
DW = lambda b, kk, j: (40, 144)[b] + 8 * kk + 4 * j
ACD = lambda j, i: 56 + (j * 4 + i) * 4
PQ = lambda i, h: AC(2 * h, i)
KVF = lambda f: 8 + 4 * f
PP = lambda j, i: (160, 240)[j] + 4 * i
GG = 104


def rd_w(d, j, kk):
    return [f"ds_read_b64_tr_b16 v[{d+2*w}:{d+2*w+1}], v{VW2} offset:{((j>>1)*2+kk)*UNIT + (j&1)*32 + w*256}" for w in range(2)]


def rd_a(d, i, kk):
    return f"ds_read_b128 {vr(d)}, v{VA2} offset:{(i>>1)*4096+kk*2048+(i&1)*1024}"


def c_reads(b):
    R = [(('W', b, 0), x) for x in rd_w(WF(b, 0), 0, b)] + [(('W', b, 0), rd_a(AF(b, i), i, b)) for i in range(4)]
    for j in range(1, 4): R += [(('W', b, j), x) for x in rd_w(WF(b, j), j, b)]
    return R


def d_reads(b):
    R = []
    for kk in range(2):
        R += [(('D', b, kk, 0), x) for x in rd_w(DW(b, kk, 0), 0, kk)] + [(('D', b, kk, 0), rd_a(DA(b, kk, i), i, kk)) for i in range(4)]
        R += [(('D', b, kk, 1), x) for x in rd_w(DW(b, kk, 1), 1, kk)]
    return R


class Stage:
    def __init__(self, g, q, extra, dens):
        self.g = g; self.q = list(q); self.extra = extra; self.dens = dens; self.carry = 0
    def a(self, x):
        self.g.a(x); self.g.st['since'] += 1
    def wait(self, key):
        need = [k for k, e in enumerate(self.q) if key is None or e == key]
        if need:
            self.a(f"s_waitcnt lgkmcnt({len(self.q)-1-max(need)})"); self.q = self.q[max(need) + 1:]
    def read(self, r):
        self.a(r[1]); self.q.append(r[0])
    def fill(self, used):
        ex, st = self.extra, self.g.st
        while used < self.dens and ex:
            if isinstance(ex[0], int):
                if st['since'] >= ex[0]: ex.pop(0); continue
                return
            x = ex.pop(0); self.g.a(x); st['since'] = 0
            used = 0 if x.startswith("v_mfma") else used + (2 if x.startswith(("v_exp", "v_rcp")) else 1)


def c_stage(g, first=False, extra=None, loop=False, last=False, dens=2):
    S = Stage(g, [k for k, _ in c_reads(0)], extra, dens)
    BP = g.o.get('cbar', 2)
    for b in range(2):
        R = c_reads(1) if b == 0 else (d_reads(0) if last else c_reads(0))
        if b == 0:
            ctl = {12: [f"s_add_u32 s46, s46, {P2SLOT}", f"s_cmp_eq_u32 s46, {P2RING}"], 13: ["s_cselect_b32 s47, s48, s49", "s_cselect_b32 s46, 0, s46"],
                   14: [f"v_add_u32 v{VA2}, s47, v{VA2}", f"v_add_u32 v{VW2}, s47, v{VW2}"]}
        else:
            ctl = {0: ["s_sub_u32 s45, s45, 1", "s_cmp_lg_u32 s45, 0"]} if loop else {}
        n = 0
        for j in range(4):
            for i in (range(4) if j % 2 == 0 else range(3, -1, -1)):
                S.wait(('W', b, j))
                S.a(mfma(ACC(j, i), WF(b, j), AF(b, i), "0" if (first and b == 0) else None))
                used = 1 if n % 4 == 3 and (b == 0 or n == 15) else 0
                if n in ctl:
                    for x in ctl[n]: S.a(x)
                    used = 2
                elif b == 1 and n == BP:
                    S.wait(None); S.a("s_barrier"); used = 2
                elif R and (b == 0 or n > BP):
                    S.read(R.pop(0)); used += 1
                    if len(R) > 15 - n: S.read(R.pop(0)); used += 1
                S.fill(used)
                n += 1
        assert not R


def c_loop(g, iters):
    if iters <= 0: return
    if iters == 1:
        c_stage(g); return
    L = g.lab("p2")
    g.a(f"s_mov_b32 s45, {iters}\n.p2align 3\n{L}:")
    c_stage(g, loop=True)
    g.a(f"s_cbranch_scc1 {L}")


def d_stage(g, n, extra=None, dens=2):
    b = n % 2
    S = Stage(g, [k for k, _ in d_reads(b)], extra, dens)
    BP = g.o.get('dbar', 3)
    R = d_reads(1 - b) if n < 15 else []
    dl = (P2SLOT if (28 + n + 2) % 4 else -3 * P2SLOT) & 0xffffffff
    m = 0
    for kk in range(2):
        for j in range(2):
            for i in (range(4) if j == 0 else range(3, -1, -1)):
                S.wait(('D', b, kk, j))
                S.a(mfma(ACD(j, i), DW(b, kk, j), DA(b, kk, i), "0" if (n == 0 and kk == 0) else None))
                used = 1 if m == 15 else 0
                if R and m == 0:
                    S.a(f"v_add_u32 v{VA2}, {dl}, v{VA2}"); S.a(f"v_add_u32 v{VW2}, {dl}, v{VW2}"); used = 2
                elif R and m == BP:
                    S.wait(None); S.a("s_barrier"); used = 2
                elif R and m > BP:
                    S.read(R.pop(0)); used += 1
                    if len(R) > 14 - m and R: S.read(R.pop(0)); used += 1
                S.fill(used)
                m += 1
    assert not R


def spaced(lst, n):
    o = []
    for x in lst: o += [x, n]
    return o


def strs(ex):
    return [x for x in ex if isinstance(x, str)]


def compute(g):
    a = g.a
    a("L_compute:")
    a("v_and_b32 v4, 15, v0\nv_lshrrev_b32 v5, 4, v0")
    a("v_bfe_u32 v6, v4, 3, 1\nv_bfe_u32 v7, v4, 1, 1\nv_lshl_add_u32 v6, v6, 1, v7")
    a(f"v_mul_u32_u24 v{VX}, {BLK}, v6")
    a("v_bfe_u32 v6, v4, 2, 1\nv_and_b32 v7, 1, v4\nv_lshl_add_u32 v6, v6, 1, v7")
    a(f"v_lshl_add_u32 v{VX}, v6, 7, v{VX}\nv_lshl_add_u32 v{VX}, v5, 4, v{VX}")
    a(f"s_mul_i32 s45, s{S_WAVE}, {2*UNIT}\nv_add_u32 v{VX}, s45, v{VX}")
    a("v_and_b32 v6, 1, v5\nv_bfe_u32 v7, v4, 3, 1\nv_lshl_add_u32 v6, v6, 1, v7")
    a(f"v_mul_u32_u24 v{VW}, {BLK}, v6")
    a("v_lshrrev_b32 v6, 1, v5\nv_bfe_u32 v7, v4, 2, 1\nv_lshl_add_u32 v6, v6, 2, v7")
    a(f"v_lshl_add_u32 v{VW}, v6, 7, v{VW}\nv_and_b32 v6, 3, v4\nv_lshl_add_u32 v{VW}, v6, 3, v{VW}")
    a(f"v_add_u32 v{VW}, {WBASE}, v{VW}")
    a(f"v_lshrrev_b32 v6, 5, v0\nv_and_b32 v7, 31, v0\nv_lshlrev_b32 v7, 3, v7\nv_lshl_add_u32 v{VQ}, v6, 9, v7")
    a(f"v_add_u32 v{VQ}, {WBASE+3*UNIT}, v{VQ}")
    for r in range(48, 256): a(f"v_mov_b32 v{r}, 0")
    a(f"s_mov_b32 s45, 7\ns_mov_b32 s46, 0\ns_mov_b32 s48, {(-2*XSLOT) & 0xffffffff}\ns_mov_b32 s49, {XSLOT}")
    a("s_mov_b32 s50, 0x3fb8aa3b\ns_mov_b32 s51, 0x358637bd")
    a(f"s_lshl_b32 s52, s{S_MB8}, 16\ns_lshl_b32 s53, s{S_WAVE}, 14\ns_add_u32 s52, s52, s53")
    a(f"s_mul_i32 s53, s{S_QD}, 7")
    a(f"s_add_u32 s66, s53, 6\ns_lshl_b32 s66, s66, 19\ns_add_u32 s66, s66, s52")
    a(f"s_lshr_b32 s55, s{S_C}, 1\ns_lshl_b32 s55, s55, 11\ns_add_u32 s66, s66, s55")
    a(f"s_and_b32 s55, s{S_C}, 1\ns_lshl_b32 s55, s55, 10\ns_add_u32 s66, s66, s55")
    a("s_add_u32 s67, s66, 8192")
    a(f"s_lshr_b32 s57, s{S_WAVE}, 1\ns_and_b32 s58, s{S_WAVE}, 1")
    a(f"s_lshl_b32 s59, s2, 11\ns_lshl_b32 s55, s{S_WAVE}, 7\ns_add_u32 s59, s59, s55\ns_add_u32 s59, s59, {WS_FLAG}")
    a(f"s_add_u32 s60, s59, {F_H2}\ns_add_u32 s61, s59, {F_X}")
    a("v_lshlrev_b32 v4, 4, v0\nv_mov_b32 v6, 1")
    lane_goodcol(g, 7, 5)
    a("s_waitcnt lgkmcnt(0)")
    srd(g, SRD_WS, 26, 0x10000000)
    if g.o.get('prio'): a(f"s_setprio {g.o['prio']}")
    a("s_barrier")
    g.stamp(1)

    def em(lst):
        for x in lst: a(x)
    def p2_setup():
        a(f"s_lshl_b32 s55, s57, 13\ns_add_u32 s55, s55, {P2B+P2SLOT}\nv_add_u32 v{VA2}, s55, v4")
        a(f"s_lshl_b32 s55, s58, 6\ns_add_u32 s55, s55, {(P2B+P2SLOT+P2A-WBASE) & 0xffffffff}\nv_add_u32 v{VW2}, s55, v{VW2}")
        a(f"s_mov_b32 s46, {P2SLOT}\ns_mov_b32 s48, {(-3*P2SLOT) & 0xffffffff}\ns_mov_b32 s49, {P2SLOT}")
        g.stamp(4)
        a("s_barrier")
        g.stamp(5)
        for _, x in c_reads(0): a(x)
    def quarter(tmp):
        o = [f"v_bfe_u32 v{VQ}, v0, 4, 1", f"v_mul_u32_u24 v{VQ}, 3584, v{VQ}", f"v_lshrrev_b32 v{tmp}, 5, v0", f"v_lshlrev_b32 v{tmp}, 9, v{tmp}",
             f"v_sub_u32 v{VQ}, v{VQ}, v{tmp}", f"v_add_u32 v{VQ}, v{VQ}, v7"]
        for p in (1, 0):
            d = AC(12, 2 * p)
            o += h_cvt(d, d, d + 4)
        for p in (1, 0):
            d = AC(12, 2 * p)
            o += [f"s_nop 1\nv_permlane16_swap_b32 v{d}, v{d+2}", f"v_permlane16_swap_b32 v{d+1}, v{d+3}",
                  f"buffer_store_dwordx4 {vr(d)}, v{VQ}, {W}, s{66+p} offen sc1"]
        return o
    def early(j0):
        return h_line_store(j0, 55) + [g.o.get('fpos', 0), "s_waitcnt vmcnt(0)\n" + flagops(6, 59)]

    a(f"s_cmp_ge_u32 s{S_C}, 2\ns_cbranch_scc1 L_cq")
    a(f"s_add_u32 s55, s53, s{S_C}\ns_lshl_b32 s55, s55, 19\ns_add_u32 s55, s55, s52")
    p1_loop(g, True)
    ex2 = []
    for s_ in range(4):
        for p in range(2):
            ex2 += phi_regs(list(range(AC(s_, 2 * p), AC(s_, 2 * p) + 8)), AC(9, 0)) + pack8(AC(s_, 2 * p), AC(s_, 2 * p + 1))
        if s_ == 0: ex2 += quarter(AC(11, 0))
    p1_tail(g, True, early(8), ex2)
    g.stamp(2)
    for s_ in range(4, 8):
        for p in (1, 0): em(pack8(AC(s_, 2 * p), AC(s_, 2 * p + 1)))
    for r in range(8, 12): a(f"v_mov_b32 v{r}, 0x3f803f80")
    T = lambda t: 176 + 4 * t
    a(f"s_sub_u32 s55, 3, s{S_WAVE}\ns_mul_i32 s55, s55, {3*P2SLOT}\ns_add_u32 s55, s55, {P2B}\ns_mul_i32 s56, s{S_WAVE}, 12288\ns_add_u32 s56, s56, {P2END}")
    a(f"s_cmp_ge_u32 s{S_WAVE}, 2\ns_cselect_b32 s55, s55, s56\nv_add_u32 v12, s55, v4")
    for p in range(2):
        for h in range(2):
            for dt in range(2):
                for e in range(3):
                    t = 2 * (3 * h + e) + dt
                    a(mfma(T(t), AC(2 * h + dt, 2 * p), AC(4 + 2 * h + e, 2 * p) if e < 2 else 8, "0" if p == 0 else None))
    a("s_nop 4")
    for h in range(2):
        for dt in range(2):
            for e in range(3):
                t = 2 * (3 * h + e) + dt
                a(f"ds_write_b128 v12, {vr(T(t))} offset:{t*1024}")
    a(f"s_mul_i32 s55, s{S_WAVE}, 3072\ns_add_u32 s56, s55, {P2B}\nv_add_u32 v8, s56, v4\nv_add_u32 v5, {3*P2SLOT}, v8")
    a("s_waitcnt lgkmcnt(0)\ns_barrier")
    g.stamp(3)
    for w in range(4):
        for t in range(3):
            a(f"ds_read_b128 {vr(48+(w*3+t)*4)}, v{5 if w<3 else 8} offset:{[P2SLOT, P2SLOT+12288, 0, 0][w]+t*1024}")
    a(f"s_lshl_b32 s56, s{S_PAIR}, 3\ns_add_u32 s56, s56, s{S_MB8}\ns_mul_i32 s56, s56, 12288\ns_add_u32 s56, s56, s55\ns_add_u32 s56, s56, {WS_KVP}")
    a("s_waitcnt lgkmcnt(0)")
    p2_setup()
    for r in range(12): a(f"v_add_f32 v{48+r}, v{48+r}, v{60+r}\nv_add_f32 v{72+r}, v{72+r}, v{84+r}")
    for r in range(12): a(f"v_add_f32 v{48+r}, v{48+r}, v{72+r}")
    for t in range(3): a(f"buffer_store_dwordx4 {vr(48+4*t)}, v4, {W}, s56 offen offset:{t*1024} sc1")
    c_stage(g, first=True)
    c_stage(g)
    a("s_waitcnt vmcnt(0)")
    a(flagops(6, 61, 60))
    c_loop(g, 25)
    a("s_branch L_c2join")
    a("L_cq:")
    a(f"s_lshl_b32 s55, s{S_C}, 1\ns_add_u32 s55, s55, s53\ns_sub_u32 s55, s55, 2\ns_lshl_b32 s55, s55, 19\ns_add_u32 s55, s55, s52")
    a("s_add_u32 s62, s55, 0x80000")
    p1_loop(g, False)
    p1_tail(g, False, early(4), h_line_store(8, 62) + quarter(AC(5, 0)))
    g.stamp(2)
    ph = []
    for i in (2, 3, 0, 1):
        for h in range(2):
            d, e = AC(2 * h, i), AC(2 * h + 1, i)
            ph.append(phi_regs(list(range(d, d + 4)) + list(range(e, e + 4)), 8) + pack8(d, e))
    phg = g.o.get('phig', 2)
    a("s_nop 3")
    for x in ph[:phg]: em(x)
    ph = [x for y in ph[phg:] for x in y]
    g.stamp(3)
    p2_setup()
    n = 0
    for _ in range(2):
        c_stage(g, first=(n == 0), extra=ph); n += 1
    a("s_waitcnt vmcnt(0)")
    a(flagops(6, 60))
    g.info['fh2'] = n
    while ph:
        c_stage(g, extra=ph); n += 1
    K1 = g.o['k1']
    c_loop(g, K1 - n)
    n = max(n, K1)
    a(f"s_add_u32 s62, s{S_PAIR}, 56\ns_lshl_b32 s62, s62, 19\ns_add_u32 s62, s62, s52\ns_add_u32 s63, s62, 4096\ns_add_u32 s64, s63, 4096\ns_add_u32 s65, s64, 4096")
    a(f"v_add_u32 v5, {P2END}, v4")
    for f in range(6): a(f"ds_read_b128 {vr(KVF(f))}, v5 offset:{f*1024}")
    a("s_waitcnt lgkmcnt(0)")
    TM = [32, 64]
    ex = []
    for i in range(4):
        for h in range(2):
            t = TM[h]
            for e in (2, 0, 1): ex.append(mfma(t + 4 * e, KVF(3 * h + e), PQ(i, h), "0"))
        ex.append(4)
        for h in range(2):
            t = TM[h]
            ex += [f"v_add_f32 v{t+8}, s51, v{t+8}", f"v_rcp_f32 v{t+8}, v{t+8}", 1]
            ex += [f"v_mul_f32 v{t+r}, v{t+r}, v{t+8}" for r in range(8)]
            d = PQ(i, h)
            ex += [f"v_cvt_pk_bf16_f32 v{d+r}, v{t+2*r}, v{t+2*r+1}" for r in range(4)]
            ex.append(f"buffer_store_dwordx4 {vr(d)}, v7, {W}, s{62+i} offen offset:{h*2048} sc1")
    while ex:
        c_stage(g, extra=ex, dens=g.o.get('odens', 2)); n += 1
    c_loop(g, 2); n += 2
    a("s_waitcnt vmcnt(0)")
    a(flagops(6, 61))
    g.info['fo'] = n
    c_loop(g, 27 - n)
    a("L_c2join:")
    a(f"s_lshl_b32 s62, s2, 16\ns_lshl_b32 s56, s{S_WAVE}, 14\ns_add_u32 s62, s62, s56\ns_add_u32 s62, s62, {WS_PART}")
    a("s_add_u32 s63, s62, 4096\ns_add_u32 s64, s63, 4096\ns_add_u32 s65, s64, 4096")
    for r in range(4): a(f"s_xor_b32 s{66+r}, s{62+r}, 0x20000")
    a(f"s_add_u32 s59, s59, {F_P}\ns_xor_b32 s60, s59, 0x1000")
    c_stage(g, last=True)
    g.stamp(6)
    b16 = g.o.get('b16')
    if b16:
        ex = [6]
        for i in (3, 2, 1, 0):
            ex += pack8(ACC(2, i), ACC(3, i)) + [f"buffer_store_dwordx4 {vr(ACC(2,i))}, v7, {W}, s{62+i} offen sc1"]
    else:
        ex = [6] + spaced([f"buffer_store_dwordx4 {vr(ACC(2+j,i))}, v7, {W}, s{62+i} offen offset:{j*2048} sc1" for j in range(2) for i in range(4)], g.o.get('psp', 2))
    g.st['since'] = 0
    ex += (f"s_mov_b32 s28, s18\ns_mov_b32 s29, s19\ns_mov_b32 s30, {hex(2048*1024*2)}\ns_mov_b32 s31, 0x20000\n"
           f"v_and_b32 v3, 15, v0\ns_lshl_b32 s55, s57, 8\ns_add_u32 s55, s55, {LDS_G}\nv_lshl_add_u32 v88, v3, 2, s55\n"
           "v_lshlrev_b32 v3, 11, v3\nv_bfe_u32 v89, v0, 4, 1\nv_lshl_add_u32 v3, v89, 5, v3\nv_lshrrev_b32 v89, 5, v0\nv_lshl_add_u32 v3, v89, 4, v3\n"
           f"s_lshl_b32 s55, s{S_MB16}, 18\ns_lshl_b32 s56, s57, 17\ns_add_u32 s55, s55, s56\n"
           f"s_lshl_b32 s56, s{S_CB}, 8\ns_add_u32 s55, s55, s56\ns_lshl_b32 s56, s{S_KH}, 7\ns_add_u32 s55, s55, s56\ns_lshl_b32 s56, s58, 6\ns_add_u32 s55, s55, s56\n"
           "s_mov_b32 s50, 0xffff0000").split("\n")
    D1, D2, D3 = g.o.get('d1', 5), g.o.get('d2', 8), g.o.get('d3', 13)
    pissue = lambda: a(f"buffer_load_dword v5, off, {W}, s60 sc1")
    for n in range(16):
        if n == D1:
            em(strs(ex)); ex = []
            a("s_waitcnt vmcnt(0)"); a(flagops(6, 59))
        if n == D2: pissue()
        if n == D2 + 2:
            poll_check(g, pissue, 5, 1, 1)
            if b16:
                for i in range(4): a(f"buffer_load_dwordx4 {vr(PP(0,i))}, v7, {W}, s{66+i} offen sc1")
            else:
                for j in range(2):
                    for i in range(4): a(f"buffer_load_dwordx4 {vr(PP(j,i))}, v7, {W}, s{66+i} offen offset:{j*2048} sc1")
            for i in range(4): a(f"ds_read_b32 v{GG+i}, v88 offset:{i*64}")
            a("s_waitcnt lgkmcnt(0)")
        if n == D3:
            a("s_waitcnt vmcnt(0)")
            ex = [f"v_sub_f32 v{GG+4+i}, 1.0, v{GG+i}" for i in range(4)]
            for i in (3, 2, 1, 0):
                pr = lambda j, r: (240 + 4 * j + r) if b16 else PP(j, i) + r
                if b16:
                    for j in range(2):
                        for r in range(4):
                            src = PP(0, i) + 2 * j + (r >> 1)
                            ex.append(f"v_and_b32 v{pr(j,r)}, s50, v{src}" if r & 1 else f"v_lshlrev_b32 v{pr(j,r)}, 16, v{src}")
                for j in range(2):
                    for r in range(4): ex.append(f"v_add_f32 v{ACC(j,i)+r}, v{ACC(j,i)+r}, v{pr(j,r)}")
                for j in range(2):
                    for r in range(4): ex.append(f"v_mul_f32 v{ACC(j,i)+r}, v{ACC(j,i)+r}, v{GG+4+i}")
        d_stage(g, n, extra=ex, dens=g.o.get('ddens', 3))
    em(ex)
    g.stamp(7)
    a("s_nop 4")
    for i in (3, 2, 1, 0):
        for j in range(2):
            for r in range(4): a(f"v_fmac_f32 v{ACC(j,i)+r}, v{GG+i}, v{ACD(j,i)+r}")
        d = ACC(0, i)
        em(pack8(d, ACC(1, i)))
        a(f"s_add_u32 s56, s55, {0x8000*i}\ns_nop 0\nv_permlane16_swap_b32 v{d}, v{d+2}\nv_permlane16_swap_b32 v{d+1}, v{d+3}")
        a(f"buffer_store_dwordx4 {vr(d)}, v3, s[28:31], s56 offen {g.o.get('outflag','')}")
    if g.o['prof']:
        a("s_waitcnt vmcnt(0)")
        g.stamp(8)
    prof_dump(g, 0, 0)
    a("s_endpgm")


def stash_setup(g, a, v):
    a(f"v_lshrrev_b32 v{v}, 5, v0\nv_bfe_u32 v{v+1}, v0, 4, 1\nv_lshlrev_b32 v{v}, 3, v{v}\nv_lshl_add_u32 v{v}, v{v+1}, 4, v{v}\nv_bfe_u32 v{v+1}, v0, 3, 1\nv_add_u32 v{v}, v{v}, v{v+1}")
    a(f"s_sub_u32 s33, s{S_WAVE}, 4\ns_lshl_b32 s35, s33, 12\ns_lshl_b32 s47, s{S_CB}, 8\ns_add_u32 s35, s35, s47\ns_lshl_b32 s47, s{S_KH}, 7\ns_add_u32 s35, s35, s47")
    a(f"v_and_b32 v{v+1}, 7, v0\nv_lshlrev_b32 v{v+1}, 4, v{v+1}\nv_lshl_add_u32 v{v}, v{v}, 11, v{v+1}\nv_add_u32 v{v}, s35, v{v}")
    a(f"s_mul_i32 s33, s33, {BLK}\ns_add_u32 s33, s33, {P2B+P2A}\nv_lshl_add_u32 v{v+1}, v0, 4, s33\nv_add_u32 v{v+2}, {2*P2SLOT}, v{v+1}")


def stash_loads(g, v, sr):
    return [(f"s_mov_b32 s47, {k<<16}", f"buffer_load_dwordx4 {vr(ST0+4*k)}, v{v}, s[{sr}:{sr+3}], s47 offen") for k in range(32)]


NOSW = [False]
def stash_write(a, v, n):
    if NOSW[0]: return
    sl = (n + 1) % 4
    for kk in range(2):
        a(f"ds_write_b128 v{v+1+(sl>>1)}, {vr(ST0+4*(2*(n-28)+kk))} offset:{(sl&1)*P2SLOT+kk*UNIT}")


def loader(g):
    def a(x):
        if not g.o.get('trace'): return g.a(x)
        for ln in x.split("\n"):
            g.a(ln)
            if ln.strip() == "s_barrier":
                g.a("s_memrealtime s[100:101]\ns_waitcnt lgkmcnt(0)\ns_mov_b32 m0, s44\ns_add_u32 s44, s44, 1\nv_writelane_b32 v32, s100, m0\ns_cmp_lg_u32 s44, 33\ns_cbranch_scc1 1\nv_mov_b32 v33, v32")
    if g.o.get('trace'): a("s_mov_b32 s44, 0\nv_mov_b32 v32, 0\nv_mov_b32 v33, 0")
    LW = 45
    if g.o.get('lprio'): a(f"s_setprio {g.o['lprio']}")
    a(f"s_sub_u32 s{LW}, s{S_WAVE}, 4")
    a("v_lshrrev_b32 v1, 5, v0\nv_bfe_u32 v2, v0, 4, 1\nv_lshlrev_b32 v1, 4, v1\nv_lshl_add_u32 v1, v2, 2, v1\nv_bfe_u32 v2, v0, 3, 1\nv_add_u32 v1, v1, v2")
    a(f"s_lshl_b32 s61, s{LW}, 3\nv_add_u32 v1, s61, v1\nv_and_b32 v2, 7, v0\nv_lshlrev_b32 v2, 4, v2")
    a(f"s_lshl_b32 s61, s{S_MB8}, 19\nv_lshl_add_u32 v4, v1, 11, v2\nv_add_u32 v4, s61, v4\nv_add_u32 v5, {4096-BLK}, v4")
    a(f"s_movk_i32 s60, 6144\ns_cmp_ge_u32 s{S_C}, 2\ns_cselect_b32 s60, 7168, s60")
    a(f"s_cselect_b32 s61, 0, 2048\ns_lshl_b32 s62, s{S_PAIR}, 7\ns_add_u32 s61, s61, s62")
    a(f"v_mul_u32_u24 v6, 6144, v1\nv_add3_u32 v6, v6, v2, s61\nv_add_u32 v7, {12288-BLK}, v6")
    a(f"s_mul_i32 s63, s{S_QD}, 7\ns_lshl_b32 s64, s{S_C}, 1\ns_add_u32 s64, s64, s63\ns_sub_u32 s65, s64, 2\ns_lshl_b32 s65, s65, 7\ns_add_u32 s62, s62, 4096")
    a(f"s_cmp_ge_u32 s{S_C}, 2\ns_cselect_b32 s61, s65, s62")
    a(f"v_mul_lo_u32 v8, v1, s60\nv_add3_u32 v8, v8, v2, s61\ns_lshl_b32 s62, s60, 1\ns_sub_u32 s62, s62, {BLK}\nv_add_u32 v9, s62, v8")
    a(f"s_sub_u32 s64, s64, 1\ns_add_u32 s65, s63, s{S_C}\ns_cmp_ge_u32 s{S_C}, 2\ns_cselect_b32 s61, s64, s65\ns_lshl_b32 s61, s61, 7")
    a(f"v_mul_u32_u24 v10, 7168, v1\nv_add3_u32 v10, v10, v2, s61\nv_add_u32 v11, {14336-BLK}, v10")
    a("v_bfe_u32 v12, v0, 4, 1\nv_bfe_u32 v13, v0, 3, 1\nv_lshlrev_b32 v12, 2, v12\nv_lshl_add_u32 v12, v13, 3, v12\nv_bfe_u32 v13, v0, 1, 2\nv_add_u32 v12, v12, v13")
    a(f"s_lshl_b32 s61, s{LW}, 4\nv_add_u32 v12, s61, v12\nv_mul_u32_u24 v12, 7168, v12\nv_and_b32 v13, 1, v0\nv_lshl_add_u32 v12, v13, 4, v12")
    a(f"s_add_u32 s61, s63, 6\ns_lshl_b32 s61, s61, 7\ns_lshl_b32 s62, s{S_C}, 5\ns_add_u32 s61, s61, s62\nv_add_u32 v12, s61, v12")
    a("s_lshl_b32 s60, s60, 5")
    a(f"s_mul_i32 s66, s{LW}, {2*BLK}")
    a(f"s_mov_b32 s61, s66\ns_lshl_b32 s62, s{S_PHI}, 7\ns_mov_b32 s63, 0\ns_lshl_b32 s64, s{S_PHI}, 1\ns_add_u32 s65, s66, {WBASE}")
    a(f"s_add_u32 s67, s66, {XRING}\ns_add_u32 s68, s66, {WBASE+4*WSLOT}")
    a(f"s_lshl_b32 s69, s{LW}, 9\ns_sub_u32 s69, s69, s66\ns_add_u32 s69, s69, {3*UNIT}")
    a(f"s_mov_b32 s30, {hex(2048*1024*2)}\ns_mov_b32 s31, 0x20000\ns_mov_b32 s50, {hex(1024*3072*2)}\ns_mov_b32 s51, 0x20000")
    a(f"s_mov_b32 s58, {hex(1024*3584*2)}\ns_mov_b32 s59, 0x20000\ns_mov_b32 s55, 0x20000")
    a("s_waitcnt lgkmcnt(0)")
    a("s_mov_b64 s[28:29], s[4:5]\ns_mov_b64 s[48:49], s[6:7]\ns_mov_b64 s[56:57], s[12:13]")
    a(f"s_cmp_ge_u32 s{S_C}, 2")
    a("s_cselect_b64 s[52:53], s[12:13], s[6:7]\ns_cselect_b32 s54, s58, s50")

    def xhalf():
        a("s_mov_b32 m0, s61\ns_add_u32 s46, s62, s63")
        for u in range(4):
            if u: a(f"s_add_u32 m0, m0, {UNIT}\ns_add_u32 s46, s46, 0x10000")
            a("buffer_load_dwordx4 v4, s[28:31], s46 offen lds")
            a(f"buffer_load_dwordx4 v5, s[28:31], s46 offen offset:{BLK} lds")
        a(f"s_add_u32 s61, s61, {4*UNIT}\ns_cmp_eq_u32 s61, s67\ns_cselect_b32 s61, s66, s61")
        a("s_xor_b32 s63, s63, 0x40000\ns_cselect_b32 s47, 0, 128\ns_add_u32 s62, s62, s47\ns_and_b32 s62, s62, 2047")

    def wslab():
        for ln, (sr, ld) in enumerate([(48, 32 * 6144), (52, "s60"), (56, 32 * 7168)]):
            a(f"s_add_u32 m0, s65, {ln*UNIT}\ns_mul_i32 s35, s64, {ld}")
            a(f"buffer_load_dwordx4 v{6+2*ln}, s[{sr}:{sr+3}], s35 offen lds")
            a(f"buffer_load_dwordx4 v{7+2*ln}, s[{sr}:{sr+3}], s35 offen offset:{BLK} lds")
        a("s_add_u32 m0, s65, s69\ns_mov_b32 exec_hi, 0")
        a("buffer_load_dwordx4 v12, s[56:59], s35 offen lds")
        a("s_mov_b32 exec_hi, -1")
        a(f"s_add_u32 s65, s65, {WSLOT}\ns_cmp_eq_u32 s65, s68\ns_cselect_b32 s65, s67, s65")
        a("s_add_u32 s64, s64, 1\ns_and_b32 s64, s64, 31")

    g.stamp(1)
    xhalf(); wslab(); xhalf(); wslab(); g.stamp(2)
    a("s_waitcnt vmcnt(7)"); g.stamp(3)
    a("s_barrier")
    xhalf(); wslab(); xhalf(); wslab(); xhalf(); g.stamp(4)
    NU = 19
    a(f"s_mov_b32 s34, {27-NU}")
    a("L_l1:")
    a("s_waitcnt vmcnt(30)\ns_barrier")
    wslab(); xhalf()
    a("s_sub_u32 s34, s34, 1\ns_cmp_lg_u32 s34, 0\ns_cbranch_scc1 L_l1")
    srd(g, SRD_WS, 26, 0x10000000)
    a(f"s_mov_b32 s10, {hex(1024*1024*2)}\ns_mov_b32 s11, 0x20000")
    a(f"s_mov_b64 s[12:13], s[14:15]\ns_mov_b32 s14, {hex(3584*1024*2)}\ns_mov_b32 s15, 0x20000")
    a("v_lshrrev_b32 v1, 5, v0\nv_bfe_u32 v3, v0, 4, 1\nv_lshlrev_b32 v1, 3, v1\nv_lshl_add_u32 v1, v3, 4, v1\nv_bfe_u32 v3, v0, 3, 1\nv_add_u32 v1, v1, v3")
    a(f"s_lshl_b32 s4, s{LW}, 2\nv_add_u32 v1, s4, v1")
    a(f"s_lshl_b32 s4, s{S_CB}, 8\ns_lshl_b32 s5, s{S_KH}, 7\ns_add_u32 s4, s4, s5")
    a("v_lshl_add_u32 v14, v1, 11, v2\nv_add_u32 v14, s4, v14\nv_xor_b32 v16, 128, v14")
    a(f"v_add_u32 v15, {4096-BLK}, v14\nv_add_u32 v17, {4096-BLK}, v16")
    a(f"s_lshl_b32 s5, s{S_MB8}, 19\ns_sub_u32 s4, s4, s5")
    a(f"v_add_u32 v24, s4, v4\nv_xor_b32 v26, 128, v24\nv_add_u32 v25, {4096-BLK}, v24\nv_add_u32 v27, {4096-BLK}, v26")
    lane_goodcol(g, 18, 19)
    a(f"s_lshl_b32 s4, s{S_MB16}, 15\ns_lshl_b32 s5, s{LW}, 14\ns_add_u32 s4, s4, s5\nv_add_u32 v18, s4, v18\nv_add_u32 v19, 3072, v18")
    lane_h(g, 21, 22, 17)
    stash_setup(g, a, 28)
    a(f"s_and_b32 s4, s32, 1\ns_mul_i32 s4, s4, 14\ns_mul_i32 s6, s{S_KH}, 28\ns_sub_u32 s5, 14, s4\ns_add_u32 s4, s4, s6\ns_add_u32 s5, s5, s6")
    a("s_lshl_b32 s6, s4, 17\ns_lshl_b32 s7, s5, 17\ns_lshl_b32 s4, s4, 19\ns_lshl_b32 s5, s5, 19")
    a(f"s_lshl_b32 s16, s{LW}, 13")
    t0 = 27 - NU
    vm = VM(a, [('I', t0 - 3)] * 15 + [('I', t0 - 2)] * 15 + [('I', t0 - 1)] * 15)
    order = [(0, x) for x in ORD1] + [(1, x) for x in ORD1] + [(0, x) for x in ORD2] + [(1, x) for x in ORD2]
    slot = lambda n: P2B + ((n + 1) % 4) * P2SLOT

    def astage(n):
        a(f"s_add_u32 m0, s16, {slot(n)}")
        if n < 28: a(f"s_add_u32 s47, s{4+order[n][0]}, {order[n][1]<<19}")
        else: a(f"s_mov_b32 s47, {((n+28) if not g.o.get('fixD') else 56+(n&1))<<19}")
        for k in range(2):
            if k: a(f"s_add_u32 m0, m0, 4096\ns_add_u32 s47, s47, 8192")
            for mt in range(2):
                for kk in range(2):
                    vm.op(f"buffer_load_dwordx4 v{18+mt}, {W}, s47 offen offset:{mt*1024+kk*2048} {g.o.get('aflag','sc1')} lds", n)

    def wstage(n):
        vb = 24 if order[n][1] % 7 == 6 else 14
        for ln in range(2):
            for kk in range(2):
                a(f"s_add_u32 m0, s66, {slot(n)+P2A+(ln*2+kk)*UNIT}")
                a(f"s_add_u32 s47, s{6+order[n][0]}, {(order[n][1]<<17)+(kk<<16)}")
                for jb in range(2):
                    vm.op(f"buffer_load_dwordx4 v{vb+2*ln+jb}, s[12:15], s47 offen offset:{jb*BLK} lds", n)

    sl = stash_loads(g, 28, 8)
    for t in range(t0, 27):
        vm.wait(('I', t - 3)); a("s_barrier")
        wslab(); xhalf(); vm.mark(('I', t), 15)
        for _ in range(2):
            if sl: pre, op = sl.pop(0); a(pre); vm.op(op, 'st')
    assert not sl
    vm.wait(('I', 25)); a("s_barrier")
    wslab(); vm.mark(('I', 27), 7)
    vm.wait(('I', 26)); a("s_barrier")
    wstage(0)
    vm.wait(('I', 27)); a("s_barrier")
    a("s_barrier")
    wstage(1)
    a("s_barrier")
    g.stamp(5)
    l0, l1 = g.lab("pp"), g.lab("pp")
    iss = lambda r: a(f"buffer_load_dword v{r}, v21, {W}, s17 offen sc1")
    iss(40)
    wstage(2)
    iss(41)
    wstage(3)
    a(f"s_mov_b32 s35, {SPIN}\n{l0}:")
    for r in range(3):
        iss(40 + (r + 2) % 3)
        a(f"s_waitcnt vmcnt(2)\nv_cmp_ne_u32 vcc, 1, v{40+r}\ns_nop 1\ns_and_b32 s33, vcc_lo, 0xffff\ns_cbranch_scc0 {l1}\ns_sleep {g.o.get('psleep', 3)}")
    a(f"s_sub_u32 s35, s35, 1\ns_cbranch_scc0 {l0}\n{l1}:")
    vm.q = [3, 'p']
    g.stamp(7)
    if g.o['prof']: a(f"s_sub_u32 s88, {SPIN}, s35")
    astage(0); astage(1)
    a(f"s_cmp_ge_u32 s{S_C}, 2\ns_cbranch_scc1 L_l_nog1\ns_barrier\nL_l_nog1:")
    vm.wait(0); a("s_barrier")
    astage(2); astage(3)
    for n in range(1, 43):
        vm.wait(n)
        if n > 26: a(f"s_waitcnt lgkmcnt({2 if n <= 41 else 0})")
        a("s_barrier")
        m = n + 3
        if m < 44:
            if not (m >= 28 and g.o.get('noad')): astage(m)
            if m >= 28: stash_write(a, 28, m)
            if m < 28: wstage(m)
    vm.wait(43)
    prof_dump(g, 4, 1)
    if g.o.get('trace'):
        a(f"s_cmp_lg_u32 s{S_WAVE}, 4\ns_cbranch_scc1 L_exit\ns_lshl_b32 s33, s2, 9\ns_add_u32 s33, s33, {WS_PROF+0x20000}\nv_lshlrev_b32 v5, 2, v0")
        a(f"buffer_store_dword v33, v5, {W}, s33 offen\nbuffer_store_dword v32, v5, {W}, s33 offen offset:256")
    a("s_endpgm")


def helper(g):
    a = g.a
    a("L_helper:")
    HW = 45
    def bars(n):
        for _ in range(n): a("s_barrier")
    a(f"s_sub_u32 s{HW}, s{S_WAVE}, 6")
    a("v_lshlrev_b32 v4, 4, v0\nv_lshlrev_b32 v5, 2, v0\nv_mov_b32 v6, 0\nv_mov_b32 v7, 1\nv_lshlrev_b32 v8, 7, v0")
    a(f"s_getpc_b64 s[96:97]\nL_pc:\ns_sub_u32 s96, s96, L_pc-{NAME}\ns_subb_u32 s97, s97, 0")
    a(f"s_mov_b32 s98, L_codeend-{NAME}\ns_mov_b32 s99, 0x20000")
    a(f"s_lshl_b32 s100, s30, 1\ns_add_u32 s100, s100, s{HW}\ns_lshl_b32 s100, s100, 11")
    def codepf():
        a("s_mov_b64 exec, 0xffff\nbuffer_load_dword v9, v8, s[96:99], s100 offen\ns_mov_b64 exec, -1")
    codepf()
    a(f"s_lshl_b32 s46, s{S_KH}, 3\ns_add_u32 s46, s46, s{S_CB}\ns_lshl_b32 s47, s{S_MB16}, 4\ns_add_u32 s46, s46, s47")
    a("s_waitcnt lgkmcnt(0)")
    srd(g, SRD_WS, 26, 0x10000000)
    srd(g, 48, 24, 256)
    srd(g, 28, 4, 2048 * 1024 * 2)
    a(f"s_cmp_lg_u32 s{HW}, 0\ns_cbranch_scc1 L_h_noinit")
    for r in range(12, 16): a(f"v_mov_b32 v{r}, -1")
    a(f"s_cmp_ge_u32 s{S_C}, 2\ns_cbranch_scc1 L_h_i1\ns_cmp_ge_u32 s{S_MB8}, 6\ns_cbranch_scc1 L_h_i1")
    a(f"s_mul_i32 s47, s{S_PAIR}, 6144\ns_lshl_b32 s33, s{S_MB8}, 10\ns_add_u32 s47, s47, s33\ns_add_u32 s47, s47, {WS_KVF}")
    a(f"buffer_store_dwordx4 v[12:15], v4, {W}, s47 offen sc1")
    a("L_h_i1:")
    a(f"s_lshl_b32 s47, s2, 11\ns_add_u32 s47, s47, {WS_FLAG}\ns_mov_b64 exec, 0xffff")
    a(f"buffer_store_dword v6, v8, {W}, s47 offen sc1")
    a(f"s_mov_b32 exec_lo, 0xff\ns_lshl_b32 s47, s46, 5\ns_add_u32 s47, s47, {WS_FLAG+F_G}")
    a(f"buffer_store_dword v12, v5, {W}, s47 offen sc1")
    a("s_waitcnt vmcnt(0)\ns_mov_b32 exec_lo, 1")
    a(f"s_lshl_b32 s47, s{S_XCD}, 5")
    a("buffer_atomic_add v7, v6, s[48:51], s47 offen sc1")
    a("s_mov_b64 exec, -1")
    a("L_h_noinit:")
    srd(g, 52, 6, 1024 * 3072 * 2)
    srd(g, 56, 12, 1024 * 3584 * 2)
    srd(g, 60, 14, 3584 * 1024 * 2)
    srd(g, 64, 8, 1024 * 1024 * 2)
    a("v_lshlrev_b32 v10, 11, v0")
    a(f"s_lshl_b32 s68, s{HW}, 8\ns_add_u32 s68, s68, s2\ns_mov_b32 s69, s68\ns_mov_b32 s34, 0")
    lead = g.o.get('lead', 1)
    a("s_branch L_h1go\nL_h1:")
    if g.o.get('pf1'):
        l1, lx, lq = g.lab("pf"), g.lab("pf"), g.lab("pf")
        a(f"s_add_u32 s47, s34, {lead}\ns_mul_i32 s47, s47, 68\ns_cmp_ge_u32 s68, s47\ns_cbranch_scc1 {l1}")
        a(f"s_mul_hi_u32 s47, s68, {(2**32+135)//136}\ns_mul_i32 s33, s47, 136\ns_sub_u32 s33, s68, s33\ns_add_u32 s47, s47, 2\ns_add_u32 s68, s68, 512")
        a(f"s_cmp_ge_u32 s47, 16\ns_cbranch_scc1 {l1}")
        a(f"s_cmp_lt_u32 s33, 32\ns_cbranch_scc1 {lx}\ns_cmp_lt_u32 s33, 80\ns_cbranch_scc1 {lq}")
        a(f"s_mul_i32 s47, s47, 56\ns_add_u32 s47, s47, s33\ns_sub_u32 s47, s47, 80\ns_lshl_b32 s47, s47, 13\nbuffer_load_dword v9, v8, s[56:59], s47 offen\ns_branch {l1}")
        a(f"{lq}:\ns_mul_i32 s47, s47, 48\ns_add_u32 s47, s47, s33\ns_sub_u32 s47, s47, 32\ns_lshl_b32 s47, s47, 13\nbuffer_load_dword v9, v8, s[52:55], s47 offen\ns_branch {l1}")
        a(f"{lx}:\ns_lshl_b32 s47, s47, 7\ns_lshl_b32 s33, s33, 17\ns_add_u32 s47, s47, s33\nbuffer_load_dword v9, v10, s[28:31], s47 offen")
        a(f"{l1}:")
    if g.o['pfw']:
        p0, pr = g.o.get('pfw0', 14), g.o.get('pfwr', 80)
        l1, lo = g.lab("pf"), g.lab("pf")
        a(f"s_sub_u32 s47, s34, {p0}\ns_cbranch_scc1 {l1}\ns_mul_i32 s47, s47, {pr}\ns_cmp_ge_u32 s69, s47\ns_cbranch_scc1 {l1}")
        a(f"s_lshl_b32 s47, s69, 13\ns_add_u32 s69, s69, 512\ns_cmp_ge_u32 s47, {256*8192}\ns_cbranch_scc1 {lo}")
        a(f"buffer_load_dword v9, v8, s[64:67], s47 offen\ns_branch {l1}")
        a(f"{lo}:\ns_sub_u32 s47, s47, {256*8192}\nbuffer_load_dword v9, v8, s[60:63], s47 offen")
        a(f"{l1}:")
    a("s_setpc_b64 s[50:51]")
    a("L_h1go:\ns_getpc_b64 s[48:49]\nL_pc2:\ns_sub_u32 s48, s48, L_pc2-L_h1\ns_subb_u32 s49, s49, 0")
    stash_setup(g, a, 20)
    sl = stash_loads(g, 20, 64)
    a("L_h1l:\ns_swappc_b64 s[50:51], s[48:49]\ns_barrier")
    a("s_add_u32 s34, s34, 1\ns_cmp_lg_u32 s34, 9\ns_cbranch_scc1 L_h1l")
    for t in range(9, 29):
        a("s_swappc_b64 s[50:51], s[48:49]\ns_barrier\ns_add_u32 s34, s34, 1")
        if t == g.o.get('cpf1', 23): codepf()
        if t == 25:
            srd(g, 92, 24, 256)
            a("v_lshlrev_b32 v15, 5, v0")
            iss0 = lambda: a("buffer_load_dword v14, v15, s[92:95], 0 offen sc1")
            iss0()
        if t == 27: poll_check(g, iss0, 14, 8, 32, "gt")
        for _ in range(2):
            if sl: pre, op = sl.pop(0); a(pre); a(op)
    def stash(sl, k):
        for _ in range(k):
            pre, op = sl.pop(0); a(pre); a(op)
    def dtail():
        for n in range(25, 41):
            a("s_waitcnt lgkmcnt(2)\ns_barrier")
            stash_write(a, 20, n + 3)
        a("s_barrier\ns_waitcnt lgkmcnt(0)")
    a(f"s_cmp_lg_u32 s{HW}, 0\ns_cbranch_scc1 L_h_one")
    a("v_lshlrev_b32 v13, 3, v0")
    bars(3)
    lane_h(g, 11, 12, 52)
    a(f"s_xor_b32 s53, s52, 0x800\ns_add_u32 s54, s52, {F_H2}\ns_xor_b32 s55, s54, 0x800")
    a("v_and_b32 v12, 1, v0\nv_lshlrev_b32 v12, 7, v12\nv_bfe_u32 v16, v0, 1, 1\nv_lshl_add_u32 v12, v16, 16, v12\nv_bfe_u32 v16, v0, 2, 1\nv_lshl_add_u32 v12, v16, 18, v12")
    a(f"v_bfe_u32 v16, v0, 3, 2\nv_lshl_add_u32 v12, v16, 11, v12\ns_andn2_b32 s56, s52, 0x1800\ns_add_u32 s56, s56, {F_X + (2<<16)}")
    a(f"s_lshl_b32 s57, s{S_MB16}, 9\ns_add_u32 s57, s57, {WS_FLAG+F_G}")
    bars(1)
    a(f"s_cmp_ge_u32 s{S_C}, 2\ns_cbranch_scc1 L_h_nog1\ns_barrier\nL_h_nog1:")
    def gate(soff, areg, nl, before):
        iss = lambda: a(f"buffer_load_dword v14, v{areg}, {W}, s{soff} offen sc1")
        ok = g.lab("gate")
        bars(before)
        a(f"buffer_load_dword v18, v{areg}, {W}, s{soff} offen sc1")
        bars(1); iss(); bars(1)
        a(f"s_waitcnt vmcnt(1)\nv_cmp_ne_u32 vcc, 1, v18\ns_nop 1\ns_and_b32 s33, vcc_lo, {hex((1<<nl)-1)}\ns_cbranch_scc0 {ok}")
        poll_check(g, iss, 14, nl, 1)
        a(f"{ok}:")
    gate(53, 11, 16, 3)
    g.stamp(1)
    gate(54, 11, 16, 6)
    g.stamp(2)
    if g.o.get('cpf2', 1): codepf()
    gate(55, 11, 16, 4)
    g.stamp(3)
    iss = lambda: a(f"buffer_load_dwordx2 v[16:17], v13, {W}, s57 offen sc1")
    iss()
    bars(2)
    poll_check(g, iss, 14, 64, -1, "eq", lambda: a("v_max_u32 v14, v16, v17"))
    a(f"v_add_u32 v13, {LDS_G}, v13\nds_write_b64 v13, v[16:17]")
    gate(56, 12, 32, 2)
    g.stamp(4)
    dtail()
    prof_dump(g, 6, 2)
    a("s_endpgm")
    a("L_h_one:")
    bars(2)
    srd(g, 52, 16, 2048)
    a("s_lshl_b32 s47, s46, 14")
    for hf in range(2): a(f"buffer_load_dwordx4 {vr(24+4*hf)}, v4, s[52:55], 0 offen offset:{hf*1024}")
    for r in range(8):
        for hf in range(2): a(f"buffer_load_dwordx4 {vr(40+8*r+4*hf)}, v4, s[28:31], s47 offen offset:{(r&1)*2048+hf*1024}")
        if r & 1: a("s_add_u32 s47, s47, 4096")
    for r in range(32, 40): a(f"v_mov_b32 v{r}, 0")
    bars(2)
    a("s_waitcnt vmcnt(0)")
    for k in range(8):
        for r in range(8): a(f"v_dot2_f32_bf16 v{32+r}, v{40+8*r+k}, v{24+k}, v{32+r}")
    a("s_nop 1")
    for pat in ["quad_perm:[1,0,3,2] row_mask:0xf", "quad_perm:[2,3,0,1] row_mask:0xf", "row_half_mirror row_mask:0xf", "row_mirror row_mask:0xf",
                "row_bcast:15 row_mask:0xa", "row_bcast:31 row_mask:0xc"]:
        for r in range(32, 40): a(f"v_add_f32_dpp v{r}, v{r}, v{r} {pat} bank_mask:0xf")
    for r in range(8): a(f"v_readlane_b32 s{52+r}, v{32+r}, 63")
    a("s_nop 1")
    for r in range(8): a(f"v_writelane_b32 v16, s{52+r}, {r}")
    a("s_nop 0\nv_mul_f32 v16, 0xbfb8aa3b, v16\nv_exp_f32 v16, v16\ns_nop 0\nv_add_f32 v16, 1.0, v16\nv_rcp_f32 v16, v16")
    a(f"s_lshl_b32 s47, s46, 5\ns_add_u32 s47, s47, {WS_FLAG+F_G}\ns_mov_b64 exec, 0xff")
    a(f"buffer_store_dword v16, v5, {W}, s47 offen sc1\ns_mov_b64 exec, -1")
    a(f"s_cmp_ge_u32 s{S_C}, 2\ns_cbranch_scc1 L_h1_q\ns_cmp_ge_u32 s{S_MB8}, 6\ns_cbranch_scc1 L_h1_idle")
    a(f"v_and_b32 v12, 3, v0\nv_lshlrev_b32 v12, 7, v12\nv_bfe_u32 v13, v0, 2, 3\nv_lshl_add_u32 v12, v13, 13, v12")
    a(f"s_andn2_b32 s54, s2, 0x1c\ns_lshl_b32 s54, s54, 11\ns_add_u32 s54, s54, {WS_FLAG+F_X}")
    H1 = g.o['h1']
    bars(1)
    gate(54, 12, 32, H1 + 1)
    a(f"s_mul_i32 s47, s{S_PAIR}, {8*12288}\ns_lshl_b32 s46, s{S_MB8}, 11\ns_add_u32 s47, s47, s46\ns_add_u32 s47, s47, {WS_KVP}")
    for m in range(8):
        for dt in range(2): a(f"buffer_load_dwordx4 {vr(32+(m*2+dt)*4)}, v4, {W}, s47 offen offset:{dt*1024} sc1")
        if m < 7: a("s_add_u32 s47, s47, 12288")
    bars(2)
    a("s_waitcnt vmcnt(0)")
    for st in (32, 16, 8):
        for r in range(st): a(f"v_add_f32 v{32+r}, v{32+r}, v{32+st+r}")
    for r in range(4): a(f"v_cvt_pk_bf16_f32 v{32+r}, v{32+2*r}, v{33+2*r}")
    a(f"s_mul_i32 s47, s{S_PAIR}, 6144\ns_lshl_b32 s46, s{S_MB8}, 10\ns_add_u32 s47, s47, s46\ns_add_u32 s47, s47, {WS_KVF}")
    a(f"buffer_store_dwordx4 v[32:35], v4, {W}, s47 offen sc1")
    bars(13 - (H1 + 5))
    if g.o.get('cpf2', 1): codepf()
    bars(12)
    a("s_branch L_h1_tail")
    a("L_h1_idle:")
    bars(14)
    if g.o.get('cpf2', 1): codepf()
    bars(12)
    a("s_branch L_h1_tail")
    a("L_h1_q:")
    K1 = g.o['k1']
    a(f"s_mul_i32 s55, s{S_PAIR}, 6144\ns_add_u32 s55, s55, {WS_KVF}\ns_add_u32 s56, s55, 4096\nv_add_u32 v12, {P2END}, v4")
    def kvf_issue():
        for f in range(6): a(f"buffer_load_dwordx4 {vr(32+4*f)}, v4, {W}, s{55+(f>>2)} offen offset:{(f&3)*1024} sc1")
    def kvf_max():
        a("v_max_u32 v14, v32, v33")
        for r in range(34, 56, 2): a(f"v_max3_u32 v14, v14, v{r}, v{r+1}")
    bars(K1 - 2)
    kvf_issue()
    bars(2)
    poll_check(g, kvf_issue, 14, 64, -1, "eq", kvf_max)
    for f in range(6): a(f"ds_write_b128 v12, {vr(32+4*f)} offset:{f*1024}")
    if g.o.get('cpf2', 1): codepf()
    a("s_waitcnt lgkmcnt(0)")
    bars(25 - K1)
    a("L_h1_tail:\ns_waitcnt vmcnt(0)")
    dtail()
    a("s_endpgm")


HEADER = open("gated_mix__linear_attn_block__dense_activation_relu__prompt.s.ref").read().split("; Override")[0] \
    if __name__ == "__main__" else ""


def build(**opt):
    g = G(**opt)
    NOSW[0] = g.o.get('nosw', False)
    g.L.append(f"; @launch grid=(256,1,1) block=(512,1,1) lds={LDS_TOTAL}")
    g.a(f'.amdgcn_target "amdgcn-amd-amdhsa--gfx950"\n.text\n.globl {NAME}\n.p2align 8\n.type {NAME},@function\n{NAME}:')
    prologue(g)
    loader(g)
    helper(g)
    compute(g)
    g.a("L_exit:\ns_endpgm\nL_codeend:")
    g.L.append(f""".section .rodata,"a"
.p2align 6
.amdhsa_kernel {NAME}
  .amdhsa_next_free_vgpr 256
  .amdhsa_next_free_sgpr 102
  .amdhsa_accum_offset 256
  .amdhsa_group_segment_fixed_size 0
  .amdhsa_kernarg_size 80
  .amdhsa_user_sgpr_count 2
  .amdhsa_user_sgpr_kernarg_segment_ptr 1
  .amdhsa_system_sgpr_workgroup_id_x 1
.end_amdhsa_kernel""")
    return g.text()


if __name__ == "__main__":
    out = sys.argv[1]
    opt = {}
    for kv in sys.argv[2:]:
        k, v = kv.split("=")
        opt[k] = eval(v)
    open(out, "w").write(HEADER + build(**opt))
```

```python
import sys

NAME = "gated_mix__linear_attn_block__dense_activation_relu__prompt_kernel"

WS_HO = 0
WS_PART = 0x3000000
WS_KVP = 0x2400000
WS_KVF = 0x2580000
WS_FLAG = 0x2600000
F_H1, F_H2, F_X, F_P = 0, 512, 1024, 1536
F_G = 0x80000
WS_PROF = 0x2700000
ORD1 = [0, 1, 2, 4, 7, 8, 9, 11]
ORD2 = [3, 5, 10, 12, 6, 13]

UNIT = 4224; BLK = 1056
XSLOT = 8 * UNIT
XRING = 3 * XSLOT
WSLOT = 3 * UNIT + 1024
WBASE = XRING
LDS_G = 163328
ST0 = 128
P2A = 16384
P2SLOT = P2A + 4 * UNIT
P2RING = 4 * P2SLOT
P2B = 512
P2END = P2B + P2RING
LDS_TOTAL = 163840

SPIN = 100000


class G:
    def __init__(self, **opt):
        self.L = []
        self.o = dict(prof=False, krot=False, pfw=True, pf1=True, lead=3, pfw0=2, pfwr=50, early2=0, k1=13, h1=3, odens=3, b16=True)
        self.o.update(opt)
        self.uid = 0
        self.info = {}
        self.st = {'since': 0}

    def a(self, s):
        for ln in s.split("\n"):
            ln = ln.strip()
            if ln:
                self.L.append(ln if ln.endswith(":") or ln.startswith(".") else "    " + ln)

    def lab(self, p):
        self.uid += 1
        return f"L_{p}_{self.uid}"

    def stamp(self, n):
        if self.o['prof'] == 'min' and n not in (0, 8): return
        if self.o['prof']:
            self.a(f"{'s_memtime' if self.o['prof']=='cyc' else 's_memrealtime'} s[{70+2*n}:{71+2*n}]")

    def text(self):
        return "\n".join(self.L) + "\n"


class VM:
    def __init__(self, a, init=()):
        self.a = a; self.q = list(init)
    def op(self, text, tag):
        self.a(text); self.q.append(tag)
        assert len(self.q) <= 63, "vmcnt overflow"
    def mark(self, tag, n):
        self.q += [tag] * n
        assert len(self.q) <= 63, "vmcnt overflow"
    def wait(self, *tags):
        k = max([i for i, t in enumerate(self.q) if t in tags], default=-1)
        if k >= 0:
            self.a(f"s_waitcnt vmcnt({len(self.q)-1-k})"); self.q = self.q[k + 1:]


def vr(b, n=4):
    return f"v[{b}:{b+n-1}]"


def mfma(d, a, b, c=None):
    return f"v_mfma_f32_16x16x32_bf16 {vr(d)}, {vr(a)}, {vr(b)}, {vr(d) if c is None else c}"


S_WAVE, S_MB8, S_QD, S_C, S_PAIR, S_MB16, S_CB, S_KH, S_PHI, S_XCD = 3, 36, 37, 38, 39, 40, 41, 42, 43, 44
SRD_WS = 20


def srd(g, d, base, nbytes):
    g.a(f"s_mov_b32 s{d}, s{base}\ns_mov_b32 s{d+1}, s{base+1}\ns_mov_b32 s{d+2}, {hex(nbytes)}\ns_mov_b32 s{d+3}, 0x20000")


def prof_dump(g, wave, row):
    if not g.o['prof'] or g.o.get('probe') is not None or (row and (g.o['prof'] == 'min' or g.o.get('trace'))): return
    a = g.a
    l = g.lab("pd")
    a(f"s_waitcnt lgkmcnt(0)\ns_cmp_lg_u32 s{S_WAVE}, {wave}\ns_cbranch_scc1 {l}")
    a(f"s_lshl_b32 s33, s2, 6\ns_add_u32 s33, s33, {WS_PROF + row*16384}\nv_mov_b32 v5, 0")
    for n in range(16):
        a(f"v_mov_b32 v6, s{70+2*n}\nbuffer_store_dword v6, v5, s[{SRD_WS}:{SRD_WS+3}], s33 offen offset:{4*n}\ns_nop 1")
    a(f"{l}:")


def prologue(g):
    a = g.a
    a("s_cmp_ge_u32 s2, 256\ns_cbranch_scc1 L_exit")
    if g.o['prof']:
        for n in range(70, 102): a(f"s_mov_b32 s{n}, 0")
    g.stamp(0)
    a("s_load_dwordx16 s[4:19], s[0:1], 0")
    a("s_load_dwordx4 s[24:27], s[0:1], 64")
    a("v_lshrrev_b32 v1, 6, v0\nv_and_b32 v0, 63, v0")
    a(f"s_and_b32 s{S_XCD}, s2, 7\ns_lshr_b32 s30, s2, 3")
    a(f"v_readfirstlane_b32 s{S_WAVE}, v1")
    a(f"s_lshr_b32 s31, s{S_XCD}, 2\ns_and_b32 s32, s{S_XCD}, 3")
    a(f"s_and_b32 s33, s30, 3\ns_lshl_b32 s{S_MB8}, s31, 2\ns_add_u32 s{S_MB8}, s{S_MB8}, s33")
    a("s_lshr_b32 s33, s30, 2")
    a(f"s_lshr_b32 s34, s33, 2\ns_lshl_b32 s{S_QD}, s32, 1\ns_add_u32 s{S_QD}, s{S_QD}, s34")
    a(f"s_and_b32 s{S_C}, s33, 3")
    a(f"s_and_b32 s34, s33, 1\ns_lshl_b32 s{S_PAIR}, s{S_QD}, 1\ns_add_u32 s{S_PAIR}, s{S_PAIR}, s34")
    a(f"s_lshl_b32 s{S_MB16}, s{S_MB8}, 1\ns_add_u32 s{S_MB16}, s{S_MB16}, s34")
    a(f"s_and_b32 s34, s32, 1\ns_lshl_b32 s34, s34, 2\ns_lshr_b32 s{S_CB}, s33, 1\ns_xor_b32 s{S_CB}, s{S_CB}, {g.o.get('cbx', 1)}\ns_add_u32 s{S_CB}, s{S_CB}, s34")
    a(f"s_lshr_b32 s{S_KH}, s32, 1")
    if g.o['krot']:
        a(f"s_lshl_b32 s34, s31, 1\ns_add_u32 s34, s34, s32\ns_lshl_b32 s34, s34, 2\ns_and_b32 s{S_PHI}, s34, 15")
    else:
        a(f"s_mov_b32 s{S_PHI}, 0")
    a(f"s_cmp_lt_u32 s{S_WAVE}, 4\ns_cbranch_scc1 L_compute")
    a(f"s_cmp_ge_u32 s{S_WAVE}, 6\ns_cbranch_scc1 L_helper")


W = f"s[{SRD_WS}:{SRD_WS+3}]"


def lane_goodcol(g, d, t):
    g.a(f"v_lshrrev_b32 v{d}, 4, v0\nv_and_b32 v{t}, 15, v0\nv_lshlrev_b32 v{t}, 4, v{t}\nv_lshl_add_u32 v{d}, v{d}, 9, v{t}")


def lane_h(g, d, t, so):
    g.a(f"v_bfe_u32 v{d}, v0, 1, 3\nv_and_b32 v{t}, 1, v0\nv_lshlrev_b32 v{t}, 7, v{t}\nv_lshl_add_u32 v{d}, v{d}, 16, v{t}")
    g.a(f"s_and_b32 s{so}, s2, 31\ns_lshl_b32 s{so}, s{so}, 3\ns_and_b32 s33, s{S_MB16}, 1\ns_add_u32 s{so}, s{so}, s33\ns_lshl_b32 s{so}, s{so}, 8\ns_add_u32 s{so}, s{so}, {WS_FLAG}")


def poll_check(g, issue, reg, nl, val, cmp="ne", pre=None):
    a = g.a
    l0, l1 = g.lab("poll"), g.lab("pollok")
    a(f"s_mov_b32 s35, {SPIN}\n{l0}:\ns_waitcnt vmcnt(0)")
    if pre: pre()
    a(f"v_cmp_{cmp}_u32 vcc, {val}, v{reg}\ns_nop 1")
    if nl == 64: a("s_cmp_lg_u64 vcc, 0")
    else: a(f"s_and_b32 s33, vcc_lo, {hex((1<<nl)-1)}")
    a(f"s_cbranch_scc0 {l1}")
    a(f"s_sub_u32 s35, s35, 1\ns_cbranch_scc1 {l1}")
    if g.o.get('psleep'): a(f"s_sleep {g.o['psleep']}")
    issue()
    a(f"s_branch {l0}\n{l1}:")


def setflags(g, one, *soffs):
    g.a("s_mov_b64 exec, 1")
    for so in soffs: g.a(f"buffer_store_dword v{one}, off, {W}, s{so} sc1")
    g.a("s_mov_b64 exec, -1")


VX, VW, VQ = 1, 2, 3
WB = lambda n: 8 + 4 * (n % 4)
XLO = lambda b, i: 24 + 8 * b + 4 * i
XHI = lambda i: 40 + 4 * (i - 2)
AC = lambda j, i: 48 + (j * 4 + i) * 4


PERM = {True: [8, 9, 10, 11, 0, 1, 2, 3, 12, 4, 5, 6, 7], False: [4, 5, 6, 7, 8, 9, 10, 11, 12, 0, 1, 2, 3]}


def p1_wread(t, j, n):
    slot = (t % 4) * WSLOT
    if j < 12:
        return [f"ds_read_b64_tr_b16 v[{WB(n)+2*w}:{WB(n)+2*w+1}], v{VW} offset:{slot + (j//4)*UNIT + (j%4)*32 + w*256}" for w in range(2)]
    return [f"ds_read_b64_tr_b16 v[{WB(n)+2*w}:{WB(n)+2*w+1}], v{VQ} offset:{slot + w*256}" for w in range(2)]


def p1_xreg(par, i):
    return XLO(par % 2, i) if i < 2 else XHI(i)


def p1_xread(t, i, par, vx=VX):
    return f"ds_read_b128 {vr(p1_xreg(par,i))}, v{vx} offset:{(i>>1)*UNIT + (i&1)*512 + (t%2)*64}"


def pass_order(nt):
    s = [(0, 0), (0, 1), (1, 1), (1, 0), (1, 2), (1, 3), (0, 3), (0, 2)]
    for j in range(2, nt - 2):
        s += [(j, i) for i in ([2, 3, 0, 1] if j % 2 == 0 else [1, 0, 3, 2])]
    u, v = nt - 2, nt - 1
    return s + [(u, 2), (u, 3), (v, 3), (v, 2), (v, 1), (v, 0), (u, 0), (u, 1)]


def p1_mfma(kv, tile, i, wreg, xreg):
    return mfma(AC(tile, i), xreg, wreg) if (kv and tile < 8) else mfma(AC(tile, i), wreg, xreg)


Q0 = [('W', 0, 0), ('W', 0, 0), ('X', 0, 0), ('X', 0, 1), ('W', 0, 1), ('W', 0, 1), ('X', 0, 2), ('X', 0, 3)]


def p1_loop(g, kv):
    a = g.a
    P = PERM[kv]
    L = g.lab("p1")
    seq = []
    for t in range(4):
        s = pass_order(13)
        post = [[] for _ in s]
        rd = lambda j, tt=t: [('W', tt, j, x) for x in p1_wread(tt, P[j], 13 * tt + j)]
        r = rd(2); post[0].append(r[0]); post[1].append(r[1])
        r = rd(3); post[2].append(r[0]); post[3].append(r[1])
        r = rd(4); post[8].append(r[0]); post[9].append(r[1])
        r = rd(5); post[10].append(r[0]); post[11].append(r[1])
        for j in range(3, 10):
            base = 8 + (j - 2) * 4
            r = rd(j + 3); post[base].append(r[0]); post[base + 1].append(r[1])
        b10 = 40
        if t % 2 == 1:
            post[b10 - 2].append(('S', f"s_add_u32 s46, s46, {XSLOT}"))
            post[b10 - 2].append(('S', f"s_cmp_eq_u32 s46, {XRING}"))
            post[b10 - 1].append(('S', f"s_cselect_b32 s47, s48, s49"))
            post[b10 - 1].append(('S', f"s_cselect_b32 s46, 0, s46"))
            post[b10].append(('S', f"v_add_u32 v{VX}, s47, v{VX}"))
        post[b10 + 2].append(('BAR',))
        tn = t + 1
        r0, r1 = rd(0, tn), rd(1, tn)
        post[b10 + 3] += [r0[0], r0[1]]
        post[44] += [('X', tn, 0, p1_xread(tn, 0, tn)), ('X', tn, 1, p1_xread(tn, 1, tn))]
        post[45] += [r1[0]]
        post[46] += [r1[1]]
        post[47] += [('X', tn, 2, p1_xread(tn, 2, tn))]
        post[48] += [('X', tn, 3, p1_xread(tn, 3, tn))]
        if t == 3:
            post[49].append(('S', "s_sub_u32 s45, s45, 1"))
            post[50].append(('S', "s_cmp_lg_u32 s45, 0"))
        for (j, i), p in zip(s, post):
            seq.append(((t, j, i), p))
    for x in p1_wread(0, P[0], 0): a(x)
    a(p1_xread(0, 0, 0)); a(p1_xread(0, 1, 0))
    for x in p1_wread(0, P[1], 1): a(x)
    a(p1_xread(0, 2, 0)); a(p1_xread(0, 3, 0))
    q = list(Q0)
    a(f".p2align 6\n{L}:")
    for (t, j, i), p in seq:
        need = [k for k, e in enumerate(q) if e == ('W', t, j) or e == ('X', t, i)]
        if need:
            k = max(need)
            a(f"s_waitcnt lgkmcnt({len(q)-1-k})")
            q = q[k + 1:]
        a(p1_mfma(kv, P[j], i, WB(13 * t + j), p1_xreg(t, i)))
        for e in p:
            if e[0] == 'S':
                a(e[1])
            elif e[0] == 'BAR':
                a("s_waitcnt lgkmcnt(0)\ns_barrier"); q = []
            else:
                a(e[3]); q.append((e[0], e[1] % 4, e[2]))
    assert q == Q0
    a(f"s_cbranch_scc1 {L}")


def p1_tail(g, kv, extra, extra2):
    a = g.a
    P = PERM[kv]
    a(f"v_add_u32 v5, {(-2*XSLOT) & 0xffffffff}, v{VX}")
    passes = [(t, grp) for grp in (P[:4], P[4:9], P[9:]) for t in range(28, 32)]
    M = []; start = []; n0 = 0; last = {}
    reads = []
    for p, (t, tiles) in enumerate(passes):
        start.append(len(M))
        o = pass_order(len(tiles))
        base = len(M)
        for j, tile in enumerate(tiles):
            first = base + min(k for k, e in enumerate(o) if e[0] == j)
            if not (p == 0 and j < 2):
                for x in p1_wread(t, tile, n0 + j):
                    reads.append(dict(key=('W', p, j), text=x, after=last.get(WB(n0 + j), -1), first=first, t=t))
            last[WB(n0 + j)] = base + max(k for k, e in enumerate(o) if e[0] == j)
        for i in range(4):
            first = base + min(k for k, e in enumerate(o) if e[1] == i)
            if p > 0:
                reads.append(dict(key=('X', p, i), text=p1_xread(t, i, p, VX if t < 30 else 5), after=max(last.get(p1_xreg(p, i), -1), first - 14), first=first, t=t))
            last[p1_xreg(p, i)] = base + max(k for k, e in enumerate(o) if e[1] == i)
        for (j, i) in o:
            M.append((p, j, i, p1_mfma(kv, tiles[j], i, WB(n0 + j), p1_xreg(p, i))))
        n0 += len(tiles)
    V1, V2 = start[1] + 3, start[2] + 5
    R1, R2 = start[10] - 3, len(M) - 5
    for r in reads:
        if r['t'] == 30: r['after'] = max(r['after'], V1)
        if r['t'] == 31: r['after'] = max(r['after'], V2)
    reads.sort(key=lambda r: r['first'])
    q = list(Q0); since = 0
    dens = g.o.get('tdens', 3)
    def wait(pred):
        nonlocal q
        need = [k for k, e in enumerate(q) if pred(e)]
        if need:
            a(f"s_waitcnt lgkmcnt({len(q)-1-max(need)})"); q = q[max(need) + 1:]
            return 1
        return 0
    for k, (p, j, i, txt) in enumerate(M):
        assert not [r for r in reads if r['first'] <= k], "read scheduled too late"
        w = wait(lambda e: e == ('W', p, j) or e == ('X', p, i))
        a(txt); since += 1 + w
        used = 0
        if k in (V1, V2): a("s_barrier"); used += 1
        if k in (R1, R2):
            lim = 9 if k == R1 else 11
            assert not [r for r in reads if r['key'][1] <= lim]
            used += 1 + wait(lambda e: e[1] <= lim); a("s_barrier")
        nr = 0
        while used < 2:
            c = [r for r in reads if r['after'] <= k]
            if not c or (nr and c[0]['first'] - k > 9): break
            a(c[0]['text']); q.append(c[0]['key']); reads.remove(c[0]); used += 1; nr += 1
        since += used
        if k == start[8] + 3:
            extra += extra2; dens = g.o.get('tdens2', 3)
        if k >= start[4] + 3:
            while used < dens and extra:
                if isinstance(extra[0], int):
                    if k >= start[8] - extra[0]: extra.pop(0); continue
                    break
                x = extra.pop(0); a(x); used += 2 if x.startswith("v_exp") else 1
    for x in extra:
        if isinstance(x, str): a(x)


def h_cvt(d, a0, a1):
    src = [a0, a0 + 2] + ([a1, a1 + 2] if a1 is not None else [])
    return [f"v_cvt_pk_bf16_f32 v{d+r}, v{x}, v{x+1}" for r, x in enumerate(src)] + [f"v_pk_max_i16 v{d+r}, v{d+r}, 0" for r in range(len(src))]


def h_line_store(j0, soff):
    o = []
    for i in (2, 3, 0, 1):
        o.append(f"s_add_u32 s56, s{soff}, {4096*i}")
        for p in range(2):
            d = AC(j0 + 2 * p, i)
            o += h_cvt(d, d, AC(j0 + 2 * p + 1, i))
            o.append(f"buffer_store_dwordx4 {vr(d)}, v7, {W}, s56 offen offset:{p*2048} sc1")
    return o


def phi_regs(regs, tmp):
    o = [f"v_mul_f32 v{tmp+k}, s50, v{r}" for k, r in enumerate(regs)]
    for k, r in enumerate(regs): o += [f"v_exp_f32 v{tmp+k}, v{tmp+k} clamp", f"v_max_f32 v{r}, s51, v{r}"]
    return o + [f"v_add_f32 v{r}, v{r}, v{tmp+k}" for k, r in enumerate(regs)]


def pack8(d, e):
    return [f"v_cvt_pk_bf16_f32 v{d}, v{d}, v{d+1}", f"v_cvt_pk_bf16_f32 v{d+1}, v{d+2}, v{d+3}",
            f"v_cvt_pk_bf16_f32 v{d+2}, v{e}, v{e+1}", f"v_cvt_pk_bf16_f32 v{d+3}, v{e+2}, v{e+3}"]


def flagops(one, *soffs):
    return "s_mov_b64 exec, 1\n" + "".join(f"buffer_store_dword v{one}, off, {W}, s{so} sc1\n" for so in soffs) + "s_mov_b64 exec, -1"


VA2, VW2 = 1, 2
AF = lambda b, i: 112 + 16 * b + 4 * i
WF = lambda b, j: 144 + 16 * b + 4 * j
ACC = lambda j, i: 176 + (j * 4 + i) * 4
DA = lambda b, kk, i: (8, 112)[b] + 16 * kk + 4 * i
DW = lambda b, kk, j: (40, 144)[b] + 8 * kk + 4 * j
ACD = lambda j, i: 56 + (j * 4 + i) * 4
PQ = lambda i, h: AC(2 * h, i)
KVF = lambda f: 8 + 4 * f
PP = lambda j, i: (160, 240)[j] + 4 * i
GG = 104


def rd_w(d, j, kk):
    return [f"ds_read_b64_tr_b16 v[{d+2*w}:{d+2*w+1}], v{VW2} offset:{((j>>1)*2+kk)*UNIT + (j&1)*32 + w*256}" for w in range(2)]


def rd_a(d, i, kk):
    return f"ds_read_b128 {vr(d)}, v{VA2} offset:{(i>>1)*4096+kk*2048+(i&1)*1024}"


def c_reads(b):
    R = [(('W', b, 0), x) for x in rd_w(WF(b, 0), 0, b)] + [(('W', b, 0), rd_a(AF(b, i), i, b)) for i in range(4)]
    for j in range(1, 4): R += [(('W', b, j), x) for x in rd_w(WF(b, j), j, b)]
    return R


def d_reads(b):
    R = []
    for kk in range(2):
        R += [(('D', b, kk, 0), x) for x in rd_w(DW(b, kk, 0), 0, kk)] + [(('D', b, kk, 0), rd_a(DA(b, kk, i), i, kk)) for i in range(4)]
        R += [(('D', b, kk, 1), x) for x in rd_w(DW(b, kk, 1), 1, kk)]
    return R


class Stage:
    def __init__(self, g, q, extra, dens):
        self.g = g; self.q = list(q); self.extra = extra; self.dens = dens; self.carry = 0
    def a(self, x):
        self.g.a(x); self.g.st['since'] += 1
    def wait(self, key):
        need = [k for k, e in enumerate(self.q) if key is None or e == key]
        if need:
            self.a(f"s_waitcnt lgkmcnt({len(self.q)-1-max(need)})"); self.q = self.q[max(need) + 1:]
    def read(self, r):
        self.a(r[1]); self.q.append(r[0])
    def fill(self, used):
        ex, st = self.extra, self.g.st
        while used < self.dens and ex:
            if isinstance(ex[0], int):
                if st['since'] >= ex[0]: ex.pop(0); continue
                return
            x = ex.pop(0); self.g.a(x); st['since'] = 0
            used = 0 if x.startswith("v_mfma") else used + (2 if x.startswith(("v_exp", "v_rcp")) else 1)


def c_stage(g, first=False, extra=None, loop=False, last=False, dens=2):
    S = Stage(g, [k for k, _ in c_reads(0)], extra, dens)
    BP = g.o.get('cbar', 2)
    for b in range(2):
        R = c_reads(1) if b == 0 else (d_reads(0) if last else c_reads(0))
        if b == 0:
            ctl = {12: [f"s_add_u32 s46, s46, {P2SLOT}", f"s_cmp_eq_u32 s46, {P2RING}"], 13: ["s_cselect_b32 s47, s48, s49", "s_cselect_b32 s46, 0, s46"],
                   14: [f"v_add_u32 v{VA2}, s47, v{VA2}", f"v_add_u32 v{VW2}, s47, v{VW2}"]}
        else:
            ctl = {0: ["s_sub_u32 s45, s45, 1", "s_cmp_lg_u32 s45, 0"]} if loop else {}
        n = 0
        for j in range(4):
            for i in (range(4) if j % 2 == 0 else range(3, -1, -1)):
                S.wait(('W', b, j))
                S.a(mfma(ACC(j, i), WF(b, j), AF(b, i), "0" if (first and b == 0) else None))
                used = 1 if n % 4 == 3 and (b == 0 or n == 15) else 0
                if n in ctl:
                    for x in ctl[n]: S.a(x)
                    used = 2
                elif b == 1 and n == BP:
                    S.wait(None); S.a("s_barrier"); used = 2
                elif R and (b == 0 or n > BP):
                    S.read(R.pop(0)); used += 1
                    if len(R) > 15 - n: S.read(R.pop(0)); used += 1
                S.fill(used)
                n += 1
        assert not R


def c_loop(g, iters):
    if iters <= 0: return
    if iters == 1:
        c_stage(g); return
    L = g.lab("p2")
    g.a(f"s_mov_b32 s45, {iters}\n.p2align 3\n{L}:")
    c_stage(g, loop=True)
    g.a(f"s_cbranch_scc1 {L}")


def d_stage(g, n, extra=None, dens=2):
    b = n % 2
    S = Stage(g, [k for k, _ in d_reads(b)], extra, dens)
    BP = g.o.get('dbar', 3)
    R = d_reads(1 - b) if n < 15 else []
    dl = (P2SLOT if (28 + n + 2) % 4 else -3 * P2SLOT) & 0xffffffff
    m = 0
    for kk in range(2):
        for j in range(2):
            for i in (range(4) if j == 0 else range(3, -1, -1)):
                S.wait(('D', b, kk, j))
                S.a(mfma(ACD(j, i), DW(b, kk, j), DA(b, kk, i), "0" if (n == 0 and kk == 0) else None))
                used = 1 if m == 15 else 0
                if R and m == 0:
                    S.a(f"v_add_u32 v{VA2}, {dl}, v{VA2}"); S.a(f"v_add_u32 v{VW2}, {dl}, v{VW2}"); used = 2
                elif R and m == BP:
                    S.wait(None); S.a("s_barrier"); used = 2
                elif R and m > BP:
                    S.read(R.pop(0)); used += 1
                    if len(R) > 14 - m and R: S.read(R.pop(0)); used += 1
                S.fill(used)
                m += 1
    assert not R


def spaced(lst, n):
    o = []
    for x in lst: o += [x, n]
    return o


def strs(ex):
    return [x for x in ex if isinstance(x, str)]


def compute(g):
    a = g.a
    a("L_compute:")
    a("v_and_b32 v4, 15, v0\nv_lshrrev_b32 v5, 4, v0")
    a("v_bfe_u32 v6, v4, 3, 1\nv_bfe_u32 v7, v4, 1, 1\nv_lshl_add_u32 v6, v6, 1, v7")
    a(f"v_mul_u32_u24 v{VX}, {BLK}, v6")
    a("v_bfe_u32 v6, v4, 2, 1\nv_and_b32 v7, 1, v4\nv_lshl_add_u32 v6, v6, 1, v7")
    a(f"v_lshl_add_u32 v{VX}, v6, 7, v{VX}\nv_lshl_add_u32 v{VX}, v5, 4, v{VX}")
    a(f"s_mul_i32 s45, s{S_WAVE}, {2*UNIT}\nv_add_u32 v{VX}, s45, v{VX}")
    a("v_and_b32 v6, 1, v5\nv_bfe_u32 v7, v4, 3, 1\nv_lshl_add_u32 v6, v6, 1, v7")
    a(f"v_mul_u32_u24 v{VW}, {BLK}, v6")
    a("v_lshrrev_b32 v6, 1, v5\nv_bfe_u32 v7, v4, 2, 1\nv_lshl_add_u32 v6, v6, 2, v7")
    a(f"v_lshl_add_u32 v{VW}, v6, 7, v{VW}\nv_and_b32 v6, 3, v4\nv_lshl_add_u32 v{VW}, v6, 3, v{VW}")
    a(f"v_add_u32 v{VW}, {WBASE}, v{VW}")
    a(f"v_lshrrev_b32 v6, 5, v0\nv_and_b32 v7, 31, v0\nv_lshlrev_b32 v7, 3, v7\nv_lshl_add_u32 v{VQ}, v6, 9, v7")
    a(f"v_add_u32 v{VQ}, {WBASE+3*UNIT}, v{VQ}")
    for r in range(48, 256): a(f"v_mov_b32 v{r}, 0")
    a(f"s_mov_b32 s45, 7\ns_mov_b32 s46, 0\ns_mov_b32 s48, {(-2*XSLOT) & 0xffffffff}\ns_mov_b32 s49, {XSLOT}")
    a("s_mov_b32 s50, 0x3fb8aa3b\ns_mov_b32 s51, 0x358637bd")
    a(f"s_lshl_b32 s52, s{S_MB8}, 16\ns_lshl_b32 s53, s{S_WAVE}, 14\ns_add_u32 s52, s52, s53")
    a(f"s_mul_i32 s53, s{S_QD}, 7")
    a(f"s_add_u32 s66, s53, 6\ns_lshl_b32 s66, s66, 19\ns_add_u32 s66, s66, s52")
    a(f"s_lshr_b32 s55, s{S_C}, 1\ns_lshl_b32 s55, s55, 11\ns_add_u32 s66, s66, s55")
    a(f"s_and_b32 s55, s{S_C}, 1\ns_lshl_b32 s55, s55, 10\ns_add_u32 s66, s66, s55")
    a("s_add_u32 s67, s66, 8192")
    a(f"s_lshr_b32 s57, s{S_WAVE}, 1\ns_and_b32 s58, s{S_WAVE}, 1")
    a(f"s_lshl_b32 s59, s2, 11\ns_lshl_b32 s55, s{S_WAVE}, 7\ns_add_u32 s59, s59, s55\ns_add_u32 s59, s59, {WS_FLAG}")
    a(f"s_add_u32 s60, s59, {F_H2}\ns_add_u32 s61, s59, {F_X}")
    a("v_lshlrev_b32 v4, 4, v0\nv_mov_b32 v6, 1")
    lane_goodcol(g, 7, 5)
    a("s_waitcnt lgkmcnt(0)")
    srd(g, SRD_WS, 26, 0x10000000)
    if g.o.get('prio'): a(f"s_setprio {g.o['prio']}")
    a("s_barrier")
    g.stamp(1)

    def em(lst):
        for x in lst: a(x)
    def p2_setup():
        a(f"s_lshl_b32 s55, s57, 13\ns_add_u32 s55, s55, {P2B+P2SLOT}\nv_add_u32 v{VA2}, s55, v4")
        a(f"s_lshl_b32 s55, s58, 6\ns_add_u32 s55, s55, {(P2B+P2SLOT+P2A-WBASE) & 0xffffffff}\nv_add_u32 v{VW2}, s55, v{VW2}")
        a(f"s_mov_b32 s46, {P2SLOT}\ns_mov_b32 s48, {(-3*P2SLOT) & 0xffffffff}\ns_mov_b32 s49, {P2SLOT}")
        g.stamp(4)
        a("s_barrier")
        g.stamp(5)
        for _, x in c_reads(0): a(x)
    def quarter(tmp):
        o = [f"v_bfe_u32 v{VQ}, v0, 4, 1", f"v_mul_u32_u24 v{VQ}, 3584, v{VQ}", f"v_lshrrev_b32 v{tmp}, 5, v0", f"v_lshlrev_b32 v{tmp}, 9, v{tmp}",
             f"v_sub_u32 v{VQ}, v{VQ}, v{tmp}", f"v_add_u32 v{VQ}, v{VQ}, v7"]
        for p in (1, 0):
            d = AC(12, 2 * p)
            o += h_cvt(d, d, d + 4)
        for p in (1, 0):
            d = AC(12, 2 * p)
            o += [f"s_nop 1\nv_permlane16_swap_b32 v{d}, v{d+2}", f"v_permlane16_swap_b32 v{d+1}, v{d+3}",
                  f"buffer_store_dwordx4 {vr(d)}, v{VQ}, {W}, s{66+p} offen sc1"]
        return o
    def early(j0):
        return h_line_store(j0, 55) + [g.o.get('fpos', 0), "s_waitcnt vmcnt(0)\n" + flagops(6, 59)]

    a(f"s_cmp_ge_u32 s{S_C}, 2\ns_cbranch_scc1 L_cq")
    a(f"s_add_u32 s55, s53, s{S_C}\ns_lshl_b32 s55, s55, 19\ns_add_u32 s55, s55, s52")
    p1_loop(g, True)
    ex2 = []
    for s_ in range(4):
        for p in range(2):
            ex2 += phi_regs(list(range(AC(s_, 2 * p), AC(s_, 2 * p) + 8)), AC(9, 0)) + pack8(AC(s_, 2 * p), AC(s_, 2 * p + 1))
        if s_ == 0: ex2 += quarter(AC(11, 0))
    p1_tail(g, True, early(8), ex2)
    g.stamp(2)
    for s_ in range(4, 8):
        for p in (1, 0): em(pack8(AC(s_, 2 * p), AC(s_, 2 * p + 1)))
    for r in range(8, 12): a(f"v_mov_b32 v{r}, 0x3f803f80")
    T = lambda t: 176 + 4 * t
    a(f"s_sub_u32 s55, 3, s{S_WAVE}\ns_mul_i32 s55, s55, {3*P2SLOT}\ns_add_u32 s55, s55, {P2B}\ns_mul_i32 s56, s{S_WAVE}, 12288\ns_add_u32 s56, s56, {P2END}")
    a(f"s_cmp_ge_u32 s{S_WAVE}, 2\ns_cselect_b32 s55, s55, s56\nv_add_u32 v12, s55, v4")
    for p in range(2):
        for h in range(2):
            for dt in range(2):
                for e in range(3):
                    t = 2 * (3 * h + e) + dt
                    a(mfma(T(t), AC(2 * h + dt, 2 * p), AC(4 + 2 * h + e, 2 * p) if e < 2 else 8, "0" if p == 0 else None))
    a("s_nop 4")
    for h in range(2):
        for dt in range(2):
            for e in range(3):
                t = 2 * (3 * h + e) + dt
                a(f"ds_write_b128 v12, {vr(T(t))} offset:{t*1024}")
    a(f"s_mul_i32 s55, s{S_WAVE}, 3072\ns_add_u32 s56, s55, {P2B}\nv_add_u32 v8, s56, v4\nv_add_u32 v5, {3*P2SLOT}, v8")
    a("s_waitcnt lgkmcnt(0)\ns_barrier")
    g.stamp(3)
    for w in range(4):
        for t in range(3):
            a(f"ds_read_b128 {vr(48+(w*3+t)*4)}, v{5 if w<3 else 8} offset:{[P2SLOT, P2SLOT+12288, 0, 0][w]+t*1024}")
    a(f"s_lshl_b32 s56, s{S_PAIR}, 3\ns_add_u32 s56, s56, s{S_MB8}\ns_mul_i32 s56, s56, 12288\ns_add_u32 s56, s56, s55\ns_add_u32 s56, s56, {WS_KVP}")
    a("s_waitcnt lgkmcnt(0)")
    p2_setup()
    for r in range(12): a(f"v_add_f32 v{48+r}, v{48+r}, v{60+r}\nv_add_f32 v{72+r}, v{72+r}, v{84+r}")
    for r in range(12): a(f"v_add_f32 v{48+r}, v{48+r}, v{72+r}")
    for t in range(3): a(f"buffer_store_dwordx4 {vr(48+4*t)}, v4, {W}, s56 offen offset:{t*1024} sc1")
    c_stage(g, first=True)
    c_stage(g)
    a("s_waitcnt vmcnt(0)")
    a(flagops(6, 61, 60))
    c_loop(g, 25)
    a("s_branch L_c2join")
    a("L_cq:")
    a(f"s_lshl_b32 s55, s{S_C}, 1\ns_add_u32 s55, s55, s53\ns_sub_u32 s55, s55, 2\ns_lshl_b32 s55, s55, 19\ns_add_u32 s55, s55, s52")
    a("s_add_u32 s62, s55, 0x80000")
    p1_loop(g, False)
    p1_tail(g, False, early(4), h_line_store(8, 62) + quarter(AC(5, 0)))
    g.stamp(2)
    ph = []
    for i in (2, 3, 0, 1):
        for h in range(2):
            d, e = AC(2 * h, i), AC(2 * h + 1, i)
            ph.append(phi_regs(list(range(d, d + 4)) + list(range(e, e + 4)), 8) + pack8(d, e))
    phg = g.o.get('phig', 2)
    a("s_nop 3")
    for x in ph[:phg]: em(x)
    ph = [x for y in ph[phg:] for x in y]
    g.stamp(3)
    p2_setup()
    n = 0
    for _ in range(2):
        c_stage(g, first=(n == 0), extra=ph); n += 1
    a("s_waitcnt vmcnt(0)")
    a(flagops(6, 60))
    g.info['fh2'] = n
    while ph:
        c_stage(g, extra=ph); n += 1
    K1 = g.o['k1']
    c_loop(g, K1 - n)
    n = max(n, K1)
    a(f"s_add_u32 s62, s{S_PAIR}, 56\ns_lshl_b32 s62, s62, 19\ns_add_u32 s62, s62, s52\ns_add_u32 s63, s62, 4096\ns_add_u32 s64, s63, 4096\ns_add_u32 s65, s64, 4096")
    a(f"v_add_u32 v5, {P2END}, v4")
    for f in range(6): a(f"ds_read_b128 {vr(KVF(f))}, v5 offset:{f*1024}")
    a("s_waitcnt lgkmcnt(0)")
    TM = [32, 64]
    ex = []
    for i in range(4):
        for h in range(2):
            t = TM[h]
            for e in (2, 0, 1): ex.append(mfma(t + 4 * e, KVF(3 * h + e), PQ(i, h), "0"))
        ex.append(4)
        for h in range(2):
            t = TM[h]
            ex += [f"v_add_f32 v{t+8}, s51, v{t+8}", f"v_rcp_f32 v{t+8}, v{t+8}", 1]
            ex += [f"v_mul_f32 v{t+r}, v{t+r}, v{t+8}" for r in range(8)]
            d = PQ(i, h)
            ex += [f"v_cvt_pk_bf16_f32 v{d+r}, v{t+2*r}, v{t+2*r+1}" for r in range(4)]
            ex.append(f"buffer_store_dwordx4 {vr(d)}, v7, {W}, s{62+i} offen offset:{h*2048} sc1")
    while ex:
        c_stage(g, extra=ex, dens=g.o.get('odens', 2)); n += 1
    c_loop(g, 2); n += 2
    a("s_waitcnt vmcnt(0)")
    a(flagops(6, 61))
    g.info['fo'] = n
    c_loop(g, 27 - n)
    a("L_c2join:")
    a(f"s_lshl_b32 s62, s2, 16\ns_lshl_b32 s56, s{S_WAVE}, 14\ns_add_u32 s62, s62, s56\ns_add_u32 s62, s62, {WS_PART}")
    a("s_add_u32 s63, s62, 4096\ns_add_u32 s64, s63, 4096\ns_add_u32 s65, s64, 4096")
    for r in range(4): a(f"s_xor_b32 s{66+r}, s{62+r}, 0x20000")
    a(f"s_add_u32 s59, s59, {F_P}\ns_xor_b32 s60, s59, 0x1000")
    c_stage(g, last=True)
    g.stamp(6)
    b16 = g.o.get('b16')
    if b16:
        ex = [6]
        for i in (3, 2, 1, 0):
            ex += pack8(ACC(2, i), ACC(3, i)) + [f"buffer_store_dwordx4 {vr(ACC(2,i))}, v7, {W}, s{62+i} offen sc1"]
    else:
        ex = [6] + spaced([f"buffer_store_dwordx4 {vr(ACC(2+j,i))}, v7, {W}, s{62+i} offen offset:{j*2048} sc1" for j in range(2) for i in range(4)], g.o.get('psp', 2))
    g.st['since'] = 0
    ex += (f"s_mov_b32 s28, s18\ns_mov_b32 s29, s19\ns_mov_b32 s30, {hex(2048*1024*2)}\ns_mov_b32 s31, 0x20000\n"
           f"v_and_b32 v3, 15, v0\ns_lshl_b32 s55, s57, 8\ns_add_u32 s55, s55, {LDS_G}\nv_lshl_add_u32 v88, v3, 2, s55\n"
           "v_lshlrev_b32 v3, 11, v3\nv_bfe_u32 v89, v0, 4, 1\nv_lshl_add_u32 v3, v89, 5, v3\nv_lshrrev_b32 v89, 5, v0\nv_lshl_add_u32 v3, v89, 4, v3\n"
           f"s_lshl_b32 s55, s{S_MB16}, 18\ns_lshl_b32 s56, s57, 17\ns_add_u32 s55, s55, s56\n"
           f"s_lshl_b32 s56, s{S_CB}, 8\ns_add_u32 s55, s55, s56\ns_lshl_b32 s56, s{S_KH}, 7\ns_add_u32 s55, s55, s56\ns_lshl_b32 s56, s58, 6\ns_add_u32 s55, s55, s56\n"
           "s_mov_b32 s50, 0xffff0000").split("\n")
    D1, D2, D3 = g.o.get('d1', 5), g.o.get('d2', 8), g.o.get('d3', 13)
    pissue = lambda: a(f"buffer_load_dword v5, off, {W}, s60 sc1")
    for n in range(16):
        if n == D1:
            em(strs(ex)); ex = []
            a("s_waitcnt vmcnt(0)"); a(flagops(6, 59))
        if n == D2: pissue()
        if n == D2 + 2:
            poll_check(g, pissue, 5, 1, 1)
            if b16:
                for i in range(4): a(f"buffer_load_dwordx4 {vr(PP(0,i))}, v7, {W}, s{66+i} offen sc1")
            else:
                for j in range(2):
                    for i in range(4): a(f"buffer_load_dwordx4 {vr(PP(j,i))}, v7, {W}, s{66+i} offen offset:{j*2048} sc1")
            for i in range(4): a(f"ds_read_b32 v{GG+i}, v88 offset:{i*64}")
            a("s_waitcnt lgkmcnt(0)")
        if n == D3:
            a("s_waitcnt vmcnt(0)")
            ex = [f"v_sub_f32 v{GG+4+i}, 1.0, v{GG+i}" for i in range(4)]
            for i in (3, 2, 1, 0):
                pr = lambda j, r: (240 + 4 * j + r) if b16 else PP(j, i) + r
                if b16:
                    for j in range(2):
                        for r in range(4):
                            src = PP(0, i) + 2 * j + (r >> 1)
                            ex.append(f"v_and_b32 v{pr(j,r)}, s50, v{src}" if r & 1 else f"v_lshlrev_b32 v{pr(j,r)}, 16, v{src}")
                for j in range(2):
                    for r in range(4): ex.append(f"v_add_f32 v{ACC(j,i)+r}, v{ACC(j,i)+r}, v{pr(j,r)}")
                for j in range(2):
                    for r in range(4): ex.append(f"v_mul_f32 v{ACC(j,i)+r}, v{ACC(j,i)+r}, v{GG+4+i}")
        d_stage(g, n, extra=ex, dens=g.o.get('ddens', 3))
    em(ex)
    g.stamp(7)
    a("s_nop 4")
    for i in (3, 2, 1, 0):
        for j in range(2):
            for r in range(4): a(f"v_fmac_f32 v{ACC(j,i)+r}, v{GG+i}, v{ACD(j,i)+r}")
        d = ACC(0, i)
        em(pack8(d, ACC(1, i)))
        a(f"s_add_u32 s56, s55, {0x8000*i}\ns_nop 0\nv_permlane16_swap_b32 v{d}, v{d+2}\nv_permlane16_swap_b32 v{d+1}, v{d+3}")
        a(f"buffer_store_dwordx4 {vr(d)}, v3, s[28:31], s56 offen {g.o.get('outflag','')}")
    if g.o['prof']:
        a("s_waitcnt vmcnt(0)")
        g.stamp(8)
    if g.o.get('probe') is not None:
        k = g.o['probe']
        a(f"s_waitcnt lgkmcnt(0)\ns_add_u32 s55, s{70+2*k}, 6000\nL_probe:\ns_memrealtime s[56:57]\ns_waitcnt lgkmcnt(0)\ns_sub_u32 s56, s56, s55\ns_cmp_lt_i32 s56, 0\ns_cbranch_scc1 L_probe\ns_endpgm")
    prof_dump(g, 0, 0)
    a("s_endpgm")


def stash_setup(g, a, v):
    a(f"v_lshrrev_b32 v{v}, 5, v0\nv_bfe_u32 v{v+1}, v0, 4, 1\nv_lshlrev_b32 v{v}, 3, v{v}\nv_lshl_add_u32 v{v}, v{v+1}, 4, v{v}\nv_bfe_u32 v{v+1}, v0, 3, 1\nv_add_u32 v{v}, v{v}, v{v+1}")
    a(f"s_sub_u32 s33, s{S_WAVE}, 4\ns_lshl_b32 s35, s33, 12\ns_lshl_b32 s47, s{S_CB}, 8\ns_add_u32 s35, s35, s47\ns_lshl_b32 s47, s{S_KH}, 7\ns_add_u32 s35, s35, s47")
    a(f"v_and_b32 v{v+1}, 7, v0\nv_lshlrev_b32 v{v+1}, 4, v{v+1}\nv_lshl_add_u32 v{v}, v{v}, 11, v{v+1}\nv_add_u32 v{v}, s35, v{v}")
    a(f"s_mul_i32 s33, s33, {BLK}\ns_add_u32 s33, s33, {P2B+P2A}\nv_lshl_add_u32 v{v+1}, v0, 4, s33\nv_add_u32 v{v+2}, {2*P2SLOT}, v{v+1}")


def stash_loads(g, v, sr):
    return [(f"s_mov_b32 s47, {k<<16}", f"buffer_load_dwordx4 {vr(ST0+4*k)}, v{v}, s[{sr}:{sr+3}], s47 offen") for k in range(32)]


NOSW = [False]
def stash_write(a, v, n):
    if NOSW[0]: return
    sl = (n + 1) % 4
    for kk in range(2):
        a(f"ds_write_b128 v{v+1+(sl>>1)}, {vr(ST0+4*(2*(n-28)+kk))} offset:{(sl&1)*P2SLOT+kk*UNIT}")


def loader(g):
    def a(x):
        if not g.o.get('trace'): return g.a(x)
        for ln in x.split("\n"):
            g.a(ln)
            if ln.strip() == "s_barrier":
                g.a("s_memrealtime s[100:101]\ns_waitcnt lgkmcnt(0)\ns_mov_b32 m0, s44\ns_add_u32 s44, s44, 1\nv_writelane_b32 v32, s100, m0\ns_cmp_lg_u32 s44, 33\ns_cbranch_scc1 1\nv_mov_b32 v33, v32")
    if g.o.get('trace'): a("s_mov_b32 s44, 0\nv_mov_b32 v32, 0\nv_mov_b32 v33, 0")
    LW = 45
    if g.o.get('lprio'): a(f"s_setprio {g.o['lprio']}")
    a(f"s_sub_u32 s{LW}, s{S_WAVE}, 4")
    a("v_lshrrev_b32 v1, 5, v0\nv_bfe_u32 v2, v0, 4, 1\nv_lshlrev_b32 v1, 4, v1\nv_lshl_add_u32 v1, v2, 2, v1\nv_bfe_u32 v2, v0, 3, 1\nv_add_u32 v1, v1, v2")
    a(f"s_lshl_b32 s61, s{LW}, 3\nv_add_u32 v1, s61, v1\nv_and_b32 v2, 7, v0\nv_lshlrev_b32 v2, 4, v2")
    a(f"s_lshl_b32 s61, s{S_MB8}, 19\nv_lshl_add_u32 v4, v1, 11, v2\nv_add_u32 v4, s61, v4\nv_add_u32 v5, {4096-BLK}, v4")
    a(f"s_movk_i32 s60, 6144\ns_cmp_ge_u32 s{S_C}, 2\ns_cselect_b32 s60, 7168, s60")
    a(f"s_cselect_b32 s61, 0, 2048\ns_lshl_b32 s62, s{S_PAIR}, 7\ns_add_u32 s61, s61, s62")
    a(f"v_mul_u32_u24 v6, 6144, v1\nv_add3_u32 v6, v6, v2, s61\nv_add_u32 v7, {12288-BLK}, v6")
    a(f"s_mul_i32 s63, s{S_QD}, 7\ns_lshl_b32 s64, s{S_C}, 1\ns_add_u32 s64, s64, s63\ns_sub_u32 s65, s64, 2\ns_lshl_b32 s65, s65, 7\ns_add_u32 s62, s62, 4096")
    a(f"s_cmp_ge_u32 s{S_C}, 2\ns_cselect_b32 s61, s65, s62")
    a(f"v_mul_lo_u32 v8, v1, s60\nv_add3_u32 v8, v8, v2, s61\ns_lshl_b32 s62, s60, 1\ns_sub_u32 s62, s62, {BLK}\nv_add_u32 v9, s62, v8")
    a(f"s_sub_u32 s64, s64, 1\ns_add_u32 s65, s63, s{S_C}\ns_cmp_ge_u32 s{S_C}, 2\ns_cselect_b32 s61, s64, s65\ns_lshl_b32 s61, s61, 7")
    a(f"v_mul_u32_u24 v10, 7168, v1\nv_add3_u32 v10, v10, v2, s61\nv_add_u32 v11, {14336-BLK}, v10")
    a("v_bfe_u32 v12, v0, 4, 1\nv_bfe_u32 v13, v0, 3, 1\nv_lshlrev_b32 v12, 2, v12\nv_lshl_add_u32 v12, v13, 3, v12\nv_bfe_u32 v13, v0, 1, 2\nv_add_u32 v12, v12, v13")
    a(f"s_lshl_b32 s61, s{LW}, 4\nv_add_u32 v12, s61, v12\nv_mul_u32_u24 v12, 7168, v12\nv_and_b32 v13, 1, v0\nv_lshl_add_u32 v12, v13, 4, v12")
    a(f"s_add_u32 s61, s63, 6\ns_lshl_b32 s61, s61, 7\ns_lshl_b32 s62, s{S_C}, 5\ns_add_u32 s61, s61, s62\nv_add_u32 v12, s61, v12")
    a("s_lshl_b32 s60, s60, 5")
    a(f"s_mul_i32 s66, s{LW}, {2*BLK}")
    a(f"s_mov_b32 s61, s66\ns_lshl_b32 s62, s{S_PHI}, 7\ns_mov_b32 s63, 0\ns_lshl_b32 s64, s{S_PHI}, 1\ns_add_u32 s65, s66, {WBASE}")
    a(f"s_add_u32 s67, s66, {XRING}\ns_add_u32 s68, s66, {WBASE+4*WSLOT}")
    a(f"s_lshl_b32 s69, s{LW}, 9\ns_sub_u32 s69, s69, s66\ns_add_u32 s69, s69, {3*UNIT}")
    a(f"s_mov_b32 s30, {hex(2048*1024*2)}\ns_mov_b32 s31, 0x20000\ns_mov_b32 s50, {hex(1024*3072*2)}\ns_mov_b32 s51, 0x20000")
    a(f"s_mov_b32 s58, {hex(1024*3584*2)}\ns_mov_b32 s59, 0x20000\ns_mov_b32 s55, 0x20000")
    a("s_waitcnt lgkmcnt(0)")
    a("s_mov_b64 s[28:29], s[4:5]\ns_mov_b64 s[48:49], s[6:7]\ns_mov_b64 s[56:57], s[12:13]")
    a(f"s_cmp_ge_u32 s{S_C}, 2")
    a("s_cselect_b64 s[52:53], s[12:13], s[6:7]\ns_cselect_b32 s54, s58, s50")

    def xhalf():
        a("s_mov_b32 m0, s61\ns_add_u32 s46, s62, s63")
        for u in range(4):
            if u: a(f"s_add_u32 m0, m0, {UNIT}\ns_add_u32 s46, s46, 0x10000")
            a("buffer_load_dwordx4 v4, s[28:31], s46 offen lds")
            a(f"buffer_load_dwordx4 v5, s[28:31], s46 offen offset:{BLK} lds")
        a(f"s_add_u32 s61, s61, {4*UNIT}\ns_cmp_eq_u32 s61, s67\ns_cselect_b32 s61, s66, s61")
        a("s_xor_b32 s63, s63, 0x40000\ns_cselect_b32 s47, 0, 128\ns_add_u32 s62, s62, s47\ns_and_b32 s62, s62, 2047")

    def wslab():
        for ln, (sr, ld) in enumerate([(48, 32 * 6144), (52, "s60"), (56, 32 * 7168)]):
            a(f"s_add_u32 m0, s65, {ln*UNIT}\ns_mul_i32 s35, s64, {ld}")
            a(f"buffer_load_dwordx4 v{6+2*ln}, s[{sr}:{sr+3}], s35 offen lds")
            a(f"buffer_load_dwordx4 v{7+2*ln}, s[{sr}:{sr+3}], s35 offen offset:{BLK} lds")
        a("s_add_u32 m0, s65, s69\ns_mov_b32 exec_hi, 0")
        a("buffer_load_dwordx4 v12, s[56:59], s35 offen lds")
        a("s_mov_b32 exec_hi, -1")
        a(f"s_add_u32 s65, s65, {WSLOT}\ns_cmp_eq_u32 s65, s68\ns_cselect_b32 s65, s67, s65")
        a("s_add_u32 s64, s64, 1\ns_and_b32 s64, s64, 31")

    g.stamp(1)
    xhalf(); wslab(); xhalf(); wslab(); g.stamp(2)
    a("s_waitcnt vmcnt(7)"); g.stamp(3)
    a("s_barrier")
    xhalf(); wslab(); xhalf(); wslab(); xhalf(); g.stamp(4)
    NU = 19
    a(f"s_mov_b32 s34, {27-NU}")
    a("L_l1:")
    a("s_waitcnt vmcnt(30)\ns_barrier")
    wslab(); xhalf()
    a("s_sub_u32 s34, s34, 1\ns_cmp_lg_u32 s34, 0\ns_cbranch_scc1 L_l1")
    srd(g, SRD_WS, 26, 0x10000000)
    a(f"s_mov_b32 s10, {hex(1024*1024*2)}\ns_mov_b32 s11, 0x20000")
    a(f"s_mov_b64 s[12:13], s[14:15]\ns_mov_b32 s14, {hex(3584*1024*2)}\ns_mov_b32 s15, 0x20000")
    a("v_lshrrev_b32 v1, 5, v0\nv_bfe_u32 v3, v0, 4, 1\nv_lshlrev_b32 v1, 3, v1\nv_lshl_add_u32 v1, v3, 4, v1\nv_bfe_u32 v3, v0, 3, 1\nv_add_u32 v1, v1, v3")
    a(f"s_lshl_b32 s4, s{LW}, 2\nv_add_u32 v1, s4, v1")
    a(f"s_lshl_b32 s4, s{S_CB}, 8\ns_lshl_b32 s5, s{S_KH}, 7\ns_add_u32 s4, s4, s5")
    a("v_lshl_add_u32 v14, v1, 11, v2\nv_add_u32 v14, s4, v14\nv_xor_b32 v16, 128, v14")
    a(f"v_add_u32 v15, {4096-BLK}, v14\nv_add_u32 v17, {4096-BLK}, v16")
    a(f"s_lshl_b32 s5, s{S_MB8}, 19\ns_sub_u32 s4, s4, s5")
    a(f"v_add_u32 v24, s4, v4\nv_xor_b32 v26, 128, v24\nv_add_u32 v25, {4096-BLK}, v24\nv_add_u32 v27, {4096-BLK}, v26")
    lane_goodcol(g, 18, 19)
    a(f"s_lshl_b32 s4, s{S_MB16}, 15\ns_lshl_b32 s5, s{LW}, 14\ns_add_u32 s4, s4, s5\nv_add_u32 v18, s4, v18\nv_add_u32 v19, 3072, v18")
    lane_h(g, 21, 22, 17)
    stash_setup(g, a, 28)
    a(f"s_and_b32 s4, s32, 1\ns_mul_i32 s4, s4, 14\ns_mul_i32 s6, s{S_KH}, 28\ns_sub_u32 s5, 14, s4\ns_add_u32 s4, s4, s6\ns_add_u32 s5, s5, s6")
    a("s_lshl_b32 s6, s4, 17\ns_lshl_b32 s7, s5, 17\ns_lshl_b32 s4, s4, 19\ns_lshl_b32 s5, s5, 19")
    a(f"s_lshl_b32 s16, s{LW}, 13")
    t0 = 27 - NU
    vm = VM(a, [('I', t0 - 3)] * 15 + [('I', t0 - 2)] * 15 + [('I', t0 - 1)] * 15)
    order = [(0, x) for x in ORD1] + [(1, x) for x in ORD1] + [(0, x) for x in ORD2] + [(1, x) for x in ORD2]
    slot = lambda n: P2B + ((n + 1) % 4) * P2SLOT

    def astage(n):
        a(f"s_add_u32 m0, s16, {slot(n)}")
        if n < 28: a(f"s_add_u32 s47, s{4+order[n][0]}, {order[n][1]<<19}")
        else: a(f"s_mov_b32 s47, {((n+28) if not g.o.get('fixD') else 56+(n&1))<<19}")
        for k in range(2):
            if k: a(f"s_add_u32 m0, m0, 4096\ns_add_u32 s47, s47, 8192")
            for mt in range(2):
                for kk in range(2):
                    vm.op(f"buffer_load_dwordx4 v{18+mt}, {W}, s47 offen offset:{mt*1024+kk*2048} {g.o.get('aflag','sc1')} lds", n)

    def wstage(n):
        vb = 24 if order[n][1] % 7 == 6 else 14
        for ln in range(2):
            for kk in range(2):
                a(f"s_add_u32 m0, s66, {slot(n)+P2A+(ln*2+kk)*UNIT}")
                a(f"s_add_u32 s47, s{6+order[n][0]}, {(order[n][1]<<17)+(kk<<16)}")
                for jb in range(2):
                    vm.op(f"buffer_load_dwordx4 v{vb+2*ln+jb}, s[12:15], s47 offen offset:{jb*BLK} lds", n)

    sl = stash_loads(g, 28, 8)
    for t in range(t0, 27):
        vm.wait(('I', t - 3)); a("s_barrier")
        wslab(); xhalf(); vm.mark(('I', t), 15)
        for _ in range(2):
            if sl: pre, op = sl.pop(0); a(pre); vm.op(op, 'st')
    assert not sl
    vm.wait(('I', 25)); a("s_barrier")
    wslab(); vm.mark(('I', 27), 7)
    vm.wait(('I', 26)); a("s_barrier")
    wstage(0)
    vm.wait(('I', 27)); a("s_barrier")
    a("s_barrier")
    wstage(1)
    a("s_barrier")
    g.stamp(5)
    l0, l1 = g.lab("pp"), g.lab("pp")
    iss = lambda r: a(f"buffer_load_dword v{r}, v21, {W}, s17 offen sc1")
    iss(40)
    wstage(2)
    iss(41)
    wstage(3)
    a(f"s_mov_b32 s35, {SPIN}\n{l0}:")
    for r in range(3):
        iss(40 + (r + 2) % 3)
        a(f"s_waitcnt vmcnt(2)\nv_cmp_ne_u32 vcc, 1, v{40+r}\ns_nop 1\ns_and_b32 s33, vcc_lo, 0xffff\ns_cbranch_scc0 {l1}\ns_sleep {g.o.get('psleep', 3)}")
    a(f"s_sub_u32 s35, s35, 1\ns_cbranch_scc0 {l0}\n{l1}:")
    vm.q = [3, 'p']
    g.stamp(7)
    if g.o['prof']: a(f"s_sub_u32 s88, {SPIN}, s35")
    astage(0); astage(1)
    a(f"s_cmp_ge_u32 s{S_C}, 2\ns_cbranch_scc1 L_l_nog1\ns_barrier\nL_l_nog1:")
    vm.wait(0); a("s_barrier")
    astage(2); astage(3)
    for n in range(1, 43):
        vm.wait(n)
        if n > 26: a(f"s_waitcnt lgkmcnt({2 if n <= 41 else 0})")
        a("s_barrier")
        m = n + 3
        if m < 44:
            if not (m >= 28 and g.o.get('noad')): astage(m)
            if m >= 28: stash_write(a, 28, m)
            if m < 28: wstage(m)
    vm.wait(43)
    prof_dump(g, 4, 1)
    if g.o.get('trace'):
        a(f"s_cmp_lg_u32 s{S_WAVE}, 4\ns_cbranch_scc1 L_exit\ns_lshl_b32 s33, s2, 9\ns_add_u32 s33, s33, {WS_PROF+0x20000}\nv_lshlrev_b32 v5, 2, v0")
        a(f"buffer_store_dword v33, v5, {W}, s33 offen\nbuffer_store_dword v32, v5, {W}, s33 offen offset:256")
    a("s_endpgm")


def helper(g):
    a = g.a
    a("L_helper:")
    HW = 45
    def bars(n):
        for _ in range(n): a("s_barrier")
    a(f"s_sub_u32 s{HW}, s{S_WAVE}, 6")
    a("v_lshlrev_b32 v4, 4, v0\nv_lshlrev_b32 v5, 2, v0\nv_mov_b32 v6, 0\nv_mov_b32 v7, 1\nv_lshlrev_b32 v8, 7, v0")
    a(f"s_getpc_b64 s[96:97]\nL_pc:\ns_sub_u32 s96, s96, L_pc-{NAME}\ns_subb_u32 s97, s97, 0")
    a(f"s_mov_b32 s98, L_codeend-{NAME}\ns_mov_b32 s99, 0x20000")
    a(f"s_lshl_b32 s100, s30, 1\ns_add_u32 s100, s100, s{HW}\ns_lshl_b32 s100, s100, 11")
    def codepf():
        a("s_mov_b64 exec, 0xffff\nbuffer_load_dword v9, v8, s[96:99], s100 offen\ns_mov_b64 exec, -1")
    codepf()
    a(f"s_lshl_b32 s46, s{S_KH}, 3\ns_add_u32 s46, s46, s{S_CB}\ns_lshl_b32 s47, s{S_MB16}, 4\ns_add_u32 s46, s46, s47")
    a("s_waitcnt lgkmcnt(0)")
    srd(g, SRD_WS, 26, 0x10000000)
    srd(g, 48, 24, 256)
    srd(g, 28, 4, 2048 * 1024 * 2)
    a(f"s_cmp_lg_u32 s{HW}, 0\ns_cbranch_scc1 L_h_noinit")
    for r in range(12, 16): a(f"v_mov_b32 v{r}, -1")
    a(f"s_cmp_ge_u32 s{S_C}, 2\ns_cbranch_scc1 L_h_i1\ns_cmp_ge_u32 s{S_MB8}, 6\ns_cbranch_scc1 L_h_i1")
    a(f"s_mul_i32 s47, s{S_PAIR}, 6144\ns_lshl_b32 s33, s{S_MB8}, 10\ns_add_u32 s47, s47, s33\ns_add_u32 s47, s47, {WS_KVF}")
    a(f"buffer_store_dwordx4 v[12:15], v4, {W}, s47 offen sc1")
    a("L_h_i1:")
    a(f"s_lshl_b32 s47, s2, 11\ns_add_u32 s47, s47, {WS_FLAG}\ns_mov_b64 exec, 0xffff")
    a(f"buffer_store_dword v6, v8, {W}, s47 offen sc1")
    a(f"s_mov_b32 exec_lo, 0xff\ns_lshl_b32 s47, s46, 5\ns_add_u32 s47, s47, {WS_FLAG+F_G}")
    a(f"buffer_store_dword v12, v5, {W}, s47 offen sc1")
    a("s_waitcnt vmcnt(0)\ns_mov_b32 exec_lo, 1")
    a(f"s_lshl_b32 s47, s{S_XCD}, 5")
    a("buffer_atomic_add v7, v6, s[48:51], s47 offen sc1")
    a("s_mov_b64 exec, -1")
    a("L_h_noinit:")
    srd(g, 52, 6, 1024 * 3072 * 2)
    srd(g, 56, 12, 1024 * 3584 * 2)
    srd(g, 60, 14, 3584 * 1024 * 2)
    srd(g, 64, 8, 1024 * 1024 * 2)
    a("v_lshlrev_b32 v10, 11, v0")
    a(f"s_lshl_b32 s68, s{HW}, 8\ns_add_u32 s68, s68, s2\ns_mov_b32 s69, s68\ns_mov_b32 s34, 0")
    lead = g.o.get('lead', 1)
    a("s_branch L_h1go\nL_h1:")
    if g.o.get('pf1'):
        l1, lx, lq = g.lab("pf"), g.lab("pf"), g.lab("pf")
        a(f"s_add_u32 s47, s34, {lead}\ns_mul_i32 s47, s47, 68\ns_cmp_ge_u32 s68, s47\ns_cbranch_scc1 {l1}")
        a(f"s_mul_hi_u32 s47, s68, {(2**32+135)//136}\ns_mul_i32 s33, s47, 136\ns_sub_u32 s33, s68, s33\ns_add_u32 s47, s47, 2\ns_add_u32 s68, s68, 512")
        a(f"s_cmp_ge_u32 s47, 16\ns_cbranch_scc1 {l1}")
        a(f"s_cmp_lt_u32 s33, 32\ns_cbranch_scc1 {lx}\ns_cmp_lt_u32 s33, 80\ns_cbranch_scc1 {lq}")
        a(f"s_mul_i32 s47, s47, 56\ns_add_u32 s47, s47, s33\ns_sub_u32 s47, s47, 80\ns_lshl_b32 s47, s47, 13\nbuffer_load_dword v9, v8, s[56:59], s47 offen\ns_branch {l1}")
        a(f"{lq}:\ns_mul_i32 s47, s47, 48\ns_add_u32 s47, s47, s33\ns_sub_u32 s47, s47, 32\ns_lshl_b32 s47, s47, 13\nbuffer_load_dword v9, v8, s[52:55], s47 offen\ns_branch {l1}")
        a(f"{lx}:\ns_lshl_b32 s47, s47, 7\ns_lshl_b32 s33, s33, 17\ns_add_u32 s47, s47, s33\nbuffer_load_dword v9, v10, s[28:31], s47 offen")
        a(f"{l1}:")
    if g.o['pfw']:
        p0, pr = g.o.get('pfw0', 14), g.o.get('pfwr', 80)
        l1, lo = g.lab("pf"), g.lab("pf")
        a(f"s_sub_u32 s47, s34, {p0}\ns_cbranch_scc1 {l1}\ns_mul_i32 s47, s47, {pr}\ns_cmp_ge_u32 s69, s47\ns_cbranch_scc1 {l1}")
        a(f"s_lshl_b32 s47, s69, 13\ns_add_u32 s69, s69, 512\ns_cmp_ge_u32 s47, {256*8192}\ns_cbranch_scc1 {lo}")
        a(f"buffer_load_dword v9, v8, s[64:67], s47 offen\ns_branch {l1}")
        a(f"{lo}:\ns_sub_u32 s47, s47, {256*8192}\nbuffer_load_dword v9, v8, s[60:63], s47 offen")
        a(f"{l1}:")
    a("s_setpc_b64 s[50:51]")
    a("L_h1go:\ns_getpc_b64 s[48:49]\nL_pc2:\ns_sub_u32 s48, s48, L_pc2-L_h1\ns_subb_u32 s49, s49, 0")
    stash_setup(g, a, 20)
    sl = stash_loads(g, 20, 64)
    a("L_h1l:\ns_swappc_b64 s[50:51], s[48:49]\ns_barrier")
    a("s_add_u32 s34, s34, 1\ns_cmp_lg_u32 s34, 9\ns_cbranch_scc1 L_h1l")
    for t in range(9, 29):
        a("s_swappc_b64 s[50:51], s[48:49]\ns_barrier\ns_add_u32 s34, s34, 1")
        if t == g.o.get('cpf1', 23): codepf()
        if t == 25:
            srd(g, 92, 24, 256)
            a("v_lshlrev_b32 v15, 5, v0")
            iss0 = lambda: a("buffer_load_dword v14, v15, s[92:95], 0 offen sc1")
            iss0()
        if t == 27: poll_check(g, iss0, 14, 8, 32, "gt")
        for _ in range(2):
            if sl: pre, op = sl.pop(0); a(pre); a(op)
    def stash(sl, k):
        for _ in range(k):
            pre, op = sl.pop(0); a(pre); a(op)
    def dtail():
        for n in range(25, 41):
            a("s_waitcnt lgkmcnt(2)\ns_barrier")
            stash_write(a, 20, n + 3)
        a("s_barrier\ns_waitcnt lgkmcnt(0)")
    a(f"s_cmp_lg_u32 s{HW}, 0\ns_cbranch_scc1 L_h_one")
    a("v_lshlrev_b32 v13, 3, v0")
    bars(3)
    lane_h(g, 11, 12, 52)
    a(f"s_xor_b32 s53, s52, 0x800\ns_add_u32 s54, s52, {F_H2}\ns_xor_b32 s55, s54, 0x800")
    a("v_and_b32 v12, 1, v0\nv_lshlrev_b32 v12, 7, v12\nv_bfe_u32 v16, v0, 1, 1\nv_lshl_add_u32 v12, v16, 16, v12\nv_bfe_u32 v16, v0, 2, 1\nv_lshl_add_u32 v12, v16, 18, v12")
    a(f"v_bfe_u32 v16, v0, 3, 2\nv_lshl_add_u32 v12, v16, 11, v12\ns_andn2_b32 s56, s52, 0x1800\ns_add_u32 s56, s56, {F_X + (2<<16)}")
    a(f"s_lshl_b32 s57, s{S_MB16}, 9\ns_add_u32 s57, s57, {WS_FLAG+F_G}")
    bars(1)
    a(f"s_cmp_ge_u32 s{S_C}, 2\ns_cbranch_scc1 L_h_nog1\ns_barrier\nL_h_nog1:")
    def gate(soff, areg, nl, before):
        iss = lambda: a(f"buffer_load_dword v14, v{areg}, {W}, s{soff} offen sc1")
        ok = g.lab("gate")
        bars(before)
        a(f"buffer_load_dword v18, v{areg}, {W}, s{soff} offen sc1")
        bars(1); iss(); bars(1)
        a(f"s_waitcnt vmcnt(1)\nv_cmp_ne_u32 vcc, 1, v18\ns_nop 1\ns_and_b32 s33, vcc_lo, {hex((1<<nl)-1)}\ns_cbranch_scc0 {ok}")
        poll_check(g, iss, 14, nl, 1)
        a(f"{ok}:")
    gate(53, 11, 16, 3)
    g.stamp(1)
    gate(54, 11, 16, 6)
    g.stamp(2)
    if g.o.get('cpf2', 1): codepf()
    gate(55, 11, 16, 4)
    g.stamp(3)
    iss = lambda: a(f"buffer_load_dwordx2 v[16:17], v13, {W}, s57 offen sc1")
    iss()
    bars(2)
    poll_check(g, iss, 14, 64, -1, "eq", lambda: a("v_max_u32 v14, v16, v17"))
    a(f"v_add_u32 v13, {LDS_G}, v13\nds_write_b64 v13, v[16:17]")
    gate(56, 12, 32, 2)
    g.stamp(4)
    dtail()
    prof_dump(g, 6, 2)
    a("s_endpgm")
    a("L_h_one:")
    bars(2)
    srd(g, 52, 16, 2048)
    a("s_lshl_b32 s47, s46, 14")
    for hf in range(2): a(f"buffer_load_dwordx4 {vr(24+4*hf)}, v4, s[52:55], 0 offen offset:{hf*1024}")
    for r in range(8):
        for hf in range(2): a(f"buffer_load_dwordx4 {vr(40+8*r+4*hf)}, v4, s[28:31], s47 offen offset:{(r&1)*2048+hf*1024}")
        if r & 1: a("s_add_u32 s47, s47, 4096")
    for r in range(32, 40): a(f"v_mov_b32 v{r}, 0")
    bars(2)
    a("s_waitcnt vmcnt(0)")
    for k in range(8):
        for r in range(8): a(f"v_dot2_f32_bf16 v{32+r}, v{40+8*r+k}, v{24+k}, v{32+r}")
    a("s_nop 1")
    for pat in ["quad_perm:[1,0,3,2] row_mask:0xf", "quad_perm:[2,3,0,1] row_mask:0xf", "row_half_mirror row_mask:0xf", "row_mirror row_mask:0xf",
                "row_bcast:15 row_mask:0xa", "row_bcast:31 row_mask:0xc"]:
        for r in range(32, 40): a(f"v_add_f32_dpp v{r}, v{r}, v{r} {pat} bank_mask:0xf")
    for r in range(8): a(f"v_readlane_b32 s{52+r}, v{32+r}, 63")
    a("s_nop 1")
    for r in range(8): a(f"v_writelane_b32 v16, s{52+r}, {r}")
    a("s_nop 0\nv_mul_f32 v16, 0xbfb8aa3b, v16\nv_exp_f32 v16, v16\ns_nop 0\nv_add_f32 v16, 1.0, v16\nv_rcp_f32 v16, v16")
    a(f"s_lshl_b32 s47, s46, 5\ns_add_u32 s47, s47, {WS_FLAG+F_G}\ns_mov_b64 exec, 0xff")
    a(f"buffer_store_dword v16, v5, {W}, s47 offen sc1\ns_mov_b64 exec, -1")
    a(f"s_cmp_ge_u32 s{S_C}, 2\ns_cbranch_scc1 L_h1_q\ns_cmp_ge_u32 s{S_MB8}, 6\ns_cbranch_scc1 L_h1_idle")
    a(f"v_and_b32 v12, 3, v0\nv_lshlrev_b32 v12, 7, v12\nv_bfe_u32 v13, v0, 2, 3\nv_lshl_add_u32 v12, v13, 13, v12")
    a(f"s_andn2_b32 s54, s2, 0x1c\ns_lshl_b32 s54, s54, 11\ns_add_u32 s54, s54, {WS_FLAG+F_X}")
    H1 = g.o['h1']
    bars(1)
    gate(54, 12, 32, H1 + 1)
    a(f"s_mul_i32 s47, s{S_PAIR}, {8*12288}\ns_lshl_b32 s46, s{S_MB8}, 11\ns_add_u32 s47, s47, s46\ns_add_u32 s47, s47, {WS_KVP}")
    for m in range(8):
        for dt in range(2): a(f"buffer_load_dwordx4 {vr(32+(m*2+dt)*4)}, v4, {W}, s47 offen offset:{dt*1024} sc1")
        if m < 7: a("s_add_u32 s47, s47, 12288")
    bars(2)
    a("s_waitcnt vmcnt(0)")
    for st in (32, 16, 8):
        for r in range(st): a(f"v_add_f32 v{32+r}, v{32+r}, v{32+st+r}")
    for r in range(4): a(f"v_cvt_pk_bf16_f32 v{32+r}, v{32+2*r}, v{33+2*r}")
    a(f"s_mul_i32 s47, s{S_PAIR}, 6144\ns_lshl_b32 s46, s{S_MB8}, 10\ns_add_u32 s47, s47, s46\ns_add_u32 s47, s47, {WS_KVF}")
    a(f"buffer_store_dwordx4 v[32:35], v4, {W}, s47 offen sc1")
    bars(13 - (H1 + 5))
    if g.o.get('cpf2', 1): codepf()
    bars(12)
    a("s_branch L_h1_tail")
    a("L_h1_idle:")
    bars(14)
    if g.o.get('cpf2', 1): codepf()
    bars(12)
    a("s_branch L_h1_tail")
    a("L_h1_q:")
    K1 = g.o['k1']
    a(f"s_mul_i32 s55, s{S_PAIR}, 6144\ns_add_u32 s55, s55, {WS_KVF}\ns_add_u32 s56, s55, 4096\nv_add_u32 v12, {P2END}, v4")
    def kvf_issue():
        for f in range(6): a(f"buffer_load_dwordx4 {vr(32+4*f)}, v4, {W}, s{55+(f>>2)} offen offset:{(f&3)*1024} sc1")
    def kvf_max():
        a("v_max_u32 v14, v32, v33")
        for r in range(34, 56, 2): a(f"v_max3_u32 v14, v14, v{r}, v{r+1}")
    bars(K1 - 2)
    kvf_issue()
    bars(2)
    poll_check(g, kvf_issue, 14, 64, -1, "eq", kvf_max)
    for f in range(6): a(f"ds_write_b128 v12, {vr(32+4*f)} offset:{f*1024}")
    if g.o.get('cpf2', 1): codepf()
    a("s_waitcnt lgkmcnt(0)")
    bars(25 - K1)
    a("L_h1_tail:\ns_waitcnt vmcnt(0)")
    dtail()
    a("s_endpgm")


HEADER = open("gated_mix__linear_attn_block__dense_activation_relu__prompt.s.ref").read().split("; Override")[0] \
    if __name__ == "__main__" else ""


def build(**opt):
    g = G(**opt)
    NOSW[0] = g.o.get('nosw', False)
    g.L.append(f"; @launch grid=(256,1,1) block=(512,1,1) lds={LDS_TOTAL}")
    g.a(f'.amdgcn_target "amdgcn-amd-amdhsa--gfx950"\n.text\n.globl {NAME}\n.p2align 8\n.type {NAME},@function\n{NAME}:')
    prologue(g)
    loader(g)
    helper(g)
    compute(g)
    g.a("L_exit:\ns_endpgm\nL_codeend:")
    g.L.append(f""".section .rodata,"a"
.p2align 6
.amdhsa_kernel {NAME}
  .amdhsa_next_free_vgpr 256
  .amdhsa_next_free_sgpr 102
  .amdhsa_accum_offset 256
  .amdhsa_group_segment_fixed_size 0
  .amdhsa_kernarg_size 80
  .amdhsa_user_sgpr_count 2
  .amdhsa_user_sgpr_kernarg_segment_ptr 1
  .amdhsa_system_sgpr_workgroup_id_x 1
.end_amdhsa_kernel""")
    return g.text()


if __name__ == "__main__":
    out = sys.argv[1]
    opt = {}
    for kv in sys.argv[2:]:
        k, v = kv.split("=")
        opt[k] = eval(v)
    open(out, "w").write(HEADER + build(**opt))
```

```python
import sys

NAME = "gated_mix__linear_attn_block__dense_activation_relu__prompt_kernel"

WS_HO = 0
WS_PART = 0x3000000
WS_KVP = 0x2400000
WS_KVF = 0x2580000
WS_FLAG = 0x2600000
F_H1, F_H2, F_X, F_P = 0, 512, 1024, 1536
F_G = 0x80000
WS_PROF = 0x2700000
ORD1 = [0, 1, 2, 4, 7, 8, 9, 11]
ORD2 = [3, 5, 10, 12, 6, 13]

UNIT = 4224; BLK = 1056
XSLOT = 8 * UNIT
XRING = 3 * XSLOT
WSLOT = 3 * UNIT + 1024
WBASE = XRING
LDS_G = 163328
ST0 = 128
P2A = 16384
P2SLOT = P2A + 4 * UNIT
P2RING = 4 * P2SLOT
P2B = 512
P2END = P2B + P2RING
LDS_TOTAL = 163840

SPIN = 100000


class G:
    def __init__(self, **opt):
        self.L = []
        self.o = dict(prof=False, krot=False, pfw=True, pf1=True, lead=3, pfw0=2, pfwr=50, early2=0, k1=13, h1=3, odens=3, b16=True)
        self.o.update(opt)
        self.uid = 0
        self.info = {}
        self.st = {'since': 0}

    def a(self, s):
        for ln in s.split("\n"):
            ln = ln.strip()
            if ln:
                self.L.append(ln if ln.endswith(":") or ln.startswith(".") else "    " + ln)

    def lab(self, p):
        self.uid += 1
        return f"L_{p}_{self.uid}"

    def stamp(self, n):
        if self.o['prof'] == 'min' and n not in (0, 8): return
        if self.o['prof']:
            self.a(f"{'s_memtime' if self.o['prof']=='cyc' else 's_memrealtime'} s[{70+2*n}:{71+2*n}]")

    def text(self):
        return "\n".join(self.L) + "\n"


class VM:
    def __init__(self, a, init=()):
        self.a = a; self.q = list(init)
    def op(self, text, tag):
        self.a(text); self.q.append(tag)
        assert len(self.q) <= 63, "vmcnt overflow"
    def mark(self, tag, n):
        self.q += [tag] * n
        assert len(self.q) <= 63, "vmcnt overflow"
    def wait(self, *tags):
        k = max([i for i, t in enumerate(self.q) if t in tags], default=-1)
        if k >= 0:
            self.a(f"s_waitcnt vmcnt({len(self.q)-1-k})"); self.q = self.q[k + 1:]


def vr(b, n=4):
    return f"v[{b}:{b+n-1}]"


def mfma(d, a, b, c=None):
    return f"v_mfma_f32_16x16x32_bf16 {vr(d)}, {vr(a)}, {vr(b)}, {vr(d) if c is None else c}"


S_WAVE, S_MB8, S_QD, S_C, S_PAIR, S_MB16, S_CB, S_KH, S_PHI, S_XCD = 3, 36, 37, 38, 39, 40, 41, 42, 43, 44
SRD_WS = 20


def srd(g, d, base, nbytes):
    g.a(f"s_mov_b32 s{d}, s{base}\ns_mov_b32 s{d+1}, s{base+1}\ns_mov_b32 s{d+2}, {hex(nbytes)}\ns_mov_b32 s{d+3}, 0x20000")


def prof_dump(g, wave, row):
    if not g.o['prof'] or g.o.get('probe') is not None or (row and (g.o['prof'] == 'min' or g.o.get('trace'))): return
    a = g.a
    l = g.lab("pd")
    a(f"s_waitcnt lgkmcnt(0)\ns_cmp_lg_u32 s{S_WAVE}, {wave}\ns_cbranch_scc1 {l}")
    a(f"s_lshl_b32 s33, s2, 6\ns_add_u32 s33, s33, {WS_PROF + row*16384}\nv_mov_b32 v5, 0")
    for n in range(16):
        a(f"v_mov_b32 v6, s{70+2*n}\nbuffer_store_dword v6, v5, s[{SRD_WS}:{SRD_WS+3}], s33 offen offset:{4*n}\ns_nop 1")
    a(f"{l}:")


def prologue(g):
    a = g.a
    a("s_cmp_ge_u32 s2, 256\ns_cbranch_scc1 L_exit")
    if g.o['prof']:
        for n in range(70, 102): a(f"s_mov_b32 s{n}, 0")
    g.stamp(0)
    a("s_load_dwordx16 s[4:19], s[0:1], 0")
    a("s_load_dwordx4 s[24:27], s[0:1], 64")
    a("v_lshrrev_b32 v1, 6, v0\nv_and_b32 v0, 63, v0")
    a(f"s_and_b32 s{S_XCD}, s2, 7\ns_lshr_b32 s30, s2, 3")
    a(f"v_readfirstlane_b32 s{S_WAVE}, v1")
    a(f"s_lshr_b32 s31, s{S_XCD}, 2\ns_and_b32 s32, s{S_XCD}, 3")
    a(f"s_and_b32 s33, s30, 3\ns_lshl_b32 s{S_MB8}, s31, 2\ns_add_u32 s{S_MB8}, s{S_MB8}, s33")
    a("s_lshr_b32 s33, s30, 2")
    a(f"s_lshr_b32 s34, s33, 2\ns_lshl_b32 s{S_QD}, s32, 1\ns_add_u32 s{S_QD}, s{S_QD}, s34")
    a(f"s_and_b32 s{S_C}, s33, 3")
    a(f"s_and_b32 s34, s33, 1\ns_lshl_b32 s{S_PAIR}, s{S_QD}, 1\ns_add_u32 s{S_PAIR}, s{S_PAIR}, s34")
    a(f"s_lshl_b32 s{S_MB16}, s{S_MB8}, 1\ns_add_u32 s{S_MB16}, s{S_MB16}, s34")
    a(f"s_and_b32 s34, s32, 1\ns_lshl_b32 s34, s34, 2\ns_lshr_b32 s{S_CB}, s33, 1\ns_xor_b32 s{S_CB}, s{S_CB}, {g.o.get('cbx', 1)}\ns_add_u32 s{S_CB}, s{S_CB}, s34")
    a(f"s_lshr_b32 s{S_KH}, s32, 1")
    if g.o['krot']:
        a(f"s_lshl_b32 s34, s31, 1\ns_add_u32 s34, s34, s32\ns_lshl_b32 s34, s34, 2\ns_and_b32 s{S_PHI}, s34, 15")
    else:
        a(f"s_mov_b32 s{S_PHI}, 0")
    a(f"s_cmp_lt_u32 s{S_WAVE}, 4\ns_cbranch_scc1 L_compute")
    a(f"s_cmp_ge_u32 s{S_WAVE}, 6\ns_cbranch_scc1 L_helper")


W = f"s[{SRD_WS}:{SRD_WS+3}]"


def lane_goodcol(g, d, t):
    g.a(f"v_lshrrev_b32 v{d}, 4, v0\nv_and_b32 v{t}, 15, v0\nv_lshlrev_b32 v{t}, 4, v{t}\nv_lshl_add_u32 v{d}, v{d}, 9, v{t}")


def lane_h(g, d, t, so):
    g.a(f"v_bfe_u32 v{d}, v0, 1, 3\nv_and_b32 v{t}, 1, v0\nv_lshlrev_b32 v{t}, 7, v{t}\nv_lshl_add_u32 v{d}, v{d}, 16, v{t}")
    g.a(f"s_and_b32 s{so}, s2, 31\ns_lshl_b32 s{so}, s{so}, 3\ns_and_b32 s33, s{S_MB16}, 1\ns_add_u32 s{so}, s{so}, s33\ns_lshl_b32 s{so}, s{so}, 8\ns_add_u32 s{so}, s{so}, {WS_FLAG}")


def poll_check(g, issue, reg, nl, val, cmp="ne", pre=None):
    a = g.a
    l0, l1 = g.lab("poll"), g.lab("pollok")
    a(f"s_mov_b32 s35, {SPIN}\n{l0}:\ns_waitcnt vmcnt(0)")
    if pre: pre()
    a(f"v_cmp_{cmp}_u32 vcc, {val}, v{reg}\ns_nop 1")
    if nl == 64: a("s_cmp_lg_u64 vcc, 0")
    else: a(f"s_and_b32 s33, vcc_lo, {hex((1<<nl)-1)}")
    a(f"s_cbranch_scc0 {l1}")
    a(f"s_sub_u32 s35, s35, 1\ns_cbranch_scc1 {l1}")
    if g.o.get('psleep'): a(f"s_sleep {g.o['psleep']}")
    issue()
    a(f"s_branch {l0}\n{l1}:")


def setflags(g, one, *soffs):
    g.a("s_mov_b64 exec, 1")
    for so in soffs: g.a(f"buffer_store_dword v{one}, off, {W}, s{so} sc1")
    g.a("s_mov_b64 exec, -1")


VX, VW, VQ = 1, 2, 3
WB = lambda n: 8 + 4 * (n % 4)
XLO = lambda b, i: 24 + 8 * b + 4 * i
XHI = lambda i: 40 + 4 * (i - 2)
AC = lambda j, i: 48 + (j * 4 + i) * 4


PERM = {True: [8, 9, 10, 11, 0, 1, 2, 3, 12, 4, 5, 6, 7], False: [4, 5, 6, 7, 8, 9, 10, 11, 12, 0, 1, 2, 3]}


def p1_wread(t, j, n):
    slot = (t % 4) * WSLOT
    if j < 12:
        return [f"ds_read_b64_tr_b16 v[{WB(n)+2*w}:{WB(n)+2*w+1}], v{VW} offset:{slot + (j//4)*UNIT + (j%4)*32 + w*256}" for w in range(2)]
    return [f"ds_read_b64_tr_b16 v[{WB(n)+2*w}:{WB(n)+2*w+1}], v{VQ} offset:{slot + w*256}" for w in range(2)]


def p1_xreg(par, i):
    return XLO(par % 2, i) if i < 2 else XHI(i)


def p1_xread(t, i, par, vx=VX):
    return f"ds_read_b128 {vr(p1_xreg(par,i))}, v{vx} offset:{(i>>1)*UNIT + (i&1)*512 + (t%2)*64}"


def pass_order(nt):
    s = [(0, 0), (0, 1), (1, 1), (1, 0), (1, 2), (1, 3), (0, 3), (0, 2)]
    for j in range(2, nt - 2):
        s += [(j, i) for i in ([2, 3, 0, 1] if j % 2 == 0 else [1, 0, 3, 2])]
    u, v = nt - 2, nt - 1
    return s + [(u, 2), (u, 3), (v, 3), (v, 2), (v, 1), (v, 0), (u, 0), (u, 1)]


def p1_mfma(kv, tile, i, wreg, xreg):
    return mfma(AC(tile, i), xreg, wreg) if (kv and tile < 8) else mfma(AC(tile, i), wreg, xreg)


Q0 = [('W', 0, 0), ('W', 0, 0), ('X', 0, 0), ('X', 0, 1), ('W', 0, 1), ('W', 0, 1), ('X', 0, 2), ('X', 0, 3)]


def p1_loop(g, kv):
    a = g.a
    P = PERM[kv]
    L = g.lab("p1")
    seq = []
    for t in range(4):
        s = pass_order(13)
        post = [[] for _ in s]
        rd = lambda j, tt=t: [('W', tt, j, x) for x in p1_wread(tt, P[j], 13 * tt + j)]
        r = rd(2); post[0].append(r[0]); post[1].append(r[1])
        r = rd(3); post[2].append(r[0]); post[3].append(r[1])
        r = rd(4); post[8].append(r[0]); post[9].append(r[1])
        r = rd(5); post[10].append(r[0]); post[11].append(r[1])
        for j in range(3, 10):
            base = 8 + (j - 2) * 4
            r = rd(j + 3); post[base].append(r[0]); post[base + 1].append(r[1])
        b10 = 40
        if t % 2 == 1:
            post[b10 - 2].append(('S', f"s_add_u32 s46, s46, {XSLOT}"))
            post[b10 - 2].append(('S', f"s_cmp_eq_u32 s46, {XRING}"))
            post[b10 - 1].append(('S', f"s_cselect_b32 s47, s48, s49"))
            post[b10 - 1].append(('S', f"s_cselect_b32 s46, 0, s46"))
            post[b10].append(('S', f"v_add_u32 v{VX}, s47, v{VX}"))
        post[b10 + 2].append(('BAR',))
        tn = t + 1
        r0, r1 = rd(0, tn), rd(1, tn)
        post[b10 + 3] += [r0[0], r0[1]]
        post[44] += [('X', tn, 0, p1_xread(tn, 0, tn)), ('X', tn, 1, p1_xread(tn, 1, tn))]
        post[45] += [r1[0]]
        post[46] += [r1[1]]
        post[47] += [('X', tn, 2, p1_xread(tn, 2, tn))]
        post[48] += [('X', tn, 3, p1_xread(tn, 3, tn))]
        if t == 3:
            post[49].append(('S', "s_sub_u32 s45, s45, 1"))
            post[50].append(('S', "s_cmp_lg_u32 s45, 0"))
        for (j, i), p in zip(s, post):
            seq.append(((t, j, i), p))
    for x in p1_wread(0, P[0], 0): a(x)
    a(p1_xread(0, 0, 0)); a(p1_xread(0, 1, 0))
    for x in p1_wread(0, P[1], 1): a(x)
    a(p1_xread(0, 2, 0)); a(p1_xread(0, 3, 0))
    q = list(Q0)
    a(f".p2align 6\n{L}:")
    for (t, j, i), p in seq:
        need = [k for k, e in enumerate(q) if e == ('W', t, j) or e == ('X', t, i)]
        if need:
            k = max(need)
            a(f"s_waitcnt lgkmcnt({len(q)-1-k})")
            q = q[k + 1:]
        a(p1_mfma(kv, P[j], i, WB(13 * t + j), p1_xreg(t, i)))
        for e in p:
            if e[0] == 'S':
                a(e[1])
            elif e[0] == 'BAR':
                a("s_waitcnt lgkmcnt(0)\ns_barrier"); q = []
            else:
                a(e[3]); q.append((e[0], e[1] % 4, e[2]))
    assert q == Q0
    a(f"s_cbranch_scc1 {L}")


def p1_tail(g, kv, extra, extra2):
    a = g.a
    P = PERM[kv]
    a(f"v_add_u32 v5, {(-2*XSLOT) & 0xffffffff}, v{VX}")
    passes = [(t, grp) for grp in (P[:4], P[4:9], P[9:]) for t in range(28, 32)]
    M = []; start = []; n0 = 0; last = {}
    reads = []
    for p, (t, tiles) in enumerate(passes):
        start.append(len(M))
        o = pass_order(len(tiles))
        base = len(M)
        for j, tile in enumerate(tiles):
            first = base + min(k for k, e in enumerate(o) if e[0] == j)
            if not (p == 0 and j < 2):
                for x in p1_wread(t, tile, n0 + j):
                    reads.append(dict(key=('W', p, j), text=x, after=last.get(WB(n0 + j), -1), first=first, t=t))
            last[WB(n0 + j)] = base + max(k for k, e in enumerate(o) if e[0] == j)
        for i in range(4):
            first = base + min(k for k, e in enumerate(o) if e[1] == i)
            if p > 0:
                reads.append(dict(key=('X', p, i), text=p1_xread(t, i, p, VX if t < 30 else 5), after=max(last.get(p1_xreg(p, i), -1), first - 14), first=first, t=t))
            last[p1_xreg(p, i)] = base + max(k for k, e in enumerate(o) if e[1] == i)
        for (j, i) in o:
            M.append((p, j, i, p1_mfma(kv, tiles[j], i, WB(n0 + j), p1_xreg(p, i))))
        n0 += len(tiles)
    V1, V2 = start[1] + 3, start[2] + 5
    R1, R2 = start[10] - 3, len(M) - 5
    for r in reads:
        if r['t'] == 30: r['after'] = max(r['after'], V1)
        if r['t'] == 31: r['after'] = max(r['after'], V2)
    reads.sort(key=lambda r: r['first'])
    q = list(Q0); since = 0
    dens = g.o.get('tdens', 3)
    def wait(pred):
        nonlocal q
        need = [k for k, e in enumerate(q) if pred(e)]
        if need:
            a(f"s_waitcnt lgkmcnt({len(q)-1-max(need)})"); q = q[max(need) + 1:]
            return 1
        return 0
    for k, (p, j, i, txt) in enumerate(M):
        assert not [r for r in reads if r['first'] <= k], "read scheduled too late"
        w = wait(lambda e: e == ('W', p, j) or e == ('X', p, i))
        a(txt); since += 1 + w
        used = 0
        if k in (V1, V2): a("s_barrier"); used += 1
        if k in (R1, R2):
            lim = 9 if k == R1 else 11
            assert not [r for r in reads if r['key'][1] <= lim]
            used += 1 + wait(lambda e: e[1] <= lim); a("s_barrier")
        nr = 0
        while used < 2:
            c = [r for r in reads if r['after'] <= k]
            if not c or (nr and c[0]['first'] - k > 9): break
            a(c[0]['text']); q.append(c[0]['key']); reads.remove(c[0]); used += 1; nr += 1
        since += used
        if k == start[8] + 3:
            extra += extra2; dens = g.o.get('tdens2', 3)
        if k >= start[4] + 3:
            while used < dens and extra:
                if isinstance(extra[0], int):
                    if k >= start[8] - extra[0]: extra.pop(0); continue
                    break
                x = extra.pop(0); a(x); used += 2 if x.startswith("v_exp") else 1
    for x in extra:
        if isinstance(x, str): a(x)


def h_cvt(d, a0, a1):
    src = [a0, a0 + 2] + ([a1, a1 + 2] if a1 is not None else [])
    return [f"v_cvt_pk_bf16_f32 v{d+r}, v{x}, v{x+1}" for r, x in enumerate(src)] + [f"v_pk_max_i16 v{d+r}, v{d+r}, 0" for r in range(len(src))]


def h_line_store(j0, soff):
    o = []
    for i in (2, 3, 0, 1):
        o.append(f"s_add_u32 s56, s{soff}, {4096*i}")
        for p in range(2):
            d = AC(j0 + 2 * p, i)
            o += h_cvt(d, d, AC(j0 + 2 * p + 1, i))
            o.append(f"buffer_store_dwordx4 {vr(d)}, v7, {W}, s56 offen offset:{p*2048} sc1")
    return o


def phi_regs(regs, tmp):
    o = [f"v_mul_f32 v{tmp+k}, s50, v{r}" for k, r in enumerate(regs)]
    for k, r in enumerate(regs): o += [f"v_exp_f32 v{tmp+k}, v{tmp+k} clamp", f"v_max_f32 v{r}, s51, v{r}"]
    return o + [f"v_add_f32 v{r}, v{r}, v{tmp+k}" for k, r in enumerate(regs)]


def pack8(d, e):
    return [f"v_cvt_pk_bf16_f32 v{d}, v{d}, v{d+1}", f"v_cvt_pk_bf16_f32 v{d+1}, v{d+2}, v{d+3}",
            f"v_cvt_pk_bf16_f32 v{d+2}, v{e}, v{e+1}", f"v_cvt_pk_bf16_f32 v{d+3}, v{e+2}, v{e+3}"]


def flagops(one, *soffs):
    return "s_mov_b64 exec, 1\n" + "".join(f"buffer_store_dword v{one}, off, {W}, s{so} sc1\n" for so in soffs) + "s_mov_b64 exec, -1"


VA2, VW2 = 1, 2
AF = lambda b, i: 112 + 16 * b + 4 * i
WF = lambda b, j: 144 + 16 * b + 4 * j
ACC = lambda j, i: 176 + (j * 4 + i) * 4
DA = lambda b, kk, i: (8, 112)[b] + 16 * kk + 4 * i
DW = lambda b, kk, j: (40, 144)[b] + 8 * kk + 4 * j
ACD = lambda j, i: 56 + (j * 4 + i) * 4
PQ = lambda i, h: AC(2 * h, i)
KVF = lambda f: 8 + 4 * f
PP = lambda j, i: (160, 240)[j] + 4 * i
GG = 104


def rd_w(d, j, kk):
    return [f"ds_read_b64_tr_b16 v[{d+2*w}:{d+2*w+1}], v{VW2} offset:{((j>>1)*2+kk)*UNIT + (j&1)*32 + w*256}" for w in range(2)]


def rd_a(d, i, kk):
    return f"ds_read_b128 {vr(d)}, v{VA2} offset:{(i>>1)*4096+kk*2048+(i&1)*1024}"


def c_reads(b):
    R = [(('W', b, 0), x) for x in rd_w(WF(b, 0), 0, b)] + [(('W', b, 0), rd_a(AF(b, i), i, b)) for i in range(4)]
    for j in range(1, 4): R += [(('W', b, j), x) for x in rd_w(WF(b, j), j, b)]
    return R


def d_reads(b):
    R = []
    for kk in range(2):
        R += [(('D', b, kk, 0), x) for x in rd_w(DW(b, kk, 0), 0, kk)] + [(('D', b, kk, 0), rd_a(DA(b, kk, i), i, kk)) for i in range(4)]
        R += [(('D', b, kk, 1), x) for x in rd_w(DW(b, kk, 1), 1, kk)]
    return R


class Stage:
    def __init__(self, g, q, extra, dens):
        self.g = g; self.q = list(q); self.extra = extra; self.dens = dens; self.carry = 0
    def a(self, x):
        self.g.a(x); self.g.st['since'] += 1
    def wait(self, key):
        need = [k for k, e in enumerate(self.q) if key is None or e == key]
        if need:
            self.a(f"s_waitcnt lgkmcnt({len(self.q)-1-max(need)})"); self.q = self.q[max(need) + 1:]
    def read(self, r):
        self.a(r[1]); self.q.append(r[0])
    def fill(self, used):
        ex, st = self.extra, self.g.st
        while used < self.dens and ex:
            if isinstance(ex[0], int):
                if st['since'] >= ex[0]: ex.pop(0); continue
                return
            x = ex.pop(0); self.g.a(x); st['since'] = 0
            used = 0 if x.startswith("v_mfma") else used + (2 if x.startswith(("v_exp", "v_rcp")) else 1)


def c_stage(g, first=False, extra=None, loop=False, last=False, dens=2):
    S = Stage(g, [k for k, _ in c_reads(0)], extra, dens)
    BP = g.o.get('cbar', 2)
    for b in range(2):
        R = c_reads(1) if b == 0 else (d_reads(0) if last else c_reads(0))
        if b == 0:
            ctl = {12: [f"s_add_u32 s46, s46, {P2SLOT}", f"s_cmp_eq_u32 s46, {P2RING}"], 13: ["s_cselect_b32 s47, s48, s49", "s_cselect_b32 s46, 0, s46"],
                   14: [f"v_add_u32 v{VA2}, s47, v{VA2}", f"v_add_u32 v{VW2}, s47, v{VW2}"]}
        else:
            ctl = {0: ["s_sub_u32 s45, s45, 1", "s_cmp_lg_u32 s45, 0"]} if loop else {}
        n = 0
        for j in range(4):
            for i in (range(4) if j % 2 == 0 else range(3, -1, -1)):
                S.wait(('W', b, j))
                S.a(mfma(ACC(j, i), WF(b, j), AF(b, i), "0" if (first and b == 0) else None))
                used = 1 if n % 4 == 3 and (b == 0 or n == 15) else 0
                if n in ctl:
                    for x in ctl[n]: S.a(x)
                    used = 2
                elif b == 1 and n == BP:
                    S.wait(None); S.a("s_barrier"); used = 2
                elif R and (b == 0 or n > BP):
                    S.read(R.pop(0)); used += 1
                    if len(R) > 15 - n: S.read(R.pop(0)); used += 1
                S.fill(used)
                n += 1
        assert not R


def c_loop(g, iters):
    if iters <= 0: return
    if iters == 1:
        c_stage(g); return
    L = g.lab("p2")
    g.a(f"s_mov_b32 s45, {iters}\n.p2align 3\n{L}:")
    c_stage(g, loop=True)
    g.a(f"s_cbranch_scc1 {L}")


def d_stage(g, n, extra=None, dens=2):
    b = n % 2
    S = Stage(g, [k for k, _ in d_reads(b)], extra, dens)
    BP = g.o.get('dbar', 3)
    R = d_reads(1 - b) if n < 15 else []
    dl = (P2SLOT if (28 + n + 2) % 4 else -3 * P2SLOT) & 0xffffffff
    m = 0
    for kk in range(2):
        for j in range(2):
            for i in (range(4) if j == 0 else range(3, -1, -1)):
                S.wait(('D', b, kk, j))
                S.a(mfma(ACD(j, i), DW(b, kk, j), DA(b, kk, i), "0" if (n == 0 and kk == 0) else None))
                used = 1 if m == 15 else 0
                if R and m == 0:
                    S.a(f"v_add_u32 v{VA2}, {dl}, v{VA2}"); S.a(f"v_add_u32 v{VW2}, {dl}, v{VW2}"); used = 2
                elif R and m == BP:
                    S.wait(None); S.a("s_barrier"); used = 2
                elif R and m > BP:
                    S.read(R.pop(0)); used += 1
                    if len(R) > 14 - m and R: S.read(R.pop(0)); used += 1
                S.fill(used)
                m += 1
    assert not R


def spaced(lst, n):
    o = []
    for x in lst: o += [x, n]
    return o


def strs(ex):
    return [x for x in ex if isinstance(x, str)]


def compute(g):
    a = g.a
    a("L_compute:")
    a("v_and_b32 v4, 15, v0\nv_lshrrev_b32 v5, 4, v0")
    a("v_bfe_u32 v6, v4, 3, 1\nv_bfe_u32 v7, v4, 1, 1\nv_lshl_add_u32 v6, v6, 1, v7")
    a(f"v_mul_u32_u24 v{VX}, {BLK}, v6")
    a("v_bfe_u32 v6, v4, 2, 1\nv_and_b32 v7, 1, v4\nv_lshl_add_u32 v6, v6, 1, v7")
    a(f"v_lshl_add_u32 v{VX}, v6, 7, v{VX}\nv_lshl_add_u32 v{VX}, v5, 4, v{VX}")
    a(f"s_mul_i32 s45, s{S_WAVE}, {2*UNIT}\nv_add_u32 v{VX}, s45, v{VX}")
    a("v_and_b32 v6, 1, v5\nv_bfe_u32 v7, v4, 3, 1\nv_lshl_add_u32 v6, v6, 1, v7")
    a(f"v_mul_u32_u24 v{VW}, {BLK}, v6")
    a("v_lshrrev_b32 v6, 1, v5\nv_bfe_u32 v7, v4, 2, 1\nv_lshl_add_u32 v6, v6, 2, v7")
    a(f"v_lshl_add_u32 v{VW}, v6, 7, v{VW}\nv_and_b32 v6, 3, v4\nv_lshl_add_u32 v{VW}, v6, 3, v{VW}")
    a(f"v_add_u32 v{VW}, {WBASE}, v{VW}")
    a(f"v_lshrrev_b32 v6, 5, v0\nv_and_b32 v7, 31, v0\nv_lshlrev_b32 v7, 3, v7\nv_lshl_add_u32 v{VQ}, v6, 9, v7")
    a(f"v_add_u32 v{VQ}, {WBASE+3*UNIT}, v{VQ}")
    for r in range(48, 256): a(f"v_mov_b32 v{r}, 0")
    a(f"s_mov_b32 s45, 7\ns_mov_b32 s46, 0\ns_mov_b32 s48, {(-2*XSLOT) & 0xffffffff}\ns_mov_b32 s49, {XSLOT}")
    a("s_mov_b32 s50, 0x3fb8aa3b\ns_mov_b32 s51, 0x358637bd")
    a(f"s_lshl_b32 s52, s{S_MB8}, 16\ns_lshl_b32 s53, s{S_WAVE}, 14\ns_add_u32 s52, s52, s53")
    a(f"s_mul_i32 s53, s{S_QD}, 7")
    a(f"s_add_u32 s66, s53, 6\ns_lshl_b32 s66, s66, 19\ns_add_u32 s66, s66, s52")
    a(f"s_lshr_b32 s55, s{S_C}, 1\ns_lshl_b32 s55, s55, 11\ns_add_u32 s66, s66, s55")
    a(f"s_and_b32 s55, s{S_C}, 1\ns_lshl_b32 s55, s55, 10\ns_add_u32 s66, s66, s55")
    a("s_add_u32 s67, s66, 8192")
    a(f"s_lshr_b32 s57, s{S_WAVE}, 1\ns_and_b32 s58, s{S_WAVE}, 1")
    a(f"s_lshl_b32 s59, s2, 11\ns_lshl_b32 s55, s{S_WAVE}, 7\ns_add_u32 s59, s59, s55\ns_add_u32 s59, s59, {WS_FLAG}")
    a(f"s_add_u32 s60, s59, {F_H2}\ns_add_u32 s61, s59, {F_X}")
    a("v_lshlrev_b32 v4, 4, v0\nv_mov_b32 v6, 1")
    lane_goodcol(g, 7, 5)
    a("s_waitcnt lgkmcnt(0)")
    srd(g, SRD_WS, 26, 0x10000000)
    if g.o.get('prio'): a(f"s_setprio {g.o['prio']}")
    a("s_barrier")
    g.stamp(1)

    def em(lst):
        for x in lst: a(x)
    def p2_setup():
        a(f"s_lshl_b32 s55, s57, 13\ns_add_u32 s55, s55, {P2B+P2SLOT}\nv_add_u32 v{VA2}, s55, v4")
        a(f"s_lshl_b32 s55, s58, 6\ns_add_u32 s55, s55, {(P2B+P2SLOT+P2A-WBASE) & 0xffffffff}\nv_add_u32 v{VW2}, s55, v{VW2}")
        a(f"s_mov_b32 s46, {P2SLOT}\ns_mov_b32 s48, {(-3*P2SLOT) & 0xffffffff}\ns_mov_b32 s49, {P2SLOT}")
        g.stamp(4)
        a("s_barrier")
        g.stamp(5)
        for _, x in c_reads(0): a(x)
    def quarter(tmp):
        o = [f"v_bfe_u32 v{VQ}, v0, 4, 1", f"v_mul_u32_u24 v{VQ}, 3584, v{VQ}", f"v_lshrrev_b32 v{tmp}, 5, v0", f"v_lshlrev_b32 v{tmp}, 9, v{tmp}",
             f"v_sub_u32 v{VQ}, v{VQ}, v{tmp}", f"v_add_u32 v{VQ}, v{VQ}, v7"]
        for p in (1, 0):
            d = AC(12, 2 * p)
            o += h_cvt(d, d, d + 4)
        for p in (1, 0):
            d = AC(12, 2 * p)
            o += [f"s_nop 1\nv_permlane16_swap_b32 v{d}, v{d+2}", f"v_permlane16_swap_b32 v{d+1}, v{d+3}",
                  f"buffer_store_dwordx4 {vr(d)}, v{VQ}, {W}, s{66+p} offen sc1"]
        return o
    def early(j0):
        return h_line_store(j0, 55) + [g.o.get('fpos', 0), "s_waitcnt vmcnt(0)\n" + flagops(6, 59)]

    a(f"s_cmp_ge_u32 s{S_C}, 2\ns_cbranch_scc1 L_cq")
    a(f"s_add_u32 s55, s53, s{S_C}\ns_lshl_b32 s55, s55, 19\ns_add_u32 s55, s55, s52")
    p1_loop(g, True)
    ex2 = []
    for s_ in range(4):
        for p in range(2):
            ex2 += phi_regs(list(range(AC(s_, 2 * p), AC(s_, 2 * p) + 8)), AC(9, 0)) + pack8(AC(s_, 2 * p), AC(s_, 2 * p + 1))
        if s_ == 0: ex2 += quarter(AC(11, 0))
    p1_tail(g, True, early(8), ex2)
    g.stamp(2)
    for s_ in range(4, 8):
        for p in (1, 0): em(pack8(AC(s_, 2 * p), AC(s_, 2 * p + 1)))
    for r in range(8, 12): a(f"v_mov_b32 v{r}, 0x3f803f80")
    T = lambda t: 176 + 4 * t
    a(f"s_sub_u32 s55, 3, s{S_WAVE}\ns_mul_i32 s55, s55, {3*P2SLOT}\ns_add_u32 s55, s55, {P2B}\ns_mul_i32 s56, s{S_WAVE}, 12288\ns_add_u32 s56, s56, {P2END}")
    a(f"s_cmp_ge_u32 s{S_WAVE}, 2\ns_cselect_b32 s55, s55, s56\nv_add_u32 v12, s55, v4")
    for p in range(2):
        for h in range(2):
            for dt in range(2):
                for e in range(3):
                    t = 2 * (3 * h + e) + dt
                    a(mfma(T(t), AC(2 * h + dt, 2 * p), AC(4 + 2 * h + e, 2 * p) if e < 2 else 8, "0" if p == 0 else None))
    a("s_nop 4")
    for h in range(2):
        for dt in range(2):
            for e in range(3):
                t = 2 * (3 * h + e) + dt
                a(f"ds_write_b128 v12, {vr(T(t))} offset:{t*1024}")
    a(f"s_mul_i32 s55, s{S_WAVE}, 3072\ns_add_u32 s56, s55, {P2B}\nv_add_u32 v8, s56, v4\nv_add_u32 v5, {3*P2SLOT}, v8")
    a("s_waitcnt lgkmcnt(0)\ns_barrier")
    g.stamp(3)
    for w in range(4):
        for t in range(3):
            a(f"ds_read_b128 {vr(48+(w*3+t)*4)}, v{5 if w<3 else 8} offset:{[P2SLOT, P2SLOT+12288, 0, 0][w]+t*1024}")
    a(f"s_lshl_b32 s56, s{S_PAIR}, 3\ns_add_u32 s56, s56, s{S_MB8}\ns_mul_i32 s56, s56, 12288\ns_add_u32 s56, s56, s55\ns_add_u32 s56, s56, {WS_KVP}")
    a("s_waitcnt lgkmcnt(0)")
    p2_setup()
    for r in range(12): a(f"v_add_f32 v{48+r}, v{48+r}, v{60+r}\nv_add_f32 v{72+r}, v{72+r}, v{84+r}")
    for r in range(12): a(f"v_add_f32 v{48+r}, v{48+r}, v{72+r}")
    for t in range(3): a(f"buffer_store_dwordx4 {vr(48+4*t)}, v4, {W}, s56 offen offset:{t*1024} sc1")
    c_stage(g, first=True)
    c_stage(g)
    a("s_waitcnt vmcnt(0)")
    a(flagops(6, 61, 60))
    c_loop(g, 25)
    a("s_branch L_c2join")
    a("L_cq:")
    a(f"s_lshl_b32 s55, s{S_C}, 1\ns_add_u32 s55, s55, s53\ns_sub_u32 s55, s55, 2\ns_lshl_b32 s55, s55, 19\ns_add_u32 s55, s55, s52")
    a("s_add_u32 s62, s55, 0x80000")
    p1_loop(g, False)
    p1_tail(g, False, early(4), h_line_store(8, 62) + quarter(AC(5, 0)))
    g.stamp(2)
    ph = []
    for i in (2, 3, 0, 1):
        for h in range(2):
            d, e = AC(2 * h, i), AC(2 * h + 1, i)
            ph.append(phi_regs(list(range(d, d + 4)) + list(range(e, e + 4)), 8) + pack8(d, e))
    phg = g.o.get('phig', 2)
    a("s_nop 3")
    for x in ph[:phg]: em(x)
    ph = [x for y in ph[phg:] for x in y]
    g.stamp(3)
    p2_setup()
    n = 0
    for _ in range(2):
        c_stage(g, first=(n == 0), extra=ph); n += 1
    a("s_waitcnt vmcnt(0)")
    a(flagops(6, 60))
    g.info['fh2'] = n
    while ph:
        c_stage(g, extra=ph); n += 1
    K1 = g.o['k1']
    c_loop(g, K1 - n)
    n = max(n, K1)
    a(f"s_add_u32 s62, s{S_PAIR}, 56\ns_lshl_b32 s62, s62, 19\ns_add_u32 s62, s62, s52\ns_add_u32 s63, s62, 4096\ns_add_u32 s64, s63, 4096\ns_add_u32 s65, s64, 4096")
    a(f"v_add_u32 v5, {P2END}, v4")
    for f in range(6): a(f"ds_read_b128 {vr(KVF(f))}, v5 offset:{f*1024}")
    a("s_waitcnt lgkmcnt(0)")
    TM = [32, 64]
    ex = []
    for i in range(4):
        for h in range(2):
            t = TM[h]
            for e in (2, 0, 1): ex.append(mfma(t + 4 * e, KVF(3 * h + e), PQ(i, h), "0"))
        ex.append(4)
        for h in range(2):
            t = TM[h]
            ex += [f"v_add_f32 v{t+8}, s51, v{t+8}", f"v_rcp_f32 v{t+8}, v{t+8}", 1]
            ex += [f"v_mul_f32 v{t+r}, v{t+r}, v{t+8}" for r in range(8)]
            d = PQ(i, h)
            ex += [f"v_cvt_pk_bf16_f32 v{d+r}, v{t+2*r}, v{t+2*r+1}" for r in range(4)]
            ex.append(f"buffer_store_dwordx4 {vr(d)}, v7, {W}, s{62+i} offen offset:{h*2048} sc1")
    while ex:
        c_stage(g, extra=ex, dens=g.o.get('odens', 2)); n += 1
    c_loop(g, 2); n += 2
    a("s_waitcnt vmcnt(0)")
    a(flagops(6, 61))
    g.info['fo'] = n
    c_loop(g, 27 - n)
    a("L_c2join:")
    a(f"s_lshl_b32 s62, s2, 16\ns_lshl_b32 s56, s{S_WAVE}, 14\ns_add_u32 s62, s62, s56\ns_add_u32 s62, s62, {WS_PART}")
    a("s_add_u32 s63, s62, 4096\ns_add_u32 s64, s63, 4096\ns_add_u32 s65, s64, 4096")
    for r in range(4): a(f"s_xor_b32 s{66+r}, s{62+r}, 0x20000")
    a(f"s_add_u32 s59, s59, {F_P}\ns_xor_b32 s60, s59, 0x1000")
    c_stage(g, last=True)
    g.stamp(6)
    b16 = g.o.get('b16')
    if b16:
        ex = [6]
        for i in (3, 2, 1, 0):
            ex += pack8(ACC(2, i), ACC(3, i)) + [f"buffer_store_dwordx4 {vr(ACC(2,i))}, v7, {W}, s{62+i} offen sc1"]
    else:
        ex = [6] + spaced([f"buffer_store_dwordx4 {vr(ACC(2+j,i))}, v7, {W}, s{62+i} offen offset:{j*2048} sc1" for j in range(2) for i in range(4)], g.o.get('psp', 2))
    g.st['since'] = 0
    ex += (f"s_mov_b32 s28, s18\ns_mov_b32 s29, s19\ns_mov_b32 s30, {hex(2048*1024*2)}\ns_mov_b32 s31, 0x20000\n"
           f"v_and_b32 v3, 15, v0\ns_lshl_b32 s55, s57, 8\ns_add_u32 s55, s55, {LDS_G}\nv_lshl_add_u32 v88, v3, 2, s55\n"
           "v_lshlrev_b32 v3, 11, v3\nv_bfe_u32 v89, v0, 4, 1\nv_lshl_add_u32 v3, v89, 5, v3\nv_lshrrev_b32 v89, 5, v0\nv_lshl_add_u32 v3, v89, 4, v3\n"
           f"s_lshl_b32 s55, s{S_MB16}, 18\ns_lshl_b32 s56, s57, 17\ns_add_u32 s55, s55, s56\n"
           f"s_lshl_b32 s56, s{S_CB}, 8\ns_add_u32 s55, s55, s56\ns_lshl_b32 s56, s{S_KH}, 7\ns_add_u32 s55, s55, s56\ns_lshl_b32 s56, s58, 6\ns_add_u32 s55, s55, s56\n"
           "s_mov_b32 s50, 0xffff0000").split("\n")
    D1, D2, D3 = g.o.get('d1', 5), g.o.get('d2', 8), g.o.get('d3', 13)
    pissue = lambda: a(f"buffer_load_dword v5, off, {W}, s60 sc1")
    for n in range(16):
        if n == D1:
            em(strs(ex)); ex = []
            a("s_waitcnt vmcnt(0)"); a(flagops(6, 59))
        if n == D2: pissue()
        if n == D2 + 2:
            poll_check(g, pissue, 5, 1, 1)
            if b16:
                for i in range(4): a(f"buffer_load_dwordx4 {vr(PP(0,i))}, v7, {W}, s{66+i} offen sc1")
            else:
                for j in range(2):
                    for i in range(4): a(f"buffer_load_dwordx4 {vr(PP(j,i))}, v7, {W}, s{66+i} offen offset:{j*2048} sc1")
            for i in range(4): a(f"ds_read_b32 v{GG+i}, v88 offset:{i*64}")
            a("s_waitcnt lgkmcnt(0)")
        if n == D3:
            a("s_waitcnt vmcnt(0)")
            ex = [f"v_sub_f32 v{GG+4+i}, 1.0, v{GG+i}" for i in range(4)]
            for i in (3, 2, 1, 0):
                pr = lambda j, r: (240 + 4 * j + r) if b16 else PP(j, i) + r
                if b16:
                    for j in range(2):
                        for r in range(4):
                            src = PP(0, i) + 2 * j + (r >> 1)
                            ex.append(f"v_and_b32 v{pr(j,r)}, s50, v{src}" if r & 1 else f"v_lshlrev_b32 v{pr(j,r)}, 16, v{src}")
                for j in range(2):
                    for r in range(4): ex.append(f"v_add_f32 v{ACC(j,i)+r}, v{ACC(j,i)+r}, v{pr(j,r)}")
                for j in range(2):
                    for r in range(4): ex.append(f"v_mul_f32 v{ACC(j,i)+r}, v{ACC(j,i)+r}, v{GG+4+i}")
        d_stage(g, n, extra=ex, dens=g.o.get('ddens', 3))
    em(ex)
    g.stamp(7)
    a("s_nop 4")
    for i in (3, 2, 1, 0):
        for j in range(2):
            for r in range(4): a(f"v_fmac_f32 v{ACC(j,i)+r}, v{GG+i}, v{ACD(j,i)+r}")
        d = ACC(0, i)
        em(pack8(d, ACC(1, i)))
        a(f"s_add_u32 s56, s55, {0x8000*i}\ns_nop 0\nv_permlane16_swap_b32 v{d}, v{d+2}\nv_permlane16_swap_b32 v{d+1}, v{d+3}")
        a(f"buffer_store_dwordx4 {vr(d)}, v3, s[28:31], s56 offen {g.o.get('outflag','')}")
    if g.o['prof']:
        a("s_waitcnt vmcnt(0)")
        g.stamp(8)
    if g.o.get('probe') is not None:
        k = g.o['probe']
        if k == 'min':
            k = 0
            srd(g, 28, 24, 256)
            a("buffer_load_dword v5, off, s[28:31], 0 offset:4 sc1\ns_waitcnt vmcnt(0) lgkmcnt(0)\nv_readfirstlane_b32 s70, v5\ns_nop 3\ns_not_b32 s70, s70")
        a(f"s_waitcnt lgkmcnt(0)\ns_add_u32 s55, s{70+2*k}, 6000\nL_probe:\ns_memrealtime s[56:57]\ns_waitcnt lgkmcnt(0)\ns_sub_u32 s56, s56, s55\ns_cmp_lt_i32 s56, 0\ns_cbranch_scc1 L_probe\ns_endpgm")
    prof_dump(g, 0, 0)
    a("s_endpgm")


def stash_setup(g, a, v):
    a(f"v_lshrrev_b32 v{v}, 5, v0\nv_bfe_u32 v{v+1}, v0, 4, 1\nv_lshlrev_b32 v{v}, 3, v{v}\nv_lshl_add_u32 v{v}, v{v+1}, 4, v{v}\nv_bfe_u32 v{v+1}, v0, 3, 1\nv_add_u32 v{v}, v{v}, v{v+1}")
    a(f"s_sub_u32 s33, s{S_WAVE}, 4\ns_lshl_b32 s35, s33, 12\ns_lshl_b32 s47, s{S_CB}, 8\ns_add_u32 s35, s35, s47\ns_lshl_b32 s47, s{S_KH}, 7\ns_add_u32 s35, s35, s47")
    a(f"v_and_b32 v{v+1}, 7, v0\nv_lshlrev_b32 v{v+1}, 4, v{v+1}\nv_lshl_add_u32 v{v}, v{v}, 11, v{v+1}\nv_add_u32 v{v}, s35, v{v}")
    a(f"s_mul_i32 s33, s33, {BLK}\ns_add_u32 s33, s33, {P2B+P2A}\nv_lshl_add_u32 v{v+1}, v0, 4, s33\nv_add_u32 v{v+2}, {2*P2SLOT}, v{v+1}")


def stash_loads(g, v, sr):
    return [(f"s_mov_b32 s47, {k<<16}", f"buffer_load_dwordx4 {vr(ST0+4*k)}, v{v}, s[{sr}:{sr+3}], s47 offen") for k in range(32)]


NOSW = [False]
def stash_write(a, v, n):
    if NOSW[0]: return
    sl = (n + 1) % 4
    for kk in range(2):
        a(f"ds_write_b128 v{v+1+(sl>>1)}, {vr(ST0+4*(2*(n-28)+kk))} offset:{(sl&1)*P2SLOT+kk*UNIT}")


def loader(g):
    def a(x):
        if not g.o.get('trace'): return g.a(x)
        for ln in x.split("\n"):
            g.a(ln)
            if ln.strip() == "s_barrier":
                g.a("s_memrealtime s[100:101]\ns_waitcnt lgkmcnt(0)\ns_mov_b32 m0, s44\ns_add_u32 s44, s44, 1\nv_writelane_b32 v32, s100, m0\ns_cmp_lg_u32 s44, 33\ns_cbranch_scc1 1\nv_mov_b32 v33, v32")
    if g.o.get('trace'): a("s_mov_b32 s44, 0\nv_mov_b32 v32, 0\nv_mov_b32 v33, 0")
    LW = 45
    if g.o.get('lprio'): a(f"s_setprio {g.o['lprio']}")
    a(f"s_sub_u32 s{LW}, s{S_WAVE}, 4")
    a("v_lshrrev_b32 v1, 5, v0\nv_bfe_u32 v2, v0, 4, 1\nv_lshlrev_b32 v1, 4, v1\nv_lshl_add_u32 v1, v2, 2, v1\nv_bfe_u32 v2, v0, 3, 1\nv_add_u32 v1, v1, v2")
    a(f"s_lshl_b32 s61, s{LW}, 3\nv_add_u32 v1, s61, v1\nv_and_b32 v2, 7, v0\nv_lshlrev_b32 v2, 4, v2")
    a(f"s_lshl_b32 s61, s{S_MB8}, 19\nv_lshl_add_u32 v4, v1, 11, v2\nv_add_u32 v4, s61, v4\nv_add_u32 v5, {4096-BLK}, v4")
    a(f"s_movk_i32 s60, 6144\ns_cmp_ge_u32 s{S_C}, 2\ns_cselect_b32 s60, 7168, s60")
    a(f"s_cselect_b32 s61, 0, 2048\ns_lshl_b32 s62, s{S_PAIR}, 7\ns_add_u32 s61, s61, s62")
    a(f"v_mul_u32_u24 v6, 6144, v1\nv_add3_u32 v6, v6, v2, s61\nv_add_u32 v7, {12288-BLK}, v6")
    a(f"s_mul_i32 s63, s{S_QD}, 7\ns_lshl_b32 s64, s{S_C}, 1\ns_add_u32 s64, s64, s63\ns_sub_u32 s65, s64, 2\ns_lshl_b32 s65, s65, 7\ns_add_u32 s62, s62, 4096")
    a(f"s_cmp_ge_u32 s{S_C}, 2\ns_cselect_b32 s61, s65, s62")
    a(f"v_mul_lo_u32 v8, v1, s60\nv_add3_u32 v8, v8, v2, s61\ns_lshl_b32 s62, s60, 1\ns_sub_u32 s62, s62, {BLK}\nv_add_u32 v9, s62, v8")
    a(f"s_sub_u32 s64, s64, 1\ns_add_u32 s65, s63, s{S_C}\ns_cmp_ge_u32 s{S_C}, 2\ns_cselect_b32 s61, s64, s65\ns_lshl_b32 s61, s61, 7")
    a(f"v_mul_u32_u24 v10, 7168, v1\nv_add3_u32 v10, v10, v2, s61\nv_add_u32 v11, {14336-BLK}, v10")
    a("v_bfe_u32 v12, v0, 4, 1\nv_bfe_u32 v13, v0, 3, 1\nv_lshlrev_b32 v12, 2, v12\nv_lshl_add_u32 v12, v13, 3, v12\nv_bfe_u32 v13, v0, 1, 2\nv_add_u32 v12, v12, v13")
    a(f"s_lshl_b32 s61, s{LW}, 4\nv_add_u32 v12, s61, v12\nv_mul_u32_u24 v12, 7168, v12\nv_and_b32 v13, 1, v0\nv_lshl_add_u32 v12, v13, 4, v12")
    a(f"s_add_u32 s61, s63, 6\ns_lshl_b32 s61, s61, 7\ns_lshl_b32 s62, s{S_C}, 5\ns_add_u32 s61, s61, s62\nv_add_u32 v12, s61, v12")
    a("s_lshl_b32 s60, s60, 5")
    a(f"s_mul_i32 s66, s{LW}, {2*BLK}")
    a(f"s_mov_b32 s61, s66\ns_lshl_b32 s62, s{S_PHI}, 7\ns_mov_b32 s63, 0\ns_lshl_b32 s64, s{S_PHI}, 1\ns_add_u32 s65, s66, {WBASE}")
    a(f"s_add_u32 s67, s66, {XRING}\ns_add_u32 s68, s66, {WBASE+4*WSLOT}")
    a(f"s_lshl_b32 s69, s{LW}, 9\ns_sub_u32 s69, s69, s66\ns_add_u32 s69, s69, {3*UNIT}")
    a(f"s_mov_b32 s30, {hex(2048*1024*2)}\ns_mov_b32 s31, 0x20000\ns_mov_b32 s50, {hex(1024*3072*2)}\ns_mov_b32 s51, 0x20000")
    a(f"s_mov_b32 s58, {hex(1024*3584*2)}\ns_mov_b32 s59, 0x20000\ns_mov_b32 s55, 0x20000")
    a("s_waitcnt lgkmcnt(0)")
    a("s_mov_b64 s[28:29], s[4:5]\ns_mov_b64 s[48:49], s[6:7]\ns_mov_b64 s[56:57], s[12:13]")
    a(f"s_cmp_ge_u32 s{S_C}, 2")
    a("s_cselect_b64 s[52:53], s[12:13], s[6:7]\ns_cselect_b32 s54, s58, s50")

    def xhalf():
        a("s_mov_b32 m0, s61\ns_add_u32 s46, s62, s63")
        for u in range(4):
            if u: a(f"s_add_u32 m0, m0, {UNIT}\ns_add_u32 s46, s46, 0x10000")
            a("buffer_load_dwordx4 v4, s[28:31], s46 offen lds")
            a(f"buffer_load_dwordx4 v5, s[28:31], s46 offen offset:{BLK} lds")
        a(f"s_add_u32 s61, s61, {4*UNIT}\ns_cmp_eq_u32 s61, s67\ns_cselect_b32 s61, s66, s61")
        a("s_xor_b32 s63, s63, 0x40000\ns_cselect_b32 s47, 0, 128\ns_add_u32 s62, s62, s47\ns_and_b32 s62, s62, 2047")

    def wslab():
        for ln, (sr, ld) in enumerate([(48, 32 * 6144), (52, "s60"), (56, 32 * 7168)]):
            a(f"s_add_u32 m0, s65, {ln*UNIT}\ns_mul_i32 s35, s64, {ld}")
            a(f"buffer_load_dwordx4 v{6+2*ln}, s[{sr}:{sr+3}], s35 offen lds")
            a(f"buffer_load_dwordx4 v{7+2*ln}, s[{sr}:{sr+3}], s35 offen offset:{BLK} lds")
        a("s_add_u32 m0, s65, s69\ns_mov_b32 exec_hi, 0")
        a("buffer_load_dwordx4 v12, s[56:59], s35 offen lds")
        a("s_mov_b32 exec_hi, -1")
        a(f"s_add_u32 s65, s65, {WSLOT}\ns_cmp_eq_u32 s65, s68\ns_cselect_b32 s65, s67, s65")
        a("s_add_u32 s64, s64, 1\ns_and_b32 s64, s64, 31")

    g.stamp(1)
    xhalf(); wslab(); xhalf(); wslab(); g.stamp(2)
    a("s_waitcnt vmcnt(7)"); g.stamp(3)
    a("s_barrier")
    xhalf(); wslab(); xhalf(); wslab(); xhalf(); g.stamp(4)
    NU = 19
    a(f"s_mov_b32 s34, {27-NU}")
    a("L_l1:")
    a("s_waitcnt vmcnt(30)\ns_barrier")
    wslab(); xhalf()
    a("s_sub_u32 s34, s34, 1\ns_cmp_lg_u32 s34, 0\ns_cbranch_scc1 L_l1")
    srd(g, SRD_WS, 26, 0x10000000)
    a(f"s_mov_b32 s10, {hex(1024*1024*2)}\ns_mov_b32 s11, 0x20000")
    a(f"s_mov_b64 s[12:13], s[14:15]\ns_mov_b32 s14, {hex(3584*1024*2)}\ns_mov_b32 s15, 0x20000")
    a("v_lshrrev_b32 v1, 5, v0\nv_bfe_u32 v3, v0, 4, 1\nv_lshlrev_b32 v1, 3, v1\nv_lshl_add_u32 v1, v3, 4, v1\nv_bfe_u32 v3, v0, 3, 1\nv_add_u32 v1, v1, v3")
    a(f"s_lshl_b32 s4, s{LW}, 2\nv_add_u32 v1, s4, v1")
    a(f"s_lshl_b32 s4, s{S_CB}, 8\ns_lshl_b32 s5, s{S_KH}, 7\ns_add_u32 s4, s4, s5")
    a("v_lshl_add_u32 v14, v1, 11, v2\nv_add_u32 v14, s4, v14\nv_xor_b32 v16, 128, v14")
    a(f"v_add_u32 v15, {4096-BLK}, v14\nv_add_u32 v17, {4096-BLK}, v16")
    a(f"s_lshl_b32 s5, s{S_MB8}, 19\ns_sub_u32 s4, s4, s5")
    a(f"v_add_u32 v24, s4, v4\nv_xor_b32 v26, 128, v24\nv_add_u32 v25, {4096-BLK}, v24\nv_add_u32 v27, {4096-BLK}, v26")
    lane_goodcol(g, 18, 19)
    a(f"s_lshl_b32 s4, s{S_MB16}, 15\ns_lshl_b32 s5, s{LW}, 14\ns_add_u32 s4, s4, s5\nv_add_u32 v18, s4, v18\nv_add_u32 v19, 3072, v18")
    lane_h(g, 21, 22, 17)
    stash_setup(g, a, 28)
    a(f"s_and_b32 s4, s32, 1\ns_mul_i32 s4, s4, 14\ns_mul_i32 s6, s{S_KH}, 28\ns_sub_u32 s5, 14, s4\ns_add_u32 s4, s4, s6\ns_add_u32 s5, s5, s6")
    a("s_lshl_b32 s6, s4, 17\ns_lshl_b32 s7, s5, 17\ns_lshl_b32 s4, s4, 19\ns_lshl_b32 s5, s5, 19")
    a(f"s_lshl_b32 s16, s{LW}, 13")
    t0 = 27 - NU
    vm = VM(a, [('I', t0 - 3)] * 15 + [('I', t0 - 2)] * 15 + [('I', t0 - 1)] * 15)
    order = [(0, x) for x in ORD1] + [(1, x) for x in ORD1] + [(0, x) for x in ORD2] + [(1, x) for x in ORD2]
    slot = lambda n: P2B + ((n + 1) % 4) * P2SLOT

    def astage(n):
        a(f"s_add_u32 m0, s16, {slot(n)}")
        if n < 28: a(f"s_add_u32 s47, s{4+order[n][0]}, {order[n][1]<<19}")
        else: a(f"s_mov_b32 s47, {((n+28) if not g.o.get('fixD') else 56+(n&1))<<19}")
        for k in range(2):
            if k: a(f"s_add_u32 m0, m0, 4096\ns_add_u32 s47, s47, 8192")
            for mt in range(2):
                for kk in range(2):
                    vm.op(f"buffer_load_dwordx4 v{18+mt}, {W}, s47 offen offset:{mt*1024+kk*2048} {g.o.get('aflag','sc1')} lds", n)

    def wstage(n):
        vb = 24 if order[n][1] % 7 == 6 else 14
        for ln in range(2):
            for kk in range(2):
                a(f"s_add_u32 m0, s66, {slot(n)+P2A+(ln*2+kk)*UNIT}")
                a(f"s_add_u32 s47, s{6+order[n][0]}, {(order[n][1]<<17)+(kk<<16)}")
                for jb in range(2):
                    vm.op(f"buffer_load_dwordx4 v{vb+2*ln+jb}, s[12:15], s47 offen offset:{jb*BLK} lds", n)

    sl = stash_loads(g, 28, 8)
    for t in range(t0, 27):
        vm.wait(('I', t - 3)); a("s_barrier")
        wslab(); xhalf(); vm.mark(('I', t), 15)
        for _ in range(2):
            if sl: pre, op = sl.pop(0); a(pre); vm.op(op, 'st')
    assert not sl
    vm.wait(('I', 25)); a("s_barrier")
    wslab(); vm.mark(('I', 27), 7)
    vm.wait(('I', 26)); a("s_barrier")
    wstage(0)
    vm.wait(('I', 27)); a("s_barrier")
    a("s_barrier")
    wstage(1)
    a("s_barrier")
    g.stamp(5)
    l0, l1 = g.lab("pp"), g.lab("pp")
    iss = lambda r: a(f"buffer_load_dword v{r}, v21, {W}, s17 offen sc1")
    iss(40)
    wstage(2)
    iss(41)
    wstage(3)
    a(f"s_mov_b32 s35, {SPIN}\n{l0}:")
    for r in range(3):
        iss(40 + (r + 2) % 3)
        a(f"s_waitcnt vmcnt(2)\nv_cmp_ne_u32 vcc, 1, v{40+r}\ns_nop 1\ns_and_b32 s33, vcc_lo, 0xffff\ns_cbranch_scc0 {l1}\ns_sleep {g.o.get('psleep', 3)}")
    a(f"s_sub_u32 s35, s35, 1\ns_cbranch_scc0 {l0}\n{l1}:")
    vm.q = [3, 'p']
    g.stamp(7)
    if g.o['prof']: a(f"s_sub_u32 s88, {SPIN}, s35")
    astage(0); astage(1)
    a(f"s_cmp_ge_u32 s{S_C}, 2\ns_cbranch_scc1 L_l_nog1\ns_barrier\nL_l_nog1:")
    vm.wait(0); a("s_barrier")
    astage(2); astage(3)
    for n in range(1, 43):
        vm.wait(n)
        if n > 26: a(f"s_waitcnt lgkmcnt({2 if n <= 41 else 0})")
        a("s_barrier")
        m = n + 3
        if m < 44:
            if not (m >= 28 and g.o.get('noad')): astage(m)
            if m >= 28: stash_write(a, 28, m)
            if m < 28: wstage(m)
    vm.wait(43)
    prof_dump(g, 4, 1)
    if g.o.get('trace'):
        a(f"s_cmp_lg_u32 s{S_WAVE}, 4\ns_cbranch_scc1 L_exit\ns_lshl_b32 s33, s2, 9\ns_add_u32 s33, s33, {WS_PROF+0x20000}\nv_lshlrev_b32 v5, 2, v0")
        a(f"buffer_store_dword v33, v5, {W}, s33 offen\nbuffer_store_dword v32, v5, {W}, s33 offen offset:256")
    a("s_endpgm")


def helper(g):
    a = g.a
    a("L_helper:")
    HW = 45
    def bars(n):
        for _ in range(n): a("s_barrier")
    a(f"s_sub_u32 s{HW}, s{S_WAVE}, 6")
    a("v_lshlrev_b32 v4, 4, v0\nv_lshlrev_b32 v5, 2, v0\nv_mov_b32 v6, 0\nv_mov_b32 v7, 1\nv_lshlrev_b32 v8, 7, v0")
    a(f"s_getpc_b64 s[96:97]\nL_pc:\ns_sub_u32 s96, s96, L_pc-{NAME}\ns_subb_u32 s97, s97, 0")
    a(f"s_mov_b32 s98, L_codeend-{NAME}\ns_mov_b32 s99, 0x20000")
    a(f"s_lshl_b32 s100, s30, 1\ns_add_u32 s100, s100, s{HW}\ns_lshl_b32 s100, s100, 11")
    def codepf():
        a("s_mov_b64 exec, 0xffff\nbuffer_load_dword v9, v8, s[96:99], s100 offen\ns_mov_b64 exec, -1")
    codepf()
    a(f"s_lshl_b32 s46, s{S_KH}, 3\ns_add_u32 s46, s46, s{S_CB}\ns_lshl_b32 s47, s{S_MB16}, 4\ns_add_u32 s46, s46, s47")
    a("s_waitcnt lgkmcnt(0)")
    srd(g, SRD_WS, 26, 0x10000000)
    srd(g, 48, 24, 256)
    srd(g, 28, 4, 2048 * 1024 * 2)
    a(f"s_cmp_lg_u32 s{HW}, 0\ns_cbranch_scc1 L_h_noinit")
    for r in range(12, 16): a(f"v_mov_b32 v{r}, -1")
    a(f"s_cmp_ge_u32 s{S_C}, 2\ns_cbranch_scc1 L_h_i1\ns_cmp_ge_u32 s{S_MB8}, 6\ns_cbranch_scc1 L_h_i1")
    a(f"s_mul_i32 s47, s{S_PAIR}, 6144\ns_lshl_b32 s33, s{S_MB8}, 10\ns_add_u32 s47, s47, s33\ns_add_u32 s47, s47, {WS_KVF}")
    a(f"buffer_store_dwordx4 v[12:15], v4, {W}, s47 offen sc1")
    a("L_h_i1:")
    a(f"s_lshl_b32 s47, s2, 11\ns_add_u32 s47, s47, {WS_FLAG}\ns_mov_b64 exec, 0xffff")
    a(f"buffer_store_dword v6, v8, {W}, s47 offen sc1")
    a(f"s_mov_b32 exec_lo, 0xff\ns_lshl_b32 s47, s46, 5\ns_add_u32 s47, s47, {WS_FLAG+F_G}")
    a(f"buffer_store_dword v12, v5, {W}, s47 offen sc1")
    a("s_waitcnt vmcnt(0)\ns_mov_b32 exec_lo, 1")
    a(f"s_lshl_b32 s47, s{S_XCD}, 5")
    a("buffer_atomic_add v7, v6, s[48:51], s47 offen sc1")
    if g.o.get('probe') == 'min': a("s_not_b32 s47, s70\nv_mov_b32 v12, s47\nbuffer_atomic_umax v12, v6, s[48:51], 0 offen offset:4 sc1")
    a("s_mov_b64 exec, -1")
    a("L_h_noinit:")
    srd(g, 52, 6, 1024 * 3072 * 2)
    srd(g, 56, 12, 1024 * 3584 * 2)
    srd(g, 60, 14, 3584 * 1024 * 2)
    srd(g, 64, 8, 1024 * 1024 * 2)
    a("v_lshlrev_b32 v10, 11, v0")
    a(f"s_lshl_b32 s68, s{HW}, 8\ns_add_u32 s68, s68, s2\ns_mov_b32 s69, s68\ns_mov_b32 s34, 0")
    lead = g.o.get('lead', 1)
    a("s_branch L_h1go\nL_h1:")
    if g.o.get('pf1'):
        l1, lx, lq = g.lab("pf"), g.lab("pf"), g.lab("pf")
        a(f"s_add_u32 s47, s34, {lead}\ns_mul_i32 s47, s47, 68\ns_cmp_ge_u32 s68, s47\ns_cbranch_scc1 {l1}")
        a(f"s_mul_hi_u32 s47, s68, {(2**32+135)//136}\ns_mul_i32 s33, s47, 136\ns_sub_u32 s33, s68, s33\ns_add_u32 s47, s47, 2\ns_add_u32 s68, s68, 512")
        a(f"s_cmp_ge_u32 s47, 16\ns_cbranch_scc1 {l1}")
        a(f"s_cmp_lt_u32 s33, 32\ns_cbranch_scc1 {lx}\ns_cmp_lt_u32 s33, 80\ns_cbranch_scc1 {lq}")
        a(f"s_mul_i32 s47, s47, 56\ns_add_u32 s47, s47, s33\ns_sub_u32 s47, s47, 80\ns_lshl_b32 s47, s47, 13\nbuffer_load_dword v9, v8, s[56:59], s47 offen\ns_branch {l1}")
        a(f"{lq}:\ns_mul_i32 s47, s47, 48\ns_add_u32 s47, s47, s33\ns_sub_u32 s47, s47, 32\ns_lshl_b32 s47, s47, 13\nbuffer_load_dword v9, v8, s[52:55], s47 offen\ns_branch {l1}")
        a(f"{lx}:\ns_lshl_b32 s47, s47, 7\ns_lshl_b32 s33, s33, 17\ns_add_u32 s47, s47, s33\nbuffer_load_dword v9, v10, s[28:31], s47 offen")
        a(f"{l1}:")
    if g.o['pfw']:
        p0, pr = g.o.get('pfw0', 14), g.o.get('pfwr', 80)
        l1, lo = g.lab("pf"), g.lab("pf")
        a(f"s_sub_u32 s47, s34, {p0}\ns_cbranch_scc1 {l1}\ns_mul_i32 s47, s47, {pr}\ns_cmp_ge_u32 s69, s47\ns_cbranch_scc1 {l1}")
        a(f"s_lshl_b32 s47, s69, 13\ns_add_u32 s69, s69, 512\ns_cmp_ge_u32 s47, {256*8192}\ns_cbranch_scc1 {lo}")
        a(f"buffer_load_dword v9, v8, s[64:67], s47 offen\ns_branch {l1}")
        a(f"{lo}:\ns_sub_u32 s47, s47, {256*8192}\nbuffer_load_dword v9, v8, s[60:63], s47 offen")
        a(f"{l1}:")
    a("s_setpc_b64 s[50:51]")
    a("L_h1go:\ns_getpc_b64 s[48:49]\nL_pc2:\ns_sub_u32 s48, s48, L_pc2-L_h1\ns_subb_u32 s49, s49, 0")
    stash_setup(g, a, 20)
    sl = stash_loads(g, 20, 64)
    a("L_h1l:\ns_swappc_b64 s[50:51], s[48:49]\ns_barrier")
    a("s_add_u32 s34, s34, 1\ns_cmp_lg_u32 s34, 9\ns_cbranch_scc1 L_h1l")
    for t in range(9, 29):
        a("s_swappc_b64 s[50:51], s[48:49]\ns_barrier\ns_add_u32 s34, s34, 1")
        if t == g.o.get('cpf1', 23): codepf()
        if t == 25:
            srd(g, 92, 24, 256)
            a("v_lshlrev_b32 v15, 5, v0")
            iss0 = lambda: a("buffer_load_dword v14, v15, s[92:95], 0 offen sc1")
            iss0()
        if t == 27: poll_check(g, iss0, 14, 8, 32, "gt")
        for _ in range(2):
            if sl: pre, op = sl.pop(0); a(pre); a(op)
    def stash(sl, k):
        for _ in range(k):
            pre, op = sl.pop(0); a(pre); a(op)
    def dtail():
        for n in range(25, 41):
            a("s_waitcnt lgkmcnt(2)\ns_barrier")
            stash_write(a, 20, n + 3)
        a("s_barrier\ns_waitcnt lgkmcnt(0)")
    a(f"s_cmp_lg_u32 s{HW}, 0\ns_cbranch_scc1 L_h_one")
    a("v_lshlrev_b32 v13, 3, v0")
    bars(3)
    lane_h(g, 11, 12, 52)
    a(f"s_xor_b32 s53, s52, 0x800\ns_add_u32 s54, s52, {F_H2}\ns_xor_b32 s55, s54, 0x800")
    a("v_and_b32 v12, 1, v0\nv_lshlrev_b32 v12, 7, v12\nv_bfe_u32 v16, v0, 1, 1\nv_lshl_add_u32 v12, v16, 16, v12\nv_bfe_u32 v16, v0, 2, 1\nv_lshl_add_u32 v12, v16, 18, v12")
    a(f"v_bfe_u32 v16, v0, 3, 2\nv_lshl_add_u32 v12, v16, 11, v12\ns_andn2_b32 s56, s52, 0x1800\ns_add_u32 s56, s56, {F_X + (2<<16)}")
    a(f"s_lshl_b32 s57, s{S_MB16}, 9\ns_add_u32 s57, s57, {WS_FLAG+F_G}")
    bars(1)
    a(f"s_cmp_ge_u32 s{S_C}, 2\ns_cbranch_scc1 L_h_nog1\ns_barrier\nL_h_nog1:")
    def gate(soff, areg, nl, before):
        iss = lambda: a(f"buffer_load_dword v14, v{areg}, {W}, s{soff} offen sc1")
        ok = g.lab("gate")
        bars(before)
        a(f"buffer_load_dword v18, v{areg}, {W}, s{soff} offen sc1")
        bars(1); iss(); bars(1)
        a(f"s_waitcnt vmcnt(1)\nv_cmp_ne_u32 vcc, 1, v18\ns_nop 1\ns_and_b32 s33, vcc_lo, {hex((1<<nl)-1)}\ns_cbranch_scc0 {ok}")
        poll_check(g, iss, 14, nl, 1)
        a(f"{ok}:")
    gate(53, 11, 16, 3)
    g.stamp(1)
    gate(54, 11, 16, 6)
    g.stamp(2)
    if g.o.get('cpf2', 1): codepf()
    gate(55, 11, 16, 4)
    g.stamp(3)
    iss = lambda: a(f"buffer_load_dwordx2 v[16:17], v13, {W}, s57 offen sc1")
    iss()
    bars(2)
    poll_check(g, iss, 14, 64, -1, "eq", lambda: a("v_max_u32 v14, v16, v17"))
    a(f"v_add_u32 v13, {LDS_G}, v13\nds_write_b64 v13, v[16:17]")
    gate(56, 12, 32, 2)
    g.stamp(4)
    dtail()
    prof_dump(g, 6, 2)
    a("s_endpgm")
    a("L_h_one:")
    bars(2)
    srd(g, 52, 16, 2048)
    a("s_lshl_b32 s47, s46, 14")
    for hf in range(2): a(f"buffer_load_dwordx4 {vr(24+4*hf)}, v4, s[52:55], 0 offen offset:{hf*1024}")
    for r in range(8):
        for hf in range(2): a(f"buffer_load_dwordx4 {vr(40+8*r+4*hf)}, v4, s[28:31], s47 offen offset:{(r&1)*2048+hf*1024}")
        if r & 1: a("s_add_u32 s47, s47, 4096")
    for r in range(32, 40): a(f"v_mov_b32 v{r}, 0")
    bars(2)
    a("s_waitcnt vmcnt(0)")
    for k in range(8):
        for r in range(8): a(f"v_dot2_f32_bf16 v{32+r}, v{40+8*r+k}, v{24+k}, v{32+r}")
    a("s_nop 1")
    for pat in ["quad_perm:[1,0,3,2] row_mask:0xf", "quad_perm:[2,3,0,1] row_mask:0xf", "row_half_mirror row_mask:0xf", "row_mirror row_mask:0xf",
                "row_bcast:15 row_mask:0xa", "row_bcast:31 row_mask:0xc"]:
        for r in range(32, 40): a(f"v_add_f32_dpp v{r}, v{r}, v{r} {pat} bank_mask:0xf")
    for r in range(8): a(f"v_readlane_b32 s{52+r}, v{32+r}, 63")
    a("s_nop 1")
    for r in range(8): a(f"v_writelane_b32 v16, s{52+r}, {r}")
    a("s_nop 0\nv_mul_f32 v16, 0xbfb8aa3b, v16\nv_exp_f32 v16, v16\ns_nop 0\nv_add_f32 v16, 1.0, v16\nv_rcp_f32 v16, v16")
    a(f"s_lshl_b32 s47, s46, 5\ns_add_u32 s47, s47, {WS_FLAG+F_G}\ns_mov_b64 exec, 0xff")
    a(f"buffer_store_dword v16, v5, {W}, s47 offen sc1\ns_mov_b64 exec, -1")
    a(f"s_cmp_ge_u32 s{S_C}, 2\ns_cbranch_scc1 L_h1_q\ns_cmp_ge_u32 s{S_MB8}, 6\ns_cbranch_scc1 L_h1_idle")
    a(f"v_and_b32 v12, 3, v0\nv_lshlrev_b32 v12, 7, v12\nv_bfe_u32 v13, v0, 2, 3\nv_lshl_add_u32 v12, v13, 13, v12")
    a(f"s_andn2_b32 s54, s2, 0x1c\ns_lshl_b32 s54, s54, 11\ns_add_u32 s54, s54, {WS_FLAG+F_X}")
    H1 = g.o['h1']
    bars(1)
    gate(54, 12, 32, H1 + 1)
    a(f"s_mul_i32 s47, s{S_PAIR}, {8*12288}\ns_lshl_b32 s46, s{S_MB8}, 11\ns_add_u32 s47, s47, s46\ns_add_u32 s47, s47, {WS_KVP}")
    for m in range(8):
        for dt in range(2): a(f"buffer_load_dwordx4 {vr(32+(m*2+dt)*4)}, v4, {W}, s47 offen offset:{dt*1024} sc1")
        if m < 7: a("s_add_u32 s47, s47, 12288")
    bars(2)
    a("s_waitcnt vmcnt(0)")
    for st in (32, 16, 8):
        for r in range(st): a(f"v_add_f32 v{32+r}, v{32+r}, v{32+st+r}")
    for r in range(4): a(f"v_cvt_pk_bf16_f32 v{32+r}, v{32+2*r}, v{33+2*r}")
    a(f"s_mul_i32 s47, s{S_PAIR}, 6144\ns_lshl_b32 s46, s{S_MB8}, 10\ns_add_u32 s47, s47, s46\ns_add_u32 s47, s47, {WS_KVF}")
    a(f"buffer_store_dwordx4 v[32:35], v4, {W}, s47 offen sc1")
    bars(13 - (H1 + 5))
    if g.o.get('cpf2', 1): codepf()
    bars(12)
    a("s_branch L_h1_tail")
    a("L_h1_idle:")
    bars(14)
    if g.o.get('cpf2', 1): codepf()
    bars(12)
    a("s_branch L_h1_tail")
    a("L_h1_q:")
    K1 = g.o['k1']
    a(f"s_mul_i32 s55, s{S_PAIR}, 6144\ns_add_u32 s55, s55, {WS_KVF}\ns_add_u32 s56, s55, 4096\nv_add_u32 v12, {P2END}, v4")
    def kvf_issue():
        for f in range(6): a(f"buffer_load_dwordx4 {vr(32+4*f)}, v4, {W}, s{55+(f>>2)} offen offset:{(f&3)*1024} sc1")
    def kvf_max():
        a("v_max_u32 v14, v32, v33")
        for r in range(34, 56, 2): a(f"v_max3_u32 v14, v14, v{r}, v{r+1}")
    bars(K1 - 2)
    kvf_issue()
    bars(2)
    poll_check(g, kvf_issue, 14, 64, -1, "eq", kvf_max)
    for f in range(6): a(f"ds_write_b128 v12, {vr(32+4*f)} offset:{f*1024}")
    if g.o.get('cpf2', 1): codepf()
    a("s_waitcnt lgkmcnt(0)")
    bars(25 - K1)
    a("L_h1_tail:\ns_waitcnt vmcnt(0)")
    dtail()
    a("s_endpgm")


HEADER = open("gated_mix__linear_attn_block__dense_activation_relu__prompt.s.ref").read().split("; Override")[0] \
    if __name__ == "__main__" else ""


def build(**opt):
    g = G(**opt)
    NOSW[0] = g.o.get('nosw', False)
    g.L.append(f"; @launch grid=(256,1,1) block=(512,1,1) lds={LDS_TOTAL}")
    g.a(f'.amdgcn_target "amdgcn-amd-amdhsa--gfx950"\n.text\n.globl {NAME}\n.p2align 8\n.type {NAME},@function\n{NAME}:')
    prologue(g)
    loader(g)
    helper(g)
    compute(g)
    g.a("L_exit:\ns_endpgm\nL_codeend:")
    g.L.append(f""".section .rodata,"a"
.p2align 6
.amdhsa_kernel {NAME}
  .amdhsa_next_free_vgpr 256
  .amdhsa_next_free_sgpr 102
  .amdhsa_accum_offset 256
  .amdhsa_group_segment_fixed_size 0
  .amdhsa_kernarg_size 80
  .amdhsa_user_sgpr_count 2
  .amdhsa_user_sgpr_kernarg_segment_ptr 1
  .amdhsa_system_sgpr_workgroup_id_x 1
.end_amdhsa_kernel""")
    return g.text()


if __name__ == "__main__":
    out = sys.argv[1]
    opt = {}
    for kv in sys.argv[2:]:
        k, v = kv.split("=")
        opt[k] = eval(v)
    open(out, "w").write(HEADER + build(**opt))
```

```python
import sys

NAME = "gated_mix__linear_attn_block__dense_activation_relu__prompt_kernel"

WS_HO = 0
WS_PART = 0x3000000
WS_KVP = 0x2400000
WS_KVF = 0x2580000
WS_FLAG = 0x2600000
F_H1, F_H2, F_X, F_P = 0, 512, 1024, 1536
F_G = 0x80000
F_RDY = 0x90000
WS_PROF = 0x2700000
WS_W2C = 0x2800000
ORD1 = [0, 1, 2, 4, 7, 8, 9, 11]
ORD2 = [3, 5, 10, 12, 6, 13]

UNIT = 4224; BLK = 1056
XSLOT = 8 * UNIT
XRING = 3 * XSLOT
WSLOT = 3 * UNIT + 1024
WBASE = XRING
LDS_G = 163328
P2SLOT = 4 * UNIT
NSL = 8
P2END = NSL * P2SLOT
LDS_TOTAL = 163840

SPIN = 100000


class G:
    def __init__(self, **opt):
        self.L = []
        self.o = dict(prof=False, krot=False, pfw=True, pf1=True, lead=7, pfs0=0, hdel=4, pfw0=2, pfwr=54, early2=0, late=(4, 4, 4), sp0=22, spn=2, swin=4, noc=2, qprio=2, k1=7, k0=5, h1=2, ypace=(1,2,1,2,1,1,0,0), e1=17, e2=20, e2b=22, e3=27, cpf1=24, cpf2=1, odens=3, b16=True, ddens=3, psp=30, d1=7, d2=10, d2b=12, d3=16)
        self.o.update(opt)
        self.uid = 0
        self.info = {}
        self.st = {'since': 0}

    def a(self, s):
        for ln in s.split("\n"):
            ln = ln.strip()
            if ln:
                self.L.append(ln if ln.endswith(":") or ln.startswith(".") else "    " + ln)

    def lab(self, p):
        self.uid += 1
        return f"L_{p}_{self.uid}"

    def stamp(self, n):
        if self.o['prof'] == 'min' and n not in (0, 8): return
        if self.o['prof']:
            self.a(f"{'s_memtime' if self.o['prof']=='cyc' else 's_memrealtime'} s[{70+2*n}:{71+2*n}]")

    def text(self):
        return "\n".join(self.L) + "\n"


class VM:
    def __init__(self, a, init=()):
        self.a = a; self.q = list(init)
    def op(self, text, tag):
        self.a(text); self.q.append(tag)
        assert len(self.q) <= 63, "vmcnt overflow"
    def mark(self, tag, n):
        self.q += [tag] * n
        assert len(self.q) <= 63, "vmcnt overflow"
    def wait(self, *tags):
        k = max([i for i, t in enumerate(self.q) if t in tags], default=-1)
        if k >= 0:
            self.a(f"s_waitcnt vmcnt({len(self.q)-1-k})"); self.q = self.q[k + 1:]


def vr(b, n=4):
    return f"v[{b}:{b+n-1}]"


def mfma(d, a, b, c=None):
    return f"v_mfma_f32_16x16x32_bf16 {vr(d)}, {vr(a)}, {vr(b)}, {vr(d) if c is None else c}"


S_WAVE, S_MB8, S_QD, S_C, S_PAIR, S_RH, S_CB, S_KH, S_PHI, S_XCD = 3, 36, 37, 38, 39, 40, 41, 42, 43, 44
SRD_WS = 20


def srd(g, d, base, nbytes):
    g.a(f"s_mov_b32 s{d}, s{base}\ns_mov_b32 s{d+1}, s{base+1}\ns_mov_b32 s{d+2}, {hex(nbytes)}\ns_mov_b32 s{d+3}, 0x20000")


def prof_dump(g, wave, row):
    if not g.o['prof'] or g.o.get('probe') is not None or (row and (g.o['prof'] == 'min' or g.o.get('trace'))): return
    a = g.a
    l = g.lab("pd")
    a(f"s_waitcnt lgkmcnt(0)\ns_cmp_lg_u32 s{S_WAVE}, {wave}\ns_cbranch_scc1 {l}")
    a(f"s_lshl_b32 s33, s2, 6\ns_add_u32 s33, s33, {WS_PROF + row*16384}\nv_mov_b32 v5, 0")
    for n in range(16):
        a(f"v_mov_b32 v6, s{70+2*n}\nbuffer_store_dword v6, v5, s[{SRD_WS}:{SRD_WS+3}], s33 offen offset:{4*n}\ns_nop 1")
    a(f"{l}:")


def prologue(g):
    a = g.a
    a("s_cmp_ge_u32 s2, 256\ns_cbranch_scc1 L_exit")
    if g.o['prof']:
        for n in range(70, 102): a(f"s_mov_b32 s{n}, 0")
    g.stamp(0)
    a("s_load_dwordx16 s[4:19], s[0:1], 0")
    a("s_load_dwordx4 s[24:27], s[0:1], 64")
    a("v_lshrrev_b32 v1, 6, v0\nv_and_b32 v0, 63, v0")
    a(f"s_and_b32 s{S_XCD}, s2, 7\ns_lshr_b32 s30, s2, 3")
    a(f"v_readfirstlane_b32 s{S_WAVE}, v1")
    a(f"s_lshr_b32 s31, s{S_XCD}, 2\ns_and_b32 s32, s{S_XCD}, 3")
    a(f"s_and_b32 s33, s30, 3\ns_lshl_b32 s{S_MB8}, s31, 2\ns_add_u32 s{S_MB8}, s{S_MB8}, s33")
    a("s_lshr_b32 s33, s30, 2")
    a(f"s_lshr_b32 s34, s33, 2\ns_lshl_b32 s{S_QD}, s32, 1\ns_add_u32 s{S_QD}, s{S_QD}, s34")
    a(f"s_and_b32 s{S_C}, s33, 3")
    a(f"s_and_b32 s34, s33, 1\ns_lshl_b32 s{S_PAIR}, s{S_QD}, 1\ns_add_u32 s{S_PAIR}, s{S_PAIR}, s34")
    a(f"s_and_b32 s{S_RH}, s32, 1")
    a(f"s_mov_b32 s{S_CB}, s33")
    a(f"s_lshr_b32 s{S_KH}, s32, 1")
    if g.o['krot']:
        a(f"s_lshl_b32 s34, s31, 1\ns_add_u32 s34, s34, s32\ns_lshl_b32 s34, s34, 2\ns_and_b32 s{S_PHI}, s34, 15")
    else:
        a(f"s_mov_b32 s{S_PHI}, 0")
    a(f"s_cmp_lt_u32 s{S_WAVE}, 4\ns_cbranch_scc1 L_compute")
    a(f"s_cmp_ge_u32 s{S_WAVE}, 6\ns_cbranch_scc1 L_helper")


W = f"s[{SRD_WS}:{SRD_WS+3}]"


def lane_goodcol(g, d, t):
    g.a(f"v_lshrrev_b32 v{d}, 4, v0\nv_and_b32 v{t}, 15, v0\nv_lshlrev_b32 v{t}, 4, v{t}\nv_lshl_add_u32 v{d}, v{d}, 9, v{t}")


def lane_h(g, d, t, so):
    g.a(f"v_bfe_u32 v{d}, v0, 2, 3\nv_and_b32 v{t}, 3, v0\nv_lshlrev_b32 v{t}, 7, v{t}\nv_lshl_add_u32 v{d}, v{d}, 16, v{t}")
    g.a(f"s_and_b32 s{so}, s2, 31\ns_lshl_b32 s{so}, s{so}, 11\ns_add_u32 s{so}, s{so}, {WS_FLAG}")


def poll_check(g, issue, reg, nl, val, cmp="ne", pre=None):
    a = g.a
    l0, l1 = g.lab("poll"), g.lab("pollok")
    a(f"s_mov_b32 s35, {SPIN}\n{l0}:\ns_waitcnt vmcnt(0)")
    if pre: pre()
    a(f"v_cmp_{cmp}_u32 vcc, {val}, v{reg}\ns_nop 1")
    if nl == 64: a("s_cmp_lg_u64 vcc, 0")
    else: a(f"s_and_b32 s33, vcc_lo, {hex((1<<nl)-1)}")
    a(f"s_cbranch_scc0 {l1}")
    a(f"s_sub_u32 s35, s35, 1\ns_cbranch_scc1 {l1}")
    if g.o.get('psleep'): a(f"s_sleep {g.o['psleep']}")
    issue()
    a(f"s_branch {l0}\n{l1}:")


def setflags(g, one, *soffs):
    g.a("s_mov_b64 exec, 1")
    for so in soffs: g.a(f"buffer_store_dword v{one}, off, {W}, s{so} sc1")
    g.a("s_mov_b64 exec, -1")


VX, VW, VQ = 1, 2, 3
WB = lambda n: 8 + 4 * (n % 4)
XLO = lambda b, i: 24 + 8 * b + 4 * i
XHI = lambda i: 40 + 4 * (i - 2)
AC = lambda j, i: 48 + (j * 4 + i) * 4


PERM = {True: [8, 9, 10, 11, 0, 1, 2, 3, 12, 4, 5, 6, 7], False: [4, 5, 6, 7, 8, 9, 10, 11, 12, 0, 1, 2, 3]}


def p1_wread(t, j, n):
    slot = (t % 4) * WSLOT
    if j < 12:
        return [f"ds_read_b64_tr_b16 v[{WB(n)+2*w}:{WB(n)+2*w+1}], v{VW} offset:{slot + (j//4)*UNIT + (j%4)*32 + w*256}" for w in range(2)]
    return [f"ds_read_b64_tr_b16 v[{WB(n)+2*w}:{WB(n)+2*w+1}], v{VQ} offset:{slot + w*256}" for w in range(2)]


def p1_xreg(par, i):
    return XLO(par % 2, i) if i < 2 else XHI(i)


def p1_xread(t, i, par, vx=VX):
    return f"ds_read_b128 {vr(p1_xreg(par,i))}, v{vx} offset:{(i>>1)*UNIT + (i&1)*512 + (t%2)*64}"


def pass_order(nt):
    s = [(0, 0), (0, 1), (1, 1), (1, 0), (1, 2), (1, 3), (0, 3), (0, 2)]
    for j in range(2, nt - 2):
        s += [(j, i) for i in ([2, 3, 0, 1] if j % 2 == 0 else [1, 0, 3, 2])]
    u, v = nt - 2, nt - 1
    return s + [(u, 2), (u, 3), (v, 3), (v, 2), (v, 1), (v, 0), (u, 0), (u, 1)]


def p1_mfma(kv, tile, i, wreg, xreg):
    return mfma(AC(tile, i), xreg, wreg) if (kv and tile < 8) else mfma(AC(tile, i), wreg, xreg)


Q0 = [('W', 0, 0), ('W', 0, 0), ('X', 0, 0), ('X', 0, 1), ('W', 0, 1), ('W', 0, 1), ('X', 0, 2), ('X', 0, 3)]


def p1_loop(g, kv):
    a = g.a
    P = PERM[kv]
    L = g.lab("p1")
    seq = []
    for t in range(4):
        s = pass_order(13)
        post = [[] for _ in s]
        rd = lambda j, tt=t: [('W', tt, j, x) for x in p1_wread(tt, P[j], 13 * tt + j)]
        r = rd(2); post[0].append(r[0]); post[1].append(r[1])
        r = rd(3); post[2].append(r[0]); post[3].append(r[1])
        r = rd(4); post[8].append(r[0]); post[9].append(r[1])
        r = rd(5); post[10].append(r[0]); post[11].append(r[1])
        for j in range(3, 10):
            base = 8 + (j - 2) * 4
            r = rd(j + 3); post[base].append(r[0]); post[base + 1].append(r[1])
        b10 = 40
        if t % 2 == 1:
            post[b10 - 2].append(('S', f"s_add_u32 s46, s46, {XSLOT}"))
            post[b10 - 2].append(('S', f"s_cmp_eq_u32 s46, {XRING}"))
            post[b10 - 1].append(('S', f"s_cselect_b32 s47, s48, s49"))
            post[b10 - 1].append(('S', f"s_cselect_b32 s46, 0, s46"))
            post[b10].append(('S', f"v_add_u32 v{VX}, s47, v{VX}"))
        post[b10 + 2].append(('BAR',))
        tn = t + 1
        r0, r1 = rd(0, tn), rd(1, tn)
        post[b10 + 3] += [r0[0], r0[1]]
        post[44] += [('X', tn, 0, p1_xread(tn, 0, tn)), ('X', tn, 1, p1_xread(tn, 1, tn))]
        post[45] += [r1[0]]
        post[46] += [r1[1]]
        post[47] += [('X', tn, 2, p1_xread(tn, 2, tn))]
        post[48] += [('X', tn, 3, p1_xread(tn, 3, tn))]
        if t == 3:
            post[49].append(('S', "s_sub_u32 s45, s45, 1"))
            post[50].append(('S', "s_cmp_lg_u32 s45, 0"))
        for (j, i), p in zip(s, post):
            seq.append(((t, j, i), p))
    for x in p1_wread(0, P[0], 0): a(x)
    a(p1_xread(0, 0, 0)); a(p1_xread(0, 1, 0))
    for x in p1_wread(0, P[1], 1): a(x)
    a(p1_xread(0, 2, 0)); a(p1_xread(0, 3, 0))
    q = list(Q0)
    a(f".p2align 6\n{L}:")
    for (t, j, i), p in seq:
        need = [k for k, e in enumerate(q) if e == ('W', t, j) or e == ('X', t, i)]
        if need:
            k = max(need)
            a(f"s_waitcnt lgkmcnt({len(q)-1-k})")
            q = q[k + 1:]
        a(p1_mfma(kv, P[j], i, WB(13 * t + j), p1_xreg(t, i)))
        for e in p:
            if e[0] == 'S':
                a(e[1])
            elif e[0] == 'BAR':
                a("s_waitcnt lgkmcnt(0)\ns_barrier"); q = []
            else:
                a(e[3]); q.append((e[0], e[1] % 4, e[2]))
    assert q == Q0
    a(f"s_cbranch_scc1 {L}")


def p1_tail(g, kv, extra, extra2, flag):
    a = g.a
    P = PERM[kv]
    a(f"v_add_u32 v5, {(-2*XSLOT) & 0xffffffff}, v{VX}")
    passes = [(t, grp) for grp in (P[:4], P[4:9], P[9:]) for t in range(28, 32)]
    M = []; start = []; n0 = 0; last = {}
    reads = []
    for p, (t, tiles) in enumerate(passes):
        start.append(len(M))
        o = pass_order(len(tiles))
        base = len(M)
        for j, tile in enumerate(tiles):
            first = base + min(k for k, e in enumerate(o) if e[0] == j)
            if not (p == 0 and j < 2):
                for x in p1_wread(t, tile, n0 + j):
                    reads.append(dict(key=('W', p, j), text=x, after=last.get(WB(n0 + j), -1), first=first, t=t))
            last[WB(n0 + j)] = base + max(k for k, e in enumerate(o) if e[0] == j)
        for i in range(4):
            first = base + min(k for k, e in enumerate(o) if e[1] == i)
            if p > 0:
                reads.append(dict(key=('X', p, i), text=p1_xread(t, i, p, VX if t < 30 else 5), after=max(last.get(p1_xreg(p, i), -1), first - 14), first=first, t=t))
            last[p1_xreg(p, i)] = base + max(k for k, e in enumerate(o) if e[1] == i)
        for (j, i) in o:
            M.append((p, j, i, p1_mfma(kv, tiles[j], i, WB(n0 + j), p1_xreg(p, i))))
        n0 += len(tiles)
    V1, V2 = start[1] + 3, start[2] + 5
    R1, R2 = start[10] - 3, len(M) - 5
    for r in reads:
        if r['t'] == 30: r['after'] = max(r['after'], V1)
        if r['t'] == 31: r['after'] = max(r['after'], V2)
    reads.sort(key=lambda r: r['first'])
    q = list(Q0); since = 0; nst2 = 0
    dens = g.o.get('tdens', 3)
    def wait(pred):
        nonlocal q
        need = [k for k, e in enumerate(q) if pred(e)]
        if need:
            a(f"s_waitcnt lgkmcnt({len(q)-1-max(need)})"); q = q[max(need) + 1:]
            return 1
        return 0
    for k, (p, j, i, txt) in enumerate(M):
        assert not [r for r in reads if r['first'] <= k], "read scheduled too late"
        w = wait(lambda e: e == ('W', p, j) or e == ('X', p, i))
        a(txt); since += 1 + w
        used = 0
        if k in (V1, V2): a("s_barrier"); used += 1
        if k in (R1, R2):
            lim = 9 if k == R1 else 11
            assert not [r for r in reads if r['key'][1] <= lim]
            used += 1 + wait(lambda e: e[1] <= lim); a("s_barrier")
        nr = 0
        while used < 2:
            c = [r for r in reads if r['after'] <= k]
            if not c or (nr and c[0]['first'] - k > 9): break
            a(c[0]['text']); q.append(c[0]['key']); reads.remove(c[0]); used += 1; nr += 1
        since += used
        if k == start[8] + g.o.get('fpos', 10):
            a(f"s_waitcnt vmcnt({nst2})\n" + flag); used += 2
        if k == start[8] + 3:
            assert not extra
            extra = extra2; dens = g.o.get('tdens2', 3); nst2 = 0
        if k >= start[4] + 3:
            while used < dens and extra:
                if extra[0] is None: break
                x = extra.pop(0)
                if g.o.get('tnost') and x.startswith("buffer_store"): continue
                a(x); used += 2 if x.startswith("v_exp") else 1
                if x.startswith("buffer_store"): nst2 += 1
    return extra


def h_cvt(d, a0, a1):
    src = [a0, a0 + 2] + ([a1, a1 + 2] if a1 is not None else [])
    return [f"v_cvt_pk_bf16_f32 v{d+r}, v{x}, v{x+1}" for r, x in enumerate(src)] + [f"v_pk_max_i16 v{d+r}, v{d+r}, 0" for r in range(len(src))]


def h_line_store(j0, soff):
    o = []
    for i in (2, 3, 0, 1):
        o.append(f"s_add_u32 s56, s{soff}, {4096*i}")
        for p in range(2):
            d = AC(j0 + 2 * p, i)
            o += h_cvt(d, d, AC(j0 + 2 * p + 1, i))
            o.append(f"buffer_store_dwordx4 {vr(d)}, v7, {W}, s56 offen offset:{p*2048} sc1")
    return o


def phi_regs(regs, tmp):
    o = [f"v_mul_f32 v{tmp+k}, s50, v{r}" for k, r in enumerate(regs)]
    for k, r in enumerate(regs): o += [f"v_exp_f32 v{tmp+k}, v{tmp+k} clamp", f"v_max_f32 v{r}, s51, v{r}"]
    return o + [f"v_add_f32 v{r}, v{r}, v{tmp+k}" for k, r in enumerate(regs)]


def pack8(d, e):
    return [f"v_cvt_pk_bf16_f32 v{d}, v{d}, v{d+1}", f"v_cvt_pk_bf16_f32 v{d+1}, v{d+2}, v{d+3}",
            f"v_cvt_pk_bf16_f32 v{d+2}, v{e}, v{e+1}", f"v_cvt_pk_bf16_f32 v{d+3}, v{e+2}, v{e+3}"]


def flagops(one, *soffs):
    return "s_mov_b64 exec, 1\n" + "".join(f"buffer_store_dword v{one}, off, {W}, s{so} sc1\n" for so in soffs) + "s_mov_b64 exec, -1"


VA0, VW2, VA1, VWD = 1, 2, 3, 5
ORD = ORD1 + ORD2
AB = lambda u, i: (24, 112, 96, 72)[u % 4] + 4 * i
ACC = lambda j, i: 128 + (j * 4 + i) * 4
JORD = [4, 5, 6, 7, 0, 1, 2, 3]
NS = 10
ADP = [24, 32, ACC(5, 2), ACC(7, 2), 112, 120, ACC(1, 2), ACC(3, 2), ACC(4, 2), ACC(6, 2), ACC(0, 2), ACC(2, 2)]
AD = lambda n, kk, mi: ADP[2 * (n % 6) + kk] + 4 * mi
WD = lambda k: 40 + 4 * k
ACD = lambda s, mi: (8, 72)[s >> 1] + ((s & 1) * 2 + mi) * 4
PQ = lambda i, h: AC(2 * h, i)
PP = lambda p, f: ((ACC(4, 0), ACC(6, 0)), (ACC(4, 2), ACC(6, 2)), (96, 104))[p - 1][f >> 1] + 4 * (f & 1)
VFL, VPO, GG, VG, VOUT, SEL0 = 2, 3, ACC(5, 0), ACC(5, 1), ACC(5, 1) + 1, 88
slot2 = lambda m: ((m + 2) % NSL) * P2SLOT


def c_wread(n):
    u, j = n // 8, JORD[n % 8]
    return [(('W', n), f"ds_read_b64_tr_b16 v[{WB(n)+2*w}:{WB(n)+2*w+1}], v{VW2} offset:{((j>>2)*2+(u&1))*UNIT + (j&3)*32 + w*256}") for w in range(2)]


def c_loads(u, vm):
    o = []
    if u % 2 == 0: o += [f"s_add_u32 s54, s46, {ORD[u//2]<<19}", f"s_add_u32 s53, s46, {(ORD[u//2]<<19)+4096}"]
    for i in range(4):
        o.append((f"buffer_load_dwordx4 {vr(AB(u,i))}, v{VA1 if i>>1 else VA0}, {W}, s{53 if i&1 else 54} offen offset:{(u&1)*2048} sc1", vm, ('A', u)))
    return o


def u_slot(v):
    return slot2(NS + (v % 8) // 2) if v < 16 else slot2(14 + (v - 16) // 2)


def u_reads(v):
    o = []
    for k in range(8):
        if v < 16: j = JORD[k]; off = ((j >> 2) * 2 + (v & 1)) * UNIT + (j & 3) * 32
        else: off = ((v & 1) * 2 + (k >> 2)) * UNIT + (k & 3) * 32
        o += [(('U', v, k >> 1), f"ds_read_b64_tr_b16 v[{WD(k)+2*w}:{WD(k)+2*w+1}], v{VWD} offset:{off + w*256}") for w in range(2)]
    return o


def u_areg(v, k, mi):
    return AB(2 * NS + v // 2, 2 * (v & 1) + mi) if v < 16 else AD(v - 16, k >> 2, mi)


def u_loads(v, vm):
    if v < 16:
        ln = ORD[NS + (v % 8) // 2]
        o = [f"s_add_u32 s54, s46, {ln<<19}", f"s_add_u32 s53, s46, {(ln<<19)+4096}"] if v % 2 == 0 else []
        return o + [(f"buffer_load_dwordx4 {vr(u_areg(v,0,mi))}, v{VA1 if v < 8 else VA0}, {W}, s{54-mi} offen offset:{(v&1)*2048} sc1", vm, ('B', v, 0)) for mi in range(2)]
    o = [f"s_mov_b32 s54, {(40+v)<<19}", f"s_mov_b32 s53, {((40+v)<<19)+4096}"]
    for kk in range(2):
        for mi in range(2): o.append((f"buffer_load_dwordx4 {vr(AD(v-16,kk,mi))}, v{VA0}, {W}, s{54-mi} offen offset:{kk*2048} sc1", vm, ('B', v, kk)))
    return o


class Stage:
    def __init__(self, g, q, extra, dens):
        self.g = g; self.q = list(q); self.extra = extra; self.dens = dens; self.carry = 0
    def a(self, x):
        self.g.a(x); self.g.st['since'] += 1
    def wait(self, key):
        need = [k for k, e in enumerate(self.q) if key is None or e == key]
        if need:
            n = min(14, len(self.q) - 1 - max(need))
            self.a(f"s_waitcnt lgkmcnt({n})"); self.q = self.q[len(self.q) - n:]
    def read(self, r):
        self.a(r[1]); self.q.append(r[0])
    def op(self, x):
        if isinstance(x, tuple): x[1].op(x[0], x[2]); self.g.st['since'] += 1
        else: self.a(x)
    def fill(self, used):
        ex, st = self.extra, self.g.st
        while used < self.dens and ex:
            if isinstance(ex[0], int):
                if st['since'] >= ex[0]: ex.pop(0); continue
                return
            if ex[0] == 'XW':
                if 'x' in self.q: return
                ex.pop(0); continue
            x = ex.pop(0)
            if callable(x): x(); used += 2; st['since'] = 0; continue
            if isinstance(x, tuple): x[1].op(x[0], x[2]); x = x[0]
            else: self.g.a(x)
            if x.startswith("ds_"): self.q.append('x')
            st['since'] = 0
            used = 0 if x.startswith("v_mfma") else used + (2 if x.startswith(("v_exp", "v_rcp")) else 1)


def c_slab(g, u, vm, q, extra=None, dens=2):
    S = Stage(g, q, extra, dens)
    UL = 2 * NS - 1
    ld = c_loads(u + 3, vm) if u + 3 <= UL else u_loads(2 * (u + 2 - UL), vm) + u_loads(2 * (u + 2 - UL) + 1, vm)
    dr = u_reads(0) if u == UL else []
    vm.wait(('A', u))
    for jj in range(8):
        n = 8 * u + jj
        R = c_wread(n + 3) if n + 3 < 16 * NS else []
        for k, i in enumerate(range(4) if jj % 2 == 0 else range(3, -1, -1)):
            S.wait(('W', n))
            S.a(mfma(ACC(JORD[jj], i), WB(n), AB(u, i), "0" if u == 0 else None))
            used = 1 if k == 3 else 0
            if R: S.read(R.pop(0)); used += 1
            if u % 2 == 1 and u < UL and jj == 4 and k == 2:
                S.a(f"v_add_u32 v{VW2}, {(slot2(u//2+1)-slot2(u//2)) & 0xffffffff}, v{VW2}"); S.a("s_barrier"); used = 2
            elif u == UL and jj == 1 and k == 2:
                S.a(f"v_add_u32 v{VWD}, {(slot2(NS)-slot2(NS-1)) & 0xffffffff}, v{VW2}"); S.a("s_barrier"); used = 2
            elif dr and jj >= 2 and used < 2 and (k >= 2 or jj >= 5):
                S.read(dr.pop(0)); used += 1
            if ld and used < 2 and (k == 2 or isinstance(ld[0], str)):
                S.op(ld.pop(0)); used += 1
            S.fill(used)
    assert not ld and not dr
    return S.q


def unit(g, v, vm, q, extra, dens=2):
    S = Stage(g, q, extra, dens)
    R = u_reads(v + 1) if v < 31 else []
    ld = u_loads(v + 6, vm) if v < 10 else u_loads(v + 5, vm) if 11 <= v < 27 else []
    m = 0
    for k in range(8):
        if k % 4 == 0: vm.wait(('B', v, k >> 2))
        for mi in ((0, 1) if k % 2 == 0 else (1, 0)):
            S.wait(('U', v, k >> 1))
            acc = ACC(JORD[k], mi + (2 if v < 8 else 0)) if v < 16 else ACD(k & 3, mi)
            S.a(mfma(acc, WD(k), u_areg(v, k, mi), "0" if (v == 16 and k < 4) else None))
            used = 1 if m % 4 == 3 else 0
            if R and m == 0:
                if u_slot(v + 1) != u_slot(v): S.a(f"v_add_u32 v{VWD}, {(u_slot(v+1)-u_slot(v)) & 0xffffffff}, v{VWD}"); used += 1
                if (v % 4 == 3 if v < 16 else v % 2 == 1): S.a("s_barrier"); used += 1
            elif R:
                S.read(R.pop(0)); used += 1
                if m == 15: S.read(R.pop(0))
            if ld and m in (1, 2, 4, 6, 9, 13):
                S.op(ld.pop(0)); used += 1
            S.fill(used)
            m += 1
    assert not R and not ld
    return S.q


def spaced(lst, n):
    o = []
    for x in lst: o += [x, n]
    return o


def strs(ex):
    return [x for x in ex if not isinstance(x, int)]


def compute(g):
    a = g.a
    a("L_compute:")
    a("v_and_b32 v4, 15, v0\nv_lshrrev_b32 v5, 4, v0")
    a("v_bfe_u32 v6, v4, 3, 1\nv_bfe_u32 v7, v4, 1, 1\nv_lshl_add_u32 v6, v6, 1, v7")
    a(f"v_mul_u32_u24 v{VX}, {BLK}, v6")
    a("v_bfe_u32 v6, v4, 2, 1\nv_and_b32 v7, 1, v4\nv_lshl_add_u32 v6, v6, 1, v7")
    a(f"v_lshl_add_u32 v{VX}, v6, 7, v{VX}\nv_lshl_add_u32 v{VX}, v5, 4, v{VX}")
    a(f"s_mul_i32 s45, s{S_WAVE}, {2*UNIT}\nv_add_u32 v{VX}, s45, v{VX}")
    a("v_and_b32 v6, 1, v5\nv_bfe_u32 v7, v4, 3, 1\nv_lshl_add_u32 v6, v6, 1, v7")
    a(f"v_mul_u32_u24 v{VW}, {BLK}, v6")
    a("v_lshrrev_b32 v6, 1, v5\nv_bfe_u32 v7, v4, 2, 1\nv_lshl_add_u32 v6, v6, 2, v7")
    a(f"v_lshl_add_u32 v{VW}, v6, 7, v{VW}\nv_and_b32 v6, 3, v4\nv_lshl_add_u32 v{VW}, v6, 3, v{VW}")
    a(f"v_add_u32 v{VW}, {WBASE}, v{VW}")
    a(f"v_lshrrev_b32 v6, 5, v0\nv_and_b32 v7, 31, v0\nv_lshlrev_b32 v7, 3, v7\nv_lshl_add_u32 v{VQ}, v6, 9, v7")
    a(f"v_add_u32 v{VQ}, {WBASE+3*UNIT}, v{VQ}")
    for r in range(48, 256): a(f"v_mov_b32 v{r}, 0")
    a(f"s_mov_b32 s45, 7\ns_mov_b32 s46, 0\ns_mov_b32 s48, {(-2*XSLOT) & 0xffffffff}\ns_mov_b32 s49, {XSLOT}")
    a("s_mov_b32 s50, 0x3fb8aa3b\ns_mov_b32 s51, 0x358637bd")
    a(f"s_lshl_b32 s52, s{S_MB8}, 16\ns_lshl_b32 s53, s{S_WAVE}, 14\ns_add_u32 s52, s52, s53")
    a(f"s_mul_i32 s53, s{S_QD}, 7")
    a(f"s_add_u32 s66, s53, 6\ns_lshl_b32 s66, s66, 19\ns_add_u32 s66, s66, s52")
    a(f"s_lshr_b32 s55, s{S_C}, 1\ns_lshl_b32 s55, s55, 11\ns_add_u32 s66, s66, s55")
    a(f"s_and_b32 s55, s{S_C}, 1\ns_lshl_b32 s55, s55, 10\ns_add_u32 s66, s66, s55")
    a("s_add_u32 s67, s66, 8192")
    a(f"s_lshr_b32 s57, s{S_WAVE}, 1\ns_and_b32 s58, s{S_WAVE}, 1")
    a(f"s_lshl_b32 s59, s2, 11\ns_lshl_b32 s55, s{S_WAVE}, 7\ns_add_u32 s59, s59, s55\ns_add_u32 s59, s59, {WS_FLAG}")
    a(f"s_add_u32 s60, s59, {F_H2}\ns_add_u32 s61, s59, {F_X}")
    a("v_lshlrev_b32 v4, 4, v0\nv_mov_b32 v6, 1")
    lane_goodcol(g, 7, 5)
    a("s_waitcnt lgkmcnt(0)")
    srd(g, SRD_WS, 26, 0x10000000)
    if g.o.get('prio'): a(f"s_setprio {g.o['prio']}")
    a("s_barrier")
    g.stamp(1)

    def em(lst):
        for x in lst: a(x)
    def first_loads(vm):
        a(f"s_lshl_b32 s55, s{S_RH}, 13\ns_xor_b32 s47, s55, 8192\ns_add_u32 s55, s55, s52\ns_add_u32 s47, s47, s52\nv_add_u32 v{VA0}, s55, v7\nv_add_u32 v{VA1}, s47, v7")
        a(f"s_mul_i32 s46, s32, {14<<19}\nv_add_u32 v{VW2}, {(slot2(0)-WBASE) & 0xffffffff}, v{VW2}")
        g.stamp(9)
        a("s_barrier")
        g.stamp(10)
        for x in c_loads(0, vm) + c_loads(1, vm):
            if isinstance(x, tuple): vm.op(x[0], x[2])
            else: a(x)
    def c_begin(vm):
        g.stamp(4)
        a("s_waitcnt lgkmcnt(0)")
        for x in c_loads(2, vm):
            if isinstance(x, tuple): vm.op(x[0], x[2])
            else: a(x)
        a("s_barrier")
        g.stamp(5)
        R = c_wread(0) + c_wread(1) + c_wread(2)
        for _, x in R: a(x)
        return [k for k, _ in R]
    def flag_ex(vm, tag, so):
        return lambda: (vm.wait(tag), a(flagops(6, so)), vm.mark('f', 1))
    def quarter(tmp):
        o = [f"v_bfe_u32 v{VQ}, v0, 4, 1", f"v_mul_u32_u24 v{VQ}, 3584, v{VQ}", f"v_lshrrev_b32 v{tmp}, 5, v0", f"v_lshlrev_b32 v{tmp}, 9, v{tmp}",
             f"v_sub_u32 v{VQ}, v{VQ}, v{tmp}", f"v_add_u32 v{VQ}, v{VQ}, v7"]
        for p in (1, 0):
            d = AC(12, 2 * p)
            o += h_cvt(d, d, d + 4)
        for p in (1, 0):
            d = AC(12, 2 * p)
            o += [f"s_nop 1\nv_permlane16_swap_b32 v{d}, v{d+2}", f"v_permlane16_swap_b32 v{d+1}, v{d+3}",
                  f"buffer_store_dwordx4 {vr(d)}, v{VQ}, {W}, s{66+p} offen sc1"]
        return o

    a(f"s_cmp_ge_u32 s{S_C}, 2\ns_cbranch_scc1 L_cq")
    a(f"s_add_u32 s55, s53, s{S_C}\ns_lshl_b32 s55, s55, 19\ns_add_u32 s55, s55, s52")
    p1_loop(g, True)
    SEL = lambda t: 224 + 4 * t
    T = lambda t: (176 + 4 * t) if t < 4 else (208 + 4 * (t - 4)) if t < 8 else 204
    ex2 = ["v_and_b32 v201, 3, v0", "v_mov_b32 v202, 0x3f803f80"]
    for t in range(4):
        ex2 += [f"v_cmp_eq_u32 vcc, {t}, v201\ns_nop 1\nv_cndmask_b32 v{SEL(t)}, 0, v202, vcc"] + [f"v_mov_b32 v{SEL(t)+r}, v{SEL(t)}" for r in (1, 2, 3)]
    ex2 += quarter(200)
    for s_ in range(4):
        for p in range(2):
            ex2 += phi_regs(list(range(AC(s_, 2 * p), AC(s_, 2 * p) + 8)), 192) + pack8(AC(s_, 2 * p), AC(s_, 2 * p + 1))
        if s_ == 1: ex2.append(None)
    rest = p1_tail(g, True, h_line_store(8, 55), ex2, flagops(6, 59))
    g.stamp(2)
    k = rest.index(None)
    em(rest[:k]); rest = rest[k + 1:]
    for s_ in range(4, 8):
        for p in (1, 0): em(pack8(AC(s_, 2 * p), AC(s_, 2 * p + 1)))
    def kv_mfmas(h):
        o = []
        for p in range(2):
            for dt in range(2):
                for e in range(2): o.append(mfma(T((h * 2 + e) * 2 + dt), AC(2 * h + dt, 2 * p), AC(4 + 2 * h + e, 2 * p), "0" if p == 0 else None))
                o.append(mfma(T(8), AC(2 * h + dt, 2 * p), SEL(2 * h + dt), "0" if (h, p, dt) == (0, 0, 0) else None))
        return o
    def hand(k):
        l0, l1 = g.lab("own"), g.lab("own")
        a(f"s_sub_u32 s55, s{S_WAVE}, {k+1}\ns_and_b32 s55, s55, 3\ns_cmp_eq_u32 s55, 3\ns_cbranch_scc1 {l0}")
        a(f"s_lshl_b32 s55, s55, 11\ns_add_u32 s55, s55, {P2END+k*6144}\nv_add_u32 v5, s55, v4")
        a(f"ds_write_b128 v5, {vr(T(2*k))}\nds_write_b128 v5, {vr(T(2*k+1))} offset:1024\ns_branch {l1}\n{l0}:")
        for r in range(8): a(f"v_mov_b32 v{40+r}, v{T(2*k)+r}")
        a(f"{l1}:")
    for x in kv_mfmas(0):
        a(x); em(rest[:3]); rest = rest[3:]
    vm = VM(a, ['h2'])
    em(rest[:12]); hand(0); em(rest[12:40]); hand(1); first_loads(vm); em(rest[40:])
    a("s_nop 1")
    em(kv_mfmas(1))
    a(f"s_lshl_b32 s56, s{S_PAIR}, 3\ns_add_u32 s56, s56, s{S_MB8}\ns_mul_i32 s56, s56, 9216\ns_add_u32 s56, s56, {WS_KVP}")
    a(f"s_add_u32 s62, s56, 8192\ns_cmp_eq_u32 s{S_WAVE}, 0\ns_cselect_b32 s62, s62, 0x10000000\ns_lshl_b32 s55, s{S_WAVE}, 11\ns_add_u32 s56, s56, s55")
    hand(2); hand(3)
    a(f"s_lshl_b32 s55, s{S_WAVE}, 10\nv_add_u32 v89, {P2END+24576}, v4\nv_add_u32 v5, s55, v89\nds_write_b128 v5, {vr(T(8))}")
    a(f"s_mul_i32 s55, s{S_WAVE}, 6144\ns_add_u32 s55, s55, {P2END}\nv_add_u32 v88, s55, v4")
    g.stamp(3)
    q = c_begin(vm)
    ex = [flag_ex(vm, 'h2', 60)]
    ex += [f"ds_read_b128 {vr(48+4*t)}, v88 offset:{t*1024}" for t in range(6)] + ['XW']
    ex += [f"v_add_f32 v{40+r}, v{40+r}, v{48+r}" for r in range(8)] + [f"v_add_f32 v{64+r}, v{64+r}, v{56+r}" for r in range(8)]
    ex += [f"ds_read_b128 {vr(48+4*t)}, v89 offset:{t*1024}" for t in range(4)]
    ex += [f"v_add_f32 v{40+r}, v{40+r}, v{64+r}" for r in range(8)]
    ex += [(f"buffer_store_dwordx4 {vr(40+4*t)}, v4, {W}, s56 offen offset:{t*1024} sc1", vm, 'kv') for t in range(2)] + ['XW']
    ex += [f"v_add_f32 v{48+r}, v{48+r}, v{56+r}" for r in range(8)] + [f"v_add_f32 v{48+r}, v{48+r}, v{52+r}" for r in range(4)]
    ex += [(f"buffer_store_dwordx4 v[48:51], v4, {W}, s62 offen sc1", vm, 'kv')]
    JU = 3
    for u in range(JU): q = c_slab(g, u, vm, q, ex)
    assert not ex
    qj, vj = list(q), [x for x in vm.q if x not in ('kv', 'f')]
    a("s_branch L_c2join")
    a("L_cq:")
    a(f"s_lshl_b32 s55, s{S_C}, 1\ns_add_u32 s55, s55, s53\ns_sub_u32 s55, s55, 2\ns_lshl_b32 s55, s55, 19\ns_add_u32 s55, s55, s52")
    a("s_add_u32 s62, s55, 0x80000")
    p1_loop(g, False)
    em(p1_tail(g, False, h_line_store(4, 55), h_line_store(8, 62) + quarter(AC(5, 0)), flagops(6, 59)))
    g.stamp(2)
    vm = VM(a, ['h2'])
    hand_q = []
    for h in range(2):
        for i in (2, 3, 0, 1): hand_q.append(pack8(AC(2 * h, i), AC(2 * h + 1, i)) + [f"ds_write_b128 v5, {vr(PQ(i,h))} offset:{(i*2+h)*1024}"])
    a(f"s_lshl_b32 s55, s{S_WAVE}, 13\nv_add_u32 v5, s55, v4")
    phg = g.o.get('phig', 4)
    for x in hand_q[:phg]: em(x)
    first_loads(vm)
    for x in hand_q[phg:]: em(x)
    g.stamp(3)
    q = c_begin(vm)
    ex = [flag_ex(vm, 'h2', 60)]
    for u in range(JU): q = c_slab(g, u, vm, q, ex)
    assert not ex and q == qj and [x for x in vm.q if x != 'f'] == vj
    a("L_c2join:")
    vm.q = list(vj)
    pre = (f"s_lshl_b32 s68, s2, 17\ns_lshl_b32 s56, s{S_WAVE}, 13\ns_add_u32 s68, s68, s56\n" +
           "".join(f"s_xor_b32 s{61+p}, s68, {hex(p<<17)}\ns_add_u32 s{61+p}, s{61+p}, {WS_PART+((p-1)<<15)}\ns_add_u32 s{64+p}, s{61+p}, 4096\n" for p in (1, 2, 3)) +
           f"s_add_u32 s68, s68, {WS_PART}\ns_add_u32 s59, s59, {F_P}\ns_andn2_b32 s60, s59, 0x1800\n"
           f"s_mov_b32 s28, s18\ns_mov_b32 s29, s19\ns_mov_b32 s30, {hex(2048*1024*2)}\ns_mov_b32 s31, 0x20000\n"
           f"s_lshl_b32 s55, s52, 3\ns_lshl_b32 s56, s{S_RH}, 16\ns_add_u32 s55, s55, s56\n"
           f"s_lshl_b32 s56, s{S_CB}, 8\ns_add_u32 s55, s55, s56\ns_lshl_b32 s56, s{S_KH}, 7\ns_add_u32 s55, s55, s56\n"
           f"s_lshl_b32 s50, s{S_WAVE}, 7\ns_add_u32 s50, s50, {LDS_G}\n"
           f"v_and_b32 v{SEL0+6}, 15, v0\nv_lshrrev_b32 v{SEL0+7}, 4, v0\nv_lshlrev_b32 v{SEL0+7}, 2, v{SEL0+7}\nv_sub_u32 v{SEL0+6}, v{SEL0+6}, v{SEL0+7}\n"
           f"v_and_b32 v{SEL0+7}, 1, v0\nv_lshlrev_b32 v{SEL0+7}, 4, v{SEL0+7}\nv_mov_b32 v{SEL0}, 0x3f80\nv_lshlrev_b32 v{SEL0+7}, v{SEL0+7}, v{SEL0}\nv_lshrrev_b32 v{SEL0+6}, 1, v{SEL0+6}").split("\n")
    pre += [f"v_cmp_eq_u32 vcc, {k}, v{SEL0+6}\ns_nop 1\nv_cndmask_b32 v{SEL0+2+k}, 0, v{SEL0+7}, vcc" for k in range(2)]
    pre += [f"v_mov_b32 v{SEL0+r}, 0" for r in (0, 1, 4, 5)]
    ex = pre
    for u in range(JU, 2 * NS): q = c_slab(g, u, vm, q, ex)
    def send(p, sp, mi):
        j, i = 4 * (p >> 1) + 2 * sp, 2 * (p & 1) + mi
        return pack8(ACC(j, i), ACC(j + 1, i)) + [(f"buffer_store_dwordx4 {vr(ACC(j,i))}, v7, {W}, s{61+p+3*mi} offen offset:{sp*2048} sc1", vm, ('ps', p == 2))]
    ptxt = f"buffer_load_dword v{VPO}, v{VFL}, {W}, s60 offen sc1"
    def addp(p):
        return [lambda: vm.wait(('pl', p))] + [mfma(ACC(2 * sp + t, mi), SEL0 + 2 - 2 * t, PP(p, mi * 2 + sp)) for mi in range(2) for sp in range(2) for t in range(2)]
    def recv(val, ps):
        ok = g.lab("pok")
        vm.wait('poll')
        a(f"v_cmp_gt_u32 vcc, {val}, v{VPO}\ns_cbranch_vccz {ok}")
        a(ptxt); poll_check(g, lambda: a(ptxt), VPO, 64, val, "gt")
        a(f"{ok}:")
        o = []
        for p in ps:
            for mi in range(2):
                o.append(f"s_add_u32 s56, s68, {((p-1)<<15)+mi*4096}")
                o += [(f"buffer_load_dwordx4 {vr(PP(p,mi*2+sp))}, v7, {W}, s56 offen offset:{sp*2048} sc1", vm, ('pl', p)) for sp in range(2)]
        return o
    E1, E2, E2B, E3 = g.o['e1'], g.o['e2'], g.o['e2b'], g.o['e3']
    D1, D2, D2B, D3 = [16 + g.o[x] for x in ('d1', 'd2', 'd2b', 'd3')]
    for v in range(33):
        if v == 8:
            assert not ex
            snd = [send(p, sp, mi) for p in (3, 1) for sp in range(2) for mi in range(2)]
            sts = [x[4] for x in snd]
            ex += [f"v_and_b32 v{VFL}, 3, v0", f"v_lshlrev_b32 v{VFL}, 11, v{VFL}"]
        if 8 <= v < 12: ex += snd[2 * (v - 8)][:4] + snd[2 * (v - 8) + 1][:4]
        if 8 <= v < 16:
            for _ in range(g.o['ypace'][v - 8]): ex.append(sts.pop(0))
        if v == 16: assert not ex and not sts
        if v == 16:
            g.stamp(6)
            for sp in range(2):
                for mi in range(2): ex += send(2, sp, mi) + [g.o.get('psp', 4)]
            ex += (f"v_and_b32 v{VOUT}, 15, v0\nv_lshl_add_u32 v{VG}, v{VOUT}, 2, s50\nv_lshlrev_b32 v{VOUT}, 11, v{VOUT}\nv_bfe_u32 v{VOUT+1}, v0, 4, 1\n"
                   f"v_lshl_add_u32 v{VOUT}, v{VOUT+1}, 5, v{VOUT}\nv_lshrrev_b32 v{VOUT+1}, 5, v0\nv_lshl_add_u32 v{VOUT}, v{VOUT+1}, 4, v{VOUT}").split("\n")
            ex += [f"ds_read_b32 v{GG+mi}, v{VG} offset:{mi*64}" for mi in range(2)]
        if v == E1: vm.wait(('ps', False)); a(flagops(6, 59)); vm.mark('f', 1); a("v_mov_b32 v6, 2")
        if v == D1:
            assert not [x for x in ex if isinstance(x, tuple) and x[2][0] == 'ps']
            vm.wait(('ps', True)); a(flagops(6, 59)); vm.mark('f', 1)
        if v in (E2, D2): vm.op(ptxt, 'poll')
        if v == E2B:
            assert not [x for x in ex if isinstance(x, tuple) and x[2][0] == 'ps']
            ex += spaced(recv(1, (3, 1)), g.o.get('rsp', 1))
        if v == D2B:
            assert v >= 27
            ex = recv(2, (2,)) + ex
        if v == E3: ex += addp(3) + addp(1)
        if v == D3: ex += addp(2)
        if 8 <= v < 16: chk_ex = ex
        if v < 32: q = unit(g, v, vm, q, ex, dens=g.o.get('ydens', 3) if v < 16 else g.o.get('ddens', 3))
        if 8 <= v < 16: assert not ex
    ex = strs(ex)
    for x in ex:
        if callable(x): x()
        elif isinstance(x, tuple): vm.op(x[0], x[2])
        else: a(x)
    g.stamp(7)
    a("s_waitcnt lgkmcnt(0)\ns_nop 6")
    for mi in range(2):
        for hf in range(2):
            for j in range(2):
                for r in range(4): a(f"v_sub_f32 v{ACD(2*hf+j,mi)+r}, v{ACD(2*hf+j,mi)+r}, v{ACC(2*hf+j,mi)+r}")
            for j in range(2):
                for r in range(4): a(f"v_fmac_f32 v{ACC(2*hf+j,mi)+r}, v{GG+mi}, v{ACD(2*hf+j,mi)+r}")
            d = ACC(2 * hf, mi)
            em(pack8(d, ACC(2 * hf + 1, mi)))
            a(f"s_add_u32 s56, s55, {0x8000*mi + 64*hf}\ns_nop 0\nv_permlane16_swap_b32 v{d}, v{d+2}\nv_permlane16_swap_b32 v{d+1}, v{d+3}")
            a(f"buffer_store_dwordx4 {vr(d)}, v{VOUT}, s[28:31], s56 offen {g.o.get('outflag','')}")
    if g.o['prof']:
        a("s_waitcnt vmcnt(0)")
        g.stamp(8)
    if g.o.get('probe') is not None:
        k = g.o['probe']
        if k == 'min':
            k = 0
            srd(g, 28, 24, 256)
            a("buffer_load_dword v5, off, s[28:31], 0 offset:4 sc1\ns_waitcnt vmcnt(0) lgkmcnt(0)\nv_readfirstlane_b32 s70, v5\ns_nop 3\ns_not_b32 s70, s70")
        a(f"s_waitcnt lgkmcnt(0)\ns_add_u32 s55, s{70+2*k}, 6000\nL_probe:\ns_memrealtime s[56:57]\ns_waitcnt lgkmcnt(0)\ns_sub_u32 s56, s56, s55\ns_cmp_lt_i32 s56, 0\ns_cbranch_scc1 L_probe\ns_endpgm")
    prof_dump(g, 0, 0)
    a("s_endpgm")


def q_call(g, n):
    K1 = g.o['k1']
    k = n if n < 4 else 4 + n - K1 if K1 <= n <= K1 + g.o['noc'] else None
    if k is None: return
    l = g.lab("qc")
    g.a(f"s_cmp_lt_u32 s{S_C}, 2\ns_cbranch_scc1 {l}\ns_call_b64 s[84:85], L_q{k}\n{l}:")


def q_chunks(g):
    a = g.a
    QR = lambda f: 128 + 4 * f
    def phi(f):
        for r in range(4): a(f"v_lshlrev_b32 v{160+2*r}, 16, v{QR(f)+r}\nv_and_b32 v{161+2*r}, 0xffff0000, v{QR(f)+r}")
        for r in range(8): a(f"v_mul_f32 v{168+r}, 0x3fb8aa3b, v{160+r}")
        for r in range(8): a(f"v_exp_f32 v{168+r}, v{168+r} clamp\nv_max_f32 v{160+r}, 0x358637bd, v{160+r}")
        for r in range(8): a(f"v_add_f32 v{160+r}, v{160+r}, v{168+r}")
        for r in range(4): a(f"v_cvt_pk_bf16_f32 v{QR(f)+r}, v{160+2*r}, v{161+2*r}")
    for k in range(4):
        a(f"L_q{k}:")
        if k == 0:
            a(f"s_sub_u32 s86, s{S_WAVE}, 4\ns_lshl_b32 s82, s86, 13\nv_lshl_add_u32 v224, v0, 4, s82")
            for f in range(8): a(f"ds_read_b128 {vr(QR(f))}, v224 offset:{f*1024}")
            a(f"s_lshl_b32 s83, s2, 11\ns_lshl_b32 s82, s86, 7\ns_add_u32 s83, s83, s82\ns_add_u32 s83, s83, {WS_FLAG+F_X}")
            a(f"s_add_u32 s82, s{S_PAIR}, 56\ns_lshl_b32 s82, s82, 3\ns_add_u32 s82, s82, s{S_MB8}\ns_lshl_b32 s82, s82, 2\ns_add_u32 s82, s82, s86\ns_lshl_b32 s82, s82, 14")
            a(f"v_lshlrev_b32 v224, 4, v0\nv_add_u32 v224, {P2END}, v224\nv_mov_b32 v226, 1\ns_waitcnt lgkmcnt(0)")
        phi(2 * k); phi(2 * k + 1)
        a("s_setpc_b64 s[84:85]")
    noc = g.o['noc']
    tiles = {2: [(0, 1), (2, 3)], 3: [(0,), (1, 2), (3,)], 4: [(0,), (1,), (2,), (3,)]}[noc]
    for k in range(noc):
        a(f"L_q{4+k}:")
        if g.o.get('qprio'): a(f"s_setprio {g.o['qprio']}")
        lane_goodcol(g, 225, 227)
        if k == 0:
            for f in range(6): a(f"ds_read_b128 {vr(176+4*f)}, v224 offset:{f*1024}")
            a("s_waitcnt lgkmcnt(0)")
        for i in tiles[k]:
            for h in range(2):
                for e in (2, 0, 1): a(mfma(200 + 12 * h + 4 * e, 176 + 4 * (3 * h + e), QR(2 * i + h), "0"))
            a(f"s_add_u32 s86, s82, {4096*i}\ns_nop 3")
            for h in range(2):
                t = 200 + 12 * h
                a(f"v_add_f32 v{t+8}, 0x358637bd, v{t+8}\nv_rcp_f32 v{t+8}, v{t+8}\ns_nop 0")
                for r in range(8): a(f"v_mul_f32 v{t+r}, v{t+r}, v{t+8}")
                for r in range(4): a(f"v_cvt_pk_bf16_f32 v{QR(2*i+h)+r}, v{t+2*r}, v{t+2*r+1}")
                a(f"buffer_store_dwordx4 {vr(QR(2*i+h))}, v225, {W}, s86 offen offset:{h*2048} sc1")
        if g.o.get('qprio'): a("s_setprio 0")
        a("s_setpc_b64 s[84:85]")
    a(f"L_q{4+noc}:\ns_waitcnt vmcnt(0)\n" + flagops(226, 83) + "\ns_setpc_b64 s[84:85]")


def loader(g):
    def a(x):
        if not g.o.get('trace'): return g.a(x)
        for ln in x.split("\n"):
            g.a(ln)
            if ln.strip() == "s_barrier":
                g.a(("s_memtime" if g.o['trace'] == 'cyc' else "s_memrealtime") + " s[100:101]\ns_waitcnt lgkmcnt(0)\ns_mov_b32 m0, s44\ns_add_u32 s44, s44, 1\nv_writelane_b32 v32, s100, m0\ns_cmp_lg_u32 s44, 33\ns_cbranch_scc1 1\nv_mov_b32 v33, v32")
    if g.o.get('trace'): a("s_mov_b32 s44, 0\nv_mov_b32 v32, 0\nv_mov_b32 v33, 0")
    LW = 45
    if g.o.get('lprio'): a(f"s_setprio {g.o['lprio']}")
    a(f"s_sub_u32 s{LW}, s{S_WAVE}, 4")
    a("v_lshrrev_b32 v1, 5, v0\nv_bfe_u32 v2, v0, 4, 1\nv_lshlrev_b32 v1, 4, v1\nv_lshl_add_u32 v1, v2, 2, v1\nv_bfe_u32 v2, v0, 3, 1\nv_add_u32 v1, v1, v2")
    a(f"s_lshl_b32 s61, s{LW}, 3\nv_add_u32 v1, s61, v1\nv_and_b32 v2, 7, v0\nv_lshlrev_b32 v2, 4, v2")
    a(f"s_lshl_b32 s61, s{S_MB8}, 19\nv_lshl_add_u32 v4, v1, 11, v2\nv_add_u32 v4, s61, v4\nv_add_u32 v5, {4096-BLK}, v4")
    a(f"s_movk_i32 s60, 6144\ns_cmp_ge_u32 s{S_C}, 2\ns_cselect_b32 s60, 7168, s60")
    a(f"s_cselect_b32 s61, 0, 2048\ns_lshl_b32 s62, s{S_PAIR}, 7\ns_add_u32 s61, s61, s62")
    a(f"v_mul_u32_u24 v6, 6144, v1\nv_add3_u32 v6, v6, v2, s61\nv_add_u32 v7, {12288-BLK}, v6")
    a(f"s_mul_i32 s63, s{S_QD}, 7\ns_lshl_b32 s64, s{S_C}, 1\ns_add_u32 s64, s64, s63\ns_sub_u32 s65, s64, 2\ns_lshl_b32 s65, s65, 7\ns_add_u32 s62, s62, 4096")
    a(f"s_cmp_ge_u32 s{S_C}, 2\ns_cselect_b32 s61, s65, s62")
    a(f"v_mul_lo_u32 v8, v1, s60\nv_add3_u32 v8, v8, v2, s61\ns_lshl_b32 s62, s60, 1\ns_sub_u32 s62, s62, {BLK}\nv_add_u32 v9, s62, v8")
    a(f"s_sub_u32 s64, s64, 1\ns_add_u32 s65, s63, s{S_C}\ns_cmp_ge_u32 s{S_C}, 2\ns_cselect_b32 s61, s64, s65\ns_lshl_b32 s61, s61, 7")
    a(f"v_mul_u32_u24 v10, 7168, v1\nv_add3_u32 v10, v10, v2, s61\nv_add_u32 v11, {14336-BLK}, v10")
    a("v_bfe_u32 v12, v0, 4, 1\nv_bfe_u32 v13, v0, 3, 1\nv_lshlrev_b32 v12, 2, v12\nv_lshl_add_u32 v12, v13, 3, v12\nv_bfe_u32 v13, v0, 1, 2\nv_add_u32 v12, v12, v13")
    a(f"s_lshl_b32 s61, s{LW}, 4\nv_add_u32 v12, s61, v12\nv_mul_u32_u24 v12, 7168, v12\nv_and_b32 v13, 1, v0\nv_lshl_add_u32 v12, v13, 4, v12")
    a(f"s_add_u32 s61, s63, 6\ns_lshl_b32 s61, s61, 7\ns_lshl_b32 s62, s{S_C}, 5\ns_add_u32 s61, s61, s62\nv_add_u32 v12, s61, v12")
    a("s_lshl_b32 s60, s60, 5")
    a(f"s_mul_i32 s66, s{LW}, {2*BLK}")
    a(f"s_mov_b32 s61, s66\ns_lshl_b32 s62, s{S_PHI}, 7\ns_mov_b32 s63, 0\ns_lshl_b32 s64, s{S_PHI}, 1\ns_add_u32 s65, s66, {WBASE}")
    a(f"s_add_u32 s67, s66, {XRING}\ns_add_u32 s68, s66, {WBASE+4*WSLOT}")
    a(f"s_lshl_b32 s69, s{LW}, 9\ns_sub_u32 s69, s69, s66\ns_add_u32 s69, s69, {3*UNIT}")
    a(f"s_mov_b32 s30, {hex(2048*1024*2)}\ns_mov_b32 s31, 0x20000\ns_mov_b32 s50, {hex(1024*3072*2)}\ns_mov_b32 s51, 0x20000")
    a(f"s_mov_b32 s58, {hex(1024*3584*2)}\ns_mov_b32 s59, 0x20000\ns_mov_b32 s55, 0x20000")
    a("s_waitcnt lgkmcnt(0)")
    a("s_mov_b64 s[28:29], s[4:5]\ns_mov_b64 s[48:49], s[6:7]\ns_mov_b64 s[56:57], s[12:13]")
    a(f"s_cmp_ge_u32 s{S_C}, 2")
    a("s_cselect_b64 s[52:53], s[12:13], s[6:7]\ns_cselect_b32 s54, s58, s50")

    def xhalf():
        a("s_mov_b32 m0, s61\ns_add_u32 s46, s62, s63")
        for u in range(4):
            if u: a(f"s_add_u32 m0, m0, {UNIT}\ns_add_u32 s46, s46, 0x10000")
            a("buffer_load_dwordx4 v4, s[28:31], s46 offen lds")
            a(f"buffer_load_dwordx4 v5, s[28:31], s46 offen offset:{BLK} lds")
        a(f"s_add_u32 s61, s61, {4*UNIT}\ns_cmp_eq_u32 s61, s67\ns_cselect_b32 s61, s66, s61")
        a("s_xor_b32 s63, s63, 0x40000\ns_cselect_b32 s47, 0, 128\ns_add_u32 s62, s62, s47\ns_and_b32 s62, s62, 2047")

    def wslab():
        for ln, (sr, ld) in enumerate([(48, 32 * 6144), (52, "s60"), (56, 32 * 7168)]):
            a(f"s_add_u32 m0, s65, {ln*UNIT}\ns_mul_i32 s35, s64, {ld}")
            a(f"buffer_load_dwordx4 v{6+2*ln}, s[{sr}:{sr+3}], s35 offen lds")
            a(f"buffer_load_dwordx4 v{7+2*ln}, s[{sr}:{sr+3}], s35 offen offset:{BLK} lds")
        a("s_add_u32 m0, s65, s69\ns_mov_b32 exec_hi, 0")
        a("buffer_load_dwordx4 v12, s[56:59], s35 offen lds")
        a("s_mov_b32 exec_hi, -1")
        a(f"s_add_u32 s65, s65, {WSLOT}\ns_cmp_eq_u32 s65, s68\ns_cselect_b32 s65, s67, s65")
        a("s_add_u32 s64, s64, 1\ns_and_b32 s64, s64, 31")

    g.stamp(1)
    xhalf(); wslab(); xhalf(); wslab(); g.stamp(2)
    a("s_waitcnt vmcnt(7)"); g.stamp(3)
    a("s_barrier")
    SM = g.o.get('smooth', 1)
    if SM:
        xhalf(); xhalf(); wslab()
        a("s_waitcnt vmcnt(23)\ns_barrier")
        wslab(); xhalf(); wslab()
        a("s_waitcnt vmcnt(22)\ns_barrier")
        xhalf(); wslab(); xhalf()
    else:
        xhalf(); wslab(); xhalf(); wslab(); xhalf()
    g.stamp(4)
    real_a, buf = g.a, []
    g.a = lambda x: buf.extend(x.split("\n"))
    srd(g, SRD_WS, 26, 0x10000000)
    a(f"s_mov_b32 s10, {hex(1024*1024*2)}\ns_mov_b32 s11, 0x20000")
    a(f"s_mov_b64 s[12:13], s[14:15]\ns_mov_b32 s14, {hex(3584*1024*2)}\ns_mov_b32 s15, 0x20000")
    a("v_lshrrev_b32 v1, 5, v0\nv_bfe_u32 v3, v0, 4, 1\nv_lshlrev_b32 v1, 3, v1\nv_lshl_add_u32 v1, v3, 4, v1\nv_bfe_u32 v3, v0, 3, 1\nv_add_u32 v1, v1, v3")
    a(f"s_lshl_b32 s4, s{LW}, 2\nv_add_u32 v1, s4, v1")
    a(f"s_lshl_b32 s4, s{S_CB}, 8\ns_lshl_b32 s5, s{S_KH}, 7\ns_add_u32 s4, s4, s5")
    a("v_lshl_add_u32 v14, v1, 11, v2\nv_add_u32 v14, s4, v14\nv_xor_b32 v16, 128, v14")
    a(f"v_add_u32 v15, {4096-BLK}, v14\nv_add_u32 v17, {4096-BLK}, v16")
    a(f"s_lshl_b32 s5, s{S_MB8}, 19\ns_sub_u32 s4, s4, s5")
    a(f"v_add_u32 v24, s4, v4\nv_xor_b32 v26, 128, v24\nv_add_u32 v25, {4096-BLK}, v24\nv_add_u32 v27, {4096-BLK}, v26")
    lane_h(g, 21, 22, 17)
    a(f"s_mul_i32 s6, s32, {14<<17}")
    a("s_mov_b64 s[24:25], s[12:13]\ns_mov_b32 s26, s14\ns_mov_b32 s27, 0x20000")
    if g.o.get('w2c', 0):
        lk, ln = g.lab("wc"), g.lab("wc")
        a(f"s_and_b32 s18, s{S_CB}, 3\ns_cmp_eq_u32 s18, 1\ns_cbranch_scc0 {ln}")
        a(f"s_lshr_b32 s18, s{S_CB}, 2\ns_mul_i32 s18, s18, {1024-128}\ns_sub_u32 s18, {WS_W2C-384}, s18\ns_add_u32 s18, s20, s18\ns_addc_u32 s19, s21, 0")
        a(f"s_cmp_eq_u32 s{S_KH}, 1\ns_cbranch_scc1 {lk}\ns_mov_b64 s[24:25], s[18:19]\ns_branch {ln}\n{lk}:\ns_mov_b64 s[12:13], s[18:19]\n{ln}:")
    g.a = real_a
    cut = max(i for i, x in enumerate(buf) if x.startswith("s_mov_b64 s[24:25], s[12:13]"))
    NU = 6
    a(f"s_mov_b32 s34, {27-NU-2*SM}")
    a("L_l1:")
    a("s_waitcnt vmcnt(30)\ns_barrier")
    wslab(); xhalf()
    a("s_sub_u32 s34, s34, 1\ns_cmp_lg_u32 s34, 0\ns_cbranch_scc1 L_l1")
    t0 = 27 - NU
    vm = VM(a, [('I', t0 - 3)] * 15 + [('I', t0 - 2)] * 15 + [('I', t0 - 1)] * 15)
    def wstage(m):
        for ln in range(2):
            for kk in range(2):
                a(f"s_add_u32 m0, s66, {slot2(m)+(ln*2+kk)*UNIT}")
                if m < 14:
                    vb, sr = (24 if ORD[m] % 7 == 6 else 14) + 2 * ln, 24 if ln else 12
                    a(f"s_add_u32 s47, s6, {(ORD[m]<<17)+(kk<<16)}")
                else:
                    vb, sr = 14, 8
                    a(f"s_mov_b32 s47, {((2*(m-14)+ln)<<17)+(kk<<16)}")
                for jb in range(2):
                    vm.op(f"buffer_load_dwordx4 v{vb+jb}, s[{sr}:{sr+3}], s47 offen offset:{jb*BLK} sc1 lds", m)
    for t in range(t0, 27):
        vm.wait(('I', t - 3)); a("s_barrier")
        wslab(); xhalf(); vm.mark(('I', t), 15)
        k = t - t0
        for x in (buf[k * cut // 5:(k + 1) * cut // 5] if k < 5 else buf[cut:]): a(x)
    vm.wait(('I', 25)); a("s_barrier")
    wslab(); vm.mark(('I', 27), 7)
    vm.wait(('I', 26)); a("s_barrier")
    wstage(0)
    vm.wait(('I', 27)); a("s_barrier")
    wstage(1)
    a("s_barrier")
    nxt = 2
    for _ in range(g.o.get('w31', 1)): wstage(nxt); nxt += 1
    a("s_barrier")
    g.stamp(5)
    for _ in range(g.o.get('w32', 0)): wstage(nxt); nxt += 1
    a("s_barrier")
    sched = g.o.get('wsched', [1, 1, 2, 1, 2, 1, 2, 1, 2, 1, 1, 1, 1, 1, 2, 2, 2, 2])
    for n in range(0, 21):
        need = {10: 11, 11: 13, 12: 13}.get(n, n)
        lim = {0: 5, 12: 17, 13: 18}.get(n, n + 6)
        assert nxt > need
        vm.wait(need); a("s_barrier")
        fl = n == g.o['k1'] + g.o['noc']
        if fl: q_call(g, n)
        for _ in range(sched[n] if n < len(sched) else 1):
            if nxt < 22 and nxt <= lim: wstage(nxt); nxt += 1
        if not fl: q_call(g, n)
    assert nxt == 22
    vm.wait(21)
    prof_dump(g, 4, 1)
    if g.o.get('trace'):
        a(f"s_cmp_lg_u32 s{S_WAVE}, 4\ns_cbranch_scc1 L_exit\ns_lshl_b32 s33, s2, 9\ns_add_u32 s33, s33, {WS_PROF+0x20000}\nv_lshlrev_b32 v5, 2, v0")
        a(f"buffer_store_dword v33, v5, {W}, s33 offen\nbuffer_store_dword v32, v5, {W}, s33 offen offset:256")
    a("s_endpgm")


def helper(g):
    a = g.a
    a("L_helper:")
    HW = 45
    def bars(n):
        for _ in range(n): a("s_barrier")
    if g.o.get('hprio'): a(f"s_setprio {g.o['hprio']}")
    a(f"s_sub_u32 s{HW}, s{S_WAVE}, 6")
    a("v_lshlrev_b32 v4, 4, v0\nv_lshlrev_b32 v5, 2, v0\nv_mov_b32 v6, 0\nv_mov_b32 v7, 1\nv_lshlrev_b32 v8, 7, v0")
    a(f"s_getpc_b64 s[96:97]\nL_pc:\ns_sub_u32 s96, s96, L_pc-{NAME}\ns_subb_u32 s97, s97, 0")
    a(f"s_mov_b32 s98, L_codeend-{NAME}\ns_mov_b32 s99, 0x20000")
    a(f"s_lshl_b32 s100, s30, 1\ns_add_u32 s100, s100, s{HW}\ns_lshl_b32 s100, s100, 11")
    def codepf():
        a("s_mov_b64 exec, 0xffff\nbuffer_load_dword v9, v8, s[96:99], s100 offen\ns_mov_b64 exec, -1")
    codepf()
    a(f"s_lshl_b32 s46, s32, 3\ns_add_u32 s46, s46, s{S_CB}\ns_lshl_b32 s47, s{S_MB8}, 5\ns_add_u32 s46, s46, s47")
    a("s_waitcnt lgkmcnt(0)")
    srd(g, SRD_WS, 26, 0x10000000)
    srd(g, 28, 4, 2048 * 1024 * 2)
    srd(g, 92, 24, 256)
    for r in range(12, 16): a(f"v_mov_b32 v{r}, -1")
    a(f"s_mov_b32 s33, 0x10000000\ns_lshl_b32 s88, s{S_PAIR}, 3\ns_add_u32 s88, s88, s{S_MB8}\ns_mul_i32 s88, s88, 9216\ns_add_u32 s88, s88, {WS_KVP}")
    a(f"s_mul_i32 s89, s{S_PAIR}, 6144\ns_lshl_b32 s47, s{S_MB8}, 10\ns_add_u32 s89, s89, s47\ns_add_u32 s89, s89, {WS_KVF}")
    a(f"s_cmp_ge_u32 s{S_MB8}, 6\ns_cselect_b32 s89, s33, s89\ns_cmp_ge_u32 s{S_C}, 2\ns_cselect_b32 s88, s33, s88\ns_cselect_b32 s89, s33, s89")
    def init0(k):
        if k == 0:
            for r in range(16, 20): a(f"v_mov_b32 v{r}, 0")
            a(f"s_lshl_b32 s47, s2, 11\ns_add_u32 s47, s47, {WS_FLAG}")
            a(f"buffer_store_dwordx4 v[16:19], v4, {W}, s47 offen sc1\nbuffer_store_dwordx4 v[16:19], v4, {W}, s47 offen offset:1024 sc1")
        elif k == 1:
            a(f"buffer_store_dwordx4 v[12:15], v4, {W}, s89 offen sc1")
            a(f"s_mov_b64 exec, 0xff\ns_lshl_b32 s47, s46, 7\ns_add_u32 s47, s47, {WS_FLAG+F_G}")
            a(f"buffer_store_dwordx4 v[12:15], v4, {W}, s47 offen sc1\ns_mov_b64 exec, -1")
        else:
            a(f"buffer_store_dwordx4 v[12:15], v4, {W}, s88 offen sc1\ns_add_u32 s88, s88, 1024")
    def copy_ld(t):
        l1 = g.lab("cp")
        a(f"s_cmp_lg_u32 s{S_XCD}, {t}\ns_cbranch_scc1 {l1}\ns_lshl_b32 s47, s2, 15")
        for k in range(4):
            a(f"buffer_load_dwordx4 {vr(24+4*k)}, v16, s[60:63], s47 offen offset:384")
            if k < 3: a("s_add_u32 s47, s47, 8192")
        a(f"{l1}:")
    def copy_st(k):
        a(f"s_lshl_b32 s47, s2, 15\ns_add_u32 s47, s47, {WS_W2C+k*8192}\nbuffer_store_dwordx4 {vr(24+4*k)}, v17, {W}, s47 offen sc1")
    def h1(f):
        l1 = g.lab("h1")
        a(f"s_cmp_eq_u32 s{HW}, 0\ns_cbranch_scc1 {l1}"); f(); a(f"{l1}:")
    def h0(f):
        l1 = g.lab("h0")
        a(f"s_cmp_lg_u32 s{HW}, 0\ns_cbranch_scc1 {l1}"); f(); a(f"{l1}:")
    issd = lambda: a("buffer_load_dword v23, off, s[92:95], 0 sc1")
    def init3():
        ok = g.lab("rdy")
        a(f"v_cmp_ne_u32 vcc, 1, v23\ns_nop 1\ns_and_b32 s33, vcc_lo, 1\ns_cbranch_scc0 {ok}")
        issd(); poll_check(g, issd, 23, 1, 1)
        a(f"{ok}:\ns_lshr_b32 s47, s2, 2\ns_lshl_b32 s47, s47, 7\ns_and_b32 s33, s2, 3\ns_lshl_b32 s33, s33, 2\ns_add_u32 s47, s47, s33\ns_add_u32 s47, s47, {WS_FLAG+F_RDY}")
        a(flagops(7, 47))
    lz = g.lab("z")
    a(f"s_or_b32 s33, s2, s{HW}\ns_cbranch_scc1 {lz}")
    for r in range(16, 20): a(f"v_mov_b32 v{r}, 0")
    a(f"s_mov_b32 s47, {WS_FLAG+F_RDY}\ns_mov_b32 s33, {WS_FLAG+F_RDY+4096}")
    for k in range(8): a(f"buffer_store_dwordx4 v[16:19], v4, {W}, s{33 if k>>2 else 47} offen offset:{(k&3)*1024} sc1")
    a(f"s_waitcnt vmcnt(0)\ns_mov_b64 exec, 1\nbuffer_store_dword v7, off, s[92:95], 0 sc1\ns_mov_b64 exec, -1\n{lz}:")
    a("v_lshrrev_b32 v16, 4, v0\nv_and_b32 v17, 7, v0\nv_lshlrev_b32 v17, 4, v17\nv_lshl_add_u32 v16, v16, 11, v17\nv_bfe_u32 v18, v0, 3, 1")
    a("v_lshl_add_u32 v17, v18, 7, v16\nv_lshl_add_u32 v16, v18, 10, v16")
    srd(g, 52, 6, 1024 * 3072 * 2)
    srd(g, 56, 12, 1024 * 3584 * 2)
    srd(g, 60, 14, 3584 * 1024 * 2)
    srd(g, 64, 8, 1024 * 1024 * 2)
    a("v_lshlrev_b32 v10, 11, v0")
    a(f"s_cmp_lg_u32 s{HW}, 0\ns_cbranch_scc1 L_h_one")
    iss0 = lambda: a(f"s_mov_b32 s47, {WS_FLAG+F_RDY}\nbuffer_load_dwordx4 v[16:19], v8, {W}, s47 offen sc1")
    for t in range(0, 29):
        a("s_barrier")
        if 3 <= t < 14: a(f"s_sleep {g.o['hdel']}"); init0(t - 3)
        if t == 14: issd()
        if t == 16: a("s_waitcnt vmcnt(0)"); init3()
        if t == 22: iss0()
        if t == 24: poll_check(g, iss0, 14, 64, 1, "ne", lambda: a("v_and_b32 v14, v16, v17\nv_and_b32 v15, v18, v19\nv_and_b32 v14, v14, v15"))
        if t == g.o.get('cpf1', 99): a("s_mov_b64 exec, 0xffffffff\nbuffer_load_dword v9, v8, s[96:99], s100 offen\ns_mov_b64 exec, -1")
    bars(2)
    a("v_lshlrev_b32 v13, 3, v0")
    lane_h(g, 11, 12, 52)
    a(f"s_add_u32 s54, s52, {F_H2}")
    a("v_and_b32 v12, 3, v0\nv_lshlrev_b32 v12, 7, v12\nv_bfe_u32 v16, v0, 2, 1\nv_lshl_add_u32 v12, v16, 16, v12\nv_bfe_u32 v16, v0, 3, 1\nv_lshl_add_u32 v12, v16, 18, v12")
    a(f"v_bfe_u32 v16, v0, 4, 2\nv_lshl_add_u32 v12, v16, 11, v12\ns_andn2_b32 s56, s52, 0x1800\ns_add_u32 s56, s56, {F_X + (2<<16)}")
    a(f"s_lshl_b32 s57, s{S_MB8}, 3\ns_add_u32 s57, s57, s{S_RH}\ns_lshl_b32 s57, s57, 9\ns_add_u32 s57, s57, {WS_FLAG+F_G}")
    a("v_lshrrev_b32 v19, 4, v0\nv_bfe_u32 v16, v0, 2, 2\nv_lshl_add_u32 v19, v19, 3, v16\nv_and_b32 v16, 3, v0\nv_lshlrev_b32 v16, 3, v16\nv_lshl_add_u32 v19, v19, 7, v16")
    bars(1)
    l0, l1 = g.lab("pp"), g.lab("pp")
    iss = lambda r: a(f"buffer_load_dword v{r}, v11, {W}, s52 offen sc1")
    iss(21)
    bars(1)
    a(f"s_mov_b32 s35, {SPIN}\n{l0}:")
    for r in range(2):
        iss(20 + r)
        a(f"s_waitcnt vmcnt(1)\nv_cmp_ne_u32 vcc, 1, v{21-r}\ns_cbranch_vccz {l1}\ns_sleep {g.o.get('psleep', 3)}")
    a(f"s_sub_u32 s35, s35, 1\ns_cbranch_scc0 {l0}\n{l1}:")
    bars(1)
    def pol(soff, areg): return lambda: a(f"buffer_load_dword v14, v{areg}, {W}, s{soff} offen sc1")
    issg = lambda: a(f"buffer_load_dwordx2 v[16:17], v19, {W}, s57 offen sc1")
    for n in range(13):
        a("s_barrier")
        if n == 2 and g.o.get('cpf2'): a("s_mov_b64 exec, 0xffffffff\nbuffer_load_dword v9, v8, s[96:99], s100 offen\ns_mov_b64 exec, -1")
        if n == 4: pol(54, 11)()
        if n == 5: poll_check(g, pol(54, 11), 14, 64, 1); issg()
        if n == 6:
            poll_check(g, issg, 14, 64, -1, "eq", lambda: a("v_max_u32 v14, v16, v17"))
            a(f"v_add_u32 v13, {LDS_G}, v13\nds_write_b64 v13, v[16:17]")
        q_call(g, n)
        if n == 11: pol(56, 12)()
        if n == 12: poll_check(g, pol(56, 12), 14, 64, 1)
    g.stamp(4)
    prof_dump(g, 6, 2)
    a("s_waitcnt lgkmcnt(0)\ns_endpgm")
    a("L_h_one:")
    NP = 240 if g.o.get('exempt', 1) else 256
    a("s_mov_b32 s68, s2\ns_mov_b32 s34, 0")
    if NP == 240:
        a("s_lshr_b32 s47, s2, 5\ns_sub_u32 s33, s2, 16\ns_cmp_gt_u32 s47, 5\ns_cselect_b32 s68, s33, s68")
        a("s_bfe_u32 s33, s2, 0x40001\ns_add_u32 s33, s33, 160\ns_cmp_eq_u32 s47, 5\ns_cselect_b32 s68, s33, s68")
        a("s_and_b32 s33, s2, 0xe1\ns_cmp_eq_u32 s33, 0xa0\ns_cselect_b32 s68, 0x10000, s68")
    tb = sum(x << (4 * k) for k, x in enumerate(ORD))
    a(f"s_mov_b32 s69, s68\ns_mov_b32 s48, {hex(tb & 0xffffffff)}\ns_mov_b32 s49, {hex(tb >> 32)}\ns_mov_b32 s90, {hex(g.o.get('wmask', 0x1d8))}")
    def w2item():
        l, lo = g.lab("pw"), g.lab("pw")
        a(f"s_cmp_ge_u32 s69, 896\ns_cbranch_scc1 {lo}\ns_lshr_b32 s47, s69, 6\ns_lshl_b32 s47, s47, 2\ns_lshr_b64 s[50:51], s[48:49], s47\ns_and_b32 s50, s50, 15")
        a(f"s_bfe_u32 s47, s69, 0x20004\ns_mul_i32 s47, s47, 14\ns_add_u32 s47, s47, s50\ns_lshl_b32 s47, s47, 4\ns_and_b32 s50, s69, 15\ns_add_u32 s47, s47, s50\ns_lshl_b32 s47, s47, 13")
        a(f"buffer_load_dword v9, v8, s[60:63], s47 offen\ns_branch {l}")
        a(f"{lo}:\ns_sub_u32 s47, s69, 896\ns_lshl_b32 s47, s47, 13\nbuffer_load_dword v9, v8, s[64:67], s47 offen\n{l}:\ns_add_u32 s69, s69, {NP}")
    l0, l1, l2, lx, lq = [g.lab("pf") for _ in range(5)]
    a(f"{l0}:\ns_add_u32 s47, s34, {g.o['lead']}\ns_mul_i32 s47, s47, 68\ns_min_u32 s47, s47, {16*136}\ns_cmp_ge_u32 s68, s47\ns_cbranch_scc1 {l1}")
    a(f"s_mul_hi_u32 s47, s68, {(2**32+135)//136}\ns_mul_i32 s33, s47, 136\ns_sub_u32 s33, s68, s33\ns_add_u32 s68, s68, {NP}")
    a(f"s_cmp_lt_u32 s33, 32\ns_cbranch_scc1 {lx}\ns_cmp_lt_u32 s33, 80\ns_cbranch_scc1 {lq}")
    a(f"s_mul_i32 s47, s47, 56\ns_add_u32 s47, s47, s33\ns_sub_u32 s47, s47, 80\ns_lshl_b32 s47, s47, 13\nbuffer_load_dword v9, v8, s[56:59], s47 offen\ns_branch {l2}")
    a(f"{lq}:\ns_mul_i32 s47, s47, 48\ns_add_u32 s47, s47, s33\ns_sub_u32 s47, s47, 32\ns_lshl_b32 s47, s47, 13\nbuffer_load_dword v9, v8, s[52:55], s47 offen\ns_branch {l2}")
    a(f"{lx}:\ns_lshl_b32 s47, s47, 7\ns_lshl_b32 s33, s33, 17\ns_add_u32 s47, s47, s33\nbuffer_load_dword v9, v10, s[28:31], s47 offen")
    a(f"{l2}:\ns_lshr_b32 s90, s90, 1\ns_bitcmp1_b32 s90, 0\ns_cbranch_scc0 {l0}")
    w2item()
    a(f"s_branch {l0}\n{l1}:")
    if g.o.get('wrate'):
        l3 = g.lab("pf")
        a(f"s_sub_u32 s47, s34, {g.o.get('w0', 2)}\ns_cbranch_scc1 {l3}\ns_mul_i32 s47, s47, {g.o['wrate']}\ns_min_u32 s47, s47, 1152\ns_cmp_ge_u32 s69, s47\ns_cbranch_scc1 {l3}")
        w2item()
        a(f"{l3}:")
    a(f"s_barrier\ns_sleep {g.o['hdel']}\ns_add_u32 s34, s34, 1\ns_cmp_lt_u32 s34, 27\ns_cbranch_scc1 {l0}")
    late = g.o.get('wlate', {})
    def latepf(t):
        if late.get(t) == 'o': a("s_lshl_b32 s47, s2, 13\nbuffer_load_dword v9, v8, s[64:67], s47 offen")
        else:
            for _ in range(late.get(t, 0)): w2item()
    latepf(26)
    for t in range(27, 31): a("s_barrier"); latepf(t)
    srd(g, 52, 16, 2048)
    a("s_lshl_b32 s47, s46, 14")
    for hf in range(2): a(f"buffer_load_dwordx4 {vr(24+4*hf)}, v4, s[52:55], 0 offen offset:{hf*1024}")
    for r in range(8):
        for hf in range(2): a(f"buffer_load_dwordx4 {vr(40+8*r+4*hf)}, v4, s[28:31], s47 offen offset:{(r&1)*2048+hf*1024}")
        if r & 1: a("s_add_u32 s47, s47, 4096")
    for r in range(32, 40): a(f"v_mov_b32 v{r}, 0")
    bars(3)
    a("s_waitcnt vmcnt(0)")
    for k in range(8):
        for r in range(8): a(f"v_dot2_f32_bf16 v{32+r}, v{40+8*r+k}, v{24+k}, v{32+r}")
    a("s_nop 1")
    for pat in ["quad_perm:[1,0,3,2] row_mask:0xf", "quad_perm:[2,3,0,1] row_mask:0xf", "row_half_mirror row_mask:0xf", "row_mirror row_mask:0xf",
                "row_bcast:15 row_mask:0xa", "row_bcast:31 row_mask:0xc"]:
        for r in range(32, 40): a(f"v_add_f32_dpp v{r}, v{r}, v{r} {pat} bank_mask:0xf")
    for r in range(8): a(f"v_readlane_b32 s{52+r}, v{32+r}, 63")
    a("s_nop 1")
    for r in range(8): a(f"v_writelane_b32 v16, s{52+r}, {r}")
    a("s_nop 0\nv_mul_f32 v16, 0xbfb8aa3b, v16\nv_exp_f32 v16, v16\ns_nop 0\nv_add_f32 v16, 1.0, v16\nv_rcp_f32 v16, v16")
    a(f"s_lshl_b32 s47, s46, 7\ns_add_u32 s47, s47, {WS_FLAG+F_G}\ns_mov_b64 exec, 0xff")
    a(f"buffer_store_dword v16, v5, {W}, s47 offen sc1\ns_mov_b64 exec, -1")
    a(f"s_cmp_ge_u32 s{S_C}, 2\ns_cbranch_scc1 L_h1_q\ns_cmp_ge_u32 s{S_MB8}, 6\ns_cbranch_scc1 L_h1_end")
    H1 = g.o['h1']
    def retry(issue, mx, first, last, work=False):
        l0, l1 = g.lab("try"), g.lab("try")
        for n in range(first):
            a("s_barrier")
            if work: q_call(g, n)
        a(f"s_mov_b32 s34, {first}\n{l0}:")
        issue()
        a("s_barrier\ns_add_u32 s34, s34, 1\ns_waitcnt vmcnt(0)")
        mx()
        a(f"v_cmp_eq_u32 vcc, -1, v14\ns_nop 1\ns_cmp_lg_u64 vcc, 0\ns_cbranch_scc0 {l1}")
        a(f"s_cmp_le_u32 s34, {last-1}\ns_cbranch_scc1 {l0}")
        issue(); poll_check(g, issue, 14, 64, -1, "eq", mx)
        a(f"{l1}:")
    def upto(n):
        l0, l1 = g.lab("up"), g.lab("up")
        a(f"{l0}:\ns_cmp_ge_u32 s34, {n}\ns_cbranch_scc1 {l1}\ns_barrier\ns_add_u32 s34, s34, 1\ns_branch {l0}\n{l1}:")
    def vmax(lo, hi):
        a(f"v_max_u32 v14, v{lo}, v{lo+1}")
        for r in range(lo + 2, hi, 2): a(f"v_max3_u32 v14, v14, v{r}, v{r+1}")
    a(f"s_cmp_ge_u32 s{S_MB8}, 3\ns_cselect_b32 s55, 1, 0\ns_sub_u32 s56, s{S_MB8}, s55\ns_lshl_b32 s56, s56, 11\nv_add_u32 v10, s56, v4\nv_add_u32 v11, 1024, v10")
    a(f"s_cmp_eq_u32 s{S_MB8}, 2\ns_cbranch_scc1 L_h1_z\ns_cmp_eq_u32 s{S_MB8}, 5\ns_cbranch_scc0 L_h1_nz\nL_h1_z:")
    a("s_lshl_b32 s55, s55, 5\ns_add_u32 s55, s55, 8192\nv_and_b32 v10, 0x300, v4\nv_add_u32 v10, s55, v10\nv_add_u32 v11, 16, v10\nL_h1_nz:")
    def kvp_issue():
        a(f"s_mul_i32 s47, s{S_PAIR}, {8*9216}\ns_add_u32 s47, s47, {WS_KVP}")
        for m in range(8):
            for dt in range(2): a(f"buffer_load_dwordx4 {vr(32+(m*2+dt)*4)}, v{10+dt}, {W}, s47 offen sc1")
            if m < 7: a("s_add_u32 s47, s47, 9216")
    retry(kvp_issue, lambda: vmax(32, 96), H1 + 1, 11)
    g.stamp(5)
    if g.o['prof']: a("s_mov_b32 s88, s34")
    for st in (32, 16, 8):
        for r in range(st): a(f"v_add_f32 v{32+r}, v{32+r}, v{32+st+r}")
    for r in range(4): a(f"v_cvt_pk_bf16_f32 v{32+r}, v{32+2*r}, v{33+2*r}")
    a(f"s_mul_i32 s47, s{S_PAIR}, 6144\ns_lshl_b32 s46, s{S_MB8}, 10\ns_add_u32 s47, s47, s46\ns_add_u32 s47, s47, {WS_KVF}")
    a(f"buffer_store_dwordx4 v[32:35], v4, {W}, s47 offen sc1")
    a("L_h1_end:\ns_barrier")
    prof_dump(g, 7, 3)
    a("s_endpgm")
    a("L_h1_q:")
    K1 = g.o['k1']
    a(f"s_mul_i32 s55, s{S_PAIR}, 6144\ns_add_u32 s55, s55, {WS_KVF}\ns_add_u32 s56, s55, 4096\nv_add_u32 v12, {P2END}, v4")
    def kvf_issue():
        for f in range(6): a(f"buffer_load_dwordx4 {vr(32+4*f)}, v4, {W}, s{55+(f>>2)} offen offset:{(f&3)*1024} sc1")
    retry(kvf_issue, lambda: vmax(32, 56), g.o['k0'], K1, True)
    g.stamp(5)
    if g.o['prof']: a("s_mov_b32 s88, s34")
    for f in range(6): a(f"ds_write_b128 v12, {vr(32+4*f)} offset:{f*1024}")
    upto(K1)
    a("s_waitcnt lgkmcnt(0)")
    for n in range(K1, K1 + g.o['noc'] + 1): a("s_barrier"); q_call(g, n)
    a("s_branch L_h1_end")
    q_chunks(g)


HEADER = open("gated_mix__linear_attn_block__dense_activation_relu__prompt.s.ref").read().split("; Override")[0] \
    if __name__ == "__main__" else ""


def build(**opt):
    g = G(**opt)
    g.L.append(f"; @launch grid=(256,1,1) block=(512,1,1) lds={LDS_TOTAL}")
    g.a(f'.amdgcn_target "amdgcn-amd-amdhsa--gfx950"\n.text\n.globl {NAME}\n.p2align 8\n.type {NAME},@function\n{NAME}:')
    prologue(g)
    loader(g)
    helper(g)
    compute(g)
    g.a("L_exit:\ns_endpgm\nL_codeend:")
    g.L.append(f""".section .rodata,"a"
.p2align 6
.amdhsa_kernel {NAME}
  .amdhsa_next_free_vgpr 256
  .amdhsa_next_free_sgpr 102
  .amdhsa_accum_offset 256
  .amdhsa_group_segment_fixed_size 0
  .amdhsa_kernarg_size 80
  .amdhsa_user_sgpr_count 2
  .amdhsa_user_sgpr_kernarg_segment_ptr 1
  .amdhsa_system_sgpr_workgroup_id_x 1
.end_amdhsa_kernel""")
    return g.text()


if __name__ == "__main__":
    out = sys.argv[1]
    opt = {}
    for kv in sys.argv[2:]:
        k, v = kv.split("=")
        opt[k] = eval(v)
    open(out, "w").write(HEADER + build(**opt))
```

```python
import sys

NAME = "gated_mix__linear_attn_block__dense_activation_relu__prompt_kernel"

WS_HO = 0
WS_PART = 0x3000000
WS_KVP = 0x2400000
WS_KVF = 0x2580000
WS_FLAG = 0x2600000
F_H1, F_H2, F_X, F_P = 0, 512, 1024, 1536
F_G = 0x80000
F_RDY = 0x90000
WS_PROF = 0x2700000
WS_W2C = 0x2800000
ORD1 = [0, 1, 2, 4, 7, 8, 9, 11]
ORD2 = [3, 5, 10, 12, 6, 13]

UNIT = 4224; BLK = 1056
XSLOT = 8 * UNIT
XRING = 3 * XSLOT
WSLOT = 3 * UNIT + 1024
WBASE = XRING
LDS_G = 162816
P2SLOT = 4 * UNIT
NSL = 8
P2END = NSL * P2SLOT
LDS_TOTAL = 163840

SPIN = 100000


class G:
    def __init__(self, **opt):
        self.L = []
        self.o = dict(prof=False, krot=False, pfw=True, pf1=True, lead=6, pfs0=0, hdel=4, pfw0=2, pfwr=54, early2=0, late=(4, 4, 4), sp0=22, spn=2, swin=4, noc=2, qprio=2, k1=7, k0=6, rsp=6, h1=2, xf=(10, 14, 16), r1=20, dld=(9, 11, 13, 14, 15, 16, 17, 18), cpf1=24, cpf2=99, odens=3, b16=True, ddens=3, psp=30, d1=7, d2=10, d2b=12, d3=16)
        self.o.update(opt)
        self.uid = 0
        self.info = {}
        self.st = {'since': 0}

    def a(self, s):
        for ln in s.split("\n"):
            ln = ln.strip()
            if ln:
                self.L.append(ln if ln.endswith(":") or ln.startswith(".") else "    " + ln)

    def lab(self, p):
        self.uid += 1
        return f"L_{p}_{self.uid}"

    def stamp(self, n):
        if self.o['prof'] == 'min' and n not in (0, 8): return
        if self.o['prof']:
            self.a(f"{'s_memtime' if self.o['prof']=='cyc' else 's_memrealtime'} s[{70+2*n}:{71+2*n}]")

    def text(self):
        return "\n".join(self.L) + "\n"


class VM:
    def __init__(self, a, init=()):
        self.a = a; self.q = list(init)
    skip = ()
    def op(self, text, tag):
        if (tag[0] if isinstance(tag, tuple) else tag) in VM.skip: return
        self.a(text); self.q.append(tag)
        assert len(self.q) <= 63, "vmcnt overflow"
    def mark(self, tag, n):
        self.q += [tag] * n
        assert len(self.q) <= 63, "vmcnt overflow"
    def wait(self, *tags):
        k = max([i for i, t in enumerate(self.q) if t in tags], default=-1)
        if k >= 0:
            self.a(f"s_waitcnt vmcnt({len(self.q)-1-k})"); self.q = self.q[k + 1:]


def vr(b, n=4):
    return f"v[{b}:{b+n-1}]"


def mfma(d, a, b, c=None):
    return f"v_mfma_f32_16x16x32_bf16 {vr(d)}, {vr(a)}, {vr(b)}, {vr(d) if c is None else c}"


S_WAVE, S_MB8, S_QD, S_C, S_PAIR, S_RH, S_CB, S_KH, S_PHI, S_XCD = 3, 36, 37, 38, 39, 40, 41, 42, 43, 44
SRD_WS = 20


def srd(g, d, base, nbytes):
    g.a(f"s_mov_b32 s{d}, s{base}\ns_mov_b32 s{d+1}, s{base+1}\ns_mov_b32 s{d+2}, {hex(nbytes)}\ns_mov_b32 s{d+3}, 0x20000")


def prof_dump(g, wave, row):
    if not g.o['prof'] or g.o.get('probe') is not None or (row and (g.o['prof'] == 'min' or g.o.get('trace'))): return
    a = g.a
    l = g.lab("pd")
    a(f"s_waitcnt lgkmcnt(0)\ns_cmp_lg_u32 s{S_WAVE}, {wave}\ns_cbranch_scc1 {l}")
    a(f"s_lshl_b32 s33, s2, 6\ns_add_u32 s33, s33, {WS_PROF + row*16384}\nv_mov_b32 v5, 0")
    for n in range(16):
        a(f"v_mov_b32 v6, s{70+2*n}\nbuffer_store_dword v6, v5, s[{SRD_WS}:{SRD_WS+3}], s33 offen offset:{4*n}\ns_nop 1")
    a(f"{l}:")


def prologue(g):
    a = g.a
    a("s_cmp_ge_u32 s2, 256\ns_cbranch_scc1 L_exit")
    if g.o['prof']:
        for n in range(70, 102): a(f"s_mov_b32 s{n}, 0")
    g.stamp(0)
    a("s_load_dwordx16 s[4:19], s[0:1], 0")
    a("s_load_dwordx4 s[24:27], s[0:1], 64")
    a("v_lshrrev_b32 v1, 6, v0\nv_and_b32 v0, 63, v0")
    a(f"s_and_b32 s{S_XCD}, s2, 7\ns_lshr_b32 s30, s2, 3")
    a(f"v_readfirstlane_b32 s{S_WAVE}, v1")
    a(f"s_lshr_b32 s31, s{S_XCD}, 2\ns_and_b32 s32, s{S_XCD}, 3")
    a(f"s_and_b32 s33, s30, 3\ns_lshl_b32 s{S_MB8}, s31, 2\ns_add_u32 s{S_MB8}, s{S_MB8}, s33")
    a("s_lshr_b32 s33, s30, 2")
    a(f"s_lshr_b32 s34, s33, 2\ns_lshl_b32 s{S_QD}, s32, 1\ns_add_u32 s{S_QD}, s{S_QD}, s34")
    a(f"s_and_b32 s{S_C}, s33, 3")
    a(f"s_and_b32 s34, s33, 1\ns_lshl_b32 s{S_PAIR}, s{S_QD}, 1\ns_add_u32 s{S_PAIR}, s{S_PAIR}, s34")
    a(f"s_and_b32 s{S_RH}, s32, 1")
    a(f"s_mov_b32 s{S_CB}, s33")
    a(f"s_lshr_b32 s{S_KH}, s32, 1")
    if g.o['krot']:
        a(f"s_lshl_b32 s34, s31, 1\ns_add_u32 s34, s34, s32\ns_lshl_b32 s34, s34, 2\ns_and_b32 s{S_PHI}, s34, 15")
    else:
        a(f"s_mov_b32 s{S_PHI}, 0")
    a(f"s_cmp_lt_u32 s{S_WAVE}, 4\ns_cbranch_scc1 L_compute")
    a(f"s_cmp_ge_u32 s{S_WAVE}, 6\ns_cbranch_scc1 L_helper")


W = f"s[{SRD_WS}:{SRD_WS+3}]"


def lane_goodcol(g, d, t):
    g.a(f"v_lshrrev_b32 v{d}, 4, v0\nv_and_b32 v{t}, 15, v0\nv_lshlrev_b32 v{t}, 4, v{t}\nv_lshl_add_u32 v{d}, v{d}, 9, v{t}")


def lane_h(g, d, t, so):
    g.a(f"v_bfe_u32 v{d}, v0, 2, 3\nv_and_b32 v{t}, 3, v0\nv_lshlrev_b32 v{t}, 7, v{t}\nv_lshl_add_u32 v{d}, v{d}, 16, v{t}")
    g.a(f"s_and_b32 s{so}, s2, 31\ns_lshl_b32 s{so}, s{so}, 11\ns_add_u32 s{so}, s{so}, {WS_FLAG}")


def poll_check(g, issue, reg, nl, val, cmp="ne", pre=None):
    a = g.a
    l0, l1 = g.lab("poll"), g.lab("pollok")
    a(f"s_mov_b32 s35, {SPIN}\n{l0}:\ns_waitcnt vmcnt(0)")
    if pre: pre()
    a(f"v_cmp_{cmp}_u32 vcc, {val}, v{reg}\ns_nop 1")
    if nl == 64: a("s_cmp_lg_u64 vcc, 0")
    else: a(f"s_and_b32 s33, vcc_lo, {hex((1<<nl)-1)}")
    a(f"s_cbranch_scc0 {l1}")
    a(f"s_sub_u32 s35, s35, 1\ns_cbranch_scc1 {l1}")
    if g.o.get('psleep'): a(f"s_sleep {g.o['psleep']}")
    issue()
    a(f"s_branch {l0}\n{l1}:")


def setflags(g, one, *soffs):
    g.a("s_mov_b64 exec, 1")
    for so in soffs: g.a(f"buffer_store_dword v{one}, off, {W}, s{so} sc1")
    g.a("s_mov_b64 exec, -1")


VX, VW, VQ = 1, 2, 3
WB = lambda n: 8 + 4 * (n % 4)
XLO = lambda b, i: 24 + 8 * b + 4 * i
XHI = lambda i: 40 + 4 * (i - 2)
AC = lambda j, i: 48 + (j * 4 + i) * 4


PERM = {True: [8, 9, 10, 11, 0, 1, 2, 3, 12, 4, 5, 6, 7], False: [4, 5, 6, 7, 8, 9, 10, 11, 12, 0, 1, 2, 3]}


def p1_wread(t, j, n):
    slot = (t % 4) * WSLOT
    if j < 12:
        return [f"ds_read_b64_tr_b16 v[{WB(n)+2*w}:{WB(n)+2*w+1}], v{VW} offset:{slot + (j//4)*UNIT + (j%4)*32 + w*256}" for w in range(2)]
    return [f"ds_read_b64_tr_b16 v[{WB(n)+2*w}:{WB(n)+2*w+1}], v{VQ} offset:{slot + w*256}" for w in range(2)]


def p1_xreg(par, i):
    return XLO(par % 2, i) if i < 2 else XHI(i)


def p1_xread(t, i, par, vx=VX):
    return f"ds_read_b128 {vr(p1_xreg(par,i))}, v{vx} offset:{(i>>1)*UNIT + (i&1)*512 + (t%2)*64}"


def pass_order(nt):
    s = [(0, 0), (0, 1), (1, 1), (1, 0), (1, 2), (1, 3), (0, 3), (0, 2)]
    for j in range(2, nt - 2):
        s += [(j, i) for i in ([2, 3, 0, 1] if j % 2 == 0 else [1, 0, 3, 2])]
    u, v = nt - 2, nt - 1
    return s + [(u, 2), (u, 3), (v, 3), (v, 2), (v, 1), (v, 0), (u, 0), (u, 1)]


def p1_mfma(kv, tile, i, wreg, xreg):
    return mfma(AC(tile, i), xreg, wreg) if (kv and tile < 8) else mfma(AC(tile, i), wreg, xreg)


Q0 = [('W', 0, 0), ('W', 0, 0), ('X', 0, 0), ('X', 0, 1), ('W', 0, 1), ('W', 0, 1), ('X', 0, 2), ('X', 0, 3)]


def p1_loop(g, kv):
    a = g.a
    P = PERM[kv]
    L = g.lab("p1")
    seq = []
    for t in range(4):
        s = pass_order(13)
        post = [[] for _ in s]
        rd = lambda j, tt=t: [('W', tt, j, x) for x in p1_wread(tt, P[j], 13 * tt + j)]
        r = rd(2); post[0].append(r[0]); post[1].append(r[1])
        r = rd(3); post[2].append(r[0]); post[3].append(r[1])
        r = rd(4); post[8].append(r[0]); post[9].append(r[1])
        r = rd(5); post[10].append(r[0]); post[11].append(r[1])
        for j in range(3, 10):
            base = 8 + (j - 2) * 4
            r = rd(j + 3); post[base].append(r[0]); post[base + 1].append(r[1])
        b10 = 40
        if t % 2 == 1:
            post[b10 - 2].append(('S', f"s_add_u32 s46, s46, {XSLOT}"))
            post[b10 - 2].append(('S', f"s_cmp_eq_u32 s46, {XRING}"))
            post[b10 - 1].append(('S', f"s_cselect_b32 s47, s48, s49"))
            post[b10 - 1].append(('S', f"s_cselect_b32 s46, 0, s46"))
            post[b10].append(('S', f"v_add_u32 v{VX}, s47, v{VX}"))
        post[b10 + 2].append(('BAR',))
        tn = t + 1
        r0, r1 = rd(0, tn), rd(1, tn)
        post[b10 + 3] += [r0[0], r0[1]]
        post[44] += [('X', tn, 0, p1_xread(tn, 0, tn)), ('X', tn, 1, p1_xread(tn, 1, tn))]
        post[45] += [r1[0]]
        post[46] += [r1[1]]
        post[47] += [('X', tn, 2, p1_xread(tn, 2, tn))]
        post[48] += [('X', tn, 3, p1_xread(tn, 3, tn))]
        if t == 3:
            post[49].append(('S', "s_sub_u32 s45, s45, 1"))
            post[50].append(('S', "s_cmp_lg_u32 s45, 0"))
        for (j, i), p in zip(s, post):
            seq.append(((t, j, i), p))
    for x in p1_wread(0, P[0], 0): a(x)
    a(p1_xread(0, 0, 0)); a(p1_xread(0, 1, 0))
    for x in p1_wread(0, P[1], 1): a(x)
    a(p1_xread(0, 2, 0)); a(p1_xread(0, 3, 0))
    q = list(Q0)
    a(f".p2align 6\n{L}:")
    for (t, j, i), p in seq:
        need = [k for k, e in enumerate(q) if e == ('W', t, j) or e == ('X', t, i)]
        if need:
            k = max(need)
            a(f"s_waitcnt lgkmcnt({len(q)-1-k})")
            q = q[k + 1:]
        a(p1_mfma(kv, P[j], i, WB(13 * t + j), p1_xreg(t, i)))
        for e in p:
            if e[0] == 'S':
                a(e[1])
            elif e[0] == 'BAR':
                a("s_waitcnt lgkmcnt(0)\ns_barrier"); q = []
            else:
                a(e[3]); q.append((e[0], e[1] % 4, e[2]))
    assert q == Q0
    a(f"s_cbranch_scc1 {L}")


def p1_tail(g, kv, extra, extra2, flag):
    a = g.a
    P = PERM[kv]
    a(f"v_add_u32 v5, {(-2*XSLOT) & 0xffffffff}, v{VX}")
    passes = [(t, grp) for grp in (P[:4], P[4:9], P[9:]) for t in range(28, 32)]
    M = []; start = []; n0 = 0; last = {}
    reads = []
    for p, (t, tiles) in enumerate(passes):
        start.append(len(M))
        o = pass_order(len(tiles))
        base = len(M)
        for j, tile in enumerate(tiles):
            first = base + min(k for k, e in enumerate(o) if e[0] == j)
            if not (p == 0 and j < 2):
                for x in p1_wread(t, tile, n0 + j):
                    reads.append(dict(key=('W', p, j), text=x, after=last.get(WB(n0 + j), -1), first=first, t=t))
            last[WB(n0 + j)] = base + max(k for k, e in enumerate(o) if e[0] == j)
        for i in range(4):
            first = base + min(k for k, e in enumerate(o) if e[1] == i)
            if p > 0:
                reads.append(dict(key=('X', p, i), text=p1_xread(t, i, p, VX if t < 30 else 5), after=max(last.get(p1_xreg(p, i), -1), first - 14), first=first, t=t))
            last[p1_xreg(p, i)] = base + max(k for k, e in enumerate(o) if e[1] == i)
        for (j, i) in o:
            M.append((p, j, i, p1_mfma(kv, tiles[j], i, WB(n0 + j), p1_xreg(p, i))))
        n0 += len(tiles)
    V1, V2 = start[1] + 3, start[2] + 5
    R1, R2 = start[10] - 3, len(M) - 5
    for r in reads:
        if r['t'] == 30: r['after'] = max(r['after'], V1)
        if r['t'] == 31: r['after'] = max(r['after'], V2)
    reads.sort(key=lambda r: r['first'])
    q = list(Q0); since = 0; nst2 = 0
    dens = g.o.get('tdens', 3)
    def wait(pred):
        nonlocal q
        need = [k for k, e in enumerate(q) if pred(e)]
        if need:
            a(f"s_waitcnt lgkmcnt({len(q)-1-max(need)})"); q = q[max(need) + 1:]
            return 1
        return 0
    for k, (p, j, i, txt) in enumerate(M):
        assert not [r for r in reads if r['first'] <= k], "read scheduled too late"
        w = wait(lambda e: e == ('W', p, j) or e == ('X', p, i))
        a(txt); since += 1 + w
        used = 0
        if k in (V1, V2): a("s_barrier"); used += 1
        if k in (R1, R2):
            lim = 9 if k == R1 else 11
            assert not [r for r in reads if r['key'][1] <= lim]
            used += 1 + wait(lambda e: e[1] <= lim); a("s_barrier")
        nr = 0
        while used < 2:
            c = [r for r in reads if r['after'] <= k]
            if not c or (nr and c[0]['first'] - k > 9): break
            a(c[0]['text']); q.append(c[0]['key']); reads.remove(c[0]); used += 1; nr += 1
        since += used
        if k == start[8] + g.o.get('fpos', 10):
            a(f"s_waitcnt vmcnt({nst2})\n" + flag); used += 2
        if k == start[8] + 3:
            assert not extra
            extra = extra2; dens = g.o.get('tdens2', 3); nst2 = 0
        if k >= start[4] + 3:
            while used < dens and extra:
                if extra[0] is None: break
                x = extra.pop(0)
                if g.o.get('tnost') and x.startswith("buffer_store"): continue
                a(x); used += 2 if x.startswith("v_exp") else 1
                if x.startswith("buffer_store"): nst2 += 1
    return extra


def h_cvt(d, a0, a1):
    src = [a0, a0 + 2] + ([a1, a1 + 2] if a1 is not None else [])
    return [f"v_cvt_pk_bf16_f32 v{d+r}, v{x}, v{x+1}" for r, x in enumerate(src)] + [f"v_pk_max_i16 v{d+r}, v{d+r}, 0" for r in range(len(src))]


def h_line_store(j0, soff):
    o = []
    for i in (2, 3, 0, 1):
        o.append(f"s_add_u32 s56, s{soff}, {4096*i}")
        for p in range(2):
            d = AC(j0 + 2 * p, i)
            o += h_cvt(d, d, AC(j0 + 2 * p + 1, i))
            o.append(f"buffer_store_dwordx4 {vr(d)}, v7, {W}, s56 offen offset:{p*2048} sc1")
    return o


def phi_regs(regs, tmp):
    o = [f"v_mul_f32 v{tmp+k}, s50, v{r}" for k, r in enumerate(regs)]
    for k, r in enumerate(regs): o += [f"v_exp_f32 v{tmp+k}, v{tmp+k} clamp", f"v_max_f32 v{r}, s51, v{r}"]
    return o + [f"v_add_f32 v{r}, v{r}, v{tmp+k}" for k, r in enumerate(regs)]


def pack8(d, e):
    return [f"v_cvt_pk_bf16_f32 v{d}, v{d}, v{d+1}", f"v_cvt_pk_bf16_f32 v{d+1}, v{d+2}, v{d+3}",
            f"v_cvt_pk_bf16_f32 v{d+2}, v{e}, v{e+1}", f"v_cvt_pk_bf16_f32 v{d+3}, v{e+2}, v{e+3}"]


def flagops(one, *soffs):
    return "s_mov_b64 exec, 1\n" + "".join(f"buffer_store_dword v{one}, off, {W}, s{so} sc1\n" for so in soffs) + "s_mov_b64 exec, -1"


VA0, VW2, VA1, VWD = 1, 2, 3, 5
ORD = ORD1 + ORD2
AB = lambda u, i: (24, 112, 96, 72)[u % 4] + 4 * i
ACC = lambda j, i: 128 + (j * 4 + i) * 4
JORD = [4, 5, 6, 7, 0, 1, 2, 3]
NS = 12
ND = 8
ADP = [72, 80, ACC(5, 2), ACC(7, 2), ACC(4, 2), ACC(6, 2), ACC(1, 2), ACC(3, 2), ACC(0, 2), ACC(2, 2), 8, 16, 24, 32, 112, 120]
WD = lambda k: 40 + 4 * k
PQ = lambda i, h: AC(2 * h, i)
PP = lambda p, f: ((96, 104), (ACC(4, 0), ACC(6, 0)), (ACC(5, 0), ACC(7, 0)))[p - 1][f >> 1] + 4 * (f & 1)
VFL, VPO, GG, VOUT, SEL0 = 2, 3, 94, 4, 88
slot2 = lambda m: ((m + 2) % NSL) * P2SLOT


def c_wread(n):
    u, j = n // 8, JORD[n % 8]
    return [(('W', n), f"ds_read_b64_tr_b16 v[{WB(n)+2*w}:{WB(n)+2*w+1}], v{VW2} offset:{((j>>2)*2+(u&1))*UNIT + (j&3)*32 + w*256}") for w in range(2)]


def c_loads(u, vm):
    o = []
    if u % 2 == 0: o += [f"s_add_u32 s54, s46, {ORD[u//2]<<19}", f"s_add_u32 s53, s46, {(ORD[u//2]<<19)+4096}"]
    for i in range(4):
        o.append((f"buffer_load_dwordx4 {vr(AB(u,i))}, v{VA1 if i>>1 else VA0}, {W}, s{53 if i&1 else 54} offen offset:{(u&1)*2048} sc1", vm, ('A', u)))
    return o


def u_base(v):
    return slot2(NS + v % 4) + (2 * UNIT if v % 8 < 4 else 0) if v < 16 else slot2(16 + (v - 16) // 2) + (v & 1) * 2 * UNIT


def u_reads(v):
    return [(('U', v, k >> 1), f"ds_read_b64_tr_b16 v[{WD(k)+2*w}:{WD(k)+2*w+1}], v{VWD} offset:{(k>>2)*UNIT + (k&3)*32 + w*256}") for k in range(8) for w in range(2)]


def u_areg(v, kk, mi):
    if v >= 16: return ADP[2 * (v - 16) + kk] + 4 * mi
    return ((24, 112, 96, 72) if v < 8 else (8, 24, 112, 96))[v % 4] + 8 * kk + 4 * mi


def u_loads(v, vm):
    if v < 16:
        sb, ln = (46, ORD[NS + v % 4]) if v % 4 < 2 else (45, 56 + ND + v % 2)
        o = [f"s_add_u32 s54, s{sb}, {ln<<19}", f"s_add_u32 s53, s{sb}, {(ln<<19)+4096}"]
    else: o = [f"s_mov_b32 s54, {(40+v)<<19}", f"s_mov_b32 s53, {((40+v)<<19)+4096}"]
    for kk in range(2):
        for mi in range(2): o.append((f"buffer_load_dwordx4 {vr(u_areg(v,kk,mi))}, v{VA1 if v < 8 else VA0}, {W}, s{54-mi} offen offset:{kk*2048} sc1", vm, ('B', v, kk)))
    return o


class Stage:
    def __init__(self, g, q, extra, dens):
        self.g = g; self.q = list(q); self.extra = extra; self.dens = dens; self.carry = 0
    def a(self, x):
        self.g.a(x); self.g.st['since'] += 1
    def wait(self, key):
        need = [k for k, e in enumerate(self.q) if key is None or e == key]
        if need:
            n = min(14, len(self.q) - 1 - max(need))
            self.a(f"s_waitcnt lgkmcnt({n})"); self.q = self.q[len(self.q) - n:]
    def read(self, r):
        self.a(r[1]); self.q.append(r[0])
    def op(self, x):
        if isinstance(x, tuple): x[1].op(x[0], x[2]); self.g.st['since'] += 1
        else: self.a(x)
    def fill(self, used):
        ex, st = self.extra, self.g.st
        while used < self.dens and ex:
            if isinstance(ex[0], int):
                if st['since'] >= ex[0]: ex.pop(0); continue
                return
            if ex[0] == 'XW':
                if 'x' in self.q: return
                ex.pop(0); continue
            x = ex.pop(0)
            if callable(x): x(); used += 2; st['since'] = 0; continue
            if isinstance(x, tuple): x[1].op(x[0], x[2]); x = x[0]
            else: self.g.a(x)
            if x.startswith("ds_"): self.q.append('x')
            st['since'] = 0
            used = 0 if x.startswith("v_mfma") else used + (2 if x.startswith(("v_exp", "v_rcp")) else 1)


def c_slab(g, u, vm, q, extra=None, dens=2):
    S = Stage(g, q, extra, dens)
    UL = 2 * NS - 1
    ld = c_loads(u + 3, vm) if u + 3 <= UL else u_loads(u + 2 - UL, vm)
    dr = u_reads(0) if u == UL else []
    vm.wait(('A', u))
    for jj in range(8):
        n = 8 * u + jj
        R = c_wread(n + 3) if n + 3 < 16 * NS else []
        for k, i in enumerate(range(4) if jj % 2 == 0 else range(3, -1, -1)):
            S.wait(('W', n))
            S.a(mfma(ACC(JORD[jj], i), WB(n), AB(u, i), "0" if u == 0 else None))
            used = 1 if k == 3 else 0
            if R: S.read(R.pop(0)); used += 1
            if u % 2 == 1 and u < UL and jj == 4 and k == 2:
                S.a(f"v_add_u32 v{VW2}, {(slot2(u//2+1)-slot2(u//2)) & 0xffffffff}, v{VW2}"); S.a("s_barrier"); used = 2
            elif u == UL and jj == 1 and k == 2:
                S.a(f"v_add_u32 v{VWD}, {(u_base(0)-slot2(NS-1)) & 0xffffffff}, v{VW2}"); S.a("s_barrier"); used = 2
            elif dr and jj >= 2 and used < 2 and (k >= 2 or jj >= 5):
                S.read(dr.pop(0)); used += 1
            if ld and used < 2 and ((k == 2 if u < UL else (jj >= 2 and k < 2)) or isinstance(ld[0], str)):
                S.op(ld.pop(0)); used += 1
            S.fill(used)
    assert not ld and not dr
    return S.q


def unit(g, v, vm, q, extra, dens=2):
    S = Stage(g, q, extra, dens)
    R = u_reads(v + 1) if v < 15 + ND else []
    t = {0: 3, 2: 8, 5: 9, 6: 10, 7: 11}
    for n, w in enumerate(g.o['dld']):
        assert w >= (8, 8, 8, 10, 12, 13, 14, 15)[n]
        t[w] = 16 + n
    t = t.get(v)
    ld = u_loads(t, vm) if t is not None else []
    m = 0
    for k in range(8):
        if k % 4 == 0: vm.wait(('B', v, k >> 2))
        for mi in ((0, 1) if k % 2 == 0 else (1, 0)):
            S.wait(('U', v, k >> 1))
            acc = ACC((4 if v % 8 < 4 else 0) + (k & 3), mi + (2 if v < 8 else 0)) if v < 16 else ACC(k & 3, mi)
            S.a(mfma(acc, WD(k), u_areg(v, k >> 2, mi)))
            used = 1 if m % 4 == 3 else 0
            if R and m == 0:
                S.a(f"v_add_u32 v{VWD}, {(u_base(v+1)-u_base(v)) & 0xffffffff}, v{VWD}"); used += 1
                if v in (3, 12, g.o['r1']): S.a("s_barrier"); used += 1
            elif R:
                S.read(R.pop(0)); used += 1
                if m == 15: S.read(R.pop(0))
            if ld and m in (1, 2, 4, 6, 9, 13):
                S.op(ld.pop(0)); used += 1
            S.fill(used)
            m += 1
    assert not R and not ld
    return S.q


def spaced(lst, n):
    o = []
    for x in lst: o += [x, n]
    return o


def strs(ex):
    return [x for x in ex if not isinstance(x, int)]


def compute(g):
    a = g.a
    a("L_compute:")
    a("v_and_b32 v4, 15, v0\nv_lshrrev_b32 v5, 4, v0")
    a("v_bfe_u32 v6, v4, 3, 1\nv_bfe_u32 v7, v4, 1, 1\nv_lshl_add_u32 v6, v6, 1, v7")
    a(f"v_mul_u32_u24 v{VX}, {BLK}, v6")
    a("v_bfe_u32 v6, v4, 2, 1\nv_and_b32 v7, 1, v4\nv_lshl_add_u32 v6, v6, 1, v7")
    a(f"v_lshl_add_u32 v{VX}, v6, 7, v{VX}\nv_lshl_add_u32 v{VX}, v5, 4, v{VX}")
    a(f"s_mul_i32 s45, s{S_WAVE}, {2*UNIT}\nv_add_u32 v{VX}, s45, v{VX}")
    a("v_and_b32 v6, 1, v5\nv_bfe_u32 v7, v4, 3, 1\nv_lshl_add_u32 v6, v6, 1, v7")
    a(f"v_mul_u32_u24 v{VW}, {BLK}, v6")
    a("v_lshrrev_b32 v6, 1, v5\nv_bfe_u32 v7, v4, 2, 1\nv_lshl_add_u32 v6, v6, 2, v7")
    a(f"v_lshl_add_u32 v{VW}, v6, 7, v{VW}\nv_and_b32 v6, 3, v4\nv_lshl_add_u32 v{VW}, v6, 3, v{VW}")
    a(f"v_add_u32 v{VW}, {WBASE}, v{VW}")
    a(f"v_lshrrev_b32 v6, 5, v0\nv_and_b32 v7, 31, v0\nv_lshlrev_b32 v7, 3, v7\nv_lshl_add_u32 v{VQ}, v6, 9, v7")
    a(f"v_add_u32 v{VQ}, {WBASE+3*UNIT}, v{VQ}")
    for r in range(48, 256): a(f"v_mov_b32 v{r}, 0")
    a(f"s_mov_b32 s45, 7\ns_mov_b32 s46, 0\ns_mov_b32 s48, {(-2*XSLOT) & 0xffffffff}\ns_mov_b32 s49, {XSLOT}")
    a("s_mov_b32 s50, 0x3fb8aa3b\ns_mov_b32 s51, 0x358637bd")
    a(f"s_lshl_b32 s52, s{S_MB8}, 16\ns_lshl_b32 s53, s{S_WAVE}, 14\ns_add_u32 s52, s52, s53")
    a(f"s_mul_i32 s53, s{S_QD}, 7")
    a(f"s_add_u32 s66, s53, 6\ns_lshl_b32 s66, s66, 19\ns_add_u32 s66, s66, s52")
    a(f"s_lshr_b32 s55, s{S_C}, 1\ns_lshl_b32 s55, s55, 11\ns_add_u32 s66, s66, s55")
    a(f"s_and_b32 s55, s{S_C}, 1\ns_lshl_b32 s55, s55, 10\ns_add_u32 s66, s66, s55")
    a("s_add_u32 s67, s66, 8192")
    a(f"s_lshr_b32 s57, s{S_WAVE}, 1\ns_and_b32 s58, s{S_WAVE}, 1")
    a(f"s_lshl_b32 s59, s2, 11\ns_lshl_b32 s55, s{S_WAVE}, 7\ns_add_u32 s59, s59, s55\ns_add_u32 s59, s59, {WS_FLAG}")
    a(f"s_add_u32 s60, s59, {F_H2}\ns_add_u32 s61, s59, {F_X}")
    a("v_lshlrev_b32 v4, 4, v0\nv_mov_b32 v6, 1")
    lane_goodcol(g, 7, 5)
    a("s_waitcnt lgkmcnt(0)")
    srd(g, SRD_WS, 26, 0x10000000)
    if g.o.get('prio'): a(f"s_setprio {g.o['prio']}")
    a("s_barrier")
    g.stamp(1)

    def em(lst):
        for x in lst: a(x)
    def first_loads(vm):
        a(f"s_lshl_b32 s55, s{S_RH}, 13\ns_xor_b32 s47, s55, 8192\ns_add_u32 s55, s55, s52\ns_add_u32 s47, s47, s52\nv_add_u32 v{VA0}, s55, v7\nv_add_u32 v{VA1}, s47, v7")
        a(f"s_mul_i32 s46, s32, {14<<19}\ns_lshl_b32 s45, s32, 20\nv_add_u32 v{VW2}, {(slot2(0)-WBASE) & 0xffffffff}, v{VW2}")
        g.stamp(9)
        a("s_barrier")
        g.stamp(10)
        for x in c_loads(0, vm) + c_loads(1, vm):
            if isinstance(x, tuple): vm.op(x[0], x[2])
            else: a(x)
    def c_begin(vm):
        g.stamp(4)
        a("s_waitcnt lgkmcnt(0)")
        for x in c_loads(2, vm):
            if isinstance(x, tuple): vm.op(x[0], x[2])
            else: a(x)
        a("s_barrier")
        g.stamp(5)
        R = c_wread(0) + c_wread(1) + c_wread(2)
        for _, x in R: a(x)
        return [k for k, _ in R]
    def flag_ex(vm, tag, so):
        return lambda: (vm.wait(tag), a(flagops(6, so)), vm.mark('f', 1))
    def quarter(tmp):
        o = [f"v_bfe_u32 v{VQ}, v0, 4, 1", f"v_mul_u32_u24 v{VQ}, 3584, v{VQ}", f"v_lshrrev_b32 v{tmp}, 5, v0", f"v_lshlrev_b32 v{tmp}, 9, v{tmp}",
             f"v_sub_u32 v{VQ}, v{VQ}, v{tmp}", f"v_add_u32 v{VQ}, v{VQ}, v7"]
        for p in (1, 0):
            d = AC(12, 2 * p)
            o += h_cvt(d, d, d + 4)
        for p in (1, 0):
            d = AC(12, 2 * p)
            o += [f"s_nop 1\nv_permlane16_swap_b32 v{d}, v{d+2}", f"v_permlane16_swap_b32 v{d+1}, v{d+3}",
                  f"buffer_store_dwordx4 {vr(d)}, v{VQ}, {W}, s{66+p} offen sc1"]
        return o

    a(f"s_cmp_ge_u32 s{S_C}, 2\ns_cbranch_scc1 L_cq")
    a(f"s_add_u32 s55, s53, s{S_C}\ns_lshl_b32 s55, s55, 19\ns_add_u32 s55, s55, s52")
    p1_loop(g, True)
    SEL = lambda t: 224 + 4 * t
    T = lambda t: (176 + 4 * t) if t < 4 else (208 + 4 * (t - 4)) if t < 8 else 204
    ex2 = ["v_and_b32 v201, 3, v0", "v_mov_b32 v202, 0x3f803f80"]
    for t in range(4):
        ex2 += [f"v_cmp_eq_u32 vcc, {t}, v201\ns_nop 1\nv_cndmask_b32 v{SEL(t)}, 0, v202, vcc"] + [f"v_mov_b32 v{SEL(t)+r}, v{SEL(t)}" for r in (1, 2, 3)]
    ex2 += quarter(200)
    for s_ in range(4):
        for p in range(2):
            ex2 += phi_regs(list(range(AC(s_, 2 * p), AC(s_, 2 * p) + 8)), 192) + pack8(AC(s_, 2 * p), AC(s_, 2 * p + 1))
        if s_ == 1: ex2.append(None)
    rest = p1_tail(g, True, h_line_store(8, 55), ex2, flagops(6, 59))
    g.stamp(2)
    k = rest.index(None)
    em(rest[:k]); rest = rest[k + 1:]
    for s_ in range(4, 8):
        for p in (1, 0): em(pack8(AC(s_, 2 * p), AC(s_, 2 * p + 1)))
    def kv_mfmas(h):
        o = []
        for p in range(2):
            for dt in range(2):
                for e in range(2): o.append(mfma(T((h * 2 + e) * 2 + dt), AC(2 * h + dt, 2 * p), AC(4 + 2 * h + e, 2 * p), "0" if p == 0 else None))
                o.append(mfma(T(8), AC(2 * h + dt, 2 * p), SEL(2 * h + dt), "0" if (h, p, dt) == (0, 0, 0) else None))
        return o
    def hand(k):
        l0, l1 = g.lab("own"), g.lab("own")
        a(f"s_sub_u32 s55, s{S_WAVE}, {k+1}\ns_and_b32 s55, s55, 3\ns_cmp_eq_u32 s55, 3\ns_cbranch_scc1 {l0}")
        a(f"s_lshl_b32 s55, s55, 11\ns_add_u32 s55, s55, {P2END+k*6144}\nv_add_u32 v5, s55, v4")
        a(f"ds_write_b128 v5, {vr(T(2*k))}\nds_write_b128 v5, {vr(T(2*k+1))} offset:1024\ns_branch {l1}\n{l0}:")
        for r in range(8): a(f"v_mov_b32 v{40+r}, v{T(2*k)+r}")
        a(f"{l1}:")
    for x in kv_mfmas(0):
        a(x); em(rest[:3]); rest = rest[3:]
    vm = VM(a, ['h2'])
    em(rest[:12]); hand(0); em(rest[12:40]); hand(1); first_loads(vm); em(rest[40:])
    a("s_nop 1")
    em(kv_mfmas(1))
    a(f"s_lshl_b32 s56, s{S_PAIR}, 3\ns_add_u32 s56, s56, s{S_MB8}\ns_mul_i32 s56, s56, 9216\ns_add_u32 s56, s56, {WS_KVP}")
    a(f"s_add_u32 s62, s56, 8192\ns_cmp_eq_u32 s{S_WAVE}, 0\ns_cselect_b32 s62, s62, 0x10000000\ns_lshl_b32 s55, s{S_WAVE}, 11\ns_add_u32 s56, s56, s55")
    hand(2); hand(3)
    a(f"s_lshl_b32 s55, s{S_WAVE}, 10\nv_add_u32 v89, {P2END+24576}, v4\nv_add_u32 v5, s55, v89\nds_write_b128 v5, {vr(T(8))}")
    a(f"s_mul_i32 s55, s{S_WAVE}, 6144\ns_add_u32 s55, s55, {P2END}\nv_add_u32 v88, s55, v4")
    g.stamp(3)
    q = c_begin(vm)
    ex = [flag_ex(vm, 'h2', 60)]
    ex += [f"ds_read_b128 {vr(48+4*t)}, v88 offset:{t*1024}" for t in range(6)] + ['XW']
    ex += [f"v_add_f32 v{40+r}, v{40+r}, v{48+r}" for r in range(8)] + [f"v_add_f32 v{64+r}, v{64+r}, v{56+r}" for r in range(8)]
    ex += [f"ds_read_b128 {vr(48+4*t)}, v89 offset:{t*1024}" for t in range(4)]
    ex += [f"v_add_f32 v{40+r}, v{40+r}, v{64+r}" for r in range(8)]
    ex += [(f"buffer_store_dwordx4 {vr(40+4*t)}, v4, {W}, s56 offen offset:{t*1024} sc1", vm, 'kv') for t in range(2)] + ['XW']
    ex += [f"v_add_f32 v{48+r}, v{48+r}, v{56+r}" for r in range(8)] + [f"v_add_f32 v{48+r}, v{48+r}, v{52+r}" for r in range(4)]
    ex += [(f"buffer_store_dwordx4 v[48:51], v4, {W}, s62 offen sc1", vm, 'kv')]
    JU = 3
    for u in range(JU): q = c_slab(g, u, vm, q, ex)
    assert not ex
    qj, vj = list(q), [x for x in vm.q if x not in ('kv', 'f')]
    a("s_branch L_c2join")
    a("L_cq:")
    a(f"s_lshl_b32 s55, s{S_C}, 1\ns_add_u32 s55, s55, s53\ns_sub_u32 s55, s55, 2\ns_lshl_b32 s55, s55, 19\ns_add_u32 s55, s55, s52")
    a("s_add_u32 s62, s55, 0x80000")
    p1_loop(g, False)
    em(p1_tail(g, False, h_line_store(4, 55), h_line_store(8, 62) + quarter(AC(5, 0)), flagops(6, 59)))
    g.stamp(2)
    vm = VM(a, ['h2'])
    hand_q = []
    for h in range(2):
        for i in (2, 3, 0, 1): hand_q.append(pack8(AC(2 * h, i), AC(2 * h + 1, i)) + [f"ds_write_b128 v5, {vr(PQ(i,h))} offset:{(i*2+h)*1024}"])
    a(f"s_lshl_b32 s55, s{S_WAVE}, 13\nv_add_u32 v5, s55, v4")
    phg = g.o.get('phig', 4)
    for x in hand_q[:phg]: em(x)
    first_loads(vm)
    for x in hand_q[phg:]: em(x)
    g.stamp(3)
    q = c_begin(vm)
    ex = [flag_ex(vm, 'h2', 60)]
    for u in range(JU): q = c_slab(g, u, vm, q, ex)
    assert not ex and q == qj and [x for x in vm.q if x != 'f'] == vj
    a("L_c2join:")
    vm.q = list(vj)
    pre = (f"s_lshl_b32 s68, s2, 17\ns_lshl_b32 s56, s{S_WAVE}, 13\ns_add_u32 s68, s68, s56\n" +
           "".join(f"s_xor_b32 s{61+p}, s68, {hex(p<<17)}\ns_add_u32 s{61+p}, s{61+p}, {WS_PART+((p-1)<<15)}\ns_add_u32 s{64+p}, s{61+p}, 4096\n" for p in (1, 2, 3)) +
           f"s_add_u32 s59, s59, {F_P}\ns_lshl_b32 s68, s{S_WAVE}, 12\ns_add_u32 s68, s68, {P2END}\n"
           f"s_add_u32 s69, s{S_WAVE}, {NS+2}\ns_and_b32 s69, s69, {NSL-1}\ns_mul_i32 s69, s69, {P2SLOT}\ns_add_u32 s69, s69, {2*UNIT}\n"
           f"s_mov_b32 s28, s18\ns_mov_b32 s29, s19\ns_mov_b32 s30, {hex(2048*1024*2)}\ns_mov_b32 s31, 0x20000\n"
           f"s_lshl_b32 s55, s52, 3\ns_lshl_b32 s56, s{S_RH}, 16\ns_add_u32 s55, s55, s56\n"
           f"s_lshl_b32 s56, s{S_CB}, 8\ns_add_u32 s55, s55, s56\ns_lshl_b32 s56, s{S_KH}, 7\ns_add_u32 s55, s55, s56\n"
           f"s_lshl_b32 s50, s{S_WAVE}, 1\ns_add_u32 s50, s50, s{S_RH}\ns_lshl_b32 s50, s50, 7\ns_add_u32 s50, s50, {LDS_G}\n"
           f"v_and_b32 v{SEL0+6}, 15, v0\nv_lshrrev_b32 v{SEL0+7}, 4, v0\nv_lshlrev_b32 v{SEL0+7}, 2, v{SEL0+7}\nv_sub_u32 v{SEL0+6}, v{SEL0+6}, v{SEL0+7}\n"
           f"v_and_b32 v{SEL0+7}, 1, v0\nv_lshlrev_b32 v{SEL0+7}, 4, v{SEL0+7}\nv_mov_b32 v{SEL0}, 0x3f80\nv_lshlrev_b32 v{SEL0+7}, v{SEL0+7}, v{SEL0}\nv_lshrrev_b32 v{SEL0+6}, 1, v{SEL0+6}").split("\n")
    pre += [f"v_cmp_eq_u32 vcc, {k}, v{SEL0+6}\ns_nop 1\nv_cndmask_b32 v{SEL0+2+k}, 0, v{SEL0+7}, vcc" for k in range(2)]
    pre += [f"v_mov_b32 v{SEL0+r}, 0" for r in (0, 1, 4, 5)]
    ex = pre
    for u in range(JU, 2 * NS): q = c_slab(g, u, vm, q, ex)
    def send(p, sp, mi):
        j, i = 4 * (p >> 1) + 2 * sp, 2 * (p & 1) + mi
        return pack8(ACC(j, i), ACC(j + 1, i)) + [(f"buffer_store_dwordx4 {vr(ACC(j,i))}, v7, {W}, s{61+p+3*mi} offen offset:{sp*2048} sc1", vm, ('ps', p))]
    def rdp(p):
        return [f"ds_read_b128 {vr(PP(p,f))}, v{VFL if p == 3 else VPO} offset:{(4096 if p == 2 else 0)+f*1024}" for f in range(4)]
    def addp(p):
        return [mfma(ACC(2 * sp + t, mi), SEL0 + 2 - 2 * t, PP(p, mi * 2 + sp)) for mi in range(2) for sp in range(2) for t in range(2)]
    XF = g.o['xf']
    PO = (3, 1, 2)
    for v in range(17 + ND):
        if v == 1:
            assert not ex
            ex += (f"v_add_u32 v{VFL}, s68, v4\nv_add_u32 v{VPO}, s69, v4\nv_and_b32 v{VOUT}, 15, v0\nv_lshl_add_u32 v{GG}, v{VOUT}, 2, s50\n"
                   f"v_lshlrev_b32 v{VOUT}, 11, v{VOUT}\nv_bfe_u32 v{GG+1}, v0, 4, 1\nv_lshl_add_u32 v{VOUT}, v{GG+1}, 5, v{VOUT}\n"
                   f"v_lshrrev_b32 v{GG+1}, 5, v0\nv_lshl_add_u32 v{VOUT}, v{GG+1}, 4, v{VOUT}\n"
                   f"ds_read_b32 v{GG+1}, v{GG} offset:64\nds_read_b32 v{GG}, v{GG}").split("\n")
            ex += ['XW', f"v_add_f32 v{GG}, 1.0, v{GG}", f"v_add_f32 v{GG+1}, 1.0, v{GG+1}", f"v_rcp_f32 v{GG}, v{GG}", f"v_rcp_f32 v{GG+1}, v{GG+1}"]
        if 4 <= v < 16:
            if v % 4 == 0:
                snd = [send(PO[v // 4 - 1], sp, mi) for sp in range(2) for mi in range(2)]
                g.st['since'] = 0; ex.append(6)
            if v >= 12 and g.o.get('fast2', 1):
                if v % 4 < 2: ex += snd[2 * (v % 4)] + snd[2 * (v % 4) + 1]
            elif v % 4 < 2: ex += snd[2 * (v % 4)][:4] + [snd[v % 4][4]] + snd[2 * (v % 4) + 1][:4]
            else: ex += [snd[v % 4][4]]
        if v == 16: g.stamp(6)
        if v in (0, 4, 8, 12, 20): g.stamp({0: 11, 4: 12, 8: 13, 12: 14, 20: 15}[v])
        for r in range(3):
            if v == XF[r]:
                assert v >= (8, 12, 14 if g.o.get('fast2', 1) else 16)[r]
                vm.wait(('ps', PO[r])); a(flagops(6, 59)); vm.mark('f', 1); a(f"v_mov_b32 v6, {r+2}")
        if v == g.o['r1']:
            assert v >= 16 and not ex
            g.st['since'] = 0
            ex += [4] + rdp(3) + rdp(1) + ['XW'] + addp(3) + addp(1)
        if v < 16 + ND: q = unit(g, v, vm, q, ex, dens=g.o.get('ydens', 3) if v < 16 else g.o.get('ddens', 3))
        if 4 <= v < 16: assert not [x for x in ex if (isinstance(x, tuple) and x[2][0] == 'ps') or (isinstance(x, str) and x.startswith("v_cvt"))]
    assert not ex
    a("s_barrier")
    em(rdp(2)); a("s_waitcnt lgkmcnt(2)"); em(addp(2)[:4]); a("s_waitcnt lgkmcnt(0)"); em(addp(2)[4:])
    g.stamp(7)
    a("s_nop 3")
    for mi in range(2):
        for hf in range(2):
            for j in range(2):
                for r in range(4): a(f"v_mul_f32 v{ACC(2*hf+j,mi)+r}, v{GG+mi}, v{ACC(2*hf+j,mi)+r}")
            d = ACC(2 * hf, mi)
            em(pack8(d, ACC(2 * hf + 1, mi)))
            a(f"s_add_u32 s56, s55, {0x8000*mi + 64*hf}\ns_nop 0\nv_permlane16_swap_b32 v{d}, v{d+2}\nv_permlane16_swap_b32 v{d+1}, v{d+3}")
            a(f"buffer_store_dwordx4 {vr(d)}, v{VOUT}, s[28:31], s56 offen {g.o.get('outflag','')}")
    if g.o['prof']:
        a("s_waitcnt vmcnt(0)")
        g.stamp(8)
    if g.o.get('probe') is not None:
        k = g.o['probe']
        if k == 'min':
            k = 0
            srd(g, 28, 24, 256)
            a("buffer_load_dword v5, off, s[28:31], 0 offset:4 sc1\ns_waitcnt vmcnt(0) lgkmcnt(0)\nv_readfirstlane_b32 s70, v5\ns_nop 3\ns_not_b32 s70, s70")
        a(f"s_waitcnt lgkmcnt(0)\ns_add_u32 s55, s{70+2*k}, 6000\nL_probe:\ns_memrealtime s[56:57]\ns_waitcnt lgkmcnt(0)\ns_sub_u32 s56, s56, s55\ns_cmp_lt_i32 s56, 0\ns_cbranch_scc1 L_probe\ns_endpgm")
    prof_dump(g, 0, 0)
    a("s_endpgm")


def q_call(g, n):
    K1 = g.o['k1']
    k = n if n < 4 else 4 + n - K1 if K1 <= n <= K1 + g.o['noc'] else None
    if k is None: return
    l = g.lab("qc")
    g.a(f"s_cmp_lt_u32 s{S_C}, 2\ns_cbranch_scc1 {l}\ns_call_b64 s[84:85], L_q{k}\n{l}:")


def q_chunks(g):
    a = g.a
    QR = lambda f: 128 + 4 * f
    def phi(f):
        for r in range(4): a(f"v_lshlrev_b32 v{160+2*r}, 16, v{QR(f)+r}\nv_and_b32 v{161+2*r}, 0xffff0000, v{QR(f)+r}")
        for r in range(8): a(f"v_mul_f32 v{168+r}, 0x3fb8aa3b, v{160+r}")
        for r in range(8): a(f"v_exp_f32 v{168+r}, v{168+r} clamp\nv_max_f32 v{160+r}, 0x358637bd, v{160+r}")
        for r in range(8): a(f"v_add_f32 v{160+r}, v{160+r}, v{168+r}")
        for r in range(4): a(f"v_cvt_pk_bf16_f32 v{QR(f)+r}, v{160+2*r}, v{161+2*r}")
    for k in range(4):
        a(f"L_q{k}:")
        if g.o.get('pprio'): a(f"s_setprio {g.o['pprio']}")
        if k == 0:
            a(f"s_sub_u32 s86, s{S_WAVE}, 4\ns_lshl_b32 s82, s86, 13\nv_lshl_add_u32 v224, v0, 4, s82")
            for f in range(8): a(f"ds_read_b128 {vr(QR(f))}, v224 offset:{f*1024}")
            a(f"s_lshl_b32 s83, s2, 11\ns_lshl_b32 s82, s86, 7\ns_add_u32 s83, s83, s82\ns_add_u32 s83, s83, {WS_FLAG+F_X}")
            a(f"s_add_u32 s82, s{S_PAIR}, 56\ns_lshl_b32 s82, s82, 3\ns_add_u32 s82, s82, s{S_MB8}\ns_lshl_b32 s82, s82, 2\ns_add_u32 s82, s82, s86\ns_lshl_b32 s82, s82, 14")
            a(f"v_lshlrev_b32 v224, 4, v0\nv_add_u32 v224, {P2END}, v224\nv_mov_b32 v226, 1\ns_waitcnt lgkmcnt(0)")
        phi(2 * k); phi(2 * k + 1)
        a("s_setpc_b64 s[84:85]")
    noc = g.o['noc']
    tiles = {2: [(0, 1), (2, 3)], 3: [(0,), (1, 2), (3,)], 4: [(0,), (1,), (2,), (3,)]}[noc]
    for k in range(noc):
        a(f"L_q{4+k}:")
        if g.o.get('qprio'): a(f"s_setprio {g.o['qprio']}")
        lane_goodcol(g, 225, 227)
        if k == 0:
            for f in range(6): a(f"ds_read_b128 {vr(176+4*f)}, v224 offset:{f*1024}")
            a(f"s_lshl_b32 s86, s{S_WAVE}, 8\ns_add_u32 s86, s86, {LDS_G-1024}\nv_and_b32 v227, 15, v0\nv_lshl_add_u32 v227, v227, 2, s86")
            for i in range(4): a(f"ds_read_b32 v{228+i}, v227 offset:{i*64}")
            a("s_waitcnt lgkmcnt(0)")
        for i in tiles[k]:
            for h in range(2):
                for e in (2, 0, 1): a(mfma(200 + 12 * h + 4 * e, 176 + 4 * (3 * h + e), QR(2 * i + h), "0"))
            a(f"s_add_u32 s86, s82, {4096*i}\ns_nop 3")
            for h in range(2):
                t = 200 + 12 * h
                a(f"v_add_f32 v{t+8}, 0x358637bd, v{t+8}\nv_rcp_f32 v{t+8}, v{t+8}\ns_nop 0\nv_mul_f32 v{t+8}, v{228+i}, v{t+8}")
                for r in range(8): a(f"v_mul_f32 v{t+r}, v{t+r}, v{t+8}")
                for r in range(4): a(f"v_cvt_pk_bf16_f32 v{QR(2*i+h)+r}, v{t+2*r}, v{t+2*r+1}")
                a(f"buffer_store_dwordx4 {vr(QR(2*i+h))}, v225, {W}, s86 offen offset:{h*2048} sc1")
        if g.o.get('qprio'): a("s_setprio 0")
        a("s_setpc_b64 s[84:85]")
    a(f"L_q{4+noc}:\ns_waitcnt vmcnt(0)\n" + flagops(226, 83) + "\ns_setpc_b64 s[84:85]")


def aux_rx(g):
    a = g.a
    a("L_rx:")
    lane_goodcol(g, 225, 227)
    a(f"v_add_u32 v224, 1024, v225\ns_sub_u32 s86, s{S_WAVE}, 4")
    a(f"s_lshl_b32 s82, s2, 17\ns_lshl_b32 s83, s86, 13\ns_add_u32 s82, s82, s83\ns_add_u32 s82, s82, {WS_PART}")
    a(f"s_lshl_b32 s83, s2, 11\ns_lshl_b32 s47, s86, 7\ns_add_u32 s83, s83, s47")
    a(f"s_lshl_b32 s84, s86, 12\ns_add_u32 s84, s84, {P2END}")
    a(f"s_add_u32 s85, s86, {NS+2}\ns_and_b32 s85, s85, {NSL-1}\ns_mul_i32 s85, s85, {P2SLOT}\ns_add_u32 s85, s85, {2*UNIT}")
    a("s_waitcnt vmcnt(0) lgkmcnt(0)\ns_barrier")
    for r, p in enumerate((3, 1, 2)):
        a(f"s_xor_b32 s47, s83, {p<<11}\ns_add_u32 s47, s47, {WS_FLAG+F_P}")
        iss = lambda: a(f"buffer_load_dword v226, off, {W}, s47 sc1")
        if r == 2: a("s_waitcnt vmcnt(0)"); iss(); a("s_barrier")
        else: iss()
        poll_check(g, iss, 226, 1, r + 1, "gt")
        for mi in range(2):
            a(f"s_add_u32 m0, s{84 if p == 3 else 85}, {(4096 if p == 2 else 0)+mi*2048}\ns_add_u32 s47, s82, {((p-1)<<15)+mi*4096}")
            a(f"buffer_load_dwordx4 v225, {W}, s47 offen sc1 lds\nbuffer_load_dwordx4 v224, {W}, s47 offen offset:1024 sc1 lds")
    a("s_waitcnt vmcnt(0)\ns_endpgm")


def loader(g):
    def a(x):
        if not g.o.get('trace'): return g.a(x)
        for ln in x.split("\n"):
            g.a(ln)
            if ln.strip() == "s_barrier":
                g.a(("s_memtime" if g.o['trace'] == 'cyc' else "s_memrealtime") + " s[100:101]\ns_waitcnt lgkmcnt(0)\ns_mov_b32 m0, s44\ns_add_u32 s44, s44, 1\nv_writelane_b32 v32, s100, m0\ns_cmp_lg_u32 s44, 33\ns_cbranch_scc1 1\nv_mov_b32 v33, v32")
    if g.o.get('trace'): a("s_mov_b32 s44, 0\nv_mov_b32 v32, 0\nv_mov_b32 v33, 0")
    LW = 45
    if g.o.get('lprio'): a(f"s_setprio {g.o['lprio']}")
    a(f"s_sub_u32 s{LW}, s{S_WAVE}, 4")
    a("v_lshrrev_b32 v1, 5, v0\nv_bfe_u32 v2, v0, 4, 1\nv_lshlrev_b32 v1, 4, v1\nv_lshl_add_u32 v1, v2, 2, v1\nv_bfe_u32 v2, v0, 3, 1\nv_add_u32 v1, v1, v2")
    a(f"s_lshl_b32 s61, s{LW}, 3\nv_add_u32 v1, s61, v1\nv_and_b32 v2, 7, v0\nv_lshlrev_b32 v2, 4, v2")
    a(f"s_lshl_b32 s61, s{S_MB8}, 19\nv_lshl_add_u32 v4, v1, 11, v2\nv_add_u32 v4, s61, v4\nv_add_u32 v5, {4096-BLK}, v4")
    a(f"s_movk_i32 s60, 6144\ns_cmp_ge_u32 s{S_C}, 2\ns_cselect_b32 s60, 7168, s60")
    a(f"s_cselect_b32 s61, 0, 2048\ns_lshl_b32 s62, s{S_PAIR}, 7\ns_add_u32 s61, s61, s62")
    a(f"v_mul_u32_u24 v6, 6144, v1\nv_add3_u32 v6, v6, v2, s61\nv_add_u32 v7, {12288-BLK}, v6")
    a(f"s_mul_i32 s63, s{S_QD}, 7\ns_lshl_b32 s64, s{S_C}, 1\ns_add_u32 s64, s64, s63\ns_sub_u32 s65, s64, 2\ns_lshl_b32 s65, s65, 7\ns_add_u32 s62, s62, 4096")
    a(f"s_cmp_ge_u32 s{S_C}, 2\ns_cselect_b32 s61, s65, s62")
    a(f"v_mul_lo_u32 v8, v1, s60\nv_add3_u32 v8, v8, v2, s61\ns_lshl_b32 s62, s60, 1\ns_sub_u32 s62, s62, {BLK}\nv_add_u32 v9, s62, v8")
    a(f"s_sub_u32 s64, s64, 1\ns_add_u32 s65, s63, s{S_C}\ns_cmp_ge_u32 s{S_C}, 2\ns_cselect_b32 s61, s64, s65\ns_lshl_b32 s61, s61, 7")
    a(f"v_mul_u32_u24 v10, 7168, v1\nv_add3_u32 v10, v10, v2, s61\nv_add_u32 v11, {14336-BLK}, v10")
    a("v_bfe_u32 v12, v0, 4, 1\nv_bfe_u32 v13, v0, 3, 1\nv_lshlrev_b32 v12, 2, v12\nv_lshl_add_u32 v12, v13, 3, v12\nv_bfe_u32 v13, v0, 1, 2\nv_add_u32 v12, v12, v13")
    a(f"s_lshl_b32 s61, s{LW}, 4\nv_add_u32 v12, s61, v12\nv_mul_u32_u24 v12, 7168, v12\nv_and_b32 v13, 1, v0\nv_lshl_add_u32 v12, v13, 4, v12")
    a(f"s_add_u32 s61, s63, 6\ns_lshl_b32 s61, s61, 7\ns_lshl_b32 s62, s{S_C}, 5\ns_add_u32 s61, s61, s62\nv_add_u32 v12, s61, v12")
    a("s_lshl_b32 s60, s60, 5")
    a(f"s_mul_i32 s66, s{LW}, {2*BLK}")
    a(f"s_mov_b32 s61, s66\ns_lshl_b32 s62, s{S_PHI}, 7\ns_mov_b32 s63, 0\ns_lshl_b32 s64, s{S_PHI}, 1\ns_add_u32 s65, s66, {WBASE}")
    a(f"s_add_u32 s67, s66, {XRING}\ns_add_u32 s68, s66, {WBASE+4*WSLOT}")
    a(f"s_lshl_b32 s69, s{LW}, 9\ns_sub_u32 s69, s69, s66\ns_add_u32 s69, s69, {3*UNIT}")
    a(f"s_mov_b32 s30, {hex(2048*1024*2)}\ns_mov_b32 s31, 0x20000\ns_mov_b32 s50, {hex(1024*3072*2)}\ns_mov_b32 s51, 0x20000")
    a(f"s_mov_b32 s58, {hex(1024*3584*2)}\ns_mov_b32 s59, 0x20000\ns_mov_b32 s55, 0x20000")
    a("s_waitcnt lgkmcnt(0)")
    a("s_mov_b64 s[28:29], s[4:5]\ns_mov_b64 s[48:49], s[6:7]\ns_mov_b64 s[56:57], s[12:13]")
    a(f"s_cmp_ge_u32 s{S_C}, 2")
    a("s_cselect_b64 s[52:53], s[12:13], s[6:7]\ns_cselect_b32 s54, s58, s50")

    def xhalf():
        a("s_mov_b32 m0, s61\ns_add_u32 s46, s62, s63")
        for u in range(4):
            if u: a(f"s_add_u32 m0, m0, {UNIT}\ns_add_u32 s46, s46, 0x10000")
            a("buffer_load_dwordx4 v4, s[28:31], s46 offen lds")
            a(f"buffer_load_dwordx4 v5, s[28:31], s46 offen offset:{BLK} lds")
        a(f"s_add_u32 s61, s61, {4*UNIT}\ns_cmp_eq_u32 s61, s67\ns_cselect_b32 s61, s66, s61")
        a("s_xor_b32 s63, s63, 0x40000\ns_cselect_b32 s47, 0, 128\ns_add_u32 s62, s62, s47\ns_and_b32 s62, s62, 2047")

    def wslab():
        for ln, (sr, ld) in enumerate([(48, 32 * 6144), (52, "s60"), (56, 32 * 7168)]):
            a(f"s_add_u32 m0, s65, {ln*UNIT}\ns_mul_i32 s35, s64, {ld}")
            a(f"buffer_load_dwordx4 v{6+2*ln}, s[{sr}:{sr+3}], s35 offen lds")
            a(f"buffer_load_dwordx4 v{7+2*ln}, s[{sr}:{sr+3}], s35 offen offset:{BLK} lds")
        a("s_add_u32 m0, s65, s69\ns_mov_b32 exec_hi, 0")
        a("buffer_load_dwordx4 v12, s[56:59], s35 offen lds")
        a("s_mov_b32 exec_hi, -1")
        a(f"s_add_u32 s65, s65, {WSLOT}\ns_cmp_eq_u32 s65, s68\ns_cselect_b32 s65, s67, s65")
        a("s_add_u32 s64, s64, 1\ns_and_b32 s64, s64, 31")

    g.stamp(1)
    xhalf(); wslab(); xhalf(); wslab(); g.stamp(2)
    a("s_waitcnt vmcnt(7)"); g.stamp(3)
    a("s_barrier")
    SM = g.o.get('smooth', 1)
    if SM:
        xhalf(); xhalf(); wslab()
        a("s_waitcnt vmcnt(23)\ns_barrier")
        wslab(); xhalf(); wslab()
        a("s_waitcnt vmcnt(22)\ns_barrier")
        xhalf(); wslab(); xhalf()
    else:
        xhalf(); wslab(); xhalf(); wslab(); xhalf()
    g.stamp(4)
    real_a, buf = g.a, []
    g.a = lambda x: buf.extend(x.split("\n"))
    srd(g, SRD_WS, 26, 0x10000000)
    a(f"s_mov_b32 s10, {hex(1024*1024*2)}\ns_mov_b32 s11, 0x20000")
    a(f"s_mov_b64 s[12:13], s[14:15]\ns_mov_b32 s14, {hex(3584*1024*2)}\ns_mov_b32 s15, 0x20000")
    a("v_lshrrev_b32 v1, 5, v0\nv_bfe_u32 v3, v0, 4, 1\nv_lshlrev_b32 v1, 3, v1\nv_lshl_add_u32 v1, v3, 4, v1\nv_bfe_u32 v3, v0, 3, 1\nv_add_u32 v1, v1, v3")
    a(f"s_lshl_b32 s4, s{LW}, 2\nv_add_u32 v1, s4, v1")
    a(f"s_lshl_b32 s4, s{S_CB}, 8\ns_lshl_b32 s5, s{S_KH}, 7\ns_add_u32 s4, s4, s5")
    a("v_lshl_add_u32 v14, v1, 11, v2\nv_add_u32 v14, s4, v14\nv_xor_b32 v16, 128, v14")
    a(f"v_add_u32 v15, {4096-BLK}, v14\nv_add_u32 v17, {4096-BLK}, v16")
    a(f"s_lshl_b32 s5, s{S_MB8}, 19\ns_sub_u32 s4, s4, s5")
    a(f"v_add_u32 v24, s4, v4\nv_xor_b32 v26, 128, v24\nv_add_u32 v25, {4096-BLK}, v24\nv_add_u32 v27, {4096-BLK}, v26")
    lane_h(g, 21, 22, 17)
    a(f"s_mul_i32 s6, s32, {14<<17}\ns_lshl_b32 s7, s32, 18")
    a("s_mov_b64 s[24:25], s[12:13]\ns_mov_b32 s26, s14\ns_mov_b32 s27, 0x20000")
    if g.o.get('w2c', 0):
        lk, ln = g.lab("wc"), g.lab("wc")
        a(f"s_and_b32 s18, s{S_CB}, 3\ns_cmp_eq_u32 s18, 1\ns_cbranch_scc0 {ln}")
        a(f"s_lshr_b32 s18, s{S_CB}, 2\ns_mul_i32 s18, s18, {1024-128}\ns_sub_u32 s18, {WS_W2C-384}, s18\ns_add_u32 s18, s20, s18\ns_addc_u32 s19, s21, 0")
        a(f"s_cmp_eq_u32 s{S_KH}, 1\ns_cbranch_scc1 {lk}\ns_mov_b64 s[24:25], s[18:19]\ns_branch {ln}\n{lk}:\ns_mov_b64 s[12:13], s[18:19]\n{ln}:")
    g.a = real_a
    cut = max(i for i, x in enumerate(buf) if x.startswith("s_mov_b64 s[24:25], s[12:13]"))
    NU = 6
    a(f"s_mov_b32 s34, {27-NU-2*SM}")
    a("L_l1:")
    a("s_waitcnt vmcnt(30)\ns_barrier")
    wslab(); xhalf()
    a("s_sub_u32 s34, s34, 1\ns_cmp_lg_u32 s34, 0\ns_cbranch_scc1 L_l1")
    t0 = 27 - NU
    vm = VM(a, [('I', t0 - 3)] * 15 + [('I', t0 - 2)] * 15 + [('I', t0 - 1)] * 15)
    def wstage(m):
        for ln in range(2):
            for kk in range(2):
                a(f"s_add_u32 m0, s66, {slot2(m)+(ln*2+kk)*UNIT}")
                if m < 14:
                    vb, sr = (24 if ORD[m] % 7 == 6 else 14) + 2 * ln, 24 if ln else 12
                    a(f"s_add_u32 s47, s6, {(ORD[m]<<17)+(kk<<16)}")
                elif m < 16:
                    vb, sr = 14 + 2 * ln, 8
                    a(f"s_add_u32 s47, s7, {((ND+m-14)<<17)+(kk<<16)}")
                else:
                    vb, sr = 14, 8
                    a(f"s_mov_b32 s47, {((2*(m-16)+ln)<<17)+(kk<<16)}")
                for jb in range(2):
                    vm.op(f"buffer_load_dwordx4 v{vb+jb}, s[{sr}:{sr+3}], s47 offen offset:{jb*BLK} sc1 lds", m)
    for t in range(t0, 27):
        vm.wait(('I', t - 3)); a("s_barrier")
        wslab(); xhalf(); vm.mark(('I', t), 15)
        k = t - t0
        for x in (buf[k * cut // 5:(k + 1) * cut // 5] if k < 5 else buf[cut:]): a(x)
    vm.wait(('I', 25)); a("s_barrier")
    wslab(); vm.mark(('I', 27), 7)
    vm.wait(('I', 26)); a("s_barrier")
    wstage(0)
    vm.wait(('I', 27)); a("s_barrier")
    wstage(1)
    a("s_barrier")
    nxt = 2
    for _ in range(g.o.get('w31', 1)): wstage(nxt); nxt += 1
    a("s_barrier")
    g.stamp(5)
    for _ in range(g.o.get('w32', 0)): wstage(nxt); nxt += 1
    a("s_barrier")
    sched = g.o.get('wsched', [1, 1, 1, 1, 2, 1, 2, 1, 1, 1, 2, 1, 1, 1])
    for n in range(0, 14):
        need = 15 if n >= 12 else n
        lim = {0: 5}.get(n, n + 6)
        assert nxt > need
        vm.wait(need); a("s_barrier")
        fl = n == g.o['k1'] + g.o['noc']
        if fl: q_call(g, n)
        for _ in range(sched[n]):
            assert nxt <= lim
            wstage(nxt); nxt += 1
        if not fl: q_call(g, n)
    assert nxt == 20
    if g.o.get('trace'):
        l = g.lab("tr")
        a(f"s_cmp_lg_u32 s{S_WAVE}, 4\ns_cbranch_scc1 {l}\ns_lshl_b32 s33, s2, 9\ns_add_u32 s33, s33, {WS_PROF+0x20000}\nv_lshlrev_b32 v5, 2, v0")
        a(f"buffer_store_dword v33, v5, {W}, s33 offen\nbuffer_store_dword v32, v5, {W}, s33 offen offset:256\n{l}:")
    aux_rx(g)


def helper(g):
    a = g.a
    a("L_helper:")
    HW = 45
    def bars(n):
        for _ in range(n): a("s_barrier")
    if g.o.get('hprio'): a(f"s_setprio {g.o['hprio']}")
    a(f"s_sub_u32 s{HW}, s{S_WAVE}, 6")
    a("v_lshlrev_b32 v4, 4, v0\nv_lshlrev_b32 v5, 2, v0\nv_mov_b32 v6, 0\nv_mov_b32 v7, 1\nv_lshlrev_b32 v8, 7, v0")
    a(f"s_getpc_b64 s[96:97]\nL_pc:\ns_sub_u32 s96, s96, L_pc-{NAME}\ns_subb_u32 s97, s97, 0")
    a(f"s_mov_b32 s98, L_codeend-{NAME}\ns_mov_b32 s99, 0x20000")
    a(f"s_lshl_b32 s100, s30, 1\ns_add_u32 s100, s100, s{HW}\ns_lshl_b32 s100, s100, 11")
    def codepf():
        a("s_mov_b64 exec, 0xffff\nbuffer_load_dword v9, v8, s[96:99], s100 offen\ns_mov_b64 exec, -1")
    codepf()
    a(f"s_lshl_b32 s46, s32, 3\ns_add_u32 s46, s46, s{S_CB}\ns_lshl_b32 s47, s{S_MB8}, 5\ns_add_u32 s46, s46, s47")
    a("s_waitcnt lgkmcnt(0)")
    srd(g, SRD_WS, 26, 0x10000000)
    srd(g, 28, 4, 2048 * 1024 * 2)
    srd(g, 92, 24, 256)
    for r in range(12, 16): a(f"v_mov_b32 v{r}, -1")
    a(f"s_mov_b32 s33, 0x10000000\ns_lshl_b32 s88, s{S_PAIR}, 3\ns_add_u32 s88, s88, s{S_MB8}\ns_mul_i32 s88, s88, 9216\ns_add_u32 s88, s88, {WS_KVP}")
    a(f"s_mul_i32 s89, s{S_PAIR}, 6144\ns_lshl_b32 s47, s{S_MB8}, 10\ns_add_u32 s89, s89, s47\ns_add_u32 s89, s89, {WS_KVF}")
    a(f"s_cmp_ge_u32 s{S_MB8}, 6\ns_cselect_b32 s89, s33, s89\ns_cmp_ge_u32 s{S_C}, 2\ns_cselect_b32 s88, s33, s88\ns_cselect_b32 s89, s33, s89")
    def init0(k):
        if k == 0:
            for r in range(16, 20): a(f"v_mov_b32 v{r}, 0")
            a(f"s_lshl_b32 s47, s2, 11\ns_add_u32 s47, s47, {WS_FLAG}")
            a(f"buffer_store_dwordx4 v[16:19], v4, {W}, s47 offen sc1\nbuffer_store_dwordx4 v[16:19], v4, {W}, s47 offen offset:1024 sc1")
        elif k == 1:
            a(f"buffer_store_dwordx4 v[12:15], v4, {W}, s89 offen sc1")
            a(f"s_mov_b64 exec, 0xff\ns_lshl_b32 s47, s46, 7\ns_add_u32 s47, s47, {WS_FLAG+F_G}")
            a(f"buffer_store_dwordx4 v[12:15], v4, {W}, s47 offen sc1\ns_mov_b64 exec, -1")
        else:
            a(f"buffer_store_dwordx4 v[12:15], v4, {W}, s88 offen sc1\ns_add_u32 s88, s88, 1024")
    def copy_ld(t):
        l1 = g.lab("cp")
        a(f"s_cmp_lg_u32 s{S_XCD}, {t}\ns_cbranch_scc1 {l1}\ns_lshl_b32 s47, s2, 15")
        for k in range(4):
            a(f"buffer_load_dwordx4 {vr(24+4*k)}, v16, s[60:63], s47 offen offset:384")
            if k < 3: a("s_add_u32 s47, s47, 8192")
        a(f"{l1}:")
    def copy_st(k):
        a(f"s_lshl_b32 s47, s2, 15\ns_add_u32 s47, s47, {WS_W2C+k*8192}\nbuffer_store_dwordx4 {vr(24+4*k)}, v17, {W}, s47 offen sc1")
    def h1(f):
        l1 = g.lab("h1")
        a(f"s_cmp_eq_u32 s{HW}, 0\ns_cbranch_scc1 {l1}"); f(); a(f"{l1}:")
    def h0(f):
        l1 = g.lab("h0")
        a(f"s_cmp_lg_u32 s{HW}, 0\ns_cbranch_scc1 {l1}"); f(); a(f"{l1}:")
    issd = lambda: a("buffer_load_dword v23, off, s[92:95], 0 sc1")
    def init3():
        ok = g.lab("rdy")
        a(f"v_cmp_ne_u32 vcc, 1, v23\ns_nop 1\ns_and_b32 s33, vcc_lo, 1\ns_cbranch_scc0 {ok}")
        issd(); poll_check(g, issd, 23, 1, 1)
        a(f"{ok}:\ns_lshr_b32 s47, s2, 2\ns_lshl_b32 s47, s47, 7\ns_and_b32 s33, s2, 3\ns_lshl_b32 s33, s33, 2\ns_add_u32 s47, s47, s33\ns_add_u32 s47, s47, {WS_FLAG+F_RDY}")
        a(flagops(7, 47))
    lz = g.lab("z")
    a(f"s_or_b32 s33, s2, s{HW}\ns_cbranch_scc1 {lz}")
    for r in range(16, 20): a(f"v_mov_b32 v{r}, 0")
    a(f"s_mov_b32 s47, {WS_FLAG+F_RDY}\ns_mov_b32 s33, {WS_FLAG+F_RDY+4096}")
    for k in range(8): a(f"buffer_store_dwordx4 v[16:19], v4, {W}, s{33 if k>>2 else 47} offen offset:{(k&3)*1024} sc1")
    a(f"s_waitcnt vmcnt(0)\ns_mov_b64 exec, 1\nbuffer_store_dword v7, off, s[92:95], 0 sc1\ns_mov_b64 exec, -1\n{lz}:")
    a("v_lshrrev_b32 v16, 4, v0\nv_and_b32 v17, 7, v0\nv_lshlrev_b32 v17, 4, v17\nv_lshl_add_u32 v16, v16, 11, v17\nv_bfe_u32 v18, v0, 3, 1")
    a("v_lshl_add_u32 v17, v18, 7, v16\nv_lshl_add_u32 v16, v18, 10, v16")
    srd(g, 52, 6, 1024 * 3072 * 2)
    srd(g, 56, 12, 1024 * 3584 * 2)
    srd(g, 60, 14, 3584 * 1024 * 2)
    srd(g, 64, 8, 1024 * 1024 * 2)
    a("v_lshlrev_b32 v10, 11, v0")
    a(f"s_cmp_lg_u32 s{HW}, 0\ns_cbranch_scc1 L_h_one")
    iss0 = lambda: a(f"s_mov_b32 s47, {WS_FLAG+F_RDY}\nbuffer_load_dwordx4 v[16:19], v8, {W}, s47 offen sc1")
    for t in range(0, 29):
        a("s_barrier")
        if 3 <= t < 14: a(f"s_sleep {g.o['hdel']}"); init0(t - 3)
        if t == 14: issd()
        if t == 16: a("s_waitcnt vmcnt(0)"); init3()
        if t == 22: iss0()
        if t == 24: poll_check(g, iss0, 14, 64, 1, "ne", lambda: a("v_and_b32 v14, v16, v17\nv_and_b32 v15, v18, v19\nv_and_b32 v14, v14, v15"))
        if t == g.o.get('cpf1', 99): a("s_mov_b64 exec, 0xffffffff\nbuffer_load_dword v9, v8, s[96:99], s100 offen\ns_mov_b64 exec, -1")
    bars(2)
    a("v_lshlrev_b32 v13, 3, v0")
    lane_h(g, 11, 12, 52)
    a(f"s_add_u32 s54, s52, {F_H2}")
    a("v_and_b32 v12, 3, v0\nv_lshlrev_b32 v12, 7, v12\nv_bfe_u32 v16, v0, 2, 1\nv_lshl_add_u32 v12, v16, 16, v12\nv_bfe_u32 v16, v0, 3, 1\nv_lshl_add_u32 v12, v16, 18, v12")
    a(f"v_bfe_u32 v16, v0, 4, 2\nv_lshl_add_u32 v12, v16, 11, v12\ns_andn2_b32 s56, s52, 0x1800\ns_add_u32 s56, s56, {F_X + (2<<16)}")
    a(f"s_lshl_b32 s57, s{S_MB8}, 12\ns_add_u32 s57, s57, {WS_FLAG+F_G}")
    a(f"v_lshrrev_b32 v19, 1, v0\nv_and_b32 v16, 1, v0\nv_lshlrev_b32 v16, 4, v16\nv_lshl_add_u32 v19, v19, 7, v16\nv_add_u32 v13, {LDS_G}, v4")
    bars(1)
    l0, l1 = g.lab("pp"), g.lab("pp")
    iss = lambda r: a(f"buffer_load_dword v{r}, v11, {W}, s52 offen sc1")
    iss(21)
    bars(1)
    a(f"s_mov_b32 s35, {SPIN}\n{l0}:")
    for r in range(2):
        iss(20 + r)
        a(f"s_waitcnt vmcnt(1)\nv_cmp_ne_u32 vcc, 1, v{21-r}\ns_cbranch_vccz {l1}\ns_sleep {g.o.get('psleep', 3)}")
    a(f"s_sub_u32 s35, s35, 1\ns_cbranch_scc0 {l0}\n{l1}:")
    bars(1)
    def pol(soff, areg): return lambda: a(f"buffer_load_dword v14, v{areg}, {W}, s{soff} offen sc1")
    issg = lambda: a(f"buffer_load_dwordx4 v[24:27], v19, {W}, s57 offen sc1")
    assert g.o['k1'] >= 6
    for n in range(12):
        a("s_barrier")
        if n == g.o.get('cpf2'): a("s_mov_b64 exec, 0xffffffff\nbuffer_load_dword v9, v8, s[96:99], s100 offen\ns_mov_b64 exec, -1")
        if n == 3: issg()
        if n == 4:
            poll_check(g, issg, 14, 64, -1, "eq", lambda: a("v_max3_u32 v14, v24, v25, v26\nv_max_u32 v14, v14, v27"))
            a("ds_write_b128 v13, v[24:27]"); pol(54, 11)()
        if n == 5: poll_check(g, pol(54, 11), 14, 64, 1); a("s_waitcnt lgkmcnt(0)")
        q_call(g, n)
        if n == g.o.get('fop', 11): pol(56, 12)()
        if n == 11: poll_check(g, pol(56, 12), 14, 64, 1)
    a("s_barrier\ns_barrier\ns_branch L_rx")
    a("L_h_one:")
    a(f"s_lshr_b32 s68, s2, 3\ns_mov_b32 s91, 32\ns_mov_b32 s34, 0")
    if g.o.get('exempt', 0):
        l = g.lab("ex")
        a(f"s_bitcmp1_b32 s2, 0\ns_cbranch_scc1 {l}\ns_mov_b32 s91, 28\ns_sub_u32 s33, s68, 4\ns_cmp_ge_u32 s68, 20\ns_cselect_b32 s47, 0x10000, s68\ns_cmp_ge_u32 s68, 24\ns_cselect_b32 s68, s33, s47\n{l}:")
    tb = sum(x << (4 * k) for k, x in enumerate(ORD))
    a(f"s_mov_b32 s69, s68\ns_mov_b32 s48, {hex(tb & 0xffffffff)}\ns_mov_b32 s49, {hex(tb >> 32)}\ns_mov_b32 s90, {hex(g.o.get('wmask', 0x1f0))}")
    if g.o.get('nopf1'): a("s_mov_b32 s68, 0x10000")
    a(f"s_lshr_b32 s87, s{S_XCD}, 2\nv_lshrrev_b32 v11, 1, v0\nv_and_b32 v12, 1, v0\nv_lshlrev_b32 v12, 7, v12\ns_lshl_b32 s33, s87, 5\nv_add_u32 v11, s33, v11")
    a("v_mul_u32_u24 v13, 7168, v11\nv_mul_u32_u24 v11, 6144, v11\ns_lshl_b32 s33, s32, 9\nv_add3_u32 v11, v11, v12, s33\ns_mul_i32 s33, s32, 1792\nv_add3_u32 v13, v13, v12, s33")
    a(f"s_lshl_b32 s33, s{S_XCD}, 19\nv_add_u32 v10, s33, v10")
    def w2item():
        l, lo = g.lab("pw"), g.lab("pw")
        a(f"s_cmp_ge_u32 s69, 112\ns_cbranch_scc1 {lo}\ns_lshr_b32 s47, s69, 3\ns_lshl_b32 s47, s47, 2\ns_lshr_b64 s[50:51], s[48:49], s47\ns_and_b32 s50, s50, 15")
        a(f"s_mul_i32 s47, s32, 14\ns_add_u32 s47, s47, s50\ns_lshl_b32 s47, s47, 1\ns_add_u32 s47, s47, s87\ns_lshl_b32 s47, s47, 3\ns_and_b32 s50, s69, 7\ns_add_u32 s47, s47, s50\ns_lshl_b32 s47, s47, 13")
        a(f"buffer_load_dword v9, v8, s[60:63], s47 offen\ns_branch {l}")
        a(f"{lo}:\ns_sub_u32 s47, s69, 112\ns_lshl_b32 s47, s47, 3\ns_add_u32 s47, s47, s{S_XCD}\ns_lshl_b32 s47, s47, 13\nbuffer_load_dword v9, v8, s[64:67], s47 offen\n{l}:\ns_add_u32 s69, s69, s91")
    l0, l1, l2, lx, lq = [g.lab("pf") for _ in range(5)]
    a(f"{l0}:\ns_add_u32 s47, s34, {g.o['lead']}\ns_mul_i32 s47, s47, 17\ns_lshr_b32 s47, s47, 1\ns_min_u32 s47, s47, {16*17}\ns_cmp_ge_u32 s68, s47\ns_cbranch_scc1 {l1}")
    a(f"s_mul_hi_u32 s47, s68, {(2**32+16)//17}\ns_mul_i32 s33, s47, 17\ns_sub_u32 s33, s68, s33\ns_add_u32 s68, s68, s91")
    a(f"s_cmp_lt_u32 s33, 4\ns_cbranch_scc1 {lx}\ns_cmp_lt_u32 s33, 10\ns_cbranch_scc1 {lq}")
    a(f"s_mul_i32 s47, s47, {64*7168}\ns_sub_u32 s33, s33, 10\ns_lshl_b32 s33, s33, 8\ns_add_u32 s47, s47, s33\nbuffer_load_dword v9, v13, s[56:59], s47 offen\ns_branch {l2}")
    a(f"{lq}:\ns_mul_i32 s47, s47, {64*6144}\ns_sub_u32 s33, s33, 4\ns_lshr_b32 s50, s33, 1\ns_lshl_b32 s50, s50, 11\ns_add_u32 s47, s47, s50\ns_and_b32 s33, s33, 1\ns_lshl_b32 s33, s33, 8\ns_add_u32 s47, s47, s33\nbuffer_load_dword v9, v11, s[52:55], s47 offen\ns_branch {l2}")
    a(f"{lx}:\ns_lshl_b32 s47, s47, 7\ns_lshl_b32 s33, s33, 17\ns_add_u32 s47, s47, s33\nbuffer_load_dword v9, v10, s[28:31], s47 offen")
    a(f"{l2}:\ns_lshr_b32 s90, s90, 1\ns_bitcmp1_b32 s90, 0\ns_cbranch_scc0 {l0}")
    w2item()
    a(f"s_branch {l0}\n{l1}:")
    if g.o.get('wrate'):
        l3 = g.lab("pf")
        a(f"s_sub_u32 s47, s34, {g.o.get('w0', 2)}\ns_cbranch_scc1 {l3}\ns_mul_i32 s47, s47, {g.o['wrate']}\ns_min_u32 s47, s47, 144\ns_cmp_ge_u32 s69, s47\ns_cbranch_scc1 {l3}")
        w2item()
        a(f"{l3}:")
    a(f"s_barrier\ns_sleep {g.o['hdel']}\ns_add_u32 s34, s34, 1\ns_cmp_lt_u32 s34, 27\ns_cbranch_scc1 {l0}")
    late = g.o.get('wlate', {})
    def latepf(t):
        if late.get(t) == 'o': a("s_lshl_b32 s47, s2, 13\nbuffer_load_dword v9, v8, s[64:67], s47 offen")
        else:
            for _ in range(late.get(t, 0)): w2item()
    latepf(26)
    for t in range(27, 31): a("s_barrier"); latepf(t)
    srd(g, 52, 16, 2048)
    a("s_lshl_b32 s47, s46, 14")
    for hf in range(2): a(f"buffer_load_dwordx4 {vr(24+4*hf)}, v4, s[52:55], 0 offen offset:{hf*1024}")
    for r in range(8):
        for hf in range(2): a(f"buffer_load_dwordx4 {vr(40+8*r+4*hf)}, v4, s[28:31], s47 offen offset:{(r&1)*2048+hf*1024}")
        if r & 1: a("s_add_u32 s47, s47, 4096")
    for r in range(32, 40): a(f"v_mov_b32 v{r}, 0")
    bars(3)
    a("s_waitcnt vmcnt(0)")
    for k in range(8):
        for r in range(8): a(f"v_dot2_f32_bf16 v{32+r}, v{40+8*r+k}, v{24+k}, v{32+r}")
    a("s_nop 1")
    for pat in ["quad_perm:[1,0,3,2] row_mask:0xf", "quad_perm:[2,3,0,1] row_mask:0xf", "row_half_mirror row_mask:0xf", "row_mirror row_mask:0xf",
                "row_bcast:15 row_mask:0xa", "row_bcast:31 row_mask:0xc"]:
        for r in range(32, 40): a(f"v_add_f32_dpp v{r}, v{r}, v{r} {pat} bank_mask:0xf")
    for r in range(8): a(f"v_readlane_b32 s{52+r}, v{32+r}, 63")
    a("s_nop 1")
    for r in range(8): a(f"v_writelane_b32 v16, s{52+r}, {r}")
    a("s_nop 0\nv_min_f32 v16, 0x41f00000, v16\nv_mul_f32 v16, 0x3fb8aa3b, v16\nv_exp_f32 v16, v16")
    a(f"s_lshl_b32 s47, s46, 7\ns_add_u32 s47, s47, {WS_FLAG+F_G}\ns_mov_b64 exec, 0xff")
    a(f"buffer_store_dword v16, v5, {W}, s47 offen sc1\ns_mov_b64 exec, -1")
    a(f"s_mov_b32 s34, 0\ns_cmp_ge_u32 s{S_C}, 2\ns_cbranch_scc1 L_h1_q\ns_cmp_ge_u32 s{S_MB8}, 6\ns_cbranch_scc1 L_h1_end")
    H1 = g.o['h1']
    def retry(issue, mx, first, last, work=False):
        l0, l1 = g.lab("try"), g.lab("try")
        for n in range(first):
            a("s_barrier")
            if work: q_call(g, n)
        if g.o.get('rsame', 1):
            l2 = g.lab("try")
            a(f"s_setprio 2\ns_mov_b32 s34, {first}\n{l0}:")
            issue(); a("s_waitcnt vmcnt(0)"); mx()
            a(f"v_cmp_eq_u32 vcc, -1, v14\ns_cbranch_vccz {l1}")
            a(f"s_cmp_ge_u32 s34, {last}\ns_cbranch_scc1 {l2}\ns_barrier\ns_add_u32 s34, s34, 1\ns_branch {l0}\n{l2}:")
        else:
            a(f"s_mov_b32 s34, {first}\n{l0}:")
            issue()
            a("s_barrier\ns_add_u32 s34, s34, 1\ns_waitcnt vmcnt(0)")
            mx()
            a(f"v_cmp_eq_u32 vcc, -1, v14\ns_nop 1\ns_cmp_lg_u64 vcc, 0\ns_cbranch_scc0 {l1}")
            a(f"s_cmp_le_u32 s34, {last-1}\ns_cbranch_scc1 {l0}")
        issue(); poll_check(g, issue, 14, 64, -1, "eq", mx)
        a(f"{l1}:")
    def upto(n):
        l0, l1 = g.lab("up"), g.lab("up")
        a(f"{l0}:\ns_cmp_ge_u32 s34, {n}\ns_cbranch_scc1 {l1}\ns_barrier\ns_add_u32 s34, s34, 1\ns_branch {l0}\n{l1}:")
    def vmax(lo, hi):
        a(f"v_max_u32 v14, v{lo}, v{lo+1}")
        for r in range(lo + 2, hi, 2): a(f"v_max3_u32 v14, v14, v{r}, v{r+1}")
    a(f"s_cmp_ge_u32 s{S_MB8}, 3\ns_cselect_b32 s55, 1, 0\ns_sub_u32 s56, s{S_MB8}, s55\ns_lshl_b32 s56, s56, 11\nv_add_u32 v10, s56, v4\nv_add_u32 v11, 1024, v10")
    a(f"s_cmp_eq_u32 s{S_MB8}, 2\ns_cbranch_scc1 L_h1_z\ns_cmp_eq_u32 s{S_MB8}, 5\ns_cbranch_scc0 L_h1_nz\nL_h1_z:")
    a("s_lshl_b32 s55, s55, 5\ns_add_u32 s55, s55, 8192\nv_and_b32 v10, 0x300, v4\nv_add_u32 v10, s55, v10\nv_add_u32 v11, 16, v10\nL_h1_nz:")
    def kvp_issue():
        a(f"s_mul_i32 s47, s{S_PAIR}, {8*9216}\ns_add_u32 s47, s47, {WS_KVP}")
        for m in range(8):
            for dt in range(2): a(f"buffer_load_dwordx4 {vr(32+(m*2+dt)*4)}, v{10+dt}, {W}, s47 offen sc1")
            if m < 7: a("s_add_u32 s47, s47, 9216")
    retry(kvp_issue, lambda: vmax(32, 96), H1 + 1, 9)
    g.stamp(5)
    if g.o['prof']: a("s_mov_b32 s88, s34")
    for st in (32, 16, 8):
        for r in range(st): a(f"v_add_f32 v{32+r}, v{32+r}, v{32+st+r}")
    for r in range(4): a(f"v_cvt_pk_bf16_f32 v{32+r}, v{32+2*r}, v{33+2*r}")
    a(f"s_mul_i32 s47, s{S_PAIR}, 6144\ns_lshl_b32 s46, s{S_MB8}, 10\ns_add_u32 s47, s47, s46\ns_add_u32 s47, s47, {WS_KVF}")
    a(f"buffer_store_dwordx4 v[32:35], v4, {W}, s47 offen sc1")
    a("L_h1_end:")
    upto(14)
    a("s_branch L_rx")
    a("L_h1_q:")
    K1 = g.o['k1']
    a(f"s_mul_i32 s55, s{S_PAIR}, 6144\ns_add_u32 s55, s55, {WS_KVF}\ns_add_u32 s56, s55, 4096\nv_add_u32 v12, {P2END}, v4")
    def kvf_issue():
        for f in range(6): a(f"buffer_load_dwordx4 {vr(32+4*f)}, v4, {W}, s{55+(f>>2)} offen offset:{(f&3)*1024} sc1")
    retry(kvf_issue, lambda: vmax(32, 56), g.o['k0'], K1, True)
    g.stamp(5)
    if g.o['prof']: a("s_mov_b32 s88, s34")
    for f in range(6): a(f"ds_write_b128 v12, {vr(32+4*f)} offset:{f*1024}")
    upto(K1)
    a("s_waitcnt lgkmcnt(0)")
    for n in range(K1, K1 + g.o['noc'] + 1): a("s_barrier"); q_call(g, n)
    a(f"s_mov_b32 s34, {K1+g.o['noc']+1}\ns_branch L_h1_end")
    q_chunks(g)


HEADER = open("gated_mix__linear_attn_block__dense_activation_relu__prompt.s.ref").read().split("; Override")[0] \
    if __name__ == "__main__" else ""


def build(**opt):
    g = G(**opt)
    VM.skip = g.o.get('skip', ())
    g.L.append(f"; @launch grid=(256,1,1) block=(512,1,1) lds={LDS_TOTAL}")
    g.a(f'.amdgcn_target "amdgcn-amd-amdhsa--gfx950"\n.text\n.globl {NAME}\n.p2align 8\n.type {NAME},@function\n{NAME}:')
    prologue(g)
    loader(g)
    helper(g)
    compute(g)
    g.a("L_exit:\ns_endpgm\nL_codeend:")
    g.L.append(f""".section .rodata,"a"
.p2align 6
.amdhsa_kernel {NAME}
  .amdhsa_next_free_vgpr 256
  .amdhsa_next_free_sgpr 102
  .amdhsa_accum_offset 256
  .amdhsa_group_segment_fixed_size 0
  .amdhsa_kernarg_size 80
  .amdhsa_user_sgpr_count 2
  .amdhsa_user_sgpr_kernarg_segment_ptr 1
  .amdhsa_system_sgpr_workgroup_id_x 1
.end_amdhsa_kernel""")
    return g.text()


if __name__ == "__main__":
    out = sys.argv[1]
    opt = {}
    for kv in sys.argv[2:]:
        k, v = kv.split("=")
        opt[k] = eval(v)
    open(out, "w").write(HEADER + build(**opt))
```

```python
import sys

NAME = "gated_mix__linear_attn_block__dense_activation_relu__prompt_kernel"

WS_HO = 0
WS_PART = 0x3000000
WS_KVP = 0x2400000
WS_KVF = 0x2580000
WS_FLAG = 0x2600000
F_H1, F_H2, F_X, F_P = 0, 512, 1024, 1536
F_G = 0x80000
F_RDY = 0x90000
WS_PROF = 0x2700000
WS_W2C = 0x2800000
ORD1 = [0, 1, 2, 4, 7, 8, 9, 11]
ORD2 = [3, 5, 10, 12, 6, 13]

UNIT = 4224; BLK = 1056
XSLOT = 8 * UNIT
XRING = 3 * XSLOT
WSLOT = 3 * UNIT + 1024
WBASE = XRING
LDS_G = 162816
P2SLOT = 4 * UNIT
NSL = 8
P2END = NSL * P2SLOT
LDS_TOTAL = 163840

SPIN = 100000


class G:
    def __init__(self, **opt):
        self.L = []
        self.o = dict(prof=False, krot=False, pfw=True, pf1=True, lead=6, pfs0=0, hdel=4, pfw0=2, pfwr=54, early2=0, late=(4, 4, 4), sp0=22, spn=2, swin=4, gsch=(5, 4, 0, 0, 0), fpos=15, tdens=2, st2n=0, st2sp=14, ju=5, pch=(1, 2, 2, 2, 1), pf0=0, cbx=2, aspread=0, wpace=2, kdens=4, hsl=8, noc=2, qprio=2, k1=7, k0=6, rsp=6, h1=1, xf=(10, 14, 16), r1=20, dld=(11, 12, 13, 14, 15, 16, 17, 18), psleep=2, cpf1=24, cpf2=99, odens=3, b16=True, ddens=3, psp=30, d1=7, d2=10, d2b=12, d3=16)
        self.o.update(opt)
        self.uid = 0
        self.info = {}
        self.st = {'since': 0}

    def a(self, s):
        for ln in s.split("\n"):
            ln = ln.strip()
            if ln:
                self.L.append(ln if ln.endswith(":") or ln.startswith(".") else "    " + ln)

    def lab(self, p):
        self.uid += 1
        return f"L_{p}_{self.uid}"

    def stamp(self, n):
        if self.o['prof'] == 'min' and n not in (0, 8): return
        if self.o['prof']:
            self.a(f"{'s_memtime' if self.o['prof']=='cyc' else 's_memrealtime'} s[{70+2*n}:{71+2*n}]")

    def text(self):
        return "\n".join(self.L) + "\n"


class VM:
    def __init__(self, a, init=()):
        self.a = a; self.q = list(init)
    skip = ()
    def op(self, text, tag):
        if (tag[0] if isinstance(tag, tuple) else tag) in VM.skip: return
        self.a(text); self.q.append(tag)
        assert len(self.q) <= 63, "vmcnt overflow"
    def mark(self, tag, n):
        self.q += [tag] * n
        assert len(self.q) <= 63, "vmcnt overflow"
    def wait(self, *tags):
        k = max([i for i, t in enumerate(self.q) if t in tags], default=-1)
        if k >= 0:
            self.a(f"s_waitcnt vmcnt({len(self.q)-1-k})"); self.q = self.q[k + 1:]


def vr(b, n=4):
    return f"v[{b}:{b+n-1}]"


def mfma(d, a, b, c=None):
    return f"v_mfma_f32_16x16x32_bf16 {vr(d)}, {vr(a)}, {vr(b)}, {vr(d) if c is None else c}"


S_WAVE, S_MB8, S_QD, S_C, S_PAIR, S_RH, S_CB, S_KH, S_PHI, S_XCD = 3, 36, 37, 38, 39, 40, 41, 42, 43, 44
SRD_WS = 20


def srd(g, d, base, nbytes):
    g.a(f"s_mov_b32 s{d}, s{base}\ns_mov_b32 s{d+1}, s{base+1}\ns_mov_b32 s{d+2}, {hex(nbytes)}\ns_mov_b32 s{d+3}, 0x20000")


def prof_dump(g, wave, row):
    if not g.o['prof'] or g.o.get('probe') is not None or (row and (g.o['prof'] == 'min' or g.o.get('trace'))): return
    a = g.a
    l = g.lab("pd")
    a(f"s_waitcnt lgkmcnt(0)\ns_cmp_lg_u32 s{S_WAVE}, {wave}\ns_cbranch_scc1 {l}")
    a(f"s_lshl_b32 s33, s2, 6\ns_add_u32 s33, s33, {WS_PROF + row*16384}\nv_mov_b32 v5, 0")
    for n in range(16):
        a(f"v_mov_b32 v6, s{70+2*n}\nbuffer_store_dword v6, v5, s[{SRD_WS}:{SRD_WS+3}], s33 offen offset:{4*n}\ns_nop 1")
    a(f"{l}:")


def prologue(g):
    a = g.a
    a("s_cmp_ge_u32 s2, 256\ns_cbranch_scc1 L_exit")
    if g.o['prof']:
        for n in range(70, 102): a(f"s_mov_b32 s{n}, 0")
    g.stamp(0)
    a("s_load_dwordx16 s[4:19], s[0:1], 0")
    a("s_load_dwordx4 s[24:27], s[0:1], 64")
    a("v_lshrrev_b32 v1, 6, v0\nv_and_b32 v0, 63, v0")
    a(f"s_and_b32 s{S_XCD}, s2, 7\ns_lshr_b32 s30, s2, 3")
    a(f"v_readfirstlane_b32 s{S_WAVE}, v1")
    a(f"s_lshr_b32 s31, s{S_XCD}, 2\ns_and_b32 s32, s{S_XCD}, 3")
    a(f"s_and_b32 s33, s30, 3\ns_lshl_b32 s{S_MB8}, s31, 2\ns_add_u32 s{S_MB8}, s{S_MB8}, s33")
    a("s_lshr_b32 s33, s30, 2")
    a(f"s_lshr_b32 s34, s33, 2\ns_lshl_b32 s{S_QD}, s32, 1\ns_add_u32 s{S_QD}, s{S_QD}, s34")
    a(f"s_and_b32 s{S_C}, s33, 3")
    a(f"s_and_b32 s34, s33, 1\ns_lshl_b32 s{S_PAIR}, s{S_QD}, 1\ns_add_u32 s{S_PAIR}, s{S_PAIR}, s34")
    a(f"s_and_b32 s{S_RH}, s32, 1")
    a(f"s_xor_b32 s{S_CB}, s33, {g.o['cbx']}")
    a(f"s_lshr_b32 s{S_KH}, s32, 1")
    if g.o['krot']:
        a(f"s_lshl_b32 s34, s31, 1\ns_add_u32 s34, s34, s32\ns_lshl_b32 s34, s34, 2\ns_and_b32 s{S_PHI}, s34, 15")
    else:
        a(f"s_mov_b32 s{S_PHI}, 0")
    a(f"s_cmp_lt_u32 s{S_WAVE}, 4\ns_cbranch_scc1 L_compute")
    a(f"s_cmp_lt_u32 s{S_WAVE}, 6\ns_cbranch_scc1 L_loader")
    a("s_mov_b32 s68, s30\ns_mov_b32 s87, s31")
    if g.o.get('pf0'):
        a(f"s_cmp_eq_u32 s{S_WAVE}, 6\ns_cbranch_scc1 L_helper\ns_add_u32 s68, s68, {g.o.get('pf0off', 0)}")
        pf_item(g, True)
        a("s_add_u32 s68, s68, 32")
    a("s_branch L_helper\nL_loader:")


W = f"s[{SRD_WS}:{SRD_WS+3}]"


def lane_goodcol(g, d, t):
    g.a(f"v_lshrrev_b32 v{d}, 4, v0\nv_and_b32 v{t}, 15, v0\nv_lshlrev_b32 v{t}, 4, v{t}\nv_lshl_add_u32 v{d}, v{d}, 9, v{t}")


def lane_h(g, d, t, so):
    g.a(f"v_bfe_u32 v{d}, v0, 2, 3\nv_and_b32 v{t}, 3, v0\nv_lshlrev_b32 v{t}, 7, v{t}\nv_lshl_add_u32 v{d}, v{d}, 16, v{t}")
    g.a(f"s_and_b32 s{so}, s2, 31\ns_lshl_b32 s{so}, s{so}, 11\ns_add_u32 s{so}, s{so}, {WS_FLAG}")


def poll_check(g, issue, reg, nl, val, cmp="ne", pre=None):
    a = g.a
    l0, l1 = g.lab("poll"), g.lab("pollok")
    a(f"s_mov_b32 s35, {SPIN}\n{l0}:\ns_waitcnt vmcnt(0)")
    if pre: pre()
    a(f"v_cmp_{cmp}_u32 vcc, {val}, v{reg}\ns_nop 1")
    if nl == 64: a("s_cmp_lg_u64 vcc, 0")
    else: a(f"s_and_b32 s33, vcc_lo, {hex((1<<nl)-1)}")
    a(f"s_cbranch_scc0 {l1}")
    a(f"s_sub_u32 s35, s35, 1\ns_cbranch_scc1 {l1}")
    if g.o.get('psleep'): a(f"s_sleep {g.o['psleep']}")
    issue()
    a(f"s_branch {l0}\n{l1}:")


def setflags(g, one, *soffs):
    g.a("s_mov_b64 exec, 1")
    for so in soffs: g.a(f"buffer_store_dword v{one}, off, {W}, s{so} sc1")
    g.a("s_mov_b64 exec, -1")


VX, VW, VQ = 1, 2, 3
WB = lambda n: 8 + 4 * (n % 4)
XLO = lambda b, i: 24 + 8 * b + 4 * i
XHI = lambda i: 40 + 4 * (i - 2)
AC = lambda j, i: 48 + (j * 4 + i) * 4


PERM = {True: [8, 9, 10, 11, 0, 1, 2, 3, 12, 4, 5, 6, 7], False: [4, 5, 6, 7, 8, 9, 10, 11, 12, 0, 1, 2, 3]}


def p1_wread(t, j, n):
    slot = (t % 4) * WSLOT
    if j < 12:
        return [f"ds_read_b64_tr_b16 v[{WB(n)+2*w}:{WB(n)+2*w+1}], v{VW} offset:{slot + (j//4)*UNIT + (j%4)*32 + w*256}" for w in range(2)]
    return [f"ds_read_b64_tr_b16 v[{WB(n)+2*w}:{WB(n)+2*w+1}], v{VQ} offset:{slot + w*256}" for w in range(2)]


def p1_xreg(par, i):
    return XLO(par % 2, i) if i < 2 else XHI(i)


def p1_xread(t, i, par, vx=VX):
    return f"ds_read_b128 {vr(p1_xreg(par,i))}, v{vx} offset:{(i>>1)*UNIT + (i&1)*512 + (t%2)*64}"


def pass_order(nt):
    s = [(0, 0), (0, 1), (1, 1), (1, 0), (1, 2), (1, 3), (0, 3), (0, 2)]
    for j in range(2, nt - 2):
        s += [(j, i) for i in ([2, 3, 0, 1] if j % 2 == 0 else [1, 0, 3, 2])]
    u, v = nt - 2, nt - 1
    return s + [(u, 2), (u, 3), (v, 3), (v, 2), (v, 1), (v, 0), (u, 0), (u, 1)]


def p1_mfma(kv, tile, i, wreg, xreg):
    return mfma(AC(tile, i), xreg, wreg) if (kv and tile < 8) else mfma(AC(tile, i), wreg, xreg)


Q0 = [('W', 0, 0), ('W', 0, 0), ('X', 0, 0), ('X', 0, 1), ('W', 0, 1), ('W', 0, 1), ('X', 0, 2), ('X', 0, 3)]


def p1_loop(g, kv):
    a = g.a
    P = PERM[kv]
    L = g.lab("p1")
    seq = []
    for t in range(4):
        s = pass_order(13)
        post = [[] for _ in s]
        rd = lambda j, tt=t: [('W', tt, j, x) for x in p1_wread(tt, P[j], 13 * tt + j)]
        r = rd(2); post[0].append(r[0]); post[1].append(r[1])
        r = rd(3); post[2].append(r[0]); post[3].append(r[1])
        r = rd(4); post[8].append(r[0]); post[9].append(r[1])
        r = rd(5); post[10].append(r[0]); post[11].append(r[1])
        for j in range(3, 10):
            base = 8 + (j - 2) * 4
            r = rd(j + 3); post[base].append(r[0]); post[base + 1].append(r[1])
        b10 = 40
        if t % 2 == 1:
            post[b10 - 2].append(('S', f"s_add_u32 s46, s46, {XSLOT}"))
            post[b10 - 2].append(('S', f"s_cmp_eq_u32 s46, {XRING}"))
            post[b10 - 1].append(('S', f"s_cselect_b32 s47, s48, s49"))
            post[b10 - 1].append(('S', f"s_cselect_b32 s46, 0, s46"))
            post[b10].append(('S', f"v_add_u32 v{VX}, s47, v{VX}"))
        post[b10 + 2].append(('BAR',))
        tn = t + 1
        r0, r1 = rd(0, tn), rd(1, tn)
        post[b10 + 3] += [r0[0], r0[1]]
        post[44] += [('X', tn, 0, p1_xread(tn, 0, tn)), ('X', tn, 1, p1_xread(tn, 1, tn))]
        post[45] += [r1[0]]
        post[46] += [r1[1]]
        post[47] += [('X', tn, 2, p1_xread(tn, 2, tn))]
        post[48] += [('X', tn, 3, p1_xread(tn, 3, tn))]
        if t == 3:
            post[49].append(('S', "s_sub_u32 s45, s45, 1"))
            post[50].append(('S', "s_cmp_lg_u32 s45, 0"))
        for (j, i), p in zip(s, post):
            seq.append(((t, j, i), p))
    for x in p1_wread(0, P[0], 0): a(x)
    a(p1_xread(0, 0, 0)); a(p1_xread(0, 1, 0))
    for x in p1_wread(0, P[1], 1): a(x)
    a(p1_xread(0, 2, 0)); a(p1_xread(0, 3, 0))
    q = list(Q0)
    a(f".p2align 6\n{L}:")
    for (t, j, i), p in seq:
        need = [k for k, e in enumerate(q) if e == ('W', t, j) or e == ('X', t, i)]
        if need:
            k = max(need)
            a(f"s_waitcnt lgkmcnt({len(q)-1-k})")
            q = q[k + 1:]
        a(p1_mfma(kv, P[j], i, WB(13 * t + j), p1_xreg(t, i)))
        for e in p:
            if e[0] == 'S':
                a(e[1])
            elif e[0] == 'BAR':
                a("s_waitcnt lgkmcnt(0)\ns_barrier"); q = []
            else:
                a(e[3]); q.append((e[0], e[1] % 4, e[2]))
    assert q == Q0
    a(f"s_cbranch_scc1 {L}")


def p1_tail(g, kv, extra, extra2, flag):
    a = g.a
    P = PERM[kv]
    a(f"v_add_u32 v5, {(-2*XSLOT) & 0xffffffff}, v{VX}")
    passes = [(t, grp) for grp in (P[:4], P[4:9], P[9:]) for t in range(28, 32)]
    M = []; start = []; n0 = 0; last = {}
    reads = []
    for p, (t, tiles) in enumerate(passes):
        start.append(len(M))
        o = pass_order(len(tiles))
        base = len(M)
        for j, tile in enumerate(tiles):
            first = base + min(k for k, e in enumerate(o) if e[0] == j)
            if not (p == 0 and j < 2):
                for x in p1_wread(t, tile, n0 + j):
                    reads.append(dict(key=('W', p, j), text=x, after=last.get(WB(n0 + j), -1), first=first, t=t))
            last[WB(n0 + j)] = base + max(k for k, e in enumerate(o) if e[0] == j)
        for i in range(4):
            first = base + min(k for k, e in enumerate(o) if e[1] == i)
            if p > 0:
                reads.append(dict(key=('X', p, i), text=p1_xread(t, i, p, VX if t < 30 else 5), after=max(last.get(p1_xreg(p, i), -1), first - 14), first=first, t=t))
            last[p1_xreg(p, i)] = base + max(k for k, e in enumerate(o) if e[1] == i)
        for (j, i) in o:
            M.append((p, j, i, p1_mfma(kv, tiles[j], i, WB(n0 + j), p1_xreg(p, i))))
        n0 += len(tiles)
    V1, V2 = start[1] + 3, start[2] + 5
    R1, R2 = start[10] - 3, len(M) - 5
    for r in reads:
        if r['t'] == 30: r['after'] = max(r['after'], V1)
        if r['t'] == 31: r['after'] = max(r['after'], V2)
    reads.sort(key=lambda r: r['first'])
    q = list(Q0); since = 0; nst2 = 0
    dens = g.o.get('tdens', 3)
    def wait(pred):
        nonlocal q
        need = [k for k, e in enumerate(q) if pred(e)]
        if need:
            a(f"s_waitcnt lgkmcnt({len(q)-1-max(need)})"); q = q[max(need) + 1:]
            return 1
        return 0
    for k, (p, j, i, txt) in enumerate(M):
        assert not [r for r in reads if r['first'] <= k], "read scheduled too late"
        w = wait(lambda e: e == ('W', p, j) or e == ('X', p, i))
        a(txt); since += 1 + w
        used = 0
        if k in (V1, V2): a("s_barrier"); used += 1
        if k in (R1, R2):
            lim = 9 if k == R1 else 11
            assert not [r for r in reads if r['key'][1] <= lim]
            used += 1 + wait(lambda e: e[1] <= lim); a("s_barrier")
        nr = 0
        while used < 2:
            c = [r for r in reads if r['after'] <= k]
            if not c or (nr and c[0]['first'] - k > 9): break
            a(c[0]['text']); q.append(c[0]['key']); reads.remove(c[0]); used += 1; nr += 1
        since += used
        if k == start[8] + g.o.get('fpos', 10):
            a(f"s_waitcnt vmcnt({nst2})\n" + flag); used += 2
        if k == start[8] + 3:
            assert not extra
            extra = extra2; dens = g.o.get('tdens2', 3); nst2 = 0
        if k >= start[4] + 3:
            while used < dens and extra:
                if extra[0] is None: break
                x = extra.pop(0)
                if g.o.get('tnost') and x.startswith("buffer_store"): continue
                a(x); used += 2 if x.startswith("v_exp") else 1
                if x.startswith("buffer_store"): nst2 += 1
    return extra


def h_cvt(d, a0, a1):
    src = [a0, a0 + 2] + ([a1, a1 + 2] if a1 is not None else [])
    return [f"v_cvt_pk_bf16_f32 v{d+r}, v{x}, v{x+1}" for r, x in enumerate(src)] + [f"v_pk_max_i16 v{d+r}, v{d+r}, 0" for r in range(len(src))]


HF = ['sc1', 'sc1']
def h_line_store(j0, soff):
    o = []
    for i in (2, 3, 0, 1):
        o.append(f"s_add_u32 s56, s{soff}, {4096*i}")
        for p in range(2):
            d = AC(j0 + 2 * p, i)
            o += h_cvt(d, d, AC(j0 + 2 * p + 1, i))
            o.append(f"buffer_store_dwordx4 {vr(d)}, v7, {W}, s56 offen offset:{p*2048} {HF[0]}")
    return o


def phi_regs(regs, tmp):
    o = [f"v_mul_f32 v{tmp+k}, s50, v{r}" for k, r in enumerate(regs)]
    for k, r in enumerate(regs): o += [f"v_exp_f32 v{tmp+k}, v{tmp+k} clamp", f"v_max_f32 v{r}, s51, v{r}"]
    return o + [f"v_add_f32 v{r}, v{r}, v{tmp+k}" for k, r in enumerate(regs)]


def pack8(d, e):
    return [f"v_cvt_pk_bf16_f32 v{d}, v{d}, v{d+1}", f"v_cvt_pk_bf16_f32 v{d+1}, v{d+2}, v{d+3}",
            f"v_cvt_pk_bf16_f32 v{d+2}, v{e}, v{e+1}", f"v_cvt_pk_bf16_f32 v{d+3}, v{e+2}, v{e+3}"]


def flagops(one, *soffs):
    return "s_mov_b64 exec, 1\n" + "".join(f"buffer_store_dword v{one}, off, {W}, s{so} sc1\n" for so in soffs) + "s_mov_b64 exec, -1"


VA0, VW2, VA1, VWD = 1, 2, 3, 5
ORD = ORD1 + ORD2
AB = lambda u, i: (24, 112, 96, 72)[u % 4] + 4 * i
ACC = lambda j, i: 128 + (j * 4 + i) * 4
JORD = [4, 5, 6, 7, 0, 1, 2, 3]
NS = 12
ND = 8
ADP = [72, 80, ACC(5, 2), ACC(7, 2), ACC(4, 2), ACC(6, 2), ACC(1, 2), ACC(3, 2), ACC(0, 2), ACC(2, 2), 8, 16, 24, 32, 112, 120]
WD = lambda k: 40 + 4 * k
PQ = lambda i, h: AC(2 * h, i)
PP = lambda p, f: ((96, 104), (ACC(4, 0), ACC(6, 0)), (ACC(5, 0), ACC(7, 0)))[p - 1][f >> 1] + 4 * (f & 1)
VFL, VPO, GG, VOUT, SEL0 = 2, 3, 94, 4, 88
slot2 = lambda m: ((m + 2) % NSL) * P2SLOT


def ord_table(g, lo, tmp=None):
    pk = lambda o: sum(x << (4 * k) for k, x in enumerate(o))
    g.a(f"s_mov_b32 s{lo}, {hex(pk(ORD) & 0xffffffff)}\ns_mov_b32 s{lo+1}, {hex(pk(ORD) >> 32)}")
    for t8, own in {2: (2, 3), 3: (4, 5), 6: (9, 10), 7: (11, 12)}.items():
        o = list(own) + [x for x in ORD if x not in own]
        g.a(f"s_cmp_eq_u32 s{S_CB}, {t8 ^ g.o['cbx']}\ns_cselect_b32 s{lo}, {hex(pk(o) & 0xffffffff)}, s{lo}\ns_cselect_b32 s{lo+1}, {hex(pk(o) >> 32)}, s{lo+1}")


def line_ops(n):
    return [f"s_bfe_u32 s54, s{48+n//8}, {hex((4<<16) | (4*(n%8)))}", "s_lshl_b32 s54, s54, 19", "s_add_u32 s54, s54, s46", "s_add_u32 s53, s54, 4096"]


def c_wread(n):
    u, j = n // 8, JORD[n % 8]
    return [(('W', n), f"ds_read_b64_tr_b16 v[{WB(n)+2*w}:{WB(n)+2*w+1}], v{VW2} offset:{((j>>2)*2+(u&1))*UNIT + (j&3)*32 + w*256}") for w in range(2)]


def c_loads(u, vm):
    o = []
    if u % 2 == 0: o += line_ops(u // 2)
    for i in range(4):
        o.append((f"buffer_load_dwordx4 {vr(AB(u,i))}, v{VA1 if i>>1 else VA0}, {W}, s{53 if i&1 else 54} offen offset:{(u&1)*2048} {HF[1]}", vm, ('A', u)))
    return o


def u_base(v):
    return slot2(NS + v % 4) + (2 * UNIT if v % 8 < 4 else 0) if v < 16 else slot2(16 + (v - 16) // 2) + (v & 1) * 2 * UNIT


def u_reads(v):
    return [(('U', v, k >> 1), f"ds_read_b64_tr_b16 v[{WD(k)+2*w}:{WD(k)+2*w+1}], v{VWD} offset:{(k>>2)*UNIT + (k&3)*32 + w*256}") for k in range(8) for w in range(2)]


def u_areg(v, kk, mi):
    if v >= 16: return ADP[2 * (v - 16) + kk] + 4 * mi
    return ((24, 112, 96, 72) if v < 8 else (8, 24, 112, 96))[v % 4] + 8 * kk + 4 * mi


def u_loads(v, vm):
    if v < 16:
        sb, ln = (46, ORD[NS + v % 4]) if v % 4 < 2 else (45, 56 + ND + v % 2)
        o = [f"s_add_u32 s54, s{sb}, {ln<<19}", f"s_add_u32 s53, s{sb}, {(ln<<19)+4096}"]
    else: o = [f"s_mov_b32 s54, {(40+v)<<19}", f"s_mov_b32 s53, {((40+v)<<19)+4096}"]
    for kk in range(2):
        for mi in range(2): o.append((f"buffer_load_dwordx4 {vr(u_areg(v,kk,mi))}, v{VA1 if v < 8 else VA0}, {W}, s{54-mi} offen offset:{kk*2048} {HF[1] if v < 16 and v % 4 < 2 else 'sc1'}", vm, ('B', v, kk)))
    return o


class Stage:
    def __init__(self, g, q, extra, dens):
        self.g = g; self.q = list(q); self.extra = extra; self.dens = dens; self.carry = 0
    def a(self, x):
        self.g.a(x); self.g.st['since'] += 1
    def wait(self, key):
        need = [k for k, e in enumerate(self.q) if key is None or e == key]
        if need:
            n = min(14, len(self.q) - 1 - max(need))
            self.a(f"s_waitcnt lgkmcnt({n})"); self.q = self.q[len(self.q) - n:]
    def read(self, r):
        self.a(r[1]); self.q.append(r[0])
    def op(self, x):
        if isinstance(x, tuple): x[1].op(x[0], x[2]); self.g.st['since'] += 1
        else: self.a(x)
    def fill(self, used):
        ex, st = self.extra, self.g.st
        while used < self.dens and ex:
            if isinstance(ex[0], int):
                if st['since'] >= ex[0]: ex.pop(0); continue
                return
            if ex[0] == 'XW':
                if 'x' in self.q: return
                ex.pop(0); continue
            x = ex.pop(0)
            if callable(x): x(); used += 2; st['since'] = 0; continue
            if isinstance(x, tuple): x[1].op(x[0], x[2]); x = x[0]
            else: self.g.a(x)
            if x.startswith("ds_"): self.q.append('x')
            st['since'] = 0
            used = 0 if x.startswith("v_mfma") else used + (2 if x.startswith(("v_exp", "v_rcp")) else 1)


def c_slab(g, u, vm, q, extra=None, dens=2, own=False):
    S = Stage(g, q, extra, dens)
    UL = 2 * NS - 1
    ld = c_loads(u + 3, vm) if u + 3 <= UL else u_loads(u + 2 - UL, vm)
    dr = u_reads(0) if u == UL else []
    if own and u == 0: ld = []
    ab = (lambda i: 40 + 16 * (u - 2) + 4 * i) if own and u in (2, 3) else (lambda i: AB(u, i))
    late = own and u == 1
    vm.wait(('A', u))
    for jj in range(8):
        n = 8 * u + jj
        R = c_wread(n + 3) if n + 3 < 16 * NS else []
        for k, i in enumerate(range(4) if jj % 2 == 0 else range(3, -1, -1)):
            S.wait(('W', n))
            S.a(mfma(ACC(JORD[jj], i), WB(n), ab(i), "0" if u == 0 else None))
            used = 1 if k == 3 else 0
            if R: S.read(R.pop(0)); used += 1
            if u % 2 == 1 and u < UL and jj == 4 and k == 2:
                S.a(f"v_add_u32 v{VW2}, {(slot2(u//2+1)-slot2(u//2)) & 0xffffffff}, v{VW2}"); S.a("s_barrier"); used = 2
            elif u == UL and jj == 1 and k == 2:
                S.a(f"v_add_u32 v{VWD}, {(u_base(0)-slot2(NS-1)) & 0xffffffff}, v{VW2}"); S.a("s_barrier"); used = 2
            elif dr and jj >= 2 and used < 2 and (k >= 2 or jj >= 5):
                S.read(dr.pop(0)); used += 1
            if ld and used < 2 and (((jj >= 5 and k in (1, 2)) if late else (k == 2 and (jj % 2 == g.o['aspread'] - 1 or not g.o['aspread'] or (u % 2 == 1 and jj == 5))) if u < UL else (jj >= 2 and k < 2)) or isinstance(ld[0], str)):
                S.op(ld.pop(0)); used += 1
            S.fill(used)
    assert not ld and not dr
    return S.q


def unit(g, v, vm, q, extra, dens=2):
    S = Stage(g, q, extra, dens)
    R = u_reads(v + 1) if v < 15 + ND else []
    t = {0: 3, 2: 8, 5: 9, 6: 10, 7: 11}
    for n, w in enumerate(g.o['dld']):
        assert w >= (8, 8, 8, 10, 12, 13, 14, 15)[n]
        t[w] = 16 + n
    t = t.get(v)
    ld = u_loads(t, vm) if t is not None else []
    m = 0
    for k in range(8):
        if k % 4 == 0: vm.wait(('B', v, k >> 2))
        for mi in ((0, 1) if k % 2 == 0 else (1, 0)):
            S.wait(('U', v, k >> 1))
            acc = ACC((4 if v % 8 < 4 else 0) + (k & 3), mi + (2 if v < 8 else 0)) if v < 16 else ACC(k & 3, mi)
            S.a(mfma(acc, WD(k), u_areg(v, k >> 2, mi)))
            used = 1 if m % 4 == 3 else 0
            if R and m == 0:
                S.a(f"v_add_u32 v{VWD}, {(u_base(v+1)-u_base(v)) & 0xffffffff}, v{VWD}"); used += 1
                if v in (3, 12, g.o['r1']): S.a("s_barrier"); used += 1
            elif R:
                S.read(R.pop(0)); used += 1
                if m == 15: S.read(R.pop(0))
            if ld and m in (1, 2, 4, 6, 9, 13):
                S.op(ld.pop(0)); used += 1
            S.fill(used)
            m += 1
    assert not R and not ld
    return S.q


def spaced(lst, n):
    o = []
    for x in lst: o += [x, n]
    return o


def strs(ex):
    return [x for x in ex if not isinstance(x, int)]


def compute(g):
    a = g.a
    a("L_compute:")
    a("v_and_b32 v4, 15, v0\nv_lshrrev_b32 v5, 4, v0")
    a("v_bfe_u32 v6, v4, 3, 1\nv_bfe_u32 v7, v4, 1, 1\nv_lshl_add_u32 v6, v6, 1, v7")
    a(f"v_mul_u32_u24 v{VX}, {BLK}, v6")
    a("v_bfe_u32 v6, v4, 2, 1\nv_and_b32 v7, 1, v4\nv_lshl_add_u32 v6, v6, 1, v7")
    a(f"v_lshl_add_u32 v{VX}, v6, 7, v{VX}\nv_lshl_add_u32 v{VX}, v5, 4, v{VX}")
    a(f"s_mul_i32 s45, s{S_WAVE}, {2*UNIT}\nv_add_u32 v{VX}, s45, v{VX}")
    a("v_and_b32 v6, 1, v5\nv_bfe_u32 v7, v4, 3, 1\nv_lshl_add_u32 v6, v6, 1, v7")
    a(f"v_mul_u32_u24 v{VW}, {BLK}, v6")
    a("v_lshrrev_b32 v6, 1, v5\nv_bfe_u32 v7, v4, 2, 1\nv_lshl_add_u32 v6, v6, 2, v7")
    a(f"v_lshl_add_u32 v{VW}, v6, 7, v{VW}\nv_and_b32 v6, 3, v4\nv_lshl_add_u32 v{VW}, v6, 3, v{VW}")
    a(f"v_add_u32 v{VW}, {WBASE}, v{VW}")
    a(f"v_lshrrev_b32 v6, 5, v0\nv_and_b32 v7, 31, v0\nv_lshlrev_b32 v7, 3, v7\nv_lshl_add_u32 v{VQ}, v6, 9, v7")
    a(f"v_add_u32 v{VQ}, {WBASE+3*UNIT}, v{VQ}")
    for r in range(48, 256): a(f"v_mov_b32 v{r}, 0")
    a(f"s_mov_b32 s45, 7\ns_mov_b32 s46, 0\ns_mov_b32 s48, {(-2*XSLOT) & 0xffffffff}\ns_mov_b32 s49, {XSLOT}")
    a("s_mov_b32 s50, 0x3fb8aa3b\ns_mov_b32 s51, 0x358637bd")
    a(f"s_lshl_b32 s52, s{S_MB8}, 16\ns_lshl_b32 s53, s{S_WAVE}, 14\ns_add_u32 s52, s52, s53")
    a(f"s_mul_i32 s53, s{S_QD}, 7")
    a(f"s_add_u32 s66, s53, 6\ns_lshl_b32 s66, s66, 19\ns_add_u32 s66, s66, s52")
    a(f"s_lshr_b32 s55, s{S_C}, 1\ns_lshl_b32 s55, s55, 11\ns_add_u32 s66, s66, s55")
    a(f"s_and_b32 s55, s{S_C}, 1\ns_lshl_b32 s55, s55, 10\ns_add_u32 s66, s66, s55")
    a("s_add_u32 s67, s66, 8192")
    a(f"s_lshr_b32 s57, s{S_WAVE}, 1\ns_and_b32 s58, s{S_WAVE}, 1")
    a(f"s_lshl_b32 s59, s2, 11\ns_lshl_b32 s55, s{S_WAVE}, 7\ns_add_u32 s59, s59, s55\ns_add_u32 s59, s59, {WS_FLAG}")
    a(f"s_add_u32 s60, s59, {F_H2}\ns_add_u32 s61, s59, {F_X}")
    a("v_lshlrev_b32 v4, 4, v0\nv_mov_b32 v6, 1")
    lane_goodcol(g, 7, 5)
    a("s_waitcnt lgkmcnt(0)")
    srd(g, SRD_WS, 26, 0x10000000)
    if g.o.get('prio'): a(f"s_setprio {g.o['prio']}")
    a("s_barrier")
    g.stamp(1)

    def em(lst):
        for x in lst: a(x)
    def first_loads(vm, own=False):
        ord_table(g, 48)
        a(f"s_lshl_b32 s55, s{S_RH}, 13\ns_xor_b32 s47, s55, 8192\ns_add_u32 s55, s55, s52\ns_add_u32 s47, s47, s52\nv_add_u32 v{VA0}, s55, v7\nv_add_u32 v{VA1}, s47, v7")
        a(f"s_mul_i32 s46, s32, {14<<19}\ns_lshl_b32 s45, s32, 20\nv_add_u32 v{VW2}, {(slot2(0)-WBASE) & 0xffffffff}, v{VW2}")
        g.stamp(9)
        a("s_barrier")
        g.stamp(10)
        for x in ([] if own else c_loads(0, vm) + c_loads(1, vm)):
            if isinstance(x, tuple): vm.op(x[0], x[2])
            else: a(x)
    def c_begin(vm, mv=()):
        g.stamp(4)
        a("s_waitcnt lgkmcnt(0)")
        for x in ([] if mv else c_loads(2, vm)):
            if isinstance(x, tuple): vm.op(x[0], x[2])
            else: a(x)
        em(mv)
        a("s_barrier")
        g.stamp(5)
        R = c_wread(0) + c_wread(1) + c_wread(2)
        for _, x in R: a(x)
        return [k for k, _ in R]
    def flag_ex(vm, tag, so):
        return lambda: (vm.wait(tag), a(flagops(6, so)), vm.mark('f', 1))
    def quarter(tmp):
        o = [f"v_bfe_u32 v{VQ}, v0, 4, 1", f"v_mul_u32_u24 v{VQ}, 3584, v{VQ}", f"v_lshrrev_b32 v{tmp}, 5, v0", f"v_lshlrev_b32 v{tmp}, 9, v{tmp}",
             f"v_sub_u32 v{VQ}, v{VQ}, v{tmp}", f"v_add_u32 v{VQ}, v{VQ}, v7"]
        for p in (1, 0):
            d = AC(12, 2 * p)
            o += h_cvt(d, d, d + 4)
        for p in (1, 0):
            d = AC(12, 2 * p)
            o += [f"s_nop 1\nv_permlane16_swap_b32 v{d}, v{d+2}", f"v_permlane16_swap_b32 v{d+1}, v{d+3}",
                  f"buffer_store_dwordx4 {vr(d)}, v{VQ}, {W}, s{66+p} offen {HF[0]}"]
        return o

    a(f"s_cmp_ge_u32 s{S_C}, 2\ns_cbranch_scc1 L_cq")
    a(f"s_add_u32 s55, s53, s{S_C}\ns_lshl_b32 s55, s55, 19\ns_add_u32 s55, s55, s52")
    p1_loop(g, True)
    SEL = lambda t: 224 + 4 * t
    T = lambda t: (176 + 4 * t) if t < 4 else (208 + 4 * (t - 4)) if t < 8 else 204
    ex2 = ["v_and_b32 v201, 3, v0", "v_mov_b32 v202, 0x3f803f80"]
    for t in range(4):
        ex2 += [f"v_cmp_eq_u32 vcc, {t}, v201\ns_nop 1\nv_cndmask_b32 v{SEL(t)}, 0, v202, vcc"] + [f"v_mov_b32 v{SEL(t)+r}, v{SEL(t)}" for r in (1, 2, 3)]
    ex2 += quarter(200)
    for s_ in range(4):
        for p in range(2):
            ex2 += phi_regs(list(range(AC(s_, 2 * p), AC(s_, 2 * p) + 8)), 192) + pack8(AC(s_, 2 * p), AC(s_, 2 * p + 1))
        if s_ == 1: ex2.append(None)
    rest = p1_tail(g, True, h_line_store(8, 55), ex2, flagops(6, 59))
    g.stamp(2)
    k = rest.index(None)
    em(rest[:k]); rest = rest[k + 1:]
    for s_ in range(4, 8):
        for p in (1, 0): em(pack8(AC(s_, 2 * p), AC(s_, 2 * p + 1)))
    def kv_mfmas(h):
        o = []
        for p in range(2):
            for dt in range(2):
                for e in range(2): o.append(mfma(T((h * 2 + e) * 2 + dt), AC(2 * h + dt, 2 * p), AC(4 + 2 * h + e, 2 * p), "0" if p == 0 else None))
                o.append(mfma(T(8), AC(2 * h + dt, 2 * p), SEL(2 * h + dt), "0" if (h, p, dt) == (0, 0, 0) else None))
        return o
    def hand(k):
        l0, l1 = g.lab("own"), g.lab("own")
        a(f"s_sub_u32 s55, s{S_WAVE}, {k+1}\ns_and_b32 s55, s55, 3\ns_cmp_eq_u32 s55, 3\ns_cbranch_scc1 {l0}")
        a(f"s_lshl_b32 s55, s55, 11\ns_add_u32 s55, s55, {P2END+k*6144}\nv_add_u32 v5, s55, v4")
        a(f"ds_write_b128 v5, {vr(T(2*k))}\nds_write_b128 v5, {vr(T(2*k+1))} offset:1024\ns_branch {l1}\n{l0}:")
        for r in range(8): a(f"v_mov_b32 v{40+r}, v{T(2*k)+r}")
        a(f"{l1}:")
    for x in kv_mfmas(0):
        a(x); em(rest[:3]); rest = rest[3:]
    vm = VM(a, ['h2'])
    em(rest[:12]); hand(0); em(rest[12:40]); hand(1); first_loads(vm); em(rest[40:])
    a("s_nop 1")
    em(kv_mfmas(1))
    a(f"s_lshl_b32 s56, s{S_PAIR}, 3\ns_add_u32 s56, s56, s{S_MB8}\ns_mul_i32 s56, s56, 9216\ns_add_u32 s56, s56, {WS_KVP}")
    a(f"s_add_u32 s62, s56, 8192\ns_cmp_eq_u32 s{S_WAVE}, 0\ns_cselect_b32 s62, s62, 0x10000000\ns_lshl_b32 s55, s{S_WAVE}, 11\ns_add_u32 s56, s56, s55")
    hand(2); hand(3)
    a(f"s_lshl_b32 s55, s{S_WAVE}, 10\nv_add_u32 v89, {P2END+24576}, v4\nv_add_u32 v5, s55, v89\nds_write_b128 v5, {vr(T(8))}")
    a(f"s_mul_i32 s55, s{S_WAVE}, 6144\ns_add_u32 s55, s55, {P2END}\nv_add_u32 v88, s55, v4")
    g.stamp(3)
    q = c_begin(vm)
    ex = [flag_ex(vm, 'h2', 60)]
    ex += [f"ds_read_b128 {vr(48+4*t)}, v88 offset:{t*1024}" for t in range(6)] + ['XW']
    ex += [f"v_add_f32 v{40+r}, v{40+r}, v{48+r}" for r in range(8)] + [f"v_add_f32 v{64+r}, v{64+r}, v{56+r}" for r in range(8)]
    ex += [f"ds_read_b128 {vr(48+4*t)}, v89 offset:{t*1024}" for t in range(4)]
    ex += [f"v_add_f32 v{40+r}, v{40+r}, v{64+r}" for r in range(8)]
    ex += [(f"buffer_store_dwordx4 {vr(40+4*t)}, v4, {W}, s56 offen offset:{t*1024} sc1", vm, 'kv') for t in range(2)] + ['XW']
    ex += [f"v_add_f32 v{48+r}, v{48+r}, v{56+r}" for r in range(8)] + [f"v_add_f32 v{48+r}, v{48+r}, v{52+r}" for r in range(4)]
    ex += [(f"buffer_store_dwordx4 v[48:51], v4, {W}, s62 offen sc1", vm, 'kv')]
    JU = g.o['ju']
    for u in range(JU): q = c_slab(g, u, vm, q, ex, dens=g.o.get('kdens', 2))
    assert not ex
    qj, vj = list(q), [x for x in vm.q if x not in ('kv', 'f')]
    a("s_branch L_c2join")
    a("L_cq:")
    a(f"s_lshl_b32 s55, s{S_C}, 1\ns_add_u32 s55, s55, s53\ns_sub_u32 s55, s55, 2\ns_lshl_b32 s55, s55, 19\ns_add_u32 s55, s55, s52")
    a("s_add_u32 s62, s55, 0x80000")
    p1_loop(g, False)
    b2 = quarter(AC(5, 0)) + [x for x in h_line_store(8, 62) if x.startswith("v_")]
    def moves(dst, tile):
        l0, l1 = g.lab("mv"), g.lab("mv")
        f = lambda x: "\n".join(f"v_mov_b64 v[{d+4*i+r}:{d+4*i+r+1}], v[{AC(t,i^x)+r}:{AC(t,i^x)+r+1}]" for d, t in zip(dst, tile) for i in range(4) for r in (0, 2))
        return [f"s_cmp_lg_u32 s{S_RH}, 0\ns_cbranch_scc1 {l0}\n{f(0)}\ns_branch {l1}\n{l0}:\n{f(2)}\n{l1}:"]
    mv = moves((40, 56), (8, 10))
    late2 = [f"buffer_store_dwordx4 {vr(40+16*p+4*i)}, v{VA1 if i>>1 else VA0}, {W}, s{63 if i&1 else 62} offen offset:{p*2048} {HF[0]}" for p in range(2) for i in range(4)]
    em(p1_tail(g, False, h_line_store(4, 55), ["s_nop 0"] * 4 + b2, flagops(6, 59)))
    g.stamp(2)
    vm = VM(a, ['h2'])
    hand_q = []
    for h in range(2):
        for i in (2, 3, 0, 1): hand_q.append(pack8(AC(2 * h, i), AC(2 * h + 1, i)) + [f"ds_write_b128 v5, {vr(PQ(i,h))} offset:{(i*2+h)*1024}"])
    a(f"s_lshl_b32 s55, s{S_WAVE}, 13\nv_add_u32 v5, s55, v4")
    phg = g.o.get('phig', 4)
    for x in hand_q: em(x)
    first_loads(vm, True)
    a("s_sub_u32 s62, s62, s52\ns_add_u32 s63, s62, 4096")
    em(moves((24, 112), (4, 6)))
    g.stamp(3)
    q = c_begin(vm, mv)
    ex = []
    for x in late2: ex += [(x, vm, 'h2'), g.o['st2sp']]
    k = JU - (2 if late2 else JU)
    for u in range(JU):
        if u == k + 1:
            assert not strs(ex)
            ex = [60 if late2 else 0, flag_ex(vm, 'h2', 60)]
        q = c_slab(g, u, vm, q, ex, own=True)
    qq = [x for x in vm.q if x not in ('f', 'h2')]
    assert not ex and q == qj and qq == vj[len(vj) - len(qq):]
    a("L_c2join:")
    vm.q = list(vj)
    pre = (f"s_lshl_b32 s68, s2, 17\ns_lshl_b32 s56, s{S_WAVE}, 13\ns_add_u32 s68, s68, s56\n" +
           "".join(f"s_xor_b32 s{61+p}, s68, {hex(p<<17)}\ns_add_u32 s{61+p}, s{61+p}, {WS_PART+((p-1)<<15)}\ns_add_u32 s{64+p}, s{61+p}, 4096\n" for p in (1, 2, 3)) +
           f"s_add_u32 s59, s59, {F_P}\ns_lshl_b32 s68, s{S_WAVE}, 12\ns_add_u32 s68, s68, {P2END}\n"
           f"s_add_u32 s69, s{S_WAVE}, {NS+2}\ns_and_b32 s69, s69, {NSL-1}\ns_mul_i32 s69, s69, {P2SLOT}\ns_add_u32 s69, s69, {2*UNIT}\n"
           f"s_mov_b32 s28, s18\ns_mov_b32 s29, s19\ns_mov_b32 s30, {hex(2048*1024*2)}\ns_mov_b32 s31, 0x20000\n"
           f"s_lshl_b32 s55, s52, 3\ns_lshl_b32 s56, s{S_RH}, 16\ns_add_u32 s55, s55, s56\n"
           f"s_lshl_b32 s56, s{S_CB}, 8\ns_add_u32 s55, s55, s56\ns_lshl_b32 s56, s{S_KH}, 7\ns_add_u32 s55, s55, s56\n"
           f"s_lshl_b32 s50, s{S_WAVE}, 1\ns_add_u32 s50, s50, s{S_RH}\ns_lshl_b32 s50, s50, 7\ns_add_u32 s50, s50, {LDS_G}\n"
           f"v_and_b32 v{SEL0+6}, 15, v0\nv_lshrrev_b32 v{SEL0+7}, 4, v0\nv_lshlrev_b32 v{SEL0+7}, 2, v{SEL0+7}\nv_sub_u32 v{SEL0+6}, v{SEL0+6}, v{SEL0+7}\n"
           f"v_and_b32 v{SEL0+7}, 1, v0\nv_lshlrev_b32 v{SEL0+7}, 4, v{SEL0+7}\nv_mov_b32 v{SEL0}, 0x3f80\nv_lshlrev_b32 v{SEL0+7}, v{SEL0+7}, v{SEL0}\nv_lshrrev_b32 v{SEL0+6}, 1, v{SEL0+6}").split("\n")
    pre += [f"v_cmp_eq_u32 vcc, {k}, v{SEL0+6}\ns_nop 1\nv_cndmask_b32 v{SEL0+2+k}, 0, v{SEL0+7}, vcc" for k in range(2)]
    pre += [f"v_mov_b32 v{SEL0+r}, 0" for r in (0, 1, 4, 5)]
    ex = pre
    for u in range(JU, 2 * NS): q = c_slab(g, u, vm, q, ex)
    def send(p, sp, mi):
        j, i = 4 * (p >> 1) + 2 * sp, 2 * (p & 1) + mi
        return pack8(ACC(j, i), ACC(j + 1, i)) + [(f"buffer_store_dwordx4 {vr(ACC(j,i))}, v7, {W}, s{61+p+3*mi} offen offset:{sp*2048} sc1", vm, ('ps', p))]
    def rdp(p):
        return [f"ds_read_b128 {vr(PP(p,f))}, v{VFL if p == 3 else VPO} offset:{(4096 if p == 2 else 0)+f*1024}" for f in range(4)]
    def addp(p):
        return [mfma(ACC(2 * sp + t, mi), SEL0 + 2 - 2 * t, PP(p, mi * 2 + sp)) for mi in range(2) for sp in range(2) for t in range(2)]
    XF = g.o['xf']
    PO = (3, 1, 2)
    for v in range(17 + ND):
        if v == 1:
            assert not ex
            ex += (f"v_add_u32 v{VFL}, s68, v4\nv_add_u32 v{VPO}, s69, v4\nv_and_b32 v{VOUT}, 15, v0\nv_lshl_add_u32 v{GG}, v{VOUT}, 2, s50\n"
                   f"v_lshlrev_b32 v{VOUT}, 11, v{VOUT}\nv_bfe_u32 v{GG+1}, v0, 4, 1\nv_lshl_add_u32 v{VOUT}, v{GG+1}, 5, v{VOUT}\n"
                   f"v_lshrrev_b32 v{GG+1}, 5, v0\nv_lshl_add_u32 v{VOUT}, v{GG+1}, 4, v{VOUT}\n"
                   f"ds_read_b32 v{GG+1}, v{GG} offset:64\nds_read_b32 v{GG}, v{GG}").split("\n")
            ex += ['XW', f"v_add_f32 v{GG}, 1.0, v{GG}", f"v_add_f32 v{GG+1}, 1.0, v{GG+1}", f"v_rcp_f32 v{GG}, v{GG}", f"v_rcp_f32 v{GG+1}, v{GG+1}"]
        if 4 <= v < 16:
            if v % 4 == 0:
                snd = [send(PO[v // 4 - 1], sp, mi) for sp in range(2) for mi in range(2)]
                g.st['since'] = 0; ex.append(6)
            if v >= 12 and g.o.get('fast2', 1):
                if v % 4 < 2: ex += snd[2 * (v % 4)] + snd[2 * (v % 4) + 1]
            elif v % 4 < 2: ex += snd[2 * (v % 4)][:4] + [snd[v % 4][4]] + snd[2 * (v % 4) + 1][:4]
            else: ex += [snd[v % 4][4]]
        if v == 16: g.stamp(6)
        if v in (0, 4, 8, 12, 20): g.stamp({0: 11, 4: 12, 8: 13, 12: 14, 20: 15}[v])
        for r in range(3):
            if v == XF[r]:
                assert v >= (8, 12, 14 if g.o.get('fast2', 1) else 16)[r]
                vm.wait(('ps', PO[r])); a(flagops(6, 59)); vm.mark('f', 1); a(f"v_mov_b32 v6, {r+2}")
        if v == g.o['r1']:
            assert v >= 16 and not ex
            g.st['since'] = 0
            ex += [4] + rdp(3) + rdp(1) + ['XW'] + addp(3) + addp(1)
        if v < 16 + ND: q = unit(g, v, vm, q, ex, dens=g.o.get('ydens', 3) if v < 16 else g.o.get('ddens', 3))
        if 4 <= v < 16: assert not [x for x in ex if (isinstance(x, tuple) and x[2][0] == 'ps') or (isinstance(x, str) and x.startswith("v_cvt"))]
    assert not ex
    a("s_barrier")
    em(rdp(2))
    ad = addp(2)
    for f in range(4): a(f"s_waitcnt lgkmcnt({3-f})"); em(ad[2 * f:2 * f + 2])
    g.stamp(7)
    for mi in range(2):
        for hf in range(2):
            for j in range(2):
                for r in range(0, 4, 2): a(f"v_pk_mul_f32 v[{ACC(2*hf+j,mi)+r}:{ACC(2*hf+j,mi)+r+1}], v[{ACC(2*hf+j,mi)+r}:{ACC(2*hf+j,mi)+r+1}], v[{GG}:{GG+1}] op_sel:[0,{mi}] op_sel_hi:[1,{mi}]")
            d = ACC(2 * hf, mi)
            em(pack8(d, ACC(2 * hf + 1, mi)))
            a(f"s_add_u32 s56, s55, {0x8000*mi + 64*hf}\ns_nop 0\nv_permlane16_swap_b32 v{d}, v{d+2}\nv_permlane16_swap_b32 v{d+1}, v{d+3}")
            a(f"buffer_store_dwordx4 {vr(d)}, v{VOUT}, s[28:31], s56 offen {g.o.get('outflag','')}")
    if g.o['prof']:
        a("s_waitcnt vmcnt(0)")
        g.stamp(8)
    if g.o.get('probe') is not None:
        k = g.o['probe']
        if k == 'min':
            k = 0
            srd(g, 28, 24, 256)
            a("buffer_load_dword v5, off, s[28:31], 0 offset:4 sc1\ns_waitcnt vmcnt(0) lgkmcnt(0)\nv_readfirstlane_b32 s70, v5\ns_nop 3\ns_not_b32 s70, s70")
        a(f"s_waitcnt lgkmcnt(0)\ns_add_u32 s55, s{70+2*k}, 6000\nL_probe:\ns_memrealtime s[56:57]\ns_waitcnt lgkmcnt(0)\ns_sub_u32 s56, s56, s55\ns_cmp_lt_i32 s56, 0\ns_cbranch_scc1 L_probe\ns_endpgm")
    prof_dump(g, 0, 0)
    a("s_endpgm")


def q_call(g, n):
    K1 = g.o['k1']
    k = f"p{n}" if n < len(g.o['pch']) else 4 + n - K1 if K1 <= n <= K1 + g.o['noc'] else None
    if k is None: return
    l = g.lab("qc")
    g.a(f"s_cmp_lt_u32 s{S_C}, 2\ns_cbranch_scc1 {l}\ns_call_b64 s[84:85], L_q{k}\n{l}:")


def q_chunks(g):
    a = g.a
    QR = lambda f: 128 + 4 * f
    def phi(f):
        if g.o.get('nophi'): return
        for r in range(4): a(f"v_lshlrev_b32 v{160+2*r}, 16, v{QR(f)+r}\nv_and_b32 v{161+2*r}, 0xffff0000, v{QR(f)+r}")
        for r in range(8): a(f"v_mul_f32 v{168+r}, 0x3fb8aa3b, v{160+r}")
        for r in range(8): a(f"v_exp_f32 v{168+r}, v{168+r} clamp\nv_max_f32 v{160+r}, 0x358637bd, v{160+r}")
        for r in range(8): a(f"v_add_f32 v{160+r}, v{160+r}, v{168+r}")
        for r in range(4): a(f"v_cvt_pk_bf16_f32 v{QR(f)+r}, v{160+2*r}, v{161+2*r}")
    nf = 0
    assert sum(g.o['pch']) == 8 and len(g.o['pch']) <= g.o['k0']
    for k in range(len(g.o['pch'])):
        a(f"L_qp{k}:")
        if g.o.get('pprio'): a(f"s_setprio {g.o['pprio']}")
        if k == 0:
            a(f"s_sub_u32 s86, s{S_WAVE}, 4\ns_lshl_b32 s82, s86, 13\nv_lshl_add_u32 v224, v0, 4, s82")
            for f in range(8): a(f"ds_read_b128 {vr(QR(f))}, v224 offset:{f*1024}")
            a(f"s_lshl_b32 s83, s2, 11\ns_lshl_b32 s82, s86, 7\ns_add_u32 s83, s83, s82\ns_add_u32 s83, s83, {WS_FLAG+F_X}")
            a(f"s_add_u32 s82, s{S_PAIR}, 56\ns_lshl_b32 s82, s82, 3\ns_add_u32 s82, s82, s{S_MB8}\ns_lshl_b32 s82, s82, 2\ns_add_u32 s82, s82, s86\ns_lshl_b32 s82, s82, 14")
            a(f"v_lshlrev_b32 v224, 4, v0\nv_add_u32 v224, {P2END}, v224\nv_mov_b32 v226, 1\ns_waitcnt lgkmcnt(0)")
        for _ in range(g.o['pch'][k]): phi(nf); nf += 1
        a("s_setpc_b64 s[84:85]")
    noc = g.o['noc']
    tiles = {2: [(0, 1), (2, 3)], 3: [(0,), (1, 2), (3,)], 4: [(0,), (1,), (2,), (3,)]}[noc]
    for k in range(noc):
        a(f"L_q{4+k}:")
        if g.o.get('qprio'): a(f"s_setprio {g.o['qprio']}")
        lane_goodcol(g, 225, 227)
        if k == 0:
            for f in range(6): a(f"ds_read_b128 {vr(176+4*f)}, v224 offset:{f*1024}")
            a(f"s_lshl_b32 s86, s{S_WAVE}, 8\ns_add_u32 s86, s86, {LDS_G-1024}\nv_and_b32 v227, 15, v0\nv_lshl_add_u32 v227, v227, 2, s86")
            for i in range(4): a(f"ds_read_b32 v{228+i}, v227 offset:{i*64}")
            a("s_waitcnt lgkmcnt(0)")
        for i in tiles[k]:
            for h in range(2):
                for e in (2, 0, 1): a(mfma(200 + 12 * h + 4 * e, 176 + 4 * (3 * h + e), QR(2 * i + h), "0"))
            a(f"s_add_u32 s86, s82, {4096*i}\ns_nop 3")
            for h in range(2):
                t = 200 + 12 * h
                a(f"v_add_f32 v{t+8}, 0x358637bd, v{t+8}\nv_rcp_f32 v{t+8}, v{t+8}\ns_nop 0\nv_mul_f32 v{t+8}, v{228+i}, v{t+8}")
                for r in range(8): a(f"v_mul_f32 v{t+r}, v{t+r}, v{t+8}")
                for r in range(4): a(f"v_cvt_pk_bf16_f32 v{QR(2*i+h)+r}, v{t+2*r}, v{t+2*r+1}")
                a(f"buffer_store_dwordx4 {vr(QR(2*i+h))}, v225, {W}, s86 offen offset:{h*2048} sc1")
        if g.o.get('qprio'): a("s_setprio 0")
        a("s_setpc_b64 s[84:85]")
    a(f"L_q{4+noc}:\ns_waitcnt vmcnt(0)\n" + flagops(226, 83) + "\ns_setpc_b64 s[84:85]")


def aux_rx(g):
    a = g.a
    a("L_rx:")
    lane_goodcol(g, 225, 227)
    a(f"v_add_u32 v224, 1024, v225\ns_sub_u32 s86, s{S_WAVE}, 4")
    a(f"s_lshl_b32 s82, s2, 17\ns_lshl_b32 s83, s86, 13\ns_add_u32 s82, s82, s83\ns_add_u32 s82, s82, {WS_PART}")
    a(f"s_lshl_b32 s83, s2, 11\ns_lshl_b32 s47, s86, 7\ns_add_u32 s83, s83, s47")
    a(f"s_lshl_b32 s84, s86, 12\ns_add_u32 s84, s84, {P2END}")
    a(f"s_add_u32 s85, s86, {NS+2}\ns_and_b32 s85, s85, {NSL-1}\ns_mul_i32 s85, s85, {P2SLOT}\ns_add_u32 s85, s85, {2*UNIT}")
    a("s_waitcnt vmcnt(0) lgkmcnt(0)\ns_barrier")
    for r, p in enumerate((3, 1, 2)):
        a(f"s_xor_b32 s47, s83, {p<<11}\ns_add_u32 s47, s47, {WS_FLAG+F_P}")
        iss = lambda: a(f"buffer_load_dword v226, off, {W}, s47 sc1")
        if r == 2: a("s_waitcnt vmcnt(0)"); iss(); a("s_barrier")
        else: iss()
        poll_check(g, iss, 226, 1, r + 1, "gt")
        for mi in range(2):
            a(f"s_add_u32 m0, s{84 if p == 3 else 85}, {(4096 if p == 2 else 0)+mi*2048}\ns_add_u32 s47, s82, {((p-1)<<15)+mi*4096}")
            a(f"buffer_load_dwordx4 v225, {W}, s47 offen sc1 lds\nbuffer_load_dwordx4 v224, {W}, s47 offen offset:1024 sc1 lds")
    a("s_waitcnt vmcnt(0)\ns_endpgm")


def loader(g):
    def a(x):
        if not g.o.get('trace'): return g.a(x)
        for ln in x.split("\n"):
            g.a(ln)
            if ln.strip() == "s_barrier":
                g.a(("s_memtime" if g.o['trace'] == 'cyc' else "s_memrealtime") + " s[100:101]\ns_waitcnt lgkmcnt(0)\ns_mov_b32 m0, s44\ns_add_u32 s44, s44, 1\nv_writelane_b32 v32, s100, m0\ns_cmp_lg_u32 s44, 33\ns_cbranch_scc1 1\nv_mov_b32 v33, v32")
    if g.o.get('trace'): a("s_mov_b32 s44, 0\nv_mov_b32 v32, 0\nv_mov_b32 v33, 0")
    LW = 45
    if g.o.get('lprio'): a(f"s_setprio {g.o['lprio']}")
    a(f"s_sub_u32 s{LW}, s{S_WAVE}, 4")
    a("v_lshrrev_b32 v1, 5, v0\nv_bfe_u32 v2, v0, 4, 1\nv_lshlrev_b32 v1, 4, v1\nv_lshl_add_u32 v1, v2, 2, v1\nv_bfe_u32 v2, v0, 3, 1\nv_add_u32 v1, v1, v2")
    a(f"s_lshl_b32 s61, s{LW}, 3\nv_add_u32 v1, s61, v1\nv_and_b32 v2, 7, v0\nv_lshlrev_b32 v2, 4, v2")
    a(f"s_lshl_b32 s61, s{S_MB8}, 19\nv_lshl_add_u32 v4, v1, 11, v2\nv_add_u32 v4, s61, v4\nv_add_u32 v5, {4096-BLK}, v4")
    a(f"s_movk_i32 s60, 6144\ns_cmp_ge_u32 s{S_C}, 2\ns_cselect_b32 s60, 7168, s60")
    a(f"s_cselect_b32 s61, 0, 2048\ns_lshl_b32 s62, s{S_PAIR}, 7\ns_add_u32 s61, s61, s62")
    a(f"v_mul_u32_u24 v6, 6144, v1\nv_add3_u32 v6, v6, v2, s61\nv_add_u32 v7, {12288-BLK}, v6")
    a(f"s_mul_i32 s63, s{S_QD}, 7\ns_lshl_b32 s64, s{S_C}, 1\ns_add_u32 s64, s64, s63\ns_sub_u32 s65, s64, 2\ns_lshl_b32 s65, s65, 7\ns_add_u32 s62, s62, 4096")
    a(f"s_cmp_ge_u32 s{S_C}, 2\ns_cselect_b32 s61, s65, s62")
    a(f"v_mul_lo_u32 v8, v1, s60\nv_add3_u32 v8, v8, v2, s61\ns_lshl_b32 s62, s60, 1\ns_sub_u32 s62, s62, {BLK}\nv_add_u32 v9, s62, v8")
    a(f"s_sub_u32 s64, s64, 1\ns_add_u32 s65, s63, s{S_C}\ns_cmp_ge_u32 s{S_C}, 2\ns_cselect_b32 s61, s64, s65\ns_lshl_b32 s61, s61, 7")
    a(f"v_mul_u32_u24 v10, 7168, v1\nv_add3_u32 v10, v10, v2, s61\nv_add_u32 v11, {14336-BLK}, v10")
    a("v_bfe_u32 v12, v0, 4, 1\nv_bfe_u32 v13, v0, 3, 1\nv_lshlrev_b32 v12, 2, v12\nv_lshl_add_u32 v12, v13, 3, v12\nv_bfe_u32 v13, v0, 1, 2\nv_add_u32 v12, v12, v13")
    a(f"s_lshl_b32 s61, s{LW}, 4\nv_add_u32 v12, s61, v12\nv_mul_u32_u24 v12, 7168, v12\nv_and_b32 v13, 1, v0\nv_lshl_add_u32 v12, v13, 4, v12")
    a(f"s_add_u32 s61, s63, 6\ns_lshl_b32 s61, s61, 7\ns_lshl_b32 s62, s{S_C}, 5\ns_add_u32 s61, s61, s62\nv_add_u32 v12, s61, v12")
    a("s_lshl_b32 s60, s60, 5")
    a(f"s_mul_i32 s66, s{LW}, {2*BLK}")
    a(f"s_mov_b32 s61, s66\ns_lshl_b32 s62, s{S_PHI}, 7\ns_mov_b32 s63, 0\ns_lshl_b32 s64, s{S_PHI}, 1\ns_add_u32 s65, s66, {WBASE}")
    a(f"s_add_u32 s67, s66, {XRING}\ns_add_u32 s68, s66, {WBASE+4*WSLOT}")
    a(f"s_lshl_b32 s69, s{LW}, 9\ns_sub_u32 s69, s69, s66\ns_add_u32 s69, s69, {3*UNIT}")
    a(f"s_mov_b32 s30, {hex(2048*1024*2)}\ns_mov_b32 s31, 0x20000\ns_mov_b32 s50, {hex(1024*3072*2)}\ns_mov_b32 s51, 0x20000")
    a(f"s_mov_b32 s58, {hex(1024*3584*2)}\ns_mov_b32 s59, 0x20000\ns_mov_b32 s55, 0x20000")
    a("s_waitcnt lgkmcnt(0)")
    a("s_mov_b64 s[28:29], s[4:5]\ns_mov_b64 s[48:49], s[6:7]\ns_mov_b64 s[56:57], s[12:13]")
    a(f"s_cmp_ge_u32 s{S_C}, 2")
    a("s_cselect_b64 s[52:53], s[12:13], s[6:7]\ns_cselect_b32 s54, s58, s50")

    def xhalf():
        a("s_mov_b32 m0, s61\ns_add_u32 s46, s62, s63")
        for u in range(4):
            if u: a(f"s_add_u32 m0, m0, {UNIT}\ns_add_u32 s46, s46, 0x10000")
            a("buffer_load_dwordx4 v4, s[28:31], s46 offen lds")
            a(f"buffer_load_dwordx4 v5, s[28:31], s46 offen offset:{BLK} lds")
        a(f"s_add_u32 s61, s61, {4*UNIT}\ns_cmp_eq_u32 s61, s67\ns_cselect_b32 s61, s66, s61")
        a("s_xor_b32 s63, s63, 0x40000\ns_cselect_b32 s47, 0, 128\ns_add_u32 s62, s62, s47\ns_and_b32 s62, s62, 2047")

    def wslab():
        for ln, (sr, ld) in enumerate([(48, 32 * 6144), (52, "s60"), (56, 32 * 7168)]):
            a(f"s_add_u32 m0, s65, {ln*UNIT}\ns_mul_i32 s35, s64, {ld}")
            a(f"buffer_load_dwordx4 v{6+2*ln}, s[{sr}:{sr+3}], s35 offen lds")
            a(f"buffer_load_dwordx4 v{7+2*ln}, s[{sr}:{sr+3}], s35 offen offset:{BLK} lds")
        a("s_add_u32 m0, s65, s69\ns_mov_b32 exec_hi, 0")
        a("buffer_load_dwordx4 v12, s[56:59], s35 offen lds")
        a("s_mov_b32 exec_hi, -1")
        a(f"s_add_u32 s65, s65, {WSLOT}\ns_cmp_eq_u32 s65, s68\ns_cselect_b32 s65, s67, s65")
        a("s_add_u32 s64, s64, 1\ns_and_b32 s64, s64, 31")

    g.stamp(1)
    xhalf(); wslab(); xhalf(); wslab(); g.stamp(2)
    a("s_waitcnt vmcnt(7)"); g.stamp(3)
    a("s_barrier")
    SM = g.o.get('smooth', 1)
    if SM:
        xhalf(); xhalf(); wslab()
        a("s_waitcnt vmcnt(23)\ns_barrier")
        wslab(); xhalf(); wslab()
        a("s_waitcnt vmcnt(22)\ns_barrier")
        xhalf(); wslab(); xhalf()
    else:
        xhalf(); wslab(); xhalf(); wslab(); xhalf()
    g.stamp(4)
    real_a, buf = g.a, []
    g.a = lambda x: buf.extend(x.split("\n"))
    srd(g, SRD_WS, 26, 0x10000000)
    a(f"s_mov_b32 s10, {hex(1024*1024*2)}\ns_mov_b32 s11, 0x20000")
    a(f"s_mov_b64 s[12:13], s[14:15]\ns_mov_b32 s14, {hex(3584*1024*2)}\ns_mov_b32 s15, 0x20000")
    a("v_lshrrev_b32 v1, 5, v0\nv_bfe_u32 v3, v0, 4, 1\nv_lshlrev_b32 v1, 3, v1\nv_lshl_add_u32 v1, v3, 4, v1\nv_bfe_u32 v3, v0, 3, 1\nv_add_u32 v1, v1, v3")
    a(f"s_lshl_b32 s4, s{LW}, 2\nv_add_u32 v1, s4, v1")
    a(f"s_lshl_b32 s4, s{S_CB}, 8\ns_lshl_b32 s5, s{S_KH}, 7\ns_add_u32 s4, s4, s5")
    a("v_lshl_add_u32 v14, v1, 11, v2\nv_add_u32 v14, s4, v14\nv_xor_b32 v16, 128, v14")
    a(f"v_add_u32 v15, {4096-BLK}, v14\nv_add_u32 v17, {4096-BLK}, v16")
    a(f"s_lshl_b32 s5, s{S_MB8}, 19\ns_sub_u32 s4, s4, s5")
    a(f"v_add_u32 v24, s4, v4\nv_xor_b32 v26, 128, v24\nv_add_u32 v25, {4096-BLK}, v24\nv_add_u32 v27, {4096-BLK}, v26")
    lane_h(g, 21, 22, 17)
    a(f"s_mul_i32 s6, s32, {14<<17}\ns_lshl_b32 s7, s32, 18")
    a("s_mov_b64 s[24:25], s[12:13]\ns_mov_b32 s26, s14\ns_mov_b32 s27, 0x20000")
    if g.o.get('w2c', 0):
        lk, ln = g.lab("wc"), g.lab("wc")
        a(f"s_and_b32 s18, s{S_CB}, 3\ns_cmp_eq_u32 s18, 1\ns_cbranch_scc0 {ln}")
        a(f"s_lshr_b32 s18, s{S_CB}, 2\ns_mul_i32 s18, s18, {1024-128}\ns_sub_u32 s18, {WS_W2C-384}, s18\ns_add_u32 s18, s20, s18\ns_addc_u32 s19, s21, 0")
        a(f"s_cmp_eq_u32 s{S_KH}, 1\ns_cbranch_scc1 {lk}\ns_mov_b64 s[24:25], s[18:19]\ns_branch {ln}\n{lk}:\ns_mov_b64 s[12:13], s[18:19]\n{ln}:")
    ord_table(g, 4)
    g.a = real_a
    cut = max(i for i, x in enumerate(buf) if x.startswith("s_mov_b64 s[24:25], s[12:13]"))
    NU = 6
    a(f"s_mov_b32 s34, {27-NU-2*SM}")
    a("L_l1:")
    a("s_waitcnt vmcnt(30)\ns_barrier")
    wslab(); xhalf()
    a("s_sub_u32 s34, s34, 1\ns_cmp_lg_u32 s34, 0\ns_cbranch_scc1 L_l1")
    t0 = 27 - NU
    vm = VM(a, [('I', t0 - 3)] * 15 + [('I', t0 - 2)] * 15 + [('I', t0 - 1)] * 15)
    busy = [False]
    def wstage(m):
        if m < 14: a(f"s_bfe_u32 s16, s{4+m//8}, {hex((4<<16) | (4*(m%8)))}\ns_lshl_b32 s16, s16, 17\ns_add_u32 s16, s16, s6")
        for ln in range(2):
            for kk in range(2):
                if g.o.get('wpace') and m >= 3 and (ln or kk):
                    a(f"s_cbranch_vccnz 1\ns_sleep {g.o['wpace']}" if busy[0] else f"s_sleep {g.o['wpace']}")
                a(f"s_add_u32 m0, s66, {slot2(m)+(ln*2+kk)*UNIT}")
                if m < 14:
                    vb, sr = (24 if ORD[m] % 7 == 6 else 14) + 2 * ln, 24 if ln else 12
                    a(f"s_add_u32 s47, s16, {kk<<16}")
                elif m < 16:
                    vb, sr = 14 + 2 * ln, 8
                    a(f"s_add_u32 s47, s7, {((ND+m-14)<<17)+(kk<<16)}")
                else:
                    vb, sr = 14, 8
                    a(f"s_mov_b32 s47, {((2*(m-16)+ln)<<17)+(kk<<16)}")
                for jb in range(2):
                    vm.op(f"buffer_load_dwordx4 v{vb+jb}, s[{sr}:{sr+3}], s47 offen offset:{jb*BLK} sc1 lds", m)
    for t in range(t0, 27):
        vm.wait(('I', t - 3)); a("s_barrier")
        wslab(); xhalf(); vm.mark(('I', t), 15)
        k = t - t0
        for x in (buf[k * cut // 5:(k + 1) * cut // 5] if k < 5 else buf[cut:]): a(x)
    vm.wait(('I', 25)); a("s_barrier")
    wslab(); vm.mark(('I', 27), 7)
    vm.wait(('I', 26)); a("s_barrier")
    wstage(0)
    vm.wait(('I', 27)); a("s_barrier")
    wstage(1)
    a("s_barrier")
    nxt = 2
    for _ in range(g.o.get('w31', 1)): wstage(nxt); nxt += 1
    a("s_barrier")
    g.stamp(5)
    for _ in range(g.o.get('w32', 0)): wstage(nxt); nxt += 1
    a("s_barrier")
    a(f"s_cmp_ge_u32 s{S_C}, 2\ns_cselect_b64 vcc, -1, 0")
    sched = g.o.get('wsched', [1, 1, 1, 1, 2, 1, 2, 1, 1, 1, 2, 1, 1, 1])
    for n in range(0, 14):
        need = 15 if n >= 12 else n
        lim = {0: 5}.get(n, n + 6)
        assert nxt > need
        vm.wait(need); a("s_barrier")
        fl = n == g.o['k1'] + g.o['noc']
        if fl: q_call(g, n)
        busy[0] = n < len(g.o['pch']) or g.o['k1'] <= n <= g.o['k1'] + g.o['noc']
        for _ in range(sched[n]):
            assert nxt <= lim
            wstage(nxt); nxt += 1
        if not fl: q_call(g, n)
        if n == g.o.get('opf', 99):
            a("v_and_b32 v40, 1, v0\nv_bfe_u32 v41, v0, 1, 4\nv_lshlrev_b32 v41, 9, v41\nv_lshl_add_u32 v40, v40, 7, v41\nv_lshrrev_b32 v41, 5, v0\nv_lshl_add_u32 v40, v41, 14, v40")
            a(f"s_add_u32 s47, s{S_CB}, 56\ns_lshl_b32 s47, s47, 3\ns_add_u32 s47, s47, s{S_MB8}\ns_lshl_b32 s47, s47, 1\ns_add_u32 s47, s47, s{LW}\ns_lshl_b32 s47, s47, 2\ns_add_u32 s47, s47, s{S_RH}\ns_lshl_b32 s47, s47, 13")
            vm.op(f"buffer_load_dword v41, v40, {W}, s47 offen sc1", 'pf')
    assert nxt == 20
    if g.o.get('trace'):
        l = g.lab("tr")
        a(f"s_cmp_lg_u32 s{S_WAVE}, 4\ns_cbranch_scc1 {l}\ns_lshl_b32 s33, s2, 9\ns_add_u32 s33, s33, {WS_PROF+0x20000}\nv_lshlrev_b32 v5, 2, v0")
        a(f"buffer_store_dword v33, v5, {W}, s33 offen\nbuffer_store_dword v32, v5, {W}, s33 offen offset:256\n{l}:")
    aux_rx(g)


def pf_item(g, wait=False):
    a = g.a
    a(f"s_mul_hi_u32 s47, s68, {(2**32+16)//17}\ns_mul_i32 s33, s47, 17\ns_sub_u32 s33, s68, s33")
    a("s_lshl_b32 s50, s47, 1\ns_add_u32 s50, s50, s87\ns_lshl_b32 s50, s50, 5")
    a("s_mul_i32 s51, s32, 7\ns_add_u32 s51, s51, s33\ns_sub_u32 s51, s51, 10")
    a("s_sub_u32 s35, s33, 4\ns_lshr_b32 s54, s35, 1\ns_lshl_b32 s54, s54, 2\ns_add_u32 s54, s54, s32\ns_lshl_b32 s54, s54, 1\ns_and_b32 s35, s35, 1\ns_add_u32 s35, s35, s54")
    a(f"s_movk_i32 s55, 7168\ns_mov_b32 s54, {hex(1024*3584*2)}\ns_cmp_lt_u32 s33, 10\ns_cselect_b32 s51, s35, s51\ns_cselect_b32 s35, 6144, s55\ns_cselect_b32 s54, {hex(1024*3072*2)}, s54")
    a("s_mul_i32 s50, s50, s35\ns_lshl_b32 s51, s51, 8\ns_add_u32 s50, s50, s51")
    a(f"s_lshl_b32 s51, s{S_XCD}, 2\ns_add_u32 s51, s51, s33\ns_lshl_b32 s51, s51, 17\ns_lshl_b32 s47, s47, 7\ns_add_u32 s47, s47, s51")
    a(f"s_cmp_lt_u32 s33, 4\ns_cselect_b32 s47, s47, s50\ns_cselect_b32 s35, 4096, s35\ns_cselect_b32 s50, 11, 7\ns_cselect_b32 s54, {hex(2048*1024*2)}, s54\ns_mov_b32 s55, 0x20000")
    a("v_lshrrev_b32 v10, 1, v0\nv_and_b32 v11, 1, v0\nv_mul_lo_u32 v10, v10, s35\nv_lshl_add_u32 v10, v11, s50, v10")
    if wait: a("s_waitcnt lgkmcnt(0)")
    a("s_cmp_lt_u32 s33, 10\ns_cselect_b64 s[52:53], s[6:7], s[12:13]\ns_cmp_lt_u32 s33, 4\ns_cselect_b64 s[52:53], s[4:5], s[52:53]")
    a("buffer_load_dword v9, v10, s[52:55], s47 offen")


def helper(g):
    a = g.a
    a("L_helper:")
    HW = 45
    def bars(n):
        for _ in range(n): a("s_barrier")
    if g.o.get('hprio'): a(f"s_setprio {g.o['hprio']}")
    a(f"s_sub_u32 s{HW}, s{S_WAVE}, 6")
    a("v_lshlrev_b32 v4, 4, v0\nv_lshlrev_b32 v5, 2, v0\nv_mov_b32 v6, 0\nv_mov_b32 v7, 1\nv_lshlrev_b32 v8, 7, v0")
    a(f"s_getpc_b64 s[96:97]\nL_pc:\ns_sub_u32 s96, s96, L_pc-{NAME}\ns_subb_u32 s97, s97, 0")
    a(f"s_mov_b32 s98, L_codeend-{NAME}\ns_mov_b32 s99, 0x20000")
    a(f"s_lshl_b32 s100, s30, 1\ns_add_u32 s100, s100, s{HW}\ns_lshl_b32 s100, s100, 11")
    def codepf():
        a("s_mov_b64 exec, 0xffff\nbuffer_load_dword v9, v8, s[96:99], s100 offen\ns_mov_b64 exec, -1")
    codepf()
    a(f"s_lshl_b32 s46, s32, 3\ns_add_u32 s46, s46, s{S_CB}\ns_lshl_b32 s47, s{S_MB8}, 5\ns_add_u32 s46, s46, s47")
    a("s_waitcnt lgkmcnt(0)")
    srd(g, SRD_WS, 26, 0x10000000)
    srd(g, 28, 4, 2048 * 1024 * 2)
    srd(g, 92, 24, 256)
    for r in range(12, 16): a(f"v_mov_b32 v{r}, -1")
    a(f"s_mov_b32 s33, 0x10000000\ns_lshl_b32 s88, s{S_PAIR}, 3\ns_add_u32 s88, s88, s{S_MB8}\ns_mul_i32 s88, s88, 9216\ns_add_u32 s88, s88, {WS_KVP}")
    a(f"s_mul_i32 s89, s{S_PAIR}, 6144\ns_lshl_b32 s47, s{S_MB8}, 10\ns_add_u32 s89, s89, s47\ns_add_u32 s89, s89, {WS_KVF}")
    a(f"s_cmp_ge_u32 s{S_MB8}, 6\ns_cselect_b32 s89, s33, s89\ns_cmp_ge_u32 s{S_C}, 2\ns_cselect_b32 s88, s33, s88\ns_cselect_b32 s89, s33, s89")
    def init0(k):
        if k == 0:
            for r in range(16, 20): a(f"v_mov_b32 v{r}, 0")
            a(f"s_lshl_b32 s47, s2, 11\ns_add_u32 s47, s47, {WS_FLAG}")
            a(f"buffer_store_dwordx4 v[16:19], v4, {W}, s47 offen sc1\nbuffer_store_dwordx4 v[16:19], v4, {W}, s47 offen offset:1024 sc1")
        elif k == 1:
            a(f"buffer_store_dwordx4 v[12:15], v4, {W}, s89 offen sc1")
            a(f"s_mov_b64 exec, 0xff\ns_lshl_b32 s47, s46, 7\ns_add_u32 s47, s47, {WS_FLAG+F_G}")
            a(f"buffer_store_dwordx4 v[12:15], v4, {W}, s47 offen sc1\ns_mov_b64 exec, -1")
        else:
            a(f"buffer_store_dwordx4 v[12:15], v4, {W}, s88 offen sc1\ns_add_u32 s88, s88, 1024")
    issd = lambda: a("buffer_load_dword v23, off, s[92:95], 0 sc1")
    def init3():
        ok = g.lab("rdy")
        a(f"v_cmp_ne_u32 vcc, 1, v23\ns_nop 1\ns_and_b32 s33, vcc_lo, 1\ns_cbranch_scc0 {ok}")
        issd(); poll_check(g, issd, 23, 1, 1)
        a(f"{ok}:\ns_lshr_b32 s47, s2, 2\ns_lshl_b32 s47, s47, 7\ns_and_b32 s33, s2, 3\ns_lshl_b32 s33, s33, 2\ns_add_u32 s47, s47, s33\ns_add_u32 s47, s47, {WS_FLAG+F_RDY}")
        a(flagops(7, 47))
    lz = g.lab("z")
    a(f"s_or_b32 s33, s2, s{HW}\ns_cbranch_scc1 {lz}")
    for r in range(16, 20): a(f"v_mov_b32 v{r}, 0")
    a(f"s_mov_b32 s47, {WS_FLAG+F_RDY}\ns_mov_b32 s33, {WS_FLAG+F_RDY+4096}")
    for k in range(8): a(f"buffer_store_dwordx4 v[16:19], v4, {W}, s{33 if k>>2 else 47} offen offset:{(k&3)*1024} sc1")
    a(f"s_waitcnt vmcnt(0)\ns_mov_b64 exec, 1\nbuffer_store_dword v7, off, s[92:95], 0 sc1\ns_mov_b64 exec, -1\n{lz}:")
    srd(g, 60, 14, 3584 * 1024 * 2)
    srd(g, 64, 8, 1024 * 1024 * 2)
    a(f"s_cmp_lg_u32 s{HW}, 0\ns_cbranch_scc1 L_h_one")
    iss0 = lambda: a(f"s_mov_b32 s47, {WS_FLAG+F_RDY}\nbuffer_load_dwordx4 v[16:19], v8, {W}, s47 offen sc1")
    for t in range(0, 29):
        a("s_barrier")
        if 3 <= t < 14: a(f"s_sleep {g.o['hdel']}"); init0(t - 3)
        if t == 14: issd()
        if t == 16: a("s_waitcnt vmcnt(0)"); init3()
        if t == 22: iss0()
        if t == 24: poll_check(g, iss0, 14, 64, 1, "ne", lambda: a("v_and_b32 v14, v16, v17\nv_and_b32 v15, v18, v19\nv_and_b32 v14, v14, v15"))
        if t == g.o.get('cpf1', 99): a("s_mov_b64 exec, 0xffffffff\nbuffer_load_dword v9, v8, s[96:99], s100 offen\ns_mov_b64 exec, -1")
    bars(2)
    a("v_lshlrev_b32 v13, 3, v0")
    lane_h(g, 11, 12, 52)
    a(f"s_add_u32 s54, s52, {F_H2}")
    a("v_and_b32 v12, 3, v0\nv_lshlrev_b32 v12, 7, v12\nv_bfe_u32 v16, v0, 2, 1\nv_lshl_add_u32 v12, v16, 16, v12\nv_bfe_u32 v16, v0, 3, 1\nv_lshl_add_u32 v12, v16, 18, v12")
    a(f"v_bfe_u32 v16, v0, 4, 2\nv_lshl_add_u32 v12, v16, 11, v12\ns_andn2_b32 s56, s52, 0x1800\ns_add_u32 s56, s56, {F_X + (2<<16)}")
    a(f"s_lshl_b32 s57, s{S_MB8}, 12\ns_add_u32 s57, s57, {WS_FLAG+F_G}")
    a(f"v_lshrrev_b32 v19, 1, v0\nv_and_b32 v16, 1, v0\nv_lshlrev_b32 v16, 4, v16\nv_lshl_add_u32 v19, v19, 7, v16\nv_add_u32 v13, {LDS_G}, v4")
    bars(1)
    a(f"s_cmp_ge_u32 s{S_C}, 2\ns_cbranch_scc1 L_h0q")
    l0, l1 = g.lab("pp"), g.lab("pp")
    iss = lambda r: a(f"buffer_load_dword v{r}, v11, {W}, s52 offen sc1")
    iss(21)
    bars(1)
    a(f"s_mov_b32 s35, {SPIN}\n{l0}:")
    for r in range(2):
        iss(20 + r)
        a(f"s_waitcnt vmcnt(1)\nv_cmp_ne_u32 vcc, 1, v{21-r}\ns_cbranch_vccz {l1}\ns_sleep {g.o.get('psleep', 3)}")
    a(f"s_sub_u32 s35, s35, 1\ns_cbranch_scc0 {l0}\n{l1}:")
    a("s_branch L_h0j\nL_h0q:\ns_barrier\nL_h0j:")
    bars(1)
    def pol(soff, areg): return lambda: a(f"buffer_load_dword v14, v{areg}, {W}, s{soff} offen sc1")
    issg = lambda: a(f"buffer_load_dwordx4 v[24:27], v19, {W}, s57 offen sc1")
    assert g.o['k1'] >= 6
    for n in range(12):
        a("s_barrier")
        if n == g.o.get('cpf2'): a("s_mov_b64 exec, 0xffffffff\nbuffer_load_dword v9, v8, s[96:99], s100 offen\ns_mov_b64 exec, -1")
        if n == 0: pol(52, 11)()
        if n == 3: issg()
        if n == 4:
            poll_check(g, issg, 14, 64, -1, "eq", lambda: a("v_max3_u32 v14, v24, v25, v26\nv_max_u32 v14, v14, v27"))
            a("ds_write_b128 v13, v[24:27]"); pol(54, 11)()
        if n == 5: poll_check(g, pol(54, 11), 14, 64, 1); a("s_waitcnt lgkmcnt(0)")
        q_call(g, n)
        if n == 0: poll_check(g, pol(52, 11), 14, 64, 1)
        if n == g.o.get('fop', 11): pol(56, 12)()
        if n == 11: poll_check(g, pol(56, 12), 14, 64, 1)
    a("s_barrier\ns_barrier\ns_branch L_rx")
    a("L_h_one:")
    tb = sum(x << (4 * k) for k, x in enumerate(ORD))
    a(f"s_mov_b32 s34, 0\ns_lshr_b32 s69, s2, 3\ns_mov_b32 s48, {hex(tb & 0xffffffff)}\ns_mov_b32 s49, {hex(tb >> 32)}")
    a(f"s_lshr_b32 s33, s68, 5\ns_lshr_b32 s90, {hex(g.o.get('wmask', 0x1f0))}, s33")
    if g.o.get('nopf1'): a("s_mov_b32 s68, 0x10000")
    def w2item():
        l, lo = g.lab("pw"), g.lab("pw")
        a(f"s_cmp_ge_u32 s69, 112\ns_cbranch_scc1 {lo}\ns_lshr_b32 s47, s69, 3\ns_lshl_b32 s47, s47, 2\ns_lshr_b64 s[50:51], s[48:49], s47\ns_and_b32 s50, s50, 15")
        a(f"s_mul_i32 s47, s32, 14\ns_add_u32 s47, s47, s50\ns_lshl_b32 s47, s47, 1\ns_add_u32 s47, s47, s87\ns_lshl_b32 s47, s47, 3\ns_and_b32 s50, s69, 7\ns_add_u32 s47, s47, s50\ns_lshl_b32 s47, s47, 13")
        a(f"buffer_load_dword v9, v8, s[60:63], s47 offen\ns_branch {l}")
        a(f"{lo}:\ns_sub_u32 s47, s69, 112\ns_lshl_b32 s47, s47, 3\ns_add_u32 s47, s47, s{S_XCD}\ns_lshl_b32 s47, s47, 13\nbuffer_load_dword v9, v8, s[64:67], s47 offen\n{l}:\ns_add_u32 s69, s69, 32")
    l0, l1, l2, lx, lq = [g.lab("pf") for _ in range(5)]
    if g.o.get('skip0'): a(f"s_branch {l1}")
    a(f"{l0}:\ns_add_u32 s47, s34, {g.o['lead']}\ns_mul_i32 s47, s47, 17\ns_lshr_b32 s47, s47, 1\ns_min_u32 s47, s47, {16*17}\ns_cmp_ge_u32 s68, s47\ns_cbranch_scc1 {l1}")
    pf_item(g)
    a("s_add_u32 s68, s68, 32")
    a(f"{l2}:\ns_lshr_b32 s90, s90, 1\ns_bitcmp1_b32 s90, 0\ns_cbranch_scc0 {l0}")
    w2item()
    a(f"s_branch {l0}\n{l1}:")
    if g.o.get('wrate'):
        l3 = g.lab("pf")
        a(f"s_sub_u32 s47, s34, {g.o.get('w0', 2)}\ns_cbranch_scc1 {l3}\ns_mul_i32 s47, s47, {g.o['wrate']}\ns_min_u32 s47, s47, 144\ns_cmp_ge_u32 s69, s47\ns_cbranch_scc1 {l3}")
        w2item()
        a(f"{l3}:")
    a(f"s_barrier\ns_sleep {g.o['hdel']}\ns_add_u32 s34, s34, 1\ns_cmp_lt_u32 s34, 27\ns_cbranch_scc1 {l0}")
    srd(g, 52, 16, 2048)
    gl = ["s_lshl_b32 s47, s46, 14\n" + "\n".join(f"buffer_load_dwordx4 {vr(24+4*hf)}, v4, s[52:55], 0 offen offset:{hf*1024}" for hf in range(2))]
    for r in range(8):
        gl.append("\n".join(f"buffer_load_dwordx4 {vr(40+8*r+4*hf)}, v4, s[28:31], s47 offen offset:{(r&1)*2048+hf*1024}" for hf in range(2)) + ("\ns_add_u32 s47, s47, 4096" if r & 1 else ""))
    for t in range(26, 31):
        if t > 26: a("s_barrier")
        n = g.o['gsch'][t - 26]
        if n and t in (27, 28): a(f"s_sleep {g.o['hdel']}")
        for x in gl[:n]: a(x)
        gl = gl[n:]
    assert not gl
    for r in range(32, 40): a(f"v_mov_b32 v{r}, 0")
    bars(2)
    a("s_waitcnt vmcnt(0)")
    for k in range(8):
        for r in range(8): a(f"v_dot2_f32_bf16 v{32+r}, v{40+8*r+k}, v{24+k}, v{32+r}")
    a("s_barrier\ns_barrier")
    for pat in ["quad_perm:[1,0,3,2] row_mask:0xf", "quad_perm:[2,3,0,1] row_mask:0xf", "row_half_mirror row_mask:0xf", "row_mirror row_mask:0xf",
                "row_bcast:15 row_mask:0xa", "row_bcast:31 row_mask:0xc"]:
        for r in range(32, 40): a(f"v_add_f32_dpp v{r}, v{r}, v{r} {pat} bank_mask:0xf")
    for r in range(8): a(f"v_readlane_b32 s{52+r}, v{32+r}, 63")
    a("s_nop 1")
    for r in range(8): a(f"v_writelane_b32 v16, s{52+r}, {r}")
    a("s_nop 0\nv_min_f32 v16, 0x41f00000, v16\nv_mul_f32 v16, 0x3fb8aa3b, v16\nv_exp_f32 v16, v16")
    a(f"s_lshl_b32 s47, s46, 7\ns_add_u32 s47, s47, {WS_FLAG+F_G}\ns_mov_b64 exec, 0xff")
    a(f"buffer_store_dword v16, v5, {W}, s47 offen sc1\ns_mov_b64 exec, -1")
    a(f"s_mov_b32 s34, 1\ns_cmp_ge_u32 s{S_C}, 2\ns_cbranch_scc1 L_h1_q\ns_cmp_ge_u32 s{S_MB8}, 6\ns_cbranch_scc1 L_h1_end")
    H1 = g.o['h1']
    def retry(issue, mx, first, last, work=False):
        l0, l1 = g.lab("try"), g.lab("try")
        for n in range(first):
            if n: a("s_barrier")
            if work: q_call(g, n)
        if g.o.get('rsame', 1) & (1 if work else 2):
            l2 = g.lab("try")
            a(f"s_setprio 2\ns_mov_b32 s34, {first}\n{l0}:")
            issue(); a("s_waitcnt vmcnt(0)"); mx()
            a(f"v_cmp_eq_u32 vcc, -1, v14\ns_cbranch_vccz {l1}")
            a(f"s_cmp_ge_u32 s34, {last}\ns_cbranch_scc1 {l2}\ns_barrier\ns_add_u32 s34, s34, 1\ns_branch {l0}\n{l2}:")
        else:
            a(f"s_setprio 2\ns_mov_b32 s34, {first}\n{l0}:")
            if g.o.get('hsl'): a(f"s_sleep {g.o['hsl']}")
            issue()
            a("s_barrier\ns_add_u32 s34, s34, 1\ns_waitcnt vmcnt(0)")
            mx()
            a(f"v_cmp_eq_u32 vcc, -1, v14\ns_nop 1\ns_cmp_lg_u64 vcc, 0\ns_cbranch_scc0 {l1}")
            a(f"s_cmp_le_u32 s34, {last-1}\ns_cbranch_scc1 {l0}")
        issue(); poll_check(g, issue, 14, 64, -1, "eq", mx)
        a(f"{l1}:")
    def upto(n):
        l0, l1 = g.lab("up"), g.lab("up")
        a(f"{l0}:\ns_cmp_ge_u32 s34, {n}\ns_cbranch_scc1 {l1}\ns_barrier\ns_add_u32 s34, s34, 1\ns_branch {l0}\n{l1}:")
    def vmax(lo, hi):
        a(f"v_max_u32 v14, v{lo}, v{lo+1}")
        for r in range(lo + 2, hi, 2): a(f"v_max3_u32 v14, v14, v{r}, v{r+1}")
    a(f"s_cmp_ge_u32 s{S_MB8}, 3\ns_cselect_b32 s55, 1, 0\ns_sub_u32 s56, s{S_MB8}, s55\ns_lshl_b32 s56, s56, 11\nv_add_u32 v10, s56, v4\nv_add_u32 v11, 1024, v10")
    a(f"s_cmp_eq_u32 s{S_MB8}, 2\ns_cbranch_scc1 L_h1_z\ns_cmp_eq_u32 s{S_MB8}, 5\ns_cbranch_scc0 L_h1_nz\nL_h1_z:")
    a("s_lshl_b32 s55, s55, 5\ns_add_u32 s55, s55, 8192\nv_and_b32 v10, 0x300, v4\nv_add_u32 v10, s55, v10\nv_add_u32 v11, 16, v10\nL_h1_nz:")
    def kvp_issue():
        a(f"s_mul_i32 s47, s{S_PAIR}, {8*9216}\ns_add_u32 s47, s47, {WS_KVP}")
        for m in range(8):
            for dt in range(2): a(f"buffer_load_dwordx4 {vr(32+(m*2+dt)*4)}, v{10+dt}, {W}, s47 offen sc1")
            if m < 7: a("s_add_u32 s47, s47, 9216")
    retry(kvp_issue, lambda: vmax(32, 96), H1 + 1, 9)
    g.stamp(5)
    if g.o['prof']: a("s_mov_b32 s88, s34")
    for st in (32, 16, 8):
        for r in range(st): a(f"v_add_f32 v{32+r}, v{32+r}, v{32+st+r}")
    for r in range(4): a(f"v_cvt_pk_bf16_f32 v{32+r}, v{32+2*r}, v{33+2*r}")
    a(f"s_mul_i32 s47, s{S_PAIR}, 6144\ns_lshl_b32 s46, s{S_MB8}, 10\ns_add_u32 s47, s47, s46\ns_add_u32 s47, s47, {WS_KVF}")
    a(f"buffer_store_dwordx4 v[32:35], v4, {W}, s47 offen sc1")
    a("L_h1_end:")
    upto(14)
    a("s_branch L_rx")
    a("L_h1_q:")
    K1 = g.o['k1']
    a(f"s_mul_i32 s55, s{S_PAIR}, 6144\ns_add_u32 s55, s55, {WS_KVF}\ns_add_u32 s56, s55, 4096\nv_add_u32 v12, {P2END}, v4")
    def kvf_issue():
        for f in range(6): a(f"buffer_load_dwordx4 {vr(32+4*f)}, v4, {W}, s{55+(f>>2)} offen offset:{(f&3)*1024} sc1")
    retry(kvf_issue, lambda: vmax(32, 56), g.o['k0'], K1, True)
    g.stamp(5)
    if g.o['prof']: a("s_mov_b32 s88, s34")
    for f in range(6): a(f"ds_write_b128 v12, {vr(32+4*f)} offset:{f*1024}")
    upto(K1)
    a("s_waitcnt lgkmcnt(0)")
    for n in range(K1, K1 + g.o['noc'] + 1): a("s_barrier"); q_call(g, n)
    a(f"s_mov_b32 s34, {K1+g.o['noc']+1}\ns_branch L_h1_end")
    q_chunks(g)


HEADER = open("gated_mix__linear_attn_block__dense_activation_relu__prompt.s.ref").read().split("; Override")[0] \
    if __name__ == "__main__" else ""


def build(**opt):
    g = G(**opt)
    VM.skip = g.o.get('skip', ())
    HF[0] = g.o.get('hflag', 'sc1'); HF[1] = g.o.get('lflag', 'sc1')
    g.L.append(f"; @launch grid=(256,1,1) block=(512,1,1) lds={LDS_TOTAL}")
    g.a(f'.amdgcn_target "amdgcn-amd-amdhsa--gfx950"\n.text\n.globl {NAME}\n.p2align 8\n.type {NAME},@function\n{NAME}:')
    prologue(g)
    loader(g)
    helper(g)
    compute(g)
    g.a("L_exit:\ns_endpgm\nL_codeend:")
    g.L.append(f""".section .rodata,"a"
.p2align 6
.amdhsa_kernel {NAME}
  .amdhsa_next_free_vgpr 256
  .amdhsa_next_free_sgpr 102
  .amdhsa_accum_offset 256
  .amdhsa_group_segment_fixed_size 0
  .amdhsa_kernarg_size 80
  .amdhsa_user_sgpr_count 2
  .amdhsa_user_sgpr_kernarg_segment_ptr 1
  .amdhsa_system_sgpr_workgroup_id_x 1
.end_amdhsa_kernel""")
    return g.text()


if __name__ == "__main__":
    out = sys.argv[1]
    opt = {}
    for kv in sys.argv[2:]:
        k, v = kv.split("=")
        opt[k] = eval(v)
    open(out, "w").write(HEADER + build(**opt))
```

```python
import sys

NAME = "gated_mix__linear_attn_block__dense_activation_relu__prompt_kernel"

WS_HO = 0
WS_PART = 0x3000000
WS_KVP = 0x2400000
WS_KVF = 0x2580000
WS_FLAG = 0x2600000
F_H1, F_H2, F_X, F_P = 0, 512, 1024, 1536
F_G = 0x80000
F_RDY = 0x90000
WS_PROF = 0x2700000
WS_W2C = 0x2800000
ORD1 = [0, 1, 2, 4, 7, 8, 9, 11]
ORD2 = [3, 5, 10, 12, 6, 13]

UNIT = 4224; BLK = 1056
XSLOT = 8 * UNIT
XRING = 3 * XSLOT
WSLOT = 3 * UNIT + 1024
WBASE = XRING
LDS_G = 162816
P2SLOT = 4 * UNIT
NSL = 8
P2END = NSL * P2SLOT
LDS_TOTAL = 163840

SPIN = 100000


class G:
    def __init__(self, **opt):
        self.L = []
        self.o = dict(prof=False, krot=False, pfw=True, pf1=True, lead=6, pfs0=0, hdel=0, pfw0=2, pfwr=54, early2=0, late=(4, 4, 4), sp0=22, spn=2, swin=4, gsch=(5, 4, 0, 0, 0), fpos=50, s1sp=12, tdens=2, st2n=0, st2sp=14, ju=5, pch=(1, 2, 2, 2, 1), pf0=0, cbx=2, aspread=0, wpace=0, kdens=4, hsl=0, gsl=0, noc=2, qprio=2, k1=7, k0=6, rsp=6, h1=1, xf=(10, 14, 16), r1=20, dld=(11, 12, 13, 14, 15, 16, 17, 18), psleep=2, cpf1=24, cpf2=99, odens=3, b16=True, ddens=3, psp=30, d1=7, d2=10, d2b=12, d3=16)
        self.o.update(opt)
        self.uid = 0
        self.info = {}
        self.st = {'since': 0}

    def a(self, s):
        for ln in s.split("\n"):
            ln = ln.strip()
            if ln == "s_sleep 0": continue
            if ln:
                self.L.append(ln if ln.endswith(":") or ln.startswith(".") else "    " + ln)

    def lab(self, p):
        self.uid += 1
        return f"L_{p}_{self.uid}"

    def stamp(self, n):
        if self.o['prof'] == 'min' and n not in (0, 8): return
        if self.o['prof']:
            self.a(f"{'s_memtime' if self.o['prof']=='cyc' else 's_memrealtime'} s[{70+2*n}:{71+2*n}]")

    def text(self):
        return "\n".join(self.L) + "\n"


class VM:
    def __init__(self, a, init=()):
        self.a = a; self.q = list(init)
    skip = ()
    def op(self, text, tag):
        if (tag[0] if isinstance(tag, tuple) else tag) in VM.skip: return
        self.a(text); self.q.append(tag)
        assert len(self.q) <= 63, "vmcnt overflow"
    def mark(self, tag, n):
        self.q += [tag] * n
        assert len(self.q) <= 63, "vmcnt overflow"
    def wait(self, *tags):
        k = max([i for i, t in enumerate(self.q) if t in tags], default=-1)
        if k >= 0:
            self.a(f"s_waitcnt vmcnt({len(self.q)-1-k})"); self.q = self.q[k + 1:]


def vr(b, n=4):
    return f"v[{b}:{b+n-1}]"


def mfma(d, a, b, c=None):
    return f"v_mfma_f32_16x16x32_bf16 {vr(d)}, {vr(a)}, {vr(b)}, {vr(d) if c is None else c}"


S_WAVE, S_MB8, S_QD, S_C, S_PAIR, S_RH, S_CB, S_KH, S_PHI, S_XCD = 3, 36, 37, 38, 39, 40, 41, 42, 43, 44
SRD_WS = 20


def srd(g, d, base, nbytes):
    g.a(f"s_mov_b32 s{d}, s{base}\ns_mov_b32 s{d+1}, s{base+1}\ns_mov_b32 s{d+2}, {hex(nbytes)}\ns_mov_b32 s{d+3}, 0x20000")


def prof_dump(g, wave, row):
    if not g.o['prof'] or g.o.get('probe') is not None or (row and (g.o['prof'] == 'min' or g.o.get('trace'))): return
    a = g.a
    l = g.lab("pd")
    a(f"s_waitcnt lgkmcnt(0)\ns_cmp_lg_u32 s{S_WAVE}, {wave}\ns_cbranch_scc1 {l}")
    a(f"s_lshl_b32 s33, s2, 6\ns_add_u32 s33, s33, {WS_PROF + row*16384}\nv_mov_b32 v5, 0")
    for n in range(16):
        a(f"v_mov_b32 v6, s{70+2*n}\nbuffer_store_dword v6, v5, s[{SRD_WS}:{SRD_WS+3}], s33 offen offset:{4*n}\ns_nop 1")
    a(f"{l}:")


def prologue(g):
    a = g.a
    a("s_cmp_ge_u32 s2, 256\ns_cbranch_scc1 L_exit")
    if g.o['prof']:
        for n in range(70, 102): a(f"s_mov_b32 s{n}, 0")
    g.stamp(0)
    a("s_load_dwordx16 s[4:19], s[0:1], 0")
    a("s_load_dwordx4 s[24:27], s[0:1], 64")
    a("v_lshrrev_b32 v1, 6, v0\nv_and_b32 v0, 63, v0")
    a(f"s_and_b32 s{S_XCD}, s2, 7\ns_lshr_b32 s30, s2, 3")
    a(f"v_readfirstlane_b32 s{S_WAVE}, v1")
    a(f"s_lshr_b32 s31, s{S_XCD}, 2\ns_and_b32 s32, s{S_XCD}, 3")
    a(f"s_and_b32 s33, s30, 3\ns_lshl_b32 s{S_MB8}, s31, 2\ns_add_u32 s{S_MB8}, s{S_MB8}, s33")
    a("s_lshr_b32 s33, s30, 2")
    a(f"s_lshr_b32 s34, s33, 2\ns_lshl_b32 s{S_QD}, s32, 1\ns_add_u32 s{S_QD}, s{S_QD}, s34")
    a(f"s_and_b32 s{S_C}, s33, 3")
    a(f"s_and_b32 s34, s33, 1\ns_lshl_b32 s{S_PAIR}, s{S_QD}, 1\ns_add_u32 s{S_PAIR}, s{S_PAIR}, s34")
    a(f"s_and_b32 s{S_RH}, s32, 1")
    a(f"s_xor_b32 s{S_CB}, s33, {g.o['cbx']}")
    a(f"s_lshr_b32 s{S_KH}, s32, 1")
    if g.o['krot']:
        a(f"s_lshl_b32 s34, s31, 1\ns_add_u32 s34, s34, s32\ns_lshl_b32 s34, s34, 2\ns_and_b32 s{S_PHI}, s34, 15")
    else:
        a(f"s_mov_b32 s{S_PHI}, 0")
    a(f"s_cmp_lt_u32 s{S_WAVE}, 4\ns_cbranch_scc1 L_compute")
    a(f"s_cmp_lt_u32 s{S_WAVE}, 6\ns_cbranch_scc1 L_loader")
    a("s_mov_b32 s68, s30\ns_mov_b32 s87, s31")
    if g.o.get('pf0'):
        a(f"s_cmp_eq_u32 s{S_WAVE}, 6\ns_cbranch_scc1 L_helper\ns_add_u32 s68, s68, {g.o.get('pf0off', 0)}")
        pf_item(g, True)
        a("s_add_u32 s68, s68, 32")
    a("s_branch L_helper\nL_loader:")


W = f"s[{SRD_WS}:{SRD_WS+3}]"


def lane_goodcol(g, d, t):
    g.a(f"v_lshrrev_b32 v{d}, 4, v0\nv_and_b32 v{t}, 15, v0\nv_lshlrev_b32 v{t}, 4, v{t}\nv_lshl_add_u32 v{d}, v{d}, 9, v{t}")


def lane_h(g, d, t, so):
    g.a(f"v_bfe_u32 v{d}, v0, 2, 3\nv_and_b32 v{t}, 3, v0\nv_lshlrev_b32 v{t}, 7, v{t}\nv_lshl_add_u32 v{d}, v{d}, 16, v{t}")
    g.a(f"s_and_b32 s{so}, s2, 31\ns_lshl_b32 s{so}, s{so}, 11\ns_add_u32 s{so}, s{so}, {WS_FLAG}")


def poll_check(g, issue, reg, nl, val, cmp="ne", pre=None):
    a = g.a
    l0, l1 = g.lab("poll"), g.lab("pollok")
    a(f"s_mov_b32 s35, {SPIN}\n{l0}:\ns_waitcnt vmcnt(0)")
    if pre: pre()
    a(f"v_cmp_{cmp}_u32 vcc, {val}, v{reg}\ns_nop 1")
    if nl == 64: a("s_cmp_lg_u64 vcc, 0")
    else: a(f"s_and_b32 s33, vcc_lo, {hex((1<<nl)-1)}")
    a(f"s_cbranch_scc0 {l1}")
    a(f"s_sub_u32 s35, s35, 1\ns_cbranch_scc1 {l1}")
    if g.o.get('psleep'): a(f"s_sleep {g.o['psleep']}")
    issue()
    a(f"s_branch {l0}\n{l1}:")


def setflags(g, one, *soffs):
    g.a("s_mov_b64 exec, 1")
    for so in soffs: g.a(f"buffer_store_dword v{one}, off, {W}, s{so} sc1")
    g.a("s_mov_b64 exec, -1")


VX, VW, VQ = 1, 2, 3
WB = lambda n: 8 + 4 * (n % 4)
XLO = lambda b, i: 24 + 8 * b + 4 * i
XHI = lambda i: 40 + 4 * (i - 2)
AC = lambda j, i: 48 + (j * 4 + i) * 4


PERM = {True: [8, 9, 10, 11, 0, 1, 2, 3, 12, 4, 5, 6, 7], False: [4, 5, 6, 7, 8, 9, 10, 11, 12, 0, 1, 2, 3]}


def p1_wread(t, j, n):
    slot = (t % 4) * WSLOT
    if j < 12:
        return [f"ds_read_b64_tr_b16 v[{WB(n)+2*w}:{WB(n)+2*w+1}], v{VW} offset:{slot + (j//4)*UNIT + (j%4)*32 + w*256}" for w in range(2)]
    return [f"ds_read_b64_tr_b16 v[{WB(n)+2*w}:{WB(n)+2*w+1}], v{VQ} offset:{slot + w*256}" for w in range(2)]


def p1_xreg(par, i):
    return XLO(par % 2, i) if i < 2 else XHI(i)


def p1_xread(t, i, par, vx=VX):
    return f"ds_read_b128 {vr(p1_xreg(par,i))}, v{vx} offset:{(i>>1)*UNIT + (i&1)*512 + (t%2)*64}"


def pass_order(nt):
    s = [(0, 0), (0, 1), (1, 1), (1, 0), (1, 2), (1, 3), (0, 3), (0, 2)]
    for j in range(2, nt - 2):
        s += [(j, i) for i in ([2, 3, 0, 1] if j % 2 == 0 else [1, 0, 3, 2])]
    u, v = nt - 2, nt - 1
    return s + [(u, 2), (u, 3), (v, 3), (v, 2), (v, 1), (v, 0), (u, 0), (u, 1)]


def p1_mfma(kv, tile, i, wreg, xreg):
    return mfma(AC(tile, i), xreg, wreg) if (kv and tile < 8) else mfma(AC(tile, i), wreg, xreg)


Q0 = [('W', 0, 0), ('W', 0, 0), ('X', 0, 0), ('X', 0, 1), ('W', 0, 1), ('W', 0, 1), ('X', 0, 2), ('X', 0, 3)]


def p1_loop(g, kv):
    a = g.a
    P = PERM[kv]
    L = g.lab("p1")
    seq = []
    for t in range(4):
        s = pass_order(13)
        post = [[] for _ in s]
        rd = lambda j, tt=t: [('W', tt, j, x) for x in p1_wread(tt, P[j], 13 * tt + j)]
        r = rd(2); post[0].append(r[0]); post[1].append(r[1])
        r = rd(3); post[2].append(r[0]); post[3].append(r[1])
        r = rd(4); post[8].append(r[0]); post[9].append(r[1])
        r = rd(5); post[10].append(r[0]); post[11].append(r[1])
        for j in range(3, 10):
            base = 8 + (j - 2) * 4
            r = rd(j + 3); post[base].append(r[0]); post[base + 1].append(r[1])
        b10 = 40
        if t % 2 == 1:
            post[b10 - 2].append(('S', f"s_add_u32 s46, s46, {XSLOT}"))
            post[b10 - 2].append(('S', f"s_cmp_eq_u32 s46, {XRING}"))
            post[b10 - 1].append(('S', f"s_cselect_b32 s47, s48, s49"))
            post[b10 - 1].append(('S', f"s_cselect_b32 s46, 0, s46"))
            post[b10].append(('S', f"v_add_u32 v{VX}, s47, v{VX}"))
        post[b10 + 2].append(('BAR',))
        tn = t + 1
        r0, r1 = rd(0, tn), rd(1, tn)
        post[b10 + 3] += [r0[0], r0[1]]
        post[44] += [('X', tn, 0, p1_xread(tn, 0, tn)), ('X', tn, 1, p1_xread(tn, 1, tn))]
        post[45] += [r1[0]]
        post[46] += [r1[1]]
        post[47] += [('X', tn, 2, p1_xread(tn, 2, tn))]
        post[48] += [('X', tn, 3, p1_xread(tn, 3, tn))]
        if t == 3:
            post[49].append(('S', "s_sub_u32 s45, s45, 1"))
            post[50].append(('S', "s_cmp_lg_u32 s45, 0"))
        for (j, i), p in zip(s, post):
            seq.append(((t, j, i), p))
    for x in p1_wread(0, P[0], 0): a(x)
    a(p1_xread(0, 0, 0)); a(p1_xread(0, 1, 0))
    for x in p1_wread(0, P[1], 1): a(x)
    a(p1_xread(0, 2, 0)); a(p1_xread(0, 3, 0))
    q = list(Q0)
    a(f".p2align 6\n{L}:")
    for (t, j, i), p in seq:
        need = [k for k, e in enumerate(q) if e == ('W', t, j) or e == ('X', t, i)]
        if need:
            k = max(need)
            a(f"s_waitcnt lgkmcnt({len(q)-1-k})")
            q = q[k + 1:]
        a(p1_mfma(kv, P[j], i, WB(13 * t + j), p1_xreg(t, i)))
        for e in p:
            if e[0] == 'S':
                a(e[1])
            elif e[0] == 'BAR':
                a("s_waitcnt lgkmcnt(0)\ns_barrier"); q = []
            else:
                a(e[3]); q.append((e[0], e[1] % 4, e[2]))
    assert q == Q0
    a(f"s_cbranch_scc1 {L}")


def p1_tail(g, kv, extra, extra2, flag):
    a = g.a
    P = PERM[kv]
    a(f"v_add_u32 v5, {(-2*XSLOT) & 0xffffffff}, v{VX}")
    passes = [(t, grp) for grp in (P[:4], P[4:9], P[9:]) for t in range(28, 32)]
    M = []; start = []; n0 = 0; last = {}
    reads = []
    for p, (t, tiles) in enumerate(passes):
        start.append(len(M))
        o = pass_order(len(tiles))
        base = len(M)
        for j, tile in enumerate(tiles):
            first = base + min(k for k, e in enumerate(o) if e[0] == j)
            if not (p == 0 and j < 2):
                for x in p1_wread(t, tile, n0 + j):
                    reads.append(dict(key=('W', p, j), text=x, after=last.get(WB(n0 + j), -1), first=first, t=t))
            last[WB(n0 + j)] = base + max(k for k, e in enumerate(o) if e[0] == j)
        for i in range(4):
            first = base + min(k for k, e in enumerate(o) if e[1] == i)
            if p > 0:
                reads.append(dict(key=('X', p, i), text=p1_xread(t, i, p, VX if t < 30 else 5), after=max(last.get(p1_xreg(p, i), -1), first - 14), first=first, t=t))
            last[p1_xreg(p, i)] = base + max(k for k, e in enumerate(o) if e[1] == i)
        for (j, i) in o:
            M.append((p, j, i, p1_mfma(kv, tiles[j], i, WB(n0 + j), p1_xreg(p, i))))
        n0 += len(tiles)
    V1, V2 = start[1] + 3, start[2] + 5
    R1, R2 = start[10] - 3, len(M) - 5
    for r in reads:
        if r['t'] == 30: r['after'] = max(r['after'], V1)
        if r['t'] == 31: r['after'] = max(r['after'], V2)
    reads.sort(key=lambda r: r['first'])
    q = list(Q0); since = 0; nst2 = 0; held = []; nexts = 0; first = True
    dens = g.o.get('tdens', 3)
    def wait(pred):
        nonlocal q
        need = [k for k, e in enumerate(q) if pred(e)]
        if need:
            a(f"s_waitcnt lgkmcnt({len(q)-1-max(need)})"); q = q[max(need) + 1:]
            return 1
        return 0
    for k, (p, j, i, txt) in enumerate(M):
        assert not [r for r in reads if r['first'] <= k], "read scheduled too late"
        w = wait(lambda e: e == ('W', p, j) or e == ('X', p, i))
        a(txt); since += 1 + w
        used = 0
        if k in (V1, V2): a("s_barrier"); used += 1
        if k in (R1, R2):
            lim = 9 if k == R1 else 11
            assert not [r for r in reads if r['key'][1] <= lim]
            used += 1 + wait(lambda e: e[1] <= lim); a("s_barrier")
        nr = 0
        while used < 2:
            c = [r for r in reads if r['after'] <= k]
            if not c or (nr and c[0]['first'] - k > 9): break
            a(c[0]['text']); q.append(c[0]['key']); reads.remove(c[0]); used += 1; nr += 1
        since += used
        if held and k >= nexts:
            a(held.pop(0)); used += 2; nexts = k + g.o['s1sp']; nst2 = 0
        if k == start[8] + g.o.get('fpos', 10):
            assert not held
            a(f"s_waitcnt vmcnt({nst2})\n" + flag); used += 2
        if k == start[8] + 3:
            assert not extra
            extra = extra2; dens = g.o.get('tdens2', 3); first = False
        if k >= start[4] + 3:
            while used < dens and extra:
                if extra[0] is None: break
                x = extra.pop(0)
                if first and x.startswith("s_add_u32 s56"): sadd = x; continue
                if first and x.startswith("buffer_store"): held.append(sadd + "\n" + x); continue
                a(x); used += 2 if x.startswith("v_exp") else 1
                if x.startswith("buffer_store"): nst2 += 1
    return extra


def h_cvt(d, a0, a1):
    src = [a0, a0 + 2] + ([a1, a1 + 2] if a1 is not None else [])
    return [f"v_cvt_pk_bf16_f32 v{d+r}, v{x}, v{x+1}" for r, x in enumerate(src)] + [f"v_pk_max_i16 v{d+r}, v{d+r}, 0" for r in range(len(src))]


HF = ['sc1', 'sc1']
def h_line_store(j0, soff):
    o = []
    for i in (2, 3, 0, 1):
        o.append(f"s_add_u32 s56, s{soff}, {4096*i}")
        for p in range(2):
            d = AC(j0 + 2 * p, i)
            o += h_cvt(d, d, AC(j0 + 2 * p + 1, i))
            o.append(f"buffer_store_dwordx4 {vr(d)}, v7, {W}, s56 offen offset:{p*2048} {HF[0]}")
    return o


def phi_regs(regs, tmp, pk=False):
    if pk:
        o = [f"v_pk_mul_f32 v[{tmp+k}:{tmp+k+1}], v[{regs[k]}:{regs[k]+1}], s[50:51] op_sel_hi:[1,0]" for k in range(0, 8, 2)]
        for k, r in enumerate(regs): o += [f"v_exp_f32 v{tmp+k}, v{tmp+k} clamp", f"v_max_f32 v{r}, s51, v{r}"]
        return o + [f"v_pk_add_f32 v[{regs[k]}:{regs[k]+1}], v[{regs[k]}:{regs[k]+1}], v[{tmp+k}:{tmp+k+1}]" for k in range(0, 8, 2)]
    o = [f"v_mul_f32 v{tmp+k}, s50, v{r}" for k, r in enumerate(regs)]
    for k, r in enumerate(regs): o += [f"v_exp_f32 v{tmp+k}, v{tmp+k} clamp", f"v_max_f32 v{r}, s51, v{r}"]
    return o + [f"v_add_f32 v{r}, v{r}, v{tmp+k}" for k, r in enumerate(regs)]


def pack8(d, e):
    return [f"v_cvt_pk_bf16_f32 v{d}, v{d}, v{d+1}", f"v_cvt_pk_bf16_f32 v{d+1}, v{d+2}, v{d+3}",
            f"v_cvt_pk_bf16_f32 v{d+2}, v{e}, v{e+1}", f"v_cvt_pk_bf16_f32 v{d+3}, v{e+2}, v{e+3}"]


def flagops(one, *soffs):
    return "s_mov_b64 exec, 1\n" + "".join(f"buffer_store_dword v{one}, off, {W}, s{so} sc1\n" for so in soffs) + "s_mov_b64 exec, -1"


VA0, VW2, VA1, VWD = 1, 2, 3, 5
ORD = ORD1 + ORD2
AB = lambda u, i: (24, 112, 96, 72)[u % 4] + 4 * i
ACC = lambda j, i: 128 + (j * 4 + i) * 4
JORD = [4, 5, 6, 7, 0, 1, 2, 3]
NS = 12
ND = 8
ADP = [72, 80, ACC(5, 2), ACC(7, 2), ACC(4, 2), ACC(6, 2), ACC(1, 2), ACC(3, 2), ACC(0, 2), ACC(2, 2), 8, 16, 24, 32, 112, 120]
WD = lambda k: 40 + 4 * k
PQ = lambda i, h: AC(2 * h, i)
PP = lambda p, f: ((96, 104), (ACC(4, 0), ACC(6, 0)), (ACC(5, 0), ACC(7, 0)))[p - 1][f >> 1] + 4 * (f & 1)
VFL, VPO, GG, VOUT, SEL0 = 2, 3, 94, 4, 88
slot2 = lambda m: ((m + 2) % NSL) * P2SLOT


def ord_table(g, lo, tmp=None):
    pk = lambda o: sum(x << (4 * k) for k, x in enumerate(o))
    g.a(f"s_mov_b32 s{lo}, {hex(pk(ORD) & 0xffffffff)}\ns_mov_b32 s{lo+1}, {hex(pk(ORD) >> 32)}")
    for t8, own in {1: (1,), 2: (2, 3), 3: (4, 5), 4: (7,), 5: (8,), 6: (9, 10), 7: (11, 12)}.items():
        o = list(own) + [x for x in ORD if x not in own]
        g.a(f"s_cmp_eq_u32 s{S_CB}, {t8 ^ g.o['cbx']}\ns_cselect_b32 s{lo}, {hex(pk(o) & 0xffffffff)}, s{lo}\ns_cselect_b32 s{lo+1}, {hex(pk(o) >> 32)}, s{lo+1}")


def line_ops(n):
    return [f"s_bfe_u32 s54, s{4+n//8}, {hex((4<<16) | (4*(n%8)))}", "s_lshl_b32 s54, s54, 19", "s_add_u32 s54, s54, s46", "s_add_u32 s53, s54, 4096"]


def c_wread(n):
    u, j = n // 8, JORD[n % 8]
    return [(('W', n), f"ds_read_b64_tr_b16 v[{WB(n)+2*w}:{WB(n)+2*w+1}], v{VW2} offset:{((j>>2)*2+(u&1))*UNIT + (j&3)*32 + w*256}") for w in range(2)]


def c_loads(u, vm):
    o = []
    if u % 2 == 0: o += line_ops(u // 2)
    for i in range(4):
        o.append((f"buffer_load_dwordx4 {vr(AB(u,i))}, v{VA1 if i>>1 else VA0}, {W}, s{53 if i&1 else 54} offen offset:{(u&1)*2048} {HF[1]}", vm, ('A', u)))
    return o


def u_base(v):
    return slot2(NS + v % 4) + (2 * UNIT if v % 8 < 4 else 0) if v < 16 else slot2(16 + (v - 16) // 2) + (v & 1) * 2 * UNIT


def u_reads(v):
    return [(('U', v, k >> 1), f"ds_read_b64_tr_b16 v[{WD(k)+2*w}:{WD(k)+2*w+1}], v{VWD} offset:{(k>>2)*UNIT + (k&3)*32 + w*256}") for k in range(8) for w in range(2)]


def u_areg(v, kk, mi):
    if v >= 16: return ADP[2 * (v - 16) + kk] + 4 * mi
    return ((24, 112, 96, 72) if v < 8 else (8, 24, 112, 96))[v % 4] + 8 * kk + 4 * mi


def u_loads(v, vm):
    if v < 16:
        sb, ln = (46, ORD[NS + v % 4]) if v % 4 < 2 else (45, 56 + ND + v % 2)
        o = [f"s_add_u32 s54, s{sb}, {ln<<19}", f"s_add_u32 s53, s{sb}, {(ln<<19)+4096}"]
    else: o = [f"s_mov_b32 s54, {(40+v)<<19}", f"s_mov_b32 s53, {((40+v)<<19)+4096}"]
    for kk in range(2):
        for mi in range(2): o.append((f"buffer_load_dwordx4 {vr(u_areg(v,kk,mi))}, v{VA1 if v < 8 else VA0}, {W}, s{54-mi} offen offset:{kk*2048} {HF[1] if v < 16 and v % 4 < 2 else 'sc1'}", vm, ('B', v, kk)))
    return o


class Stage:
    def __init__(self, g, q, extra, dens):
        self.g = g; self.q = list(q); self.extra = extra; self.dens = dens; self.carry = 0
    def a(self, x):
        self.g.a(x); self.g.st['since'] += 1
    def wait(self, key):
        need = [k for k, e in enumerate(self.q) if key is None or e == key]
        if need:
            n = min(14, len(self.q) - 1 - max(need))
            self.a(f"s_waitcnt lgkmcnt({n})"); self.q = self.q[len(self.q) - n:]
    def read(self, r):
        self.a(r[1]); self.q.append(r[0])
    def op(self, x):
        if isinstance(x, tuple): x[1].op(x[0], x[2]); self.g.st['since'] += 1
        else: self.a(x)
    def fill(self, used):
        ex, st = self.extra, self.g.st
        while used < self.dens and ex:
            if isinstance(ex[0], int):
                if st['since'] >= ex[0]: ex.pop(0); continue
                return
            if ex[0] == 'XW':
                if 'x' in self.q: return
                ex.pop(0); continue
            x = ex.pop(0)
            if callable(x): x(); used += 2; st['since'] = 0; continue
            if isinstance(x, tuple): x[1].op(x[0], x[2]); x = x[0]
            else: self.g.a(x)
            if x.startswith("ds_"): self.q.append('x')
            st['since'] = 0
            used = 0 if x.startswith("v_mfma") else used + (2 if x.startswith(("v_exp", "v_rcp")) else 1)


def c_slab(g, u, vm, q, extra=None, dens=2, own=False):
    S = Stage(g, q, extra, dens)
    UL = 2 * NS - 1
    ld = c_loads(u + 3, vm) if u + 3 <= UL else u_loads(u + 2 - UL, vm)
    dr = u_reads(0) if u == UL else []
    if u == 0: ld = [] if own else c_loads(2, vm) + ld
    ab = (lambda i: 40 + 16 * (u - 2) + 4 * i) if own and u in (2, 3) else (lambda i: AB(u, i))
    late = own and u == 1
    vm.wait(('A', u))
    for jj in range(8):
        n = 8 * u + jj
        R = c_wread(n + 3) if n + 3 < 16 * NS else []
        for k, i in enumerate(range(4) if jj % 2 == 0 else range(3, -1, -1)):
            S.wait(('W', n))
            S.a(mfma(ACC(JORD[jj], i), WB(n), ab(i), "0" if u == 0 else None))
            used = 1 if k == 3 else 0
            if R: S.read(R.pop(0)); used += 1
            if u % 2 == 1 and u < UL and jj == 4 and k == 2:
                S.a(f"v_add_u32 v{VW2}, {(slot2(u//2+1)-slot2(u//2)) & 0xffffffff}, v{VW2}"); S.a("s_barrier"); used = 2
            elif u == UL and jj == 1 and k == 2:
                S.a(f"v_add_u32 v{VWD}, {(u_base(0)-slot2(NS-1)) & 0xffffffff}, v{VW2}"); S.a("s_barrier"); used = 2
            elif dr and jj >= 2 and used < 2 and (k >= 2 or jj >= 5):
                S.read(dr.pop(0)); used += 1
            if ld and used < 2 and (((jj >= 5 and k in (1, 2)) if late else k in (1, 2) if u == 0 else (k == 2 and (jj % 2 == g.o['aspread'] - 1 or not g.o['aspread'] or (u % 2 == 1 and jj == 5))) if u < UL else (jj >= 2 and k < 2)) or isinstance(ld[0], str)):
                S.op(ld.pop(0)); used += 1
            S.fill(used)
    assert not ld and not dr
    return S.q


def unit(g, v, vm, q, extra, dens=2):
    S = Stage(g, q, extra, dens)
    R = u_reads(v + 1) if v < 15 + ND else []
    t = {0: 3, 2: 8, 5: 9, 6: 10, 7: 11}
    for n, w in enumerate(g.o['dld']):
        assert w >= (8, 8, 8, 10, 12, 13, 14, 15)[n]
        t[w] = 16 + n
    t = t.get(v)
    ld = u_loads(t, vm) if t is not None else []
    m = 0
    for k in range(8):
        if k % 4 == 0: vm.wait(('B', v, k >> 2))
        for mi in ((0, 1) if k % 2 == 0 else (1, 0)):
            S.wait(('U', v, k >> 1))
            acc = ACC((4 if v % 8 < 4 else 0) + (k & 3), mi + (2 if v < 8 else 0)) if v < 16 else ACC(k & 3, mi)
            S.a(mfma(acc, WD(k), u_areg(v, k >> 2, mi)))
            used = 1 if m % 4 == 3 else 0
            if R and m == 0:
                S.a(f"v_add_u32 v{VWD}, {(u_base(v+1)-u_base(v)) & 0xffffffff}, v{VWD}"); used += 1
                if v in (3, 12, g.o['r1']): S.a("s_barrier"); used += 1
            elif R:
                S.read(R.pop(0)); used += 1
                if m == 15: S.read(R.pop(0))
            if ld and m in (1, 2, 4, 6, 9, 13):
                S.op(ld.pop(0)); used += 1
            S.fill(used)
            m += 1
    assert not R and not ld
    return S.q


def spaced(lst, n):
    o = []
    for x in lst: o += [x, n]
    return o


def strs(ex):
    return [x for x in ex if not isinstance(x, int)]


def compute(g):
    a = g.a
    a("L_compute:")
    a("v_and_b32 v4, 15, v0\nv_lshrrev_b32 v5, 4, v0")
    a("v_bfe_u32 v6, v4, 3, 1\nv_bfe_u32 v7, v4, 1, 1\nv_lshl_add_u32 v6, v6, 1, v7")
    a(f"v_mul_u32_u24 v{VX}, {BLK}, v6")
    a("v_bfe_u32 v6, v4, 2, 1\nv_and_b32 v7, 1, v4\nv_lshl_add_u32 v6, v6, 1, v7")
    a(f"v_lshl_add_u32 v{VX}, v6, 7, v{VX}\nv_lshl_add_u32 v{VX}, v5, 4, v{VX}")
    a(f"s_mul_i32 s45, s{S_WAVE}, {2*UNIT}\nv_add_u32 v{VX}, s45, v{VX}")
    a("v_and_b32 v6, 1, v5\nv_bfe_u32 v7, v4, 3, 1\nv_lshl_add_u32 v6, v6, 1, v7")
    a(f"v_mul_u32_u24 v{VW}, {BLK}, v6")
    a("v_lshrrev_b32 v6, 1, v5\nv_bfe_u32 v7, v4, 2, 1\nv_lshl_add_u32 v6, v6, 2, v7")
    a(f"v_lshl_add_u32 v{VW}, v6, 7, v{VW}\nv_and_b32 v6, 3, v4\nv_lshl_add_u32 v{VW}, v6, 3, v{VW}")
    a(f"v_add_u32 v{VW}, {WBASE}, v{VW}")
    a(f"v_lshrrev_b32 v6, 5, v0\nv_and_b32 v7, 31, v0\nv_lshlrev_b32 v7, 3, v7\nv_lshl_add_u32 v{VQ}, v6, 9, v7")
    a(f"v_add_u32 v{VQ}, {WBASE+3*UNIT}, v{VQ}")
    for r in range(48, 256): a(f"v_mov_b32 v{r}, 0")
    a(f"s_mov_b32 s45, 7\ns_mov_b32 s46, 0\ns_mov_b32 s48, {(-2*XSLOT) & 0xffffffff}\ns_mov_b32 s49, {XSLOT}")
    a("s_mov_b32 s50, 0x3fb8aa3b\ns_mov_b32 s51, 0x358637bd")
    a(f"s_lshl_b32 s52, s{S_MB8}, 16\ns_lshl_b32 s53, s{S_WAVE}, 14\ns_add_u32 s52, s52, s53")
    a(f"s_mul_i32 s53, s{S_QD}, 7")
    a(f"s_add_u32 s66, s53, 6\ns_lshl_b32 s66, s66, 19\ns_add_u32 s66, s66, s52")
    a(f"s_lshr_b32 s55, s{S_C}, 1\ns_lshl_b32 s55, s55, 11\ns_add_u32 s66, s66, s55")
    a(f"s_and_b32 s55, s{S_C}, 1\ns_lshl_b32 s55, s55, 10\ns_add_u32 s66, s66, s55")
    a("s_add_u32 s67, s66, 8192")
    a(f"s_lshr_b32 s57, s{S_WAVE}, 1\ns_and_b32 s58, s{S_WAVE}, 1")
    a(f"s_lshl_b32 s59, s2, 11\ns_lshl_b32 s55, s{S_WAVE}, 7\ns_add_u32 s59, s59, s55\ns_add_u32 s59, s59, {WS_FLAG}")
    a(f"s_add_u32 s60, s59, {F_H2}\ns_add_u32 s61, s59, {F_X}")
    a("v_lshlrev_b32 v4, 4, v0\nv_mov_b32 v6, 1")
    lane_goodcol(g, 7, 5)
    a("s_waitcnt lgkmcnt(0)")
    srd(g, SRD_WS, 26, 0x10000000)
    ord_table(g, 4)
    a(f"s_lshl_b32 s6, s{S_RH}, 13\ns_xor_b32 s7, s6, 8192\ns_add_u32 s6, s6, s52\ns_add_u32 s7, s7, s52\ns_mul_i32 s8, s32, {14<<19}")
    a(f"s_lshl_b32 s16, s{S_WAVE}, 13\ns_lshl_b32 s17, s{S_WAVE}, 10\ns_add_u32 s17, s17, {P2END}")
    if g.o.get('prio'): a(f"s_setprio {g.o['prio']}")
    a("s_barrier")
    g.stamp(1)

    def em(lst):
        for x in lst: a(x)
    def p2_setup():
        a(f"v_add_u32 v{VA0}, s6, v7\nv_add_u32 v{VA1}, s7, v7\ns_mov_b32 s46, s8\ns_lshl_b32 s45, s32, 20\nv_add_u32 v{VW2}, {(slot2(0)-WBASE) & 0xffffffff}, v{VW2}")
    def moves(dst, tile):
        l0, l1 = g.lab("mv"), g.lab("mv")
        f = lambda x: "\n".join(f"v_mov_b64 v[{d+4*i+r}:{d+4*i+r+1}], v[{AC(t,i^x)+r}:{AC(t,i^x)+r+1}]" for d, t in zip(dst, tile) for i in range(4) for r in (0, 2))
        return [f"s_cmp_lg_u32 s{S_RH}, 0\ns_cbranch_scc1 {l0}\n{f(0)}\ns_branch {l1}\n{l0}:\n{f(2)}\n{l1}:"]
    def c_begin(vm, mv=()):
        g.stamp(4)
        a("s_waitcnt lgkmcnt(0)")
        em(mv)
        a("s_barrier")
        g.stamp(5)
        R = c_wread(0) + c_wread(1) + c_wread(2)
        for _, x in R: a(x)
        return [k for k, _ in R]
    def flag_ex(vm, tag, so):
        return lambda: (vm.wait(tag), a(flagops(6, so)), vm.mark('f', 1))
    def quarter(tmp):
        o = [f"v_bfe_u32 v{VQ}, v0, 4, 1", f"v_mul_u32_u24 v{VQ}, 3584, v{VQ}", f"v_lshrrev_b32 v{tmp}, 5, v0", f"v_lshlrev_b32 v{tmp}, 9, v{tmp}",
             f"v_sub_u32 v{VQ}, v{VQ}, v{tmp}", f"v_add_u32 v{VQ}, v{VQ}, v7"]
        for p in (1, 0):
            d = AC(12, 2 * p)
            o += h_cvt(d, d, d + 4)
        for p in (1, 0):
            d = AC(12, 2 * p)
            o += [f"s_nop 1\nv_permlane16_swap_b32 v{d}, v{d+2}", f"v_permlane16_swap_b32 v{d+1}, v{d+3}",
                  f"buffer_store_dwordx4 {vr(d)}, v{VQ}, {W}, s{66+p} offen {HF[0]}"]
        return o

    a(f"s_cmp_ge_u32 s{S_C}, 2\ns_cbranch_scc1 L_cq")
    a(f"s_add_u32 s55, s53, s{S_C}\ns_lshl_b32 s55, s55, 19\ns_add_u32 s55, s55, s52")
    p1_loop(g, True)
    SEL = lambda t: 224 + 4 * t
    T = lambda t: (176 + 4 * t) if t < 4 else (240 + 4 * (t - 4)) if t < 8 else 204
    ex2 = ["v_and_b32 v201, 3, v0", "v_mov_b32 v202, 0x3f803f80"]
    for t in range(4):
        ex2 += [f"v_cmp_eq_u32 vcc, {t}, v201\ns_nop 1\nv_cndmask_b32 v{SEL(t)}, 0, v202, vcc"] + [f"v_mov_b32 v{SEL(t)+r}, v{SEL(t)}" for r in (1, 2, 3)]
    ex2 += quarter(200)
    for s_ in range(4):
        for p in range(2):
            ex2 += phi_regs(list(range(AC(s_, 2 * p), AC(s_, 2 * p) + 8)), 192, 2 * s_ + p >= g.o.get('pk0', 2)) + pack8(AC(s_, 2 * p), AC(s_, 2 * p + 1))
        if s_ == 1: ex2.append(None)
    rest = p1_tail(g, True, h_line_store(8, 55), ex2, flagops(6, 59))
    g.stamp(2)
    k = rest.index(None)
    em(rest[:k]); rest = rest[k + 1:]
    em(moves((24,), (8,)))
    for s_ in range(4, 8):
        for p in (1, 0): em(pack8(AC(s_, 2 * p), AC(s_, 2 * p + 1)))
    def kv_mfmas(h):
        o = []
        for p in range(2):
            for dt in range(2):
                for e in range(2): o.append(mfma(T((h * 2 + e) * 2 + dt), AC(2 * h + dt, 2 * p), AC(4 + 2 * h + e, 2 * p), "0" if p == 0 else None))
                o.append(mfma(T(8), AC(2 * h + dt, 2 * p), SEL(2 * h + dt), "0" if (h, p, dt) == (0, 0, 0) else None))
        return o
    wr = lambda t: f"ds_write_b128 v5, {vr(T(t))} offset:{t*1024}"
    a("v_add_u32 v5, s16, v4\ns_waitcnt vmcnt(0)")
    a(flagops(6, *((60,) if g.o['fpos'] < 64 else (59, 60))))
    for x in kv_mfmas(0):
        a(x); em(rest[:3]); rest = rest[3:]
    vm = VM(a)
    for t in range(4): em(rest[:10]); rest = rest[10:]; a(wr(t))
    em(moves((112,), (10,))); em(rest)
    a("s_nop 1")
    em(kv_mfmas(1))
    p2_setup()
    a("v_add_u32 v88, s17, v4\ns_nop 0")
    for t in (4, 6, 5, 7): a(wr(t))
    a(f"ds_write_b128 v88, {vr(T(8))}")
    g.stamp(3)
    q = c_begin(vm)
    JU = g.o['ju']
    for u in range(JU): q = c_slab(g, u, vm, q)
    qj, vj = list(q), list(vm.q)
    a("s_branch L_c2join")
    a("L_cq:")
    a(f"s_lshl_b32 s55, s{S_C}, 1\ns_add_u32 s55, s55, s53\ns_sub_u32 s55, s55, 2\ns_lshl_b32 s55, s55, 19\ns_add_u32 s55, s55, s52")
    a("s_add_u32 s62, s55, 0x80000")
    p1_loop(g, False)
    b2 = quarter(AC(5, 0)) + [x for x in h_line_store(8, 62) if x.startswith("v_")]
    mv = moves((40, 56), (8, 10))
    late2 = [f"buffer_store_dwordx4 {vr(40+16*p+4*i)}, v{VA1 if i>>1 else VA0}, {W}, s{63 if i&1 else 62} offen offset:{p*2048} {HF[0]}" for p in range(2) for i in range(4)]
    em(p1_tail(g, False, h_line_store(4, 55), b2, flagops(6, 59)))
    g.stamp(2)
    vm = VM(a, ['h2'])
    hand_q = []
    for h in range(2):
        for i in (2, 3, 0, 1): hand_q.append(pack8(AC(2 * h, i), AC(2 * h + 1, i)) + [f"ds_write_b128 v5, {vr(PQ(i,h))} offset:{(i*2+h)*1024}"])
    a(f"s_lshl_b32 s55, s{S_WAVE}, 13\nv_add_u32 v5, s55, v4")
    phg = g.o.get('phig', 4)
    for x in hand_q: em(x)
    p2_setup()
    a("s_sub_u32 s62, s62, s52\ns_add_u32 s63, s62, 4096")
    em(moves((24, 112), (4, 6)))
    g.stamp(3)
    q = c_begin(vm, mv)
    ex = []
    for x in late2: ex += [(x, vm, 'h2'), g.o['st2sp']]
    k = JU - (2 if late2 else JU)
    for u in range(JU):
        if u == k + 1:
            assert not strs(ex)
            ex = [60 if late2 else 0, flag_ex(vm, 'h2', 60)]
        q = c_slab(g, u, vm, q, ex, own=True)
    qq = [x for x in vm.q if x not in ('f', 'h2')]
    assert not ex and q == qj and qq == vj[len(vj) - len(qq):]
    a("L_c2join:")
    vm.q = list(vj)
    pre = (f"s_lshl_b32 s68, s2, 17\ns_lshl_b32 s56, s{S_WAVE}, 13\ns_add_u32 s68, s68, s56\n" +
           "".join(f"s_xor_b32 s{61+p}, s68, {hex(p<<17)}\ns_add_u32 s{61+p}, s{61+p}, {WS_PART+((p-1)<<15)}\ns_add_u32 s{64+p}, s{61+p}, 4096\n" for p in (1, 2, 3)) +
           f"s_add_u32 s59, s59, {F_P}\ns_lshl_b32 s68, s{S_WAVE}, 12\ns_add_u32 s68, s68, {P2END}\n"
           f"s_add_u32 s69, s{S_WAVE}, {NS+2}\ns_and_b32 s69, s69, {NSL-1}\ns_mul_i32 s69, s69, {P2SLOT}\ns_add_u32 s69, s69, {2*UNIT}\n"
           f"s_mov_b32 s28, s18\ns_mov_b32 s29, s19\ns_mov_b32 s30, {hex(2048*1024*2)}\ns_mov_b32 s31, 0x20000\n"
           f"s_lshl_b32 s55, s52, 3\ns_lshl_b32 s56, s{S_RH}, 16\ns_add_u32 s55, s55, s56\n"
           f"s_lshl_b32 s56, s{S_CB}, 8\ns_add_u32 s55, s55, s56\ns_lshl_b32 s56, s{S_KH}, 7\ns_add_u32 s55, s55, s56\n"
           f"s_lshl_b32 s50, s{S_WAVE}, 1\ns_add_u32 s50, s50, s{S_RH}\ns_lshl_b32 s50, s50, 7\ns_add_u32 s50, s50, {LDS_G}\n"
           f"v_and_b32 v{SEL0+6}, 15, v0\nv_lshrrev_b32 v{SEL0+7}, 4, v0\nv_lshlrev_b32 v{SEL0+7}, 2, v{SEL0+7}\nv_sub_u32 v{SEL0+6}, v{SEL0+6}, v{SEL0+7}\n"
           f"v_and_b32 v{SEL0+7}, 1, v0\nv_lshlrev_b32 v{SEL0+7}, 4, v{SEL0+7}\nv_mov_b32 v{SEL0}, 0x3f80\nv_lshlrev_b32 v{SEL0+7}, v{SEL0+7}, v{SEL0}\nv_lshrrev_b32 v{SEL0+6}, 1, v{SEL0+6}").split("\n")
    pre += [f"v_cmp_eq_u32 vcc, {k}, v{SEL0+6}\ns_nop 1\nv_cndmask_b32 v{SEL0+2+k}, 0, v{SEL0+7}, vcc" for k in range(2)]
    pre += [f"v_mov_b32 v{SEL0+r}, 0" for r in (0, 1, 4, 5)]
    ex = pre
    for u in range(JU, 2 * NS): q = c_slab(g, u, vm, q, ex)
    def send(p, sp, mi):
        j, i = 4 * (p >> 1) + 2 * sp, 2 * (p & 1) + mi
        return pack8(ACC(j, i), ACC(j + 1, i)) + [(f"buffer_store_dwordx4 {vr(ACC(j,i))}, v7, {W}, s{61+p+3*mi} offen offset:{sp*2048} sc1", vm, ('ps', p))]
    def rdp(p):
        return [f"ds_read_b128 {vr(PP(p,f))}, v{VFL if p == 3 else VPO} offset:{(4096 if p == 2 else 0)+f*1024}" for f in range(4)]
    def addp(p):
        return [mfma(ACC(2 * sp + t, mi), SEL0 + 2 - 2 * t, PP(p, mi * 2 + sp)) for mi in range(2) for sp in range(2) for t in range(2)]
    XF = g.o['xf']
    PO = (3, 1, 2)
    for v in range(17 + ND):
        if v == 1:
            assert not ex
            ex += (f"v_add_u32 v{VFL}, s68, v4\nv_add_u32 v{VPO}, s69, v4\nv_and_b32 v{VOUT}, 15, v0\nv_lshl_add_u32 v{GG}, v{VOUT}, 2, s50\n"
                   f"v_lshlrev_b32 v{VOUT}, 11, v{VOUT}\nv_bfe_u32 v{GG+1}, v0, 4, 1\nv_lshl_add_u32 v{VOUT}, v{GG+1}, 5, v{VOUT}\n"
                   f"v_lshrrev_b32 v{GG+1}, 5, v0\nv_lshl_add_u32 v{VOUT}, v{GG+1}, 4, v{VOUT}\n"
                   f"ds_read_b32 v{GG+1}, v{GG} offset:64\nds_read_b32 v{GG}, v{GG}").split("\n")
            ex += ['XW', f"v_add_f32 v{GG}, 1.0, v{GG}", f"v_add_f32 v{GG+1}, 1.0, v{GG+1}", f"v_rcp_f32 v{GG}, v{GG}", f"v_rcp_f32 v{GG+1}, v{GG+1}"]
        if 4 <= v < 16:
            if v % 4 == 0:
                snd = [send(PO[v // 4 - 1], sp, mi) for sp in range(2) for mi in range(2)]
                g.st['since'] = 0; ex.append(6)
            if v >= 12 and g.o.get('fast2', 1):
                if v % 4 < 2: ex += snd[2 * (v % 4)] + snd[2 * (v % 4) + 1]
            elif v % 4 < 2: ex += snd[2 * (v % 4)][:4] + [snd[v % 4][4]] + snd[2 * (v % 4) + 1][:4]
            else: ex += [snd[v % 4][4]]
        if v == 16: g.stamp(6)
        if v in (0, 4, 8, 12, 20): g.stamp({0: 11, 4: 12, 8: 13, 12: 14, 20: 15}[v])
        for r in range(3):
            if v == XF[r]:
                assert v >= (8, 12, 14 if g.o.get('fast2', 1) else 16)[r]
                vm.wait(('ps', PO[r])); a(flagops(6, 59)); vm.mark('f', 1); a(f"v_mov_b32 v6, {r+2}")
        if v == g.o['r1']:
            assert v >= 16 and not ex
            g.st['since'] = 0
            ex += [4] + rdp(3) + rdp(1) + ['XW'] + addp(3) + addp(1)
        if v < 16 + ND: q = unit(g, v, vm, q, ex, dens=g.o.get('ydens', 3) if v < 16 else g.o.get('ddens', 3))
        if 4 <= v < 16: assert not [x for x in ex if (isinstance(x, tuple) and x[2][0] == 'ps') or (isinstance(x, str) and x.startswith("v_cvt"))]
    assert not ex
    a("s_barrier")
    em(rdp(2))
    ad = addp(2)
    for f in range(4): a(f"s_waitcnt lgkmcnt({3-f})"); em(ad[2 * f:2 * f + 2])
    g.stamp(7)
    for mi in range(2):
        for hf in range(2):
            for j in range(2):
                for r in range(0, 4, 2): a(f"v_pk_mul_f32 v[{ACC(2*hf+j,mi)+r}:{ACC(2*hf+j,mi)+r+1}], v[{ACC(2*hf+j,mi)+r}:{ACC(2*hf+j,mi)+r+1}], v[{GG}:{GG+1}] op_sel:[0,{mi}] op_sel_hi:[1,{mi}]")
            d = ACC(2 * hf, mi)
            em(pack8(d, ACC(2 * hf + 1, mi)))
            a(f"s_add_u32 s56, s55, {0x8000*mi + 64*hf}\ns_nop 0\nv_permlane16_swap_b32 v{d}, v{d+2}\nv_permlane16_swap_b32 v{d+1}, v{d+3}")
            a(f"buffer_store_dwordx4 {vr(d)}, v{VOUT}, s[28:31], s56 offen {g.o.get('outflag','')}")
    if g.o['prof']:
        a("s_waitcnt vmcnt(0)")
        g.stamp(8)
    if g.o.get('probe') is not None:
        k = g.o['probe']
        if k == 'min':
            k = 0
            srd(g, 28, 24, 256)
            a("buffer_load_dword v5, off, s[28:31], 0 offset:4 sc1\ns_waitcnt vmcnt(0) lgkmcnt(0)\nv_readfirstlane_b32 s70, v5\ns_nop 3\ns_not_b32 s70, s70")
        a(f"s_waitcnt lgkmcnt(0)\ns_add_u32 s55, s{70+2*k}, 6000\nL_probe:\ns_memrealtime s[56:57]\ns_waitcnt lgkmcnt(0)\ns_sub_u32 s56, s56, s55\ns_cmp_lt_i32 s56, 0\ns_cbranch_scc1 L_probe\ns_endpgm")
    prof_dump(g, 0, 0)
    a("s_endpgm")


def q_call(g, n):
    K1 = g.o['k1']
    k = f"p{n}" if n < len(g.o['pch']) else 4 + n - K1 if K1 <= n <= K1 + g.o['noc'] else None
    if k is None: return
    l = g.lab("qc")
    if n == 0: g.a("s_call_b64 s[84:85], L_qp0"); return
    g.a(f"s_cmp_lt_u32 s{S_C}, 2\ns_cbranch_scc1 {l}\ns_call_b64 s[84:85], L_q{k}\n{l}:")


def q_chunks(g):
    a = g.a
    QR = lambda f: 128 + 4 * f
    def phi(f):
        if g.o.get('nophi'): return
        for r in range(4): a(f"v_lshlrev_b32 v{160+2*r}, 16, v{QR(f)+r}\nv_and_b32 v{161+2*r}, 0xffff0000, v{QR(f)+r}")
        for r in range(8): a(f"v_mul_f32 v{168+r}, 0x3fb8aa3b, v{160+r}")
        for r in range(8): a(f"v_exp_f32 v{168+r}, v{168+r} clamp\nv_max_f32 v{160+r}, 0x358637bd, v{160+r}")
        for r in range(8): a(f"v_add_f32 v{160+r}, v{160+r}, v{168+r}")
        for r in range(4): a(f"v_cvt_pk_bf16_f32 v{QR(f)+r}, v{160+2*r}, v{161+2*r}")
    nf = 0
    assert sum(g.o['pch']) == 8 and len(g.o['pch']) <= g.o['k0']
    a("L_k0:\ns_setprio 2")
    a(f"s_lshl_b32 s82, s86, 11\nv_lshl_add_u32 v224, v0, 4, s82\nv_lshlrev_b32 v225, 4, v0\nv_add_u32 v226, {P2END}, v225")
    for w in range(4):
        for t in range(2): a(f"ds_read_b128 {vr(128+8*w+4*t)}, v224 offset:{w*8192+t*1024}")
    for w in range(4): a(f"ds_read_b128 {vr(160+4*w)}, v226 offset:{w*1024}")
    a(f"s_lshl_b32 s83, s{S_PAIR}, 3\ns_add_u32 s83, s83, s{S_MB8}\ns_mul_i32 s83, s83, 9216\ns_add_u32 s83, s83, {WS_KVP}\ns_add_u32 s82, s82, s83")
    a("s_add_u32 s83, s83, 8192\ns_cmp_eq_u32 s86, 0\ns_cselect_b32 s83, s83, 0x10000000\ns_waitcnt lgkmcnt(4)")
    for r in range(16): a(f"v_add_f32 v{128+r}, v{128+r}, v{144+r}")
    for r in range(8): a(f"v_add_f32 v{128+r}, v{128+r}, v{136+r}")
    for t in range(2): a(f"buffer_store_dwordx4 {vr(128+4*t)}, v225, {W}, s82 offen offset:{t*1024} sc1")
    a("s_waitcnt lgkmcnt(0)")
    for r in range(8): a(f"v_add_f32 v{160+r}, v{160+r}, v{168+r}")
    for r in range(4): a(f"v_add_f32 v{160+r}, v{160+r}, v{164+r}")
    a(f"buffer_store_dwordx4 v[160:163], v225, {W}, s83 offen sc1\ns_setprio 0\ns_setpc_b64 s[84:85]")
    for k in range(len(g.o['pch'])):
        a(f"L_qp{k}:")
        if k == 0: a(f"s_sub_u32 s86, s{S_WAVE}, 4\ns_cmp_lt_u32 s{S_C}, 2\ns_cbranch_scc1 L_k0")
        if g.o.get('pprio'): a(f"s_setprio {g.o['pprio']}")
        if k == 0:
            a(f"s_sub_u32 s86, s{S_WAVE}, 4\ns_lshl_b32 s82, s86, 13\nv_lshl_add_u32 v224, v0, 4, s82")
            for f in range(8): a(f"ds_read_b128 {vr(QR(f))}, v224 offset:{f*1024}")
            a(f"s_lshl_b32 s83, s2, 11\ns_add_u32 s83, s83, {WS_FLAG+F_X}")
            a(f"s_add_u32 s82, s{S_PAIR}, 56\ns_lshl_b32 s82, s82, 3\ns_add_u32 s82, s82, s{S_MB8}\ns_lshl_b32 s82, s82, 2\ns_add_u32 s82, s82, s86\ns_lshl_b32 s82, s82, 14")
            a(f"v_lshlrev_b32 v224, 4, v0\nv_add_u32 v224, {P2END}, v224\nv_mov_b32 v226, 0\nds_write_b32 v224, v226 offset:8192\nv_mov_b32 v226, 1\ns_waitcnt lgkmcnt(0)")
        for _ in range(g.o['pch'][k]): phi(nf); nf += 1
        a("s_setpc_b64 s[84:85]")
    noc = g.o['noc']
    tiles = {2: [(0, 1), (2, 3)], 3: [(0,), (1, 2), (3,)], 4: [(0,), (1,), (2,), (3,)]}[noc]
    for k in range(noc):
        a(f"L_q{4+k}:")
        if g.o.get('qprio'): a(f"s_setprio {g.o['qprio']}")
        lane_goodcol(g, 225, 227)
        if k == 0:
            for f in range(6): a(f"ds_read_b128 {vr(176+4*f)}, v224 offset:{f*1024}")
            a(f"s_lshl_b32 s86, s{S_WAVE}, 8\ns_add_u32 s86, s86, {LDS_G-1024}\nv_and_b32 v227, 15, v0\nv_lshl_add_u32 v227, v227, 2, s86")
            for i in range(4): a(f"ds_read_b32 v{228+i}, v227 offset:{i*64}")
            a("s_waitcnt lgkmcnt(0)")
        for i in tiles[k]:
            for h in range(2):
                for e in (2, 0, 1): a(mfma(200 + 12 * h + 4 * e, 176 + 4 * (3 * h + e), QR(2 * i + h), "0"))
            a(f"s_add_u32 s86, s82, {4096*i}\ns_nop 3")
            for h in range(2):
                t = 200 + 12 * h
                a(f"v_add_f32 v{t+8}, 0x358637bd, v{t+8}\nv_rcp_f32 v{t+8}, v{t+8}\ns_nop 0\nv_mul_f32 v{t+8}, v{228+i}, v{t+8}")
                for r in range(8): a(f"v_mul_f32 v{t+r}, v{t+r}, v{t+8}")
                for r in range(4): a(f"v_cvt_pk_bf16_f32 v{QR(2*i+h)+r}, v{t+2*r}, v{t+2*r+1}")
                a(f"buffer_store_dwordx4 {vr(QR(2*i+h))}, v225, {W}, s86 offen offset:{h*2048} sc1")
        if g.o.get('qprio'): a("s_setprio 0")
        a("s_setpc_b64 s[84:85]")
    a(f"L_q{4+noc}:\ns_waitcnt vmcnt(0)\nds_add_rtn_u32 v227, v224, v226 offset:8192\ns_waitcnt lgkmcnt(0)\nv_cmp_eq_u32 vcc, 3, v227\ns_cbranch_vccz L_qret")
    a(flagops(226, 83) + "\nL_qret:\ns_mov_b64 vcc, -1\ns_setpc_b64 s[84:85]")


def aux_rx(g):
    a = g.a
    a("L_rx:")
    lane_goodcol(g, 225, 227)
    a(f"v_add_u32 v224, 1024, v225\ns_sub_u32 s86, s{S_WAVE}, 4")
    a(f"s_lshl_b32 s82, s2, 17\ns_lshl_b32 s83, s86, 13\ns_add_u32 s82, s82, s83\ns_add_u32 s82, s82, {WS_PART}")
    a(f"s_lshl_b32 s83, s2, 11\ns_lshl_b32 s47, s86, 7\ns_add_u32 s83, s83, s47")
    a(f"s_lshl_b32 s84, s86, 12\ns_add_u32 s84, s84, {P2END}")
    a(f"s_add_u32 s85, s86, {NS+2}\ns_and_b32 s85, s85, {NSL-1}\ns_mul_i32 s85, s85, {P2SLOT}\ns_add_u32 s85, s85, {2*UNIT}")
    a("s_waitcnt vmcnt(0) lgkmcnt(0)\ns_barrier")
    for r, p in enumerate((3, 1, 2)):
        a(f"s_xor_b32 s47, s83, {p<<11}\ns_add_u32 s47, s47, {WS_FLAG+F_P}")
        iss = lambda: a(f"buffer_load_dword v226, off, {W}, s47 sc1")
        if r == 2: a("s_waitcnt vmcnt(0)"); iss(); a("s_barrier")
        else: iss()
        poll_check(g, iss, 226, 1, r + 1, "gt")
        for mi in range(2):
            a(f"s_add_u32 m0, s{84 if p == 3 else 85}, {(4096 if p == 2 else 0)+mi*2048}\ns_add_u32 s47, s82, {((p-1)<<15)+mi*4096}")
            a(f"buffer_load_dwordx4 v225, {W}, s47 offen sc1 lds\nbuffer_load_dwordx4 v224, {W}, s47 offen offset:1024 sc1 lds")
    a("s_waitcnt vmcnt(0)\ns_endpgm")


def loader(g):
    def a(x):
        if not g.o.get('trace'): return g.a(x)
        for ln in x.split("\n"):
            g.a(ln)
            if ln.strip() == "s_barrier":
                g.a(("s_memtime" if g.o['trace'] == 'cyc' else "s_memrealtime") + " s[100:101]\ns_waitcnt lgkmcnt(0)\ns_mov_b32 m0, s44\ns_add_u32 s44, s44, 1\nv_writelane_b32 v32, s100, m0\ns_cmp_lg_u32 s44, 33\ns_cbranch_scc1 1\nv_mov_b32 v33, v32")
    if g.o.get('trace'): a("s_mov_b32 s44, 0\nv_mov_b32 v32, 0\nv_mov_b32 v33, 0")
    LW = 45
    if g.o.get('lprio'): a(f"s_setprio {g.o['lprio']}")
    a(f"s_sub_u32 s{LW}, s{S_WAVE}, 4")
    a("v_lshrrev_b32 v1, 5, v0\nv_bfe_u32 v2, v0, 4, 1\nv_lshlrev_b32 v1, 4, v1\nv_lshl_add_u32 v1, v2, 2, v1\nv_bfe_u32 v2, v0, 3, 1\nv_add_u32 v1, v1, v2")
    a(f"s_lshl_b32 s61, s{LW}, 3\nv_add_u32 v1, s61, v1\nv_and_b32 v2, 7, v0\nv_lshlrev_b32 v2, 4, v2")
    a(f"s_lshl_b32 s61, s{S_MB8}, 19\nv_lshl_add_u32 v4, v1, 11, v2\nv_add_u32 v4, s61, v4\nv_add_u32 v5, {4096-BLK}, v4")
    a(f"s_movk_i32 s60, 6144\ns_cmp_ge_u32 s{S_C}, 2\ns_cselect_b32 s60, 7168, s60")
    a(f"s_cselect_b32 s61, 0, 2048\ns_lshl_b32 s62, s{S_PAIR}, 7\ns_add_u32 s61, s61, s62")
    a(f"v_mul_u32_u24 v6, 6144, v1\nv_add3_u32 v6, v6, v2, s61\nv_add_u32 v7, {12288-BLK}, v6")
    a(f"s_mul_i32 s63, s{S_QD}, 7\ns_lshl_b32 s64, s{S_C}, 1\ns_add_u32 s64, s64, s63\ns_sub_u32 s65, s64, 2\ns_lshl_b32 s65, s65, 7\ns_add_u32 s62, s62, 4096")
    a(f"s_cmp_ge_u32 s{S_C}, 2\ns_cselect_b32 s61, s65, s62")
    a(f"v_mul_lo_u32 v8, v1, s60\nv_add3_u32 v8, v8, v2, s61\ns_lshl_b32 s62, s60, 1\ns_sub_u32 s62, s62, {BLK}\nv_add_u32 v9, s62, v8")
    a(f"s_sub_u32 s64, s64, 1\ns_add_u32 s65, s63, s{S_C}\ns_cmp_ge_u32 s{S_C}, 2\ns_cselect_b32 s61, s64, s65\ns_lshl_b32 s61, s61, 7")
    a(f"v_mul_u32_u24 v10, 7168, v1\nv_add3_u32 v10, v10, v2, s61\nv_add_u32 v11, {14336-BLK}, v10")
    a("v_bfe_u32 v12, v0, 4, 1\nv_bfe_u32 v13, v0, 3, 1\nv_lshlrev_b32 v12, 2, v12\nv_lshl_add_u32 v12, v13, 3, v12\nv_bfe_u32 v13, v0, 1, 2\nv_add_u32 v12, v12, v13")
    a(f"s_lshl_b32 s61, s{LW}, 4\nv_add_u32 v12, s61, v12\nv_mul_u32_u24 v12, 7168, v12\nv_and_b32 v13, 1, v0\nv_lshl_add_u32 v12, v13, 4, v12")
    a(f"s_add_u32 s61, s63, 6\ns_lshl_b32 s61, s61, 7\ns_lshl_b32 s62, s{S_C}, 5\ns_add_u32 s61, s61, s62\nv_add_u32 v12, s61, v12")
    a("s_lshl_b32 s60, s60, 5")
    a(f"s_mul_i32 s66, s{LW}, {2*BLK}")
    a(f"s_mov_b32 s61, s66\ns_lshl_b32 s62, s{S_PHI}, 7\ns_mov_b32 s63, 0\ns_lshl_b32 s64, s{S_PHI}, 1\ns_add_u32 s65, s66, {WBASE}")
    a(f"s_add_u32 s67, s66, {XRING}\ns_add_u32 s68, s66, {WBASE+4*WSLOT}")
    a(f"s_lshl_b32 s69, s{LW}, 9\ns_sub_u32 s69, s69, s66\ns_add_u32 s69, s69, {3*UNIT}")
    a(f"s_mov_b32 s30, {hex(2048*1024*2)}\ns_mov_b32 s31, 0x20000\ns_mov_b32 s50, {hex(1024*3072*2)}\ns_mov_b32 s51, 0x20000")
    a(f"s_mov_b32 s58, {hex(1024*3584*2)}\ns_mov_b32 s59, 0x20000\ns_mov_b32 s55, 0x20000")
    a("s_waitcnt lgkmcnt(0)")
    a("s_mov_b64 s[28:29], s[4:5]\ns_mov_b64 s[48:49], s[6:7]\ns_mov_b64 s[56:57], s[12:13]")
    a(f"s_cmp_ge_u32 s{S_C}, 2")
    a("s_cselect_b64 s[52:53], s[12:13], s[6:7]\ns_cselect_b32 s54, s58, s50")

    def xhalf():
        a("s_mov_b32 m0, s61\ns_add_u32 s46, s62, s63")
        for u in range(4):
            if u: a(f"s_add_u32 m0, m0, {UNIT}\ns_add_u32 s46, s46, 0x10000")
            a("buffer_load_dwordx4 v4, s[28:31], s46 offen lds")
            a(f"buffer_load_dwordx4 v5, s[28:31], s46 offen offset:{BLK} lds")
        a(f"s_add_u32 s61, s61, {4*UNIT}\ns_cmp_eq_u32 s61, s67\ns_cselect_b32 s61, s66, s61")
        a("s_xor_b32 s63, s63, 0x40000\ns_cselect_b32 s47, 0, 128\ns_add_u32 s62, s62, s47\ns_and_b32 s62, s62, 2047")

    def wslab():
        for ln, (sr, ld) in enumerate([(48, 32 * 6144), (52, "s60"), (56, 32 * 7168)]):
            a(f"s_add_u32 m0, s65, {ln*UNIT}\ns_mul_i32 s35, s64, {ld}")
            a(f"buffer_load_dwordx4 v{6+2*ln}, s[{sr}:{sr+3}], s35 offen lds")
            a(f"buffer_load_dwordx4 v{7+2*ln}, s[{sr}:{sr+3}], s35 offen offset:{BLK} lds")
        a("s_add_u32 m0, s65, s69\ns_mov_b32 exec_hi, 0")
        a("buffer_load_dwordx4 v12, s[56:59], s35 offen lds")
        a("s_mov_b32 exec_hi, -1")
        a(f"s_add_u32 s65, s65, {WSLOT}\ns_cmp_eq_u32 s65, s68\ns_cselect_b32 s65, s67, s65")
        a("s_add_u32 s64, s64, 1\ns_and_b32 s64, s64, 31")

    g.stamp(1)
    xhalf(); wslab(); xhalf(); wslab(); g.stamp(2)
    a("s_waitcnt vmcnt(7)"); g.stamp(3)
    a("s_barrier")
    SM = g.o.get('smooth', 1)
    if SM:
        xhalf(); xhalf(); wslab()
        a("s_waitcnt vmcnt(23)\ns_barrier")
        wslab(); xhalf(); wslab()
        a("s_waitcnt vmcnt(22)\ns_barrier")
        xhalf(); wslab(); xhalf()
    else:
        xhalf(); wslab(); xhalf(); wslab(); xhalf()
    g.stamp(4)
    real_a, buf = g.a, []
    g.a = lambda x: buf.extend(x.split("\n"))
    srd(g, SRD_WS, 26, 0x10000000)
    a(f"s_mov_b32 s10, {hex(1024*1024*2)}\ns_mov_b32 s11, 0x20000")
    a(f"s_mov_b64 s[12:13], s[14:15]\ns_mov_b32 s14, {hex(3584*1024*2)}\ns_mov_b32 s15, 0x20000")
    a("v_lshrrev_b32 v1, 5, v0\nv_bfe_u32 v3, v0, 4, 1\nv_lshlrev_b32 v1, 3, v1\nv_lshl_add_u32 v1, v3, 4, v1\nv_bfe_u32 v3, v0, 3, 1\nv_add_u32 v1, v1, v3")
    a(f"s_lshl_b32 s4, s{LW}, 2\nv_add_u32 v1, s4, v1")
    a(f"s_lshl_b32 s4, s{S_CB}, 8\ns_lshl_b32 s5, s{S_KH}, 7\ns_add_u32 s4, s4, s5")
    a("v_lshl_add_u32 v14, v1, 11, v2\nv_add_u32 v14, s4, v14\nv_xor_b32 v16, 128, v14")
    a(f"v_add_u32 v15, {4096-BLK}, v14\nv_add_u32 v17, {4096-BLK}, v16")
    a(f"s_lshl_b32 s5, s{S_MB8}, 19\ns_sub_u32 s4, s4, s5")
    a(f"v_add_u32 v24, s4, v4\nv_xor_b32 v26, 128, v24\nv_add_u32 v25, {4096-BLK}, v24\nv_add_u32 v27, {4096-BLK}, v26")
    lane_h(g, 21, 22, 17)
    a(f"s_mul_i32 s6, s32, {14<<17}\ns_lshl_b32 s7, s32, 18")
    a("s_mov_b64 s[24:25], s[12:13]\ns_mov_b32 s26, s14\ns_mov_b32 s27, 0x20000")
    if g.o.get('w2c', 0):
        lk, ln = g.lab("wc"), g.lab("wc")
        a(f"s_and_b32 s18, s{S_CB}, 3\ns_cmp_eq_u32 s18, 1\ns_cbranch_scc0 {ln}")
        a(f"s_lshr_b32 s18, s{S_CB}, 2\ns_mul_i32 s18, s18, {1024-128}\ns_sub_u32 s18, {WS_W2C-384}, s18\ns_add_u32 s18, s20, s18\ns_addc_u32 s19, s21, 0")
        a(f"s_cmp_eq_u32 s{S_KH}, 1\ns_cbranch_scc1 {lk}\ns_mov_b64 s[24:25], s[18:19]\ns_branch {ln}\n{lk}:\ns_mov_b64 s[12:13], s[18:19]\n{ln}:")
    ord_table(g, 4)
    g.a = real_a
    cut = max(i for i, x in enumerate(buf) if x.startswith("s_mov_b64 s[24:25], s[12:13]"))
    NU = 6
    a(f"s_mov_b32 s34, {27-NU-2*SM}")
    a("L_l1:")
    a("s_waitcnt vmcnt(30)\ns_barrier")
    wslab(); xhalf()
    a("s_sub_u32 s34, s34, 1\ns_cmp_lg_u32 s34, 0\ns_cbranch_scc1 L_l1")
    t0 = 27 - NU
    vm = VM(a, [('I', t0 - 3)] * 15 + [('I', t0 - 2)] * 15 + [('I', t0 - 1)] * 15)
    busy = [False]
    def wstage(m):
        if m < 14: a(f"s_bfe_u32 s16, s{4+m//8}, {hex((4<<16) | (4*(m%8)))}\ns_lshl_b32 s16, s16, 17\ns_add_u32 s16, s16, s6")
        for ln in range(2):
            for kk in range(2):
                if g.o.get('wpace') and m >= 3 and (ln or kk):
                    a(f"s_cbranch_vccnz 1\ns_sleep {g.o['wpace']}" if busy[0] else f"s_sleep {g.o['wpace']}")
                a(f"s_add_u32 m0, s66, {slot2(m)+(ln*2+kk)*UNIT}")
                if m < 14:
                    vb, sr = (24 if ORD[m] % 7 == 6 else 14) + 2 * ln, 24 if ln else 12
                    a(f"s_add_u32 s47, s16, {kk<<16}")
                elif m < 16:
                    vb, sr = 14 + 2 * ln, 8
                    a(f"s_add_u32 s47, s7, {((ND+m-14)<<17)+(kk<<16)}")
                else:
                    vb, sr = 14, 8
                    a(f"s_mov_b32 s47, {((2*(m-16)+ln)<<17)+(kk<<16)}")
                for jb in range(2):
                    vm.op(f"buffer_load_dwordx4 v{vb+jb}, s[{sr}:{sr+3}], s47 offen offset:{jb*BLK} sc1 lds", m)
    for t in range(t0, 27):
        vm.wait(('I', t - 3)); a("s_barrier")
        wslab(); xhalf(); vm.mark(('I', t), 15)
        k = t - t0
        for x in (buf[k * cut // 5:(k + 1) * cut // 5] if k < 5 else buf[cut:]): a(x)
    vm.wait(('I', 25)); a("s_barrier")
    wslab(); vm.mark(('I', 27), 7)
    vm.wait(('I', 26)); a("s_barrier")
    wstage(0)
    vm.wait(('I', 27)); a("s_barrier")
    wstage(1)
    a("s_barrier")
    nxt = 2
    for _ in range(g.o.get('w31', 1)): wstage(nxt); nxt += 1
    a("s_barrier")
    g.stamp(5)
    for _ in range(g.o.get('w32', 0)): wstage(nxt); nxt += 1
    a(f"s_cmp_ge_u32 s{S_C}, 2\ns_cselect_b64 vcc, -1, 0")
    sched = g.o.get('wsched', [1, 1, 1, 1, 2, 1, 2, 1, 1, 1, 2, 1, 1, 1])
    for n in range(0, 14):
        need = 15 if n >= 12 else n
        lim = {0: 5}.get(n, n + 6)
        assert nxt > need
        vm.wait(need); a("s_barrier")
        fl = n == g.o['k1'] + g.o['noc']
        fl = fl or (n == 0 and g.o.get('k0first', 1))
        if fl: q_call(g, n)
        busy[0] = n < len(g.o['pch']) or g.o['k1'] <= n <= g.o['k1'] + g.o['noc']
        for _ in range(sched[n]):
            assert nxt <= lim
            wstage(nxt); nxt += 1
        if not fl: q_call(g, n)
        if n == g.o.get('opf', 99):
            a("v_and_b32 v40, 1, v0\nv_bfe_u32 v41, v0, 1, 4\nv_lshlrev_b32 v41, 9, v41\nv_lshl_add_u32 v40, v40, 7, v41\nv_lshrrev_b32 v41, 5, v0\nv_lshl_add_u32 v40, v41, 14, v40")
            a(f"s_add_u32 s47, s{S_CB}, 56\ns_lshl_b32 s47, s47, 3\ns_add_u32 s47, s47, s{S_MB8}\ns_lshl_b32 s47, s47, 1\ns_add_u32 s47, s47, s{LW}\ns_lshl_b32 s47, s47, 2\ns_add_u32 s47, s47, s{S_RH}\ns_lshl_b32 s47, s47, 13")
            vm.op(f"buffer_load_dword v41, v40, {W}, s47 offen sc1", 'pf')
    assert nxt == 20
    if g.o.get('trace'):
        l = g.lab("tr")
        a(f"s_cmp_lg_u32 s{S_WAVE}, 4\ns_cbranch_scc1 {l}\ns_lshl_b32 s33, s2, 9\ns_add_u32 s33, s33, {WS_PROF+0x20000}\nv_lshlrev_b32 v5, 2, v0")
        a(f"buffer_store_dword v33, v5, {W}, s33 offen\nbuffer_store_dword v32, v5, {W}, s33 offen offset:256\n{l}:")
    aux_rx(g)


def pf_item(g, wait=False):
    a = g.a
    a(f"s_mul_hi_u32 s47, s68, {(2**32+16)//17}\ns_mul_i32 s33, s47, 17\ns_sub_u32 s33, s68, s33")
    a("s_lshl_b32 s50, s47, 1\ns_add_u32 s50, s50, s87\ns_lshl_b32 s50, s50, 5")
    a("s_mul_i32 s51, s32, 7\ns_add_u32 s51, s51, s33\ns_sub_u32 s51, s51, 10")
    a("s_sub_u32 s35, s33, 4\ns_lshr_b32 s54, s35, 1\ns_lshl_b32 s54, s54, 2\ns_add_u32 s54, s54, s32\ns_lshl_b32 s54, s54, 1\ns_and_b32 s35, s35, 1\ns_add_u32 s35, s35, s54")
    a(f"s_movk_i32 s55, 7168\ns_mov_b32 s54, {hex(1024*3584*2)}\ns_cmp_lt_u32 s33, 10\ns_cselect_b32 s51, s35, s51\ns_cselect_b32 s35, 6144, s55\ns_cselect_b32 s54, {hex(1024*3072*2)}, s54")
    a("s_mul_i32 s50, s50, s35\ns_lshl_b32 s51, s51, 8\ns_add_u32 s50, s50, s51")
    a(f"s_lshl_b32 s51, s{S_XCD}, 2\ns_add_u32 s51, s51, s33\ns_lshl_b32 s51, s51, 17\ns_lshl_b32 s47, s47, 7\ns_add_u32 s47, s47, s51")
    a(f"s_cmp_lt_u32 s33, 4\ns_cselect_b32 s47, s47, s50\ns_cselect_b32 s35, 4096, s35\ns_cselect_b32 s50, 11, 7\ns_cselect_b32 s54, {hex(2048*1024*2)}, s54\ns_mov_b32 s55, 0x20000")
    a("v_lshrrev_b32 v10, 1, v0\nv_and_b32 v11, 1, v0\nv_mul_lo_u32 v10, v10, s35\nv_lshl_add_u32 v10, v11, s50, v10")
    if wait: a("s_waitcnt lgkmcnt(0)")
    a("s_cmp_lt_u32 s33, 10\ns_cselect_b64 s[52:53], s[6:7], s[12:13]\ns_cmp_lt_u32 s33, 4\ns_cselect_b64 s[52:53], s[4:5], s[52:53]")
    a("buffer_load_dword v9, v10, s[52:55], s47 offen")


def helper(g):
    a = g.a
    a("L_helper:")
    HW = 45
    def bars(n):
        for _ in range(n): a("s_barrier")
    if g.o.get('hprio'): a(f"s_setprio {g.o['hprio']}")
    a(f"s_sub_u32 s{HW}, s{S_WAVE}, 6")
    a("v_lshlrev_b32 v4, 4, v0\nv_lshlrev_b32 v5, 2, v0\nv_mov_b32 v6, 0\nv_mov_b32 v7, 1\nv_lshlrev_b32 v8, 7, v0")
    a(f"s_getpc_b64 s[96:97]\nL_pc:\ns_sub_u32 s96, s96, L_pc-{NAME}\ns_subb_u32 s97, s97, 0")
    a(f"s_mov_b32 s98, L_codeend-{NAME}\ns_mov_b32 s99, 0x20000")
    a(f"s_lshl_b32 s100, s30, 1\ns_add_u32 s100, s100, s{HW}\ns_lshl_b32 s100, s100, 11")
    def codepf():
        a("s_mov_b64 exec, 0xffff\nbuffer_load_dword v9, v8, s[96:99], s100 offen\ns_mov_b64 exec, -1")
    codepf()
    a(f"s_lshl_b32 s46, s32, 3\ns_add_u32 s46, s46, s{S_CB}\ns_lshl_b32 s47, s{S_MB8}, 5\ns_add_u32 s46, s46, s47")
    a("s_waitcnt lgkmcnt(0)")
    srd(g, SRD_WS, 26, 0x10000000)
    srd(g, 28, 4, 2048 * 1024 * 2)
    srd(g, 92, 24, 256)
    for r in range(12, 16): a(f"v_mov_b32 v{r}, -1")
    a(f"s_mov_b32 s33, 0x10000000\ns_lshl_b32 s88, s{S_PAIR}, 3\ns_add_u32 s88, s88, s{S_MB8}\ns_mul_i32 s88, s88, 9216\ns_add_u32 s88, s88, {WS_KVP}")
    a(f"s_mul_i32 s89, s{S_PAIR}, 6144\ns_lshl_b32 s47, s{S_MB8}, 10\ns_add_u32 s89, s89, s47\ns_add_u32 s89, s89, {WS_KVF}")
    a(f"s_cmp_ge_u32 s{S_MB8}, 6\ns_cselect_b32 s89, s33, s89\ns_cmp_ge_u32 s{S_C}, 2\ns_cselect_b32 s88, s33, s88\ns_cselect_b32 s89, s33, s89")
    def init0(k):
        if k == 0:
            for r in range(16, 20): a(f"v_mov_b32 v{r}, 0")
            a(f"s_lshl_b32 s47, s2, 11\ns_add_u32 s47, s47, {WS_FLAG}")
            a(f"buffer_store_dwordx4 v[16:19], v4, {W}, s47 offen sc1\nbuffer_store_dwordx4 v[16:19], v4, {W}, s47 offen offset:1024 sc1")
        elif k == 1:
            a(f"buffer_store_dwordx4 v[12:15], v4, {W}, s89 offen sc1")
            a(f"s_mov_b64 exec, 0xff\ns_lshl_b32 s47, s46, 7\ns_add_u32 s47, s47, {WS_FLAG+F_G}")
            a(f"buffer_store_dwordx4 v[12:15], v4, {W}, s47 offen sc1\ns_mov_b64 exec, -1")
        else:
            a(f"buffer_store_dwordx4 v[12:15], v4, {W}, s88 offen sc1\ns_add_u32 s88, s88, 1024")
    issd = lambda: a("buffer_load_dword v23, off, s[92:95], 0 sc1")
    def init3():
        ok = g.lab("rdy")
        a(f"v_cmp_ne_u32 vcc, 1, v23\ns_nop 1\ns_and_b32 s33, vcc_lo, 1\ns_cbranch_scc0 {ok}")
        issd(); poll_check(g, issd, 23, 1, 1)
        a(f"{ok}:\ns_lshr_b32 s47, s2, 2\ns_lshl_b32 s47, s47, 7\ns_and_b32 s33, s2, 3\ns_lshl_b32 s33, s33, 2\ns_add_u32 s47, s47, s33\ns_add_u32 s47, s47, {WS_FLAG+F_RDY}")
        a(flagops(7, 47))
    lz = g.lab("z")
    a(f"s_or_b32 s33, s2, s{HW}\ns_cbranch_scc1 {lz}")
    for r in range(16, 20): a(f"v_mov_b32 v{r}, 0")
    a(f"s_mov_b32 s47, {WS_FLAG+F_RDY}\ns_mov_b32 s33, {WS_FLAG+F_RDY+4096}")
    for k in range(8): a(f"buffer_store_dwordx4 v[16:19], v4, {W}, s{33 if k>>2 else 47} offen offset:{(k&3)*1024} sc1")
    a(f"s_waitcnt vmcnt(0)\ns_mov_b64 exec, 1\nbuffer_store_dword v7, off, s[92:95], 0 sc1\ns_mov_b64 exec, -1\n{lz}:")
    srd(g, 60, 14, 3584 * 1024 * 2)
    srd(g, 64, 8, 1024 * 1024 * 2)
    a(f"s_cmp_lg_u32 s{HW}, 0\ns_cbranch_scc1 L_h_one")
    iss0 = lambda: a(f"s_mov_b32 s47, {WS_FLAG+F_RDY}\nbuffer_load_dwordx4 v[16:19], v8, {W}, s47 offen sc1")
    for t in range(0, 29):
        a("s_barrier")
        if 3 <= t < 14: a(f"s_sleep {g.o['hdel']}"); init0(t - 3)
        if t == 14: issd()
        if t == 16: a("s_waitcnt vmcnt(0)"); init3()
        if t == 22: iss0()
        if t == 24: poll_check(g, iss0, 14, 64, 1, "ne", lambda: a("v_and_b32 v14, v16, v17\nv_and_b32 v15, v18, v19\nv_and_b32 v14, v14, v15"))
        if t == g.o.get('cpf1', 99): a("s_mov_b64 exec, 0xffffffff\nbuffer_load_dword v9, v8, s[96:99], s100 offen\ns_mov_b64 exec, -1")
    bars(2)
    a("v_lshlrev_b32 v13, 3, v0")
    lane_h(g, 11, 12, 52)
    a(f"s_add_u32 s54, s52, {F_H2}")
    a("v_and_b32 v12, 1, v0\nv_lshlrev_b32 v12, 16, v12\nv_bfe_u32 v16, v0, 1, 1\nv_lshl_add_u32 v12, v16, 18, v12")
    a(f"v_bfe_u32 v16, v0, 2, 2\nv_lshl_add_u32 v12, v16, 11, v12\ns_andn2_b32 s56, s52, 0x1800\ns_add_u32 s56, s56, {F_X + (2<<16)}")
    a(f"s_lshl_b32 s57, s{S_MB8}, 12\ns_add_u32 s57, s57, {WS_FLAG+F_G}")
    a(f"v_lshrrev_b32 v19, 1, v0\nv_and_b32 v16, 1, v0\nv_lshlrev_b32 v16, 4, v16\nv_lshl_add_u32 v19, v19, 7, v16\nv_add_u32 v13, {LDS_G}, v4")
    bars(1)
    bars(1)
    def pol(soff, areg):
        m = "0xffff" if areg == 12 else "0xffffffff"
        return lambda: a(f"s_mov_b64 exec, {m}\nbuffer_load_dword v14, v{areg}, {W}, s{soff} offen sc1\ns_mov_b64 exec, -1")
    issg = lambda: a(f"buffer_load_dwordx4 v[24:27], v19, {W}, s57 offen sc1")
    assert g.o['k1'] >= 6
    def role(kv, f):
        l = g.lab("ro")
        a(f"s_cmp_ge_u32 s{S_C}, 2\ns_cbranch_scc{1 if kv else 0} {l}"); f(); a(f"{l}:")
    role(True, lambda: (a(f"s_sleep {g.o.get('gsl', 16)}"), pol(52, 11)(), poll_check(g, pol(52, 11), 14, 32, 1)))
    for n in range(12):
        a("s_barrier")
        if n == g.o.get('cpf2'): a("s_mov_b64 exec, 0xffffffff\nbuffer_load_dword v9, v8, s[96:99], s100 offen\ns_mov_b64 exec, -1")
        if n == 0: role(False, pol(52, 11))
        if n == 3: issg()
        if n == 4:
            poll_check(g, issg, 14, 64, -1, "eq", lambda: a("v_max3_u32 v14, v24, v25, v26\nv_max_u32 v14, v14, v27"))
            a("ds_write_b128 v13, v[24:27]"); pol(54, 11)()
        if n == 5: poll_check(g, pol(54, 11), 14, 32, 1); a("s_waitcnt lgkmcnt(0)")
        q_call(g, n)
        if n == 0: role(False, lambda: poll_check(g, pol(52, 11), 14, 32, 1))
        if n == g.o.get('fop', 11):
            if g.o.get('fosl'): a(f"s_sleep {g.o['fosl']}")
            pol(56, 12)()
        if n == 11: poll_check(g, pol(56, 12), 14, 16, 1)
    a("s_barrier\ns_barrier\ns_branch L_rx")
    a("L_h_one:")
    tb = sum(x << (4 * k) for k, x in enumerate(ORD))
    a(f"s_mov_b32 s34, 0\ns_lshr_b32 s69, s2, 3\ns_mov_b32 s48, {hex(tb & 0xffffffff)}\ns_mov_b32 s49, {hex(tb >> 32)}")
    a(f"s_lshr_b32 s33, s68, 5\ns_lshr_b32 s90, {hex(g.o.get('wmask', 0x1f0))}, s33")
    if g.o.get('nopf1'): a("s_mov_b32 s68, 0x10000")
    def w2item():
        l, lo = g.lab("pw"), g.lab("pw")
        a(f"s_cmp_ge_u32 s69, 112\ns_cbranch_scc1 {lo}\ns_lshr_b32 s47, s69, 3\ns_lshl_b32 s47, s47, 2\ns_lshr_b64 s[50:51], s[48:49], s47\ns_and_b32 s50, s50, 15")
        a(f"s_mul_i32 s47, s32, 14\ns_add_u32 s47, s47, s50\ns_lshl_b32 s47, s47, 1\ns_add_u32 s47, s47, s87\ns_lshl_b32 s47, s47, 3\ns_and_b32 s50, s69, 7\ns_add_u32 s47, s47, s50\ns_lshl_b32 s47, s47, 13")
        a(f"buffer_load_dword v9, v8, s[60:63], s47 offen\ns_branch {l}")
        a(f"{lo}:\ns_sub_u32 s47, s69, 112\ns_lshl_b32 s47, s47, 3\ns_add_u32 s47, s47, s{S_XCD}\ns_lshl_b32 s47, s47, 13\nbuffer_load_dword v9, v8, s[64:67], s47 offen\n{l}:\ns_add_u32 s69, s69, 32")
    l0, l1, l2, lx, lq = [g.lab("pf") for _ in range(5)]
    if g.o.get('skip0'): a(f"s_branch {l1}")
    a(f"{l0}:\ns_add_u32 s47, s34, {g.o['lead']}\ns_mul_i32 s47, s47, 17\ns_lshr_b32 s47, s47, 1\ns_min_u32 s47, s47, {16*17}\ns_cmp_ge_u32 s68, s47\ns_cbranch_scc1 {l1}")
    pf_item(g)
    a("s_add_u32 s68, s68, 32")
    a(f"{l2}:\ns_lshr_b32 s90, s90, 1\ns_bitcmp1_b32 s90, 0\ns_cbranch_scc0 {l0}")
    w2item()
    a(f"s_branch {l0}\n{l1}:")
    if g.o.get('wrate'):
        l3 = g.lab("pf")
        a(f"s_sub_u32 s47, s34, {g.o.get('w0', 2)}\ns_cbranch_scc1 {l3}\ns_mul_i32 s47, s47, {g.o['wrate']}\ns_min_u32 s47, s47, 144\ns_cmp_ge_u32 s69, s47\ns_cbranch_scc1 {l3}")
        w2item()
        a(f"{l3}:")
    a(f"s_barrier\ns_sleep {g.o['hdel']}\ns_add_u32 s34, s34, 1\ns_cmp_lt_u32 s34, 27\ns_cbranch_scc1 {l0}")
    srd(g, 52, 16, 2048)
    gl = ["s_lshl_b32 s47, s46, 14\n" + "\n".join(f"buffer_load_dwordx4 {vr(24+4*hf)}, v4, s[52:55], 0 offen offset:{hf*1024}" for hf in range(2))]
    for r in range(8):
        gl.append("\n".join(f"buffer_load_dwordx4 {vr(40+8*r+4*hf)}, v4, s[28:31], s47 offen offset:{(r&1)*2048+hf*1024}" for hf in range(2)) + ("\ns_add_u32 s47, s47, 4096" if r & 1 else ""))
    for t in range(26, 31):
        if t > 26: a("s_barrier")
        n = g.o['gsch'][t - 26]
        if n and t in (27, 28): a(f"s_sleep {g.o['hdel']}")
        for x in gl[:n]: a(x)
        gl = gl[n:]
    assert not gl
    for r in range(32, 40): a(f"v_mov_b32 v{r}, 0")
    bars(2)
    a("s_waitcnt vmcnt(0)")
    for k in range(8):
        for r in range(8): a(f"v_dot2_f32_bf16 v{32+r}, v{40+8*r+k}, v{24+k}, v{32+r}")
    a("s_barrier\ns_nop 0")
    for pat in ["quad_perm:[1,0,3,2] row_mask:0xf", "quad_perm:[2,3,0,1] row_mask:0xf", "row_half_mirror row_mask:0xf", "row_mirror row_mask:0xf",
                "row_bcast:15 row_mask:0xa", "row_bcast:31 row_mask:0xc"]:
        for r in range(32, 40): a(f"v_add_f32_dpp v{r}, v{r}, v{r} {pat} bank_mask:0xf")
    for r in range(8): a(f"v_readlane_b32 s{52+r}, v{32+r}, 63")
    a("s_nop 1")
    for r in range(8): a(f"v_writelane_b32 v16, s{52+r}, {r}")
    a("s_nop 0\nv_min_f32 v16, 0x41f00000, v16\nv_mul_f32 v16, 0x3fb8aa3b, v16\nv_exp_f32 v16, v16")
    a(f"s_lshl_b32 s47, s46, 7\ns_add_u32 s47, s47, {WS_FLAG+F_G}\ns_mov_b64 exec, 0xff")
    a(f"buffer_store_dword v16, v5, {W}, s47 offen sc1\ns_mov_b64 exec, -1")
    q_call(g, 0)
    a(f"s_mov_b32 s34, 1\ns_cmp_ge_u32 s{S_C}, 2\ns_cbranch_scc1 L_h1_q\ns_cmp_ge_u32 s{S_MB8}, 6\ns_cbranch_scc1 L_h1_end")
    H1 = g.o['h1']
    def retry(issue, mx, first, last, work=False):
        l0, l1 = g.lab("try"), g.lab("try")
        for n in range(first):
            if n: a("s_barrier")
            if work and n: q_call(g, n)
        if g.o.get('rsame', 1) & (1 if work else 2):
            l2 = g.lab("try")
            a(f"s_setprio 2\ns_mov_b32 s34, {first}\n{l0}:")
            issue(); a("s_waitcnt vmcnt(0)"); mx()
            a(f"v_cmp_eq_u32 vcc, -1, v14\ns_cbranch_vccz {l1}")
            a(f"s_cmp_ge_u32 s34, {last}\ns_cbranch_scc1 {l2}\ns_barrier\ns_add_u32 s34, s34, 1\ns_branch {l0}\n{l2}:")
        else:
            a(f"s_setprio 2\ns_mov_b32 s34, {first}\n{l0}:")
            if g.o.get('hsl'): a(f"s_sleep {g.o['hsl']}")
            issue()
            a("s_barrier\ns_add_u32 s34, s34, 1\ns_waitcnt vmcnt(0)")
            mx()
            a(f"v_cmp_eq_u32 vcc, -1, v14\ns_nop 1\ns_cmp_lg_u64 vcc, 0\ns_cbranch_scc0 {l1}")
            a(f"s_cmp_le_u32 s34, {last-1}\ns_cbranch_scc1 {l0}")
        issue(); poll_check(g, issue, 14, 64, -1, "eq", mx)
        a(f"{l1}:")
    def upto(n):
        l0, l1 = g.lab("up"), g.lab("up")
        a(f"{l0}:\ns_cmp_ge_u32 s34, {n}\ns_cbranch_scc1 {l1}\ns_barrier\ns_add_u32 s34, s34, 1\ns_branch {l0}\n{l1}:")
    def vmax(lo, hi):
        a(f"v_max_u32 v14, v{lo}, v{lo+1}")
        for r in range(lo + 2, hi, 2): a(f"v_max3_u32 v14, v14, v{r}, v{r+1}")
    a(f"s_cmp_ge_u32 s{S_MB8}, 3\ns_cselect_b32 s55, 1, 0\ns_sub_u32 s56, s{S_MB8}, s55\ns_lshl_b32 s56, s56, 11\nv_add_u32 v10, s56, v4\nv_add_u32 v11, 1024, v10")
    a(f"s_cmp_eq_u32 s{S_MB8}, 2\ns_cbranch_scc1 L_h1_z\ns_cmp_eq_u32 s{S_MB8}, 5\ns_cbranch_scc0 L_h1_nz\nL_h1_z:")
    a("s_lshl_b32 s55, s55, 5\ns_add_u32 s55, s55, 8192\nv_and_b32 v10, 0x300, v4\nv_add_u32 v10, s55, v10\nv_add_u32 v11, 16, v10\nL_h1_nz:")
    def kvp_issue():
        a(f"s_mul_i32 s47, s{S_PAIR}, {8*9216}\ns_add_u32 s47, s47, {WS_KVP}")
        for m in range(8):
            for dt in range(2): a(f"buffer_load_dwordx4 {vr(32+(m*2+dt)*4)}, v{10+dt}, {W}, s47 offen sc1")
            if m < 7: a("s_add_u32 s47, s47, 9216")
    retry(kvp_issue, lambda: vmax(32, 96), H1 + 1, 9)
    g.stamp(5)
    if g.o['prof']: a("s_mov_b32 s88, s34")
    for st in (32, 16, 8):
        for r in range(st): a(f"v_add_f32 v{32+r}, v{32+r}, v{32+st+r}")
    for r in range(4): a(f"v_cvt_pk_bf16_f32 v{32+r}, v{32+2*r}, v{33+2*r}")
    a(f"s_mul_i32 s47, s{S_PAIR}, 6144\ns_lshl_b32 s46, s{S_MB8}, 10\ns_add_u32 s47, s47, s46\ns_add_u32 s47, s47, {WS_KVF}")
    a(f"buffer_store_dwordx4 v[32:35], v4, {W}, s47 offen sc1")
    a("L_h1_end:")
    upto(14)
    a("s_branch L_rx")
    a("L_h1_q:")
    K1 = g.o['k1']
    a(f"s_mul_i32 s55, s{S_PAIR}, 6144\ns_add_u32 s55, s55, {WS_KVF}\ns_add_u32 s56, s55, 4096\nv_add_u32 v12, {P2END}, v4")
    def kvf_issue():
        for f in range(6): a(f"buffer_load_dwordx4 {vr(32+4*f)}, v4, {W}, s{55+(f>>2)} offen offset:{(f&3)*1024} sc1")
    retry(kvf_issue, lambda: vmax(32, 56), g.o['k0'], K1, True)
    g.stamp(5)
    if g.o['prof']: a("s_mov_b32 s88, s34")
    for f in range(6): a(f"ds_write_b128 v12, {vr(32+4*f)} offset:{f*1024}")
    upto(K1)
    a("s_waitcnt lgkmcnt(0)")
    for n in range(K1, K1 + g.o['noc'] + 1): a("s_barrier"); q_call(g, n)
    a(f"s_mov_b32 s34, {K1+g.o['noc']+1}\ns_branch L_h1_end")
    q_chunks(g)


HEADER = open("gated_mix__linear_attn_block__dense_activation_relu__prompt.s.ref").read().split("; Override")[0] \
    if __name__ == "__main__" else ""


def build(**opt):
    g = G(**opt)
    VM.skip = g.o.get('skip', ())
    HF[0] = g.o.get('hflag', 'sc1'); HF[1] = g.o.get('lflag', 'sc1')
    g.L.append(f"; @launch grid=(256,1,1) block=(512,1,1) lds={LDS_TOTAL}")
    g.a(f'.amdgcn_target "amdgcn-amd-amdhsa--gfx950"\n.text\n.globl {NAME}\n.p2align 8\n.type {NAME},@function\n{NAME}:')
    prologue(g)
    loader(g)
    helper(g)
    compute(g)
    g.a("L_exit:\ns_endpgm\nL_codeend:")
    g.L.append(f""".section .rodata,"a"
.p2align 6
.amdhsa_kernel {NAME}
  .amdhsa_next_free_vgpr 256
  .amdhsa_next_free_sgpr 102
  .amdhsa_accum_offset 256
  .amdhsa_group_segment_fixed_size 0
  .amdhsa_kernarg_size 80
  .amdhsa_user_sgpr_count 2
  .amdhsa_user_sgpr_kernarg_segment_ptr 1
  .amdhsa_system_sgpr_workgroup_id_x 1
.end_amdhsa_kernel""")
    return g.text()


if __name__ == "__main__":
    out = sys.argv[1]
    opt = {}
    for kv in sys.argv[2:]:
        k, v = kv.split("=")
        opt[k] = eval(v)
    open(out, "w").write(HEADER + build(**opt))
```

```python
import sys

NAME = "gated_mix__linear_attn_block__dense_activation_relu__prompt_kernel"

OREG = 4 << 23
MT = lambda i: ((i & 1) << 12) | ((i >> 1) << 14)
WS_PART = 0x3000000
WS_KVP = 0x2800000
WS_KVF = 0x2980000
WS_FLAG = 0x2A00000
F_H1, F_H2, F_X, F_P = 0, 512, 1024, 1536
F_G = 0x80000
F_RDY = 0x90000
WS_PROF = 0x2B00000
WS_PROBE = 0x2C00000
LDS_SEL = 163832
WS_W2C = 0x2800000
ORD1 = [0, 1, 2, 4, 7, 8, 9, 11]
ORD2 = [3, 5, 10, 12, 6, 13]

UNIT = 4224; BLK = 1056
XSLOT = 8 * UNIT
XRING = 3 * XSLOT
WSLOT = 3 * UNIT + 1024
WBASE = XRING
LDS_G = 162816
P2SLOT = 4 * UNIT
NSL = 8
P2END = NSL * P2SLOT
LDS_TOTAL = 163840

SPIN = 100000


class G:
    def __init__(self, **opt):
        self.L = []
        self.o = dict(prof=False, krot=False, pfw=True, pf1=True, lead=6, pfs0=0, hdel=0, pfw0=2, pfwr=54, early2=0, late=(4, 4, 4), sp0=22, spn=2, swin=4, gsch=(5, 4, 0, 0, 0), fpos=50, s1sp=12, tdens=2, st2n=0, st2sp=14, ju=5, pch=(1, 2, 2, 2, 1), pf0=0, pol=None, sk=(), cbx=2, aspread=0, wpace=0, kdens=4, hsl=0, gsl=0, noc=2, qprio=2, k1=7, k0=6, rsp=6, h1=1, xf=(10, 14, 16), r1=20, dld=(11, 12, 13, 14, 15, 16, 17, 18), psleep=2, cpf1=24, cpf2=99, odens=3, b16=True, ddens=3, psp=30, d1=7, d2=10, d2b=12, d3=16)
        self.o.update(opt)
        self.uid = 0
        self.info = {}
        self.st = {'since': 0}

    def a(self, s):
        for ln in s.split("\n"):
            ln = ln.strip()
            if ln == "s_sleep 0": continue
            if ln:
                self.L.append(ln if ln.endswith(":") or ln.startswith(".") else "    " + ln)

    def lab(self, p):
        self.uid += 1
        return f"L_{p}_{self.uid}"

    def stamp(self, n):
        if self.o['prof'] == 'min' and n not in (0, 8): return
        if self.o['prof']:
            self.a(f"{'s_memtime' if self.o['prof']=='cyc' else 's_memrealtime'} s[{70+2*n}:{71+2*n}]")

    def text(self):
        j = self.o.get('jitter')
        if j:
            import random
            rnd = random.Random(j[0]); o = []
            for ln in self.L:
                o.append(ln)
                t = ln.strip()
                if (t == "s_barrier" or t.startswith("s_waitcnt vmcnt")) and rnd.random() < j[1]:
                    w = rnd.randrange(8)
                    src = "s3" if rnd.random() < 0.7 else "s44"
                    o.append(f"    s_cselect_b32 s101, 1, 0\n    s_cmp_lg_u32 {src}, {w}\n    s_cbranch_scc1 1\n    s_sleep {rnd.randrange(1, j[2])}\n    s_cmp_lg_u32 s101, 0")
            return "\n".join(o) + "\n"
        return "\n".join(self.L) + "\n"


class VM:
    def __init__(self, a, init=()):
        self.a = a; self.q = list(init)
    skip = ()
    def op(self, text, tag):
        if (tag[0] if isinstance(tag, tuple) else tag) in VM.skip: return
        self.a(text); self.q.append(tag)
        assert len(self.q) <= 63, "vmcnt overflow"
    def mark(self, tag, n):
        self.q += [tag] * n
        assert len(self.q) <= 63, "vmcnt overflow"
    def wait(self, *tags):
        k = max([i for i, t in enumerate(self.q) if t in tags], default=-1)
        if k >= 0:
            self.a(f"s_waitcnt vmcnt({len(self.q)-1-k})"); self.q = self.q[k + 1:]


def vr(b, n=4):
    return f"v[{b}:{b+n-1}]"


def mfma(d, a, b, c=None):
    return f"v_mfma_f32_16x16x32_bf16 {vr(d)}, {vr(a)}, {vr(b)}, {vr(d) if c is None else c}"


S_WAVE, S_MB8, S_QD, S_C, S_PAIR, S_RH, S_CB, S_KH, S_SEL, S_XCD = 3, 36, 37, 38, 39, 40, 41, 42, 43, 44
SRD_WS = 20


def srd(g, d, base, nbytes):
    g.a(f"s_mov_b32 s{d}, s{base}\ns_mov_b32 s{d+1}, s{base+1}\ns_mov_b32 s{d+2}, {hex(nbytes)}\ns_mov_b32 s{d+3}, 0x20000")


def prof_dump(g, wave, row):
    if not g.o['prof'] or g.o.get('probe') is not None or (row and (g.o['prof'] == 'min' or g.o.get('trace'))): return
    a = g.a
    l = g.lab("pd")
    a(f"s_waitcnt lgkmcnt(0)\ns_cmp_lg_u32 s{S_WAVE}, {wave}\ns_cbranch_scc1 {l}")
    a(f"s_lshl_b32 s33, s2, 6\ns_add_u32 s33, s33, {WS_PROF + row*16384}\nv_mov_b32 v5, 0")
    for n in range(16):
        a(f"v_mov_b32 v6, s{70+2*n}\nbuffer_store_dword v6, v5, s[{SRD_WS}:{SRD_WS+3}], s33 offen offset:{4*n}\ns_nop 1")
    a(f"{l}:")


def prologue(g):
    a = g.a
    a("s_cmp_ge_u32 s2, 256\ns_cbranch_scc1 L_exit")
    if g.o['prof']:
        for n in range(70, 102): a(f"s_mov_b32 s{n}, 0")
    g.stamp(0)
    a("s_load_dwordx16 s[4:19], s[0:1], 0")
    a("s_load_dwordx4 s[24:27], s[0:1], 64")
    a("v_lshrrev_b32 v1, 6, v0\nv_and_b32 v0, 63, v0")
    a(f"s_and_b32 s{S_XCD}, s2, 7\ns_lshr_b32 s30, s2, 3")
    a(f"v_readfirstlane_b32 s{S_WAVE}, v1")
    a(f"s_lshr_b32 s31, s{S_XCD}, 2\ns_and_b32 s32, s{S_XCD}, 3")
    a(f"s_and_b32 s33, s30, 3\ns_lshl_b32 s{S_MB8}, s31, 2\ns_add_u32 s{S_MB8}, s{S_MB8}, s33")
    a("s_lshr_b32 s33, s30, 2")
    a(f"s_lshr_b32 s34, s33, 2\ns_lshl_b32 s{S_QD}, s32, 1\ns_add_u32 s{S_QD}, s{S_QD}, s34")
    a(f"s_and_b32 s{S_C}, s33, 3")
    a(f"s_and_b32 s34, s33, 1\ns_lshl_b32 s{S_PAIR}, s{S_QD}, 1\ns_add_u32 s{S_PAIR}, s{S_PAIR}, s34")
    a(f"s_and_b32 s{S_RH}, s32, 1")
    a(f"s_xor_b32 s{S_CB}, s33, {g.o['cbx']}")
    a(f"s_lshr_b32 s{S_KH}, s32, 1")
    if g.o['pol'] == 'mix': a(f"s_lshl_b32 s{S_SEL}, s31, 13")
    else: a(f"s_xor_b32 s34, s31, s{S_MB8}\ns_xor_b32 s34, s34, {g.o['pol'] or 0}\ns_and_b32 s34, s34, 1\ns_lshl_b32 s{S_SEL}, s34, 13")
    a(f"s_cmp_lt_u32 s{S_WAVE}, 4\ns_cbranch_scc1 L_compute")
    a(f"s_cmp_lt_u32 s{S_WAVE}, 6\ns_cbranch_scc1 L_loader")
    a("s_mov_b32 s68, s30\ns_mov_b32 s87, s31")
    if g.o.get('pf0'):
        a(f"s_cmp_eq_u32 s{S_WAVE}, 6\ns_cbranch_scc1 L_helper\ns_add_u32 s68, s68, {g.o.get('pf0off', 0)}")
        pf_item(g, True)
        a("s_add_u32 s68, s68, 32")
    a("s_branch L_helper\nL_loader:")


W = f"s[{SRD_WS}:{SRD_WS+3}]"


def lane_goodcol(g, d, t):
    g.a(f"v_lshrrev_b32 v{d}, 4, v0\nv_and_b32 v{t}, 15, v0\nv_lshlrev_b32 v{t}, 4, v{t}\nv_lshl_add_u32 v{d}, v{d}, 9, v{t}\nv_or_b32 v{d}, s{S_SEL}, v{d}")


def inbox(so, t, w):
    return (f"s_lshr_b32 s{so}, s2, 6\ns_lshl_b32 s{so}, s{so}, 2\ns_bfe_u32 s{t}, s2, 0x20003\ns_add_u32 s{so}, s{so}, s{t}\ns_lshl_b32 s{so}, s{so}, 1\n"
            f"s_bfe_u32 s{t}, s2, 0x10005\ns_add_u32 s{so}, s{so}, s{t}\ns_lshl_b32 s{so}, s{so}, 2\ns_add_u32 s{so}, s{so}, s32\ns_lshl_b32 s{so}, s{so}, 4\n"
            f"s_add_u32 s{so}, s{so}, s{w}\ns_lshl_b32 s{so}, s{so}, 14\n")


def lane_h(g, d, t, so):
    g.a(f"v_bfe_u32 v{d}, v0, 2, 3\nv_and_b32 v{t}, 3, v0\nv_lshlrev_b32 v{t}, 7, v{t}\nv_lshl_add_u32 v{d}, v{d}, 16, v{t}")
    g.a(f"s_and_b32 s{so}, s2, 31\ns_lshl_b32 s{so}, s{so}, 11\ns_add_u32 s{so}, s{so}, {WS_FLAG}")


def poll_check(g, issue, reg, nl, val, cmp="ne", pre=None):
    a = g.a
    l0, l1 = g.lab("poll"), g.lab("pollok")
    a(f"s_mov_b32 s35, {SPIN}\n{l0}:\ns_waitcnt vmcnt(0)")
    if pre: pre()
    a(f"v_cmp_{cmp}_u32 vcc, {val}, v{reg}\ns_nop 1")
    if nl == 64: a("s_cmp_lg_u64 vcc, 0")
    else: a(f"s_and_b32 s33, vcc_lo, {hex((1<<nl)-1)}")
    a(f"s_cbranch_scc0 {l1}")
    a(f"s_sub_u32 s35, s35, 1\ns_cbranch_scc1 {l1}")
    if g.o.get('psleep'): a(f"s_sleep {g.o['psleep']}")
    issue()
    a(f"s_branch {l0}\n{l1}:")


def setflags(g, one, *soffs):
    g.a("s_mov_b64 exec, 1")
    for so in soffs: g.a(f"buffer_store_dword v{one}, off, {W}, s{so} sc1")
    g.a("s_mov_b64 exec, -1")


VX, VW, VQ = 1, 2, 3
WB = lambda n: 8 + 4 * (n % 4)
XLO = lambda b, i: 24 + 8 * b + 4 * i
XHI = lambda i: 40 + 4 * (i - 2)
AC = lambda j, i: 48 + (j * 4 + i) * 4


PERM = {True: [8, 9, 10, 11, 0, 1, 2, 3, 12, 4, 5, 6, 7], False: [4, 5, 6, 7, 8, 9, 10, 11, 12, 0, 1, 2, 3]}


def p1_wread(t, j, n):
    slot = (t % 4) * WSLOT
    if j < 12:
        return [f"ds_read_b64_tr_b16 v[{WB(n)+2*w}:{WB(n)+2*w+1}], v{VW} offset:{slot + (j//4)*UNIT + (j%4)*32 + w*256}" for w in range(2)]
    return [f"ds_read_b64_tr_b16 v[{WB(n)+2*w}:{WB(n)+2*w+1}], v{VQ} offset:{slot + w*256}" for w in range(2)]


def p1_xreg(par, i):
    return XLO(par % 2, i) if i < 2 else XHI(i)


def p1_xread(t, i, par, vx=VX):
    return f"ds_read_b128 {vr(p1_xreg(par,i))}, v{vx} offset:{(i>>1)*UNIT + (i&1)*512 + (t%2)*64}"


def pass_order(nt):
    s = [(0, 0), (0, 1), (1, 1), (1, 0), (1, 2), (1, 3), (0, 3), (0, 2)]
    for j in range(2, nt - 2):
        s += [(j, i) for i in ([2, 3, 0, 1] if j % 2 == 0 else [1, 0, 3, 2])]
    u, v = nt - 2, nt - 1
    return s + [(u, 2), (u, 3), (v, 3), (v, 2), (v, 1), (v, 0), (u, 0), (u, 1)]


def p1_mfma(kv, tile, i, wreg, xreg):
    return mfma(AC(tile, i), xreg, wreg) if (kv and tile < 8) else mfma(AC(tile, i), wreg, xreg)


Q0 = [('W', 0, 0), ('W', 0, 0), ('X', 0, 0), ('X', 0, 1), ('W', 0, 1), ('W', 0, 1), ('X', 0, 2), ('X', 0, 3)]


def p1_loop(g, kv):
    a = g.a
    P = PERM[kv]
    L = g.lab("p1")
    seq = []
    for t in range(4):
        s = pass_order(13)
        post = [[] for _ in s]
        rd = lambda j, tt=t: [('W', tt, j, x) for x in p1_wread(tt, P[j], 13 * tt + j)]
        r = rd(2); post[0].append(r[0]); post[1].append(r[1])
        r = rd(3); post[2].append(r[0]); post[3].append(r[1])
        r = rd(4); post[8].append(r[0]); post[9].append(r[1])
        r = rd(5); post[10].append(r[0]); post[11].append(r[1])
        for j in range(3, 10):
            base = 8 + (j - 2) * 4
            r = rd(j + 3); post[base].append(r[0]); post[base + 1].append(r[1])
        b10 = 40
        if t % 2 == 1:
            post[b10 - 2].append(('S', f"s_add_u32 s46, s46, {XSLOT}"))
            post[b10 - 2].append(('S', f"s_cmp_eq_u32 s46, {XRING}"))
            post[b10 - 1].append(('S', f"s_cselect_b32 s47, s48, s49"))
            post[b10 - 1].append(('S', f"s_cselect_b32 s46, 0, s46"))
            post[b10].append(('S', f"v_add_u32 v{VX}, s47, v{VX}"))
        post[b10 + 2].append(('BAR',))
        tn = t + 1
        r0, r1 = rd(0, tn), rd(1, tn)
        post[b10 + 3] += [r0[0], r0[1]]
        post[44] += [('X', tn, 0, p1_xread(tn, 0, tn)), ('X', tn, 1, p1_xread(tn, 1, tn))]
        post[45] += [r1[0]]
        post[46] += [r1[1]]
        post[47] += [('X', tn, 2, p1_xread(tn, 2, tn))]
        post[48] += [('X', tn, 3, p1_xread(tn, 3, tn))]
        if t == 3:
            post[49].append(('S', "s_sub_u32 s45, s45, 1"))
            post[50].append(('S', "s_cmp_lg_u32 s45, 0"))
        for (j, i), p in zip(s, post):
            seq.append(((t, j, i), p))
    for x in p1_wread(0, P[0], 0): a(x)
    a(p1_xread(0, 0, 0)); a(p1_xread(0, 1, 0))
    for x in p1_wread(0, P[1], 1): a(x)
    a(p1_xread(0, 2, 0)); a(p1_xread(0, 3, 0))
    q = list(Q0)
    a(f".p2align 6\n{L}:")
    for (t, j, i), p in seq:
        need = [k for k, e in enumerate(q) if e == ('W', t, j) or e == ('X', t, i)]
        if need:
            k = max(need)
            a(f"s_waitcnt lgkmcnt({len(q)-1-k})")
            q = q[k + 1:]
        a(p1_mfma(kv, P[j], i, WB(13 * t + j), p1_xreg(t, i)))
        for e in p:
            if e[0] == 'S':
                a(e[1])
            elif e[0] == 'BAR':
                a("s_waitcnt lgkmcnt(0)\ns_barrier"); q = []
            else:
                a(e[3]); q.append((e[0], e[1] % 4, e[2]))
    assert q == Q0
    a(f"s_cbranch_scc1 {L}")


def p1_tail(g, kv, extra, extra2, flag):
    a = g.a
    P = PERM[kv]
    auto = g.o['pol'] is None
    if auto: a(f"v_mov_b32 v5, {LDS_SEL}\nds_read_b32 v6, v5")
    a(f"v_add_u32 v5, {(-2*XSLOT) & 0xffffffff}, v{VX}")
    if auto: extra = ["v_xor_b32 v7, v6, v7", "v_mov_b32 v6, 1"] + extra
    passes = [(t, grp) for grp in (P[:4], P[4:9], P[9:]) for t in range(28, 32)]
    M = []; start = []; n0 = 0; last = {}
    reads = []
    for p, (t, tiles) in enumerate(passes):
        start.append(len(M))
        o = pass_order(len(tiles))
        base = len(M)
        for j, tile in enumerate(tiles):
            first = base + min(k for k, e in enumerate(o) if e[0] == j)
            if not (p == 0 and j < 2):
                for x in p1_wread(t, tile, n0 + j):
                    reads.append(dict(key=('W', p, j), text=x, after=last.get(WB(n0 + j), -1), first=first, t=t))
            last[WB(n0 + j)] = base + max(k for k, e in enumerate(o) if e[0] == j)
        for i in range(4):
            first = base + min(k for k, e in enumerate(o) if e[1] == i)
            if p > 0:
                reads.append(dict(key=('X', p, i), text=p1_xread(t, i, p, VX if t < 30 else 5), after=max(last.get(p1_xreg(p, i), -1), first - 14), first=first, t=t))
            last[p1_xreg(p, i)] = base + max(k for k, e in enumerate(o) if e[1] == i)
        for (j, i) in o:
            M.append((p, j, i, p1_mfma(kv, tiles[j], i, WB(n0 + j), p1_xreg(p, i))))
        n0 += len(tiles)
    V1, V2 = start[1] + 3, start[2] + 5
    R1, R2 = start[10] - 3, len(M) - 5
    for r in reads:
        if r['t'] == 30: r['after'] = max(r['after'], V1)
        if r['t'] == 31: r['after'] = max(r['after'], V2)
    reads.sort(key=lambda r: r['first'])
    q = list(Q0) + ([('S', 0, 0)] if auto else []); since = 0; nst2 = 0; held = []; nexts = 0; first = True
    dens = g.o.get('tdens', 3)
    def wait(pred):
        nonlocal q
        need = [k for k, e in enumerate(q) if pred(e)]
        if need:
            a(f"s_waitcnt lgkmcnt({len(q)-1-max(need)})"); q = q[max(need) + 1:]
            return 1
        return 0
    for k, (p, j, i, txt) in enumerate(M):
        assert not [r for r in reads if r['first'] <= k], "read scheduled too late"
        w = wait(lambda e: e == ('W', p, j) or e == ('X', p, i))
        a(txt); since += 1 + w
        used = 0
        if k in (V1, V2): a("s_barrier"); used += 1
        if k in (R1, R2):
            lim = 9 if k == R1 else 11
            assert not [r for r in reads if r['key'][1] <= lim]
            used += 1 + wait(lambda e: e[1] <= lim); a("s_barrier")
        nr = 0
        while used < 2:
            c = [r for r in reads if r['after'] <= k]
            if not c or (nr and c[0]['first'] - k > 9): break
            a(c[0]['text']); q.append(c[0]['key']); reads.remove(c[0]); used += 1; nr += 1
        since += used
        if held and k >= nexts:
            a(held.pop(0)); used += 2; nexts = k + g.o['s1sp']; nst2 = 0
        if k == start[8] + g.o.get('fpos', 10):
            assert not held
            a(f"s_waitcnt vmcnt({nst2})\n" + flag); used += 2
        if k == start[8] + 3:
            assert not extra
            extra = extra2; dens = g.o.get('tdens2', 3); first = False
        if k >= start[4] + 3:
            while used < dens and extra:
                if extra[0] is None: break
                x = extra.pop(0)
                if first and x.startswith("s_add_u32 s56"): sadd = x; continue
                if first and x.startswith("buffer_store"): held.append(sadd + "\n" + x); continue
                a(x); used += 2 if x.startswith("v_exp") else 1
                if x.startswith("buffer_store"): nst2 += 1
    return extra


def h_cvt(d, a0, a1):
    src = [a0, a0 + 2] + ([a1, a1 + 2] if a1 is not None else [])
    return [f"v_cvt_pk_bf16_f32 v{d+r}, v{x}, v{x+1}" for r, x in enumerate(src)] + [f"v_pk_max_i16 v{d+r}, v{d+r}, 0" for r in range(len(src))]


HF = ['sc1', 'sc1']
def h_line_store(j0, soff):
    o = []
    for i in (2, 3, 0, 1):
        o.append(f"s_add_u32 s56, s{soff}, {MT(i)}")
        for p in range(2):
            d = AC(j0 + 2 * p, i)
            o += h_cvt(d, d, AC(j0 + 2 * p + 1, i))
            o.append(f"buffer_store_dwordx4 {vr(d)}, v7, {W}, s56 offen offset:{p*2048} {HF[0]}")
    return o


def phi_regs(regs, tmp, pk=False):
    if pk:
        o = [f"v_pk_mul_f32 v[{tmp+k}:{tmp+k+1}], v[{regs[k]}:{regs[k]+1}], s[50:51] op_sel_hi:[1,0]" for k in range(0, 8, 2)]
        for k, r in enumerate(regs): o += [f"v_exp_f32 v{tmp+k}, v{tmp+k} clamp", f"v_max_f32 v{r}, s51, v{r}"]
        return o + [f"v_pk_add_f32 v[{regs[k]}:{regs[k]+1}], v[{regs[k]}:{regs[k]+1}], v[{tmp+k}:{tmp+k+1}]" for k in range(0, 8, 2)]
    o = [f"v_mul_f32 v{tmp+k}, s50, v{r}" for k, r in enumerate(regs)]
    for k, r in enumerate(regs): o += [f"v_exp_f32 v{tmp+k}, v{tmp+k} clamp", f"v_max_f32 v{r}, s51, v{r}"]
    return o + [f"v_add_f32 v{r}, v{r}, v{tmp+k}" for k, r in enumerate(regs)]


def pack8(d, e):
    return [f"v_cvt_pk_bf16_f32 v{d}, v{d}, v{d+1}", f"v_cvt_pk_bf16_f32 v{d+1}, v{d+2}, v{d+3}",
            f"v_cvt_pk_bf16_f32 v{d+2}, v{e}, v{e+1}", f"v_cvt_pk_bf16_f32 v{d+3}, v{e+2}, v{e+3}"]


def flagops(one, *soffs):
    return "s_mov_b64 exec, 1\n" + "".join(f"buffer_store_dword v{one}, off, {W}, s{so} sc1\n" for so in soffs) + "s_mov_b64 exec, -1"


VA0, VW2, VA1, VWD = 1, 2, 3, 5
ORD = ORD1 + ORD2
AB = lambda u, i: (24, 112, 96, 72)[u % 4] + 4 * i
ACC = lambda j, i: 128 + (j * 4 + i) * 4
JORD = [4, 5, 6, 7, 0, 1, 2, 3]
NS = 12
ND = 8
ADP = [72, 80, ACC(5, 2), ACC(7, 2), ACC(4, 2), ACC(6, 2), ACC(1, 2), ACC(3, 2), ACC(0, 2), ACC(2, 2), 8, 16, 24, 32, 112, 120]
WD = lambda k: 40 + 4 * k
PQ = lambda i, h: AC(2 * h, i)
PP = lambda p, f: ((96, 104), (ACC(4, 0), ACC(6, 0)), (ACC(5, 0), ACC(7, 0)))[p - 1][f >> 1] + 4 * (f & 1)
VFL, VPO, GG, VOUT, SEL0 = 2, 3, 94, 4, 88
slot2 = lambda m: ((m + 2) % NSL) * P2SLOT


def ord_table(g, lo, tmp=None):
    pk = lambda o: sum(x << (4 * k) for k, x in enumerate(o))
    g.a(f"s_mov_b32 s{lo}, {hex(pk(ORD) & 0xffffffff)}\ns_mov_b32 s{lo+1}, {hex(pk(ORD) >> 32)}")
    for t8, own in {1: (1,), 2: (2, 3), 3: (4, 5), 4: (7,), 5: (8,), 6: (9, 10), 7: (11, 12)}.items():
        o = list(own) + [x for x in ORD if x not in own]
        g.a(f"s_cmp_eq_u32 s{S_CB}, {t8 ^ g.o['cbx']}\ns_cselect_b32 s{lo}, {hex(pk(o) & 0xffffffff)}, s{lo}\ns_cselect_b32 s{lo+1}, {hex(pk(o) >> 32)}, s{lo+1}")


def line_ops(n):
    return [f"s_bfe_u32 s54, s{4+n//8}, {hex((4<<16) | (4*(n%8)))}", "s_lshl_b32 s54, s54, 17", "s_add_u32 s54, s54, s46", "s_add_u32 s53, s54, 4096"]


def c_wread(n):
    u, j = n // 8, JORD[n % 8]
    return [(('W', n), f"ds_read_b64_tr_b16 v[{WB(n)+2*w}:{WB(n)+2*w+1}], v{VW2} offset:{((j>>2)*2+(u&1))*UNIT + (j&3)*32 + w*256}") for w in range(2)]


def c_loads(u, vm):
    o = []
    if u % 2 == 0: o += line_ops(u // 2)
    for i in range(4):
        o.append((f"buffer_load_dwordx4 {vr(AB(u,i))}, v{VA1 if i>>1 else VA0}, {W}, s{53 if i&1 else 54} offen offset:{(u&1)*2048} {HF[1]}", vm, ('A', u)))
    return o


def u_base(v):
    return slot2(NS + v % 4) + (2 * UNIT if v % 8 < 4 else 0) if v < 16 else slot2(16 + (v - 16) // 2) + (v & 1) * 2 * UNIT


def u_reads(v):
    return [(('U', v, k >> 1), f"ds_read_b64_tr_b16 v[{WD(k)+2*w}:{WD(k)+2*w+1}], v{VWD} offset:{(k>>2)*UNIT + (k&3)*32 + w*256}") for k in range(8) for w in range(2)]


def u_areg(v, kk, mi):
    if v >= 16: return ADP[2 * (v - 16) + kk] + 4 * mi
    return ((24, 112, 96, 72) if v < 8 else (8, 24, 112, 96))[v % 4] + 8 * kk + 4 * mi


def u_loads(v, vm):
    if v < 16:
        sb, ln = (46, ORD[NS + v % 4]) if v % 4 < 2 else (45, ND + v % 2)
        o = [f"s_add_u32 s54, s{sb}, {ln<<17}", f"s_add_u32 s53, s{sb}, {(ln<<17)+4096}"]
    else: o = [f"s_mov_b32 s54, {OREG+((v-16)<<17)}", f"s_mov_b32 s53, {OREG+((v-16)<<17)+4096}"]
    for kk in range(2):
        for mi in range(2): o.append((f"buffer_load_dwordx4 {vr(u_areg(v,kk,mi))}, v{VA1 if v < 8 else VA0}, {W}, s{54-mi} offen offset:{kk*2048} {HF[1] if v < 16 and v % 4 < 2 else 'sc1'}", vm, ('B', v, kk)))
    return o


class Stage:
    def __init__(self, g, q, extra, dens):
        self.g = g; self.q = list(q); self.extra = extra; self.dens = dens; self.carry = 0
    def a(self, x):
        self.g.a(x); self.g.st['since'] += 1
    def wait(self, key):
        need = [k for k, e in enumerate(self.q) if key is None or e == key]
        if need:
            n = min(14, len(self.q) - 1 - max(need))
            self.a(f"s_waitcnt lgkmcnt({n})"); self.q = self.q[len(self.q) - n:]
    def read(self, r):
        self.a(r[1]); self.q.append(r[0])
    def op(self, x):
        if isinstance(x, tuple): x[1].op(x[0], x[2]); self.g.st['since'] += 1
        else: self.a(x)
    def fill(self, used):
        ex, st = self.extra, self.g.st
        while used < self.dens and ex:
            if isinstance(ex[0], int):
                if st['since'] >= ex[0]: ex.pop(0); continue
                return
            if ex[0] == 'XW':
                if 'x' in self.q: return
                ex.pop(0); continue
            x = ex.pop(0)
            if callable(x): x(); used += 2; st['since'] = 0; continue
            if isinstance(x, tuple): x[1].op(x[0], x[2]); x = x[0]
            else: self.g.a(x)
            if x.startswith("ds_"): self.q.append('x')
            st['since'] = 0
            used = 0 if x.startswith("v_mfma") else used + (2 if x.startswith(("v_exp", "v_rcp")) else 1)


def c_slab(g, u, vm, q, extra=None, dens=2, own=False):
    S = Stage(g, q, extra, dens)
    UL = 2 * NS - 1
    ld = c_loads(u + 3, vm) if u + 3 <= UL else u_loads(u + 2 - UL, vm)
    dr = u_reads(0) if u == UL else []
    if u == 0: ld = [] if own else c_loads(2, vm) + ld
    ab = (lambda i: 40 + 16 * (u - 2) + 4 * i) if own and u in (2, 3) else (lambda i: AB(u, i))
    late = own and u == 1
    vm.wait(('A', u))
    for jj in range(8):
        n = 8 * u + jj
        R = c_wread(n + 3) if n + 3 < 16 * NS else []
        for k, i in enumerate(range(4) if jj % 2 == 0 else range(3, -1, -1)):
            S.wait(('W', n))
            S.a(mfma(ACC(JORD[jj], i), WB(n), ab(i), "0" if u == 0 else None))
            used = 1 if k == 3 else 0
            if R: S.read(R.pop(0)); used += 1
            if u % 2 == 1 and u < UL and jj == 4 and k == 2:
                S.a(f"v_add_u32 v{VW2}, {(slot2(u//2+1)-slot2(u//2)) & 0xffffffff}, v{VW2}"); used += 1
                if u // 2 + 1 not in g.o['sk']: S.a("s_barrier"); used = 2
            elif u == UL and jj == 1 and k == 2:
                S.a(f"v_add_u32 v{VWD}, {(u_base(0)-slot2(NS-1)) & 0xffffffff}, v{VW2}"); S.a("s_barrier"); used = 2
            elif dr and jj >= 2 and used < 2 and (k >= 2 or jj >= 5):
                S.read(dr.pop(0)); used += 1
            if ld and used < 2 and (((jj >= 5 and k in (1, 2)) if late else k in (1, 2) if u == 0 else (k == 2 and (jj % 2 == g.o['aspread'] - 1 or not g.o['aspread'] or (u % 2 == 1 and jj == 5))) if u < UL else (jj >= 2 and k < 2)) or isinstance(ld[0], str)):
                S.op(ld.pop(0)); used += 1
            S.fill(used)
    assert not ld and not dr
    return S.q


def unit(g, v, vm, q, extra, dens=2):
    S = Stage(g, q, extra, dens)
    R = u_reads(v + 1) if v < 15 + ND else []
    t = {0: 3, 2: 8, 5: 9, 6: 10, 7: 11}
    for n, w in enumerate(g.o['dld']):
        assert w >= (8, 8, 8, 10, 12, 13, 14, 15)[n]
        t[w] = 16 + n
    t = t.get(v)
    ld = u_loads(t, vm) if t is not None else []
    m = 0
    for k in range(8):
        if k % 4 == 0: vm.wait(('B', v, k >> 2))
        for mi in ((0, 1) if k % 2 == 0 else (1, 0)):
            S.wait(('U', v, k >> 1))
            acc = ACC((4 if v % 8 < 4 else 0) + (k & 3), mi + (2 if v < 8 else 0)) if v < 16 else ACC(k & 3, mi)
            S.a(mfma(acc, WD(k), u_areg(v, k >> 2, mi)))
            used = 1 if m % 4 == 3 else 0
            if R and m == 0:
                S.a(f"v_add_u32 v{VWD}, {(u_base(v+1)-u_base(v)) & 0xffffffff}, v{VWD}"); used += 1
                if v in (3, 12, g.o['r1']): S.a("s_barrier"); used += 1
            elif R:
                S.read(R.pop(0)); used += 1
                if m == 15: S.read(R.pop(0))
            if ld and m in (1, 2, 4, 6, 9, 13):
                S.op(ld.pop(0)); used += 1
            S.fill(used)
            m += 1
    assert not R and not ld
    return S.q


def spaced(lst, n):
    o = []
    for x in lst: o += [x, n]
    return o


def strs(ex):
    return [x for x in ex if not isinstance(x, int)]


def compute(g):
    a = g.a
    a("L_compute:")
    a("v_and_b32 v4, 15, v0\nv_lshrrev_b32 v5, 4, v0")
    a("v_bfe_u32 v6, v4, 3, 1\nv_bfe_u32 v7, v4, 1, 1\nv_lshl_add_u32 v6, v6, 1, v7")
    a(f"v_mul_u32_u24 v{VX}, {BLK}, v6")
    a("v_bfe_u32 v6, v4, 2, 1\nv_and_b32 v7, 1, v4\nv_lshl_add_u32 v6, v6, 1, v7")
    a(f"v_lshl_add_u32 v{VX}, v6, 7, v{VX}\nv_lshl_add_u32 v{VX}, v5, 4, v{VX}")
    a(f"s_mul_i32 s45, s{S_WAVE}, {2*UNIT}\nv_add_u32 v{VX}, s45, v{VX}")
    a("v_and_b32 v6, 1, v5\nv_bfe_u32 v7, v4, 3, 1\nv_lshl_add_u32 v6, v6, 1, v7")
    a(f"v_mul_u32_u24 v{VW}, {BLK}, v6")
    a("v_lshrrev_b32 v6, 1, v5\nv_bfe_u32 v7, v4, 2, 1\nv_lshl_add_u32 v6, v6, 2, v7")
    a(f"v_lshl_add_u32 v{VW}, v6, 7, v{VW}\nv_and_b32 v6, 3, v4\nv_lshl_add_u32 v{VW}, v6, 3, v{VW}")
    a(f"v_add_u32 v{VW}, {WBASE}, v{VW}")
    a(f"v_lshrrev_b32 v6, 5, v0\nv_and_b32 v7, 31, v0\nv_lshlrev_b32 v7, 3, v7\nv_lshl_add_u32 v{VQ}, v6, 9, v7")
    a(f"v_add_u32 v{VQ}, {WBASE+3*UNIT}, v{VQ}")
    for r in range(48, 256): a(f"v_mov_b32 v{r}, 0")
    a(f"s_mov_b32 s45, 7\ns_mov_b32 s46, 0\ns_mov_b32 s48, {(-2*XSLOT) & 0xffffffff}\ns_mov_b32 s49, {XSLOT}")
    a("s_mov_b32 s50, 0x3fb8aa3b\ns_mov_b32 s51, 0x358637bd")
    a(f"s_and_b32 s52, s{S_MB8}, 3\ns_lshl_b32 s52, s52, 21\ns_lshl_b32 s53, s{S_WAVE}, 15\ns_add_u32 s52, s52, s53")
    a(f"s_and_b32 s53, s{S_QD}, 1\ns_mul_i32 s53, s53, 7\ns_lshl_b32 s55, s32, 6\ns_add_u32 s53, s53, s55")
    a(f"s_add_u32 s66, s53, 6\ns_lshl_b32 s66, s66, 17\ns_add_u32 s66, s66, s52")
    a(f"s_lshr_b32 s55, s{S_C}, 1\ns_lshl_b32 s55, s55, 11\ns_add_u32 s66, s66, s55")
    a(f"s_and_b32 s55, s{S_C}, 1\ns_lshl_b32 s55, s55, 10\ns_add_u32 s66, s66, s55")
    a("s_add_u32 s67, s66, 16384")
    a(f"s_lshr_b32 s57, s{S_WAVE}, 1\ns_and_b32 s58, s{S_WAVE}, 1")
    a(f"s_lshl_b32 s59, s2, 11\ns_lshl_b32 s55, s{S_WAVE}, 7\ns_add_u32 s59, s59, s55\ns_add_u32 s59, s59, {WS_FLAG}")
    a(f"s_add_u32 s60, s59, {F_H2}\ns_add_u32 s61, s59, {F_X}")
    a("v_lshlrev_b32 v4, 4, v0\nv_mov_b32 v6, 1")
    lane_goodcol(g, 7, 5)
    a("s_waitcnt lgkmcnt(0)")
    srd(g, SRD_WS, 26, 0x10000000)
    ord_table(g, 4)
    a(f"s_lshl_b32 s6, s{S_RH}, 14\ns_xor_b32 s7, s6, 16384\ns_add_u32 s6, s6, s52\ns_add_u32 s7, s7, s52\ns_lshl_b32 s8, s32, 23\ns_lshl_b32 s9, s32, 18\ns_add_u32 s9, s9, {OREG}")
    a(f"s_lshl_b32 s16, s{S_WAVE}, 13\ns_lshl_b32 s17, s{S_WAVE}, 10\ns_add_u32 s17, s17, {P2END}")
    if g.o.get('prio'): a(f"s_setprio {g.o['prio']}")
    a("s_barrier")
    g.stamp(1)

    def em(lst):
        for x in lst: a(x)
    def p2_setup():
        a(f"v_add_u32 v{VA0}, s6, v7\nv_add_u32 v{VA1}, s7, v7\ns_mov_b32 s46, s8\ns_mov_b32 s45, s9\nv_add_u32 v{VW2}, {(slot2(0)-WBASE) & 0xffffffff}, v{VW2}")
    def moves(dst, tile):
        l0, l1 = g.lab("mv"), g.lab("mv")
        f = lambda x: "\n".join(f"v_mov_b64 v[{d+4*i+r}:{d+4*i+r+1}], v[{AC(t,i^x)+r}:{AC(t,i^x)+r+1}]" for d, t in zip(dst, tile) for i in range(4) for r in (0, 2))
        return [f"s_cmp_lg_u32 s{S_RH}, 0\ns_cbranch_scc1 {l0}\n{f(0)}\ns_branch {l1}\n{l0}:\n{f(2)}\n{l1}:"]
    def c_begin(vm, mv=()):
        g.stamp(4)
        a("s_waitcnt lgkmcnt(0)")
        em(mv)
        a("s_barrier")
        g.stamp(5)
        R = c_wread(0) + c_wread(1) + c_wread(2)
        for _, x in R: a(x)
        return [k for k, _ in R]
    def flag_ex(vm, tag, so):
        return lambda: (vm.wait(tag), a(flagops(6, so)), vm.mark('f', 1))
    def quarter(tmp):
        o = [f"v_bfe_u32 v{VQ}, v0, 4, 1", f"v_mul_u32_u24 v{VQ}, 3584, v{VQ}", f"v_lshrrev_b32 v{tmp}, 5, v0", f"v_lshlrev_b32 v{tmp}, 9, v{tmp}",
             f"v_sub_u32 v{VQ}, v{VQ}, v{tmp}", f"v_add_u32 v{VQ}, v{VQ}, v7"]
        for p in (1, 0):
            d = AC(12, 2 * p)
            o += h_cvt(d, d, d + 4)
        for p in (1, 0):
            d = AC(12, 2 * p)
            o += [f"s_nop 1\nv_permlane16_swap_b32 v{d}, v{d+2}", f"v_permlane16_swap_b32 v{d+1}, v{d+3}",
                  f"buffer_store_dwordx4 {vr(d)}, v{VQ}, {W}, s{66+p} offen {HF[0]}"]
        return o

    a(f"s_cmp_ge_u32 s{S_C}, 2\ns_cbranch_scc1 L_cq")
    a(f"s_add_u32 s55, s53, s{S_C}\ns_lshl_b32 s55, s55, 17\ns_add_u32 s55, s55, s52")
    p1_loop(g, True)
    SEL = lambda t: 224 + 4 * t
    T = lambda t: (176 + 4 * t) if t < 4 else (240 + 4 * (t - 4)) if t < 8 else 204
    ex2 = ["v_and_b32 v201, 3, v0", "v_mov_b32 v202, 0x3f803f80"]
    for t in range(4):
        ex2 += [f"v_cmp_eq_u32 vcc, {t}, v201\ns_nop 1\nv_cndmask_b32 v{SEL(t)}, 0, v202, vcc"] + [f"v_mov_b32 v{SEL(t)+r}, v{SEL(t)}" for r in (1, 2, 3)]
    ex2 += quarter(200)
    for s_ in range(4):
        for p in range(2):
            ex2 += phi_regs(list(range(AC(s_, 2 * p), AC(s_, 2 * p) + 8)), 192, 2 * s_ + p >= g.o.get('pk0', 2)) + pack8(AC(s_, 2 * p), AC(s_, 2 * p + 1))
        if s_ == 1: ex2.append(None)
    rest = p1_tail(g, True, h_line_store(8, 55), ex2, flagops(6, 59))
    g.stamp(2)
    k = rest.index(None)
    em(rest[:k]); rest = rest[k + 1:]
    em(moves((24,), (8,)))
    for s_ in range(4, 8):
        for p in (1, 0): em(pack8(AC(s_, 2 * p), AC(s_, 2 * p + 1)))
    def kv_mfmas(h):
        o = []
        for p in range(2):
            for dt in range(2):
                for e in range(2): o.append(mfma(T((h * 2 + e) * 2 + dt), AC(2 * h + dt, 2 * p), AC(4 + 2 * h + e, 2 * p), "0" if p == 0 else None))
                o.append(mfma(T(8), AC(2 * h + dt, 2 * p), SEL(2 * h + dt), "0" if (h, p, dt) == (0, 0, 0) else None))
        return o
    wr = lambda t: f"ds_write_b128 v5, {vr(T(t))} offset:{t*1024}"
    a("v_add_u32 v5, s16, v4\ns_waitcnt vmcnt(0)")
    a(flagops(6, *((60,) if g.o['fpos'] < 64 else (59, 60))))
    for x in kv_mfmas(0):
        a(x); em(rest[:3]); rest = rest[3:]
    vm = VM(a)
    for t in range(4): em(rest[:10]); rest = rest[10:]; a(wr(t))
    em(moves((112,), (10,))); em(rest)
    a("s_nop 1")
    em(kv_mfmas(1))
    p2_setup()
    a("v_add_u32 v88, s17, v4\ns_nop 0")
    for t in (4, 6, 5, 7): a(wr(t))
    a(f"ds_write_b128 v88, {vr(T(8))}")
    g.stamp(3)
    q = c_begin(vm)
    JU = g.o['ju']
    for u in range(JU): q = c_slab(g, u, vm, q)
    qj, vj = list(q), list(vm.q)
    a("s_branch L_c2join")
    a("L_cq:")
    a(f"s_lshl_b32 s55, s{S_C}, 1\ns_add_u32 s55, s55, s53\ns_sub_u32 s55, s55, 2\ns_lshl_b32 s55, s55, 17\ns_add_u32 s55, s55, s52")
    a("s_add_u32 s62, s55, 0x20000")
    p1_loop(g, False)
    b2 = quarter(AC(5, 0)) + [x for x in h_line_store(8, 62) if x.startswith("v_")]
    mv = moves((40, 56), (8, 10))
    late2 = [f"buffer_store_dwordx4 {vr(40+16*p+4*i)}, v{VA1 if i>>1 else VA0}, {W}, s{63 if i&1 else 62} offen offset:{p*2048} {HF[0]}" for p in range(2) for i in range(4)]
    em(p1_tail(g, False, h_line_store(4, 55), b2, flagops(6, 59)))
    g.stamp(2)
    vm = VM(a, ['h2'])
    hand_q = []
    for h in range(2):
        for i in (2, 3, 0, 1): hand_q.append(pack8(AC(2 * h, i), AC(2 * h + 1, i)) + [f"ds_write_b128 v5, {vr(PQ(i,h))} offset:{(i*2+h)*1024}"])
    a(f"s_lshl_b32 s55, s{S_WAVE}, 13\nv_add_u32 v5, s55, v4")
    phg = g.o.get('phig', 4)
    for x in hand_q: em(x)
    p2_setup()
    a("s_sub_u32 s62, s62, s52\ns_add_u32 s63, s62, 4096")
    em(moves((24, 112), (4, 6)))
    g.stamp(3)
    q = c_begin(vm, mv)
    ex = []
    for x in late2: ex += [(x, vm, 'h2'), g.o['st2sp']]
    k = JU - (2 if late2 else JU)
    for u in range(JU):
        if u == k + 1:
            assert not strs(ex)
            ex = [60 if late2 else 0, flag_ex(vm, 'h2', 60)]
        q = c_slab(g, u, vm, q, ex, own=True)
    qq = [x for x in vm.q if x not in ('f', 'h2')]
    assert not ex and q == qj and qq == vj[len(vj) - len(qq):]
    a("L_c2join:")
    vm.q = list(vj)
    pre = (inbox(68, 56, S_WAVE) +
           "".join(f"s_xor_b32 s{61+p}, s68, {hex(p<<18)}\ns_add_u32 s{61+p}, s{61+p}, {WS_PART+((p-1)<<16)}\ns_add_u32 s{64+p}, s{61+p}, 4096\n" for p in (1, 2, 3)) +
           f"s_add_u32 s59, s59, {F_P}\ns_lshl_b32 s68, s{S_WAVE}, 12\ns_add_u32 s68, s68, {P2END}\n"
           f"s_add_u32 s69, s{S_WAVE}, {NS+2}\ns_and_b32 s69, s69, {NSL-1}\ns_mul_i32 s69, s69, {P2SLOT}\ns_add_u32 s69, s69, {2*UNIT}\n"
           f"s_mov_b32 s28, s18\ns_mov_b32 s29, s19\ns_mov_b32 s30, {hex(2048*1024*2)}\ns_mov_b32 s31, 0x20000\n"
           f"s_lshl_b32 s55, s{S_MB8}, 2\ns_add_u32 s55, s55, s{S_WAVE}\ns_lshl_b32 s55, s55, 17\ns_lshl_b32 s56, s{S_RH}, 16\ns_add_u32 s55, s55, s56\n"
           f"s_lshl_b32 s56, s{S_CB}, 8\ns_add_u32 s55, s55, s56\ns_lshl_b32 s56, s{S_KH}, 7\ns_add_u32 s55, s55, s56\n"
           f"s_lshl_b32 s50, s{S_WAVE}, 1\ns_add_u32 s50, s50, s{S_RH}\ns_lshl_b32 s50, s50, 7\ns_add_u32 s50, s50, {LDS_G}\n"
           f"v_and_b32 v{SEL0+6}, 15, v0\nv_lshrrev_b32 v{SEL0+7}, 4, v0\nv_lshlrev_b32 v{SEL0+7}, 2, v{SEL0+7}\nv_sub_u32 v{SEL0+6}, v{SEL0+6}, v{SEL0+7}\n"
           f"v_and_b32 v{SEL0+7}, 1, v0\nv_lshlrev_b32 v{SEL0+7}, 4, v{SEL0+7}\nv_mov_b32 v{SEL0}, 0x3f80\nv_lshlrev_b32 v{SEL0+7}, v{SEL0+7}, v{SEL0}\nv_lshrrev_b32 v{SEL0+6}, 1, v{SEL0+6}").split("\n")
    pre += [f"v_cmp_eq_u32 vcc, {k}, v{SEL0+6}\ns_nop 1\nv_cndmask_b32 v{SEL0+2+k}, 0, v{SEL0+7}, vcc" for k in range(2)]
    pre += [f"v_mov_b32 v{SEL0+r}, 0" for r in (0, 1, 4, 5)]
    ex = pre
    for u in range(JU, 2 * NS): q = c_slab(g, u, vm, q, ex)
    def send(p, sp, mi):
        j, i = 4 * (p >> 1) + 2 * sp, 2 * (p & 1) + mi
        return pack8(ACC(j, i), ACC(j + 1, i)) + [(f"buffer_store_dwordx4 {vr(ACC(j,i))}, v7, {W}, s{61+p+3*mi} offen offset:{sp*2048} sc1", vm, ('ps', p))]
    def rdp(p):
        return [f"ds_read_b128 {vr(PP(p,f))}, v{VFL if p == 3 else VPO} offset:{(4096 if p == 2 else 0)+f*1024}" for f in range(4)]
    def addp(p):
        return [mfma(ACC(2 * sp + t, mi), SEL0 + 2 - 2 * t, PP(p, mi * 2 + sp)) for mi in range(2) for sp in range(2) for t in range(2)]
    XF = g.o['xf']
    PO = (3, 1, 2)
    for v in range(17 + ND):
        if v == 1:
            assert not ex
            ex += (f"v_add_u32 v{VFL}, s68, v4\nv_add_u32 v{VPO}, s69, v4\nv_and_b32 v{VOUT}, 15, v0\nv_lshl_add_u32 v{GG}, v{VOUT}, 2, s50\n"
                   f"v_lshlrev_b32 v{VOUT}, 11, v{VOUT}\nv_bfe_u32 v{GG+1}, v0, 4, 1\nv_lshl_add_u32 v{VOUT}, v{GG+1}, 5, v{VOUT}\n"
                   f"v_lshrrev_b32 v{GG+1}, 5, v0\nv_lshl_add_u32 v{VOUT}, v{GG+1}, 4, v{VOUT}\n"
                   f"ds_read_b32 v{GG+1}, v{GG} offset:64\nds_read_b32 v{GG}, v{GG}").split("\n")
            ex += ['XW', f"v_add_f32 v{GG}, 1.0, v{GG}", f"v_add_f32 v{GG+1}, 1.0, v{GG+1}", f"v_rcp_f32 v{GG}, v{GG}", f"v_rcp_f32 v{GG+1}, v{GG+1}"]
        if 4 <= v < 16:
            if v % 4 == 0:
                snd = [send(PO[v // 4 - 1], sp, mi) for sp in range(2) for mi in range(2)]
                g.st['since'] = 0; ex.append(6)
            if v >= 12 and g.o.get('fast2', 1):
                if v % 4 < 2: ex += snd[2 * (v % 4)] + snd[2 * (v % 4) + 1]
            elif v % 4 < 2: ex += snd[2 * (v % 4)][:4] + [snd[v % 4][4]] + snd[2 * (v % 4) + 1][:4]
            else: ex += [snd[v % 4][4]]
        if v == 16: g.stamp(6)
        if v in (0, 4, 8, 12, 20): g.stamp({0: 11, 4: 12, 8: 13, 12: 14, 20: 15}[v])
        for r in range(3):
            if v == XF[r]:
                assert v >= (8, 12, 14 if g.o.get('fast2', 1) else 16)[r]
                vm.wait(('ps', PO[r])); a(flagops(6, 59)); vm.mark('f', 1); a(f"v_mov_b32 v6, {r+2}")
        if v == g.o['r1']:
            assert v >= 16 and not ex
            g.st['since'] = 0
            ex += [4] + rdp(3) + rdp(1) + ['XW'] + addp(3) + addp(1)
        if v < 16 + ND: q = unit(g, v, vm, q, ex, dens=g.o.get('ydens', 3) if v < 16 else g.o.get('ddens', 3))
        if 4 <= v < 16: assert not [x for x in ex if (isinstance(x, tuple) and x[2][0] == 'ps') or (isinstance(x, str) and x.startswith("v_cvt"))]
    assert not ex
    a("s_barrier")
    em(rdp(2))
    ad = addp(2)
    for f in range(4): a(f"s_waitcnt lgkmcnt({3-f})"); em(ad[2 * f:2 * f + 2])
    g.stamp(7)
    for mi in range(2):
        for hf in range(2):
            for j in range(2):
                for r in range(0, 4, 2): a(f"v_pk_mul_f32 v[{ACC(2*hf+j,mi)+r}:{ACC(2*hf+j,mi)+r+1}], v[{ACC(2*hf+j,mi)+r}:{ACC(2*hf+j,mi)+r+1}], v[{GG}:{GG+1}] op_sel:[0,{mi}] op_sel_hi:[1,{mi}]")
            d = ACC(2 * hf, mi)
            em(pack8(d, ACC(2 * hf + 1, mi)))
            a(f"s_add_u32 s56, s55, {0x8000*mi + 64*hf}\ns_nop 0\nv_permlane16_swap_b32 v{d}, v{d+2}\nv_permlane16_swap_b32 v{d+1}, v{d+3}")
            a(f"buffer_store_dwordx4 {vr(d)}, v{VOUT}, s[28:31], s56 offen {g.o.get('outflag','')}")
    if g.o['prof']:
        a("s_waitcnt vmcnt(0)")
        g.stamp(8)
    if g.o.get('probe') is not None:
        k = g.o['probe']
        if k == 'xcc':
            k = 0
            a("s_waitcnt lgkmcnt(0)\ns_getreg_b32 s55, hwreg(HW_REG_XCC_ID)\ns_sub_u32 s55, s55, s2\ns_and_b32 s55, s55, 7\ns_mul_i32 s55, s55, 500\ns_add_u32 s70, s70, s55")
        if k == 'min':
            k = 0
            srd(g, 28, 24, 256)
            a("buffer_load_dword v5, off, s[28:31], 0 offset:4 sc1\ns_waitcnt vmcnt(0) lgkmcnt(0)\nv_readfirstlane_b32 s70, v5\ns_nop 3\ns_not_b32 s70, s70")
        a(f"s_waitcnt lgkmcnt(0)\ns_add_u32 s55, s{70+2*k}, 6000\nL_probe:\ns_memrealtime s[56:57]\ns_waitcnt lgkmcnt(0)\ns_sub_u32 s56, s56, s55\ns_cmp_lt_i32 s56, 0\ns_cbranch_scc1 L_probe\ns_endpgm")
    prof_dump(g, 0, 0)
    a("s_endpgm")


def q_call(g, n):
    K1 = g.o['k1']
    k = f"p{n}" if n < len(g.o['pch']) else 4 + n - K1 if K1 <= n <= K1 + g.o['noc'] else None
    if k is None: return
    l = g.lab("qc")
    if n == 0: g.a("s_call_b64 s[84:85], L_qp0"); return
    g.a(f"s_cmp_lt_u32 s{S_C}, 2\ns_cbranch_scc1 {l}\ns_call_b64 s[84:85], L_q{k}\n{l}:")


def q_chunks(g):
    a = g.a
    QR = lambda f: 128 + 4 * f
    def phi(f):
        if g.o.get('nophi'): return
        for r in range(4): a(f"v_lshlrev_b32 v{160+2*r}, 16, v{QR(f)+r}\nv_and_b32 v{161+2*r}, 0xffff0000, v{QR(f)+r}")
        for r in range(8): a(f"v_mul_f32 v{168+r}, 0x3fb8aa3b, v{160+r}")
        for r in range(8): a(f"v_exp_f32 v{168+r}, v{168+r} clamp\nv_max_f32 v{160+r}, 0x358637bd, v{160+r}")
        for r in range(8): a(f"v_add_f32 v{160+r}, v{160+r}, v{168+r}")
        for r in range(4): a(f"v_cvt_pk_bf16_f32 v{QR(f)+r}, v{160+2*r}, v{161+2*r}")
    nf = 0
    assert sum(g.o['pch']) == 8 and len(g.o['pch']) <= g.o['k0']
    a("L_k0:\ns_setprio 2")
    a(f"s_lshl_b32 s82, s86, 11\nv_lshl_add_u32 v224, v0, 4, s82\nv_lshlrev_b32 v225, 4, v0\nv_add_u32 v226, {P2END}, v225")
    for w in range(4):
        for t in range(2): a(f"ds_read_b128 {vr(128+8*w+4*t)}, v224 offset:{w*8192+t*1024}")
    for w in range(4): a(f"ds_read_b128 {vr(160+4*w)}, v226 offset:{w*1024}")
    a(f"s_lshl_b32 s83, s{S_PAIR}, 3\ns_add_u32 s83, s83, s{S_MB8}\ns_mul_i32 s83, s83, 9216\ns_add_u32 s83, s83, {WS_KVP}\ns_add_u32 s82, s82, s83")
    a("s_add_u32 s83, s83, 8192\ns_cmp_eq_u32 s86, 0\ns_cselect_b32 s83, s83, 0x10000000\ns_waitcnt lgkmcnt(4)")
    for r in range(16): a(f"v_add_f32 v{128+r}, v{128+r}, v{144+r}")
    for r in range(8): a(f"v_add_f32 v{128+r}, v{128+r}, v{136+r}")
    for t in range(2): a(f"buffer_store_dwordx4 {vr(128+4*t)}, v225, {W}, s82 offen offset:{t*1024} sc1")
    a("s_waitcnt lgkmcnt(0)")
    for r in range(8): a(f"v_add_f32 v{160+r}, v{160+r}, v{168+r}")
    for r in range(4): a(f"v_add_f32 v{160+r}, v{160+r}, v{164+r}")
    a(f"buffer_store_dwordx4 v[160:163], v225, {W}, s83 offen sc1\ns_setprio 0\ns_setpc_b64 s[84:85]")
    for k in range(len(g.o['pch'])):
        a(f"L_qp{k}:")
        if k == 0: a(f"s_sub_u32 s86, s{S_WAVE}, 4\ns_cmp_lt_u32 s{S_C}, 2\ns_cbranch_scc1 L_k0")
        if g.o.get('pprio'): a(f"s_setprio {g.o['pprio']}")
        if k == 0:
            a(f"s_sub_u32 s86, s{S_WAVE}, 4\ns_lshl_b32 s82, s86, 13\nv_lshl_add_u32 v224, v0, 4, s82")
            for f in range(8): a(f"ds_read_b128 {vr(QR(f))}, v224 offset:{f*1024}")
            a(f"s_lshl_b32 s83, s2, 11\ns_add_u32 s83, s83, {WS_FLAG+F_X}")
            a(f"s_and_b32 s82, s{S_MB8}, 3\ns_lshl_b32 s82, s82, 4\ns_add_u32 s82, s82, s{S_PAIR}\ns_lshl_b32 s82, s82, 2\ns_add_u32 s82, s82, s86\ns_lshl_b32 s82, s82, 15\ns_add_u32 s82, s82, {OREG}")
            a(f"v_lshlrev_b32 v224, 4, v0\nv_add_u32 v224, {P2END}, v224\nv_mov_b32 v226, 0\nds_write_b32 v224, v226 offset:8192\nv_mov_b32 v226, 1\ns_waitcnt lgkmcnt(0)")
        for _ in range(g.o['pch'][k]): phi(nf); nf += 1
        a("s_setpc_b64 s[84:85]")
    noc = g.o['noc']
    tiles = {2: [(0, 1), (2, 3)], 3: [(0,), (1, 2), (3,)], 4: [(0,), (1,), (2,), (3,)]}[noc]
    for k in range(noc):
        a(f"L_q{4+k}:")
        if g.o.get('qprio'): a(f"s_setprio {g.o['qprio']}")
        lane_goodcol(g, 225, 227)
        if k == 0:
            for f in range(6): a(f"ds_read_b128 {vr(176+4*f)}, v224 offset:{f*1024}")
            a(f"s_lshl_b32 s86, s{S_WAVE}, 8\ns_add_u32 s86, s86, {LDS_G-1024}\nv_and_b32 v227, 15, v0\nv_lshl_add_u32 v227, v227, 2, s86")
            for i in range(4): a(f"ds_read_b32 v{228+i}, v227 offset:{i*64}")
            a("s_waitcnt lgkmcnt(0)")
        for i in tiles[k]:
            for h in range(2):
                for e in (2, 0, 1): a(mfma(200 + 12 * h + 4 * e, 176 + 4 * (3 * h + e), QR(2 * i + h), "0"))
            a(f"s_add_u32 s86, s82, {MT(i)}\ns_nop 3")
            for h in range(2):
                t = 200 + 12 * h
                a(f"v_add_f32 v{t+8}, 0x358637bd, v{t+8}\nv_rcp_f32 v{t+8}, v{t+8}\ns_nop 0\nv_mul_f32 v{t+8}, v{228+i}, v{t+8}")
                for r in range(8): a(f"v_mul_f32 v{t+r}, v{t+r}, v{t+8}")
                for r in range(4): a(f"v_cvt_pk_bf16_f32 v{QR(2*i+h)+r}, v{t+2*r}, v{t+2*r+1}")
                a(f"buffer_store_dwordx4 {vr(QR(2*i+h))}, v225, {W}, s86 offen offset:{h*2048} sc1")
        if g.o.get('qprio'): a("s_setprio 0")
        a("s_setpc_b64 s[84:85]")
    a(f"L_q{4+noc}:\ns_waitcnt vmcnt(0)\nds_add_rtn_u32 v227, v224, v226 offset:8192\ns_waitcnt lgkmcnt(0)\nv_cmp_eq_u32 vcc, 3, v227\ns_cbranch_vccz L_qret")
    a(flagops(226, 83) + "\nL_qret:\ns_mov_b64 vcc, -1\ns_setpc_b64 s[84:85]")


def aux_sel(g):
    if g.o['pol'] is None: g.a(f"v_mov_b32 v227, {LDS_SEL}\nds_read_b32 v227, v227\ns_waitcnt lgkmcnt(0)\nv_readfirstlane_b32 s33, v227\ns_nop 1\ns_xor_b32 s{S_SEL}, s{S_SEL}, s33")


def aux_rx(g):
    a = g.a
    a("L_rx:")
    lane_goodcol(g, 225, 227)
    a(f"v_add_u32 v224, 1024, v225\ns_sub_u32 s86, s{S_WAVE}, 4")
    a(inbox(82, 83, 86) + f"s_add_u32 s82, s82, {WS_PART}")
    a(f"s_lshl_b32 s83, s2, 11\ns_lshl_b32 s47, s86, 7\ns_add_u32 s83, s83, s47")
    a(f"s_lshl_b32 s84, s86, 12\ns_add_u32 s84, s84, {P2END}")
    a(f"s_add_u32 s85, s86, {NS+2}\ns_and_b32 s85, s85, {NSL-1}\ns_mul_i32 s85, s85, {P2SLOT}\ns_add_u32 s85, s85, {2*UNIT}")
    a("s_waitcnt vmcnt(0) lgkmcnt(0)\ns_barrier")
    for r, p in enumerate((3, 1, 2)):
        a(f"s_xor_b32 s47, s83, {p<<11}\ns_add_u32 s47, s47, {WS_FLAG+F_P}")
        iss = lambda: a(f"buffer_load_dword v226, off, {W}, s47 sc1")
        if r == 2: a("s_waitcnt vmcnt(0)"); iss(); a("s_barrier")
        else: iss()
        poll_check(g, iss, 226, 1, r + 1, "gt")
        for mi in range(2):
            a(f"s_add_u32 m0, s{84 if p == 3 else 85}, {(4096 if p == 2 else 0)+mi*2048}\ns_add_u32 s47, s82, {((p-1)<<16)+mi*4096}")
            a(f"buffer_load_dwordx4 v225, {W}, s47 offen sc1 lds\nbuffer_load_dwordx4 v224, {W}, s47 offen offset:1024 sc1 lds")
    a("s_waitcnt vmcnt(0)\ns_endpgm")


def loader(g):
    def a(x):
        if not g.o.get('trace'): return g.a(x)
        for ln in x.split("\n"):
            g.a(ln)
            if ln.strip() == "s_barrier":
                g.a(("s_memtime" if g.o['trace'] == 'cyc' else "s_memrealtime") + " s[100:101]\ns_waitcnt lgkmcnt(0)\ns_mov_b32 m0, s44\ns_add_u32 s44, s44, 1\nv_writelane_b32 v32, s100, m0\ns_cmp_lg_u32 s44, 33\ns_cbranch_scc1 1\nv_mov_b32 v33, v32")
    if g.o.get('trace'): a("s_mov_b32 s44, 0\nv_mov_b32 v32, 0\nv_mov_b32 v33, 0")
    LW = 45
    if g.o.get('lprio'): a(f"s_setprio {g.o['lprio']}")
    a(f"s_sub_u32 s{LW}, s{S_WAVE}, 4")
    a("v_lshrrev_b32 v1, 5, v0\nv_bfe_u32 v2, v0, 4, 1\nv_lshlrev_b32 v1, 4, v1\nv_lshl_add_u32 v1, v2, 2, v1\nv_bfe_u32 v2, v0, 3, 1\nv_add_u32 v1, v1, v2")
    a(f"s_lshl_b32 s61, s{LW}, 3\nv_add_u32 v1, s61, v1\nv_and_b32 v2, 7, v0\nv_lshlrev_b32 v2, 4, v2")
    a(f"s_lshl_b32 s61, s{S_MB8}, 19\nv_lshl_add_u32 v4, v1, 11, v2\nv_add_u32 v4, s61, v4\nv_add_u32 v5, {4096-BLK}, v4")
    a(f"s_movk_i32 s60, 6144\ns_cmp_ge_u32 s{S_C}, 2\ns_cselect_b32 s60, 7168, s60")
    a(f"s_cselect_b32 s61, 0, 2048\ns_lshl_b32 s62, s{S_PAIR}, 7\ns_add_u32 s61, s61, s62")
    a(f"v_mul_u32_u24 v6, 6144, v1\nv_add3_u32 v6, v6, v2, s61\nv_add_u32 v7, {12288-BLK}, v6")
    a(f"s_mul_i32 s63, s{S_QD}, 7\ns_lshl_b32 s64, s{S_C}, 1\ns_add_u32 s64, s64, s63\ns_sub_u32 s65, s64, 2\ns_lshl_b32 s65, s65, 7\ns_add_u32 s62, s62, 4096")
    a(f"s_cmp_ge_u32 s{S_C}, 2\ns_cselect_b32 s61, s65, s62")
    a(f"v_mul_lo_u32 v8, v1, s60\nv_add3_u32 v8, v8, v2, s61\ns_lshl_b32 s62, s60, 1\ns_sub_u32 s62, s62, {BLK}\nv_add_u32 v9, s62, v8")
    a(f"s_sub_u32 s64, s64, 1\ns_add_u32 s65, s63, s{S_C}\ns_cmp_ge_u32 s{S_C}, 2\ns_cselect_b32 s61, s64, s65\ns_lshl_b32 s61, s61, 7")
    a(f"v_mul_u32_u24 v10, 7168, v1\nv_add3_u32 v10, v10, v2, s61\nv_add_u32 v11, {14336-BLK}, v10")
    a("v_bfe_u32 v12, v0, 4, 1\nv_bfe_u32 v13, v0, 3, 1\nv_lshlrev_b32 v12, 2, v12\nv_lshl_add_u32 v12, v13, 3, v12\nv_bfe_u32 v13, v0, 1, 2\nv_add_u32 v12, v12, v13")
    a(f"s_lshl_b32 s61, s{LW}, 4\nv_add_u32 v12, s61, v12\nv_mul_u32_u24 v12, 7168, v12\nv_and_b32 v13, 1, v0\nv_lshl_add_u32 v12, v13, 4, v12")
    a(f"s_add_u32 s61, s63, 6\ns_lshl_b32 s61, s61, 7\ns_lshl_b32 s62, s{S_C}, 5\ns_add_u32 s61, s61, s62\nv_add_u32 v12, s61, v12")
    a("s_lshl_b32 s60, s60, 5")
    a(f"s_mul_i32 s66, s{LW}, {2*BLK}")
    a(f"s_mov_b32 s61, s66\ns_mov_b32 s62, 0\ns_mov_b32 s63, 0\ns_mov_b32 s64, 0\ns_add_u32 s65, s66, {WBASE}")
    a(f"s_add_u32 s67, s66, {XRING}\ns_add_u32 s68, s66, {WBASE+4*WSLOT}")
    a(f"s_lshl_b32 s69, s{LW}, 9\ns_sub_u32 s69, s69, s66\ns_add_u32 s69, s69, {3*UNIT}")
    a(f"s_mov_b32 s30, {hex(2048*1024*2)}\ns_mov_b32 s31, 0x20000\ns_mov_b32 s50, {hex(1024*3072*2)}\ns_mov_b32 s51, 0x20000")
    a(f"s_mov_b32 s58, {hex(1024*3584*2)}\ns_mov_b32 s59, 0x20000\ns_mov_b32 s55, 0x20000")
    a("s_waitcnt lgkmcnt(0)")
    a("s_mov_b64 s[28:29], s[4:5]\ns_mov_b64 s[48:49], s[6:7]\ns_mov_b64 s[56:57], s[12:13]")
    a(f"s_cmp_ge_u32 s{S_C}, 2")
    a("s_cselect_b64 s[52:53], s[12:13], s[6:7]\ns_cselect_b32 s54, s58, s50")

    def xhalf():
        a("s_mov_b32 m0, s61\ns_add_u32 s46, s62, s63")
        for u in range(4):
            if u: a(f"s_add_u32 m0, m0, {UNIT}\ns_add_u32 s46, s46, 0x10000")
            a("buffer_load_dwordx4 v4, s[28:31], s46 offen lds")
            a(f"buffer_load_dwordx4 v5, s[28:31], s46 offen offset:{BLK} lds")
        a(f"s_add_u32 s61, s61, {4*UNIT}\ns_cmp_eq_u32 s61, s67\ns_cselect_b32 s61, s66, s61")
        a("s_xor_b32 s63, s63, 0x40000\ns_cselect_b32 s47, 0, 128\ns_add_u32 s62, s62, s47\ns_and_b32 s62, s62, 2047")

    def wslab():
        for ln, (sr, ld) in enumerate([(48, 32 * 6144), (52, "s60"), (56, 32 * 7168)]):
            a(f"s_add_u32 m0, s65, {ln*UNIT}\ns_mul_i32 s35, s64, {ld}")
            a(f"buffer_load_dwordx4 v{6+2*ln}, s[{sr}:{sr+3}], s35 offen lds")
            a(f"buffer_load_dwordx4 v{7+2*ln}, s[{sr}:{sr+3}], s35 offen offset:{BLK} lds")
        a("s_add_u32 m0, s65, s69\ns_mov_b32 exec_hi, 0")
        a("buffer_load_dwordx4 v12, s[56:59], s35 offen lds")
        a("s_mov_b32 exec_hi, -1")
        a(f"s_add_u32 s65, s65, {WSLOT}\ns_cmp_eq_u32 s65, s68\ns_cselect_b32 s65, s67, s65")
        a("s_add_u32 s64, s64, 1\ns_and_b32 s64, s64, 31")

    g.stamp(1)
    xhalf(); wslab(); xhalf(); wslab(); g.stamp(2)
    a("s_waitcnt vmcnt(7)"); g.stamp(3)
    a("s_barrier")
    SM = g.o.get('smooth', 1)
    if SM:
        xhalf(); xhalf(); wslab()
        a("s_waitcnt vmcnt(23)\ns_barrier")
        wslab(); xhalf(); wslab()
        a("s_waitcnt vmcnt(22)\ns_barrier")
        xhalf(); wslab(); xhalf()
    else:
        xhalf(); wslab(); xhalf(); wslab(); xhalf()
    g.stamp(4)
    real_a, buf = g.a, []
    g.a = lambda x: buf.extend(x.split("\n"))
    srd(g, SRD_WS, 26, 0x10000000)
    a(f"s_mov_b32 s10, {hex(1024*1024*2)}\ns_mov_b32 s11, 0x20000")
    a(f"s_mov_b64 s[12:13], s[14:15]\ns_mov_b32 s14, {hex(3584*1024*2)}\ns_mov_b32 s15, 0x20000")
    a("v_lshrrev_b32 v1, 5, v0\nv_bfe_u32 v3, v0, 4, 1\nv_lshlrev_b32 v1, 3, v1\nv_lshl_add_u32 v1, v3, 4, v1\nv_bfe_u32 v3, v0, 3, 1\nv_add_u32 v1, v1, v3")
    a(f"s_lshl_b32 s4, s{LW}, 2\nv_add_u32 v1, s4, v1")
    a(f"s_lshl_b32 s4, s{S_CB}, 8\ns_lshl_b32 s5, s{S_KH}, 7\ns_add_u32 s4, s4, s5")
    a("v_lshl_add_u32 v14, v1, 11, v2\nv_add_u32 v14, s4, v14\nv_xor_b32 v16, 128, v14")
    a(f"v_add_u32 v15, {4096-BLK}, v14\nv_add_u32 v17, {4096-BLK}, v16")
    a(f"s_lshl_b32 s5, s{S_MB8}, 19\ns_sub_u32 s4, s4, s5")
    a(f"v_add_u32 v24, s4, v4\nv_xor_b32 v26, 128, v24\nv_add_u32 v25, {4096-BLK}, v24\nv_add_u32 v27, {4096-BLK}, v26")
    lane_h(g, 21, 22, 17)
    a(f"s_mul_i32 s6, s32, {14<<17}\ns_lshl_b32 s7, s32, 18")
    a("s_mov_b64 s[24:25], s[12:13]\ns_mov_b32 s26, s14\ns_mov_b32 s27, 0x20000")
    ord_table(g, 4)
    g.a = real_a
    cut = max(i for i, x in enumerate(buf) if x.startswith("s_mov_b64 s[24:25], s[12:13]"))
    NU = 6
    a(f"s_mov_b32 s34, {27-NU-2*SM}")
    a("L_l1:")
    a("s_waitcnt vmcnt(30)\ns_barrier")
    wslab(); xhalf()
    a("s_sub_u32 s34, s34, 1\ns_cmp_lg_u32 s34, 0\ns_cbranch_scc1 L_l1")
    t0 = 27 - NU
    vm = VM(a, [('I', t0 - 3)] * 15 + [('I', t0 - 2)] * 15 + [('I', t0 - 1)] * 15)
    busy = [False]
    def wstage(m):
        if m < 14: a(f"s_bfe_u32 s16, s{4+m//8}, {hex((4<<16) | (4*(m%8)))}\ns_lshl_b32 s16, s16, 17\ns_add_u32 s16, s16, s6")
        for ln in range(2):
            for kk in range(2):
                if g.o.get('wpace') and m >= 3 and (ln or kk):
                    a(f"s_cbranch_vccnz 1\ns_sleep {g.o['wpace']}" if busy[0] else f"s_sleep {g.o['wpace']}")
                a(f"s_add_u32 m0, s66, {slot2(m)+(ln*2+kk)*UNIT}")
                if m < 14:
                    vb, sr = (24 if ORD[m] % 7 == 6 else 14) + 2 * ln, 24 if ln else 12
                    a(f"s_add_u32 s47, s16, {kk<<16}")
                elif m < 16:
                    vb, sr = 14 + 2 * ln, 8
                    a(f"s_add_u32 s47, s7, {((ND+m-14)<<17)+(kk<<16)}")
                else:
                    vb, sr = 14, 8
                    a(f"s_mov_b32 s47, {((2*(m-16)+ln)<<17)+(kk<<16)}")
                for jb in range(2):
                    vm.op(f"buffer_load_dwordx4 v{vb+jb}, s[{sr}:{sr+3}], s47 offen offset:{jb*BLK} sc1 lds", m)
    for t in range(t0, 27):
        vm.wait(('I', t - 3)); a("s_barrier")
        wslab(); xhalf(); vm.mark(('I', t), 15)
        k = t - t0
        for x in (buf[k * cut // 5:(k + 1) * cut // 5] if k < 5 else buf[cut:]): a(x)
    vm.wait(('I', 25)); a("s_barrier")
    wslab(); vm.mark(('I', 27), 7)
    vm.wait(('I', 26)); a("s_barrier")
    wstage(0)
    vm.wait(('I', 27)); a("s_barrier")
    wstage(1)
    aux_sel(g)
    a("s_barrier")
    nxt = 2
    for _ in range(g.o.get('w31', 1)): wstage(nxt); nxt += 1
    a("s_barrier")
    g.stamp(5)
    for _ in range(g.o.get('w32', 0)): wstage(nxt); nxt += 1
    a(f"s_cmp_ge_u32 s{S_C}, 2\ns_cselect_b64 vcc, -1, 0")
    sched = g.o.get('wsched', [1, 1, 1, 1, 2, 1, 2, 1, 1, 1, 2, 1, 1, 1])
    for n in range(0, 14):
        SK = g.o['sk']
        if n not in SK:
            need = n
            while need + 1 in SK: need += 1
            if n >= 12: need = 15
            lim = {0: 5}.get(n, n + 6)
            assert nxt > need
            vm.wait(need); a("s_barrier")
        else: vm.wait(nxt - 1)
        fl = n == g.o['k1'] + g.o['noc']
        fl = fl or (n == 0 and g.o.get('k0first', 1))
        if fl: q_call(g, n)
        busy[0] = n < len(g.o['pch']) or g.o['k1'] <= n <= g.o['k1'] + g.o['noc']
        for _ in range(sched[n]):
            assert nxt <= lim
            wstage(nxt); nxt += 1
        if not fl: q_call(g, n)
    assert nxt == 20
    if g.o.get('trace'):
        l = g.lab("tr")
        a(f"s_cmp_lg_u32 s{S_WAVE}, 4\ns_cbranch_scc1 {l}\ns_lshl_b32 s33, s2, 9\ns_add_u32 s33, s33, {WS_PROF+0x20000}\nv_lshlrev_b32 v5, 2, v0")
        a(f"buffer_store_dword v33, v5, {W}, s33 offen\nbuffer_store_dword v32, v5, {W}, s33 offen offset:256\n{l}:")
    aux_rx(g)


def pf_item(g, wait=False):
    a = g.a
    a(f"s_mul_hi_u32 s47, s68, {(2**32+16)//17}\ns_mul_i32 s33, s47, 17\ns_sub_u32 s33, s68, s33")
    a("s_lshl_b32 s50, s47, 1\ns_add_u32 s50, s50, s87\ns_lshl_b32 s50, s50, 5")
    a("s_mul_i32 s51, s32, 7\ns_add_u32 s51, s51, s33\ns_sub_u32 s51, s51, 10")
    a("s_sub_u32 s35, s33, 4\ns_lshr_b32 s54, s35, 1\ns_lshl_b32 s54, s54, 2\ns_add_u32 s54, s54, s32\ns_lshl_b32 s54, s54, 1\ns_and_b32 s35, s35, 1\ns_add_u32 s35, s35, s54")
    a(f"s_movk_i32 s55, 7168\ns_mov_b32 s54, {hex(1024*3584*2)}\ns_cmp_lt_u32 s33, 10\ns_cselect_b32 s51, s35, s51\ns_cselect_b32 s35, 6144, s55\ns_cselect_b32 s54, {hex(1024*3072*2)}, s54")
    a("s_mul_i32 s50, s50, s35\ns_lshl_b32 s51, s51, 8\ns_add_u32 s50, s50, s51")
    a(f"s_lshl_b32 s51, s{S_XCD}, 2\ns_add_u32 s51, s51, s33\ns_lshl_b32 s51, s51, 17\ns_lshl_b32 s47, s47, 7\ns_add_u32 s47, s47, s51")
    a(f"s_cmp_lt_u32 s33, 4\ns_cselect_b32 s47, s47, s50\ns_cselect_b32 s35, 4096, s35\ns_cselect_b32 s50, 11, 7\ns_cselect_b32 s54, {hex(2048*1024*2)}, s54\ns_mov_b32 s55, 0x20000")
    a("v_lshrrev_b32 v10, 1, v0\nv_and_b32 v11, 1, v0\nv_mul_lo_u32 v10, v10, s35\nv_lshl_add_u32 v10, v11, s50, v10")
    if wait: a("s_waitcnt lgkmcnt(0)")
    a("s_cmp_lt_u32 s33, 10\ns_cselect_b64 s[52:53], s[6:7], s[12:13]\ns_cmp_lt_u32 s33, 4\ns_cselect_b64 s[52:53], s[4:5], s[52:53]")
    a("buffer_load_dword v9, v10, s[52:55], s47 offen")


def helper(g):
    a = g.a
    a("L_helper:")
    HW = 45
    def bars(n):
        for _ in range(n): a("s_barrier")
    if g.o.get('hprio'): a(f"s_setprio {g.o['hprio']}")
    a(f"s_sub_u32 s{HW}, s{S_WAVE}, 6")
    a("v_lshlrev_b32 v4, 4, v0\nv_lshlrev_b32 v5, 2, v0\nv_mov_b32 v6, 0\nv_mov_b32 v7, 1\nv_lshlrev_b32 v8, 7, v0")
    a(f"s_getpc_b64 s[96:97]\nL_pc:\ns_sub_u32 s96, s96, L_pc-{NAME}\ns_subb_u32 s97, s97, 0")
    a(f"s_mov_b32 s98, L_codeend-{NAME}\ns_mov_b32 s99, 0x20000")
    a(f"s_lshl_b32 s100, s30, 1\ns_add_u32 s100, s100, s{HW}\ns_lshl_b32 s100, s100, 11")
    def codepf():
        a("s_mov_b64 exec, 0xffff\nbuffer_load_dword v9, v8, s[96:99], s100 offen\ns_mov_b64 exec, -1")
    codepf()
    a(f"s_lshl_b32 s46, s32, 3\ns_add_u32 s46, s46, s{S_CB}\ns_lshl_b32 s47, s{S_MB8}, 5\ns_add_u32 s46, s46, s47")
    a("s_waitcnt lgkmcnt(0)")
    srd(g, SRD_WS, 26, 0x10000000)
    srd(g, 28, 4, 2048 * 1024 * 2)
    srd(g, 92, 24, 256)
    for r in range(12, 16): a(f"v_mov_b32 v{r}, -1")
    a(f"s_mov_b32 s33, 0x10000000\ns_lshl_b32 s88, s{S_PAIR}, 3\ns_add_u32 s88, s88, s{S_MB8}\ns_mul_i32 s88, s88, 9216\ns_add_u32 s88, s88, {WS_KVP}")
    a(f"s_mul_i32 s89, s{S_PAIR}, 6144\ns_lshl_b32 s47, s{S_MB8}, 10\ns_add_u32 s89, s89, s47\ns_add_u32 s89, s89, {WS_KVF}")
    a(f"s_cmp_ge_u32 s{S_MB8}, 6\ns_cselect_b32 s89, s33, s89\ns_cmp_ge_u32 s{S_C}, 2\ns_cselect_b32 s88, s33, s88\ns_cselect_b32 s89, s33, s89")
    def init0(k):
        if k == 0:
            for r in range(16, 20): a(f"v_mov_b32 v{r}, 0")
            a(f"s_lshl_b32 s47, s2, 11\ns_add_u32 s47, s47, {WS_FLAG}")
            a(f"buffer_store_dwordx4 v[16:19], v4, {W}, s47 offen sc1\nbuffer_store_dwordx4 v[16:19], v4, {W}, s47 offen offset:1024 sc1")
        elif k == 1:
            a(f"buffer_store_dwordx4 v[12:15], v4, {W}, s89 offen sc1")
            a(f"s_mov_b64 exec, 0xff\ns_lshl_b32 s47, s46, 7\ns_add_u32 s47, s47, {WS_FLAG+F_G}")
            a(f"buffer_store_dwordx4 v[12:15], v4, {W}, s47 offen sc1\ns_mov_b64 exec, -1")
        else:
            a(f"buffer_store_dwordx4 v[12:15], v4, {W}, s88 offen sc1\ns_add_u32 s88, s88, 1024")
    issd = lambda: a("buffer_load_dword v23, off, s[92:95], 0 sc1")
    def init3():
        ok = g.lab("rdy")
        a(f"v_cmp_eq_u32 vcc, 0, v23\ns_cbranch_vccz {ok}")
        issd(); poll_check(g, issd, 23, 1, 0, "eq")
        a(f"{ok}:\nv_and_b32 v23, 0x2000, v23\nv_mov_b32 v22, {LDS_SEL}\nds_write_b32 v22, v23\ns_lshr_b32 s47, s2, 2\ns_lshl_b32 s47, s47, 7\ns_and_b32 s33, s2, 3\ns_lshl_b32 s33, s33, 2\ns_add_u32 s47, s47, s33\ns_add_u32 s47, s47, {WS_FLAG+F_RDY}")
        a(flagops(7, 47) + "\ns_waitcnt lgkmcnt(0)")
    lz = g.lab("z")
    a(f"s_or_b32 s33, s2, s{HW}\ns_cbranch_scc1 {lz}")
    for r in range(16, 20): a(f"v_mov_b32 v{r}, 0")
    a(f"s_mov_b32 s47, {WS_FLAG+F_RDY}\ns_mov_b32 s33, {WS_FLAG+F_RDY+4096}")
    for k in range(8): a(f"buffer_store_dwordx4 v[16:19], v4, {W}, s{33 if k>>2 else 47} offen offset:{(k&3)*1024} sc1")
    a(f"s_mov_b32 s47, {WS_PROBE}\ns_mov_b32 s33, {WS_PROBE+8192}")
    a(f"buffer_store_dwordx4 v[16:19], v4, {W}, s47 offen sc1\nbuffer_store_dwordx4 v[16:19], v4, {W}, s33 offen sc1\n{lz}:")
    a("s_mov_b32 s90, -1\ns_mov_b32 s91, -1")
    def wg0(f):
        l = g.lab("w0")
        a(f"s_cmp_lg_u32 s2, 0\ns_cbranch_scc1 {l}"); f(); a(f"{l}:")
    def probe(k):
        a(f"s_mov_b32 s47, {WS_PROBE+(k&1)*8192+(k>>1)*128}\ns_memtime s[48:49]\ns_waitcnt lgkmcnt(0)\ns_load_dword s33, s[26:27], s47\ns_waitcnt lgkmcnt(0)")
        a(f"s_memtime s[50:51]\ns_waitcnt lgkmcnt(0)\ns_sub_u32 s33, s50, s48\ns_min_u32 s{90+(k&1)}, s{90+(k&1)}, s33")
    def announce():
        a("s_cmp_lt_u32 s91, s90\ns_cselect_b32 s33, 0x2001, 1\nv_mov_b32 v23, s33\ns_mov_b64 exec, 1\nbuffer_store_dword v23, off, s[92:95], 0 sc1")
        if g.o.get('showp'): a("v_mov_b32 v22, s90\nbuffer_store_dword v22, off, s[92:95], 0 offset:4\nv_mov_b32 v21, s91\nbuffer_store_dword v21, off, s[92:95], 0 offset:8")
        a("s_mov_b64 exec, -1")
    srd(g, 60, 14, 3584 * 1024 * 2)
    srd(g, 64, 8, 1024 * 1024 * 2)
    a(f"s_cmp_lg_u32 s{HW}, 0\ns_cbranch_scc1 L_h_one")
    iss0 = lambda: a(f"s_mov_b32 s47, {WS_FLAG+F_RDY}\nbuffer_load_dwordx4 v[16:19], v8, {W}, s47 offen sc1")
    for t in range(0, 29):
        a("s_barrier")
        if t == 1: a("s_waitcnt vmcnt(0)")
        if 3 <= t < 14: a(f"s_sleep {g.o['hdel']}"); init0(t - 3)
        if 2 <= t < 12 and g.o['pol'] is None: wg0(lambda: probe(t - 2))
        if t == 11: wg0(announce)
        if t == 14: issd()
        if t == 16: a("s_waitcnt vmcnt(0)"); init3()
        if t == 22: iss0()
        if t == 24: poll_check(g, iss0, 14, 64, 1, "ne", lambda: a("v_and_b32 v14, v16, v17\nv_and_b32 v15, v18, v19\nv_and_b32 v14, v14, v15"))
        if t == g.o.get('cpf1', 99): a("s_mov_b64 exec, 0xffffffff\nbuffer_load_dword v9, v8, s[96:99], s100 offen\ns_mov_b64 exec, -1")
    bars(2)
    aux_sel(g)
    lane_h(g, 11, 12, 52)
    a(f"s_add_u32 s54, s52, {F_H2}")
    a("v_and_b32 v12, 1, v0\nv_lshlrev_b32 v12, 16, v12\nv_bfe_u32 v16, v0, 1, 1\nv_lshl_add_u32 v12, v16, 18, v12")
    a(f"v_bfe_u32 v16, v0, 2, 2\nv_lshl_add_u32 v12, v16, 11, v12\ns_andn2_b32 s56, s52, 0x1800\ns_add_u32 s56, s56, {F_X + (2<<16)}")
    a(f"s_lshl_b32 s57, s{S_MB8}, 12\ns_add_u32 s57, s57, {WS_FLAG+F_G}")
    a(f"v_lshrrev_b32 v19, 1, v0\nv_and_b32 v16, 1, v0\nv_lshlrev_b32 v16, 4, v16\nv_lshl_add_u32 v19, v19, 7, v16\nv_add_u32 v13, {LDS_G}, v4")
    bars(1)
    bars(1)
    def pol(soff, areg):
        m = "0xffff" if areg == 12 else "0xffffffff"
        return lambda: a(f"s_mov_b64 exec, {m}\nbuffer_load_dword v14, v{areg}, {W}, s{soff} offen sc1\ns_mov_b64 exec, -1")
    issg = lambda: a(f"buffer_load_dwordx4 v[24:27], v19, {W}, s57 offen sc1")
    assert g.o['k1'] >= 6
    def role(kv, f):
        l = g.lab("ro")
        a(f"s_cmp_ge_u32 s{S_C}, 2\ns_cbranch_scc{1 if kv else 0} {l}"); f(); a(f"{l}:")
    role(True, lambda: (a(f"s_sleep {g.o.get('gsl', 16)}"), pol(52, 11)(), poll_check(g, pol(52, 11), 14, 32, 1)))
    SK = g.o['sk']
    assert not set(SK) & {0, 1, 6, g.o['k1'], 12, 13}
    cnt = lambda n: len([x for x in range(n) if x not in SK])
    for n in range(12):
        if n not in SK: a("s_barrier")
        if n == g.o.get('cpf2'): a("s_mov_b64 exec, 0xffffffff\nbuffer_load_dword v9, v8, s[96:99], s100 offen\ns_mov_b64 exec, -1")
        if n == 0: role(False, pol(52, 11))
        if n == 3: issg()
        if n == 4:
            poll_check(g, issg, 14, 64, -1, "eq", lambda: a("v_max3_u32 v14, v24, v25, v26\nv_max_u32 v14, v14, v27"))
            a("ds_write_b128 v13, v[24:27]"); pol(54, 11)()
        if n == 5: poll_check(g, pol(54, 11), 14, 32, 1); a("s_waitcnt lgkmcnt(0)")
        q_call(g, n)
        if n == 0: role(False, lambda: poll_check(g, pol(52, 11), 14, 32, 1))
        if n == g.o.get('fop', 11):
            if g.o.get('fosl'): a(f"s_sleep {g.o['fosl']}")
            pol(56, 12)()
        if n == 11: poll_check(g, pol(56, 12), 14, 16, 1)
    a("s_barrier\ns_barrier\ns_branch L_rx")
    a("L_h_one:")
    tb = sum(x << (4 * k) for k, x in enumerate(ORD))
    a(f"s_mov_b32 s34, 0\ns_lshr_b32 s69, s2, 3\ns_mov_b32 s48, {hex(tb & 0xffffffff)}\ns_mov_b32 s49, {hex(tb >> 32)}")
    a(f"s_lshr_b32 s33, s68, 5\ns_lshr_b32 s90, {hex(g.o.get('wmask', 0x1f0))}, s33")
    if g.o.get('nopf1'): a("s_mov_b32 s68, 0x10000")
    def w2item():
        l, lo = g.lab("pw"), g.lab("pw")
        a(f"s_cmp_ge_u32 s69, 112\ns_cbranch_scc1 {lo}\ns_lshr_b32 s47, s69, 3\ns_lshl_b32 s47, s47, 2\ns_lshr_b64 s[50:51], s[48:49], s47\ns_and_b32 s50, s50, 15")
        a(f"s_mul_i32 s47, s32, 14\ns_add_u32 s47, s47, s50\ns_lshl_b32 s47, s47, 1\ns_add_u32 s47, s47, s87\ns_lshl_b32 s47, s47, 3\ns_and_b32 s50, s69, 7\ns_add_u32 s47, s47, s50\ns_lshl_b32 s47, s47, 13")
        a(f"buffer_load_dword v9, v8, s[60:63], s47 offen\ns_branch {l}")
        a(f"{lo}:\ns_sub_u32 s47, s69, 112\ns_lshl_b32 s47, s47, 3\ns_add_u32 s47, s47, s{S_XCD}\ns_lshl_b32 s47, s47, 13\nbuffer_load_dword v9, v8, s[64:67], s47 offen\n{l}:\ns_add_u32 s69, s69, 32")
    l0, l1, l2, lx, lq = [g.lab("pf") for _ in range(5)]
    if g.o.get('skip0'): a(f"s_branch {l1}")
    a(f"{l0}:\ns_add_u32 s47, s34, {g.o['lead']}\ns_mul_i32 s47, s47, 17\ns_lshr_b32 s47, s47, 1\ns_min_u32 s47, s47, {16*17}\ns_cmp_ge_u32 s68, s47\ns_cbranch_scc1 {l1}")
    pf_item(g)
    a("s_add_u32 s68, s68, 32")
    a(f"{l2}:\ns_lshr_b32 s90, s90, 1\ns_bitcmp1_b32 s90, 0\ns_cbranch_scc0 {l0}")
    w2item()
    a(f"s_branch {l0}\n{l1}:")
    if g.o.get('wrate'):
        l3 = g.lab("pf")
        a(f"s_sub_u32 s47, s34, {g.o.get('w0', 2)}\ns_cbranch_scc1 {l3}\ns_mul_i32 s47, s47, {g.o['wrate']}\ns_min_u32 s47, s47, 144\ns_cmp_ge_u32 s69, s47\ns_cbranch_scc1 {l3}")
        w2item()
        a(f"{l3}:")
    a(f"s_barrier\ns_sleep {g.o['hdel']}\ns_add_u32 s34, s34, 1\ns_cmp_lt_u32 s34, 27\ns_cbranch_scc1 {l0}")
    srd(g, 52, 16, 2048)
    gl = ["s_lshl_b32 s47, s46, 14\n" + "\n".join(f"buffer_load_dwordx4 {vr(24+4*hf)}, v4, s[52:55], 0 offen offset:{hf*1024}" for hf in range(2))]
    for r in range(8):
        gl.append("\n".join(f"buffer_load_dwordx4 {vr(40+8*r+4*hf)}, v4, s[28:31], s47 offen offset:{(r&1)*2048+hf*1024}" for hf in range(2)) + ("\ns_add_u32 s47, s47, 4096" if r & 1 else ""))
    for t in range(26, 31):
        if t > 26: a("s_barrier")
        n = g.o['gsch'][t - 26]
        if n and t in (27, 28): a(f"s_sleep {g.o['hdel']}")
        for x in gl[:n]: a(x)
        gl = gl[n:]
    assert not gl
    aux_sel(g)
    for r in range(32, 40): a(f"v_mov_b32 v{r}, 0")
    bars(2)
    a("s_waitcnt vmcnt(0)")
    for k in range(8):
        for r in range(8): a(f"v_dot2_f32_bf16 v{32+r}, v{40+8*r+k}, v{24+k}, v{32+r}")
    a("s_barrier\ns_nop 0")
    for pat in ["quad_perm:[1,0,3,2] row_mask:0xf", "quad_perm:[2,3,0,1] row_mask:0xf", "row_half_mirror row_mask:0xf", "row_mirror row_mask:0xf",
                "row_bcast:15 row_mask:0xa", "row_bcast:31 row_mask:0xc"]:
        for r in range(32, 40): a(f"v_add_f32_dpp v{r}, v{r}, v{r} {pat} bank_mask:0xf")
    for r in range(8): a(f"v_readlane_b32 s{52+r}, v{32+r}, 63")
    a("s_nop 1")
    for r in range(8): a(f"v_writelane_b32 v16, s{52+r}, {r}")
    a("s_nop 0\nv_min_f32 v16, 0x41f00000, v16\nv_mul_f32 v16, 0x3fb8aa3b, v16\nv_exp_f32 v16, v16")
    a(f"s_lshl_b32 s47, s46, 7\ns_add_u32 s47, s47, {WS_FLAG+F_G}\ns_mov_b64 exec, 0xff")
    a(f"buffer_store_dword v16, v5, {W}, s47 offen sc1\ns_mov_b64 exec, -1")
    q_call(g, 0)
    a(f"s_mov_b32 s34, 1\ns_cmp_ge_u32 s{S_C}, 2\ns_cbranch_scc1 L_h1_q\ns_cmp_ge_u32 s{S_MB8}, 6\ns_cbranch_scc1 L_h1_end")
    H1 = g.o['h1']
    def retry(issue, mx, first, last, work=False):
        l0, l1 = g.lab("try"), g.lab("try")
        for n in range(first):
            if n and n not in SK: a("s_barrier")
            if work and n: q_call(g, n)
        first, last = cnt(first), cnt(last)
        if g.o.get('rsame', 1) & (1 if work else 2):
            l2 = g.lab("try")
            a(f"s_setprio 2\ns_mov_b32 s34, {first}\n{l0}:")
            issue(); a("s_waitcnt vmcnt(0)"); mx()
            a(f"v_cmp_eq_u32 vcc, -1, v14\ns_cbranch_vccz {l1}")
            a(f"s_cmp_ge_u32 s34, {last}\ns_cbranch_scc1 {l2}\ns_barrier\ns_add_u32 s34, s34, 1\ns_branch {l0}\n{l2}:")
        else:
            a(f"s_setprio 2\ns_mov_b32 s34, {first}\n{l0}:")
            if g.o.get('hsl'): a(f"s_sleep {g.o['hsl']}")
            issue()
            a("s_barrier\ns_add_u32 s34, s34, 1\ns_waitcnt vmcnt(0)")
            mx()
            a(f"v_cmp_eq_u32 vcc, -1, v14\ns_nop 1\ns_cmp_lg_u64 vcc, 0\ns_cbranch_scc0 {l1}")
            a(f"s_cmp_le_u32 s34, {last-1}\ns_cbranch_scc1 {l0}")
        issue(); poll_check(g, issue, 14, 64, -1, "eq", mx)
        a(f"{l1}:")
    def upto(n):
        l0, l1 = g.lab("up"), g.lab("up")
        a(f"{l0}:\ns_cmp_ge_u32 s34, {cnt(n)}\ns_cbranch_scc1 {l1}\ns_barrier\ns_add_u32 s34, s34, 1\ns_branch {l0}\n{l1}:")
    def vmax(lo, hi):
        a(f"v_max_u32 v14, v{lo}, v{lo+1}")
        for r in range(lo + 2, hi, 2): a(f"v_max3_u32 v14, v14, v{r}, v{r+1}")
    a(f"s_cmp_ge_u32 s{S_MB8}, 3\ns_cselect_b32 s55, 1, 0\ns_sub_u32 s56, s{S_MB8}, s55\ns_lshl_b32 s56, s56, 11\nv_add_u32 v10, s56, v4\nv_add_u32 v11, 1024, v10")
    a(f"s_cmp_eq_u32 s{S_MB8}, 2\ns_cbranch_scc1 L_h1_z\ns_cmp_eq_u32 s{S_MB8}, 5\ns_cbranch_scc0 L_h1_nz\nL_h1_z:")
    a("s_lshl_b32 s55, s55, 5\ns_add_u32 s55, s55, 8192\nv_and_b32 v10, 0x300, v4\nv_add_u32 v10, s55, v10\nv_add_u32 v11, 16, v10\nL_h1_nz:")
    def kvp_issue():
        a(f"s_mul_i32 s47, s{S_PAIR}, {8*9216}\ns_add_u32 s47, s47, {WS_KVP}")
        for m in range(8):
            for dt in range(2): a(f"buffer_load_dwordx4 {vr(32+(m*2+dt)*4)}, v{10+dt}, {W}, s47 offen sc1")
            if m < 7: a("s_add_u32 s47, s47, 9216")
    retry(kvp_issue, lambda: vmax(32, 96), H1 + 1, 9)
    g.stamp(5)
    if g.o['prof']: a("s_mov_b32 s88, s34")
    for st in (32, 16, 8):
        for r in range(st): a(f"v_add_f32 v{32+r}, v{32+r}, v{32+st+r}")
    for r in range(4): a(f"v_cvt_pk_bf16_f32 v{32+r}, v{32+2*r}, v{33+2*r}")
    a(f"s_mul_i32 s47, s{S_PAIR}, 6144\ns_lshl_b32 s46, s{S_MB8}, 10\ns_add_u32 s47, s47, s46\ns_add_u32 s47, s47, {WS_KVF}")
    a(f"buffer_store_dwordx4 v[32:35], v4, {W}, s47 offen sc1")
    a("L_h1_end:")
    upto(14)
    a("s_branch L_rx")
    a("L_h1_q:")
    K1 = g.o['k1']
    a(f"s_mul_i32 s55, s{S_PAIR}, 6144\ns_add_u32 s55, s55, {WS_KVF}\ns_add_u32 s56, s55, 4096\nv_add_u32 v12, {P2END}, v4")
    def kvf_issue():
        for f in range(6): a(f"buffer_load_dwordx4 {vr(32+4*f)}, v4, {W}, s{55+(f>>2)} offen offset:{(f&3)*1024} sc1")
    retry(kvf_issue, lambda: vmax(32, 56), g.o['k0'], K1, True)
    g.stamp(5)
    if g.o['prof']: a("s_mov_b32 s88, s34")
    for f in range(6): a(f"ds_write_b128 v12, {vr(32+4*f)} offset:{f*1024}")
    upto(K1)
    a("s_waitcnt lgkmcnt(0)")
    for n in range(K1, K1 + g.o['noc'] + 1):
        if n not in SK: a("s_barrier")
        q_call(g, n)
    a(f"s_mov_b32 s34, {cnt(K1+g.o['noc']+1)}\ns_branch L_h1_end")
    q_chunks(g)


HEADER = open("gated_mix__linear_attn_block__dense_activation_relu__prompt.s.ref").read().split("; Override")[0] \
    if __name__ == "__main__" else ""


def build(**opt):
    g = G(**opt)
    VM.skip = g.o.get('skip', ())
    HF[0] = g.o.get('hflag', 'sc1'); HF[1] = g.o.get('lflag', 'sc1')
    g.L.append(f"; @launch grid=(256,1,1) block=(512,1,1) lds={LDS_TOTAL}")
    g.a(f'.amdgcn_target "amdgcn-amd-amdhsa--gfx950"\n.text\n.globl {NAME}\n.p2align 8\n.type {NAME},@function\n{NAME}:')
    prologue(g)
    loader(g)
    helper(g)
    compute(g)
    g.a("L_exit:\ns_endpgm\nL_codeend:")
    g.L.append(f""".section .rodata,"a"
.p2align 6
.amdhsa_kernel {NAME}
  .amdhsa_next_free_vgpr 256
  .amdhsa_next_free_sgpr 102
  .amdhsa_accum_offset 256
  .amdhsa_group_segment_fixed_size 0
  .amdhsa_kernarg_size 80
  .amdhsa_user_sgpr_count 2
  .amdhsa_user_sgpr_kernarg_segment_ptr 1
  .amdhsa_system_sgpr_workgroup_id_x 1
.end_amdhsa_kernel""")
    return g.text()


if __name__ == "__main__":
    out = sys.argv[1]
    opt = {}
    for kv in sys.argv[2:]:
        k, v = kv.split("=")
        opt[k] = eval(v)
    open(out, "w").write(HEADER + build(**opt))
```

```python
import sys

NAME = "gated_mix__linear_attn_block__dense_activation_relu__prompt_kernel"

OREG = 4 << 23
MT = lambda i: ((i & 1) << 12) | ((i >> 1) << 14)
WS_PART = 0x3000000
WS_KVP = 0x2800000
WS_KVF = 0x2980000
WS_FLAG = 0x2A00000
F_H1, F_H2, F_X, F_P = 0, 512, 1024, 1536
F_G = 0x80000
F_RDY = 0x90000
WS_PROF = 0x2B00000
WS_PROBE = 0x2C00000
LDS_SEL = 163832
WS_W2C = 0x2800000
ORD1 = [0, 1, 2, 4, 7, 8, 9, 11]
ORD2 = [3, 5, 10, 12, 6, 13]

UNIT = 4224; BLK = 1056
XSLOT = 8 * UNIT
XRING = 3 * XSLOT
WSLOT = 3 * UNIT + 1024
WBASE = XRING
LDS_G = 162816
P2SLOT = 4 * UNIT
NSL = 8
P2END = NSL * P2SLOT
LDS_TOTAL = 163840

SPIN = 100000


class G:
    def __init__(self, **opt):
        self.L = []
        self.o = dict(prof=False, krot=False, pfw=True, pf1=True, lead=6, pfs0=0, hdel=0, pfw0=2, pfwr=54, early2=0, late=(4, 4, 4), sp0=22, spn=2, swin=4, gsch=(5, 4, 0, 0, 0), fpos=50, s1sp=12, tdens=2, st2n=0, st2sp=14, ju=5, pch=(1, 2, 2, 2, 1), pf0=0, pol=None, sk=(), cbx=2, aspread=0, wpace=0, kdens=4, hsl=0, gsl=0, noc=2, qprio=2, k1=7, k0=6, rsp=6, h1=1, xf=(10, 14, 16), r1=20, dld=(11, 12, 13, 14, 15, 16, 17, 18), psleep=2, cpf1=24, cpf2=99, odens=3, b16=True, ddens=3, psp=30, d1=7, d2=10, d2b=12, d3=16)
        self.o.update(opt)
        self.uid = 0
        self.info = {}
        self.st = {'since': 0}

    def a(self, s):
        for ln in s.split("\n"):
            ln = ln.strip()
            if ln == "s_sleep 0": continue
            if ln:
                self.L.append(ln if ln.endswith(":") or ln.startswith(".") else "    " + ln)

    def lab(self, p):
        self.uid += 1
        return f"L_{p}_{self.uid}"

    def stamp(self, n):
        if self.o['prof'] == 'min' and n not in (0, 8): return
        if self.o['prof']:
            self.a(f"{'s_memtime' if self.o['prof']=='cyc' else 's_memrealtime'} s[{70+2*n}:{71+2*n}]")

    def text(self):
        j = self.o.get('jitter')
        if j:
            import random
            rnd = random.Random(j[0]); o = []
            for ln in self.L:
                o.append(ln)
                t = ln.strip()
                if (t == "s_barrier" or t.startswith("s_waitcnt vmcnt")) and rnd.random() < j[1]:
                    w = rnd.randrange(8)
                    src = "s3" if rnd.random() < 0.7 else "s44"
                    o.append(f"    s_cselect_b32 s101, 1, 0\n    s_cmp_lg_u32 {src}, {w}\n    s_cbranch_scc1 1\n    s_sleep {rnd.randrange(1, j[2])}\n    s_cmp_lg_u32 s101, 0")
            return "\n".join(o) + "\n"
        return "\n".join(self.L) + "\n"


class VM:
    def __init__(self, a, init=()):
        self.a = a; self.q = list(init)
    skip = ()
    def op(self, text, tag):
        if (tag[0] if isinstance(tag, tuple) else tag) in VM.skip: return
        self.a(text); self.q.append(tag)
        assert len(self.q) <= 63, "vmcnt overflow"
    def mark(self, tag, n):
        self.q += [tag] * n
        assert len(self.q) <= 63, "vmcnt overflow"
    def wait(self, *tags):
        k = max([i for i, t in enumerate(self.q) if t in tags], default=-1)
        if k >= 0:
            self.a(f"s_waitcnt vmcnt({len(self.q)-1-k})"); self.q = self.q[k + 1:]


def vr(b, n=4):
    return f"v[{b}:{b+n-1}]"


def mfma(d, a, b, c=None):
    return f"v_mfma_f32_16x16x32_bf16 {vr(d)}, {vr(a)}, {vr(b)}, {vr(d) if c is None else c}"


S_WAVE, S_MB8, S_QD, S_C, S_PAIR, S_RH, S_CB, S_KH, S_SEL, S_XCD = 3, 36, 37, 38, 39, 40, 41, 42, 43, 44
SRD_WS = 20


def srd(g, d, base, nbytes):
    g.a(f"s_mov_b32 s{d}, s{base}\ns_mov_b32 s{d+1}, s{base+1}\ns_mov_b32 s{d+2}, {hex(nbytes)}\ns_mov_b32 s{d+3}, 0x20000")


def prof_dump(g, wave, row):
    if not g.o['prof'] or g.o.get('probe') is not None or (row and (g.o['prof'] == 'min' or g.o.get('trace'))): return
    a = g.a
    l = g.lab("pd")
    a(f"s_waitcnt lgkmcnt(0)\ns_cmp_lg_u32 s{S_WAVE}, {wave}\ns_cbranch_scc1 {l}")
    a(f"s_lshl_b32 s33, s2, 6\ns_add_u32 s33, s33, {WS_PROF + row*16384}\nv_mov_b32 v5, 0")
    for n in range(16):
        a(f"v_mov_b32 v6, s{70+2*n}\nbuffer_store_dword v6, v5, s[{SRD_WS}:{SRD_WS+3}], s33 offen offset:{4*n}\ns_nop 1")
    a(f"{l}:")


def prologue(g):
    a = g.a
    a("s_cmp_ge_u32 s2, 256\ns_cbranch_scc1 L_exit")
    if g.o['prof']:
        for n in range(70, 102): a(f"s_mov_b32 s{n}, 0")
    g.stamp(0)
    a("s_load_dwordx16 s[4:19], s[0:1], 0")
    a("s_load_dwordx4 s[24:27], s[0:1], 64")
    a("v_lshrrev_b32 v1, 6, v0\nv_and_b32 v0, 63, v0")
    a(f"s_and_b32 s{S_XCD}, s2, 7\ns_lshr_b32 s30, s2, 3")
    a(f"v_readfirstlane_b32 s{S_WAVE}, v1")
    a(f"s_lshr_b32 s31, s{S_XCD}, 2\ns_and_b32 s32, s{S_XCD}, 3")
    a(f"s_and_b32 s33, s30, 3\ns_lshl_b32 s{S_MB8}, s31, 2\ns_add_u32 s{S_MB8}, s{S_MB8}, s33")
    a("s_lshr_b32 s33, s30, 2")
    a(f"s_lshr_b32 s34, s33, 2\ns_lshl_b32 s{S_QD}, s32, 1\ns_add_u32 s{S_QD}, s{S_QD}, s34")
    a(f"s_and_b32 s{S_C}, s33, 3")
    a(f"s_and_b32 s34, s33, 1\ns_lshl_b32 s{S_PAIR}, s{S_QD}, 1\ns_add_u32 s{S_PAIR}, s{S_PAIR}, s34")
    a(f"s_and_b32 s{S_RH}, s32, 1")
    a(f"s_xor_b32 s{S_CB}, s33, {g.o['cbx']}")
    a(f"s_lshr_b32 s{S_KH}, s32, 1")
    if g.o['pol'] == 'mix': a(f"s_lshl_b32 s{S_SEL}, s31, 13")
    else: a(f"s_xor_b32 s34, s31, s{S_MB8}\ns_xor_b32 s34, s34, {g.o['pol'] or 0}\ns_and_b32 s34, s34, 1\ns_lshl_b32 s{S_SEL}, s34, 13")
    a(f"s_cmp_lt_u32 s{S_WAVE}, 4\ns_cbranch_scc1 L_compute")
    a(f"s_cmp_lt_u32 s{S_WAVE}, 6\ns_cbranch_scc1 L_loader")
    a("s_mov_b32 s68, s30\ns_mov_b32 s87, s31")
    if g.o.get('pf0'):
        a(f"s_cmp_eq_u32 s{S_WAVE}, 6\ns_cbranch_scc1 L_helper\ns_add_u32 s68, s68, {g.o.get('pf0off', 0)}")
        pf_item(g, True)
        a("s_add_u32 s68, s68, 32")
    a("s_branch L_helper\nL_loader:")


W = f"s[{SRD_WS}:{SRD_WS+3}]"


def lane_goodcol(g, d, t):
    g.a(f"v_lshrrev_b32 v{d}, 4, v0\nv_and_b32 v{t}, 15, v0\nv_lshlrev_b32 v{t}, 4, v{t}\nv_lshl_add_u32 v{d}, v{d}, 9, v{t}\nv_or_b32 v{d}, s{S_SEL}, v{d}")


def inbox(so, t, w):
    return (f"s_lshr_b32 s{so}, s2, 6\ns_lshl_b32 s{so}, s{so}, 2\ns_bfe_u32 s{t}, s2, 0x20003\ns_add_u32 s{so}, s{so}, s{t}\ns_lshl_b32 s{so}, s{so}, 1\n"
            f"s_bfe_u32 s{t}, s2, 0x10005\ns_add_u32 s{so}, s{so}, s{t}\ns_lshl_b32 s{so}, s{so}, 2\ns_add_u32 s{so}, s{so}, s32\ns_lshl_b32 s{so}, s{so}, 4\n"
            f"s_add_u32 s{so}, s{so}, s{w}\ns_lshl_b32 s{so}, s{so}, 14\n")


def lane_h(g, d, t, so):
    g.a(f"v_bfe_u32 v{d}, v0, 2, 3\nv_and_b32 v{t}, 3, v0\nv_lshlrev_b32 v{t}, 7, v{t}\nv_lshl_add_u32 v{d}, v{d}, 16, v{t}")
    g.a(f"s_and_b32 s{so}, s2, 31\ns_lshl_b32 s{so}, s{so}, 11\ns_add_u32 s{so}, s{so}, {WS_FLAG}")


def poll_check(g, issue, reg, nl, val, cmp="ne", pre=None):
    a = g.a
    l0, l1 = g.lab("poll"), g.lab("pollok")
    a(f"s_mov_b32 s35, {SPIN}\n{l0}:\ns_waitcnt vmcnt(0)")
    if pre: pre()
    a(f"v_cmp_{cmp}_u32 vcc, {val}, v{reg}\ns_nop 1")
    if nl == 64: a("s_cmp_lg_u64 vcc, 0")
    else: a(f"s_and_b32 s33, vcc_lo, {hex((1<<nl)-1)}")
    a(f"s_cbranch_scc0 {l1}")
    a(f"s_sub_u32 s35, s35, 1\ns_cbranch_scc1 {l1}")
    if g.o.get('psleep'): a(f"s_sleep {g.o['psleep']}")
    issue()
    a(f"s_branch {l0}\n{l1}:")


def setflags(g, one, *soffs):
    g.a("s_mov_b64 exec, 1")
    for so in soffs: g.a(f"buffer_store_dword v{one}, off, {W}, s{so} sc1")
    g.a("s_mov_b64 exec, -1")


VX, VW, VQ = 1, 2, 3
WB = lambda n: 8 + 4 * (n % 4)
XLO = lambda b, i: 24 + 8 * b + 4 * i
XHI = lambda i: 40 + 4 * (i - 2)
AC = lambda j, i: 48 + (j * 4 + i) * 4


PERM = {True: [8, 9, 10, 11, 0, 1, 2, 3, 12, 4, 5, 6, 7], False: [4, 5, 6, 7, 8, 9, 10, 11, 12, 0, 1, 2, 3]}


def p1_wread(t, j, n):
    slot = (t % 4) * WSLOT
    if j < 12:
        return [f"ds_read_b64_tr_b16 v[{WB(n)+2*w}:{WB(n)+2*w+1}], v{VW} offset:{slot + (j//4)*UNIT + (j%4)*32 + w*256}" for w in range(2)]
    return [f"ds_read_b64_tr_b16 v[{WB(n)+2*w}:{WB(n)+2*w+1}], v{VQ} offset:{slot + w*256}" for w in range(2)]


def p1_xreg(par, i):
    return XLO(par % 2, i) if i < 2 else XHI(i)


def p1_xread(t, i, par, vx=VX):
    return f"ds_read_b128 {vr(p1_xreg(par,i))}, v{vx} offset:{(i>>1)*UNIT + (i&1)*512 + (t%2)*64}"


def pass_order(nt):
    s = [(0, 0), (0, 1), (1, 1), (1, 0), (1, 2), (1, 3), (0, 3), (0, 2)]
    for j in range(2, nt - 2):
        s += [(j, i) for i in ([2, 3, 0, 1] if j % 2 == 0 else [1, 0, 3, 2])]
    u, v = nt - 2, nt - 1
    return s + [(u, 2), (u, 3), (v, 3), (v, 2), (v, 1), (v, 0), (u, 0), (u, 1)]


def p1_mfma(kv, tile, i, wreg, xreg):
    return mfma(AC(tile, i), xreg, wreg) if (kv and tile < 8) else mfma(AC(tile, i), wreg, xreg)


Q0 = [('W', 0, 0), ('W', 0, 0), ('X', 0, 0), ('X', 0, 1), ('W', 0, 1), ('W', 0, 1), ('X', 0, 2), ('X', 0, 3)]


def p1_loop(g, kv):
    a = g.a
    P = PERM[kv]
    L = g.lab("p1")
    seq = []
    for t in range(4):
        s = pass_order(13)
        post = [[] for _ in s]
        rd = lambda j, tt=t: [('W', tt, j, x) for x in p1_wread(tt, P[j], 13 * tt + j)]
        r = rd(2); post[0].append(r[0]); post[1].append(r[1])
        r = rd(3); post[2].append(r[0]); post[3].append(r[1])
        r = rd(4); post[8].append(r[0]); post[9].append(r[1])
        r = rd(5); post[10].append(r[0]); post[11].append(r[1])
        for j in range(3, 10):
            base = 8 + (j - 2) * 4
            r = rd(j + 3); post[base].append(r[0]); post[base + 1].append(r[1])
        b10 = 40
        if t % 2 == 1:
            post[b10 - 2].append(('S', f"s_add_u32 s46, s46, {XSLOT}"))
            post[b10 - 2].append(('S', f"s_cmp_eq_u32 s46, {XRING}"))
            post[b10 - 1].append(('S', f"s_cselect_b32 s47, s48, s49"))
            post[b10 - 1].append(('S', f"s_cselect_b32 s46, 0, s46"))
            post[b10].append(('S', f"v_add_u32 v{VX}, s47, v{VX}"))
        post[b10 + 2].append(('BAR',))
        tn = t + 1
        r0, r1 = rd(0, tn), rd(1, tn)
        post[b10 + 3] += [r0[0], r0[1]]
        post[44] += [('X', tn, 0, p1_xread(tn, 0, tn)), ('X', tn, 1, p1_xread(tn, 1, tn))]
        post[45] += [r1[0]]
        post[46] += [r1[1]]
        post[47] += [('X', tn, 2, p1_xread(tn, 2, tn))]
        post[48] += [('X', tn, 3, p1_xread(tn, 3, tn))]
        if t == 3:
            post[49].append(('S', "s_sub_u32 s45, s45, 1"))
            post[50].append(('S', "s_cmp_lg_u32 s45, 0"))
        for (j, i), p in zip(s, post):
            seq.append(((t, j, i), p))
    for x in p1_wread(0, P[0], 0): a(x)
    a(p1_xread(0, 0, 0)); a(p1_xread(0, 1, 0))
    for x in p1_wread(0, P[1], 1): a(x)
    a(p1_xread(0, 2, 0)); a(p1_xread(0, 3, 0))
    q = list(Q0)
    a(f".p2align 6\n{L}:")
    for (t, j, i), p in seq:
        need = [k for k, e in enumerate(q) if e == ('W', t, j) or e == ('X', t, i)]
        if need:
            k = max(need)
            a(f"s_waitcnt lgkmcnt({len(q)-1-k})")
            q = q[k + 1:]
        a(p1_mfma(kv, P[j], i, WB(13 * t + j), p1_xreg(t, i)))
        for e in p:
            if e[0] == 'S':
                a(e[1])
            elif e[0] == 'BAR':
                a("s_waitcnt lgkmcnt(0)\ns_barrier"); q = []
            else:
                a(e[3]); q.append((e[0], e[1] % 4, e[2]))
    assert q == Q0
    a(f"s_cbranch_scc1 {L}")


def p1_tail(g, kv, extra, extra2, flag):
    a = g.a
    P = PERM[kv]
    auto = g.o['pol'] is None
    if auto: a(f"v_mov_b32 v5, {LDS_SEL}\nds_read_b32 v6, v5")
    a(f"v_add_u32 v5, {(-2*XSLOT) & 0xffffffff}, v{VX}")
    if auto: extra = ["v_xor_b32 v7, v6, v7", "v_mov_b32 v6, 1"] + extra
    passes = [(t, grp) for grp in (P[:4], P[4:9], P[9:]) for t in range(28, 32)]
    M = []; start = []; n0 = 0; last = {}
    reads = []
    for p, (t, tiles) in enumerate(passes):
        start.append(len(M))
        o = pass_order(len(tiles))
        base = len(M)
        for j, tile in enumerate(tiles):
            first = base + min(k for k, e in enumerate(o) if e[0] == j)
            if not (p == 0 and j < 2):
                for x in p1_wread(t, tile, n0 + j):
                    reads.append(dict(key=('W', p, j), text=x, after=last.get(WB(n0 + j), -1), first=first, t=t))
            last[WB(n0 + j)] = base + max(k for k, e in enumerate(o) if e[0] == j)
        for i in range(4):
            first = base + min(k for k, e in enumerate(o) if e[1] == i)
            if p > 0:
                reads.append(dict(key=('X', p, i), text=p1_xread(t, i, p, VX if t < 30 else 5), after=max(last.get(p1_xreg(p, i), -1), first - 14), first=first, t=t))
            last[p1_xreg(p, i)] = base + max(k for k, e in enumerate(o) if e[1] == i)
        for (j, i) in o:
            M.append((p, j, i, p1_mfma(kv, tiles[j], i, WB(n0 + j), p1_xreg(p, i))))
        n0 += len(tiles)
    V1, V2 = start[1] + 3, start[2] + 5
    R1, R2 = start[10] - 3, len(M) - 5
    for r in reads:
        if r['t'] == 30: r['after'] = max(r['after'], V1)
        if r['t'] == 31: r['after'] = max(r['after'], V2)
    reads.sort(key=lambda r: r['first'])
    q = list(Q0) + ([('S', 0, 0)] if auto else []); since = 0; nst2 = 0; held = []; nexts = 0; first = True
    dens = g.o.get('tdens', 3)
    def wait(pred):
        nonlocal q
        need = [k for k, e in enumerate(q) if pred(e)]
        if need:
            a(f"s_waitcnt lgkmcnt({len(q)-1-max(need)})"); q = q[max(need) + 1:]
            return 1
        return 0
    for k, (p, j, i, txt) in enumerate(M):
        assert not [r for r in reads if r['first'] <= k], "read scheduled too late"
        w = wait(lambda e: e == ('W', p, j) or e == ('X', p, i))
        a(txt); since += 1 + w
        used = 0
        if k in (V1, V2): a("s_barrier"); used += 1
        if k in (R1, R2):
            lim = 9 if k == R1 else 11
            assert not [r for r in reads if r['key'][1] <= lim]
            used += 1 + wait(lambda e: e[1] <= lim); a("s_barrier")
        nr = 0
        while used < 2:
            c = [r for r in reads if r['after'] <= k]
            if not c or (nr and c[0]['first'] - k > 9): break
            a(c[0]['text']); q.append(c[0]['key']); reads.remove(c[0]); used += 1; nr += 1
        since += used
        if held and k >= nexts:
            a(held.pop(0)); used += 2; nexts = k + g.o['s1sp']; nst2 = 0
        if k == start[8] + g.o.get('fpos', 10):
            assert not held
            a(f"s_waitcnt vmcnt({nst2})\n" + flag); used += 2
        if k == start[8] + 3:
            assert not extra
            extra = extra2; dens = g.o.get('tdens2', 3); first = False
        if k >= start[4] + 3:
            while used < dens and extra:
                if extra[0] is None: break
                x = extra.pop(0)
                if first and x.startswith("s_add_u32 s56"): sadd = x; continue
                if first and x.startswith("buffer_store"): held.append(sadd + "\n" + x); continue
                a(x); used += 2 if x.startswith("v_exp") else 1
                if x.startswith("buffer_store"): nst2 += 1
    return extra


def h_cvt(d, a0, a1):
    src = [a0, a0 + 2] + ([a1, a1 + 2] if a1 is not None else [])
    return [f"v_cvt_pk_bf16_f32 v{d+r}, v{x}, v{x+1}" for r, x in enumerate(src)] + [f"v_pk_max_i16 v{d+r}, v{d+r}, 0" for r in range(len(src))]


HF = ['sc1', 'sc1']
def h_line_store(j0, soff):
    o = []
    for i in (2, 3, 0, 1):
        o.append(f"s_add_u32 s56, s{soff}, {MT(i)}")
        for p in range(2):
            d = AC(j0 + 2 * p, i)
            o += h_cvt(d, d, AC(j0 + 2 * p + 1, i))
            o.append(f"buffer_store_dwordx4 {vr(d)}, v7, {W}, s56 offen offset:{p*2048} {HF[0]}")
    return o


def phi_regs(regs, tmp, pk=False):
    if pk:
        o = [f"v_pk_mul_f32 v[{tmp+k}:{tmp+k+1}], v[{regs[k]}:{regs[k]+1}], s[50:51] op_sel_hi:[1,0]" for k in range(0, 8, 2)]
        for k, r in enumerate(regs): o += [f"v_exp_f32 v{tmp+k}, v{tmp+k} clamp", f"v_max_f32 v{r}, s51, v{r}"]
        return o + [f"v_pk_add_f32 v[{regs[k]}:{regs[k]+1}], v[{regs[k]}:{regs[k]+1}], v[{tmp+k}:{tmp+k+1}]" for k in range(0, 8, 2)]
    o = [f"v_mul_f32 v{tmp+k}, s50, v{r}" for k, r in enumerate(regs)]
    for k, r in enumerate(regs): o += [f"v_exp_f32 v{tmp+k}, v{tmp+k} clamp", f"v_max_f32 v{r}, s51, v{r}"]
    return o + [f"v_add_f32 v{r}, v{r}, v{tmp+k}" for k, r in enumerate(regs)]


def pack8(d, e):
    return [f"v_cvt_pk_bf16_f32 v{d}, v{d}, v{d+1}", f"v_cvt_pk_bf16_f32 v{d+1}, v{d+2}, v{d+3}",
            f"v_cvt_pk_bf16_f32 v{d+2}, v{e}, v{e+1}", f"v_cvt_pk_bf16_f32 v{d+3}, v{e+2}, v{e+3}"]


def flagops(one, *soffs):
    return "s_mov_b64 exec, 1\n" + "".join(f"buffer_store_dword v{one}, off, {W}, s{so} sc1\n" for so in soffs) + "s_mov_b64 exec, -1"


VA0, VW2, VA1, VWD = 1, 2, 3, 5
ORD = ORD1 + ORD2
AB = lambda u, i: (24, 112, 96, 72)[u % 4] + 4 * i
ACC = lambda j, i: 128 + (j * 4 + i) * 4
JORD = [4, 5, 6, 7, 0, 1, 2, 3]
NS = 12
ND = 8
ADP = [72, 80, ACC(5, 2), ACC(7, 2), ACC(4, 2), ACC(6, 2), ACC(1, 2), ACC(3, 2), ACC(0, 2), ACC(2, 2), 8, 16, 24, 32, 112, 120]
WD = lambda k: 40 + 4 * k
PQ = lambda i, h: AC(2 * h, i)
PP = lambda p, f: ((96, 104), (ACC(4, 0), ACC(6, 0)), (ACC(5, 0), ACC(7, 0)))[p - 1][f >> 1] + 4 * (f & 1)
VFL, VPO, GG, VOUT, SEL0 = 2, 3, 94, 4, 88
slot2 = lambda m: ((m + 2) % NSL) * P2SLOT


def ord_table(g, lo, tmp=None):
    pk = lambda o: sum(x << (4 * k) for k, x in enumerate(o))
    g.a(f"s_mov_b32 s{lo}, {hex(pk(ORD) & 0xffffffff)}\ns_mov_b32 s{lo+1}, {hex(pk(ORD) >> 32)}")
    for t8, own in {1: (1,), 2: (2, 3), 3: (4, 5), 4: (7,), 5: (8,), 6: (9, 10), 7: (11, 12)}.items():
        o = list(own) + [x for x in ORD if x not in own]
        g.a(f"s_cmp_eq_u32 s{S_CB}, {t8 ^ g.o['cbx']}\ns_cselect_b32 s{lo}, {hex(pk(o) & 0xffffffff)}, s{lo}\ns_cselect_b32 s{lo+1}, {hex(pk(o) >> 32)}, s{lo+1}")


def line_ops(n):
    return [f"s_bfe_u32 s54, s{4+n//8}, {hex((4<<16) | (4*(n%8)))}", "s_lshl_b32 s54, s54, 17", "s_add_u32 s54, s54, s46", "s_add_u32 s53, s54, 4096"]


def c_wread(n):
    u, j = n // 8, JORD[n % 8]
    return [(('W', n), f"ds_read_b64_tr_b16 v[{WB(n)+2*w}:{WB(n)+2*w+1}], v{VW2} offset:{((j>>2)*2+(u&1))*UNIT + (j&3)*32 + w*256}") for w in range(2)]


def c_loads(u, vm):
    o = []
    if u % 2 == 0: o += line_ops(u // 2)
    for i in range(4):
        o.append((f"buffer_load_dwordx4 {vr(AB(u,i))}, v{VA1 if i>>1 else VA0}, {W}, s{53 if i&1 else 54} offen offset:{(u&1)*2048} {HF[1]}", vm, ('A', u)))
    return o


def u_base(v):
    return slot2(NS + v % 4) + (2 * UNIT if v % 8 < 4 else 0) if v < 16 else slot2(16 + (v - 16) // 2) + (v & 1) * 2 * UNIT


def u_reads(v):
    return [(('U', v, k >> 1), f"ds_read_b64_tr_b16 v[{WD(k)+2*w}:{WD(k)+2*w+1}], v{VWD} offset:{(k>>2)*UNIT + (k&3)*32 + w*256}") for k in range(8) for w in range(2)]


def u_areg(v, kk, mi):
    if v >= 16: return ADP[2 * (v - 16) + kk] + 4 * mi
    return ((24, 112, 96, 72) if v < 8 else (8, 24, 112, 96))[v % 4] + 8 * kk + 4 * mi


def u_loads(v, vm):
    if v < 16:
        sb, ln = (46, ORD[NS + v % 4]) if v % 4 < 2 else (45, ND + v % 2)
        o = [f"s_add_u32 s54, s{sb}, {ln<<17}", f"s_add_u32 s53, s{sb}, {(ln<<17)+4096}"]
    else: o = [f"s_mov_b32 s54, {OREG+((v-16)<<17)}", f"s_mov_b32 s53, {OREG+((v-16)<<17)+4096}"]
    for kk in range(2):
        for mi in range(2): o.append((f"buffer_load_dwordx4 {vr(u_areg(v,kk,mi))}, v{VA1 if v < 8 else VA0}, {W}, s{54-mi} offen offset:{kk*2048} {HF[1] if v < 16 and v % 4 < 2 else 'sc1'}", vm, ('B', v, kk)))
    return o


class Stage:
    def __init__(self, g, q, extra, dens):
        self.g = g; self.q = list(q); self.extra = extra; self.dens = dens; self.carry = 0
    def a(self, x):
        self.g.a(x); self.g.st['since'] += 1
    def wait(self, key):
        need = [k for k, e in enumerate(self.q) if key is None or e == key]
        if need:
            n = min(14, len(self.q) - 1 - max(need))
            self.a(f"s_waitcnt lgkmcnt({n})"); self.q = self.q[len(self.q) - n:]
    def read(self, r):
        self.a(r[1]); self.q.append(r[0])
    def op(self, x):
        if isinstance(x, tuple): x[1].op(x[0], x[2]); self.g.st['since'] += 1
        else: self.a(x)
    def fill(self, used):
        ex, st = self.extra, self.g.st
        while used < self.dens and ex:
            if isinstance(ex[0], int):
                if st['since'] >= ex[0]: ex.pop(0); continue
                return
            if ex[0] == 'XW':
                if 'x' in self.q: return
                ex.pop(0); continue
            x = ex.pop(0)
            if callable(x): x(); used += 2; st['since'] = 0; continue
            if isinstance(x, tuple): x[1].op(x[0], x[2]); x = x[0]
            else: self.g.a(x)
            if x.startswith("ds_"): self.q.append('x')
            st['since'] = 0
            used = 0 if x.startswith("v_mfma") else used + (2 if x.startswith(("v_exp", "v_rcp")) else 1)


def c_slab(g, u, vm, q, extra=None, dens=2, own=False):
    S = Stage(g, q, extra, dens)
    UL = 2 * NS - 1
    ld = c_loads(u + 3, vm) if u + 3 <= UL else u_loads(u + 2 - UL, vm)
    dr = u_reads(0) if u == UL else []
    if u == 0: ld = [] if own else c_loads(2, vm) + ld
    ab = (lambda i: 40 + 16 * (u - 2) + 4 * i) if own and u in (2, 3) else (lambda i: AB(u, i))
    late = own and u == 1
    vm.wait(('A', u))
    for jj in range(8):
        n = 8 * u + jj
        R = c_wread(n + 3) if n + 3 < 16 * NS else []
        for k, i in enumerate(range(4) if jj % 2 == 0 else range(3, -1, -1)):
            S.wait(('W', n))
            S.a(mfma(ACC(JORD[jj], i), WB(n), ab(i), "0" if u == 0 else None))
            used = 1 if k == 3 else 0
            if R: S.read(R.pop(0)); used += 1
            if u % 2 == 1 and u < UL and jj == 4 and k == 2:
                S.a(f"v_add_u32 v{VW2}, {(slot2(u//2+1)-slot2(u//2)) & 0xffffffff}, v{VW2}"); used += 1
                if u // 2 + 1 not in g.o['sk']: S.a("s_barrier"); used = 2
            elif u == UL and jj == 1 and k == 2:
                S.a(f"v_add_u32 v{VWD}, {(u_base(0)-slot2(NS-1)) & 0xffffffff}, v{VW2}"); S.a("s_barrier"); used = 2
            elif dr and jj >= 2 and used < 2 and (k >= 2 or jj >= 5):
                S.read(dr.pop(0)); used += 1
            if ld and used < 2 and (((jj >= 5 and k in (1, 2)) if late else k in (1, 2) if u == 0 else (k == 2 and (jj % 2 == g.o['aspread'] - 1 or not g.o['aspread'] or (u % 2 == 1 and jj == 5))) if u < UL else (jj >= 2 and k < 2)) or isinstance(ld[0], str)):
                S.op(ld.pop(0)); used += 1
            S.fill(used)
    assert not ld and not dr
    return S.q


def unit(g, v, vm, q, extra, dens=2):
    S = Stage(g, q, extra, dens)
    R = u_reads(v + 1) if v < 15 + ND else []
    t = {0: 3, 2: 8, 5: 9, 6: 10, 7: 11}
    for n, w in enumerate(g.o['dld']):
        assert w >= (8, 8, 8, 10, 12, 13, 14, 15)[n]
        t[w] = 16 + n
    t = t.get(v)
    ld = u_loads(t, vm) if t is not None else []
    m = 0
    for k in range(8):
        if k % 4 == 0: vm.wait(('B', v, k >> 2))
        for mi in ((0, 1) if k % 2 == 0 else (1, 0)):
            S.wait(('U', v, k >> 1))
            acc = ACC((4 if v % 8 < 4 else 0) + (k & 3), mi + (2 if v < 8 else 0)) if v < 16 else ACC(k & 3, mi)
            S.a(mfma(acc, WD(k), u_areg(v, k >> 2, mi)))
            used = 1 if m % 4 == 3 else 0
            if R and m == 0:
                S.a(f"v_add_u32 v{VWD}, {(u_base(v+1)-u_base(v)) & 0xffffffff}, v{VWD}"); used += 1
                if v in (3, 12, g.o['r1']): S.a("s_barrier"); used += 1
            elif R:
                S.read(R.pop(0)); used += 1
                if m == 15: S.read(R.pop(0))
            if ld and m in (1, 2, 4, 6, 9, 13):
                S.op(ld.pop(0)); used += 1
            S.fill(used)
            m += 1
    assert not R and not ld
    return S.q


def spaced(lst, n):
    o = []
    for x in lst: o += [x, n]
    return o


def strs(ex):
    return [x for x in ex if not isinstance(x, int)]


def compute(g):
    a = g.a
    a("L_compute:")
    a("v_and_b32 v4, 15, v0\nv_lshrrev_b32 v5, 4, v0")
    a("v_bfe_u32 v6, v4, 3, 1\nv_bfe_u32 v7, v4, 1, 1\nv_lshl_add_u32 v6, v6, 1, v7")
    a(f"v_mul_u32_u24 v{VX}, {BLK}, v6")
    a("v_bfe_u32 v6, v4, 2, 1\nv_and_b32 v7, 1, v4\nv_lshl_add_u32 v6, v6, 1, v7")
    a(f"v_lshl_add_u32 v{VX}, v6, 7, v{VX}\nv_lshl_add_u32 v{VX}, v5, 4, v{VX}")
    a(f"s_mul_i32 s45, s{S_WAVE}, {2*UNIT}\nv_add_u32 v{VX}, s45, v{VX}")
    a("v_and_b32 v6, 1, v5\nv_bfe_u32 v7, v4, 3, 1\nv_lshl_add_u32 v6, v6, 1, v7")
    a(f"v_mul_u32_u24 v{VW}, {BLK}, v6")
    a("v_lshrrev_b32 v6, 1, v5\nv_bfe_u32 v7, v4, 2, 1\nv_lshl_add_u32 v6, v6, 2, v7")
    a(f"v_lshl_add_u32 v{VW}, v6, 7, v{VW}\nv_and_b32 v6, 3, v4\nv_lshl_add_u32 v{VW}, v6, 3, v{VW}")
    a(f"v_add_u32 v{VW}, {WBASE}, v{VW}")
    a(f"v_lshrrev_b32 v6, 5, v0\nv_and_b32 v7, 31, v0\nv_lshlrev_b32 v7, 3, v7\nv_lshl_add_u32 v{VQ}, v6, 9, v7")
    a(f"v_add_u32 v{VQ}, {WBASE+3*UNIT}, v{VQ}")
    for r in range(48, 256): a(f"v_mov_b32 v{r}, 0")
    a(f"s_mov_b32 s45, 7\ns_mov_b32 s46, 0\ns_mov_b32 s48, {(-2*XSLOT) & 0xffffffff}\ns_mov_b32 s49, {XSLOT}")
    a("s_mov_b32 s50, 0x3fb8aa3b\ns_mov_b32 s51, 0x358637bd")
    a(f"s_and_b32 s52, s{S_MB8}, 3\ns_lshl_b32 s52, s52, 21\ns_lshl_b32 s53, s{S_WAVE}, 15\ns_add_u32 s52, s52, s53")
    a(f"s_and_b32 s53, s{S_QD}, 1\ns_mul_i32 s53, s53, 7\ns_lshl_b32 s55, s32, 6\ns_add_u32 s53, s53, s55")
    a(f"s_add_u32 s66, s53, 6\ns_lshl_b32 s66, s66, 17\ns_add_u32 s66, s66, s52")
    a(f"s_lshr_b32 s55, s{S_C}, 1\ns_lshl_b32 s55, s55, 11\ns_add_u32 s66, s66, s55")
    a(f"s_and_b32 s55, s{S_C}, 1\ns_lshl_b32 s55, s55, 10\ns_add_u32 s66, s66, s55")
    a("s_add_u32 s67, s66, 16384")
    a(f"s_lshr_b32 s57, s{S_WAVE}, 1\ns_and_b32 s58, s{S_WAVE}, 1")
    a(f"s_lshl_b32 s59, s2, 11\ns_lshl_b32 s55, s{S_WAVE}, 7\ns_add_u32 s59, s59, s55\ns_add_u32 s59, s59, {WS_FLAG}")
    a(f"s_add_u32 s60, s59, {F_H2}\ns_add_u32 s61, s59, {F_X}")
    a("v_lshlrev_b32 v4, 4, v0\nv_mov_b32 v6, 1")
    lane_goodcol(g, 7, 5)
    a("s_waitcnt lgkmcnt(0)")
    srd(g, SRD_WS, 26, 0x10000000)
    ord_table(g, 4)
    a(f"s_lshl_b32 s6, s{S_RH}, 14\ns_xor_b32 s7, s6, 16384\ns_add_u32 s6, s6, s52\ns_add_u32 s7, s7, s52\ns_lshl_b32 s8, s32, 23\ns_lshl_b32 s9, s32, 18\ns_add_u32 s9, s9, {OREG}")
    a(f"s_lshl_b32 s16, s{S_WAVE}, 13\ns_lshl_b32 s17, s{S_WAVE}, 10\ns_add_u32 s17, s17, {P2END}")
    if g.o.get('prio'): a(f"s_setprio {g.o['prio']}")
    a("s_barrier")
    g.stamp(1)

    def em(lst):
        for x in lst: a(x)
    def p2_setup():
        a(f"v_add_u32 v{VA0}, s6, v7\nv_add_u32 v{VA1}, s7, v7\ns_mov_b32 s46, s8\ns_mov_b32 s45, s9\nv_add_u32 v{VW2}, {(slot2(0)-WBASE) & 0xffffffff}, v{VW2}")
    def moves(dst, tile):
        l0, l1 = g.lab("mv"), g.lab("mv")
        f = lambda x: "\n".join(f"v_mov_b64 v[{d+4*i+r}:{d+4*i+r+1}], v[{AC(t,i^x)+r}:{AC(t,i^x)+r+1}]" for d, t in zip(dst, tile) for i in range(4) for r in (0, 2))
        return [f"s_cmp_lg_u32 s{S_RH}, 0\ns_cbranch_scc1 {l0}\n{f(0)}\ns_branch {l1}\n{l0}:\n{f(2)}\n{l1}:"]
    def c_begin(vm, mv=()):
        g.stamp(4)
        a("s_waitcnt lgkmcnt(0)")
        em(mv)
        a("s_barrier")
        g.stamp(5)
        R = c_wread(0) + c_wread(1) + c_wread(2)
        for _, x in R: a(x)
        return [k for k, _ in R]
    def flag_ex(vm, tag, so):
        return lambda: (vm.wait(tag), a(flagops(6, so)), vm.mark('f', 1))
    def quarter(tmp):
        o = [f"v_bfe_u32 v{VQ}, v0, 4, 1", f"v_mul_u32_u24 v{VQ}, 3584, v{VQ}", f"v_lshrrev_b32 v{tmp}, 5, v0", f"v_lshlrev_b32 v{tmp}, 9, v{tmp}",
             f"v_sub_u32 v{VQ}, v{VQ}, v{tmp}", f"v_add_u32 v{VQ}, v{VQ}, v7"]
        for p in (1, 0):
            d = AC(12, 2 * p)
            o += h_cvt(d, d, d + 4)
        for p in (1, 0):
            d = AC(12, 2 * p)
            o += [f"s_nop 1\nv_permlane16_swap_b32 v{d}, v{d+2}", f"v_permlane16_swap_b32 v{d+1}, v{d+3}",
                  f"buffer_store_dwordx4 {vr(d)}, v{VQ}, {W}, s{66+p} offen {HF[0]}"]
        return o

    a(f"s_cmp_ge_u32 s{S_C}, 2\ns_cbranch_scc1 L_cq")
    a(f"s_add_u32 s55, s53, s{S_C}\ns_lshl_b32 s55, s55, 17\ns_add_u32 s55, s55, s52")
    p1_loop(g, True)
    SEL = lambda t: 224 + 4 * t
    T = lambda t: (176 + 4 * t) if t < 4 else (240 + 4 * (t - 4)) if t < 8 else 204
    ex2 = ["v_and_b32 v201, 3, v0", "v_mov_b32 v202, 0x3f803f80"]
    for t in range(4):
        ex2 += [f"v_cmp_eq_u32 vcc, {t}, v201\ns_nop 1\nv_cndmask_b32 v{SEL(t)}, 0, v202, vcc"] + [f"v_mov_b32 v{SEL(t)+r}, v{SEL(t)}" for r in (1, 2, 3)]
    ex2 += quarter(200)
    for s_ in range(4):
        for p in range(2):
            ex2 += phi_regs(list(range(AC(s_, 2 * p), AC(s_, 2 * p) + 8)), 192, 2 * s_ + p >= g.o.get('pk0', 2)) + pack8(AC(s_, 2 * p), AC(s_, 2 * p + 1))
        if s_ == 1: ex2.append(None)
    rest = p1_tail(g, True, h_line_store(8, 55), ex2, flagops(6, 59))
    g.stamp(2)
    k = rest.index(None)
    em(rest[:k]); rest = rest[k + 1:]
    em(moves((24,), (8,)))
    for s_ in range(4, 8):
        for p in (1, 0): em(pack8(AC(s_, 2 * p), AC(s_, 2 * p + 1)))
    def kv_mfmas(h):
        o = []
        for p in range(2):
            for dt in range(2):
                for e in range(2): o.append(mfma(T((h * 2 + e) * 2 + dt), AC(2 * h + dt, 2 * p), AC(4 + 2 * h + e, 2 * p), "0" if p == 0 else None))
                o.append(mfma(T(8), AC(2 * h + dt, 2 * p), SEL(2 * h + dt), "0" if (h, p, dt) == (0, 0, 0) else None))
        return o
    wr = lambda t: f"ds_write_b128 v5, {vr(T(t))} offset:{t*1024}"
    a("v_add_u32 v5, s16, v4\ns_waitcnt vmcnt(0)")
    a(flagops(6, *((60,) if g.o['fpos'] < 64 else (59, 60))))
    for x in kv_mfmas(0):
        a(x); em(rest[:3]); rest = rest[3:]
    vm = VM(a)
    for t in range(4): em(rest[:10]); rest = rest[10:]; a(wr(t))
    em(moves((112,), (10,))); em(rest)
    a("s_nop 1")
    em(kv_mfmas(1))
    p2_setup()
    a("v_add_u32 v88, s17, v4\ns_nop 0")
    for t in (4, 6, 5, 7): a(wr(t))
    a(f"ds_write_b128 v88, {vr(T(8))}")
    g.stamp(3)
    q = c_begin(vm)
    JU = g.o['ju']
    for u in range(JU): q = c_slab(g, u, vm, q)
    qj, vj = list(q), list(vm.q)
    a("s_branch L_c2join")
    a("L_cq:")
    a(f"s_lshl_b32 s55, s{S_C}, 1\ns_add_u32 s55, s55, s53\ns_sub_u32 s55, s55, 2\ns_lshl_b32 s55, s55, 17\ns_add_u32 s55, s55, s52")
    a("s_add_u32 s62, s55, 0x20000")
    p1_loop(g, False)
    b2 = quarter(AC(5, 0)) + [x for x in h_line_store(8, 62) if x.startswith("v_")]
    mv = moves((40, 56), (8, 10))
    late2 = [f"buffer_store_dwordx4 {vr(40+16*p+4*i)}, v{VA1 if i>>1 else VA0}, {W}, s{63 if i&1 else 62} offen offset:{p*2048} {HF[0]}" for p in range(2) for i in range(4)]
    em(p1_tail(g, False, h_line_store(4, 55), b2, flagops(6, 59)))
    g.stamp(2)
    vm = VM(a, ['h2'])
    hand_q = []
    for h in range(2):
        for i in (2, 3, 0, 1): hand_q.append(pack8(AC(2 * h, i), AC(2 * h + 1, i)) + [f"ds_write_b128 v5, {vr(PQ(i,h))} offset:{(i*2+h)*1024}"])
    a(f"s_lshl_b32 s55, s{S_WAVE}, 13\nv_add_u32 v5, s55, v4")
    phg = g.o.get('phig', 4)
    for x in hand_q: em(x)
    p2_setup()
    a("s_sub_u32 s62, s62, s52\ns_add_u32 s63, s62, 4096")
    em(moves((24, 112), (4, 6)))
    g.stamp(3)
    q = c_begin(vm, mv)
    ex = []
    for x in late2: ex += [(x, vm, 'h2'), g.o['st2sp']]
    k = JU - (2 if late2 else JU)
    for u in range(JU):
        if u == k + 1:
            assert not strs(ex)
            ex = [60 if late2 else 0, flag_ex(vm, 'h2', 60)]
        q = c_slab(g, u, vm, q, ex, own=True)
    qq = [x for x in vm.q if x not in ('f', 'h2')]
    assert not ex and q == qj and qq == vj[len(vj) - len(qq):]
    a("L_c2join:")
    vm.q = list(vj)
    pre = (inbox(68, 56, S_WAVE) +
           "".join(f"s_xor_b32 s{61+p}, s68, {hex(p<<18)}\ns_add_u32 s{61+p}, s{61+p}, {WS_PART+((p-1)<<16)}\ns_add_u32 s{64+p}, s{61+p}, 4096\n" for p in (1, 2, 3)) +
           f"s_add_u32 s59, s59, {F_P}\ns_lshl_b32 s68, s{S_WAVE}, 12\ns_add_u32 s68, s68, {P2END}\n"
           f"s_add_u32 s69, s{S_WAVE}, {NS+2}\ns_and_b32 s69, s69, {NSL-1}\ns_mul_i32 s69, s69, {P2SLOT}\ns_add_u32 s69, s69, {2*UNIT}\n"
           f"s_mov_b32 s28, s18\ns_mov_b32 s29, s19\ns_mov_b32 s30, {hex(2048*1024*2)}\ns_mov_b32 s31, 0x20000\n"
           f"s_lshl_b32 s55, s{S_MB8}, 2\ns_add_u32 s55, s55, s{S_WAVE}\ns_lshl_b32 s55, s55, 17\ns_lshl_b32 s56, s{S_RH}, 16\ns_add_u32 s55, s55, s56\n"
           f"s_lshl_b32 s56, s{S_CB}, 8\ns_add_u32 s55, s55, s56\ns_lshl_b32 s56, s{S_KH}, 7\ns_add_u32 s55, s55, s56\n"
           f"s_lshl_b32 s50, s{S_WAVE}, 1\ns_add_u32 s50, s50, s{S_RH}\ns_lshl_b32 s50, s50, 7\ns_add_u32 s50, s50, {LDS_G}\n"
           f"v_and_b32 v{SEL0+6}, 15, v0\nv_lshrrev_b32 v{SEL0+7}, 4, v0\nv_lshlrev_b32 v{SEL0+7}, 2, v{SEL0+7}\nv_sub_u32 v{SEL0+6}, v{SEL0+6}, v{SEL0+7}\n"
           f"v_and_b32 v{SEL0+7}, 1, v0\nv_lshlrev_b32 v{SEL0+7}, 4, v{SEL0+7}\nv_mov_b32 v{SEL0}, 0x3f80\nv_lshlrev_b32 v{SEL0+7}, v{SEL0+7}, v{SEL0}\nv_lshrrev_b32 v{SEL0+6}, 1, v{SEL0+6}").split("\n")
    pre += [f"v_cmp_eq_u32 vcc, {k}, v{SEL0+6}\ns_nop 1\nv_cndmask_b32 v{SEL0+2+k}, 0, v{SEL0+7}, vcc" for k in range(2)]
    pre += [f"v_mov_b32 v{SEL0+r}, 0" for r in (0, 1, 4, 5)]
    ex = pre
    for u in range(JU, 2 * NS): q = c_slab(g, u, vm, q, ex)
    def send(p, sp, mi):
        j, i = 4 * (p >> 1) + 2 * sp, 2 * (p & 1) + mi
        return pack8(ACC(j, i), ACC(j + 1, i)) + [(f"buffer_store_dwordx4 {vr(ACC(j,i))}, v7, {W}, s{61+p+3*mi} offen offset:{sp*2048} sc1", vm, ('ps', p))]
    def rdp(p):
        return [f"ds_read_b128 {vr(PP(p,f))}, v{VFL if p == 3 else VPO} offset:{(4096 if p == 2 else 0)+f*1024}" for f in range(4)]
    def addp(p):
        return [mfma(ACC(2 * sp + t, mi), SEL0 + 2 - 2 * t, PP(p, mi * 2 + sp)) for mi in range(2) for sp in range(2) for t in range(2)]
    XF = g.o['xf']
    PO = (3, 1, 2)
    for v in range(17 + ND):
        if v == 1:
            assert not ex
            ex += (f"v_add_u32 v{VFL}, s68, v4\nv_add_u32 v{VPO}, s69, v4\nv_and_b32 v{VOUT}, 15, v0\nv_lshl_add_u32 v{GG}, v{VOUT}, 2, s50\n"
                   f"v_lshlrev_b32 v{VOUT}, 11, v{VOUT}\nv_bfe_u32 v{GG+1}, v0, 4, 1\nv_lshl_add_u32 v{VOUT}, v{GG+1}, 5, v{VOUT}\n"
                   f"v_lshrrev_b32 v{GG+1}, 5, v0\nv_lshl_add_u32 v{VOUT}, v{GG+1}, 4, v{VOUT}\n"
                   f"ds_read_b32 v{GG+1}, v{GG} offset:64\nds_read_b32 v{GG}, v{GG}").split("\n")
            ex += ['XW', f"v_add_f32 v{GG}, 1.0, v{GG}", f"v_add_f32 v{GG+1}, 1.0, v{GG+1}", f"v_rcp_f32 v{GG}, v{GG}", f"v_rcp_f32 v{GG+1}, v{GG+1}"]
        if 4 <= v < 16:
            if v % 4 == 0:
                snd = [send(PO[v // 4 - 1], sp, mi) for sp in range(2) for mi in range(2)]
                g.st['since'] = 0; ex.append(6)
            if v >= 12 and g.o.get('fast2', 1):
                if v % 4 < 2: ex += snd[2 * (v % 4)] + snd[2 * (v % 4) + 1]
            elif v % 4 < 2: ex += snd[2 * (v % 4)][:4] + [snd[v % 4][4]] + snd[2 * (v % 4) + 1][:4]
            else: ex += [snd[v % 4][4]]
        if v == 16: g.stamp(6)
        if v in (0, 4, 8, 12, 20): g.stamp({0: 11, 4: 12, 8: 13, 12: 14, 20: 15}[v])
        for r in range(3):
            if v == XF[r]:
                assert v >= (8, 12, 14 if g.o.get('fast2', 1) else 16)[r]
                vm.wait(('ps', PO[r])); a(flagops(6, 59)); vm.mark('f', 1); a(f"v_mov_b32 v6, {r+2}")
        if v == g.o['r1']:
            assert v >= 16 and not ex
            g.st['since'] = 0
            ex += [4] + rdp(3) + rdp(1) + ['XW'] + addp(3) + addp(1)
        if v < 16 + ND: q = unit(g, v, vm, q, ex, dens=g.o.get('ydens', 3) if v < 16 else g.o.get('ddens', 3))
        if 4 <= v < 16: assert not [x for x in ex if (isinstance(x, tuple) and x[2][0] == 'ps') or (isinstance(x, str) and x.startswith("v_cvt"))]
    assert not ex
    a("s_barrier")
    em(rdp(2))
    ad = addp(2)
    for f in range(4): a(f"s_waitcnt lgkmcnt({3-f})"); em(ad[2 * f:2 * f + 2])
    g.stamp(7)
    for mi in range(2):
        for hf in range(2):
            for j in range(2):
                for r in range(0, 4, 2): a(f"v_pk_mul_f32 v[{ACC(2*hf+j,mi)+r}:{ACC(2*hf+j,mi)+r+1}], v[{ACC(2*hf+j,mi)+r}:{ACC(2*hf+j,mi)+r+1}], v[{GG}:{GG+1}] op_sel:[0,{mi}] op_sel_hi:[1,{mi}]")
            d = ACC(2 * hf, mi)
            em(pack8(d, ACC(2 * hf + 1, mi)))
            a(f"s_add_u32 s56, s55, {0x8000*mi + 64*hf}\ns_nop 0\nv_permlane16_swap_b32 v{d}, v{d+2}\nv_permlane16_swap_b32 v{d+1}, v{d+3}")
            a(f"buffer_store_dwordx4 {vr(d)}, v{VOUT}, s[28:31], s56 offen {g.o.get('outflag','')}")
    if g.o['prof']:
        a("s_waitcnt vmcnt(0)")
        g.stamp(8)
    if g.o.get('probe') is not None:
        k = g.o['probe']
        if k == 'min':
            k = 0
            srd(g, 28, 24, 256)
            a("buffer_load_dword v5, off, s[28:31], 0 offset:4 sc1\ns_waitcnt vmcnt(0) lgkmcnt(0)\nv_readfirstlane_b32 s70, v5\ns_nop 3\ns_not_b32 s70, s70")
        a(f"s_waitcnt lgkmcnt(0)\ns_add_u32 s55, s{70+2*k}, 6000\nL_probe:\ns_memrealtime s[56:57]\ns_waitcnt lgkmcnt(0)\ns_sub_u32 s56, s56, s55\ns_cmp_lt_i32 s56, 0\ns_cbranch_scc1 L_probe\ns_endpgm")
    prof_dump(g, 0, 0)
    a("s_endpgm")


def q_call(g, n):
    K1 = g.o['k1']
    k = f"p{n}" if n < len(g.o['pch']) else 4 + n - K1 if K1 <= n <= K1 + g.o['noc'] else None
    if k is None: return
    l = g.lab("qc")
    if n == 0: g.a("s_call_b64 s[84:85], L_qp0"); return
    g.a(f"s_cmp_lt_u32 s{S_C}, 2\ns_cbranch_scc1 {l}\ns_call_b64 s[84:85], L_q{k}\n{l}:")


def q_chunks(g):
    a = g.a
    QR = lambda f: 128 + 4 * f
    def phi(f):
        if g.o.get('nophi'): return
        for r in range(4): a(f"v_lshlrev_b32 v{160+2*r}, 16, v{QR(f)+r}\nv_and_b32 v{161+2*r}, 0xffff0000, v{QR(f)+r}")
        for r in range(8): a(f"v_mul_f32 v{168+r}, 0x3fb8aa3b, v{160+r}")
        for r in range(8): a(f"v_exp_f32 v{168+r}, v{168+r} clamp\nv_max_f32 v{160+r}, 0x358637bd, v{160+r}")
        for r in range(8): a(f"v_add_f32 v{160+r}, v{160+r}, v{168+r}")
        for r in range(4): a(f"v_cvt_pk_bf16_f32 v{QR(f)+r}, v{160+2*r}, v{161+2*r}")
    nf = 0
    assert sum(g.o['pch']) == 8 and len(g.o['pch']) <= g.o['k0']
    a("L_k0:\ns_setprio 2")
    a(f"s_lshl_b32 s82, s86, 11\nv_lshl_add_u32 v224, v0, 4, s82\nv_lshlrev_b32 v225, 4, v0\nv_add_u32 v226, {P2END}, v225")
    for w in range(4):
        for t in range(2): a(f"ds_read_b128 {vr(128+8*w+4*t)}, v224 offset:{w*8192+t*1024}")
    for w in range(4): a(f"ds_read_b128 {vr(160+4*w)}, v226 offset:{w*1024}")
    a(f"s_lshl_b32 s83, s{S_PAIR}, 3\ns_add_u32 s83, s83, s{S_MB8}\ns_mul_i32 s83, s83, 9216\ns_add_u32 s83, s83, {WS_KVP}\ns_add_u32 s82, s82, s83")
    a("s_add_u32 s83, s83, 8192\ns_cmp_eq_u32 s86, 0\ns_cselect_b32 s83, s83, 0x10000000\ns_waitcnt lgkmcnt(4)")
    for r in range(16): a(f"v_add_f32 v{128+r}, v{128+r}, v{144+r}")
    for r in range(8): a(f"v_add_f32 v{128+r}, v{128+r}, v{136+r}")
    for t in range(2): a(f"buffer_store_dwordx4 {vr(128+4*t)}, v225, {W}, s82 offen offset:{t*1024} sc1")
    a("s_waitcnt lgkmcnt(0)")
    for r in range(8): a(f"v_add_f32 v{160+r}, v{160+r}, v{168+r}")
    for r in range(4): a(f"v_add_f32 v{160+r}, v{160+r}, v{164+r}")
    a(f"buffer_store_dwordx4 v[160:163], v225, {W}, s83 offen sc1\ns_setprio 0\ns_setpc_b64 s[84:85]")
    for k in range(len(g.o['pch'])):
        a(f"L_qp{k}:")
        if k == 0: a(f"s_sub_u32 s86, s{S_WAVE}, 4\ns_cmp_lt_u32 s{S_C}, 2\ns_cbranch_scc1 L_k0")
        if g.o.get('pprio'): a(f"s_setprio {g.o['pprio']}")
        if k == 0:
            a(f"s_sub_u32 s86, s{S_WAVE}, 4\ns_lshl_b32 s82, s86, 13\nv_lshl_add_u32 v224, v0, 4, s82")
            for f in range(8): a(f"ds_read_b128 {vr(QR(f))}, v224 offset:{f*1024}")
            a(f"s_lshl_b32 s83, s2, 11\ns_add_u32 s83, s83, {WS_FLAG+F_X}")
            a(f"s_and_b32 s82, s{S_MB8}, 3\ns_lshl_b32 s82, s82, 4\ns_add_u32 s82, s82, s{S_PAIR}\ns_lshl_b32 s82, s82, 2\ns_add_u32 s82, s82, s86\ns_lshl_b32 s82, s82, 15\ns_add_u32 s82, s82, {OREG}")
            a(f"v_lshlrev_b32 v224, 4, v0\nv_add_u32 v224, {P2END}, v224\nv_mov_b32 v226, 0\nds_write_b32 v224, v226 offset:8192\nv_mov_b32 v226, 1\ns_waitcnt lgkmcnt(0)")
        for _ in range(g.o['pch'][k]): phi(nf); nf += 1
        a("s_setpc_b64 s[84:85]")
    noc = g.o['noc']
    tiles = {2: [(0, 1), (2, 3)], 3: [(0,), (1, 2), (3,)], 4: [(0,), (1,), (2,), (3,)]}[noc]
    for k in range(noc):
        a(f"L_q{4+k}:")
        if g.o.get('qprio'): a(f"s_setprio {g.o['qprio']}")
        lane_goodcol(g, 225, 227)
        if k == 0:
            for f in range(6): a(f"ds_read_b128 {vr(176+4*f)}, v224 offset:{f*1024}")
            a(f"s_lshl_b32 s86, s{S_WAVE}, 8\ns_add_u32 s86, s86, {LDS_G-1024}\nv_and_b32 v227, 15, v0\nv_lshl_add_u32 v227, v227, 2, s86")
            for i in range(4): a(f"ds_read_b32 v{228+i}, v227 offset:{i*64}")
            a("s_waitcnt lgkmcnt(0)")
        for i in tiles[k]:
            for h in range(2):
                for e in (2, 0, 1): a(mfma(200 + 12 * h + 4 * e, 176 + 4 * (3 * h + e), QR(2 * i + h), "0"))
            a(f"s_add_u32 s86, s82, {MT(i)}\ns_nop 3")
            for h in range(2):
                t = 200 + 12 * h
                a(f"v_add_f32 v{t+8}, 0x358637bd, v{t+8}\nv_rcp_f32 v{t+8}, v{t+8}\ns_nop 0\nv_mul_f32 v{t+8}, v{228+i}, v{t+8}")
                for r in range(8): a(f"v_mul_f32 v{t+r}, v{t+r}, v{t+8}")
                for r in range(4): a(f"v_cvt_pk_bf16_f32 v{QR(2*i+h)+r}, v{t+2*r}, v{t+2*r+1}")
                a(f"buffer_store_dwordx4 {vr(QR(2*i+h))}, v225, {W}, s86 offen offset:{h*2048} sc1")
        if g.o.get('qprio'): a("s_setprio 0")
        a("s_setpc_b64 s[84:85]")
    a(f"L_q{4+noc}:\ns_waitcnt vmcnt(0)\nds_add_rtn_u32 v227, v224, v226 offset:8192\ns_waitcnt lgkmcnt(0)\nv_cmp_eq_u32 vcc, 3, v227\ns_cbranch_vccz L_qret")
    a(flagops(226, 83) + "\nL_qret:\ns_mov_b64 vcc, -1\ns_setpc_b64 s[84:85]")


def aux_sel(g):
    if g.o['pol'] is None: g.a(f"v_mov_b32 v227, {LDS_SEL}\nds_read_b32 v227, v227\ns_waitcnt lgkmcnt(0)\nv_readfirstlane_b32 s33, v227\ns_nop 1\ns_xor_b32 s{S_SEL}, s{S_SEL}, s33")


def aux_rx(g):
    a = g.a
    a("L_rx:")
    lane_goodcol(g, 225, 227)
    a(f"v_add_u32 v224, 1024, v225\ns_sub_u32 s86, s{S_WAVE}, 4")
    a(inbox(82, 83, 86) + f"s_add_u32 s82, s82, {WS_PART}")
    a(f"s_lshl_b32 s83, s2, 11\ns_lshl_b32 s47, s86, 7\ns_add_u32 s83, s83, s47")
    a(f"s_lshl_b32 s84, s86, 12\ns_add_u32 s84, s84, {P2END}")
    a(f"s_add_u32 s85, s86, {NS+2}\ns_and_b32 s85, s85, {NSL-1}\ns_mul_i32 s85, s85, {P2SLOT}\ns_add_u32 s85, s85, {2*UNIT}")
    a("s_waitcnt vmcnt(0) lgkmcnt(0)\ns_barrier")
    for r, p in enumerate((3, 1, 2)):
        a(f"s_xor_b32 s47, s83, {p<<11}\ns_add_u32 s47, s47, {WS_FLAG+F_P}")
        iss = lambda: a(f"buffer_load_dword v226, off, {W}, s47 sc1")
        if r == 2: a("s_waitcnt vmcnt(0)"); iss(); a("s_barrier")
        else: iss()
        poll_check(g, iss, 226, 1, r + 1, "gt")
        for mi in range(2):
            a(f"s_add_u32 m0, s{84 if p == 3 else 85}, {(4096 if p == 2 else 0)+mi*2048}\ns_add_u32 s47, s82, {((p-1)<<16)+mi*4096}")
            a(f"buffer_load_dwordx4 v225, {W}, s47 offen sc1 lds\nbuffer_load_dwordx4 v224, {W}, s47 offen offset:1024 sc1 lds")
    a("s_waitcnt vmcnt(0)\ns_endpgm")


def loader(g):
    def a(x):
        if not g.o.get('trace'): return g.a(x)
        for ln in x.split("\n"):
            g.a(ln)
            if ln.strip() == "s_barrier":
                g.a(("s_memtime" if g.o['trace'] == 'cyc' else "s_memrealtime") + " s[100:101]\ns_waitcnt lgkmcnt(0)\ns_mov_b32 m0, s44\ns_add_u32 s44, s44, 1\nv_writelane_b32 v32, s100, m0\ns_cmp_lg_u32 s44, 33\ns_cbranch_scc1 1\nv_mov_b32 v33, v32")
    if g.o.get('trace'): a("s_mov_b32 s44, 0\nv_mov_b32 v32, 0\nv_mov_b32 v33, 0")
    LW = 45
    if g.o.get('lprio'): a(f"s_setprio {g.o['lprio']}")
    a(f"s_sub_u32 s{LW}, s{S_WAVE}, 4")
    a("v_lshrrev_b32 v1, 5, v0\nv_bfe_u32 v2, v0, 4, 1\nv_lshlrev_b32 v1, 4, v1\nv_lshl_add_u32 v1, v2, 2, v1\nv_bfe_u32 v2, v0, 3, 1\nv_add_u32 v1, v1, v2")
    a(f"s_lshl_b32 s61, s{LW}, 3\nv_add_u32 v1, s61, v1\nv_and_b32 v2, 7, v0\nv_lshlrev_b32 v2, 4, v2")
    a(f"s_lshl_b32 s61, s{S_MB8}, 19\nv_lshl_add_u32 v4, v1, 11, v2\nv_add_u32 v4, s61, v4\nv_add_u32 v5, {4096-BLK}, v4")
    a(f"s_movk_i32 s60, 6144\ns_cmp_ge_u32 s{S_C}, 2\ns_cselect_b32 s60, 7168, s60")
    a(f"s_cselect_b32 s61, 0, 2048\ns_lshl_b32 s62, s{S_PAIR}, 7\ns_add_u32 s61, s61, s62")
    a(f"v_mul_u32_u24 v6, 6144, v1\nv_add3_u32 v6, v6, v2, s61\nv_add_u32 v7, {12288-BLK}, v6")
    a(f"s_mul_i32 s63, s{S_QD}, 7\ns_lshl_b32 s64, s{S_C}, 1\ns_add_u32 s64, s64, s63\ns_sub_u32 s65, s64, 2\ns_lshl_b32 s65, s65, 7\ns_add_u32 s62, s62, 4096")
    a(f"s_cmp_ge_u32 s{S_C}, 2\ns_cselect_b32 s61, s65, s62")
    a(f"v_mul_lo_u32 v8, v1, s60\nv_add3_u32 v8, v8, v2, s61\ns_lshl_b32 s62, s60, 1\ns_sub_u32 s62, s62, {BLK}\nv_add_u32 v9, s62, v8")
    a(f"s_sub_u32 s64, s64, 1\ns_add_u32 s65, s63, s{S_C}\ns_cmp_ge_u32 s{S_C}, 2\ns_cselect_b32 s61, s64, s65\ns_lshl_b32 s61, s61, 7")
    a(f"v_mul_u32_u24 v10, 7168, v1\nv_add3_u32 v10, v10, v2, s61\nv_add_u32 v11, {14336-BLK}, v10")
    a("v_bfe_u32 v12, v0, 4, 1\nv_bfe_u32 v13, v0, 3, 1\nv_lshlrev_b32 v12, 2, v12\nv_lshl_add_u32 v12, v13, 3, v12\nv_bfe_u32 v13, v0, 1, 2\nv_add_u32 v12, v12, v13")
    a(f"s_lshl_b32 s61, s{LW}, 4\nv_add_u32 v12, s61, v12\nv_mul_u32_u24 v12, 7168, v12\nv_and_b32 v13, 1, v0\nv_lshl_add_u32 v12, v13, 4, v12")
    a(f"s_add_u32 s61, s63, 6\ns_lshl_b32 s61, s61, 7\ns_lshl_b32 s62, s{S_C}, 5\ns_add_u32 s61, s61, s62\nv_add_u32 v12, s61, v12")
    a("s_lshl_b32 s60, s60, 5")
    a(f"s_mul_i32 s66, s{LW}, {2*BLK}")
    a(f"s_mov_b32 s61, s66\ns_mov_b32 s62, 0\ns_mov_b32 s63, 0\ns_mov_b32 s64, 0\ns_add_u32 s65, s66, {WBASE}")
    a(f"s_add_u32 s67, s66, {XRING}\ns_add_u32 s68, s66, {WBASE+4*WSLOT}")
    a(f"s_lshl_b32 s69, s{LW}, 9\ns_sub_u32 s69, s69, s66\ns_add_u32 s69, s69, {3*UNIT}")
    a(f"s_mov_b32 s30, {hex(2048*1024*2)}\ns_mov_b32 s31, 0x20000\ns_mov_b32 s50, {hex(1024*3072*2)}\ns_mov_b32 s51, 0x20000")
    a(f"s_mov_b32 s58, {hex(1024*3584*2)}\ns_mov_b32 s59, 0x20000\ns_mov_b32 s55, 0x20000")
    a("s_waitcnt lgkmcnt(0)")
    a("s_mov_b64 s[28:29], s[4:5]\ns_mov_b64 s[48:49], s[6:7]\ns_mov_b64 s[56:57], s[12:13]")
    a(f"s_cmp_ge_u32 s{S_C}, 2")
    a("s_cselect_b64 s[52:53], s[12:13], s[6:7]\ns_cselect_b32 s54, s58, s50")

    def xhalf():
        a("s_mov_b32 m0, s61\ns_add_u32 s46, s62, s63")
        for u in range(4):
            if u: a(f"s_add_u32 m0, m0, {UNIT}\ns_add_u32 s46, s46, 0x10000")
            a("buffer_load_dwordx4 v4, s[28:31], s46 offen lds")
            a(f"buffer_load_dwordx4 v5, s[28:31], s46 offen offset:{BLK} lds")
        a(f"s_add_u32 s61, s61, {4*UNIT}\ns_cmp_eq_u32 s61, s67\ns_cselect_b32 s61, s66, s61")
        a("s_xor_b32 s63, s63, 0x40000\ns_cselect_b32 s47, 0, 128\ns_add_u32 s62, s62, s47\ns_and_b32 s62, s62, 2047")

    def wslab():
        for ln, (sr, ld) in enumerate([(48, 32 * 6144), (52, "s60"), (56, 32 * 7168)]):
            a(f"s_add_u32 m0, s65, {ln*UNIT}\ns_mul_i32 s35, s64, {ld}")
            a(f"buffer_load_dwordx4 v{6+2*ln}, s[{sr}:{sr+3}], s35 offen lds")
            a(f"buffer_load_dwordx4 v{7+2*ln}, s[{sr}:{sr+3}], s35 offen offset:{BLK} lds")
        a("s_add_u32 m0, s65, s69\ns_mov_b32 exec_hi, 0")
        a("buffer_load_dwordx4 v12, s[56:59], s35 offen lds")
        a("s_mov_b32 exec_hi, -1")
        a(f"s_add_u32 s65, s65, {WSLOT}\ns_cmp_eq_u32 s65, s68\ns_cselect_b32 s65, s67, s65")
        a("s_add_u32 s64, s64, 1\ns_and_b32 s64, s64, 31")

    g.stamp(1)
    xhalf(); wslab(); xhalf(); wslab(); g.stamp(2)
    a("s_waitcnt vmcnt(7)"); g.stamp(3)
    a("s_barrier")
    SM = g.o.get('smooth', 1)
    if SM:
        xhalf(); xhalf(); wslab()
        a("s_waitcnt vmcnt(23)\ns_barrier")
        wslab(); xhalf(); wslab()
        a("s_waitcnt vmcnt(22)\ns_barrier")
        xhalf(); wslab(); xhalf()
    else:
        xhalf(); wslab(); xhalf(); wslab(); xhalf()
    g.stamp(4)
    real_a, buf = g.a, []
    g.a = lambda x: buf.extend(x.split("\n"))
    srd(g, SRD_WS, 26, 0x10000000)
    a(f"s_mov_b32 s10, {hex(1024*1024*2)}\ns_mov_b32 s11, 0x20000")
    a(f"s_mov_b64 s[12:13], s[14:15]\ns_mov_b32 s14, {hex(3584*1024*2)}\ns_mov_b32 s15, 0x20000")
    a("v_lshrrev_b32 v1, 5, v0\nv_bfe_u32 v3, v0, 4, 1\nv_lshlrev_b32 v1, 3, v1\nv_lshl_add_u32 v1, v3, 4, v1\nv_bfe_u32 v3, v0, 3, 1\nv_add_u32 v1, v1, v3")
    a(f"s_lshl_b32 s4, s{LW}, 2\nv_add_u32 v1, s4, v1")
    a(f"s_lshl_b32 s4, s{S_CB}, 8\ns_lshl_b32 s5, s{S_KH}, 7\ns_add_u32 s4, s4, s5")
    a("v_lshl_add_u32 v14, v1, 11, v2\nv_add_u32 v14, s4, v14\nv_xor_b32 v16, 128, v14")
    a(f"v_add_u32 v15, {4096-BLK}, v14\nv_add_u32 v17, {4096-BLK}, v16")
    a(f"s_lshl_b32 s5, s{S_MB8}, 19\ns_sub_u32 s4, s4, s5")
    a(f"v_add_u32 v24, s4, v4\nv_xor_b32 v26, 128, v24\nv_add_u32 v25, {4096-BLK}, v24\nv_add_u32 v27, {4096-BLK}, v26")
    lane_h(g, 21, 22, 17)
    a(f"s_mul_i32 s6, s32, {14<<17}\ns_lshl_b32 s7, s32, 18")
    a("s_mov_b64 s[24:25], s[12:13]\ns_mov_b32 s26, s14\ns_mov_b32 s27, 0x20000")
    ord_table(g, 4)
    g.a = real_a
    cut = max(i for i, x in enumerate(buf) if x.startswith("s_mov_b64 s[24:25], s[12:13]"))
    NU = 6
    a(f"s_mov_b32 s34, {27-NU-2*SM}")
    a("L_l1:")
    a("s_waitcnt vmcnt(30)\ns_barrier")
    wslab(); xhalf()
    a("s_sub_u32 s34, s34, 1\ns_cmp_lg_u32 s34, 0\ns_cbranch_scc1 L_l1")
    t0 = 27 - NU
    vm = VM(a, [('I', t0 - 3)] * 15 + [('I', t0 - 2)] * 15 + [('I', t0 - 1)] * 15)
    busy = [False]
    def wstage(m):
        if m < 14: a(f"s_bfe_u32 s16, s{4+m//8}, {hex((4<<16) | (4*(m%8)))}\ns_lshl_b32 s16, s16, 17\ns_add_u32 s16, s16, s6")
        for ln in range(2):
            for kk in range(2):
                if g.o.get('wpace') and m >= 3 and (ln or kk):
                    a(f"s_cbranch_vccnz 1\ns_sleep {g.o['wpace']}" if busy[0] else f"s_sleep {g.o['wpace']}")
                a(f"s_add_u32 m0, s66, {slot2(m)+(ln*2+kk)*UNIT}")
                if m < 14:
                    vb, sr = (24 if ORD[m] % 7 == 6 else 14) + 2 * ln, 24 if ln else 12
                    a(f"s_add_u32 s47, s16, {kk<<16}")
                elif m < 16:
                    vb, sr = 14 + 2 * ln, 8
                    a(f"s_add_u32 s47, s7, {((ND+m-14)<<17)+(kk<<16)}")
                else:
                    vb, sr = 14, 8
                    a(f"s_mov_b32 s47, {((2*(m-16)+ln)<<17)+(kk<<16)}")
                for jb in range(2):
                    vm.op(f"buffer_load_dwordx4 v{vb+jb}, s[{sr}:{sr+3}], s47 offen offset:{jb*BLK} sc1 lds", m)
    for t in range(t0, 27):
        vm.wait(('I', t - 3)); a("s_barrier")
        wslab(); xhalf(); vm.mark(('I', t), 15)
        k = t - t0
        for x in (buf[k * cut // 5:(k + 1) * cut // 5] if k < 5 else buf[cut:]): a(x)
    vm.wait(('I', 25)); a("s_barrier")
    wslab(); vm.mark(('I', 27), 7)
    vm.wait(('I', 26)); a("s_barrier")
    wstage(0)
    vm.wait(('I', 27)); a("s_barrier")
    wstage(1)
    aux_sel(g)
    a("s_barrier")
    nxt = 2
    for _ in range(g.o.get('w31', 1)): wstage(nxt); nxt += 1
    a("s_barrier")
    g.stamp(5)
    for _ in range(g.o.get('w32', 0)): wstage(nxt); nxt += 1
    a(f"s_cmp_ge_u32 s{S_C}, 2\ns_cselect_b64 vcc, -1, 0")
    sched = g.o.get('wsched', [1, 1, 1, 1, 2, 1, 2, 1, 1, 1, 2, 1, 1, 1])
    for n in range(0, 14):
        SK = g.o['sk']
        if n not in SK:
            need = n
            while need + 1 in SK: need += 1
            if n >= 12: need = 15
            lim = {0: 5}.get(n, n + 6)
            assert nxt > need
            vm.wait(need); a("s_barrier")
        else: vm.wait(nxt - 1)
        fl = n == g.o['k1'] + g.o['noc']
        fl = fl or (n == 0 and g.o.get('k0first', 1))
        if fl: q_call(g, n)
        busy[0] = n < len(g.o['pch']) or g.o['k1'] <= n <= g.o['k1'] + g.o['noc']
        for _ in range(sched[n]):
            assert nxt <= lim
            wstage(nxt); nxt += 1
        if not fl: q_call(g, n)
    assert nxt == 20
    if g.o.get('trace'):
        l = g.lab("tr")
        a(f"s_cmp_lg_u32 s{S_WAVE}, 4\ns_cbranch_scc1 {l}\ns_lshl_b32 s33, s2, 9\ns_add_u32 s33, s33, {WS_PROF+0x20000}\nv_lshlrev_b32 v5, 2, v0")
        a(f"buffer_store_dword v33, v5, {W}, s33 offen\nbuffer_store_dword v32, v5, {W}, s33 offen offset:256\n{l}:")
    aux_rx(g)


def pf_item(g, wait=False):
    a = g.a
    a(f"s_mul_hi_u32 s47, s68, {(2**32+16)//17}\ns_mul_i32 s33, s47, 17\ns_sub_u32 s33, s68, s33")
    a("s_lshl_b32 s50, s47, 1\ns_add_u32 s50, s50, s87\ns_lshl_b32 s50, s50, 5")
    a("s_mul_i32 s51, s32, 7\ns_add_u32 s51, s51, s33\ns_sub_u32 s51, s51, 10")
    a("s_sub_u32 s35, s33, 4\ns_lshr_b32 s54, s35, 1\ns_lshl_b32 s54, s54, 2\ns_add_u32 s54, s54, s32\ns_lshl_b32 s54, s54, 1\ns_and_b32 s35, s35, 1\ns_add_u32 s35, s35, s54")
    a(f"s_movk_i32 s55, 7168\ns_mov_b32 s54, {hex(1024*3584*2)}\ns_cmp_lt_u32 s33, 10\ns_cselect_b32 s51, s35, s51\ns_cselect_b32 s35, 6144, s55\ns_cselect_b32 s54, {hex(1024*3072*2)}, s54")
    a("s_mul_i32 s50, s50, s35\ns_lshl_b32 s51, s51, 8\ns_add_u32 s50, s50, s51")
    a(f"s_lshl_b32 s51, s{S_XCD}, 2\ns_add_u32 s51, s51, s33\ns_lshl_b32 s51, s51, 17\ns_lshl_b32 s47, s47, 7\ns_add_u32 s47, s47, s51")
    a(f"s_cmp_lt_u32 s33, 4\ns_cselect_b32 s47, s47, s50\ns_cselect_b32 s35, 4096, s35\ns_cselect_b32 s50, 11, 7\ns_cselect_b32 s54, {hex(2048*1024*2)}, s54\ns_mov_b32 s55, 0x20000")
    a("v_lshrrev_b32 v10, 1, v0\nv_and_b32 v11, 1, v0\nv_mul_lo_u32 v10, v10, s35\nv_lshl_add_u32 v10, v11, s50, v10")
    if wait: a("s_waitcnt lgkmcnt(0)")
    a("s_cmp_lt_u32 s33, 10\ns_cselect_b64 s[52:53], s[6:7], s[12:13]\ns_cmp_lt_u32 s33, 4\ns_cselect_b64 s[52:53], s[4:5], s[52:53]")
    a("buffer_load_dword v9, v10, s[52:55], s47 offen")


def helper(g):
    a = g.a
    a("L_helper:")
    HW = 45
    def bars(n):
        for _ in range(n): a("s_barrier")
    if g.o.get('hprio'): a(f"s_setprio {g.o['hprio']}")
    a(f"s_sub_u32 s{HW}, s{S_WAVE}, 6")
    a("v_lshlrev_b32 v4, 4, v0\nv_lshlrev_b32 v5, 2, v0\nv_mov_b32 v6, 0\nv_mov_b32 v7, 1\nv_lshlrev_b32 v8, 7, v0")
    a(f"s_getpc_b64 s[96:97]\nL_pc:\ns_sub_u32 s96, s96, L_pc-{NAME}\ns_subb_u32 s97, s97, 0")
    a(f"s_mov_b32 s98, L_codeend-{NAME}\ns_mov_b32 s99, 0x20000")
    a(f"s_lshl_b32 s100, s30, 1\ns_add_u32 s100, s100, s{HW}\ns_lshl_b32 s100, s100, 11")
    def codepf():
        a("s_mov_b64 exec, 0xffff\nbuffer_load_dword v9, v8, s[96:99], s100 offen\ns_mov_b64 exec, -1")
    codepf()
    a(f"s_lshl_b32 s46, s32, 3\ns_add_u32 s46, s46, s{S_CB}\ns_lshl_b32 s47, s{S_MB8}, 5\ns_add_u32 s46, s46, s47")
    a("s_waitcnt lgkmcnt(0)")
    srd(g, SRD_WS, 26, 0x10000000)
    srd(g, 28, 4, 2048 * 1024 * 2)
    srd(g, 92, 24, 256)
    for r in range(12, 16): a(f"v_mov_b32 v{r}, -1")
    a(f"s_mov_b32 s33, 0x10000000\ns_lshl_b32 s88, s{S_PAIR}, 3\ns_add_u32 s88, s88, s{S_MB8}\ns_mul_i32 s88, s88, 9216\ns_add_u32 s88, s88, {WS_KVP}")
    a(f"s_mul_i32 s89, s{S_PAIR}, 6144\ns_lshl_b32 s47, s{S_MB8}, 10\ns_add_u32 s89, s89, s47\ns_add_u32 s89, s89, {WS_KVF}")
    a(f"s_cmp_ge_u32 s{S_MB8}, 6\ns_cselect_b32 s89, s33, s89\ns_cmp_ge_u32 s{S_C}, 2\ns_cselect_b32 s88, s33, s88\ns_cselect_b32 s89, s33, s89")
    def init0(k):
        if k == 0:
            for r in range(16, 20): a(f"v_mov_b32 v{r}, 0")
            a(f"s_lshl_b32 s47, s2, 11\ns_add_u32 s47, s47, {WS_FLAG}")
            a(f"buffer_store_dwordx4 v[16:19], v4, {W}, s47 offen sc1\nbuffer_store_dwordx4 v[16:19], v4, {W}, s47 offen offset:1024 sc1")
        elif k == 1:
            a(f"buffer_store_dwordx4 v[12:15], v4, {W}, s89 offen sc1")
            a(f"s_mov_b64 exec, 0xff\ns_lshl_b32 s47, s46, 7\ns_add_u32 s47, s47, {WS_FLAG+F_G}")
            a(f"buffer_store_dwordx4 v[12:15], v4, {W}, s47 offen sc1\ns_mov_b64 exec, -1")
        else:
            a(f"buffer_store_dwordx4 v[12:15], v4, {W}, s88 offen sc1\ns_add_u32 s88, s88, 1024")
    issd = lambda: a("buffer_load_dword v23, off, s[92:95], 0 sc1")
    def init3():
        ok = g.lab("rdy")
        a(f"v_cmp_eq_u32 vcc, 0, v23\ns_cbranch_vccz {ok}")
        issd(); poll_check(g, issd, 23, 1, 0, "eq")
        a(f"{ok}:\nv_and_b32 v23, 0x2000, v23\nv_mov_b32 v22, {LDS_SEL}\nds_write_b32 v22, v23\ns_lshr_b32 s47, s2, 2\ns_lshl_b32 s47, s47, 7\ns_and_b32 s33, s2, 3\ns_lshl_b32 s33, s33, 2\ns_add_u32 s47, s47, s33\ns_add_u32 s47, s47, {WS_FLAG+F_RDY}")
        a(flagops(7, 47) + "\ns_waitcnt lgkmcnt(0)")
    lz = g.lab("z")
    a(f"s_or_b32 s33, s2, s{HW}\ns_cbranch_scc1 {lz}")
    for r in range(16, 20): a(f"v_mov_b32 v{r}, 0")
    a(f"s_mov_b32 s47, {WS_FLAG+F_RDY}\ns_mov_b32 s33, {WS_FLAG+F_RDY+4096}")
    for k in range(8): a(f"buffer_store_dwordx4 v[16:19], v4, {W}, s{33 if k>>2 else 47} offen offset:{(k&3)*1024} sc1")
    a(f"s_mov_b32 s47, {WS_PROBE}\ns_mov_b32 s33, {WS_PROBE+8192}")
    a(f"buffer_store_dwordx4 v[16:19], v4, {W}, s47 offen sc1\nbuffer_store_dwordx4 v[16:19], v4, {W}, s33 offen sc1\n{lz}:")
    PG = [0, 0x1000000, 0x2400000, 0x3400000, 0x4C00000]
    lz2 = g.lab("z")
    a(f"s_or_b32 s33, s2, s{HW}\ns_cbranch_scc1 {lz2}\ns_mov_b64 exec, 0xff")
    for pg in PG:
        for par in range(2): a(f"s_mov_b32 s47, {pg+par*8192+256}\nbuffer_store_dwordx4 v[16:19], v4, {W}, s47 offen sc1")
    a(f"s_mov_b64 exec, -1\n{lz2}:")
    a("s_mov_b32 s90, -1\ns_mov_b32 s91, -1")
    def wg0(f):
        l = g.lab("w0")
        a(f"s_cmp_lg_u32 s2, 0\ns_cbranch_scc1 {l}"); f(); a(f"{l}:")
    def probe(k):
        a(f"s_mov_b32 s47, {PG[k>>1]+(k&1)*8192+256}\ns_memtime s[48:49]\ns_waitcnt lgkmcnt(0)\ns_load_dword s33, s[26:27], s47\ns_waitcnt lgkmcnt(0)")
        a(f"s_memtime s[50:51]\ns_waitcnt lgkmcnt(0)\ns_sub_u32 s33, s50, s48\ns_min_u32 s{90+(k&1)}, s{90+(k&1)}, s33\nv_mov_b32 v22, s33\ns_mov_b64 exec, 1\nbuffer_store_dword v22, off, s[92:95], 0 offset:{4+4*k} sc1\ns_mov_b64 exec, -1\ns_getreg_b32 s33, hwreg(HW_REG_XCC_ID)\nv_mov_b32 v22, s33\nbuffer_store_dword v22, off, s[92:95], 0 offset:48 sc1")
    def announce():
        a("s_cmp_lt_u32 s91, s90\ns_cselect_b32 s33, 0x2001, 1\nv_mov_b32 v23, s33\ns_mov_b64 exec, 1\nbuffer_store_dword v23, off, s[92:95], 0 sc1")
        if g.o.get('showp'): a("v_mov_b32 v22, s90\nbuffer_store_dword v22, off, s[92:95], 0 offset:4\nv_mov_b32 v21, s91\nbuffer_store_dword v21, off, s[92:95], 0 offset:8")
        a("s_mov_b64 exec, -1")
    srd(g, 60, 14, 3584 * 1024 * 2)
    srd(g, 64, 8, 1024 * 1024 * 2)
    a(f"s_cmp_lg_u32 s{HW}, 0\ns_cbranch_scc1 L_h_one")
    iss0 = lambda: a(f"s_mov_b32 s47, {WS_FLAG+F_RDY}\nbuffer_load_dwordx4 v[16:19], v8, {W}, s47 offen sc1")
    for t in range(0, 29):
        a("s_barrier")
        if t == 1: a("s_waitcnt vmcnt(0)")
        if 3 <= t < 14: a(f"s_sleep {g.o['hdel']}"); init0(t - 3)
        if 2 <= t < 12 and g.o['pol'] is None: wg0(lambda: probe(t - 2))
        if t == 11: wg0(announce)
        if t == 14: issd()
        if t == 16: a("s_waitcnt vmcnt(0)"); init3()
        if t == 22: iss0()
        if t == 24: poll_check(g, iss0, 14, 64, 1, "ne", lambda: a("v_and_b32 v14, v16, v17\nv_and_b32 v15, v18, v19\nv_and_b32 v14, v14, v15"))
        if t == g.o.get('cpf1', 99): a("s_mov_b64 exec, 0xffffffff\nbuffer_load_dword v9, v8, s[96:99], s100 offen\ns_mov_b64 exec, -1")
    bars(2)
    aux_sel(g)
    lane_h(g, 11, 12, 52)
    a(f"s_add_u32 s54, s52, {F_H2}")
    a("v_and_b32 v12, 1, v0\nv_lshlrev_b32 v12, 16, v12\nv_bfe_u32 v16, v0, 1, 1\nv_lshl_add_u32 v12, v16, 18, v12")
    a(f"v_bfe_u32 v16, v0, 2, 2\nv_lshl_add_u32 v12, v16, 11, v12\ns_andn2_b32 s56, s52, 0x1800\ns_add_u32 s56, s56, {F_X + (2<<16)}")
    a(f"s_lshl_b32 s57, s{S_MB8}, 12\ns_add_u32 s57, s57, {WS_FLAG+F_G}")
    a(f"v_lshrrev_b32 v19, 1, v0\nv_and_b32 v16, 1, v0\nv_lshlrev_b32 v16, 4, v16\nv_lshl_add_u32 v19, v19, 7, v16\nv_add_u32 v13, {LDS_G}, v4")
    bars(1)
    bars(1)
    def pol(soff, areg):
        m = "0xffff" if areg == 12 else "0xffffffff"
        return lambda: a(f"s_mov_b64 exec, {m}\nbuffer_load_dword v14, v{areg}, {W}, s{soff} offen sc1\ns_mov_b64 exec, -1")
    issg = lambda: a(f"buffer_load_dwordx4 v[24:27], v19, {W}, s57 offen sc1")
    assert g.o['k1'] >= 6
    def role(kv, f):
        l = g.lab("ro")
        a(f"s_cmp_ge_u32 s{S_C}, 2\ns_cbranch_scc{1 if kv else 0} {l}"); f(); a(f"{l}:")
    role(True, lambda: (a(f"s_sleep {g.o.get('gsl', 16)}"), pol(52, 11)(), poll_check(g, pol(52, 11), 14, 32, 1)))
    SK = g.o['sk']
    assert not set(SK) & {0, 1, 6, g.o['k1'], 12, 13}
    cnt = lambda n: len([x for x in range(n) if x not in SK])
    for n in range(12):
        if n not in SK: a("s_barrier")
        if n == g.o.get('cpf2'): a("s_mov_b64 exec, 0xffffffff\nbuffer_load_dword v9, v8, s[96:99], s100 offen\ns_mov_b64 exec, -1")
        if n == 0: role(False, pol(52, 11))
        if n == 3: issg()
        if n == 4:
            poll_check(g, issg, 14, 64, -1, "eq", lambda: a("v_max3_u32 v14, v24, v25, v26\nv_max_u32 v14, v14, v27"))
            a("ds_write_b128 v13, v[24:27]"); pol(54, 11)()
        if n == 5: poll_check(g, pol(54, 11), 14, 32, 1); a("s_waitcnt lgkmcnt(0)")
        q_call(g, n)
        if n == 0: role(False, lambda: poll_check(g, pol(52, 11), 14, 32, 1))
        if n == g.o.get('fop', 11):
            if g.o.get('fosl'): a(f"s_sleep {g.o['fosl']}")
            pol(56, 12)()
        if n == 11: poll_check(g, pol(56, 12), 14, 16, 1)
    a("s_barrier\ns_barrier\ns_branch L_rx")
    a("L_h_one:")
    tb = sum(x << (4 * k) for k, x in enumerate(ORD))
    a(f"s_mov_b32 s34, 0\ns_lshr_b32 s69, s2, 3\ns_mov_b32 s48, {hex(tb & 0xffffffff)}\ns_mov_b32 s49, {hex(tb >> 32)}")
    a(f"s_lshr_b32 s33, s68, 5\ns_lshr_b32 s90, {hex(g.o.get('wmask', 0x1f0))}, s33")
    if g.o.get('nopf1'): a("s_mov_b32 s68, 0x10000")
    def w2item():
        l, lo = g.lab("pw"), g.lab("pw")
        a(f"s_cmp_ge_u32 s69, 112\ns_cbranch_scc1 {lo}\ns_lshr_b32 s47, s69, 3\ns_lshl_b32 s47, s47, 2\ns_lshr_b64 s[50:51], s[48:49], s47\ns_and_b32 s50, s50, 15")
        a(f"s_mul_i32 s47, s32, 14\ns_add_u32 s47, s47, s50\ns_lshl_b32 s47, s47, 1\ns_add_u32 s47, s47, s87\ns_lshl_b32 s47, s47, 3\ns_and_b32 s50, s69, 7\ns_add_u32 s47, s47, s50\ns_lshl_b32 s47, s47, 13")
        a(f"buffer_load_dword v9, v8, s[60:63], s47 offen\ns_branch {l}")
        a(f"{lo}:\ns_sub_u32 s47, s69, 112\ns_lshl_b32 s47, s47, 3\ns_add_u32 s47, s47, s{S_XCD}\ns_lshl_b32 s47, s47, 13\nbuffer_load_dword v9, v8, s[64:67], s47 offen\n{l}:\ns_add_u32 s69, s69, 32")
    l0, l1, l2, lx, lq = [g.lab("pf") for _ in range(5)]
    if g.o.get('skip0'): a(f"s_branch {l1}")
    a(f"{l0}:\ns_add_u32 s47, s34, {g.o['lead']}\ns_mul_i32 s47, s47, 17\ns_lshr_b32 s47, s47, 1\ns_min_u32 s47, s47, {16*17}\ns_cmp_ge_u32 s68, s47\ns_cbranch_scc1 {l1}")
    pf_item(g)
    a("s_add_u32 s68, s68, 32")
    a(f"{l2}:\ns_lshr_b32 s90, s90, 1\ns_bitcmp1_b32 s90, 0\ns_cbranch_scc0 {l0}")
    w2item()
    a(f"s_branch {l0}\n{l1}:")
    if g.o.get('wrate'):
        l3 = g.lab("pf")
        a(f"s_sub_u32 s47, s34, {g.o.get('w0', 2)}\ns_cbranch_scc1 {l3}\ns_mul_i32 s47, s47, {g.o['wrate']}\ns_min_u32 s47, s47, 144\ns_cmp_ge_u32 s69, s47\ns_cbranch_scc1 {l3}")
        w2item()
        a(f"{l3}:")
    a(f"s_barrier\ns_sleep {g.o['hdel']}\ns_add_u32 s34, s34, 1\ns_cmp_lt_u32 s34, 27\ns_cbranch_scc1 {l0}")
    srd(g, 52, 16, 2048)
    gl = ["s_lshl_b32 s47, s46, 14\n" + "\n".join(f"buffer_load_dwordx4 {vr(24+4*hf)}, v4, s[52:55], 0 offen offset:{hf*1024}" for hf in range(2))]
    for r in range(8):
        gl.append("\n".join(f"buffer_load_dwordx4 {vr(40+8*r+4*hf)}, v4, s[28:31], s47 offen offset:{(r&1)*2048+hf*1024}" for hf in range(2)) + ("\ns_add_u32 s47, s47, 4096" if r & 1 else ""))
    for t in range(26, 31):
        if t > 26: a("s_barrier")
        n = g.o['gsch'][t - 26]
        if n and t in (27, 28): a(f"s_sleep {g.o['hdel']}")
        for x in gl[:n]: a(x)
        gl = gl[n:]
    assert not gl
    aux_sel(g)
    for r in range(32, 40): a(f"v_mov_b32 v{r}, 0")
    bars(2)
    a("s_waitcnt vmcnt(0)")
    for k in range(8):
        for r in range(8): a(f"v_dot2_f32_bf16 v{32+r}, v{40+8*r+k}, v{24+k}, v{32+r}")
    a("s_barrier\ns_nop 0")
    for pat in ["quad_perm:[1,0,3,2] row_mask:0xf", "quad_perm:[2,3,0,1] row_mask:0xf", "row_half_mirror row_mask:0xf", "row_mirror row_mask:0xf",
                "row_bcast:15 row_mask:0xa", "row_bcast:31 row_mask:0xc"]:
        for r in range(32, 40): a(f"v_add_f32_dpp v{r}, v{r}, v{r} {pat} bank_mask:0xf")
    for r in range(8): a(f"v_readlane_b32 s{52+r}, v{32+r}, 63")
    a("s_nop 1")
    for r in range(8): a(f"v_writelane_b32 v16, s{52+r}, {r}")
    a("s_nop 0\nv_min_f32 v16, 0x41f00000, v16\nv_mul_f32 v16, 0x3fb8aa3b, v16\nv_exp_f32 v16, v16")
    a(f"s_lshl_b32 s47, s46, 7\ns_add_u32 s47, s47, {WS_FLAG+F_G}\ns_mov_b64 exec, 0xff")
    a(f"buffer_store_dword v16, v5, {W}, s47 offen sc1\ns_mov_b64 exec, -1")
    q_call(g, 0)
    a(f"s_mov_b32 s34, 1\ns_cmp_ge_u32 s{S_C}, 2\ns_cbranch_scc1 L_h1_q\ns_cmp_ge_u32 s{S_MB8}, 6\ns_cbranch_scc1 L_h1_end")
    H1 = g.o['h1']
    def retry(issue, mx, first, last, work=False):
        l0, l1 = g.lab("try"), g.lab("try")
        for n in range(first):
            if n and n not in SK: a("s_barrier")
            if work and n: q_call(g, n)
        first, last = cnt(first), cnt(last)
        if g.o.get('rsame', 1) & (1 if work else 2):
            l2 = g.lab("try")
            a(f"s_setprio 2\ns_mov_b32 s34, {first}\n{l0}:")
            issue(); a("s_waitcnt vmcnt(0)"); mx()
            a(f"v_cmp_eq_u32 vcc, -1, v14\ns_cbranch_vccz {l1}")
            a(f"s_cmp_ge_u32 s34, {last}\ns_cbranch_scc1 {l2}\ns_barrier\ns_add_u32 s34, s34, 1\ns_branch {l0}\n{l2}:")
        else:
            a(f"s_setprio 2\ns_mov_b32 s34, {first}\n{l0}:")
            if g.o.get('hsl'): a(f"s_sleep {g.o['hsl']}")
            issue()
            a("s_barrier\ns_add_u32 s34, s34, 1\ns_waitcnt vmcnt(0)")
            mx()
            a(f"v_cmp_eq_u32 vcc, -1, v14\ns_nop 1\ns_cmp_lg_u64 vcc, 0\ns_cbranch_scc0 {l1}")
            a(f"s_cmp_le_u32 s34, {last-1}\ns_cbranch_scc1 {l0}")
        issue(); poll_check(g, issue, 14, 64, -1, "eq", mx)
        a(f"{l1}:")
    def upto(n):
        l0, l1 = g.lab("up"), g.lab("up")
        a(f"{l0}:\ns_cmp_ge_u32 s34, {cnt(n)}\ns_cbranch_scc1 {l1}\ns_barrier\ns_add_u32 s34, s34, 1\ns_branch {l0}\n{l1}:")
    def vmax(lo, hi):
        a(f"v_max_u32 v14, v{lo}, v{lo+1}")
        for r in range(lo + 2, hi, 2): a(f"v_max3_u32 v14, v14, v{r}, v{r+1}")
    a(f"s_cmp_ge_u32 s{S_MB8}, 3\ns_cselect_b32 s55, 1, 0\ns_sub_u32 s56, s{S_MB8}, s55\ns_lshl_b32 s56, s56, 11\nv_add_u32 v10, s56, v4\nv_add_u32 v11, 1024, v10")
    a(f"s_cmp_eq_u32 s{S_MB8}, 2\ns_cbranch_scc1 L_h1_z\ns_cmp_eq_u32 s{S_MB8}, 5\ns_cbranch_scc0 L_h1_nz\nL_h1_z:")
    a("s_lshl_b32 s55, s55, 5\ns_add_u32 s55, s55, 8192\nv_and_b32 v10, 0x300, v4\nv_add_u32 v10, s55, v10\nv_add_u32 v11, 16, v10\nL_h1_nz:")
    def kvp_issue():
        a(f"s_mul_i32 s47, s{S_PAIR}, {8*9216}\ns_add_u32 s47, s47, {WS_KVP}")
        for m in range(8):
            for dt in range(2): a(f"buffer_load_dwordx4 {vr(32+(m*2+dt)*4)}, v{10+dt}, {W}, s47 offen sc1")
            if m < 7: a("s_add_u32 s47, s47, 9216")
    retry(kvp_issue, lambda: vmax(32, 96), H1 + 1, 9)
    g.stamp(5)
    if g.o['prof']: a("s_mov_b32 s88, s34")
    for st in (32, 16, 8):
        for r in range(st): a(f"v_add_f32 v{32+r}, v{32+r}, v{32+st+r}")
    for r in range(4): a(f"v_cvt_pk_bf16_f32 v{32+r}, v{32+2*r}, v{33+2*r}")
    a(f"s_mul_i32 s47, s{S_PAIR}, 6144\ns_lshl_b32 s46, s{S_MB8}, 10\ns_add_u32 s47, s47, s46\ns_add_u32 s47, s47, {WS_KVF}")
    a(f"buffer_store_dwordx4 v[32:35], v4, {W}, s47 offen sc1")
    a("L_h1_end:")
    upto(14)
    a("s_branch L_rx")
    a("L_h1_q:")
    K1 = g.o['k1']
    a(f"s_mul_i32 s55, s{S_PAIR}, 6144\ns_add_u32 s55, s55, {WS_KVF}\ns_add_u32 s56, s55, 4096\nv_add_u32 v12, {P2END}, v4")
    def kvf_issue():
        for f in range(6): a(f"buffer_load_dwordx4 {vr(32+4*f)}, v4, {W}, s{55+(f>>2)} offen offset:{(f&3)*1024} sc1")
    retry(kvf_issue, lambda: vmax(32, 56), g.o['k0'], K1, True)
    g.stamp(5)
    if g.o['prof']: a("s_mov_b32 s88, s34")
    for f in range(6): a(f"ds_write_b128 v12, {vr(32+4*f)} offset:{f*1024}")
    upto(K1)
    a("s_waitcnt lgkmcnt(0)")
    for n in range(K1, K1 + g.o['noc'] + 1):
        if n not in SK: a("s_barrier")
        q_call(g, n)
    a(f"s_mov_b32 s34, {cnt(K1+g.o['noc']+1)}\ns_branch L_h1_end")
    q_chunks(g)


HEADER = open("gated_mix__linear_attn_block__dense_activation_relu__prompt.s.ref").read().split("; Override")[0] \
    if __name__ == "__main__" else ""


def build(**opt):
    g = G(**opt)
    VM.skip = g.o.get('skip', ())
    HF[0] = g.o.get('hflag', 'sc1'); HF[1] = g.o.get('lflag', 'sc1')
    g.L.append(f"; @launch grid=(256,1,1) block=(512,1,1) lds={LDS_TOTAL}")
    g.a(f'.amdgcn_target "amdgcn-amd-amdhsa--gfx950"\n.text\n.globl {NAME}\n.p2align 8\n.type {NAME},@function\n{NAME}:')
    prologue(g)
    loader(g)
    helper(g)
    compute(g)
    g.a("L_exit:\ns_endpgm\nL_codeend:")
    g.L.append(f""".section .rodata,"a"
.p2align 6
.amdhsa_kernel {NAME}
  .amdhsa_next_free_vgpr 256
  .amdhsa_next_free_sgpr 102
  .amdhsa_accum_offset 256
  .amdhsa_group_segment_fixed_size 0
  .amdhsa_kernarg_size 80
  .amdhsa_user_sgpr_count 2
  .amdhsa_user_sgpr_kernarg_segment_ptr 1
  .amdhsa_system_sgpr_workgroup_id_x 1
.end_amdhsa_kernel""")
    return g.text()


if __name__ == "__main__":
    out = sys.argv[1]
    opt = {}
    for kv in sys.argv[2:]:
        k, v = kv.split("=")
        opt[k] = eval(v)
    open(out, "w").write(HEADER + build(**opt))
```

```python
import sys

NAME = "gated_mix__linear_attn_block__dense_activation_relu__prompt_kernel"

OREG = 4 << 23
MT = lambda i: ((i & 1) << 12) | ((i >> 1) << 14)
WS_PART = 0x3000000
WS_KVP = 0x2800000
WS_KVF = 0x2980000
WS_FLAG = 0x2C00000
F_H1, F_H2, F_X, F_P = 0, 512, 1024, 1536
F_G = 0x80000
F_RDY = 0x90000
WS_PROF = 0x2B00000
WS_PROBE = 0x2CC0000
LDS_SEL = 163832
WS_W2C = 0x2800000
ORD1 = [0, 1, 2, 4, 7, 8, 9, 11]
ORD2 = [3, 5, 10, 12, 6, 13]

UNIT = 4224; BLK = 1056
XSLOT = 8 * UNIT
XRING = 3 * XSLOT
WSLOT = 3 * UNIT + 1024
WBASE = XRING
LDS_G = 162816
P2SLOT = 4 * UNIT
NSL = 8
P2END = NSL * P2SLOT
LDS_TOTAL = 163840

SPIN = 100000


class G:
    def __init__(self, **opt):
        self.L = []
        self.o = dict(prof=False, krot=False, pfw=True, pf1=True, lead=6, pfs0=0, hdel=0, pfw0=2, pfwr=54, early2=0, late=(4, 4, 4), sp0=22, spn=2, swin=4, gsch=(5, 4, 0, 0, 0), fpos=50, s1sp=12, tdens=2, st2n=0, st2sp=14, ju=5, pch=(1, 2, 2, 2, 1), pf0=0, pol=None, nearf=1, sk=(), cbx=2, aspread=0, wpace=0, kdens=4, hsl=0, gsl=0, noc=2, qprio=2, k1=7, k0=6, rsp=6, h1=1, xf=(10, 14, 16), r1=20, dld=(11, 12, 13, 14, 15, 16, 17, 18), psleep=2, cpf1=24, cpf2=99, odens=3, b16=True, ddens=3, psp=30, d1=7, d2=10, d2b=12, d3=16)
        self.o.update(opt)
        self.uid = 0
        self.info = {}
        self.st = {'since': 0}

    def a(self, s):
        for ln in s.split("\n"):
            ln = ln.strip()
            if ln == "s_sleep 0": continue
            if ln:
                self.L.append(ln if ln.endswith(":") or ln.startswith(".") else "    " + ln)

    def lab(self, p):
        self.uid += 1
        return f"L_{p}_{self.uid}"

    def stamp(self, n):
        if self.o['prof'] == 'min' and n not in (0, 8): return
        if self.o['prof']:
            self.a(f"{'s_memtime' if self.o['prof']=='cyc' else 's_memrealtime'} s[{70+2*n}:{71+2*n}]")

    def text(self):
        j = self.o.get('jitter')
        if j:
            import random
            rnd = random.Random(j[0]); o = []
            for ln in self.L:
                o.append(ln)
                t = ln.strip()
                if (t == "s_barrier" or t.startswith("s_waitcnt vmcnt")) and rnd.random() < j[1]:
                    w = rnd.randrange(8)
                    src = "s3" if rnd.random() < 0.7 else "s44"
                    o.append(f"    s_cselect_b32 s101, 1, 0\n    s_cmp_lg_u32 {src}, {w}\n    s_cbranch_scc1 1\n    s_sleep {rnd.randrange(1, j[2])}\n    s_cmp_lg_u32 s101, 0")
            return "\n".join(o) + "\n"
        return "\n".join(self.L) + "\n"


class VM:
    def __init__(self, a, init=()):
        self.a = a; self.q = list(init)
    skip = ()
    def op(self, text, tag):
        if (tag[0] if isinstance(tag, tuple) else tag) in VM.skip: return
        self.a(text); self.q.append(tag)
        assert len(self.q) <= 63, "vmcnt overflow"
    def mark(self, tag, n):
        self.q += [tag] * n
        assert len(self.q) <= 63, "vmcnt overflow"
    def wait(self, *tags):
        k = max([i for i, t in enumerate(self.q) if t in tags], default=-1)
        if k >= 0:
            self.a(f"s_waitcnt vmcnt({len(self.q)-1-k})"); self.q = self.q[k + 1:]


def vr(b, n=4):
    return f"v[{b}:{b+n-1}]"


def mfma(d, a, b, c=None):
    return f"v_mfma_f32_16x16x32_bf16 {vr(d)}, {vr(a)}, {vr(b)}, {vr(d) if c is None else c}"


S_WAVE, S_MB8, S_QD, S_C, S_PAIR, S_RH, S_CB, S_KH, S_SEL, S_XCD = 3, 36, 37, 38, 39, 40, 41, 42, 43, 44
SRD_WS = 20


def srd(g, d, base, nbytes):
    g.a(f"s_mov_b32 s{d}, s{base}\ns_mov_b32 s{d+1}, s{base+1}\ns_mov_b32 s{d+2}, {hex(nbytes)}\ns_mov_b32 s{d+3}, 0x20000")


def prof_dump(g, wave, row):
    if not g.o['prof'] or g.o.get('probe') is not None or (row and (g.o['prof'] == 'min' or g.o.get('trace'))): return
    a = g.a
    l = g.lab("pd")
    a(f"s_waitcnt lgkmcnt(0)\ns_cmp_lg_u32 s{S_WAVE}, {wave}\ns_cbranch_scc1 {l}")
    a(f"s_lshl_b32 s33, s2, 6\ns_add_u32 s33, s33, {WS_PROF + row*16384}\nv_mov_b32 v5, 0")
    for n in range(16):
        a(f"v_mov_b32 v6, s{70+2*n}\nbuffer_store_dword v6, v5, s[{SRD_WS}:{SRD_WS+3}], s33 offen offset:{4*n}\ns_nop 1")
    a(f"{l}:")


def prologue(g):
    a = g.a
    a("s_cmp_ge_u32 s2, 256\ns_cbranch_scc1 L_exit")
    if g.o['prof']:
        for n in range(70, 102): a(f"s_mov_b32 s{n}, 0")
    g.stamp(0)
    a("s_load_dwordx16 s[4:19], s[0:1], 0")
    a("s_load_dwordx4 s[24:27], s[0:1], 64")
    a("v_lshrrev_b32 v1, 6, v0\nv_and_b32 v0, 63, v0")
    a(f"s_and_b32 s{S_XCD}, s2, 7\ns_lshr_b32 s30, s2, 3")
    a(f"v_readfirstlane_b32 s{S_WAVE}, v1")
    a(f"s_lshr_b32 s31, s{S_XCD}, 2\ns_and_b32 s32, s{S_XCD}, 3")
    a(f"s_and_b32 s33, s30, 3\ns_lshl_b32 s{S_MB8}, s31, 2\ns_add_u32 s{S_MB8}, s{S_MB8}, s33")
    a("s_lshr_b32 s33, s30, 2")
    a(f"s_lshr_b32 s34, s33, 2\ns_lshl_b32 s{S_QD}, s32, 1\ns_add_u32 s{S_QD}, s{S_QD}, s34")
    a(f"s_and_b32 s{S_C}, s33, 3")
    a(f"s_and_b32 s34, s33, 1\ns_lshl_b32 s{S_PAIR}, s{S_QD}, 1\ns_add_u32 s{S_PAIR}, s{S_PAIR}, s34")
    a(f"s_and_b32 s{S_RH}, s32, 1")
    a(f"s_xor_b32 s{S_CB}, s33, {g.o['cbx']}")
    a(f"s_lshr_b32 s{S_KH}, s32, 1")
    if g.o['pol'] == 'mix': a(f"s_lshl_b32 s{S_SEL}, s31, 13")
    else: a(f"s_xor_b32 s34, s31, s{S_MB8}\ns_xor_b32 s34, s34, {g.o['pol'] or 0}\ns_and_b32 s34, s34, 1\ns_lshl_b32 s{S_SEL}, s34, 13")
    a(f"s_cmp_lt_u32 s{S_WAVE}, 4\ns_cbranch_scc1 L_compute")
    a(f"s_cmp_lt_u32 s{S_WAVE}, 6\ns_cbranch_scc1 L_loader")
    a("s_mov_b32 s68, s30\ns_mov_b32 s87, s31")
    if g.o.get('pf0'):
        a(f"s_cmp_eq_u32 s{S_WAVE}, 6\ns_cbranch_scc1 L_helper\ns_add_u32 s68, s68, {g.o.get('pf0off', 0)}")
        pf_item(g, True)
        a("s_add_u32 s68, s68, 32")
    a("s_branch L_helper\nL_loader:")


W = f"s[{SRD_WS}:{SRD_WS+3}]"


def lane_goodcol(g, d, t):
    g.a(f"v_lshrrev_b32 v{d}, 4, v0\nv_and_b32 v{t}, 15, v0\nv_lshlrev_b32 v{t}, 4, v{t}\nv_lshl_add_u32 v{d}, v{d}, 9, v{t}\nv_or_b32 v{d}, s{S_SEL}, v{d}")


def inbox(so, t, w):
    return (f"s_lshr_b32 s{so}, s2, 6\ns_lshl_b32 s{so}, s{so}, 2\ns_bfe_u32 s{t}, s2, 0x20003\ns_add_u32 s{so}, s{so}, s{t}\ns_lshl_b32 s{so}, s{so}, 1\n"
            f"s_bfe_u32 s{t}, s2, 0x10005\ns_add_u32 s{so}, s{so}, s{t}\ns_lshl_b32 s{so}, s{so}, 2\ns_add_u32 s{so}, s{so}, s32\ns_lshl_b32 s{so}, s{so}, 4\n"
            f"s_add_u32 s{so}, s{so}, s{w}\ns_lshl_b32 s{so}, s{so}, 14\n")


def lane_h(g, d, t, so):
    g.a(f"v_bfe_u32 v{d}, v0, 2, 3\nv_and_b32 v{t}, 3, v0\nv_lshlrev_b32 v{t}, 7, v{t}\nv_lshl_add_u32 v{d}, v{d}, 16, v{t}")
    g.a(f"s_and_b32 s{so}, s2, 31\ns_lshl_b32 s{so}, s{so}, 11\ns_add_u32 s{so}, s{so}, {WS_FLAG}\ns_xor_b32 s{so}, s{so}, s79")


def poll_check(g, issue, reg, nl, val, cmp="ne", pre=None):
    a = g.a
    l0, l1 = g.lab("poll"), g.lab("pollok")
    a(f"s_mov_b32 s35, {SPIN}\n{l0}:\ns_waitcnt vmcnt(0)")
    if pre: pre()
    a(f"v_cmp_{cmp}_u32 vcc, {val}, v{reg}\ns_nop 1")
    if nl == 64: a("s_cmp_lg_u64 vcc, 0")
    else: a(f"s_and_b32 s33, vcc_lo, {hex((1<<nl)-1)}")
    a(f"s_cbranch_scc0 {l1}")
    a(f"s_sub_u32 s35, s35, 1\ns_cbranch_scc1 {l1}")
    if g.o.get('psleep'): a(f"s_sleep {g.o['psleep']}")
    issue()
    a(f"s_branch {l0}\n{l1}:")


def setflags(g, one, *soffs):
    g.a("s_mov_b64 exec, 1")
    for so in soffs: g.a(f"buffer_store_dword v{one}, off, {W}, s{so} sc1")
    g.a("s_mov_b64 exec, -1")


VX, VW, VQ = 1, 2, 3
WB = lambda n: 8 + 4 * (n % 4)
XLO = lambda b, i: 24 + 8 * b + 4 * i
XHI = lambda i: 40 + 4 * (i - 2)
AC = lambda j, i: 48 + (j * 4 + i) * 4


PERM = {True: [8, 9, 10, 11, 0, 1, 2, 3, 12, 4, 5, 6, 7], False: [4, 5, 6, 7, 8, 9, 10, 11, 12, 0, 1, 2, 3]}


def p1_wread(t, j, n):
    slot = (t % 4) * WSLOT
    if j < 12:
        return [f"ds_read_b64_tr_b16 v[{WB(n)+2*w}:{WB(n)+2*w+1}], v{VW} offset:{slot + (j//4)*UNIT + (j%4)*32 + w*256}" for w in range(2)]
    return [f"ds_read_b64_tr_b16 v[{WB(n)+2*w}:{WB(n)+2*w+1}], v{VQ} offset:{slot + w*256}" for w in range(2)]


def p1_xreg(par, i):
    return XLO(par % 2, i) if i < 2 else XHI(i)


def p1_xread(t, i, par, vx=VX):
    return f"ds_read_b128 {vr(p1_xreg(par,i))}, v{vx} offset:{(i>>1)*UNIT + (i&1)*512 + (t%2)*64}"


def pass_order(nt):
    s = [(0, 0), (0, 1), (1, 1), (1, 0), (1, 2), (1, 3), (0, 3), (0, 2)]
    for j in range(2, nt - 2):
        s += [(j, i) for i in ([2, 3, 0, 1] if j % 2 == 0 else [1, 0, 3, 2])]
    u, v = nt - 2, nt - 1
    return s + [(u, 2), (u, 3), (v, 3), (v, 2), (v, 1), (v, 0), (u, 0), (u, 1)]


def p1_mfma(kv, tile, i, wreg, xreg):
    return mfma(AC(tile, i), xreg, wreg) if (kv and tile < 8) else mfma(AC(tile, i), wreg, xreg)


Q0 = [('W', 0, 0), ('W', 0, 0), ('X', 0, 0), ('X', 0, 1), ('W', 0, 1), ('W', 0, 1), ('X', 0, 2), ('X', 0, 3)]


def p1_loop(g, kv):
    a = g.a
    P = PERM[kv]
    L = g.lab("p1")
    seq = []
    for t in range(4):
        s = pass_order(13)
        post = [[] for _ in s]
        rd = lambda j, tt=t: [('W', tt, j, x) for x in p1_wread(tt, P[j], 13 * tt + j)]
        r = rd(2); post[0].append(r[0]); post[1].append(r[1])
        r = rd(3); post[2].append(r[0]); post[3].append(r[1])
        r = rd(4); post[8].append(r[0]); post[9].append(r[1])
        r = rd(5); post[10].append(r[0]); post[11].append(r[1])
        for j in range(3, 10):
            base = 8 + (j - 2) * 4
            r = rd(j + 3); post[base].append(r[0]); post[base + 1].append(r[1])
        b10 = 40
        if t % 2 == 1:
            post[b10 - 2].append(('S', f"s_add_u32 s46, s46, {XSLOT}"))
            post[b10 - 2].append(('S', f"s_cmp_eq_u32 s46, {XRING}"))
            post[b10 - 1].append(('S', f"s_cselect_b32 s47, s48, s49"))
            post[b10 - 1].append(('S', f"s_cselect_b32 s46, 0, s46"))
            post[b10].append(('S', f"v_add_u32 v{VX}, s47, v{VX}"))
        post[b10 + 2].append(('BAR',))
        tn = t + 1
        r0, r1 = rd(0, tn), rd(1, tn)
        post[b10 + 3] += [r0[0], r0[1]]
        post[44] += [('X', tn, 0, p1_xread(tn, 0, tn)), ('X', tn, 1, p1_xread(tn, 1, tn))]
        post[45] += [r1[0]]
        post[46] += [r1[1]]
        post[47] += [('X', tn, 2, p1_xread(tn, 2, tn))]
        post[48] += [('X', tn, 3, p1_xread(tn, 3, tn))]
        if t == 3:
            post[49].append(('S', "s_sub_u32 s45, s45, 1"))
            post[50].append(('S', "s_cmp_lg_u32 s45, 0"))
        for (j, i), p in zip(s, post):
            seq.append(((t, j, i), p))
    for x in p1_wread(0, P[0], 0): a(x)
    a(p1_xread(0, 0, 0)); a(p1_xread(0, 1, 0))
    for x in p1_wread(0, P[1], 1): a(x)
    a(p1_xread(0, 2, 0)); a(p1_xread(0, 3, 0))
    q = list(Q0)
    a(f".p2align 6\n{L}:")
    for (t, j, i), p in seq:
        need = [k for k, e in enumerate(q) if e == ('W', t, j) or e == ('X', t, i)]
        if need:
            k = max(need)
            a(f"s_waitcnt lgkmcnt({len(q)-1-k})")
            q = q[k + 1:]
        a(p1_mfma(kv, P[j], i, WB(13 * t + j), p1_xreg(t, i)))
        for e in p:
            if e[0] == 'S':
                a(e[1])
            elif e[0] == 'BAR':
                a("s_waitcnt lgkmcnt(0)\ns_barrier"); q = []
            else:
                a(e[3]); q.append((e[0], e[1] % 4, e[2]))
    assert q == Q0
    a(f"s_cbranch_scc1 {L}")


def p1_tail(g, kv, extra, extra2, flag):
    a = g.a
    P = PERM[kv]
    auto = g.o['pol'] is None
    if auto: a(f"v_mov_b32 v5, {LDS_SEL}\nds_read_b32 v6, v5")
    a(f"v_add_u32 v5, {(-2*XSLOT) & 0xffffffff}, v{VX}")
    if auto: extra = ["v_xor_b32 v7, v6, v7"] + (["v_readfirstlane_b32 s33, v6"] if g.o['nearf'] else []) + ["v_mov_b32 v6, 1"] + (["s_xor_b32 s59, s59, s33", "s_xor_b32 s60, s60, s33"] if g.o['nearf'] else []) + extra
    passes = [(t, grp) for grp in (P[:4], P[4:9], P[9:]) for t in range(28, 32)]
    M = []; start = []; n0 = 0; last = {}
    reads = []
    for p, (t, tiles) in enumerate(passes):
        start.append(len(M))
        o = pass_order(len(tiles))
        base = len(M)
        for j, tile in enumerate(tiles):
            first = base + min(k for k, e in enumerate(o) if e[0] == j)
            if not (p == 0 and j < 2):
                for x in p1_wread(t, tile, n0 + j):
                    reads.append(dict(key=('W', p, j), text=x, after=last.get(WB(n0 + j), -1), first=first, t=t))
            last[WB(n0 + j)] = base + max(k for k, e in enumerate(o) if e[0] == j)
        for i in range(4):
            first = base + min(k for k, e in enumerate(o) if e[1] == i)
            if p > 0:
                reads.append(dict(key=('X', p, i), text=p1_xread(t, i, p, VX if t < 30 else 5), after=max(last.get(p1_xreg(p, i), -1), first - 14), first=first, t=t))
            last[p1_xreg(p, i)] = base + max(k for k, e in enumerate(o) if e[1] == i)
        for (j, i) in o:
            M.append((p, j, i, p1_mfma(kv, tiles[j], i, WB(n0 + j), p1_xreg(p, i))))
        n0 += len(tiles)
    V1, V2 = start[1] + 3, start[2] + 5
    R1, R2 = start[10] - 3, len(M) - 5
    for r in reads:
        if r['t'] == 30: r['after'] = max(r['after'], V1)
        if r['t'] == 31: r['after'] = max(r['after'], V2)
    reads.sort(key=lambda r: r['first'])
    q = list(Q0) + ([('S', 0, 0)] if auto else []); since = 0; nst2 = 0; held = []; nexts = 0; first = True
    dens = g.o.get('tdens', 3)
    def wait(pred):
        nonlocal q
        need = [k for k, e in enumerate(q) if pred(e)]
        if need:
            a(f"s_waitcnt lgkmcnt({len(q)-1-max(need)})"); q = q[max(need) + 1:]
            return 1
        return 0
    for k, (p, j, i, txt) in enumerate(M):
        assert not [r for r in reads if r['first'] <= k], "read scheduled too late"
        w = wait(lambda e: e == ('W', p, j) or e == ('X', p, i))
        a(txt); since += 1 + w
        used = 0
        if k in (V1, V2): a("s_barrier"); used += 1
        if k in (R1, R2):
            lim = 9 if k == R1 else 11
            assert not [r for r in reads if r['key'][1] <= lim]
            used += 1 + wait(lambda e: e[1] <= lim); a("s_barrier")
        nr = 0
        while used < 2:
            c = [r for r in reads if r['after'] <= k]
            if not c or (nr and c[0]['first'] - k > 9): break
            a(c[0]['text']); q.append(c[0]['key']); reads.remove(c[0]); used += 1; nr += 1
        since += used
        if held and k >= nexts:
            a(held.pop(0)); used += 2; nexts = k + g.o['s1sp']; nst2 = 0
        if k == start[8] + g.o.get('fpos', 10):
            assert not held
            a(f"s_waitcnt vmcnt({nst2})\n" + flag); used += 2
        if k == start[8] + 3:
            assert not extra
            extra = extra2; dens = g.o.get('tdens2', 3); first = False
        if k >= start[4] + 3:
            while used < dens and extra:
                if extra[0] is None: break
                x = extra.pop(0)
                if first and x.startswith("s_add_u32 s56"): sadd = x; continue
                if first and x.startswith("buffer_store"): held.append(sadd + "\n" + x); continue
                a(x); used += 2 if x.startswith("v_exp") else 1
                if x.startswith("buffer_store"): nst2 += 1
    return extra


def h_cvt(d, a0, a1):
    src = [a0, a0 + 2] + ([a1, a1 + 2] if a1 is not None else [])
    return [f"v_cvt_pk_bf16_f32 v{d+r}, v{x}, v{x+1}" for r, x in enumerate(src)] + [f"v_pk_max_i16 v{d+r}, v{d+r}, 0" for r in range(len(src))]


HF = ['sc1', 'sc1']
def h_line_store(j0, soff):
    o = []
    for i in (2, 3, 0, 1):
        o.append(f"s_add_u32 s56, s{soff}, {MT(i)}")
        for p in range(2):
            d = AC(j0 + 2 * p, i)
            o += h_cvt(d, d, AC(j0 + 2 * p + 1, i))
            o.append(f"buffer_store_dwordx4 {vr(d)}, v7, {W}, s56 offen offset:{p*2048} {HF[0]}")
    return o


def phi_regs(regs, tmp, pk=False):
    if pk:
        o = [f"v_pk_mul_f32 v[{tmp+k}:{tmp+k+1}], v[{regs[k]}:{regs[k]+1}], s[50:51] op_sel_hi:[1,0]" for k in range(0, 8, 2)]
        for k, r in enumerate(regs): o += [f"v_exp_f32 v{tmp+k}, v{tmp+k} clamp", f"v_max_f32 v{r}, s51, v{r}"]
        return o + [f"v_pk_add_f32 v[{regs[k]}:{regs[k]+1}], v[{regs[k]}:{regs[k]+1}], v[{tmp+k}:{tmp+k+1}]" for k in range(0, 8, 2)]
    o = [f"v_mul_f32 v{tmp+k}, s50, v{r}" for k, r in enumerate(regs)]
    for k, r in enumerate(regs): o += [f"v_exp_f32 v{tmp+k}, v{tmp+k} clamp", f"v_max_f32 v{r}, s51, v{r}"]
    return o + [f"v_add_f32 v{r}, v{r}, v{tmp+k}" for k, r in enumerate(regs)]


def pack8(d, e):
    return [f"v_cvt_pk_bf16_f32 v{d}, v{d}, v{d+1}", f"v_cvt_pk_bf16_f32 v{d+1}, v{d+2}, v{d+3}",
            f"v_cvt_pk_bf16_f32 v{d+2}, v{e}, v{e+1}", f"v_cvt_pk_bf16_f32 v{d+3}, v{e+2}, v{e+3}"]


def flagops(one, *soffs):
    return "s_mov_b64 exec, 1\n" + "".join(f"buffer_store_dword v{one}, off, {W}, s{so} sc1\n" for so in soffs) + "s_mov_b64 exec, -1"


VA0, VW2, VA1, VWD = 1, 2, 3, 5
ORD = ORD1 + ORD2
AB = lambda u, i: (24, 112, 96, 72)[u % 4] + 4 * i
ACC = lambda j, i: 128 + (j * 4 + i) * 4
JORD = [4, 5, 6, 7, 0, 1, 2, 3]
NS = 12
ND = 8
ADP = [72, 80, ACC(5, 2), ACC(7, 2), ACC(4, 2), ACC(6, 2), ACC(1, 2), ACC(3, 2), ACC(0, 2), ACC(2, 2), 8, 16, 24, 32, 112, 120]
WD = lambda k: 40 + 4 * k
PQ = lambda i, h: AC(2 * h, i)
PP = lambda p, f: ((96, 104), (ACC(4, 0), ACC(6, 0)), (ACC(5, 0), ACC(7, 0)))[p - 1][f >> 1] + 4 * (f & 1)
VFL, VPO, GG, VOUT, SEL0 = 2, 3, 94, 4, 88
slot2 = lambda m: ((m + 2) % NSL) * P2SLOT


def ord_table(g, lo, tmp=None):
    pk = lambda o: sum(x << (4 * k) for k, x in enumerate(o))
    g.a(f"s_mov_b32 s{lo}, {hex(pk(ORD) & 0xffffffff)}\ns_mov_b32 s{lo+1}, {hex(pk(ORD) >> 32)}")
    for t8, own in {1: (1,), 2: (2, 3), 3: (4, 5), 4: (7,), 5: (8,), 6: (9, 10), 7: (11, 12)}.items():
        o = list(own) + [x for x in ORD if x not in own]
        g.a(f"s_cmp_eq_u32 s{S_CB}, {t8 ^ g.o['cbx']}\ns_cselect_b32 s{lo}, {hex(pk(o) & 0xffffffff)}, s{lo}\ns_cselect_b32 s{lo+1}, {hex(pk(o) >> 32)}, s{lo+1}")


def line_ops(n):
    return [f"s_bfe_u32 s54, s{4+n//8}, {hex((4<<16) | (4*(n%8)))}", "s_lshl_b32 s54, s54, 17", "s_add_u32 s54, s54, s46", "s_add_u32 s53, s54, 4096"]


def c_wread(n):
    u, j = n // 8, JORD[n % 8]
    return [(('W', n), f"ds_read_b64_tr_b16 v[{WB(n)+2*w}:{WB(n)+2*w+1}], v{VW2} offset:{((j>>2)*2+(u&1))*UNIT + (j&3)*32 + w*256}") for w in range(2)]


def c_loads(u, vm):
    o = []
    if u % 2 == 0: o += line_ops(u // 2)
    for i in range(4):
        o.append((f"buffer_load_dwordx4 {vr(AB(u,i))}, v{VA1 if i>>1 else VA0}, {W}, s{53 if i&1 else 54} offen offset:{(u&1)*2048} {HF[1]}", vm, ('A', u)))
    return o


def u_base(v):
    return slot2(NS + v % 4) + (2 * UNIT if v % 8 < 4 else 0) if v < 16 else slot2(16 + (v - 16) // 2) + (v & 1) * 2 * UNIT


def u_reads(v):
    return [(('U', v, k >> 1), f"ds_read_b64_tr_b16 v[{WD(k)+2*w}:{WD(k)+2*w+1}], v{VWD} offset:{(k>>2)*UNIT + (k&3)*32 + w*256}") for k in range(8) for w in range(2)]


def u_areg(v, kk, mi):
    if v >= 16: return ADP[2 * (v - 16) + kk] + 4 * mi
    return ((24, 112, 96, 72) if v < 8 else (8, 24, 112, 96))[v % 4] + 8 * kk + 4 * mi


def u_loads(v, vm):
    if v < 16:
        sb, ln = (46, ORD[NS + v % 4]) if v % 4 < 2 else (45, ND + v % 2)
        o = [f"s_add_u32 s54, s{sb}, {ln<<17}", f"s_add_u32 s53, s{sb}, {(ln<<17)+4096}"]
    else: o = [f"s_mov_b32 s54, {OREG+((v-16)<<17)}", f"s_mov_b32 s53, {OREG+((v-16)<<17)+4096}"]
    for kk in range(2):
        for mi in range(2): o.append((f"buffer_load_dwordx4 {vr(u_areg(v,kk,mi))}, v{VA1 if v < 8 else VA0}, {W}, s{54-mi} offen offset:{kk*2048} {HF[1] if v < 16 and v % 4 < 2 else 'sc1'}", vm, ('B', v, kk)))
    return o


class Stage:
    def __init__(self, g, q, extra, dens):
        self.g = g; self.q = list(q); self.extra = extra; self.dens = dens; self.carry = 0
    def a(self, x):
        self.g.a(x); self.g.st['since'] += 1
    def wait(self, key):
        need = [k for k, e in enumerate(self.q) if key is None or e == key]
        if need:
            n = min(14, len(self.q) - 1 - max(need))
            self.a(f"s_waitcnt lgkmcnt({n})"); self.q = self.q[len(self.q) - n:]
    def read(self, r):
        self.a(r[1]); self.q.append(r[0])
    def op(self, x):
        if isinstance(x, tuple): x[1].op(x[0], x[2]); self.g.st['since'] += 1
        else: self.a(x)
    def fill(self, used):
        ex, st = self.extra, self.g.st
        while used < self.dens and ex:
            if isinstance(ex[0], int):
                if st['since'] >= ex[0]: ex.pop(0); continue
                return
            if ex[0] == 'XW':
                if 'x' in self.q: return
                ex.pop(0); continue
            x = ex.pop(0)
            if callable(x): x(); used += 2; st['since'] = 0; continue
            if isinstance(x, tuple): x[1].op(x[0], x[2]); x = x[0]
            else: self.g.a(x)
            if x.startswith("ds_"): self.q.append('x')
            st['since'] = 0
            used = 0 if x.startswith("v_mfma") else used + (2 if x.startswith(("v_exp", "v_rcp")) else 1)


def c_slab(g, u, vm, q, extra=None, dens=2, own=False):
    S = Stage(g, q, extra, dens)
    UL = 2 * NS - 1
    ld = c_loads(u + 3, vm) if u + 3 <= UL else u_loads(u + 2 - UL, vm)
    dr = u_reads(0) if u == UL else []
    if u == 0: ld = [] if own else c_loads(2, vm) + ld
    ab = (lambda i: 40 + 16 * (u - 2) + 4 * i) if own and u in (2, 3) else (lambda i: AB(u, i))
    late = own and u == 1
    vm.wait(('A', u))
    for jj in range(8):
        n = 8 * u + jj
        R = c_wread(n + 3) if n + 3 < 16 * NS else []
        for k, i in enumerate(range(4) if jj % 2 == 0 else range(3, -1, -1)):
            S.wait(('W', n))
            S.a(mfma(ACC(JORD[jj], i), WB(n), ab(i), "0" if u == 0 else None))
            used = 1 if k == 3 else 0
            if R: S.read(R.pop(0)); used += 1
            if u % 2 == 1 and u < UL and jj == 4 and k == 2:
                S.a(f"v_add_u32 v{VW2}, {(slot2(u//2+1)-slot2(u//2)) & 0xffffffff}, v{VW2}"); used += 1
                if u // 2 + 1 not in g.o['sk']: S.a("s_barrier"); used = 2
            elif u == UL and jj == 1 and k == 2:
                S.a(f"v_add_u32 v{VWD}, {(u_base(0)-slot2(NS-1)) & 0xffffffff}, v{VW2}"); S.a("s_barrier"); used = 2
            elif dr and jj >= 2 and used < 2 and (k >= 2 or jj >= 5):
                S.read(dr.pop(0)); used += 1
            if ld and used < 2 and (((jj >= 5 and k in (1, 2)) if late else k in (1, 2) if u == 0 else (k == 2 and (jj % 2 == g.o['aspread'] - 1 or not g.o['aspread'] or (u % 2 == 1 and jj == 5))) if u < UL else (jj >= 2 and k < 2)) or isinstance(ld[0], str)):
                S.op(ld.pop(0)); used += 1
            S.fill(used)
    assert not ld and not dr
    return S.q


def unit(g, v, vm, q, extra, dens=2):
    S = Stage(g, q, extra, dens)
    R = u_reads(v + 1) if v < 15 + ND else []
    t = {0: 3, 2: 8, 5: 9, 6: 10, 7: 11}
    for n, w in enumerate(g.o['dld']):
        assert w >= (8, 8, 8, 10, 12, 13, 14, 15)[n]
        t[w] = 16 + n
    t = t.get(v)
    ld = u_loads(t, vm) if t is not None else []
    m = 0
    for k in range(8):
        if k % 4 == 0: vm.wait(('B', v, k >> 2))
        for mi in ((0, 1) if k % 2 == 0 else (1, 0)):
            S.wait(('U', v, k >> 1))
            acc = ACC((4 if v % 8 < 4 else 0) + (k & 3), mi + (2 if v < 8 else 0)) if v < 16 else ACC(k & 3, mi)
            S.a(mfma(acc, WD(k), u_areg(v, k >> 2, mi)))
            used = 1 if m % 4 == 3 else 0
            if R and m == 0:
                S.a(f"v_add_u32 v{VWD}, {(u_base(v+1)-u_base(v)) & 0xffffffff}, v{VWD}"); used += 1
                if v in (3, 12, g.o['r1']): S.a("s_barrier"); used += 1
            elif R:
                S.read(R.pop(0)); used += 1
                if m == 15: S.read(R.pop(0))
            if ld and m in (1, 2, 4, 6, 9, 13):
                S.op(ld.pop(0)); used += 1
            S.fill(used)
            m += 1
    assert not R and not ld
    return S.q


def spaced(lst, n):
    o = []
    for x in lst: o += [x, n]
    return o


def strs(ex):
    return [x for x in ex if not isinstance(x, int)]


def compute(g):
    a = g.a
    a("L_compute:")
    a("v_and_b32 v4, 15, v0\nv_lshrrev_b32 v5, 4, v0")
    a("v_bfe_u32 v6, v4, 3, 1\nv_bfe_u32 v7, v4, 1, 1\nv_lshl_add_u32 v6, v6, 1, v7")
    a(f"v_mul_u32_u24 v{VX}, {BLK}, v6")
    a("v_bfe_u32 v6, v4, 2, 1\nv_and_b32 v7, 1, v4\nv_lshl_add_u32 v6, v6, 1, v7")
    a(f"v_lshl_add_u32 v{VX}, v6, 7, v{VX}\nv_lshl_add_u32 v{VX}, v5, 4, v{VX}")
    a(f"s_mul_i32 s45, s{S_WAVE}, {2*UNIT}\nv_add_u32 v{VX}, s45, v{VX}")
    a("v_and_b32 v6, 1, v5\nv_bfe_u32 v7, v4, 3, 1\nv_lshl_add_u32 v6, v6, 1, v7")
    a(f"v_mul_u32_u24 v{VW}, {BLK}, v6")
    a("v_lshrrev_b32 v6, 1, v5\nv_bfe_u32 v7, v4, 2, 1\nv_lshl_add_u32 v6, v6, 2, v7")
    a(f"v_lshl_add_u32 v{VW}, v6, 7, v{VW}\nv_and_b32 v6, 3, v4\nv_lshl_add_u32 v{VW}, v6, 3, v{VW}")
    a(f"v_add_u32 v{VW}, {WBASE}, v{VW}")
    a(f"v_lshrrev_b32 v6, 5, v0\nv_and_b32 v7, 31, v0\nv_lshlrev_b32 v7, 3, v7\nv_lshl_add_u32 v{VQ}, v6, 9, v7")
    a(f"v_add_u32 v{VQ}, {WBASE+3*UNIT}, v{VQ}")
    for r in range(48, 256): a(f"v_mov_b32 v{r}, 0")
    a(f"s_mov_b32 s45, 7\ns_mov_b32 s46, 0\ns_mov_b32 s48, {(-2*XSLOT) & 0xffffffff}\ns_mov_b32 s49, {XSLOT}")
    a("s_mov_b32 s50, 0x3fb8aa3b\ns_mov_b32 s51, 0x358637bd")
    a(f"s_and_b32 s52, s{S_MB8}, 3\ns_lshl_b32 s52, s52, 21\ns_lshl_b32 s53, s{S_WAVE}, 15\ns_add_u32 s52, s52, s53")
    a(f"s_and_b32 s53, s{S_QD}, 1\ns_mul_i32 s53, s53, 7\ns_lshl_b32 s55, s32, 6\ns_add_u32 s53, s53, s55")
    a(f"s_add_u32 s66, s53, 6\ns_lshl_b32 s66, s66, 17\ns_add_u32 s66, s66, s52")
    a(f"s_lshr_b32 s55, s{S_C}, 1\ns_lshl_b32 s55, s55, 11\ns_add_u32 s66, s66, s55")
    a(f"s_and_b32 s55, s{S_C}, 1\ns_lshl_b32 s55, s55, 10\ns_add_u32 s66, s66, s55")
    a("s_add_u32 s67, s66, 16384")
    a(f"s_lshr_b32 s57, s{S_WAVE}, 1\ns_and_b32 s58, s{S_WAVE}, 1")
    a(f"s_lshl_b32 s59, s2, 11\ns_lshl_b32 s55, s{S_WAVE}, 7\ns_add_u32 s59, s59, s55\ns_add_u32 s59, s59, {WS_FLAG}")
    a(f"s_add_u32 s60, s59, {F_H2}\ns_add_u32 s61, s59, {F_X}")
    a("v_lshlrev_b32 v4, 4, v0\nv_mov_b32 v6, 1")
    lane_goodcol(g, 7, 5)
    a("s_waitcnt lgkmcnt(0)")
    srd(g, SRD_WS, 26, 0x10000000)
    ord_table(g, 4)
    a(f"s_lshl_b32 s6, s{S_RH}, 14\ns_xor_b32 s7, s6, 16384\ns_add_u32 s6, s6, s52\ns_add_u32 s7, s7, s52\ns_lshl_b32 s8, s32, 23\ns_lshl_b32 s9, s32, 18\ns_add_u32 s9, s9, {OREG}")
    a(f"s_lshl_b32 s16, s{S_WAVE}, 13\ns_lshl_b32 s17, s{S_WAVE}, 10\ns_add_u32 s17, s17, {P2END}")
    if g.o.get('prio'): a(f"s_setprio {g.o['prio']}")
    a("s_barrier")
    g.stamp(1)

    def em(lst):
        for x in lst: a(x)
    def p2_setup():
        a(f"v_add_u32 v{VA0}, s6, v7\nv_add_u32 v{VA1}, s7, v7\ns_mov_b32 s46, s8\ns_mov_b32 s45, s9\nv_add_u32 v{VW2}, {(slot2(0)-WBASE) & 0xffffffff}, v{VW2}")
    def moves(dst, tile):
        l0, l1 = g.lab("mv"), g.lab("mv")
        f = lambda x: "\n".join(f"v_mov_b64 v[{d+4*i+r}:{d+4*i+r+1}], v[{AC(t,i^x)+r}:{AC(t,i^x)+r+1}]" for d, t in zip(dst, tile) for i in range(4) for r in (0, 2))
        return [f"s_cmp_lg_u32 s{S_RH}, 0\ns_cbranch_scc1 {l0}\n{f(0)}\ns_branch {l1}\n{l0}:\n{f(2)}\n{l1}:"]
    def c_begin(vm, mv=()):
        g.stamp(4)
        a("s_waitcnt lgkmcnt(0)")
        em(mv)
        a("s_barrier")
        g.stamp(5)
        R = c_wread(0) + c_wread(1) + c_wread(2)
        for _, x in R: a(x)
        return [k for k, _ in R]
    def flag_ex(vm, tag, so):
        return lambda: (vm.wait(tag), a(flagops(6, so)), vm.mark('f', 1))
    def quarter(tmp):
        o = [f"v_bfe_u32 v{VQ}, v0, 4, 1", f"v_mul_u32_u24 v{VQ}, 3584, v{VQ}", f"v_lshrrev_b32 v{tmp}, 5, v0", f"v_lshlrev_b32 v{tmp}, 9, v{tmp}",
             f"v_sub_u32 v{VQ}, v{VQ}, v{tmp}", f"v_add_u32 v{VQ}, v{VQ}, v7"]
        for p in (1, 0):
            d = AC(12, 2 * p)
            o += h_cvt(d, d, d + 4)
        for p in (1, 0):
            d = AC(12, 2 * p)
            o += [f"s_nop 1\nv_permlane16_swap_b32 v{d}, v{d+2}", f"v_permlane16_swap_b32 v{d+1}, v{d+3}",
                  f"buffer_store_dwordx4 {vr(d)}, v{VQ}, {W}, s{66+p} offen {HF[0]}"]
        return o

    a(f"s_cmp_ge_u32 s{S_C}, 2\ns_cbranch_scc1 L_cq")
    a(f"s_add_u32 s55, s53, s{S_C}\ns_lshl_b32 s55, s55, 17\ns_add_u32 s55, s55, s52")
    p1_loop(g, True)
    SEL = lambda t: 224 + 4 * t
    T = lambda t: (176 + 4 * t) if t < 4 else (240 + 4 * (t - 4)) if t < 8 else 204
    ex2 = ["v_and_b32 v201, 3, v0", "v_mov_b32 v202, 0x3f803f80"]
    for t in range(4):
        ex2 += [f"v_cmp_eq_u32 vcc, {t}, v201\ns_nop 1\nv_cndmask_b32 v{SEL(t)}, 0, v202, vcc"] + [f"v_mov_b32 v{SEL(t)+r}, v{SEL(t)}" for r in (1, 2, 3)]
    ex2 += quarter(200)
    for s_ in range(4):
        for p in range(2):
            ex2 += phi_regs(list(range(AC(s_, 2 * p), AC(s_, 2 * p) + 8)), 192, 2 * s_ + p >= g.o.get('pk0', 2)) + pack8(AC(s_, 2 * p), AC(s_, 2 * p + 1))
        if s_ == 1: ex2.append(None)
    rest = p1_tail(g, True, h_line_store(8, 55), ex2, flagops(6, 59))
    g.stamp(2)
    k = rest.index(None)
    em(rest[:k]); rest = rest[k + 1:]
    em(moves((24,), (8,)))
    for s_ in range(4, 8):
        for p in (1, 0): em(pack8(AC(s_, 2 * p), AC(s_, 2 * p + 1)))
    def kv_mfmas(h):
        o = []
        for p in range(2):
            for dt in range(2):
                for e in range(2): o.append(mfma(T((h * 2 + e) * 2 + dt), AC(2 * h + dt, 2 * p), AC(4 + 2 * h + e, 2 * p), "0" if p == 0 else None))
                o.append(mfma(T(8), AC(2 * h + dt, 2 * p), SEL(2 * h + dt), "0" if (h, p, dt) == (0, 0, 0) else None))
        return o
    wr = lambda t: f"ds_write_b128 v5, {vr(T(t))} offset:{t*1024}"
    a("v_add_u32 v5, s16, v4\ns_waitcnt vmcnt(0)")
    a(flagops(6, *((60,) if g.o['fpos'] < 64 else (59, 60))))
    for x in kv_mfmas(0):
        a(x); em(rest[:3]); rest = rest[3:]
    vm = VM(a)
    for t in range(4): em(rest[:10]); rest = rest[10:]; a(wr(t))
    em(moves((112,), (10,))); em(rest)
    a("s_nop 1")
    em(kv_mfmas(1))
    p2_setup()
    a("v_add_u32 v88, s17, v4\ns_nop 0")
    for t in (4, 6, 5, 7): a(wr(t))
    a(f"ds_write_b128 v88, {vr(T(8))}")
    g.stamp(3)
    q = c_begin(vm)
    JU = g.o['ju']
    for u in range(JU): q = c_slab(g, u, vm, q)
    qj, vj = list(q), list(vm.q)
    a("s_branch L_c2join")
    a("L_cq:")
    a(f"s_lshl_b32 s55, s{S_C}, 1\ns_add_u32 s55, s55, s53\ns_sub_u32 s55, s55, 2\ns_lshl_b32 s55, s55, 17\ns_add_u32 s55, s55, s52")
    a("s_add_u32 s62, s55, 0x20000")
    p1_loop(g, False)
    b2 = quarter(AC(5, 0)) + [x for x in h_line_store(8, 62) if x.startswith("v_")]
    mv = moves((40, 56), (8, 10))
    late2 = [f"buffer_store_dwordx4 {vr(40+16*p+4*i)}, v{VA1 if i>>1 else VA0}, {W}, s{63 if i&1 else 62} offen offset:{p*2048} {HF[0]}" for p in range(2) for i in range(4)]
    em(p1_tail(g, False, h_line_store(4, 55), b2, flagops(6, 59)))
    g.stamp(2)
    vm = VM(a, ['h2'])
    hand_q = []
    for h in range(2):
        for i in (2, 3, 0, 1): hand_q.append(pack8(AC(2 * h, i), AC(2 * h + 1, i)) + [f"ds_write_b128 v5, {vr(PQ(i,h))} offset:{(i*2+h)*1024}"])
    a(f"s_lshl_b32 s55, s{S_WAVE}, 13\nv_add_u32 v5, s55, v4")
    phg = g.o.get('phig', 4)
    for x in hand_q: em(x)
    p2_setup()
    a("s_sub_u32 s62, s62, s52\ns_add_u32 s63, s62, 4096")
    em(moves((24, 112), (4, 6)))
    g.stamp(3)
    q = c_begin(vm, mv)
    ex = []
    for x in late2: ex += [(x, vm, 'h2'), g.o['st2sp']]
    k = JU - (2 if late2 else JU)
    for u in range(JU):
        if u == k + 1:
            assert not strs(ex)
            ex = [60 if late2 else 0, flag_ex(vm, 'h2', 60)]
        q = c_slab(g, u, vm, q, ex, own=True)
    qq = [x for x in vm.q if x not in ('f', 'h2')]
    assert not ex and q == qj and qq == vj[len(vj) - len(qq):]
    a("L_c2join:")
    vm.q = list(vj)
    pre = (inbox(68, 56, S_WAVE) +
           "".join(f"s_xor_b32 s{61+p}, s68, {hex(p<<18)}\ns_add_u32 s{61+p}, s{61+p}, {WS_PART+((p-1)<<16)}\ns_add_u32 s{64+p}, s{61+p}, 4096\n" for p in (1, 2, 3)) +
           f"s_add_u32 s59, s59, {F_P}\ns_lshl_b32 s68, s{S_WAVE}, 12\ns_add_u32 s68, s68, {P2END}\n"
           f"s_add_u32 s69, s{S_WAVE}, {NS+2}\ns_and_b32 s69, s69, {NSL-1}\ns_mul_i32 s69, s69, {P2SLOT}\ns_add_u32 s69, s69, {2*UNIT}\n"
           f"s_mov_b32 s28, s18\ns_mov_b32 s29, s19\ns_mov_b32 s30, {hex(2048*1024*2)}\ns_mov_b32 s31, 0x20000\n"
           f"s_lshl_b32 s55, s{S_MB8}, 2\ns_add_u32 s55, s55, s{S_WAVE}\ns_lshl_b32 s55, s55, 17\ns_lshl_b32 s56, s{S_RH}, 16\ns_add_u32 s55, s55, s56\n"
           f"s_lshl_b32 s56, s{S_CB}, 8\ns_add_u32 s55, s55, s56\ns_lshl_b32 s56, s{S_KH}, 7\ns_add_u32 s55, s55, s56\n"
           f"s_lshl_b32 s50, s{S_WAVE}, 1\ns_add_u32 s50, s50, s{S_RH}\ns_lshl_b32 s50, s50, 7\ns_add_u32 s50, s50, {LDS_G}\n"
           f"v_and_b32 v{SEL0+6}, 15, v0\nv_lshrrev_b32 v{SEL0+7}, 4, v0\nv_lshlrev_b32 v{SEL0+7}, 2, v{SEL0+7}\nv_sub_u32 v{SEL0+6}, v{SEL0+6}, v{SEL0+7}\n"
           f"v_and_b32 v{SEL0+7}, 1, v0\nv_lshlrev_b32 v{SEL0+7}, 4, v{SEL0+7}\nv_mov_b32 v{SEL0}, 0x3f80\nv_lshlrev_b32 v{SEL0+7}, v{SEL0+7}, v{SEL0}\nv_lshrrev_b32 v{SEL0+6}, 1, v{SEL0+6}").split("\n")
    pre += [f"v_cmp_eq_u32 vcc, {k}, v{SEL0+6}\ns_nop 1\nv_cndmask_b32 v{SEL0+2+k}, 0, v{SEL0+7}, vcc" for k in range(2)]
    pre += [f"v_mov_b32 v{SEL0+r}, 0" for r in (0, 1, 4, 5)]
    ex = pre
    for u in range(JU, 2 * NS): q = c_slab(g, u, vm, q, ex)
    def send(p, sp, mi):
        j, i = 4 * (p >> 1) + 2 * sp, 2 * (p & 1) + mi
        return pack8(ACC(j, i), ACC(j + 1, i)) + [(f"buffer_store_dwordx4 {vr(ACC(j,i))}, v7, {W}, s{61+p+3*mi} offen offset:{sp*2048} sc1", vm, ('ps', p))]
    def rdp(p):
        return [f"ds_read_b128 {vr(PP(p,f))}, v{VFL if p == 3 else VPO} offset:{(4096 if p == 2 else 0)+f*1024}" for f in range(4)]
    def addp(p):
        return [mfma(ACC(2 * sp + t, mi), SEL0 + 2 - 2 * t, PP(p, mi * 2 + sp)) for mi in range(2) for sp in range(2) for t in range(2)]
    XF = g.o['xf']
    PO = (3, 1, 2)
    for v in range(17 + ND):
        if v == 1:
            assert not ex
            ex += (f"v_add_u32 v{VFL}, s68, v4\nv_add_u32 v{VPO}, s69, v4\nv_and_b32 v{VOUT}, 15, v0\nv_lshl_add_u32 v{GG}, v{VOUT}, 2, s50\n"
                   f"v_lshlrev_b32 v{VOUT}, 11, v{VOUT}\nv_bfe_u32 v{GG+1}, v0, 4, 1\nv_lshl_add_u32 v{VOUT}, v{GG+1}, 5, v{VOUT}\n"
                   f"v_lshrrev_b32 v{GG+1}, 5, v0\nv_lshl_add_u32 v{VOUT}, v{GG+1}, 4, v{VOUT}\n"
                   f"ds_read_b32 v{GG+1}, v{GG} offset:64\nds_read_b32 v{GG}, v{GG}").split("\n")
            ex += ['XW', f"v_add_f32 v{GG}, 1.0, v{GG}", f"v_add_f32 v{GG+1}, 1.0, v{GG+1}", f"v_rcp_f32 v{GG}, v{GG}", f"v_rcp_f32 v{GG+1}, v{GG+1}"]
        if 4 <= v < 16:
            if v % 4 == 0:
                snd = [send(PO[v // 4 - 1], sp, mi) for sp in range(2) for mi in range(2)]
                g.st['since'] = 0; ex.append(6)
            if v >= 12 and g.o.get('fast2', 1):
                if v % 4 < 2: ex += snd[2 * (v % 4)] + snd[2 * (v % 4) + 1]
            elif v % 4 < 2: ex += snd[2 * (v % 4)][:4] + [snd[v % 4][4]] + snd[2 * (v % 4) + 1][:4]
            else: ex += [snd[v % 4][4]]
        if v == 16: g.stamp(6)
        if v == g.o['r1'] + 1: g.stamp(3)
        if v == 14: g.stamp(4)
        if v in (0, 4, 8, 12, 20): g.stamp({0: 11, 4: 12, 8: 13, 12: 14, 20: 15}[v])
        for r in range(3):
            if v == XF[r]:
                assert v >= (8, 12, 14 if g.o.get('fast2', 1) else 16)[r]
                vm.wait(('ps', PO[r])); a(flagops(6, 59)); vm.mark('f', 1); a(f"v_mov_b32 v6, {r+2}")
        if v == g.o['r1']:
            assert v >= 16 and not ex
            g.st['since'] = 0
            ex += [4] + rdp(3) + rdp(1) + ['XW'] + addp(3) + addp(1)
        if v < 16 + ND: q = unit(g, v, vm, q, ex, dens=g.o.get('ydens', 3) if v < 16 else g.o.get('ddens', 3))
        if 4 <= v < 16: assert not [x for x in ex if (isinstance(x, tuple) and x[2][0] == 'ps') or (isinstance(x, str) and x.startswith("v_cvt"))]
    assert not ex
    g.stamp(9)
    a("s_barrier")
    g.stamp(10)
    em(rdp(2))
    ad = addp(2)
    for f in range(4): a(f"s_waitcnt lgkmcnt({3-f})"); em(ad[2 * f:2 * f + 2])
    g.stamp(7)
    for mi in range(2):
        for hf in range(2):
            for j in range(2):
                for r in range(0, 4, 2): a(f"v_pk_mul_f32 v[{ACC(2*hf+j,mi)+r}:{ACC(2*hf+j,mi)+r+1}], v[{ACC(2*hf+j,mi)+r}:{ACC(2*hf+j,mi)+r+1}], v[{GG}:{GG+1}] op_sel:[0,{mi}] op_sel_hi:[1,{mi}]")
            d = ACC(2 * hf, mi)
            em(pack8(d, ACC(2 * hf + 1, mi)))
            a(f"s_add_u32 s56, s55, {0x8000*mi + 64*hf}\ns_nop 0\nv_permlane16_swap_b32 v{d}, v{d+2}\nv_permlane16_swap_b32 v{d+1}, v{d+3}")
            a(f"buffer_store_dwordx4 {vr(d)}, v{VOUT}, s[28:31], s56 offen {g.o.get('outflag','')}")
    if g.o['prof']:
        a("s_waitcnt vmcnt(0)")
        g.stamp(8)
    if g.o.get('probe') is not None:
        k = g.o['probe']
        if k == 'xcc':
            k = 0
            a("s_waitcnt lgkmcnt(0)\ns_getreg_b32 s55, hwreg(HW_REG_XCC_ID)\ns_sub_u32 s55, s55, s2\ns_and_b32 s55, s55, 7\ns_mul_i32 s55, s55, 500\ns_add_u32 s70, s70, s55")
        if k == 'min':
            k = 0
            srd(g, 28, 24, 256)
            a("buffer_load_dword v5, off, s[28:31], 0 offset:4 sc1\ns_waitcnt vmcnt(0) lgkmcnt(0)\nv_readfirstlane_b32 s70, v5\ns_nop 3\ns_not_b32 s70, s70")
        a(f"s_waitcnt lgkmcnt(0)\ns_add_u32 s55, s{70+2*k}, 6000\nL_probe:\ns_memrealtime s[56:57]\ns_waitcnt lgkmcnt(0)\ns_sub_u32 s56, s56, s55\ns_cmp_lt_i32 s56, 0\ns_cbranch_scc1 L_probe\ns_endpgm")
    prof_dump(g, 0, 0)
    a("s_endpgm")


def q_call(g, n):
    K1 = g.o['k1']
    k = f"p{n}" if n < len(g.o['pch']) else 4 + n - K1 if K1 <= n <= K1 + g.o['noc'] else None
    if k is None: return
    l = g.lab("qc")
    if n == 0: g.a("s_call_b64 s[84:85], L_qp0"); return
    g.a(f"s_cmp_lt_u32 s{S_C}, 2\ns_cbranch_scc1 {l}\ns_call_b64 s[84:85], L_q{k}\n{l}:")


def q_chunks(g):
    a = g.a
    QR = lambda f: 128 + 4 * f
    def phi(f):
        if g.o.get('nophi'): return
        for r in range(4): a(f"v_lshlrev_b32 v{160+2*r}, 16, v{QR(f)+r}\nv_and_b32 v{161+2*r}, 0xffff0000, v{QR(f)+r}")
        for r in range(8): a(f"v_mul_f32 v{168+r}, 0x3fb8aa3b, v{160+r}")
        for r in range(8): a(f"v_exp_f32 v{168+r}, v{168+r} clamp\nv_max_f32 v{160+r}, 0x358637bd, v{160+r}")
        for r in range(8): a(f"v_add_f32 v{160+r}, v{160+r}, v{168+r}")
        for r in range(4): a(f"v_cvt_pk_bf16_f32 v{QR(f)+r}, v{160+2*r}, v{161+2*r}")
    nf = 0
    assert sum(g.o['pch']) == 8 and len(g.o['pch']) <= g.o['k0']
    a("L_k0:\ns_setprio 2")
    a(f"s_lshl_b32 s82, s86, 11\nv_lshl_add_u32 v224, v0, 4, s82\nv_lshlrev_b32 v225, 4, v0\nv_add_u32 v226, {P2END}, v225")
    for w in range(4):
        for t in range(2): a(f"ds_read_b128 {vr(128+8*w+4*t)}, v224 offset:{w*8192+t*1024}")
    for w in range(4): a(f"ds_read_b128 {vr(160+4*w)}, v226 offset:{w*1024}")
    a(f"s_lshl_b32 s83, s{S_PAIR}, 3\ns_add_u32 s83, s83, s{S_MB8}\ns_mul_i32 s83, s83, 9216\ns_add_u32 s83, s83, {WS_KVP}\ns_add_u32 s82, s82, s83")
    a("s_add_u32 s83, s83, 8192\ns_cmp_eq_u32 s86, 0\ns_cselect_b32 s83, s83, 0x10000000\ns_waitcnt lgkmcnt(4)")
    for r in range(16): a(f"v_add_f32 v{128+r}, v{128+r}, v{144+r}")
    for r in range(8): a(f"v_add_f32 v{128+r}, v{128+r}, v{136+r}")
    for t in range(2): a(f"buffer_store_dwordx4 {vr(128+4*t)}, v225, {W}, s82 offen offset:{t*1024} sc1")
    a("s_waitcnt lgkmcnt(0)")
    for r in range(8): a(f"v_add_f32 v{160+r}, v{160+r}, v{168+r}")
    for r in range(4): a(f"v_add_f32 v{160+r}, v{160+r}, v{164+r}")
    a(f"buffer_store_dwordx4 v[160:163], v225, {W}, s83 offen sc1\ns_setprio 0\ns_setpc_b64 s[84:85]")
    for k in range(len(g.o['pch'])):
        a(f"L_qp{k}:")
        if k == 0: a(f"s_sub_u32 s86, s{S_WAVE}, 4\ns_cmp_lt_u32 s{S_C}, 2\ns_cbranch_scc1 L_k0")
        if g.o.get('pprio'): a(f"s_setprio {g.o['pprio']}")
        if k == 0:
            a(f"s_sub_u32 s86, s{S_WAVE}, 4\ns_lshl_b32 s82, s86, 13\nv_lshl_add_u32 v224, v0, 4, s82")
            for f in range(8): a(f"ds_read_b128 {vr(QR(f))}, v224 offset:{f*1024}")
            a(f"s_lshl_b32 s83, s2, 11\ns_add_u32 s83, s83, {WS_FLAG+F_X}\ns_xor_b32 s83, s83, s79")
            a(f"s_and_b32 s82, s{S_MB8}, 3\ns_lshl_b32 s82, s82, 4\ns_add_u32 s82, s82, s{S_PAIR}\ns_lshl_b32 s82, s82, 2\ns_add_u32 s82, s82, s86\ns_lshl_b32 s82, s82, 15\ns_add_u32 s82, s82, {OREG}")
            a(f"v_lshlrev_b32 v224, 4, v0\nv_add_u32 v224, {P2END}, v224\nv_mov_b32 v226, 0\nds_write_b32 v224, v226 offset:8192\nv_mov_b32 v226, 1\ns_waitcnt lgkmcnt(0)")
        for _ in range(g.o['pch'][k]): phi(nf); nf += 1
        a("s_setpc_b64 s[84:85]")
    noc = g.o['noc']
    tiles = {2: [(0, 1), (2, 3)], 3: [(0,), (1, 2), (3,)], 4: [(0,), (1,), (2,), (3,)]}[noc]
    for k in range(noc):
        a(f"L_q{4+k}:")
        if g.o.get('qprio'): a(f"s_setprio {g.o['qprio']}")
        lane_goodcol(g, 225, 227)
        if k == 0:
            for f in range(6): a(f"ds_read_b128 {vr(176+4*f)}, v224 offset:{f*1024}")
            a(f"s_lshl_b32 s86, s{S_WAVE}, 8\ns_add_u32 s86, s86, {LDS_G-1024}\nv_and_b32 v227, 15, v0\nv_lshl_add_u32 v227, v227, 2, s86")
            for i in range(4): a(f"ds_read_b32 v{228+i}, v227 offset:{i*64}")
            a("s_waitcnt lgkmcnt(0)")
        for i in tiles[k]:
            for h in range(2):
                for e in (2, 0, 1): a(mfma(200 + 12 * h + 4 * e, 176 + 4 * (3 * h + e), QR(2 * i + h), "0"))
            a(f"s_add_u32 s86, s82, {MT(i)}\ns_nop 3")
            for h in range(2):
                t = 200 + 12 * h
                a(f"v_add_f32 v{t+8}, 0x358637bd, v{t+8}\nv_rcp_f32 v{t+8}, v{t+8}\ns_nop 0\nv_mul_f32 v{t+8}, v{228+i}, v{t+8}")
                for r in range(8): a(f"v_mul_f32 v{t+r}, v{t+r}, v{t+8}")
                for r in range(4): a(f"v_cvt_pk_bf16_f32 v{QR(2*i+h)+r}, v{t+2*r}, v{t+2*r+1}")
                a(f"buffer_store_dwordx4 {vr(QR(2*i+h))}, v225, {W}, s86 offen offset:{h*2048} sc1")
        if g.o.get('qprio'): a("s_setprio 0")
        a("s_setpc_b64 s[84:85]")
    a(f"L_q{4+noc}:\ns_waitcnt vmcnt(0)\nds_add_rtn_u32 v227, v224, v226 offset:8192\ns_waitcnt lgkmcnt(0)\nv_cmp_eq_u32 vcc, 3, v227\ns_cbranch_vccz L_qret")
    a(flagops(226, 83) + "\nL_qret:\ns_mov_b64 vcc, -1\ns_setpc_b64 s[84:85]")


def aux_sel(g):
    if g.o['pol'] is None: g.a(f"v_mov_b32 v227, {LDS_SEL}\nds_read_b32 v227, v227\ns_waitcnt lgkmcnt(0)\nv_readfirstlane_b32 s79, v227\ns_nop 1\ns_xor_b32 s{S_SEL}, s{S_SEL}, s79")
    if g.o['pol'] is not None or not g.o['nearf']: g.a("s_mov_b32 s79, 0")


def aux_rx(g):
    a = g.a
    a("L_rx:")
    lane_goodcol(g, 225, 227)
    a(f"v_add_u32 v224, 1024, v225\ns_sub_u32 s86, s{S_WAVE}, 4")
    a(inbox(82, 83, 86) + f"s_add_u32 s82, s82, {WS_PART}")
    a(f"s_lshl_b32 s83, s2, 11\ns_lshl_b32 s47, s86, 7\ns_add_u32 s83, s83, s47\ns_xor_b32 s83, s83, s79")
    a(f"s_lshl_b32 s84, s86, 12\ns_add_u32 s84, s84, {P2END}")
    a(f"s_add_u32 s85, s86, {NS+2}\ns_and_b32 s85, s85, {NSL-1}\ns_mul_i32 s85, s85, {P2SLOT}\ns_add_u32 s85, s85, {2*UNIT}")
    a("s_waitcnt vmcnt(0) lgkmcnt(0)\ns_barrier")
    for r, p in enumerate((3, 1, 2)):
        a(f"s_xor_b32 s47, s83, {p<<11}\ns_add_u32 s47, s47, {WS_FLAG+F_P}")
        iss = lambda: a(f"buffer_load_dword v226, off, {W}, s47 sc1")
        if r == 2: a("s_waitcnt vmcnt(0)"); iss(); a("s_barrier")
        else: iss()
        poll_check(g, iss, 226, 1, r + 1, "gt")
        for mi in range(2):
            a(f"s_add_u32 m0, s{84 if p == 3 else 85}, {(4096 if p == 2 else 0)+mi*2048}\ns_add_u32 s47, s82, {((p-1)<<16)+mi*4096}")
            a(f"buffer_load_dwordx4 v225, {W}, s47 offen sc1 lds\nbuffer_load_dwordx4 v224, {W}, s47 offen offset:1024 sc1 lds")
    a("s_waitcnt vmcnt(0)\ns_endpgm")


def loader(g):
    def a(x):
        if not g.o.get('trace'): return g.a(x)
        for ln in x.split("\n"):
            g.a(ln)
            if ln.strip() == "s_barrier":
                g.a(("s_memtime" if g.o['trace'] == 'cyc' else "s_memrealtime") + " s[100:101]\ns_waitcnt lgkmcnt(0)\ns_mov_b32 m0, s44\ns_add_u32 s44, s44, 1\nv_writelane_b32 v32, s100, m0\ns_cmp_lg_u32 s44, 33\ns_cbranch_scc1 1\nv_mov_b32 v33, v32")
    if g.o.get('trace'): a("s_mov_b32 s44, 0\nv_mov_b32 v32, 0\nv_mov_b32 v33, 0")
    LW = 45
    if g.o.get('lprio'): a(f"s_setprio {g.o['lprio']}")
    a(f"s_sub_u32 s{LW}, s{S_WAVE}, 4")
    a("v_lshrrev_b32 v1, 5, v0\nv_bfe_u32 v2, v0, 4, 1\nv_lshlrev_b32 v1, 4, v1\nv_lshl_add_u32 v1, v2, 2, v1\nv_bfe_u32 v2, v0, 3, 1\nv_add_u32 v1, v1, v2")
    a(f"s_lshl_b32 s61, s{LW}, 3\nv_add_u32 v1, s61, v1\nv_and_b32 v2, 7, v0\nv_lshlrev_b32 v2, 4, v2")
    a(f"s_lshl_b32 s61, s{S_MB8}, 19\nv_lshl_add_u32 v4, v1, 11, v2\nv_add_u32 v4, s61, v4\nv_add_u32 v5, {4096-BLK}, v4")
    a(f"s_movk_i32 s60, 6144\ns_cmp_ge_u32 s{S_C}, 2\ns_cselect_b32 s60, 7168, s60")
    a(f"s_cselect_b32 s61, 0, 2048\ns_lshl_b32 s62, s{S_PAIR}, 7\ns_add_u32 s61, s61, s62")
    a(f"v_mul_u32_u24 v6, 6144, v1\nv_add3_u32 v6, v6, v2, s61\nv_add_u32 v7, {12288-BLK}, v6")
    a(f"s_mul_i32 s63, s{S_QD}, 7\ns_lshl_b32 s64, s{S_C}, 1\ns_add_u32 s64, s64, s63\ns_sub_u32 s65, s64, 2\ns_lshl_b32 s65, s65, 7\ns_add_u32 s62, s62, 4096")
    a(f"s_cmp_ge_u32 s{S_C}, 2\ns_cselect_b32 s61, s65, s62")
    a(f"v_mul_lo_u32 v8, v1, s60\nv_add3_u32 v8, v8, v2, s61\ns_lshl_b32 s62, s60, 1\ns_sub_u32 s62, s62, {BLK}\nv_add_u32 v9, s62, v8")
    a(f"s_sub_u32 s64, s64, 1\ns_add_u32 s65, s63, s{S_C}\ns_cmp_ge_u32 s{S_C}, 2\ns_cselect_b32 s61, s64, s65\ns_lshl_b32 s61, s61, 7")
    a(f"v_mul_u32_u24 v10, 7168, v1\nv_add3_u32 v10, v10, v2, s61\nv_add_u32 v11, {14336-BLK}, v10")
    a("v_bfe_u32 v12, v0, 4, 1\nv_bfe_u32 v13, v0, 3, 1\nv_lshlrev_b32 v12, 2, v12\nv_lshl_add_u32 v12, v13, 3, v12\nv_bfe_u32 v13, v0, 1, 2\nv_add_u32 v12, v12, v13")
    a(f"s_lshl_b32 s61, s{LW}, 4\nv_add_u32 v12, s61, v12\nv_mul_u32_u24 v12, 7168, v12\nv_and_b32 v13, 1, v0\nv_lshl_add_u32 v12, v13, 4, v12")
    a(f"s_add_u32 s61, s63, 6\ns_lshl_b32 s61, s61, 7\ns_lshl_b32 s62, s{S_C}, 5\ns_add_u32 s61, s61, s62\nv_add_u32 v12, s61, v12")
    a("s_lshl_b32 s60, s60, 5")
    a(f"s_mul_i32 s66, s{LW}, {2*BLK}")
    a(f"s_mov_b32 s61, s66\ns_mov_b32 s62, 0\ns_mov_b32 s63, 0\ns_mov_b32 s64, 0\ns_add_u32 s65, s66, {WBASE}")
    a(f"s_add_u32 s67, s66, {XRING}\ns_add_u32 s68, s66, {WBASE+4*WSLOT}")
    a(f"s_lshl_b32 s69, s{LW}, 9\ns_sub_u32 s69, s69, s66\ns_add_u32 s69, s69, {3*UNIT}")
    a(f"s_mov_b32 s30, {hex(2048*1024*2)}\ns_mov_b32 s31, 0x20000\ns_mov_b32 s50, {hex(1024*3072*2)}\ns_mov_b32 s51, 0x20000")
    a(f"s_mov_b32 s58, {hex(1024*3584*2)}\ns_mov_b32 s59, 0x20000\ns_mov_b32 s55, 0x20000")
    a("s_waitcnt lgkmcnt(0)")
    a("s_mov_b64 s[28:29], s[4:5]\ns_mov_b64 s[48:49], s[6:7]\ns_mov_b64 s[56:57], s[12:13]")
    a(f"s_cmp_ge_u32 s{S_C}, 2")
    a("s_cselect_b64 s[52:53], s[12:13], s[6:7]\ns_cselect_b32 s54, s58, s50")

    def xhalf():
        a("s_mov_b32 m0, s61\ns_add_u32 s46, s62, s63")
        for u in range(4):
            if u: a(f"s_add_u32 m0, m0, {UNIT}\ns_add_u32 s46, s46, 0x10000")
            a("buffer_load_dwordx4 v4, s[28:31], s46 offen lds")
            a(f"buffer_load_dwordx4 v5, s[28:31], s46 offen offset:{BLK} lds")
        a(f"s_add_u32 s61, s61, {4*UNIT}\ns_cmp_eq_u32 s61, s67\ns_cselect_b32 s61, s66, s61")
        a("s_xor_b32 s63, s63, 0x40000\ns_cselect_b32 s47, 0, 128\ns_add_u32 s62, s62, s47\ns_and_b32 s62, s62, 2047")

    def wslab():
        for ln, (sr, ld) in enumerate([(48, 32 * 6144), (52, "s60"), (56, 32 * 7168)]):
            a(f"s_add_u32 m0, s65, {ln*UNIT}\ns_mul_i32 s35, s64, {ld}")
            a(f"buffer_load_dwordx4 v{6+2*ln}, s[{sr}:{sr+3}], s35 offen lds")
            a(f"buffer_load_dwordx4 v{7+2*ln}, s[{sr}:{sr+3}], s35 offen offset:{BLK} lds")
        a("s_add_u32 m0, s65, s69\ns_mov_b32 exec_hi, 0")
        a("buffer_load_dwordx4 v12, s[56:59], s35 offen lds")
        a("s_mov_b32 exec_hi, -1")
        a(f"s_add_u32 s65, s65, {WSLOT}\ns_cmp_eq_u32 s65, s68\ns_cselect_b32 s65, s67, s65")
        a("s_add_u32 s64, s64, 1\ns_and_b32 s64, s64, 31")

    g.stamp(1)
    xhalf(); wslab(); xhalf(); wslab(); g.stamp(2)
    a("s_waitcnt vmcnt(7)"); g.stamp(3)
    a("s_barrier")
    SM = g.o.get('smooth', 1)
    if SM:
        xhalf(); xhalf(); wslab()
        a("s_waitcnt vmcnt(23)\ns_barrier")
        wslab(); xhalf(); wslab()
        a("s_waitcnt vmcnt(22)\ns_barrier")
        xhalf(); wslab(); xhalf()
    else:
        xhalf(); wslab(); xhalf(); wslab(); xhalf()
    real_a, buf = g.a, []
    g.a = lambda x: buf.extend(x.split("\n"))
    srd(g, SRD_WS, 26, 0x10000000)
    a(f"s_mov_b32 s10, {hex(1024*1024*2)}\ns_mov_b32 s11, 0x20000")
    a(f"s_mov_b64 s[12:13], s[14:15]\ns_mov_b32 s14, {hex(3584*1024*2)}\ns_mov_b32 s15, 0x20000")
    a("v_lshrrev_b32 v1, 5, v0\nv_bfe_u32 v3, v0, 4, 1\nv_lshlrev_b32 v1, 3, v1\nv_lshl_add_u32 v1, v3, 4, v1\nv_bfe_u32 v3, v0, 3, 1\nv_add_u32 v1, v1, v3")
    a(f"s_lshl_b32 s4, s{LW}, 2\nv_add_u32 v1, s4, v1")
    a(f"s_lshl_b32 s4, s{S_CB}, 8\ns_lshl_b32 s5, s{S_KH}, 7\ns_add_u32 s4, s4, s5")
    a("v_lshl_add_u32 v14, v1, 11, v2\nv_add_u32 v14, s4, v14\nv_xor_b32 v16, 128, v14")
    a(f"v_add_u32 v15, {4096-BLK}, v14\nv_add_u32 v17, {4096-BLK}, v16")
    a(f"s_lshl_b32 s5, s{S_MB8}, 19\ns_sub_u32 s4, s4, s5")
    a(f"v_add_u32 v24, s4, v4\nv_xor_b32 v26, 128, v24\nv_add_u32 v25, {4096-BLK}, v24\nv_add_u32 v27, {4096-BLK}, v26")
    a(f"s_mul_i32 s6, s32, {14<<17}\ns_lshl_b32 s7, s32, 18")
    a("s_mov_b64 s[24:25], s[12:13]\ns_mov_b32 s26, s14\ns_mov_b32 s27, 0x20000")
    ord_table(g, 4)
    g.a = real_a
    cut = max(i for i, x in enumerate(buf) if x.startswith("s_mov_b64 s[24:25], s[12:13]"))
    NU = 6
    a(f"s_mov_b32 s34, {27-NU-2*SM}")
    a("L_l1:")
    a("s_waitcnt vmcnt(30)\ns_barrier")
    wslab(); xhalf()
    a("s_sub_u32 s34, s34, 1\ns_cmp_lg_u32 s34, 0\ns_cbranch_scc1 L_l1")
    t0 = 27 - NU
    vm = VM(a, [('I', t0 - 3)] * 15 + [('I', t0 - 2)] * 15 + [('I', t0 - 1)] * 15)
    busy = [False]
    def wstage(m):
        if m < 14: a(f"s_bfe_u32 s16, s{4+m//8}, {hex((4<<16) | (4*(m%8)))}\ns_lshl_b32 s16, s16, 17\ns_add_u32 s16, s16, s6")
        for ln in range(2):
            for kk in range(2):
                if g.o.get('wpace') and m >= 3 and (ln or kk):
                    a(f"s_cbranch_vccnz 1\ns_sleep {g.o['wpace']}" if busy[0] else f"s_sleep {g.o['wpace']}")
                a(f"s_add_u32 m0, s66, {slot2(m)+(ln*2+kk)*UNIT}")
                if m < 14:
                    vb, sr = (24 if ORD[m] % 7 == 6 else 14) + 2 * ln, 24 if ln else 12
                    a(f"s_add_u32 s47, s16, {kk<<16}")
                elif m < 16:
                    vb, sr = 14 + 2 * ln, 8
                    a(f"s_add_u32 s47, s7, {((ND+m-14)<<17)+(kk<<16)}")
                else:
                    vb, sr = 14, 8
                    a(f"s_mov_b32 s47, {((2*(m-16)+ln)<<17)+(kk<<16)}")
                for jb in range(2):
                    vm.op(f"buffer_load_dwordx4 v{vb+jb}, s[{sr}:{sr+3}], s47 offen offset:{jb*BLK} sc1 lds", m)
    for t in range(t0, 27):
        vm.wait(('I', t - 3)); a("s_barrier")
        wslab(); xhalf(); vm.mark(('I', t), 15)
        k = t - t0
        for x in (buf[k * cut // 5:(k + 1) * cut // 5] if k < 5 else buf[cut:]): a(x)
    vm.wait(('I', 25)); a("s_barrier")
    wslab(); vm.mark(('I', 27), 7)
    vm.wait(('I', 26)); a("s_barrier")
    wstage(0)
    vm.wait(('I', 27)); a("s_barrier")
    wstage(1)
    aux_sel(g)
    a("s_barrier")
    nxt = 2
    for _ in range(g.o.get('w31', 1)): wstage(nxt); nxt += 1
    a("s_barrier")
    g.stamp(5)
    for _ in range(g.o.get('w32', 0)): wstage(nxt); nxt += 1
    a(f"s_cmp_ge_u32 s{S_C}, 2\ns_cselect_b64 vcc, -1, 0")
    sched = g.o.get('wsched', [1, 1, 1, 1, 2, 1, 2, 1, 1, 1, 2, 1, 1, 1])
    for n in range(0, 14):
        SK = g.o['sk']
        if n not in SK:
            need = n
            while need + 1 in SK: need += 1
            if n >= 12: need = 15
            lim = {0: 5}.get(n, n + 6)
            assert nxt > need
            vm.wait(need); a("s_barrier")
        else: vm.wait(nxt - 1)
        fl = n == g.o['k1'] + g.o['noc']
        fl = fl or (n == 0 and g.o.get('k0first', 1))
        if fl: q_call(g, n)
        busy[0] = n < len(g.o['pch']) or g.o['k1'] <= n <= g.o['k1'] + g.o['noc']
        for _ in range(sched[n]):
            assert nxt <= lim
            wstage(nxt); nxt += 1
        if not fl: q_call(g, n)
    assert nxt == 20
    if g.o.get('trace'):
        l = g.lab("tr")
        a(f"s_cmp_lg_u32 s{S_WAVE}, 4\ns_cbranch_scc1 {l}\ns_lshl_b32 s33, s2, 9\ns_add_u32 s33, s33, {WS_PROF+0x20000}\nv_lshlrev_b32 v5, 2, v0")
        a(f"buffer_store_dword v33, v5, {W}, s33 offen\nbuffer_store_dword v32, v5, {W}, s33 offen offset:256\n{l}:")
    aux_rx(g)


def pf_item(g, wait=False):
    a = g.a
    a(f"s_mul_hi_u32 s47, s68, {(2**32+16)//17}\ns_mul_i32 s33, s47, 17\ns_sub_u32 s33, s68, s33")
    a("s_lshl_b32 s50, s47, 1\ns_add_u32 s50, s50, s87\ns_lshl_b32 s50, s50, 5")
    a("s_mul_i32 s51, s32, 7\ns_add_u32 s51, s51, s33\ns_sub_u32 s51, s51, 10")
    a("s_sub_u32 s35, s33, 4\ns_lshr_b32 s54, s35, 1\ns_lshl_b32 s54, s54, 2\ns_add_u32 s54, s54, s32\ns_lshl_b32 s54, s54, 1\ns_and_b32 s35, s35, 1\ns_add_u32 s35, s35, s54")
    a(f"s_movk_i32 s55, 7168\ns_mov_b32 s54, {hex(1024*3584*2)}\ns_cmp_lt_u32 s33, 10\ns_cselect_b32 s51, s35, s51\ns_cselect_b32 s35, 6144, s55\ns_cselect_b32 s54, {hex(1024*3072*2)}, s54")
    a("s_mul_i32 s50, s50, s35\ns_lshl_b32 s51, s51, 8\ns_add_u32 s50, s50, s51")
    a(f"s_lshl_b32 s51, s{S_XCD}, 2\ns_add_u32 s51, s51, s33\ns_lshl_b32 s51, s51, 17\ns_lshl_b32 s47, s47, 7\ns_add_u32 s47, s47, s51")
    a(f"s_cmp_lt_u32 s33, 4\ns_cselect_b32 s47, s47, s50\ns_cselect_b32 s35, 4096, s35\ns_cselect_b32 s50, 11, 7\ns_cselect_b32 s54, {hex(2048*1024*2)}, s54\ns_mov_b32 s55, 0x20000")
    a("v_lshrrev_b32 v10, 1, v0\nv_and_b32 v11, 1, v0\nv_mul_lo_u32 v10, v10, s35\nv_lshl_add_u32 v10, v11, s50, v10")
    if wait: a("s_waitcnt lgkmcnt(0)")
    a("s_cmp_lt_u32 s33, 10\ns_cselect_b64 s[52:53], s[6:7], s[12:13]\ns_cmp_lt_u32 s33, 4\ns_cselect_b64 s[52:53], s[4:5], s[52:53]")
    a("buffer_load_dword v9, v10, s[52:55], s47 offen")


def helper(g):
    a = g.a
    a("L_helper:")
    HW = 45
    def bars(n):
        for _ in range(n): a("s_barrier")
    if g.o.get('hprio'): a(f"s_setprio {g.o['hprio']}")
    a(f"s_sub_u32 s{HW}, s{S_WAVE}, 6")
    a("v_lshlrev_b32 v4, 4, v0\nv_lshlrev_b32 v5, 2, v0\nv_mov_b32 v6, 0\nv_mov_b32 v7, 1\nv_lshlrev_b32 v8, 7, v0")
    a(f"s_getpc_b64 s[96:97]\nL_pc:\ns_sub_u32 s96, s96, L_pc-{NAME}\ns_subb_u32 s97, s97, 0")
    a(f"s_mov_b32 s98, L_codeend-{NAME}\ns_mov_b32 s99, 0x20000")
    a(f"s_lshl_b32 s100, s30, 1\ns_add_u32 s100, s100, s{HW}\ns_lshl_b32 s100, s100, 11")
    def codepf():
        a("s_mov_b64 exec, 0xffff\nbuffer_load_dword v9, v8, s[96:99], s100 offen\ns_mov_b64 exec, -1")
    codepf()
    a(f"s_lshl_b32 s46, s32, 3\ns_add_u32 s46, s46, s{S_CB}\ns_lshl_b32 s47, s{S_MB8}, 5\ns_add_u32 s46, s46, s47")
    a("s_waitcnt lgkmcnt(0)")
    srd(g, SRD_WS, 26, 0x10000000)
    srd(g, 28, 4, 2048 * 1024 * 2)
    srd(g, 92, 24, 256)
    for r in range(12, 16): a(f"v_mov_b32 v{r}, -1")
    a(f"s_mov_b32 s33, 0x10000000\ns_lshl_b32 s88, s{S_PAIR}, 3\ns_add_u32 s88, s88, s{S_MB8}\ns_mul_i32 s88, s88, 9216\ns_add_u32 s88, s88, {WS_KVP}")
    a(f"s_mul_i32 s89, s{S_PAIR}, 6144\ns_lshl_b32 s47, s{S_MB8}, 10\ns_add_u32 s89, s89, s47\ns_add_u32 s89, s89, {WS_KVF}")
    a(f"s_cmp_ge_u32 s{S_MB8}, 6\ns_cselect_b32 s89, s33, s89\ns_cmp_ge_u32 s{S_C}, 2\ns_cselect_b32 s88, s33, s88\ns_cselect_b32 s89, s33, s89")
    def init0(k):
        if k == 0:
            for r in range(16, 20): a(f"v_mov_b32 v{r}, 0")
            a(f"s_lshl_b32 s47, s2, 11\ns_add_u32 s47, s47, {WS_FLAG}")
            a(f"buffer_store_dwordx4 v[16:19], v4, {W}, s47 offen sc1\nbuffer_store_dwordx4 v[16:19], v4, {W}, s47 offen offset:1024 sc1")
        elif k == 1:
            a(f"buffer_store_dwordx4 v[12:15], v4, {W}, s89 offen sc1")
            a(f"s_mov_b64 exec, 0xff\ns_lshl_b32 s47, s46, 7\ns_add_u32 s47, s47, {WS_FLAG+F_G}")
            a(f"buffer_store_dwordx4 v[12:15], v4, {W}, s47 offen sc1\ns_mov_b64 exec, -1")
        else:
            a(f"buffer_store_dwordx4 v[12:15], v4, {W}, s88 offen sc1\ns_add_u32 s88, s88, 1024")
    issd = lambda: a("buffer_load_dword v23, off, s[92:95], 0 sc1")
    def init3():
        ok = g.lab("rdy")
        a(f"v_cmp_eq_u32 vcc, 0, v23\ns_cbranch_vccz {ok}")
        issd(); poll_check(g, issd, 23, 1, 0, "eq")
        a(f"{ok}:\nv_and_b32 v23, 0x2000, v23\nv_mov_b32 v22, {LDS_SEL}\nds_write_b32 v22, v23\ns_lshr_b32 s47, s2, 2\ns_lshl_b32 s47, s47, 7\ns_and_b32 s33, s2, 3\ns_lshl_b32 s33, s33, 2\ns_add_u32 s47, s47, s33\ns_add_u32 s47, s47, {WS_FLAG+F_RDY}")
        a(flagops(7, 47) + "\ns_waitcnt lgkmcnt(0)")
    lz = g.lab("z")
    a(f"s_or_b32 s33, s2, s{HW}\ns_cbranch_scc1 {lz}")
    for r in range(16, 20): a(f"v_mov_b32 v{r}, 0")
    a(f"s_mov_b32 s47, {WS_FLAG+F_RDY}\ns_mov_b32 s33, {WS_FLAG+F_RDY+4096}")
    for k in range(8): a(f"buffer_store_dwordx4 v[16:19], v4, {W}, s{33 if k>>2 else 47} offen offset:{(k&3)*1024} sc1")
    a(f"s_mov_b32 s47, {WS_PROBE}\ns_mov_b32 s33, {WS_PROBE+8192}")
    a(f"buffer_store_dwordx4 v[16:19], v4, {W}, s47 offen sc1\nbuffer_store_dwordx4 v[16:19], v4, {W}, s33 offen sc1\n{lz}:")
    a("s_mov_b32 s90, -1\ns_mov_b32 s91, -1")
    def wg0(f):
        l = g.lab("w0")
        a(f"s_cmp_lg_u32 s2, 0\ns_cbranch_scc1 {l}"); f(); a(f"{l}:")
    def probe(k):
        a(f"s_mov_b32 s47, {WS_PROBE+(k&1)*8192+(k>>1)*128}\ns_memtime s[48:49]\ns_waitcnt lgkmcnt(0)\ns_load_dword s33, s[26:27], s47\ns_waitcnt lgkmcnt(0)")
        a(f"s_memtime s[50:51]\ns_waitcnt lgkmcnt(0)\ns_sub_u32 s33, s50, s48\ns_min_u32 s{90+(k&1)}, s{90+(k&1)}, s33")
    def announce():
        a("s_cmp_lt_u32 s91, s90\ns_cselect_b32 s33, 0x2001, 1\nv_mov_b32 v23, s33\ns_mov_b64 exec, 1\nbuffer_store_dword v23, off, s[92:95], 0 sc1")
        if g.o.get('showp'): a("v_mov_b32 v22, s90\nbuffer_store_dword v22, off, s[92:95], 0 offset:4\nv_mov_b32 v21, s91\nbuffer_store_dword v21, off, s[92:95], 0 offset:8")
        a("s_mov_b64 exec, -1")
    srd(g, 60, 14, 3584 * 1024 * 2)
    srd(g, 64, 8, 1024 * 1024 * 2)
    a(f"s_cmp_lg_u32 s{HW}, 0\ns_cbranch_scc1 L_h_one")
    iss0 = lambda: a(f"s_mov_b32 s47, {WS_FLAG+F_RDY}\nbuffer_load_dwordx4 v[16:19], v8, {W}, s47 offen sc1")
    for t in range(0, 29):
        a("s_barrier")
        if t == 1: a("s_waitcnt vmcnt(0)")
        if 3 <= t < 14: a(f"s_sleep {g.o['hdel']}"); init0(t - 3)
        if 2 <= t < 12 and g.o['pol'] is None: wg0(lambda: probe(t - 2))
        if t == 11: wg0(announce)
        if t == 14: issd()
        if t == 16: a("s_waitcnt vmcnt(0)"); init3()
        if t == 22: iss0()
        if t == 24: poll_check(g, iss0, 14, 64, 1, "ne", lambda: a("v_and_b32 v14, v16, v17\nv_and_b32 v15, v18, v19\nv_and_b32 v14, v14, v15"))
        if t == g.o.get('cpf1', 99): a("s_mov_b64 exec, 0xffffffff\nbuffer_load_dword v9, v8, s[96:99], s100 offen\ns_mov_b64 exec, -1")
    bars(2)
    aux_sel(g)
    lane_h(g, 11, 12, 52)
    a(f"s_add_u32 s54, s52, {F_H2}")
    a("v_and_b32 v12, 1, v0\nv_lshlrev_b32 v12, 16, v12\nv_bfe_u32 v16, v0, 1, 1\nv_lshl_add_u32 v12, v16, 18, v12")
    a(f"v_bfe_u32 v16, v0, 2, 2\nv_lshl_add_u32 v12, v16, 11, v12\ns_andn2_b32 s56, s52, 0x1800\ns_add_u32 s56, s56, {F_X + (2<<16)}")
    a(f"s_lshl_b32 s57, s{S_MB8}, 12\ns_add_u32 s57, s57, {WS_FLAG+F_G}")
    a(f"v_lshrrev_b32 v19, 1, v0\nv_and_b32 v16, 1, v0\nv_lshlrev_b32 v16, 4, v16\nv_lshl_add_u32 v19, v19, 7, v16\nv_add_u32 v13, {LDS_G}, v4")
    bars(1)
    bars(1)
    def pol(soff, areg):
        m = "0xffff" if areg == 12 else "0xffffffff"
        return lambda: a(f"s_mov_b64 exec, {m}\nbuffer_load_dword v14, v{areg}, {W}, s{soff} offen sc1\ns_mov_b64 exec, -1")
    issg = lambda: a(f"buffer_load_dwordx4 v[24:27], v19, {W}, s57 offen sc1")
    assert g.o['k1'] >= 6
    def role(kv, f):
        l = g.lab("ro")
        a(f"s_cmp_ge_u32 s{S_C}, 2\ns_cbranch_scc{1 if kv else 0} {l}"); f(); a(f"{l}:")
    role(True, lambda: (a(f"s_sleep {g.o.get('gsl', 16)}"), pol(52, 11)(), poll_check(g, pol(52, 11), 14, 32, 1)))
    SK = g.o['sk']
    assert not set(SK) & {0, 1, 6, g.o['k1'], 12, 13}
    cnt = lambda n: len([x for x in range(n) if x not in SK])
    for n in range(12):
        if n not in SK: a("s_barrier")
        if n == g.o.get('cpf2'): a("s_mov_b64 exec, 0xffffffff\nbuffer_load_dword v9, v8, s[96:99], s100 offen\ns_mov_b64 exec, -1")
        if n == 0: role(False, pol(52, 11))
        if n == 3: issg()
        if n == 4:
            poll_check(g, issg, 14, 64, -1, "eq", lambda: a("v_max3_u32 v14, v24, v25, v26\nv_max_u32 v14, v14, v27"))
            a("ds_write_b128 v13, v[24:27]"); pol(54, 11)()
        if n == 5: poll_check(g, pol(54, 11), 14, 32, 1); a("s_waitcnt lgkmcnt(0)")
        q_call(g, n)
        if n == 0: role(False, lambda: poll_check(g, pol(52, 11), 14, 32, 1))
        if n == g.o.get('fop', 11):
            if g.o.get('fosl'): a(f"s_sleep {g.o['fosl']}")
            pol(56, 12)()
        if n == 11: poll_check(g, pol(56, 12), 14, 16, 1)
    a("s_barrier\ns_barrier\ns_branch L_rx")
    a("L_h_one:")
    tb = sum(x << (4 * k) for k, x in enumerate(ORD))
    a(f"s_mov_b32 s34, 0\ns_lshr_b32 s69, s2, 3\ns_mov_b32 s48, {hex(tb & 0xffffffff)}\ns_mov_b32 s49, {hex(tb >> 32)}")
    a(f"s_lshr_b32 s33, s68, 5\ns_lshr_b32 s90, {hex(g.o.get('wmask', 0x1f0))}, s33")
    if g.o.get('nopf1'): a("s_mov_b32 s68, 0x10000")
    def w2item():
        l, lo = g.lab("pw"), g.lab("pw")
        a(f"s_cmp_ge_u32 s69, 112\ns_cbranch_scc1 {lo}\ns_lshr_b32 s47, s69, 3\ns_lshl_b32 s47, s47, 2\ns_lshr_b64 s[50:51], s[48:49], s47\ns_and_b32 s50, s50, 15")
        a(f"s_mul_i32 s47, s32, 14\ns_add_u32 s47, s47, s50\ns_lshl_b32 s47, s47, 1\ns_add_u32 s47, s47, s87\ns_lshl_b32 s47, s47, 3\ns_and_b32 s50, s69, 7\ns_add_u32 s47, s47, s50\ns_lshl_b32 s47, s47, 13")
        a(f"buffer_load_dword v9, v8, s[60:63], s47 offen\ns_branch {l}")
        a(f"{lo}:\ns_sub_u32 s47, s69, 112\ns_lshl_b32 s47, s47, 3\ns_add_u32 s47, s47, s{S_XCD}\ns_lshl_b32 s47, s47, 13\nbuffer_load_dword v9, v8, s[64:67], s47 offen\n{l}:\ns_add_u32 s69, s69, 32")
    l0, l1, l2, lx, lq = [g.lab("pf") for _ in range(5)]
    if g.o.get('skip0'): a(f"s_branch {l1}")
    a(f"{l0}:\ns_add_u32 s47, s34, {g.o['lead']}\ns_mul_i32 s47, s47, 17\ns_lshr_b32 s47, s47, 1\ns_min_u32 s47, s47, {16*17}\ns_cmp_ge_u32 s68, s47\ns_cbranch_scc1 {l1}")
    pf_item(g)
    a("s_add_u32 s68, s68, 32")
    a(f"{l2}:\ns_lshr_b32 s90, s90, 1\ns_bitcmp1_b32 s90, 0\ns_cbranch_scc0 {l0}")
    w2item()
    a(f"s_branch {l0}\n{l1}:")
    if g.o.get('wrate'):
        l3 = g.lab("pf")
        a(f"s_sub_u32 s47, s34, {g.o.get('w0', 2)}\ns_cbranch_scc1 {l3}\ns_mul_i32 s47, s47, {g.o['wrate']}\ns_min_u32 s47, s47, 144\ns_cmp_ge_u32 s69, s47\ns_cbranch_scc1 {l3}")
        w2item()
        a(f"{l3}:")
    a(f"s_barrier\ns_sleep {g.o['hdel']}\ns_add_u32 s34, s34, 1\ns_cmp_lt_u32 s34, 27\ns_cbranch_scc1 {l0}")
    srd(g, 52, 16, 2048)
    gl = ["s_lshl_b32 s47, s46, 14\n" + "\n".join(f"buffer_load_dwordx4 {vr(24+4*hf)}, v4, s[52:55], 0 offen offset:{hf*1024}" for hf in range(2))]
    for r in range(8):
        gl.append("\n".join(f"buffer_load_dwordx4 {vr(40+8*r+4*hf)}, v4, s[28:31], s47 offen offset:{(r&1)*2048+hf*1024}" for hf in range(2)) + ("\ns_add_u32 s47, s47, 4096" if r & 1 else ""))
    for t in range(26, 31):
        if t > 26: a("s_barrier")
        n = g.o['gsch'][t - 26]
        if n and t in (27, 28): a(f"s_sleep {g.o['hdel']}")
        for x in gl[:n]: a(x)
        gl = gl[n:]
    assert not gl
    aux_sel(g)
    for r in range(32, 40): a(f"v_mov_b32 v{r}, 0")
    bars(2)
    a("s_waitcnt vmcnt(0)")
    for k in range(8):
        for r in range(8): a(f"v_dot2_f32_bf16 v{32+r}, v{40+8*r+k}, v{24+k}, v{32+r}")
    a("s_barrier\ns_nop 0")
    for pat in ["quad_perm:[1,0,3,2] row_mask:0xf", "quad_perm:[2,3,0,1] row_mask:0xf", "row_half_mirror row_mask:0xf", "row_mirror row_mask:0xf",
                "row_bcast:15 row_mask:0xa", "row_bcast:31 row_mask:0xc"]:
        for r in range(32, 40): a(f"v_add_f32_dpp v{r}, v{r}, v{r} {pat} bank_mask:0xf")
    for r in range(8): a(f"v_readlane_b32 s{52+r}, v{32+r}, 63")
    a("s_nop 1")
    for r in range(8): a(f"v_writelane_b32 v16, s{52+r}, {r}")
    a("s_nop 0\nv_min_f32 v16, 0x41f00000, v16\nv_mul_f32 v16, 0x3fb8aa3b, v16\nv_exp_f32 v16, v16")
    a(f"s_lshl_b32 s47, s46, 7\ns_add_u32 s47, s47, {WS_FLAG+F_G}\ns_mov_b64 exec, 0xff")
    a(f"buffer_store_dword v16, v5, {W}, s47 offen sc1\ns_mov_b64 exec, -1")
    q_call(g, 0)
    a(f"s_mov_b32 s34, 1\ns_cmp_ge_u32 s{S_C}, 2\ns_cbranch_scc1 L_h1_q\ns_cmp_ge_u32 s{S_MB8}, 6\ns_cbranch_scc1 L_h1_end")
    H1 = g.o['h1']
    def retry(issue, mx, first, last, work=False):
        l0, l1 = g.lab("try"), g.lab("try")
        for n in range(first):
            if n and n not in SK: a("s_barrier")
            if work and n: q_call(g, n)
        first, last = cnt(first), cnt(last)
        if g.o.get('rsame', 1) & (1 if work else 2):
            l2 = g.lab("try")
            a(f"s_setprio 2\ns_mov_b32 s34, {first}\n{l0}:")
            issue(); a("s_waitcnt vmcnt(0)"); mx()
            a(f"v_cmp_eq_u32 vcc, -1, v14\ns_cbranch_vccz {l1}")
            a(f"s_cmp_ge_u32 s34, {last}\ns_cbranch_scc1 {l2}\ns_barrier\ns_add_u32 s34, s34, 1\ns_branch {l0}\n{l2}:")
        else:
            a(f"s_setprio 2\ns_mov_b32 s34, {first}\n{l0}:")
            if g.o.get('hsl'): a(f"s_sleep {g.o['hsl']}")
            issue()
            a("s_barrier\ns_add_u32 s34, s34, 1\ns_waitcnt vmcnt(0)")
            mx()
            a(f"v_cmp_eq_u32 vcc, -1, v14\ns_nop 1\ns_cmp_lg_u64 vcc, 0\ns_cbranch_scc0 {l1}")
            a(f"s_cmp_le_u32 s34, {last-1}\ns_cbranch_scc1 {l0}")
        issue(); poll_check(g, issue, 14, 64, -1, "eq", mx)
        a(f"{l1}:")
    def upto(n):
        l0, l1 = g.lab("up"), g.lab("up")
        a(f"{l0}:\ns_cmp_ge_u32 s34, {cnt(n)}\ns_cbranch_scc1 {l1}\ns_barrier\ns_add_u32 s34, s34, 1\ns_branch {l0}\n{l1}:")
    def vmax(lo, hi):
        a(f"v_max_u32 v14, v{lo}, v{lo+1}")
        for r in range(lo + 2, hi, 2): a(f"v_max3_u32 v14, v14, v{r}, v{r+1}")
    a(f"s_cmp_ge_u32 s{S_MB8}, 3\ns_cselect_b32 s55, 1, 0\ns_sub_u32 s56, s{S_MB8}, s55\ns_lshl_b32 s56, s56, 11\nv_add_u32 v10, s56, v4\nv_add_u32 v11, 1024, v10")
    a(f"s_cmp_eq_u32 s{S_MB8}, 2\ns_cbranch_scc1 L_h1_z\ns_cmp_eq_u32 s{S_MB8}, 5\ns_cbranch_scc0 L_h1_nz\nL_h1_z:")
    a("s_lshl_b32 s55, s55, 5\ns_add_u32 s55, s55, 8192\nv_and_b32 v10, 0x300, v4\nv_add_u32 v10, s55, v10\nv_add_u32 v11, 16, v10\nL_h1_nz:")
    def kvp_issue():
        a(f"s_mul_i32 s47, s{S_PAIR}, {8*9216}\ns_add_u32 s47, s47, {WS_KVP}")
        for m in range(8):
            for dt in range(2): a(f"buffer_load_dwordx4 {vr(32+(m*2+dt)*4)}, v{10+dt}, {W}, s47 offen sc1")
            if m < 7: a("s_add_u32 s47, s47, 9216")
    retry(kvp_issue, lambda: vmax(32, 96), H1 + 1, 9)
    g.stamp(5)
    if g.o['prof']: a("s_mov_b32 s88, s34")
    for st in (32, 16, 8):
        for r in range(st): a(f"v_add_f32 v{32+r}, v{32+r}, v{32+st+r}")
    for r in range(4): a(f"v_cvt_pk_bf16_f32 v{32+r}, v{32+2*r}, v{33+2*r}")
    a(f"s_mul_i32 s47, s{S_PAIR}, 6144\ns_lshl_b32 s46, s{S_MB8}, 10\ns_add_u32 s47, s47, s46\ns_add_u32 s47, s47, {WS_KVF}")
    a(f"buffer_store_dwordx4 v[32:35], v4, {W}, s47 offen sc1")
    a("L_h1_end:")
    upto(14)
    a("s_branch L_rx")
    a("L_h1_q:")
    K1 = g.o['k1']
    a(f"s_mul_i32 s55, s{S_PAIR}, 6144\ns_add_u32 s55, s55, {WS_KVF}\ns_add_u32 s56, s55, 4096\nv_add_u32 v12, {P2END}, v4")
    def kvf_issue():
        for f in range(6): a(f"buffer_load_dwordx4 {vr(32+4*f)}, v4, {W}, s{55+(f>>2)} offen offset:{(f&3)*1024} sc1")
    retry(kvf_issue, lambda: vmax(32, 56), g.o['k0'], K1, True)
    g.stamp(5)
    if g.o['prof']: a("s_mov_b32 s88, s34")
    for f in range(6): a(f"ds_write_b128 v12, {vr(32+4*f)} offset:{f*1024}")
    upto(K1)
    a("s_waitcnt lgkmcnt(0)")
    for n in range(K1, K1 + g.o['noc'] + 1):
        if n not in SK: a("s_barrier")
        q_call(g, n)
    a(f"s_mov_b32 s34, {cnt(K1+g.o['noc']+1)}\ns_branch L_h1_end")
    q_chunks(g)


HEADER = open("gated_mix__linear_attn_block__dense_activation_relu__prompt.s.ref").read().split("; Override")[0] \
    if __name__ == "__main__" else ""


def build(**opt):
    g = G(**opt)
    VM.skip = g.o.get('skip', ())
    HF[0] = g.o.get('hflag', 'sc1'); HF[1] = g.o.get('lflag', 'sc1')
    g.L.append(f"; @launch grid=(256,1,1) block=(512,1,1) lds={LDS_TOTAL}")
    g.a(f'.amdgcn_target "amdgcn-amd-amdhsa--gfx950"\n.text\n.globl {NAME}\n.p2align 8\n.type {NAME},@function\n{NAME}:')
    prologue(g)
    loader(g)
    helper(g)
    compute(g)
    g.a("L_exit:\ns_endpgm\nL_codeend:")
    g.L.append(f""".section .rodata,"a"
.p2align 6
.amdhsa_kernel {NAME}
  .amdhsa_next_free_vgpr 256
  .amdhsa_next_free_sgpr 102
  .amdhsa_accum_offset 256
  .amdhsa_group_segment_fixed_size 0
  .amdhsa_kernarg_size 80
  .amdhsa_user_sgpr_count 2
  .amdhsa_user_sgpr_kernarg_segment_ptr 1
  .amdhsa_system_sgpr_workgroup_id_x 1
.end_amdhsa_kernel""")
    return g.text()


if __name__ == "__main__":
    out = sys.argv[1]
    opt = {}
    for kv in sys.argv[2:]:
        k, v = kv.split("=")
        opt[k] = eval(v)
    open(out, "w").write(HEADER + build(**opt))
```

```python
import sys

NAME = "gated_mix__linear_attn_block__dense_activation_relu__prompt_kernel"

OREG = 4 << 23
MT = lambda i: ((i & 1) << 12) | ((i >> 1) << 14)
WS_PART = 0x3000000
WS_KVP = 0x2800000
WS_KVF = 0x2980000
WS_FLAG = 0x2C00000
F_H1, F_H2, F_X, F_P = 0, 512, 1024, 1536
F_G = 0x80000
F_RDY = 0x90000
WS_PROF = 0x2B00000
WS_PROBE = 0x2CC0000
LDS_SEL = 163832
WS_W2C = 0x2800000
ORD1 = [0, 1, 2, 4, 7, 8, 9, 11]
ORD2 = [3, 5, 10, 12, 6, 13]

UNIT = 4224; BLK = 1056
XSLOT = 8 * UNIT
XRING = 3 * XSLOT
WSLOT = 3 * UNIT + 1024
WBASE = XRING
LDS_G = 162816
P2SLOT = 4 * UNIT
NSL = 8
P2END = NSL * P2SLOT
LDS_TOTAL = 163840

SPIN = 100000


class G:
    def __init__(self, **opt):
        self.L = []
        self.o = dict(prof=False, krot=False, pfw=True, pf1=True, lead=6, pfs0=0, hdel=0, pfw0=2, pfwr=54, early2=0, late=(4, 4, 4), sp0=22, spn=2, swin=4, gsch=(5, 4, 0, 0, 0), fpos=50, s1sp=12, tdens=2, st2n=0, st2sp=14, ju=5, pch=(1, 2, 2, 2, 1), pf0=0, wx=0, xfirst=2, prio=0, pol=None, nearf=1, sk=(), cbx=2, aspread=0, wpace=0, kdens=4, hsl=0, gsl=0, noc=2, qprio=2, k1=7, k0=6, rsp=6, h1=1, xf=(10, 14, 16), r1=99, dld=(11, 12, 13, 14, 15, 16, 17, 18), psleep=2, cpf1=24, cpf2=99, odens=3, b16=True, ddens=3, psp=30, d1=7, d2=10, d2b=12, d3=16)
        self.o.update(opt)
        self.uid = 0
        self.info = {}
        self.st = {'since': 0}

    def a(self, s):
        for ln in s.split("\n"):
            ln = ln.strip()
            if ln == "s_sleep 0": continue
            if ln:
                self.L.append(ln if ln.endswith(":") or ln.startswith(".") else "    " + ln)

    def lab(self, p):
        self.uid += 1
        return f"L_{p}_{self.uid}"

    def stamp(self, n):
        if self.o['prof'] == 'min' and n not in (0, 8): return
        if self.o['prof']:
            self.a(f"{'s_memtime' if self.o['prof']=='cyc' else 's_memrealtime'} s[{70+2*n}:{71+2*n}]")

    def text(self):
        j = self.o.get('jitter')
        if j:
            import random
            rnd = random.Random(j[0]); o = []
            for ln in self.L:
                o.append(ln)
                t = ln.strip()
                if (t == "s_barrier" or t.startswith("s_waitcnt vmcnt")) and rnd.random() < j[1]:
                    w = rnd.randrange(8)
                    src = "s3" if rnd.random() < 0.7 else "s44"
                    o.append(f"    s_cselect_b32 s101, 1, 0\n    s_cmp_lg_u32 {src}, {w}\n    s_cbranch_scc1 1\n    s_sleep {rnd.randrange(1, j[2])}\n    s_cmp_lg_u32 s101, 0")
            return "\n".join(o) + "\n"
        return "\n".join(self.L) + "\n"


class VM:
    def __init__(self, a, init=()):
        self.a = a; self.q = list(init)
    skip = ()
    def op(self, text, tag):
        if (tag[0] if isinstance(tag, tuple) else tag) in VM.skip: return
        self.a(text); self.q.append(tag)
        assert len(self.q) <= 63, "vmcnt overflow"
    def mark(self, tag, n):
        self.q += [tag] * n
        assert len(self.q) <= 63, "vmcnt overflow"
    def wait(self, *tags):
        k = max([i for i, t in enumerate(self.q) if t in tags], default=-1)
        if k >= 0:
            self.a(f"s_waitcnt vmcnt({len(self.q)-1-k})"); self.q = self.q[k + 1:]


def vr(b, n=4):
    return f"v[{b}:{b+n-1}]"


def mfma(d, a, b, c=None):
    return f"v_mfma_f32_16x16x32_bf16 {vr(d)}, {vr(a)}, {vr(b)}, {vr(d) if c is None else c}"


S_WAVE, S_MB8, S_QD, S_C, S_PAIR, S_RH, S_CB, S_KH, S_SEL, S_XCD = 3, 36, 37, 38, 39, 40, 41, 42, 43, 44
SRD_WS = 20


def srd(g, d, base, nbytes):
    g.a(f"s_mov_b32 s{d}, s{base}\ns_mov_b32 s{d+1}, s{base+1}\ns_mov_b32 s{d+2}, {hex(nbytes)}\ns_mov_b32 s{d+3}, 0x20000")


def prof_dump(g, wave, row):
    if not g.o['prof'] or g.o.get('probe') is not None or (row and (g.o['prof'] == 'min' or g.o.get('trace'))): return
    a = g.a
    l = g.lab("pd")
    a(f"s_waitcnt lgkmcnt(0)\ns_cmp_lg_u32 s{S_WAVE}, {wave}\ns_cbranch_scc1 {l}")
    a(f"s_lshl_b32 s33, s2, 6\ns_add_u32 s33, s33, {WS_PROF + row*16384}\nv_mov_b32 v5, 0")
    for n in range(16):
        a(f"v_mov_b32 v6, s{70+2*n}\nbuffer_store_dword v6, v5, s[{SRD_WS}:{SRD_WS+3}], s33 offen offset:{4*n}\ns_nop 1")
    a(f"{l}:")


def prologue(g):
    a = g.a
    a("s_cmp_ge_u32 s2, 256\ns_cbranch_scc1 L_exit")
    g.stamp(0)
    a("s_load_dwordx16 s[4:19], s[0:1], 0")
    a(f"s_getpc_b64 s[96:97]\nL_pc:\ns_mov_b32 s98, L_codeend-L_pc\ns_mov_b32 s99, 0x20000\ns_lshr_b32 s30, s2, 3\ns_lshl_b32 s100, s30, 11\nv_lshlrev_b32 v1, 2, v0")
    if g.o.get('cpf0', 1): a("buffer_load_dword v47, v1, s[96:99], s100 offen")
    a("s_load_dwordx4 s[24:27], s[0:1], 64")
    a("v_lshrrev_b32 v1, 6, v0\nv_and_b32 v0, 63, v0")
    a(f"s_and_b32 s{S_XCD}, s2, 7")
    a(f"v_readfirstlane_b32 s{S_WAVE}, v1")
    a(f"s_lshr_b32 s31, s{S_XCD}, 2\ns_and_b32 s32, s{S_XCD}, 3")
    if g.o.get('wx'): a(f"s_xor_b32 s{S_WAVE}, s{S_WAVE}, 4")
    a(f"s_and_b32 s33, s30, 3\ns_lshl_b32 s{S_MB8}, s31, 2\ns_add_u32 s{S_MB8}, s{S_MB8}, s33")
    a("s_lshr_b32 s33, s30, 2")
    a(f"s_lshr_b32 s34, s33, 2\ns_lshl_b32 s{S_QD}, s32, 1\ns_add_u32 s{S_QD}, s{S_QD}, s34")
    a(f"s_and_b32 s{S_C}, s33, 3")
    a(f"s_and_b32 s34, s33, 1\ns_lshl_b32 s{S_PAIR}, s{S_QD}, 1\ns_add_u32 s{S_PAIR}, s{S_PAIR}, s34")
    a(f"s_and_b32 s{S_RH}, s32, 1")
    a(f"s_xor_b32 s{S_CB}, s33, {g.o['cbx']}")
    a(f"s_lshr_b32 s{S_KH}, s32, 1")
    if g.o['pol'] == 'mix': a(f"s_lshl_b32 s{S_SEL}, s31, 13")
    else: a(f"s_xor_b32 s34, s31, s{S_MB8}\ns_xor_b32 s34, s34, {g.o['pol'] or 0}\ns_and_b32 s34, s34, 1\ns_lshl_b32 s{S_SEL}, s34, 13")
    a(f"s_cmp_lt_u32 s{S_WAVE}, 4\ns_cbranch_scc1 L_compute")
    a(f"s_cmp_lt_u32 s{S_WAVE}, 6\ns_cbranch_scc1 L_loader")
    a("s_mov_b32 s68, s30\ns_mov_b32 s87, s31")
    if g.o.get('pf0'):
        a(f"s_cmp_eq_u32 s{S_WAVE}, 6\ns_cbranch_scc1 L_helper\ns_add_u32 s68, s68, {g.o.get('pf0off', 0)}")
        pf_item(g, True)
        a("s_add_u32 s68, s68, 32")
    a("s_branch L_helper\nL_loader:")


W = f"s[{SRD_WS}:{SRD_WS+3}]"


def lane_goodcol(g, d, t):
    g.a(f"v_lshrrev_b32 v{d}, 4, v0\nv_and_b32 v{t}, 15, v0\nv_lshlrev_b32 v{t}, 4, v{t}\nv_lshl_add_u32 v{d}, v{d}, 9, v{t}\nv_or_b32 v{d}, s{S_SEL}, v{d}")


def inbox(so, t, w):
    return (f"s_lshr_b32 s{so}, s2, 6\ns_lshl_b32 s{so}, s{so}, 2\ns_bfe_u32 s{t}, s2, 0x20003\ns_add_u32 s{so}, s{so}, s{t}\ns_lshl_b32 s{so}, s{so}, 1\n"
            f"s_bfe_u32 s{t}, s2, 0x10005\ns_add_u32 s{so}, s{so}, s{t}\ns_lshl_b32 s{so}, s{so}, 2\ns_add_u32 s{so}, s{so}, s32\ns_lshl_b32 s{so}, s{so}, 4\n"
            f"s_add_u32 s{so}, s{so}, s{w}\ns_lshl_b32 s{so}, s{so}, 14\n")


def lane_h(g, d, t, so):
    g.a(f"v_bfe_u32 v{d}, v0, 2, 3\nv_and_b32 v{t}, 3, v0\nv_lshlrev_b32 v{t}, 7, v{t}\nv_lshl_add_u32 v{d}, v{d}, 16, v{t}")
    g.a(f"s_and_b32 s{so}, s2, 31\ns_lshl_b32 s{so}, s{so}, 11\ns_add_u32 s{so}, s{so}, {WS_FLAG}\ns_xor_b32 s{so}, s{so}, s79")


def poll_check(g, issue, reg, nl, val, cmp="ne", pre=None):
    a = g.a
    l0, l1 = g.lab("poll"), g.lab("pollok")
    a(f"s_mov_b32 s35, {SPIN}\n{l0}:\ns_waitcnt vmcnt(0)")
    if pre: pre()
    a(f"v_cmp_{cmp}_u32 vcc, {val}, v{reg}\ns_nop 1")
    if nl == 64: a("s_cmp_lg_u64 vcc, 0")
    else: a(f"s_and_b32 s33, vcc_lo, {hex((1<<nl)-1)}")
    a(f"s_cbranch_scc0 {l1}")
    a(f"s_sub_u32 s35, s35, 1\ns_cbranch_scc1 {l1}")
    if g.o.get('psleep'): a(f"s_sleep {g.o['psleep']}")
    issue()
    a(f"s_branch {l0}\n{l1}:")


def setflags(g, one, *soffs):
    g.a("s_mov_b64 exec, 1")
    for so in soffs: g.a(f"buffer_store_dword v{one}, off, {W}, s{so} sc1")
    g.a("s_mov_b64 exec, -1")


VX, VW, VQ = 1, 2, 3
WB = lambda n: 8 + 4 * (n % 4)
XLO = lambda b, i: 24 + 8 * b + 4 * i
XHI = lambda i: 40 + 4 * (i - 2)
AC = lambda j, i: 48 + (j * 4 + i) * 4


PERM = {True: [8, 9, 10, 11, 0, 1, 2, 3, 12, 4, 5, 6, 7], False: [4, 5, 6, 7, 8, 9, 10, 11, 12, 0, 1, 2, 3]}


def p1_wread(t, j, n):
    slot = (t % 4) * WSLOT
    if j < 12:
        return [f"ds_read_b64_tr_b16 v[{WB(n)+2*w}:{WB(n)+2*w+1}], v{VW} offset:{slot + (j//4)*UNIT + (j%4)*32 + w*256}" for w in range(2)]
    return [f"ds_read_b64_tr_b16 v[{WB(n)+2*w}:{WB(n)+2*w+1}], v{VQ} offset:{slot + w*256}" for w in range(2)]


def p1_xreg(par, i):
    return XLO(par % 2, i) if i < 2 else XHI(i)


def p1_xread(t, i, par, vx=VX):
    return f"ds_read_b128 {vr(p1_xreg(par,i))}, v{vx} offset:{(i>>1)*UNIT + (i&1)*512 + (t%2)*64}"


def pass_order(nt):
    s = [(0, 0), (0, 1), (1, 1), (1, 0), (1, 2), (1, 3), (0, 3), (0, 2)]
    for j in range(2, nt - 2):
        s += [(j, i) for i in ([2, 3, 0, 1] if j % 2 == 0 else [1, 0, 3, 2])]
    u, v = nt - 2, nt - 1
    return s + [(u, 2), (u, 3), (v, 3), (v, 2), (v, 1), (v, 0), (u, 0), (u, 1)]


def p1_mfma(kv, tile, i, wreg, xreg):
    return mfma(AC(tile, i), xreg, wreg) if (kv and tile < 8) else mfma(AC(tile, i), wreg, xreg)


Q0 = [('W', 0, 0), ('W', 0, 0), ('X', 0, 0), ('X', 0, 1), ('W', 0, 1), ('W', 0, 1), ('X', 0, 2), ('X', 0, 3)]


def p1_loop(g, kv):
    a = g.a
    P = PERM[kv]
    L = g.lab("p1")
    seq = []
    for t in range(4):
        s = pass_order(13)
        post = [[] for _ in s]
        rd = lambda j, tt=t: [('W', tt, j, x) for x in p1_wread(tt, P[j], 13 * tt + j)]
        r = rd(2); post[0].append(r[0]); post[1].append(r[1])
        r = rd(3); post[2].append(r[0]); post[3].append(r[1])
        r = rd(4); post[8].append(r[0]); post[9].append(r[1])
        r = rd(5); post[10].append(r[0]); post[11].append(r[1])
        for j in range(3, 10):
            base = 8 + (j - 2) * 4
            r = rd(j + 3); post[base].append(r[0]); post[base + 1].append(r[1])
        b10 = 40
        if t % 2 == 1:
            post[b10 - 2].append(('S', f"s_add_u32 s46, s46, {XSLOT}"))
            post[b10 - 2].append(('S', f"s_cmp_eq_u32 s46, {XRING}"))
            post[b10 - 1].append(('S', f"s_cselect_b32 s47, s48, s49"))
            post[b10 - 1].append(('S', f"s_cselect_b32 s46, 0, s46"))
            post[b10].append(('S', f"v_add_u32 v{VX}, s47, v{VX}"))
        post[b10 + 2].append(('BAR',))
        tn = t + 1
        r0, r1 = rd(0, tn), rd(1, tn)
        post[b10 + 3] += [r0[0], r0[1]]
        post[44] += [('X', tn, 0, p1_xread(tn, 0, tn)), ('X', tn, 1, p1_xread(tn, 1, tn))]
        post[45] += [r1[0]]
        post[46] += [r1[1]]
        post[47] += [('X', tn, 2, p1_xread(tn, 2, tn))]
        post[48] += [('X', tn, 3, p1_xread(tn, 3, tn))]
        if t == 3:
            post[49].append(('S', "s_sub_u32 s45, s45, 1"))
            post[50].append(('S', "s_cmp_lg_u32 s45, 0"))
        for (j, i), p in zip(s, post):
            seq.append(((t, j, i), p))
    for x in p1_wread(0, P[0], 0): a(x)
    a(p1_xread(0, 0, 0)); a(p1_xread(0, 1, 0))
    for x in p1_wread(0, P[1], 1): a(x)
    a(p1_xread(0, 2, 0)); a(p1_xread(0, 3, 0))
    q = list(Q0)
    a(f".p2align 6\n{L}:")
    for (t, j, i), p in seq:
        need = [k for k, e in enumerate(q) if e == ('W', t, j) or e == ('X', t, i)]
        if need:
            k = max(need)
            a(f"s_waitcnt lgkmcnt({len(q)-1-k})")
            q = q[k + 1:]
        a(p1_mfma(kv, P[j], i, WB(13 * t + j), p1_xreg(t, i)))
        for e in p:
            if e[0] == 'S':
                a(e[1])
            elif e[0] == 'BAR':
                a("s_waitcnt lgkmcnt(0)\ns_barrier"); q = []
            else:
                a(e[3]); q.append((e[0], e[1] % 4, e[2]))
    assert q == Q0
    a(f"s_cbranch_scc1 {L}")


def p1_tail(g, kv, extra, extra2, flag):
    a = g.a
    P = PERM[kv]
    auto = g.o['pol'] is None
    if auto: a(f"v_mov_b32 v5, {LDS_SEL}\nds_read_b32 v6, v5")
    a(f"v_add_u32 v5, {(-2*XSLOT) & 0xffffffff}, v{VX}")
    if auto: extra = ["v_xor_b32 v7, v6, v7"] + (["v_readfirstlane_b32 s33, v6"] if g.o['nearf'] else []) + ["v_mov_b32 v6, 1"] + (["s_xor_b32 s59, s59, s33", "s_xor_b32 s60, s60, s33"] if g.o['nearf'] else []) + extra
    passes = [(t, grp) for grp in (P[:4], P[4:9], P[9:]) for t in range(28, 32)]
    M = []; start = []; n0 = 0; last = {}
    reads = []
    for p, (t, tiles) in enumerate(passes):
        start.append(len(M))
        o = pass_order(len(tiles))
        base = len(M)
        for j, tile in enumerate(tiles):
            first = base + min(k for k, e in enumerate(o) if e[0] == j)
            if not (p == 0 and j < 2):
                for x in p1_wread(t, tile, n0 + j):
                    reads.append(dict(key=('W', p, j), text=x, after=last.get(WB(n0 + j), -1), first=first, t=t))
            last[WB(n0 + j)] = base + max(k for k, e in enumerate(o) if e[0] == j)
        for i in range(4):
            first = base + min(k for k, e in enumerate(o) if e[1] == i)
            if p > 0:
                reads.append(dict(key=('X', p, i), text=p1_xread(t, i, p, VX if t < 30 else 5), after=max(last.get(p1_xreg(p, i), -1), first - 14), first=first, t=t))
            last[p1_xreg(p, i)] = base + max(k for k, e in enumerate(o) if e[1] == i)
        for (j, i) in o:
            M.append((p, j, i, p1_mfma(kv, tiles[j], i, WB(n0 + j), p1_xreg(p, i))))
        n0 += len(tiles)
    V1, V2 = start[1] + 3, start[2] + 5
    R1, R2 = start[10] - 3, len(M) - 5
    for r in reads:
        if r['t'] == 30: r['after'] = max(r['after'], V1)
        if r['t'] == 31: r['after'] = max(r['after'], V2)
    reads.sort(key=lambda r: r['first'])
    q = list(Q0) + ([('S', 0, 0)] if auto else []); since = 0; nst2 = 0; held = []; nexts = 0; first = True
    dens = g.o.get('tdens', 3)
    def wait(pred):
        nonlocal q
        need = [k for k, e in enumerate(q) if pred(e)]
        if need:
            a(f"s_waitcnt lgkmcnt({len(q)-1-max(need)})"); q = q[max(need) + 1:]
            return 1
        return 0
    for k, (p, j, i, txt) in enumerate(M):
        assert not [r for r in reads if r['first'] <= k], "read scheduled too late"
        w = wait(lambda e: e == ('W', p, j) or e == ('X', p, i))
        a(txt); since += 1 + w
        used = 0
        if k in (V1, V2): a("s_barrier"); used += 1
        if k in (R1, R2):
            lim = 9 if k == R1 else 11
            assert not [r for r in reads if r['key'][1] <= lim]
            used += 1 + wait(lambda e: e[1] <= lim); a("s_barrier")
        nr = 0
        while used < 2:
            c = [r for r in reads if r['after'] <= k]
            if not c or (nr and c[0]['first'] - k > 9): break
            a(c[0]['text']); q.append(c[0]['key']); reads.remove(c[0]); used += 1; nr += 1
        since += used
        if held and k >= nexts:
            a(held.pop(0)); used += 2; nexts = k + g.o['s1sp']; nst2 = 0
        if k == start[8] + g.o.get('fpos', 10):
            assert not held
            a(f"s_waitcnt vmcnt({nst2})\n" + flag); used += 2
        if k == start[8] + 3:
            assert not extra
            extra = extra2; dens = g.o.get('tdens2', 3); first = False
        if k >= start[4] + 3:
            while used < dens and extra:
                if extra[0] is None: break
                x = extra.pop(0)
                if first and x.startswith("s_add_u32 s56"): sadd = x; continue
                if first and x.startswith("buffer_store"): held.append(sadd + "\n" + x); continue
                a(x); used += 2 if x.startswith("v_exp") else 1
                if x.startswith("buffer_store"): nst2 += 1
    return extra


def h_cvt(d, a0, a1):
    src = [a0, a0 + 2] + ([a1, a1 + 2] if a1 is not None else [])
    return [f"v_cvt_pk_bf16_f32 v{d+r}, v{x}, v{x+1}" for r, x in enumerate(src)] + [f"v_pk_max_i16 v{d+r}, v{d+r}, 0" for r in range(len(src))]


HF = ['sc1', 'sc1']
def h_line_store(j0, soff):
    o = []
    for i in (2, 3, 0, 1):
        o.append(f"s_add_u32 s56, s{soff}, {MT(i)}")
        for p in range(2):
            d = AC(j0 + 2 * p, i)
            o += h_cvt(d, d, AC(j0 + 2 * p + 1, i))
            o.append(f"buffer_store_dwordx4 {vr(d)}, v7, {W}, s56 offen offset:{p*2048} {HF[0]}")
    return o


def phi_regs(regs, tmp, pk=False):
    if pk:
        o = [f"v_pk_mul_f32 v[{tmp+k}:{tmp+k+1}], v[{regs[k]}:{regs[k]+1}], s[50:51] op_sel_hi:[1,0]" for k in range(0, 8, 2)]
        for k, r in enumerate(regs): o += [f"v_exp_f32 v{tmp+k}, v{tmp+k} clamp", f"v_max_f32 v{r}, s51, v{r}"]
        return o + [f"v_pk_add_f32 v[{regs[k]}:{regs[k]+1}], v[{regs[k]}:{regs[k]+1}], v[{tmp+k}:{tmp+k+1}]" for k in range(0, 8, 2)]
    o = [f"v_mul_f32 v{tmp+k}, s50, v{r}" for k, r in enumerate(regs)]
    for k, r in enumerate(regs): o += [f"v_exp_f32 v{tmp+k}, v{tmp+k} clamp", f"v_max_f32 v{r}, s51, v{r}"]
    return o + [f"v_add_f32 v{r}, v{r}, v{tmp+k}" for k, r in enumerate(regs)]


def pack8(d, e):
    return [f"v_cvt_pk_bf16_f32 v{d}, v{d}, v{d+1}", f"v_cvt_pk_bf16_f32 v{d+1}, v{d+2}, v{d+3}",
            f"v_cvt_pk_bf16_f32 v{d+2}, v{e}, v{e+1}", f"v_cvt_pk_bf16_f32 v{d+3}, v{e+2}, v{e+3}"]


def flagops(one, *soffs):
    return "s_mov_b64 exec, 1\n" + "".join(f"buffer_store_dword v{one}, off, {W}, s{so} sc1\n" for so in soffs) + "s_mov_b64 exec, -1"


VA0, VW2, VA1, VWD = 1, 2, 3, 5
ORD = ORD1 + ORD2
AB = lambda u, i: (24, 112, 96, 72)[u % 4] + 4 * i
ACC = lambda j, i: 128 + (j * 4 + i) * 4
JORD = [4, 5, 6, 7, 0, 1, 2, 3]
ND = 8
NA = (16 - ND) // 4
NS = 10 + NA
XA = [AB(2 * NS + k, 0) for k in range(4)]
ADP = [XA[3], XA[3] + 8, ACC(5, 2), ACC(7, 2), ACC(4, 2), ACC(6, 2), ACC(1, 2), ACC(3, 2), ACC(0, 2), ACC(2, 2), 8, 16, XA[0], XA[0] + 8, XA[1], XA[1] + 8]
WD = lambda k: 40 + 4 * k
PQ = lambda i, h: AC(2 * h, i)
PP = lambda p, f: ((XA[2], XA[2] + 8), (ACC(4, 0), ACC(6, 0)), (ACC(5, 0), ACC(7, 0)))[p - 1][f >> 1] + 4 * (f & 1)
VFL, VPO, GG, VOUT, SEL0 = 2, 3, 94, 4, 88
slot2 = lambda m: ((m + 2) % NSL) * P2SLOT


def ord_table(g, lo, tmp=None):
    pk = lambda o: sum(x << (4 * k) for k, x in enumerate(o))
    g.a(f"s_mov_b32 s{lo}, {hex(pk(ORD) & 0xffffffff)}\ns_mov_b32 s{lo+1}, {hex(pk(ORD) >> 32)}")
    for t8, own in {1: (1,), 2: (2, 3), 3: (4, 5), 4: (7,), 5: (8,), 6: (9, 10), 7: (11, 12)}.items():
        o = list(own) + [x for x in ORD if x not in own]
        g.a(f"s_cmp_eq_u32 s{S_CB}, {t8 ^ g.o['cbx']}\ns_cselect_b32 s{lo}, {hex(pk(o) & 0xffffffff)}, s{lo}\ns_cselect_b32 s{lo+1}, {hex(pk(o) >> 32)}, s{lo+1}")


def line_ops(n):
    return [f"s_bfe_u32 s54, s{4+n//8}, {hex((4<<16) | (4*(n%8)))}", "s_lshl_b32 s54, s54, 17", "s_add_u32 s54, s54, s46", "s_add_u32 s53, s54, 4096"]


def c_wread(n):
    u, j = n // 8, JORD[n % 8]
    return [(('W', n), f"ds_read_b64_tr_b16 v[{WB(n)+2*w}:{WB(n)+2*w+1}], v{VW2} offset:{((j>>2)*2+(u&1))*UNIT + (j&3)*32 + w*256}") for w in range(2)]


def c_loads(u, vm):
    o = []
    if u % 2 == 0: o += line_ops(u // 2)
    for i in range(4):
        o.append((f"buffer_load_dwordx4 {vr(AB(u,i))}, v{VA1 if i>>1 else VA0}, {W}, s{53 if i&1 else 54} offen offset:{(u&1)*2048} {HF[1]}", vm, ('A', u)))
    return o


def u_base(v):
    return slot2(NS + v % 4) + (2 * UNIT if v % 8 < 4 else 0) if v < 16 else slot2(NS + 4 + (v - 16) // 2) + (v & 1) * 2 * UNIT


def u_reads(v):
    return [(('U', v, k >> 1), f"ds_read_b64_tr_b16 v[{WD(k)+2*w}:{WD(k)+2*w+1}], v{VWD} offset:{(k>>2)*UNIT + (k&3)*32 + w*256}") for k in range(8) for w in range(2)]


def u_areg(v, kk, mi):
    if v >= 16: return ADP[2 * (v - 16) + kk] + 4 * mi
    return (XA if v < 8 else [8] + XA[:3])[v % 4] + 8 * kk + 4 * mi


def u_loads(v, vm):
    if v < 16:
        sb, ln = (46, ORD[NS + v % 4]) if NS + v % 4 < 14 else (45, ND + NS + v % 4 - 14)
        o = [f"s_add_u32 s54, s{sb}, {ln<<17}", f"s_add_u32 s53, s{sb}, {(ln<<17)+4096}"]
    else: o = [f"s_mov_b32 s54, {OREG+((v-16)<<17)}", f"s_mov_b32 s53, {OREG+((v-16)<<17)+4096}"]
    for kk in range(2):
        for mi in range(2): o.append((f"buffer_load_dwordx4 {vr(u_areg(v,kk,mi))}, v{VA1 if v < 8 else VA0}, {W}, s{54-mi} offen offset:{kk*2048} {HF[1] if v < 16 and v % 4 < 2 else 'sc1'}", vm, ('B', v, kk)))
    return o


class Stage:
    def __init__(self, g, q, extra, dens):
        self.g = g; self.q = list(q); self.extra = extra; self.dens = dens; self.carry = 0
    def a(self, x):
        self.g.a(x); self.g.st['since'] += 1
    def wait(self, key):
        need = [k for k, e in enumerate(self.q) if key is None or e == key]
        if need:
            n = min(14, len(self.q) - 1 - max(need))
            self.a(f"s_waitcnt lgkmcnt({n})"); self.q = self.q[len(self.q) - n:]
    def read(self, r):
        self.a(r[1]); self.q.append(r[0])
    def op(self, x):
        if isinstance(x, tuple): x[1].op(x[0], x[2]); self.g.st['since'] += 1
        else: self.a(x)
    def fill(self, used):
        ex, st = self.extra, self.g.st
        while used < self.dens and ex:
            if isinstance(ex[0], int):
                if st['since'] >= ex[0]: ex.pop(0); continue
                return
            if ex[0] == 'XW':
                if 'x' in self.q: return
                ex.pop(0); continue
            x = ex.pop(0)
            if callable(x): x(); used += 2; st['since'] = 0; continue
            if isinstance(x, tuple): x[1].op(x[0], x[2]); x = x[0]
            else: self.g.a(x)
            if x.startswith("ds_"): self.q.append('x')
            st['since'] = 0
            used = 0 if x.startswith("v_mfma") else used + (2 if x.startswith(("v_exp", "v_rcp")) else 1)


def c_slab(g, u, vm, q, extra=None, dens=2, own=False):
    S = Stage(g, q, extra, dens)
    UL = 2 * NS - 1
    ld = c_loads(u + 3, vm) if u + 3 <= UL else u_loads(u + 2 - UL, vm)
    dr = u_reads(0) if u == UL else []
    if u == 0: ld = [] if own else c_loads(2, vm) + ld
    ab = (lambda i: 40 + 16 * (u - 2) + 4 * i) if own and u in (2, 3) else (lambda i: AB(u, i))
    late = own and u == 1
    vm.wait(('A', u))
    for jj in range(8):
        n = 8 * u + jj
        R = c_wread(n + 3) if n + 3 < 16 * NS else []
        for k, i in enumerate(range(4) if jj % 2 == 0 else range(3, -1, -1)):
            S.wait(('W', n))
            S.a(mfma(ACC(JORD[jj], i), WB(n), ab(i), "0" if u == 0 else None))
            used = 1 if k == 3 else 0
            if R: S.read(R.pop(0)); used += 1
            if u % 2 == 1 and u < UL and jj == 4 and k == 2:
                S.a(f"v_add_u32 v{VW2}, {(slot2(u//2+1)-slot2(u//2)) & 0xffffffff}, v{VW2}"); used += 1
                if u // 2 + 1 not in g.o['sk']: S.a("s_barrier"); used = 2
            elif u == UL and jj == 1 and k == 2:
                S.a(f"v_add_u32 v{VWD}, {(u_base(0)-slot2(NS-1)) & 0xffffffff}, v{VW2}"); S.a("s_barrier"); used = 2
            elif dr and jj >= 2 and used < 2 and (k >= 2 or jj >= 5):
                S.read(dr.pop(0)); used += 1
            if ld and used < 2 and (((jj >= 5 and k in (1, 2)) if late else k in (1, 2) if u == 0 else (k == 2 and (jj % 2 == g.o['aspread'] - 1 or not g.o['aspread'] or (u % 2 == 1 and jj == 5))) if u < UL else ((jj >= 2 or NA > 2) and k < 2)) or isinstance(ld[0], str)):
                S.op(ld.pop(0)); used += 1
            S.fill(used)
    assert not ld and not dr
    return S.q


def unit(g, v, vm, q, extra, dens=2):
    S = Stage(g, q, extra, dens)
    R = u_reads(v + 1) if v < 15 + ND else []
    t = {0: 3, 2: 8, 5: 9, 6: 10, 7: 11}
    for n, w in enumerate(g.o['dld']):
        assert w >= (8, 8, 8, 10, 12, 13, 14, 15)[n]
        t[w] = 16 + n
    t = t.get(v)
    ld = u_loads(t, vm) if t is not None else []
    m = 0
    for k in range(8):
        if k % 4 == 0: vm.wait(('B', v, k >> 2))
        for mi in ((0, 1) if k % 2 == 0 else (1, 0)):
            S.wait(('U', v, k >> 1))
            acc = ACC((4 if v % 8 < 4 else 0) + (k & 3), mi + (2 if v < 8 else 0)) if v < 16 else ACC(k & 3, mi)
            S.a(mfma(acc, WD(k), u_areg(v, k >> 2, mi)))
            used = 1 if m % 4 == 3 else 0
            if R and m == 0:
                S.a(f"v_add_u32 v{VWD}, {(u_base(v+1)-u_base(v)) & 0xffffffff}, v{VWD}"); used += 1
                if v in (3, 12, g.o['r1']): S.a("s_barrier"); used += 1
            elif R:
                S.read(R.pop(0)); used += 1
                if m == 15: S.read(R.pop(0))
            if ld and m in (1, 2, 4, 6, 9, 13):
                S.op(ld.pop(0)); used += 1
            S.fill(used)
            m += 1
    assert not R and not ld
    return S.q


def spaced(lst, n):
    o = []
    for x in lst: o += [x, n]
    return o


def strs(ex):
    return [x for x in ex if not isinstance(x, int)]


def compute(g):
    a = g.a
    a("L_compute:")
    a("v_and_b32 v4, 15, v0\nv_lshrrev_b32 v5, 4, v0")
    a("v_bfe_u32 v6, v4, 3, 1\nv_bfe_u32 v7, v4, 1, 1\nv_lshl_add_u32 v6, v6, 1, v7")
    a(f"v_mul_u32_u24 v{VX}, {BLK}, v6")
    a("v_bfe_u32 v6, v4, 2, 1\nv_and_b32 v7, 1, v4\nv_lshl_add_u32 v6, v6, 1, v7")
    a(f"v_lshl_add_u32 v{VX}, v6, 7, v{VX}\nv_lshl_add_u32 v{VX}, v5, 4, v{VX}")
    a(f"s_mul_i32 s45, s{S_WAVE}, {2*UNIT}\nv_add_u32 v{VX}, s45, v{VX}")
    a("v_and_b32 v6, 1, v5\nv_bfe_u32 v7, v4, 3, 1\nv_lshl_add_u32 v6, v6, 1, v7")
    a(f"v_mul_u32_u24 v{VW}, {BLK}, v6")
    a("v_lshrrev_b32 v6, 1, v5\nv_bfe_u32 v7, v4, 2, 1\nv_lshl_add_u32 v6, v6, 2, v7")
    a(f"v_lshl_add_u32 v{VW}, v6, 7, v{VW}\nv_and_b32 v6, 3, v4\nv_lshl_add_u32 v{VW}, v6, 3, v{VW}")
    a(f"v_add_u32 v{VW}, {WBASE}, v{VW}")
    a(f"v_lshrrev_b32 v6, 5, v0\nv_and_b32 v7, 31, v0\nv_lshlrev_b32 v7, 3, v7\nv_lshl_add_u32 v{VQ}, v6, 9, v7")
    a(f"v_add_u32 v{VQ}, {WBASE+3*UNIT}, v{VQ}")
    for r in range(48, 256, 2): a(f"v_mov_b64 v[{r}:{r+1}], 0")
    a(f"s_mov_b32 s45, 7\ns_mov_b32 s46, 0\ns_mov_b32 s48, {(-2*XSLOT) & 0xffffffff}\ns_mov_b32 s49, {XSLOT}")
    a("s_mov_b32 s50, 0x3fb8aa3b\ns_mov_b32 s51, 0x358637bd")
    a(f"s_and_b32 s52, s{S_MB8}, 3\ns_lshl_b32 s52, s52, 21\ns_lshl_b32 s53, s{S_WAVE}, 15\ns_add_u32 s52, s52, s53")
    a(f"s_and_b32 s53, s{S_QD}, 1\ns_mul_i32 s53, s53, 7\ns_lshl_b32 s55, s32, 6\ns_add_u32 s53, s53, s55")
    a(f"s_add_u32 s66, s53, 6\ns_lshl_b32 s66, s66, 17\ns_add_u32 s66, s66, s52")
    a(f"s_lshr_b32 s55, s{S_C}, 1\ns_lshl_b32 s55, s55, 11\ns_add_u32 s66, s66, s55")
    a(f"s_and_b32 s55, s{S_C}, 1\ns_lshl_b32 s55, s55, 10\ns_add_u32 s66, s66, s55")
    a("s_add_u32 s67, s66, 16384")
    a(f"s_lshr_b32 s57, s{S_WAVE}, 1\ns_and_b32 s58, s{S_WAVE}, 1")
    a(f"s_lshl_b32 s59, s2, 11\ns_lshl_b32 s55, s{S_WAVE}, 7\ns_add_u32 s59, s59, s55\ns_add_u32 s59, s59, {WS_FLAG}")
    a(f"s_add_u32 s60, s59, {F_H2}\ns_add_u32 s61, s59, {F_X}")
    a("v_lshlrev_b32 v4, 4, v0\nv_mov_b32 v6, 1")
    lane_goodcol(g, 7, 5)
    a("s_waitcnt lgkmcnt(0)")
    srd(g, SRD_WS, 26, 0x10000000)
    ord_table(g, 4)
    a(f"s_lshl_b32 s6, s{S_RH}, 14\ns_xor_b32 s7, s6, 16384\ns_add_u32 s6, s6, s52\ns_add_u32 s7, s7, s52\ns_lshl_b32 s8, s32, 23\ns_mul_i32 s9, s32, {NA<<17}\ns_add_u32 s9, s9, {OREG}")
    a(f"s_lshl_b32 s16, s{S_WAVE}, 13\ns_lshl_b32 s17, s{S_WAVE}, 10\ns_add_u32 s17, s17, {P2END}")
    if g.o.get('prio'): a(f"s_setprio {g.o['prio']}")
    a("s_waitcnt vmcnt(0)\ns_barrier")
    g.stamp(1)

    def em(lst):
        for x in lst: a(x)
    def p2_setup():
        a(f"v_add_u32 v{VA0}, s6, v7\nv_add_u32 v{VA1}, s7, v7\ns_mov_b32 s46, s8\ns_mov_b32 s45, s9\nv_add_u32 v{VW2}, {(slot2(0)-WBASE) & 0xffffffff}, v{VW2}")
    def moves(dst, tile):
        l0, l1 = g.lab("mv"), g.lab("mv")
        f = lambda x: "\n".join(f"v_mov_b64 v[{d+4*i+r}:{d+4*i+r+1}], v[{AC(t,i^x)+r}:{AC(t,i^x)+r+1}]" for d, t in zip(dst, tile) for i in range(4) for r in (0, 2))
        return [f"s_cmp_lg_u32 s{S_RH}, 0\ns_cbranch_scc1 {l0}\n{f(0)}\ns_branch {l1}\n{l0}:\n{f(2)}\n{l1}:"]
    def c_begin(vm, mv=()):
        g.stamp(4)
        a("s_waitcnt lgkmcnt(0)")
        em(mv)
        a("s_barrier")
        g.stamp(5)
        R = c_wread(0) + c_wread(1) + c_wread(2)
        for _, x in R: a(x)
        return [k for k, _ in R]
    def flag_ex(vm, tag, so):
        return lambda: (vm.wait(tag), a(flagops(6, so)), vm.mark('f', 1))
    def quarter(tmp):
        o = [f"v_bfe_u32 v{VQ}, v0, 4, 1", f"v_mul_u32_u24 v{VQ}, 3584, v{VQ}", f"v_lshrrev_b32 v{tmp}, 5, v0", f"v_lshlrev_b32 v{tmp}, 9, v{tmp}",
             f"v_sub_u32 v{VQ}, v{VQ}, v{tmp}", f"v_add_u32 v{VQ}, v{VQ}, v7"]
        for p in (1, 0):
            d = AC(12, 2 * p)
            o += h_cvt(d, d, d + 4)
        for p in (1, 0):
            d = AC(12, 2 * p)
            o += [f"s_nop 1\nv_permlane16_swap_b32 v{d}, v{d+2}", f"v_permlane16_swap_b32 v{d+1}, v{d+3}",
                  f"buffer_store_dwordx4 {vr(d)}, v{VQ}, {W}, s{66+p} offen {HF[0]}"]
        return o

    a(f"s_cmp_ge_u32 s{S_C}, 2\ns_cbranch_scc1 L_cq")
    a(f"s_add_u32 s55, s53, s{S_C}\ns_lshl_b32 s55, s55, 17\ns_add_u32 s55, s55, s52")
    p1_loop(g, True)
    SEL = lambda t: 224 + 4 * t
    T = lambda t: (176 + 4 * t) if t < 4 else (240 + 4 * (t - 4)) if t < 8 else 204
    ex2 = ["v_and_b32 v201, 3, v0", "v_mov_b32 v202, 0x3f803f80"]
    for t in range(4):
        ex2 += [f"v_cmp_eq_u32 vcc, {t}, v201\ns_nop 1\nv_cndmask_b32 v{SEL(t)}, 0, v202, vcc"] + [f"v_mov_b32 v{SEL(t)+r}, v{SEL(t)}" for r in (1, 2, 3)]
    ex2 += quarter(200)
    for s_ in range(4):
        for p in range(2):
            ex2 += phi_regs(list(range(AC(s_, 2 * p), AC(s_, 2 * p) + 8)), 192, 2 * s_ + p >= g.o.get('pk0', 2)) + pack8(AC(s_, 2 * p), AC(s_, 2 * p + 1))
        if s_ == 1: ex2.append(None)
    rest = p1_tail(g, True, h_line_store(8, 55), ex2, flagops(6, 59))
    g.stamp(2)
    k = rest.index(None)
    em(rest[:k]); rest = rest[k + 1:]
    em(moves((24,), (8,)))
    for s_ in range(4, 8):
        for p in (1, 0): em(pack8(AC(s_, 2 * p), AC(s_, 2 * p + 1)))
    def kv_mfmas(h):
        o = []
        for p in range(2):
            for dt in range(2):
                for e in range(2): o.append(mfma(T((h * 2 + e) * 2 + dt), AC(2 * h + dt, 2 * p), AC(4 + 2 * h + e, 2 * p), "0" if p == 0 else None))
                o.append(mfma(T(8), AC(2 * h + dt, 2 * p), SEL(2 * h + dt), "0" if (h, p, dt) == (0, 0, 0) else None))
        return o
    wr = lambda t: f"ds_write_b128 v5, {vr(T(t))} offset:{t*1024}"
    a("v_add_u32 v5, s16, v4\ns_waitcnt vmcnt(0)")
    a(flagops(6, *((60,) if g.o['fpos'] < 64 else (59, 60))))
    for x in kv_mfmas(0):
        a(x); em(rest[:3]); rest = rest[3:]
    vm = VM(a)
    for t in range(4): em(rest[:10]); rest = rest[10:]; a(wr(t))
    em(moves((112,), (10,))); em(rest)
    a("s_nop 1")
    em(kv_mfmas(1))
    p2_setup()
    a("v_add_u32 v88, s17, v4\ns_nop 0")
    for t in (4, 6, 5, 7): a(wr(t))
    a(f"ds_write_b128 v88, {vr(T(8))}")
    g.stamp(3)
    q = c_begin(vm)
    JU = g.o['ju']
    for u in range(JU): q = c_slab(g, u, vm, q)
    qj, vj = list(q), list(vm.q)
    a("s_branch L_c2join")
    a("L_cq:")
    a(f"s_lshl_b32 s55, s{S_C}, 1\ns_add_u32 s55, s55, s53\ns_sub_u32 s55, s55, 2\ns_lshl_b32 s55, s55, 17\ns_add_u32 s55, s55, s52")
    a("s_add_u32 s62, s55, 0x20000")
    p1_loop(g, False)
    b2 = quarter(AC(5, 0)) + [x for x in h_line_store(8, 62) if x.startswith("v_")]
    mv = moves((40, 56), (8, 10))
    late2 = [f"buffer_store_dwordx4 {vr(40+16*p+4*i)}, v{VA1 if i>>1 else VA0}, {W}, s{63 if i&1 else 62} offen offset:{p*2048} {HF[0]}" for p in range(2) for i in range(4)]
    em(p1_tail(g, False, h_line_store(4, 55), b2, flagops(6, 59)))
    g.stamp(2)
    vm = VM(a, ['h2'])
    hand_q = []
    for h in range(2):
        for i in (2, 3, 0, 1): hand_q.append(pack8(AC(2 * h, i), AC(2 * h + 1, i)) + [f"ds_write_b128 v5, {vr(PQ(i,h))} offset:{(i*2+h)*1024}"])
    a(f"s_lshl_b32 s55, s{S_WAVE}, 13\nv_add_u32 v5, s55, v4")
    phg = g.o.get('phig', 4)
    for x in hand_q: em(x)
    p2_setup()
    a("s_sub_u32 s62, s62, s52\ns_add_u32 s63, s62, 4096")
    em(moves((24, 112), (4, 6)))
    g.stamp(3)
    q = c_begin(vm, mv)
    ex = []
    for x in late2: ex += [(x, vm, 'h2'), g.o['st2sp']]
    k = JU - (2 if late2 else JU)
    for u in range(JU):
        if u == k + 1:
            assert not strs(ex)
            ex = [60 if late2 else 0, flag_ex(vm, 'h2', 60)]
        q = c_slab(g, u, vm, q, ex, own=True)
    qq = [x for x in vm.q if x not in ('f', 'h2')]
    assert not ex and q == qj and qq == vj[len(vj) - len(qq):]
    a("L_c2join:")
    vm.q = list(vj)
    pre = (inbox(68, 56, S_WAVE) +
           "".join(f"s_xor_b32 s{61+p}, s68, {hex(p<<18)}\ns_add_u32 s{61+p}, s{61+p}, {WS_PART+((p-1)<<16)}\ns_add_u32 s{64+p}, s{61+p}, 4096\n" for p in (1, 2, 3)) +
           f"s_add_u32 s59, s59, {F_P}\ns_lshl_b32 s68, s{S_WAVE}, 12\ns_add_u32 s68, s68, {P2END}\n"
           f"s_add_u32 s69, s{S_WAVE}, {NS+2}\ns_and_b32 s69, s69, {NSL-1}\ns_mul_i32 s69, s69, {P2SLOT}\ns_add_u32 s69, s69, {2*UNIT}\n"
           f"s_mov_b32 s28, s18\ns_mov_b32 s29, s19\ns_mov_b32 s30, {hex(2048*1024*2)}\ns_mov_b32 s31, 0x20000\n"
           f"s_lshl_b32 s55, s{S_MB8}, 2\ns_add_u32 s55, s55, s{S_WAVE}\ns_lshl_b32 s55, s55, 17\ns_lshl_b32 s56, s{S_RH}, 16\ns_add_u32 s55, s55, s56\n"
           f"s_lshl_b32 s56, s{S_CB}, 8\ns_add_u32 s55, s55, s56\ns_lshl_b32 s56, s{S_KH}, 7\ns_add_u32 s55, s55, s56\n"
           f"s_lshl_b32 s50, s{S_WAVE}, 1\ns_add_u32 s50, s50, s{S_RH}\ns_lshl_b32 s50, s50, 7\ns_add_u32 s50, s50, {LDS_G}\n"
           f"v_and_b32 v{SEL0+6}, 15, v0\nv_lshrrev_b32 v{SEL0+7}, 4, v0\nv_lshlrev_b32 v{SEL0+7}, 2, v{SEL0+7}\nv_sub_u32 v{SEL0+6}, v{SEL0+6}, v{SEL0+7}\n"
           f"v_and_b32 v{SEL0+7}, 1, v0\nv_lshlrev_b32 v{SEL0+7}, 4, v{SEL0+7}\nv_mov_b32 v{SEL0}, 0x3f80\nv_lshlrev_b32 v{SEL0+7}, v{SEL0+7}, v{SEL0}\nv_lshrrev_b32 v{SEL0+6}, 1, v{SEL0+6}").split("\n")
    pre += [f"v_cmp_eq_u32 vcc, {k}, v{SEL0+6}\ns_nop 1\nv_cndmask_b32 v{SEL0+2+k}, 0, v{SEL0+7}, vcc" for k in range(2)]
    pre += [f"v_mov_b32 v{SEL0+r}, 0" for r in (0, 1, 4, 5)]
    ex = pre
    for u in range(JU, 2 * NS): q = c_slab(g, u, vm, q, ex)
    def send(p, sp, mi):
        j, i = 4 * (p >> 1) + 2 * sp, 2 * (p & 1) + mi
        return pack8(ACC(j, i), ACC(j + 1, i)) + [(f"buffer_store_dwordx4 {vr(ACC(j,i))}, v7, {W}, s{61+p+3*mi} offen offset:{sp*2048} sc1", vm, ('ps', p))]
    def rdp(p):
        return [f"ds_read_b128 {vr(PP(p,f))}, v{VFL if p == 3 else VPO} offset:{(4096 if p == 2 else 0)+f*1024}" for f in range(4)]
    def addp(p):
        return [mfma(ACC(2 * sp + t, mi), SEL0 + 2 - 2 * t, PP(p, mi * 2 + sp)) for mi in range(2) for sp in range(2) for t in range(2)]
    XF = g.o['xf']
    PO = (3, 1, 2)
    for v in range(17 + ND):
        if v == 1:
            assert not ex
            ex += (f"v_add_u32 v{VFL}, s68, v4\nv_add_u32 v{VPO}, s69, v4\nv_and_b32 v{VOUT}, 15, v0\nv_lshl_add_u32 v{GG}, v{VOUT}, 2, s50\n"
                   f"v_lshlrev_b32 v{VOUT}, 11, v{VOUT}\nv_bfe_u32 v{GG+1}, v0, 4, 1\nv_lshl_add_u32 v{VOUT}, v{GG+1}, 5, v{VOUT}\n"
                   f"v_lshrrev_b32 v{GG+1}, 5, v0\nv_lshl_add_u32 v{VOUT}, v{GG+1}, 4, v{VOUT}\n"
                   f"ds_read_b32 v{GG+1}, v{GG} offset:64\nds_read_b32 v{GG}, v{GG}").split("\n")
            ex += ['XW', f"v_add_f32 v{GG}, 1.0, v{GG}", f"v_add_f32 v{GG+1}, 1.0, v{GG+1}", f"v_rcp_f32 v{GG}, v{GG}", f"v_rcp_f32 v{GG+1}, v{GG+1}"]
        if 4 <= v < 16:
            if v % 4 == 0:
                snd = [send(PO[v // 4 - 1], sp, mi) for sp in range(2) for mi in range(2)]
                g.st['since'] = 0; ex.append(6)
            if v >= 12 and g.o.get('fast2', 1):
                if v % 4 < 2: ex += snd[2 * (v % 4)] + snd[2 * (v % 4) + 1]
            elif v % 4 < 2: ex += snd[2 * (v % 4)][:4] + [snd[v % 4][4]] + snd[2 * (v % 4) + 1][:4]
            else: ex += [snd[v % 4][4]]
        if v == 16: g.stamp(6)
        if v == g.o['r1'] + 1: g.stamp(3)
        if v == 14: g.stamp(4)
        if v in (0, 4, 8, 12, 20): g.stamp({0: 11, 4: 12, 8: 13, 12: 14, 20: 15}[v])
        for r in range(3):
            if v == XF[r]:
                assert v >= (8, 12, 14 if g.o.get('fast2', 1) else 16)[r]
                vm.wait(('ps', PO[r])); a(flagops(6, 59)); vm.mark('f', 1); a(f"v_mov_b32 v6, {r+2}")
        if v == g.o['r1']:
            assert v >= 16 and not ex
            g.st['since'] = 0
            ex += [4] + rdp(3) + rdp(1) + ['XW'] + addp(3) + addp(1)
        if v < 16 + ND: q = unit(g, v, vm, q, ex, dens=g.o.get('ydens', 3) if v < 16 else g.o.get('ddens', 3))
        if 4 <= v < 16: assert not [x for x in ex if (isinstance(x, tuple) and x[2][0] == 'ps') or (isinstance(x, str) and x.startswith("v_cvt"))]
    assert not ex
    g.stamp(9)
    a("s_barrier")
    g.stamp(10)
    if g.o['r1'] == 99:
        em(rdp(3) + rdp(1) + rdp(2))
        for k, p in enumerate((3, 1)):
            ad = addp(p)
            for f in range(4): a(f"s_waitcnt lgkmcnt({11-4*k-f})"); em(ad[2 * f:2 * f + 2])
    else: em(rdp(2))
    ad = addp(2)
    for f in range(4): a(f"s_waitcnt lgkmcnt({3-f})"); em(ad[2 * f:2 * f + 2])
    g.stamp(7)
    for mi in range(2):
        for hf in range(2):
            for j in range(2):
                for r in range(0, 4, 2): a(f"v_pk_mul_f32 v[{ACC(2*hf+j,mi)+r}:{ACC(2*hf+j,mi)+r+1}], v[{ACC(2*hf+j,mi)+r}:{ACC(2*hf+j,mi)+r+1}], v[{GG}:{GG+1}] op_sel:[0,{mi}] op_sel_hi:[1,{mi}]")
            d = ACC(2 * hf, mi)
            em(pack8(d, ACC(2 * hf + 1, mi)))
            a(f"s_add_u32 s56, s55, {0x8000*mi + 64*hf}\ns_nop 0\nv_permlane16_swap_b32 v{d}, v{d+2}\nv_permlane16_swap_b32 v{d+1}, v{d+3}")
            a(f"buffer_store_dwordx4 {vr(d)}, v{VOUT}, s[28:31], s56 offen {g.o.get('outflag','')}")
    if g.o['prof']:
        a("s_waitcnt vmcnt(0)")
        g.stamp(8)
    if g.o.get('probe') is not None:
        k = g.o['probe']
        if k == 'xcc':
            k = 0
            a("s_waitcnt lgkmcnt(0)\ns_getreg_b32 s55, hwreg(HW_REG_XCC_ID)\ns_sub_u32 s55, s55, s2\ns_and_b32 s55, s55, 7\ns_mul_i32 s55, s55, 500\ns_add_u32 s70, s70, s55")
        if k == 'min':
            k = 0
            srd(g, 28, 24, 256)
            a("buffer_load_dword v5, off, s[28:31], 0 offset:4 sc1\ns_waitcnt vmcnt(0) lgkmcnt(0)\nv_readfirstlane_b32 s70, v5\ns_nop 3\ns_not_b32 s70, s70")
        a(f"s_waitcnt lgkmcnt(0)\ns_add_u32 s55, s{70+2*k}, 6000\nL_probe:\ns_memrealtime s[56:57]\ns_waitcnt lgkmcnt(0)\ns_sub_u32 s56, s56, s55\ns_cmp_lt_i32 s56, 0\ns_cbranch_scc1 L_probe\ns_endpgm")
    prof_dump(g, 0, 0)
    a("s_endpgm")


def q_call(g, n):
    K1 = g.o['k1']
    k = f"p{n}" if n < len(g.o['pch']) else 4 + n - K1 if K1 <= n <= K1 + g.o['noc'] else None
    if k is None: return
    l = g.lab("qc")
    if n == 0: g.a("s_call_b64 s[84:85], L_qp0"); return
    g.a(f"s_cmp_lt_u32 s{S_C}, 2\ns_cbranch_scc1 {l}\ns_call_b64 s[84:85], L_q{k}\n{l}:")


def q_chunks(g):
    a = g.a
    QR = lambda f: 128 + 4 * f
    def phi(f):
        if g.o.get('nophi'): return
        for r in range(4): a(f"v_lshlrev_b32 v{160+2*r}, 16, v{QR(f)+r}\nv_and_b32 v{161+2*r}, 0xffff0000, v{QR(f)+r}")
        for r in range(8): a(f"v_mul_f32 v{168+r}, 0x3fb8aa3b, v{160+r}")
        for r in range(8): a(f"v_exp_f32 v{168+r}, v{168+r} clamp\nv_max_f32 v{160+r}, 0x358637bd, v{160+r}")
        for r in range(8): a(f"v_add_f32 v{160+r}, v{160+r}, v{168+r}")
        for r in range(4): a(f"v_cvt_pk_bf16_f32 v{QR(f)+r}, v{160+2*r}, v{161+2*r}")
    nf = 0
    assert sum(g.o['pch']) == 8 and len(g.o['pch']) <= g.o['k0']
    a("L_k0:\ns_setprio 2")
    a(f"s_lshl_b32 s82, s86, 11\nv_lshl_add_u32 v224, v0, 4, s82\nv_lshlrev_b32 v225, 4, v0\nv_add_u32 v226, {P2END}, v225")
    for w in range(4):
        for t in range(2): a(f"ds_read_b128 {vr(128+8*w+4*t)}, v224 offset:{w*8192+t*1024}")
    for w in range(4): a(f"ds_read_b128 {vr(160+4*w)}, v226 offset:{w*1024}")
    a(f"s_lshl_b32 s83, s{S_PAIR}, 3\ns_add_u32 s83, s83, s{S_MB8}\ns_mul_i32 s83, s83, 9216\ns_add_u32 s83, s83, {WS_KVP}\ns_add_u32 s82, s82, s83")
    a("s_add_u32 s83, s83, 8192\ns_cmp_eq_u32 s86, 0\ns_cselect_b32 s83, s83, 0x10000000\ns_waitcnt lgkmcnt(4)")
    for r in range(16): a(f"v_add_f32 v{128+r}, v{128+r}, v{144+r}")
    for r in range(8): a(f"v_add_f32 v{128+r}, v{128+r}, v{136+r}")
    for t in range(2): a(f"buffer_store_dwordx4 {vr(128+4*t)}, v225, {W}, s82 offen offset:{t*1024} sc1")
    a("s_waitcnt lgkmcnt(0)")
    for r in range(8): a(f"v_add_f32 v{160+r}, v{160+r}, v{168+r}")
    for r in range(4): a(f"v_add_f32 v{160+r}, v{160+r}, v{164+r}")
    a(f"buffer_store_dwordx4 v[160:163], v225, {W}, s83 offen sc1\ns_setprio 0\ns_setpc_b64 s[84:85]")
    for k in range(len(g.o['pch'])):
        a(f"L_qp{k}:")
        if k == 0: a(f"s_sub_u32 s86, s{S_WAVE}, 4\ns_cmp_lt_u32 s{S_C}, 2\ns_cbranch_scc1 L_k0")
        if g.o.get('pprio'): a(f"s_setprio {g.o['pprio']}")
        if k == 0:
            a(f"s_sub_u32 s86, s{S_WAVE}, 4\ns_lshl_b32 s82, s86, 13\nv_lshl_add_u32 v224, v0, 4, s82")
            for f in range(8): a(f"ds_read_b128 {vr(QR(f))}, v224 offset:{f*1024}")
            a(f"s_lshl_b32 s83, s2, 11\ns_add_u32 s83, s83, {WS_FLAG+F_X}\ns_xor_b32 s83, s83, s79")
            a(f"s_and_b32 s82, s{S_MB8}, 3\ns_lshl_b32 s82, s82, 4\ns_add_u32 s82, s82, s{S_PAIR}\ns_lshl_b32 s82, s82, 2\ns_add_u32 s82, s82, s86\ns_lshl_b32 s82, s82, 15\ns_add_u32 s82, s82, {OREG}")
            a(f"v_lshlrev_b32 v224, 4, v0\nv_add_u32 v224, {P2END}, v224\nv_mov_b32 v226, 0\nds_write_b32 v224, v226 offset:8192\nv_mov_b32 v226, 1\ns_waitcnt lgkmcnt(0)")
        for _ in range(g.o['pch'][k]): phi(nf); nf += 1
        a("s_setpc_b64 s[84:85]")
    noc = g.o['noc']
    tiles = {2: [(0, 1), (2, 3)], 3: [(0,), (1, 2), (3,)], 4: [(0,), (1,), (2,), (3,)]}[noc]
    for k in range(noc):
        a(f"L_q{4+k}:")
        if g.o.get('qprio'): a(f"s_setprio {g.o['qprio']}")
        lane_goodcol(g, 225, 227)
        if k == 0:
            for f in range(6): a(f"ds_read_b128 {vr(176+4*f)}, v224 offset:{f*1024}")
            a(f"s_lshl_b32 s86, s{S_WAVE}, 8\ns_add_u32 s86, s86, {LDS_G-1024}\nv_and_b32 v227, 15, v0\nv_lshl_add_u32 v227, v227, 2, s86")
            for i in range(4): a(f"ds_read_b32 v{228+i}, v227 offset:{i*64}")
            a("s_waitcnt lgkmcnt(0)")
        for i in tiles[k]:
            for h in range(2):
                for e in (2, 0, 1): a(mfma(200 + 12 * h + 4 * e, 176 + 4 * (3 * h + e), QR(2 * i + h), "0"))
            a(f"s_add_u32 s86, s82, {MT(i)}\ns_nop 3")
            for h in range(2):
                t = 200 + 12 * h
                a(f"v_add_f32 v{t+8}, 0x358637bd, v{t+8}\nv_rcp_f32 v{t+8}, v{t+8}\ns_nop 0\nv_mul_f32 v{t+8}, v{228+i}, v{t+8}")
                for r in range(8): a(f"v_mul_f32 v{t+r}, v{t+r}, v{t+8}")
                for r in range(4): a(f"v_cvt_pk_bf16_f32 v{QR(2*i+h)+r}, v{t+2*r}, v{t+2*r+1}")
                a(f"buffer_store_dwordx4 {vr(QR(2*i+h))}, v225, {W}, s86 offen offset:{h*2048} sc1")
        if g.o.get('qprio'): a("s_setprio 0")
        a("s_setpc_b64 s[84:85]")
    a(f"L_q{4+noc}:\ns_waitcnt vmcnt(0)\nds_add_rtn_u32 v227, v224, v226 offset:8192\ns_waitcnt lgkmcnt(0)\nv_cmp_eq_u32 vcc, 3, v227\ns_cbranch_vccz L_qret")
    a(flagops(226, 83) + "\nL_qret:\ns_mov_b64 vcc, -1\ns_setpc_b64 s[84:85]")


def aux_sel(g):
    if g.o['pol'] is None: g.a(f"v_mov_b32 v227, {LDS_SEL}\nds_read_b32 v227, v227\ns_waitcnt lgkmcnt(0)\nv_readfirstlane_b32 s79, v227\ns_nop 1\ns_xor_b32 s{S_SEL}, s{S_SEL}, s79")
    if g.o['pol'] is not None or not g.o['nearf']: g.a("s_mov_b32 s79, 0")


def aux_rx(g):
    a = g.a
    a("L_rx:")
    lane_goodcol(g, 225, 227)
    a(f"v_add_u32 v224, 1024, v225\ns_sub_u32 s86, s{S_WAVE}, 4")
    a(inbox(82, 83, 86) + f"s_add_u32 s82, s82, {WS_PART}")
    a(f"s_lshl_b32 s83, s2, 11\ns_lshl_b32 s47, s86, 7\ns_add_u32 s83, s83, s47\ns_xor_b32 s83, s83, s79")
    a(f"s_lshl_b32 s84, s86, 12\ns_add_u32 s84, s84, {P2END}")
    a(f"s_add_u32 s85, s86, {NS+2}\ns_and_b32 s85, s85, {NSL-1}\ns_mul_i32 s85, s85, {P2SLOT}\ns_add_u32 s85, s85, {2*UNIT}")
    a("s_waitcnt vmcnt(0) lgkmcnt(0)\ns_barrier")
    for r, p in enumerate((3, 1, 2)):
        a(f"s_xor_b32 s47, s83, {p<<11}\ns_add_u32 s47, s47, {WS_FLAG+F_P}")
        iss = lambda: a(f"buffer_load_dword v226, off, {W}, s47 sc1")
        if r == 2 and g.o['r1'] != 99: a("s_waitcnt vmcnt(0)"); iss(); a("s_barrier")
        else: iss()
        poll_check(g, iss, 226, 1, r + 1, "gt")
        for mi in range(2):
            a(f"s_add_u32 m0, s{84 if p == 3 else 85}, {(4096 if p == 2 else 0)+mi*2048}\ns_add_u32 s47, s82, {((p-1)<<16)+mi*4096}")
            a(f"buffer_load_dwordx4 v225, {W}, s47 offen sc1 lds\nbuffer_load_dwordx4 v224, {W}, s47 offen offset:1024 sc1 lds")
    a("s_waitcnt vmcnt(0)\ns_endpgm")


def loader(g):
    def a(x):
        if not g.o.get('trace'): return g.a(x)
        for ln in x.split("\n"):
            g.a(ln)
            if ln.strip() == "s_barrier":
                g.a(("s_memtime" if g.o['trace'] == 'cyc' else "s_memrealtime") + " s[100:101]\ns_waitcnt lgkmcnt(0)\ns_mov_b32 m0, s44\ns_add_u32 s44, s44, 1\nv_writelane_b32 v32, s100, m0\ns_cmp_lg_u32 s44, 33\ns_cbranch_scc1 1\nv_mov_b32 v33, v32")
    if g.o.get('trace'): a("s_mov_b32 s44, 0\nv_mov_b32 v32, 0\nv_mov_b32 v33, 0")
    LW = 45
    if g.o.get('sprio'): a(f"s_setprio {g.o['sprio']}")
    a(f"s_sub_u32 s{LW}, s{S_WAVE}, 4")
    a("v_lshrrev_b32 v1, 5, v0\nv_bfe_u32 v2, v0, 4, 1\nv_lshlrev_b32 v1, 4, v1\nv_lshl_add_u32 v1, v2, 2, v1\nv_bfe_u32 v2, v0, 3, 1\nv_add_u32 v1, v1, v2")
    a(f"s_lshl_b32 s61, s{LW}, 3\nv_add_u32 v1, s61, v1\nv_and_b32 v2, 7, v0\nv_lshlrev_b32 v2, 4, v2")
    a(f"s_lshl_b32 s61, s{S_MB8}, 19\nv_lshl_add_u32 v4, v1, 11, v2\nv_add_u32 v4, s61, v4\nv_add_u32 v5, {4096-BLK}, v4")
    a(f"s_mul_i32 s66, s{LW}, {2*BLK}")
    a(f"s_mov_b32 s61, s66\ns_mov_b32 s62, 0\ns_mov_b32 s63, 0\ns_mov_b32 s64, 0\ns_add_u32 s65, s66, {WBASE}")
    a(f"s_add_u32 s67, s66, {XRING}\ns_add_u32 s68, s66, {WBASE+4*WSLOT}")
    a(f"s_lshl_b32 s69, s{LW}, 9\ns_sub_u32 s69, s69, s66\ns_add_u32 s69, s69, {3*UNIT}")
    a(f"s_mov_b32 s30, {hex(2048*1024*2)}\ns_mov_b32 s31, 0x20000\ns_mov_b32 s50, {hex(1024*3072*2)}\ns_mov_b32 s51, 0x20000")
    a(f"s_mov_b32 s58, {hex(1024*3584*2)}\ns_mov_b32 s59, 0x20000\ns_mov_b32 s55, 0x20000")
    if g.o.get('ldump'): a("s_memrealtime s[90:91]")
    a("s_waitcnt lgkmcnt(0)")
    a("s_mov_b64 s[28:29], s[4:5]\ns_mov_b64 s[48:49], s[6:7]\ns_mov_b64 s[56:57], s[12:13]")
    a(f"s_cmp_ge_u32 s{S_C}, 2")
    a("s_cselect_b64 s[52:53], s[12:13], s[6:7]\ns_cselect_b32 s54, s58, s50")

    def wsetup():
        a(f"s_movk_i32 s60, 6144\ns_cmp_ge_u32 s{S_C}, 2\ns_cselect_b32 s60, 7168, s60")
        a(f"s_cselect_b32 s82, 0, 2048\ns_lshl_b32 s83, s{S_PAIR}, 7\ns_add_u32 s82, s82, s83")
        a(f"v_mul_u32_u24 v6, 6144, v1\nv_add3_u32 v6, v6, v2, s82\nv_add_u32 v7, {12288-BLK}, v6")
        a(f"s_mul_i32 s84, s{S_QD}, 7\ns_lshl_b32 s85, s{S_C}, 1\ns_add_u32 s85, s85, s84\ns_sub_u32 s86, s85, 2\ns_lshl_b32 s86, s86, 7\ns_add_u32 s83, s83, 4096")
        a(f"s_cmp_ge_u32 s{S_C}, 2\ns_cselect_b32 s82, s86, s83")
        a(f"v_mul_lo_u32 v8, v1, s60\nv_add3_u32 v8, v8, v2, s82\ns_lshl_b32 s83, s60, 1\ns_sub_u32 s83, s83, {BLK}\nv_add_u32 v9, s83, v8")
        a(f"s_sub_u32 s85, s85, 1\ns_add_u32 s86, s84, s{S_C}\ns_cmp_ge_u32 s{S_C}, 2\ns_cselect_b32 s82, s85, s86\ns_lshl_b32 s82, s82, 7")
        a(f"v_mul_u32_u24 v10, 7168, v1\nv_add3_u32 v10, v10, v2, s82\nv_add_u32 v11, {14336-BLK}, v10")
        a("v_bfe_u32 v12, v0, 4, 1\nv_bfe_u32 v13, v0, 3, 1\nv_lshlrev_b32 v12, 2, v12\nv_lshl_add_u32 v12, v13, 3, v12\nv_bfe_u32 v13, v0, 1, 2\nv_add_u32 v12, v12, v13")
        a(f"s_lshl_b32 s82, s{LW}, 4\nv_add_u32 v12, s82, v12\nv_mul_u32_u24 v12, 7168, v12\nv_and_b32 v13, 1, v0\nv_lshl_add_u32 v12, v13, 4, v12")
        a(f"s_add_u32 s82, s84, 6\ns_lshl_b32 s82, s82, 7\ns_lshl_b32 s83, s{S_C}, 5\ns_add_u32 s82, s82, s83\nv_add_u32 v12, s82, v12")
        a("s_lshl_b32 s60, s60, 5")

    def xhalf():
        a("s_mov_b32 m0, s61\ns_add_u32 s46, s62, s63")
        for u in range(4):
            if u: a(f"s_add_u32 m0, m0, {UNIT}\ns_add_u32 s46, s46, 0x10000")
            a("buffer_load_dwordx4 v4, s[28:31], s46 offen lds")
            a(f"buffer_load_dwordx4 v5, s[28:31], s46 offen offset:{BLK} lds")
        a(f"s_add_u32 s61, s61, {4*UNIT}\ns_cmp_eq_u32 s61, s67\ns_cselect_b32 s61, s66, s61")
        a("s_xor_b32 s63, s63, 0x40000\ns_cselect_b32 s47, 0, 128\ns_add_u32 s62, s62, s47\ns_and_b32 s62, s62, 2047")

    def wslab():
        for ln, (sr, ld) in enumerate([(48, 32 * 6144), (52, "s60"), (56, 32 * 7168)]):
            a(f"s_add_u32 m0, s65, {ln*UNIT}\ns_mul_i32 s35, s64, {ld}")
            a(f"buffer_load_dwordx4 v{6+2*ln}, s[{sr}:{sr+3}], s35 offen lds")
            a(f"buffer_load_dwordx4 v{7+2*ln}, s[{sr}:{sr+3}], s35 offen offset:{BLK} lds")
        a("s_add_u32 m0, s65, s69\ns_mov_b32 exec_hi, 0")
        a("buffer_load_dwordx4 v12, s[56:59], s35 offen lds")
        a("s_mov_b32 exec_hi, -1")
        a(f"s_add_u32 s65, s65, {WSLOT}\ns_cmp_eq_u32 s65, s68\ns_cselect_b32 s65, s67, s65")
        a("s_add_u32 s64, s64, 1\ns_and_b32 s64, s64, 31")

    if not g.o.get('xfirst'): wsetup()
    g.stamp(1)
    xhalf()
    if g.o.get('xfirst') == 2: xhalf()
    if g.o.get('xfirst'): wsetup()
    wslab()
    if g.o.get('xfirst') != 2: xhalf()
    wslab(); g.stamp(2)
    if g.o.get('sprio'): a("s_setprio 0")
    a("s_waitcnt vmcnt(7)"); g.stamp(3)
    a("s_barrier")
    SM = g.o.get('smooth', 1)
    if SM:
        xhalf(); xhalf(); wslab()
        a("s_waitcnt vmcnt(23)\ns_barrier")
        wslab(); xhalf(); wslab()
        a("s_waitcnt vmcnt(22)\ns_barrier")
        xhalf(); wslab(); xhalf()
    else:
        xhalf(); wslab(); xhalf(); wslab(); xhalf()
    real_a, buf = g.a, []
    g.a = lambda x: buf.extend(x.split("\n"))
    srd(g, SRD_WS, 26, 0x10000000)
    a(f"s_mov_b32 s10, {hex(1024*1024*2)}\ns_mov_b32 s11, 0x20000")
    a(f"s_mov_b64 s[12:13], s[14:15]\ns_mov_b32 s14, {hex(3584*1024*2)}\ns_mov_b32 s15, 0x20000")
    a("v_lshrrev_b32 v1, 5, v0\nv_bfe_u32 v3, v0, 4, 1\nv_lshlrev_b32 v1, 3, v1\nv_lshl_add_u32 v1, v3, 4, v1\nv_bfe_u32 v3, v0, 3, 1\nv_add_u32 v1, v1, v3")
    a(f"s_lshl_b32 s4, s{LW}, 2\nv_add_u32 v1, s4, v1")
    a(f"s_lshl_b32 s4, s{S_CB}, 8\ns_lshl_b32 s5, s{S_KH}, 7\ns_add_u32 s4, s4, s5")
    a("v_lshl_add_u32 v14, v1, 11, v2\nv_add_u32 v14, s4, v14\nv_xor_b32 v16, 128, v14")
    a(f"v_add_u32 v15, {4096-BLK}, v14\nv_add_u32 v17, {4096-BLK}, v16")
    a(f"s_lshl_b32 s5, s{S_MB8}, 19\ns_sub_u32 s4, s4, s5")
    a(f"v_add_u32 v24, s4, v4\nv_xor_b32 v26, 128, v24\nv_add_u32 v25, {4096-BLK}, v24\nv_add_u32 v27, {4096-BLK}, v26")
    a(f"s_mul_i32 s6, s32, {14<<17}\ns_mul_i32 s7, s32, {NA<<17}")
    a("s_mov_b64 s[24:25], s[12:13]\ns_mov_b32 s26, s14\ns_mov_b32 s27, 0x20000")
    ord_table(g, 4)
    g.a = real_a
    cut = max(i for i, x in enumerate(buf) if x.startswith("s_mov_b64 s[24:25], s[12:13]"))
    NU = 6
    a(f"s_mov_b32 s34, {27-NU-2*SM}")
    a("L_l1:")
    a("s_waitcnt vmcnt(30)\ns_barrier")
    wslab(); xhalf()
    a("s_sub_u32 s34, s34, 1\ns_cmp_lg_u32 s34, 0\ns_cbranch_scc1 L_l1")
    t0 = 27 - NU
    vm = VM(a, [('I', t0 - 3)] * 15 + [('I', t0 - 2)] * 15 + [('I', t0 - 1)] * 15)
    busy = [False]
    def wstage(m):
        if m < 14: a(f"s_bfe_u32 s16, s{4+m//8}, {hex((4<<16) | (4*(m%8)))}\ns_lshl_b32 s16, s16, 17\ns_add_u32 s16, s16, s6")
        for ln in range(2):
            for kk in range(2):
                if g.o.get('wpace') and m >= 3 and (ln or kk):
                    a(f"s_cbranch_vccnz 1\ns_sleep {g.o['wpace']}" if busy[0] else f"s_sleep {g.o['wpace']}")
                a(f"s_add_u32 m0, s66, {slot2(m)+(ln*2+kk)*UNIT}")
                if m < 14:
                    vb, sr = (24 if ORD[m] % 7 == 6 else 14) + 2 * ln, 24 if ln else 12
                    a(f"s_add_u32 s47, s16, {kk<<16}")
                elif m < NS + 4:
                    vb, sr = 14 + 2 * ln, 8
                    a(f"s_add_u32 s47, s7, {((ND+m-14)<<17)+(kk<<16)}")
                else:
                    vb, sr = 14, 8
                    a(f"s_mov_b32 s47, {((2*(m-NS-4)+ln)<<17)+(kk<<16)}")
                for jb in range(2):
                    vm.op(f"buffer_load_dwordx4 v{vb+jb}, s[{sr}:{sr+3}], s47 offen offset:{jb*BLK} sc1 lds", m)
    for t in range(t0, 27):
        vm.wait(('I', t - 3)); a("s_barrier")
        wslab(); xhalf(); vm.mark(('I', t), 15)
        k = t - t0
        for x in (buf[k * cut // 5:(k + 1) * cut // 5] if k < 5 else buf[cut:]): a(x)
    vm.wait(('I', 25)); a("s_barrier")
    wslab(); vm.mark(('I', 27), 7)
    vm.wait(('I', 26)); a("s_barrier")
    wstage(0)
    vm.wait(('I', 27)); a("s_barrier")
    wstage(1)
    aux_sel(g)
    a("s_barrier")
    nxt = 2
    for _ in range(g.o.get('w31', 1)): wstage(nxt); nxt += 1
    a("s_barrier")
    g.stamp(5)
    for _ in range(g.o.get('w32', 0)): wstage(nxt); nxt += 1
    a(f"s_cmp_ge_u32 s{S_C}, 2\ns_cselect_b64 vcc, -1, 0")
    sched = g.o.get('wsched', [1, 1, 1, 1, 2, 1, 2, 1, 1, 1, 2, 1, 1, 1] if ND == 8 else [1, 1, 1, 1, 2, 1, 2, 1, 1, 1, 2, 1, 1, 0, 0])
    for n in range(0, NS + 2):
        SK = g.o['sk']
        if n not in SK:
            need = n
            while need + 1 in SK: need += 1
            if n >= NS: need = NS + 3
            lim = {0: 5}.get(n, n + 6)
            assert nxt > need
            vm.wait(need); a("s_barrier")
        else: vm.wait(nxt - 1)
        fl = n == g.o['k1'] + g.o['noc']
        fl = fl or (n == 0 and g.o.get('k0first', 1))
        if fl: q_call(g, n)
        busy[0] = n < len(g.o['pch']) or g.o['k1'] <= n <= g.o['k1'] + g.o['noc']
        for _ in range(sched[n]):
            assert nxt <= lim
            wstage(nxt); nxt += 1
        if not fl: q_call(g, n)
    assert nxt == NS + 4 + ND // 2
    if g.o.get('trace'):
        l = g.lab("tr")
        a(f"s_cmp_lg_u32 s{S_WAVE}, 4\ns_cbranch_scc1 {l}\ns_lshl_b32 s33, s2, 9\ns_add_u32 s33, s33, {WS_PROF+0x20000}\nv_lshlrev_b32 v5, 2, v0")
        a(f"buffer_store_dword v33, v5, {W}, s33 offen\nbuffer_store_dword v32, v5, {W}, s33 offen offset:256\n{l}:")
    if g.o.get('ldump'): prof_dump(g, 4, 1)
    aux_rx(g)


def pf_item(g, wait=False):
    a = g.a
    a(f"s_mul_hi_u32 s47, s68, {(2**32+16)//17}\ns_mul_i32 s33, s47, 17\ns_sub_u32 s33, s68, s33")
    a("s_lshl_b32 s50, s47, 1\ns_add_u32 s50, s50, s87\ns_lshl_b32 s50, s50, 5")
    a("s_mul_i32 s51, s32, 7\ns_add_u32 s51, s51, s33\ns_sub_u32 s51, s51, 10")
    a("s_sub_u32 s35, s33, 4\ns_lshr_b32 s54, s35, 1\ns_lshl_b32 s54, s54, 2\ns_add_u32 s54, s54, s32\ns_lshl_b32 s54, s54, 1\ns_and_b32 s35, s35, 1\ns_add_u32 s35, s35, s54")
    a(f"s_movk_i32 s55, 7168\ns_mov_b32 s54, {hex(1024*3584*2)}\ns_cmp_lt_u32 s33, 10\ns_cselect_b32 s51, s35, s51\ns_cselect_b32 s35, 6144, s55\ns_cselect_b32 s54, {hex(1024*3072*2)}, s54")
    a("s_mul_i32 s50, s50, s35\ns_lshl_b32 s51, s51, 8\ns_add_u32 s50, s50, s51")
    a(f"s_lshl_b32 s51, s{S_XCD}, 2\ns_add_u32 s51, s51, s33\ns_lshl_b32 s51, s51, 17\ns_lshl_b32 s47, s47, 7\ns_add_u32 s47, s47, s51")
    a(f"s_cmp_lt_u32 s33, 4\ns_cselect_b32 s47, s47, s50\ns_cselect_b32 s35, 4096, s35\ns_cselect_b32 s50, 11, 7\ns_cselect_b32 s54, {hex(2048*1024*2)}, s54\ns_mov_b32 s55, 0x20000")
    a("v_lshrrev_b32 v10, 1, v0\nv_and_b32 v11, 1, v0\nv_mul_lo_u32 v10, v10, s35\nv_lshl_add_u32 v10, v11, s50, v10")
    if wait: a("s_waitcnt lgkmcnt(0)")
    a("s_cmp_lt_u32 s33, 10\ns_cselect_b64 s[52:53], s[6:7], s[12:13]\ns_cmp_lt_u32 s33, 4\ns_cselect_b64 s[52:53], s[4:5], s[52:53]")
    a("buffer_load_dword v9, v10, s[52:55], s47 offen")


def helper(g):
    a = g.a
    a("L_helper:")
    HW = 45
    def bars(n):
        for _ in range(n): a("s_barrier")
    if g.o.get('hprio'): a(f"s_setprio {g.o['hprio']}")
    a(f"s_sub_u32 s{HW}, s{S_WAVE}, 6")
    a("v_lshlrev_b32 v4, 4, v0\nv_lshlrev_b32 v5, 2, v0\nv_mov_b32 v6, 0\nv_mov_b32 v7, 1\nv_lshlrev_b32 v8, 7, v0")
    if not g.o.get('cpf0', 1): a("s_mov_b64 exec, 0xffff\nbuffer_load_dword v9, v8, s[96:99], s100 offen\ns_mov_b64 exec, -1")
    a(f"s_lshl_b32 s46, s32, 3\ns_add_u32 s46, s46, s{S_CB}\ns_lshl_b32 s47, s{S_MB8}, 5\ns_add_u32 s46, s46, s47")
    a("s_waitcnt lgkmcnt(0)")
    srd(g, SRD_WS, 26, 0x10000000)
    srd(g, 28, 4, 2048 * 1024 * 2)
    srd(g, 92, 24, 256)
    for r in range(12, 16): a(f"v_mov_b32 v{r}, -1")
    a(f"s_mov_b32 s33, 0x10000000\ns_lshl_b32 s88, s{S_PAIR}, 3\ns_add_u32 s88, s88, s{S_MB8}\ns_mul_i32 s88, s88, 9216\ns_add_u32 s88, s88, {WS_KVP}")
    a(f"s_mul_i32 s89, s{S_PAIR}, 6144\ns_lshl_b32 s47, s{S_MB8}, 10\ns_add_u32 s89, s89, s47\ns_add_u32 s89, s89, {WS_KVF}")
    a(f"s_cmp_ge_u32 s{S_MB8}, 6\ns_cselect_b32 s89, s33, s89\ns_cmp_ge_u32 s{S_C}, 2\ns_cselect_b32 s88, s33, s88\ns_cselect_b32 s89, s33, s89")
    def init0(k):
        if k == 0:
            for r in range(16, 20): a(f"v_mov_b32 v{r}, 0")
            a(f"s_lshl_b32 s47, s2, 11\ns_add_u32 s47, s47, {WS_FLAG}")
            a(f"buffer_store_dwordx4 v[16:19], v4, {W}, s47 offen sc1\nbuffer_store_dwordx4 v[16:19], v4, {W}, s47 offen offset:1024 sc1")
        elif k == 1:
            a(f"buffer_store_dwordx4 v[12:15], v4, {W}, s89 offen sc1")
            a(f"s_mov_b64 exec, 0xff\ns_lshl_b32 s47, s46, 7\ns_add_u32 s47, s47, {WS_FLAG+F_G}")
            a(f"buffer_store_dwordx4 v[12:15], v4, {W}, s47 offen sc1\ns_mov_b64 exec, -1")
        else:
            a(f"buffer_store_dwordx4 v[12:15], v4, {W}, s88 offen sc1\ns_add_u32 s88, s88, 1024")
    issd = lambda: a("buffer_load_dword v23, off, s[92:95], 0 sc1")
    def init3():
        ok = g.lab("rdy")
        a(f"v_cmp_eq_u32 vcc, 0, v23\ns_cbranch_vccz {ok}")
        issd(); poll_check(g, issd, 23, 1, 0, "eq")
        a(f"{ok}:\nv_and_b32 v23, 0x2000, v23\nv_mov_b32 v22, {LDS_SEL}\nds_write_b32 v22, v23\ns_lshr_b32 s47, s2, 2\ns_lshl_b32 s47, s47, 7\ns_and_b32 s33, s2, 3\ns_lshl_b32 s33, s33, 2\ns_add_u32 s47, s47, s33\ns_add_u32 s47, s47, {WS_FLAG+F_RDY}")
        a(flagops(7, 47) + "\ns_waitcnt lgkmcnt(0)")
    lz = g.lab("z")
    a(f"s_or_b32 s33, s2, s{HW}\ns_cbranch_scc1 {lz}")
    for r in range(16, 20): a(f"v_mov_b32 v{r}, 0")
    a(f"s_mov_b32 s47, {WS_FLAG+F_RDY}\ns_mov_b32 s33, {WS_FLAG+F_RDY+4096}")
    for k in range(8): a(f"buffer_store_dwordx4 v[16:19], v4, {W}, s{33 if k>>2 else 47} offen offset:{(k&3)*1024} sc1")
    a(f"s_mov_b32 s47, {WS_PROBE}\ns_mov_b32 s33, {WS_PROBE+8192}")
    a(f"buffer_store_dwordx4 v[16:19], v4, {W}, s47 offen sc1\nbuffer_store_dwordx4 v[16:19], v4, {W}, s33 offen sc1\n{lz}:")
    a("s_mov_b32 s90, -1\ns_mov_b32 s91, -1")
    def wg0(f):
        l = g.lab("w0")
        a(f"s_cmp_lg_u32 s2, 0\ns_cbranch_scc1 {l}"); f(); a(f"{l}:")
    def probe(k):
        a(f"s_mov_b32 s47, {WS_PROBE+(k&1)*8192+(k>>1)*128}\ns_memtime s[48:49]\ns_waitcnt lgkmcnt(0)\ns_load_dword s33, s[26:27], s47\ns_waitcnt lgkmcnt(0)")
        a(f"s_memtime s[50:51]\ns_waitcnt lgkmcnt(0)\ns_sub_u32 s33, s50, s48\ns_min_u32 s{90+(k&1)}, s{90+(k&1)}, s33")
    def announce():
        a("s_cmp_lt_u32 s91, s90\ns_cselect_b32 s33, 0x2001, 1\nv_mov_b32 v23, s33\ns_mov_b64 exec, 1\nbuffer_store_dword v23, off, s[92:95], 0 sc1")
        if g.o.get('showp'): a("v_mov_b32 v22, s90\nbuffer_store_dword v22, off, s[92:95], 0 offset:4\nv_mov_b32 v21, s91\nbuffer_store_dword v21, off, s[92:95], 0 offset:8")
        a("s_mov_b64 exec, -1")
    srd(g, 60, 14, 3584 * 1024 * 2)
    srd(g, 64, 8, 1024 * 1024 * 2)
    a(f"s_cmp_lg_u32 s{HW}, 0\ns_cbranch_scc1 L_h_one")
    iss0 = lambda: a(f"s_mov_b32 s47, {WS_FLAG+F_RDY}\nbuffer_load_dwordx4 v[16:19], v8, {W}, s47 offen sc1")
    for t in range(0, 29):
        a("s_barrier")
        if t == 1: a("s_waitcnt vmcnt(0)")
        if 3 <= t < 14: a(f"s_sleep {g.o['hdel']}"); init0(t - 3)
        if 2 <= t < 12 and g.o['pol'] is None: wg0(lambda: probe(t - 2))
        if t == 11: wg0(announce)
        if t == 14: issd()
        if t == 16: a("s_waitcnt vmcnt(0)"); init3()
        if t == 22: iss0()
        if t == 24: poll_check(g, iss0, 14, 64, 1, "ne", lambda: a("v_and_b32 v14, v16, v17\nv_and_b32 v15, v18, v19\nv_and_b32 v14, v14, v15"))
        if t == g.o.get('cpf1', 99): a("s_mov_b64 exec, 0xffff\nbuffer_load_dword v9, v8, s[96:99], s100 offen\ns_mov_b64 exec, -1")
    bars(2)
    aux_sel(g)
    lane_h(g, 11, 12, 52)
    a(f"s_add_u32 s54, s52, {F_H2}")
    a("v_and_b32 v12, 1, v0\nv_lshlrev_b32 v12, 16, v12\nv_bfe_u32 v16, v0, 1, 1\nv_lshl_add_u32 v12, v16, 18, v12")
    a(f"v_bfe_u32 v16, v0, 2, 2\nv_lshl_add_u32 v12, v16, 11, v12\ns_andn2_b32 s56, s52, 0x1800\ns_add_u32 s56, s56, {F_X + (2<<16)}")
    a(f"s_lshl_b32 s57, s{S_MB8}, 12\ns_add_u32 s57, s57, {WS_FLAG+F_G}")
    a(f"v_lshrrev_b32 v19, 1, v0\nv_and_b32 v16, 1, v0\nv_lshlrev_b32 v16, 4, v16\nv_lshl_add_u32 v19, v19, 7, v16\nv_add_u32 v13, {LDS_G}, v4")
    bars(1)
    bars(1)
    def pol(soff, areg):
        m = "0xffff" if areg == 12 else "0xffffffff"
        return lambda: a(f"s_mov_b64 exec, {m}\nbuffer_load_dword v14, v{areg}, {W}, s{soff} offen sc1\ns_mov_b64 exec, -1")
    issg = lambda: a(f"buffer_load_dwordx4 v[24:27], v19, {W}, s57 offen sc1")
    assert g.o['k1'] >= 6
    def role(kv, f):
        l = g.lab("ro")
        a(f"s_cmp_ge_u32 s{S_C}, 2\ns_cbranch_scc{1 if kv else 0} {l}"); f(); a(f"{l}:")
    role(True, lambda: (a(f"s_sleep {g.o.get('gsl', 16)}"), pol(52, 11)(), poll_check(g, pol(52, 11), 14, 32, 1)))
    SK = g.o['sk']
    assert not set(SK) & {0, 1, 6, g.o['k1'], 12, 13}
    cnt = lambda n: len([x for x in range(n) if x not in SK])
    for n in range(12):
        if n not in SK: a("s_barrier")
        if n == g.o.get('cpf2'): a("s_mov_b64 exec, 0xffff\nbuffer_load_dword v9, v8, s[96:99], s100 offen\ns_mov_b64 exec, -1")
        if n == 0: role(False, pol(52, 11))
        if n == 3: issg()
        if n == 4:
            poll_check(g, issg, 14, 64, -1, "eq", lambda: a("v_max3_u32 v14, v24, v25, v26\nv_max_u32 v14, v14, v27"))
            a("ds_write_b128 v13, v[24:27]"); pol(54, 11)()
        if n == 5: poll_check(g, pol(54, 11), 14, 32, 1); a("s_waitcnt lgkmcnt(0)")
        q_call(g, n)
        if n == 0: role(False, lambda: poll_check(g, pol(52, 11), 14, 32, 1))
        if n == g.o.get('fop', 11):
            if g.o.get('fosl'): a(f"s_sleep {g.o['fosl']}")
            pol(56, 12)()
        if n == 11: poll_check(g, pol(56, 12), 14, 16, 1)
    bars(NS - 10); a("s_branch L_rx")
    a("L_h_one:")
    tb = sum(x << (4 * k) for k, x in enumerate(ORD))
    a(f"s_mov_b32 s34, 0\ns_lshr_b32 s69, s2, 3\ns_mov_b32 s48, {hex(tb & 0xffffffff)}\ns_mov_b32 s49, {hex(tb >> 32)}")
    a(f"s_lshr_b32 s33, s68, 5\ns_lshr_b32 s90, {hex(g.o.get('wmask', 0x1f0))}, s33")
    if g.o.get('nopf1'): a("s_mov_b32 s68, 0x10000")
    def w2item():
        l, lo = g.lab("pw"), g.lab("pw")
        a(f"s_cmp_ge_u32 s69, 112\ns_cbranch_scc1 {lo}\ns_lshr_b32 s47, s69, 3\ns_lshl_b32 s47, s47, 2\ns_lshr_b64 s[50:51], s[48:49], s47\ns_and_b32 s50, s50, 15")
        a(f"s_mul_i32 s47, s32, 14\ns_add_u32 s47, s47, s50\ns_lshl_b32 s47, s47, 1\ns_add_u32 s47, s47, s87\ns_lshl_b32 s47, s47, 3\ns_and_b32 s50, s69, 7\ns_add_u32 s47, s47, s50\ns_lshl_b32 s47, s47, 13")
        a(f"buffer_load_dword v9, v8, s[60:63], s47 offen\ns_branch {l}")
        a(f"{lo}:\ns_sub_u32 s47, s69, 112\ns_lshl_b32 s47, s47, 3\ns_add_u32 s47, s47, s{S_XCD}\ns_lshl_b32 s47, s47, 13\nbuffer_load_dword v9, v8, s[64:67], s47 offen\n{l}:\ns_add_u32 s69, s69, 32")
    l0, l1, l2, lx, lq = [g.lab("pf") for _ in range(5)]
    if g.o.get('skip0'): a(f"s_branch {l1}")
    a(f"{l0}:\ns_add_u32 s47, s34, {g.o['lead']}\ns_mul_i32 s47, s47, 17\ns_lshr_b32 s47, s47, 1\ns_min_u32 s47, s47, {16*17}\ns_cmp_ge_u32 s68, s47\ns_cbranch_scc1 {l1}")
    pf_item(g)
    a("s_add_u32 s68, s68, 32")
    a(f"{l2}:\ns_lshr_b32 s90, s90, 1\ns_bitcmp1_b32 s90, 0\ns_cbranch_scc0 {l0}")
    w2item()
    a(f"s_branch {l0}\n{l1}:")
    if g.o.get('wrate'):
        l3 = g.lab("pf")
        a(f"s_sub_u32 s47, s34, {g.o.get('w0', 2)}\ns_cbranch_scc1 {l3}\ns_mul_i32 s47, s47, {g.o['wrate']}\ns_min_u32 s47, s47, 144\ns_cmp_ge_u32 s69, s47\ns_cbranch_scc1 {l3}")
        w2item()
        a(f"{l3}:")
    a(f"s_barrier\ns_sleep {g.o['hdel']}\ns_add_u32 s34, s34, 1\ns_cmp_lt_u32 s34, 27\ns_cbranch_scc1 {l0}")
    srd(g, 52, 16, 2048)
    gl = ["s_lshl_b32 s47, s46, 14\n" + "\n".join(f"buffer_load_dwordx4 {vr(24+4*hf)}, v4, s[52:55], 0 offen offset:{hf*1024}" for hf in range(2))]
    for r in range(8):
        gl.append("\n".join(f"buffer_load_dwordx4 {vr(40+8*r+4*hf)}, v4, s[28:31], s47 offen offset:{(r&1)*2048+hf*1024}" for hf in range(2)) + ("\ns_add_u32 s47, s47, 4096" if r & 1 else ""))
    for t in range(26, 31):
        if t > 26: a("s_barrier")
        n = g.o['gsch'][t - 26]
        if n and t in (27, 28): a(f"s_sleep {g.o['hdel']}")
        for x in gl[:n]: a(x)
        gl = gl[n:]
    assert not gl
    aux_sel(g)
    for r in range(32, 40): a(f"v_mov_b32 v{r}, 0")
    bars(2)
    a("s_waitcnt vmcnt(0)")
    for k in range(8):
        for r in range(8): a(f"v_dot2_f32_bf16 v{32+r}, v{40+8*r+k}, v{24+k}, v{32+r}")
    a("s_barrier\ns_nop 0")
    for pat in ["quad_perm:[1,0,3,2] row_mask:0xf", "quad_perm:[2,3,0,1] row_mask:0xf", "row_half_mirror row_mask:0xf", "row_mirror row_mask:0xf",
                "row_bcast:15 row_mask:0xa", "row_bcast:31 row_mask:0xc"]:
        for r in range(32, 40): a(f"v_add_f32_dpp v{r}, v{r}, v{r} {pat} bank_mask:0xf")
    for r in range(8): a(f"v_readlane_b32 s{52+r}, v{32+r}, 63")
    a("s_nop 1")
    for r in range(8): a(f"v_writelane_b32 v16, s{52+r}, {r}")
    a("s_nop 0\nv_min_f32 v16, 0x41f00000, v16\nv_mul_f32 v16, 0x3fb8aa3b, v16\nv_exp_f32 v16, v16")
    a(f"s_lshl_b32 s47, s46, 7\ns_add_u32 s47, s47, {WS_FLAG+F_G}\ns_mov_b64 exec, 0xff")
    a(f"buffer_store_dword v16, v5, {W}, s47 offen sc1\ns_mov_b64 exec, -1")
    q_call(g, 0)
    a(f"s_mov_b32 s34, 1\ns_cmp_ge_u32 s{S_C}, 2\ns_cbranch_scc1 L_h1_q\ns_cmp_ge_u32 s{S_MB8}, 6\ns_cbranch_scc1 L_h1_end")
    H1 = g.o['h1']
    def retry(issue, mx, first, last, work=False):
        l0, l1 = g.lab("try"), g.lab("try")
        for n in range(first):
            if n and n not in SK: a("s_barrier")
            if work and n: q_call(g, n)
        first, last = cnt(first), cnt(last)
        if g.o.get('rsame', 1) & (1 if work else 2):
            l2 = g.lab("try")
            a(f"s_setprio 2\ns_mov_b32 s34, {first}\n{l0}:")
            issue(); a("s_waitcnt vmcnt(0)"); mx()
            a(f"v_cmp_eq_u32 vcc, -1, v14\ns_cbranch_vccz {l1}")
            a(f"s_cmp_ge_u32 s34, {last}\ns_cbranch_scc1 {l2}\ns_barrier\ns_add_u32 s34, s34, 1\ns_branch {l0}\n{l2}:")
        else:
            a(f"s_setprio 2\ns_mov_b32 s34, {first}\n{l0}:")
            if g.o.get('hsl'): a(f"s_sleep {g.o['hsl']}")
            issue()
            a("s_barrier\ns_add_u32 s34, s34, 1\ns_waitcnt vmcnt(0)")
            mx()
            a(f"v_cmp_eq_u32 vcc, -1, v14\ns_nop 1\ns_cmp_lg_u64 vcc, 0\ns_cbranch_scc0 {l1}")
            a(f"s_cmp_le_u32 s34, {last-1}\ns_cbranch_scc1 {l0}")
        issue(); poll_check(g, issue, 14, 64, -1, "eq", mx)
        a(f"{l1}:")
    def upto(n):
        l0, l1 = g.lab("up"), g.lab("up")
        a(f"{l0}:\ns_cmp_ge_u32 s34, {cnt(n)}\ns_cbranch_scc1 {l1}\ns_barrier\ns_add_u32 s34, s34, 1\ns_branch {l0}\n{l1}:")
    def vmax(lo, hi):
        a(f"v_max_u32 v14, v{lo}, v{lo+1}")
        for r in range(lo + 2, hi, 2): a(f"v_max3_u32 v14, v14, v{r}, v{r+1}")
    a(f"s_cmp_ge_u32 s{S_MB8}, 3\ns_cselect_b32 s55, 1, 0\ns_sub_u32 s56, s{S_MB8}, s55\ns_lshl_b32 s56, s56, 11\nv_add_u32 v10, s56, v4\nv_add_u32 v11, 1024, v10")
    a(f"s_cmp_eq_u32 s{S_MB8}, 2\ns_cbranch_scc1 L_h1_z\ns_cmp_eq_u32 s{S_MB8}, 5\ns_cbranch_scc0 L_h1_nz\nL_h1_z:")
    a("s_lshl_b32 s55, s55, 5\ns_add_u32 s55, s55, 8192\nv_and_b32 v10, 0x300, v4\nv_add_u32 v10, s55, v10\nv_add_u32 v11, 16, v10\nL_h1_nz:")
    def kvp_issue():
        a(f"s_mul_i32 s47, s{S_PAIR}, {8*9216}\ns_add_u32 s47, s47, {WS_KVP}")
        for m in range(8):
            for dt in range(2): a(f"buffer_load_dwordx4 {vr(32+(m*2+dt)*4)}, v{10+dt}, {W}, s47 offen sc1")
            if m < 7: a("s_add_u32 s47, s47, 9216")
    retry(kvp_issue, lambda: vmax(32, 96), H1 + 1, 9)
    g.stamp(5)
    if g.o['prof']: a("s_mov_b32 s88, s34")
    for st in (32, 16, 8):
        for r in range(st): a(f"v_add_f32 v{32+r}, v{32+r}, v{32+st+r}")
    for r in range(4): a(f"v_cvt_pk_bf16_f32 v{32+r}, v{32+2*r}, v{33+2*r}")
    a(f"s_mul_i32 s47, s{S_PAIR}, 6144\ns_lshl_b32 s46, s{S_MB8}, 10\ns_add_u32 s47, s47, s46\ns_add_u32 s47, s47, {WS_KVF}")
    a(f"buffer_store_dwordx4 v[32:35], v4, {W}, s47 offen sc1")
    a("L_h1_end:")
    upto(NS + 2)
    a("s_branch L_rx")
    a("L_h1_q:")
    K1 = g.o['k1']
    a(f"s_mul_i32 s55, s{S_PAIR}, 6144\ns_add_u32 s55, s55, {WS_KVF}\ns_add_u32 s56, s55, 4096\nv_add_u32 v12, {P2END}, v4")
    def kvf_issue():
        for f in range(6): a(f"buffer_load_dwordx4 {vr(32+4*f)}, v4, {W}, s{55+(f>>2)} offen offset:{(f&3)*1024} sc1")
    retry(kvf_issue, lambda: vmax(32, 56), g.o['k0'], K1, True)
    g.stamp(5)
    if g.o['prof']: a("s_mov_b32 s88, s34")
    for f in range(6): a(f"ds_write_b128 v12, {vr(32+4*f)} offset:{f*1024}")
    upto(K1)
    a("s_waitcnt lgkmcnt(0)")
    for n in range(K1, K1 + g.o['noc'] + 1):
        if n not in SK: a("s_barrier")
        q_call(g, n)
    a(f"s_mov_b32 s34, {cnt(K1+g.o['noc']+1)}\ns_branch L_h1_end")
    q_chunks(g)


HEADER = open("gated_mix__linear_attn_block__dense_activation_relu__prompt.s.ref").read().split("; Override")[0] \
    if __name__ == "__main__" else ""


def build(**opt):
    g = G(**opt)
    VM.skip = g.o.get('skip', ())
    HF[0] = g.o.get('hflag', 'sc1'); HF[1] = g.o.get('lflag', 'sc1')
    g.L.append(f"; @launch grid=(256,1,1) block=(512,1,1) lds={LDS_TOTAL}")
    g.a(f'.amdgcn_target "amdgcn-amd-amdhsa--gfx950"\n.text\n.globl {NAME}\n.p2align 8\n.type {NAME},@function\n{NAME}:')
    prologue(g)
    loader(g)
    helper(g)
    compute(g)
    g.a("L_exit:\ns_endpgm\nL_codeend:")
    g.L.append(f""".section .rodata,"a"
.p2align 6
.amdhsa_kernel {NAME}
  .amdhsa_next_free_vgpr 256
  .amdhsa_next_free_sgpr 102
  .amdhsa_accum_offset 256
  .amdhsa_group_segment_fixed_size 0
  .amdhsa_kernarg_size 80
  .amdhsa_user_sgpr_count 2
  .amdhsa_user_sgpr_kernarg_segment_ptr 1
  .amdhsa_system_sgpr_workgroup_id_x 1
.end_amdhsa_kernel""")
    return g.text()


if __name__ == "__main__":
    out = sys.argv[1]
    opt = {}
    for kv in sys.argv[2:]:
        k, v = kv.split("=")
        opt[k] = eval(v)
    open(out, "w").write(HEADER + build(**opt))
```

```python
import sys

NAME = "gated_mix__linear_attn_block__dense_activation_relu__prompt_kernel"

OREG = 4 << 23
MT = lambda i: ((i & 1) << 12) | ((i >> 1) << 14)
WS_PART = 0x3000000
WS_KVP = 0x2800000
WS_KVF = 0x2980000
WS_FLAG = 0x2C00000
F_H1, F_H2, F_X, F_P = 0, 512, 1024, 1536
F_G = 0x80000
F_RDY = 0x90000
WS_PROF = 0x2B00000
WS_PROBE = 0x2CC0000
LDS_SEL = 163832
WS_W2C = 0x2800000
ORD1 = [0, 1, 2, 4, 7, 8, 9, 11]
ORD2 = [3, 5, 10, 12, 6, 13]

UNIT = 4224; BLK = 1056
XSLOT = 8 * UNIT
XRING = 3 * XSLOT
WSLOT = 3 * UNIT + 1024
WBASE = XRING
LDS_G = 162816
P2SLOT = 4 * UNIT
NSL = 8
P2END = NSL * P2SLOT
LDS_TOTAL = 163840

SPIN = 100000


class G:
    def __init__(self, **opt):
        self.L = []
        self.o = dict(prof=False, krot=False, pfw=True, pf1=True, lead=6, pfs0=0, hdel=0, pfw0=2, pfwr=54, early2=0, late=(4, 4, 4), sp0=22, spn=2, swin=4, gsch=(5, 4, 0, 0, 0), fpos=50, s1sp=12, tdens=2, st2n=0, st2sp=14, ju=5, pch=(1, 2, 2, 2, 1), pf0=0, wx=1, xfirst=2, prio=1, pol=None, nearf=1, pk=(4, 6), sk=(), cbx=2, aspread=0, wpace=0, kdens=4, hsl=0, gsl=0, noc=2, qprio=2, k1=7, k0=6, rsp=6, h1=1, xf=(10, 14, 16), r1=99, dld=(11, 12, 13, 14, 15, 16, 17, 18), psleep=2, cpf1=24, cpf2=99, odens=3, b16=True, ddens=3, psp=30, d1=7, d2=10, d2b=12, d3=16)
        self.o.update(opt)
        self.uid = 0
        self.info = {}
        self.st = {'since': 0}

    def a(self, s):
        for ln in s.split("\n"):
            ln = ln.strip()
            if ln == "s_sleep 0": continue
            if ln:
                self.L.append(ln if ln.endswith(":") or ln.startswith(".") else "    " + ln)

    def lab(self, p):
        self.uid += 1
        return f"L_{p}_{self.uid}"

    def stamp(self, n):
        if self.o['prof'] == 'min' and n not in (0, 8): return
        if self.o['prof']:
            self.a(f"{'s_memtime' if self.o['prof']=='cyc' else 's_memrealtime'} s[{70+2*n}:{71+2*n}]")

    def text(self):
        j = self.o.get('jitter')
        if j:
            import random
            rnd = random.Random(j[0]); o = []
            for ln in self.L:
                o.append(ln)
                t = ln.strip()
                if (t == "s_barrier" or t.startswith("s_waitcnt vmcnt")) and rnd.random() < j[1]:
                    w = rnd.randrange(8)
                    src = "s3" if rnd.random() < 0.7 else "s44"
                    o.append(f"    s_cselect_b32 s101, 1, 0\n    s_cmp_lg_u32 {src}, {w}\n    s_cbranch_scc1 1\n    s_sleep {rnd.randrange(1, j[2])}\n    s_cmp_lg_u32 s101, 0")
            return "\n".join(o) + "\n"
        return "\n".join(self.L) + "\n"


class VM:
    def __init__(self, a, init=()):
        self.a = a; self.q = list(init)
    skip = ()
    def op(self, text, tag):
        if (tag[0] if isinstance(tag, tuple) else tag) in VM.skip: return
        self.a(text); self.q.append(tag)
        assert len(self.q) <= 63, "vmcnt overflow"
    def mark(self, tag, n):
        self.q += [tag] * n
        assert len(self.q) <= 63, "vmcnt overflow"
    def wait(self, *tags):
        k = max([i for i, t in enumerate(self.q) if t in tags], default=-1)
        if k >= 0:
            self.a(f"s_waitcnt vmcnt({len(self.q)-1-k})"); self.q = self.q[k + 1:]


def vr(b, n=4):
    return f"v[{b}:{b+n-1}]"


def mfma(d, a, b, c=None):
    return f"v_mfma_f32_16x16x32_bf16 {vr(d)}, {vr(a)}, {vr(b)}, {vr(d) if c is None else c}"


S_WAVE, S_MB8, S_QD, S_C, S_PAIR, S_RH, S_CB, S_KH, S_SEL, S_XCD = 3, 36, 37, 38, 39, 40, 41, 42, 43, 44
SRD_WS = 20


def srd(g, d, base, nbytes):
    g.a(f"s_mov_b32 s{d}, s{base}\ns_mov_b32 s{d+1}, s{base+1}\ns_mov_b32 s{d+2}, {hex(nbytes)}\ns_mov_b32 s{d+3}, 0x20000")


def prof_dump(g, wave, row):
    if not g.o['prof'] or g.o.get('probe') is not None or (row and (g.o['prof'] == 'min' or g.o.get('trace'))): return
    a = g.a
    l = g.lab("pd")
    a(f"s_waitcnt lgkmcnt(0)\ns_cmp_lg_u32 s{S_WAVE}, {wave}\ns_cbranch_scc1 {l}")
    a(f"s_lshl_b32 s33, s2, 6\ns_add_u32 s33, s33, {WS_PROF + row*16384}\nv_mov_b32 v5, 0")
    for n in range(16):
        a(f"v_mov_b32 v6, s{70+2*n}\nbuffer_store_dword v6, v5, s[{SRD_WS}:{SRD_WS+3}], s33 offen offset:{4*n}\ns_nop 1")
    a(f"{l}:")


def prologue(g):
    a = g.a
    a("s_cmp_ge_u32 s2, 256\ns_cbranch_scc1 L_exit")
    g.stamp(0)
    a("s_load_dwordx16 s[4:19], s[0:1], 0")
    a(f"s_getpc_b64 s[96:97]\nL_pc:\ns_mov_b32 s98, L_codeend-L_pc\ns_mov_b32 s99, 0x20000\ns_lshr_b32 s30, s2, 3\ns_lshl_b32 s100, s30, 11\nv_lshlrev_b32 v1, 2, v0")
    if g.o.get('cpf0', 1): a("buffer_load_dword v47, v1, s[96:99], s100 offen")
    a("s_load_dwordx4 s[24:27], s[0:1], 64")
    a("v_lshrrev_b32 v1, 6, v0\nv_and_b32 v0, 63, v0")
    a(f"s_and_b32 s{S_XCD}, s2, 7")
    a(f"v_readfirstlane_b32 s{S_WAVE}, v1")
    a(f"s_lshr_b32 s31, s{S_XCD}, 2\ns_and_b32 s32, s{S_XCD}, 3")
    if g.o.get('wx'): a(f"s_xor_b32 s{S_WAVE}, s{S_WAVE}, 4")
    a(f"s_and_b32 s33, s30, 3\ns_lshl_b32 s{S_MB8}, s31, 2\ns_add_u32 s{S_MB8}, s{S_MB8}, s33")
    a("s_lshr_b32 s33, s30, 2")
    a(f"s_lshr_b32 s34, s33, 2\ns_lshl_b32 s{S_QD}, s32, 1\ns_add_u32 s{S_QD}, s{S_QD}, s34")
    a(f"s_and_b32 s{S_C}, s33, 3")
    a(f"s_and_b32 s34, s33, 1\ns_lshl_b32 s{S_PAIR}, s{S_QD}, 1\ns_add_u32 s{S_PAIR}, s{S_PAIR}, s34")
    a(f"s_and_b32 s{S_RH}, s32, 1")
    a(f"s_xor_b32 s{S_CB}, s33, {g.o['cbx']}")
    a(f"s_lshr_b32 s{S_KH}, s32, 1")
    if g.o['pol'] == 'mix': a(f"s_lshl_b32 s{S_SEL}, s31, 13")
    else: a(f"s_xor_b32 s34, s31, s{S_MB8}\ns_xor_b32 s34, s34, {g.o['pol'] or 0}\ns_and_b32 s34, s34, 1\ns_lshl_b32 s{S_SEL}, s34, 13")
    a(f"s_cmp_lt_u32 s{S_WAVE}, 4\ns_cbranch_scc1 L_compute")
    a(f"s_cmp_lt_u32 s{S_WAVE}, 6\ns_cbranch_scc1 L_loader")
    a("s_mov_b32 s68, s30\ns_mov_b32 s87, s31")
    if g.o.get('pf0'):
        a(f"s_cmp_eq_u32 s{S_WAVE}, 6\ns_cbranch_scc1 L_helper\ns_add_u32 s68, s68, {g.o.get('pf0off', 0)}")
        pf_item(g, True)
        a("s_add_u32 s68, s68, 32")
    a("s_branch L_helper\nL_loader:")


W = f"s[{SRD_WS}:{SRD_WS+3}]"


def lane_goodcol(g, d, t):
    g.a(f"v_lshrrev_b32 v{d}, 4, v0\nv_and_b32 v{t}, 15, v0\nv_lshlrev_b32 v{t}, 4, v{t}\nv_lshl_add_u32 v{d}, v{d}, 9, v{t}\nv_or_b32 v{d}, s{S_SEL}, v{d}")


def inbox(so, t, w):
    return (f"s_lshr_b32 s{so}, s2, 6\ns_lshl_b32 s{so}, s{so}, 2\ns_bfe_u32 s{t}, s2, 0x20003\ns_add_u32 s{so}, s{so}, s{t}\ns_lshl_b32 s{so}, s{so}, 1\n"
            f"s_bfe_u32 s{t}, s2, 0x10005\ns_add_u32 s{so}, s{so}, s{t}\ns_lshl_b32 s{so}, s{so}, 2\ns_add_u32 s{so}, s{so}, s32\ns_lshl_b32 s{so}, s{so}, 4\n"
            f"s_add_u32 s{so}, s{so}, s{w}\ns_lshl_b32 s{so}, s{so}, 14\n")


def lane_h(g, d, t, so):
    g.a(f"v_bfe_u32 v{d}, v0, 2, 3\nv_and_b32 v{t}, 3, v0\nv_lshlrev_b32 v{t}, 7, v{t}\nv_lshl_add_u32 v{d}, v{d}, 16, v{t}")
    g.a(f"s_and_b32 s{so}, s2, 31\ns_lshl_b32 s{so}, s{so}, 11\ns_add_u32 s{so}, s{so}, {WS_FLAG}\ns_xor_b32 s{so}, s{so}, s79")


def poll_check(g, issue, reg, nl, val, cmp="ne", pre=None):
    a = g.a
    l0, l1 = g.lab("poll"), g.lab("pollok")
    a(f"s_mov_b32 s35, {SPIN}\n{l0}:\ns_waitcnt vmcnt(0)")
    if pre: pre()
    a(f"v_cmp_{cmp}_u32 vcc, {val}, v{reg}\ns_nop 1")
    if nl == 64: a("s_cmp_lg_u64 vcc, 0")
    else: a(f"s_and_b32 s33, vcc_lo, {hex((1<<nl)-1)}")
    a(f"s_cbranch_scc0 {l1}")
    a(f"s_sub_u32 s35, s35, 1\ns_cbranch_scc1 {l1}")
    if g.o.get('psleep'): a(f"s_sleep {g.o['psleep']}")
    issue()
    a(f"s_branch {l0}\n{l1}:")


def setflags(g, one, *soffs):
    g.a("s_mov_b64 exec, 1")
    for so in soffs: g.a(f"buffer_store_dword v{one}, off, {W}, s{so} sc1")
    g.a("s_mov_b64 exec, -1")


VX, VW, VQ = 1, 2, 3
WB = lambda n: 8 + 4 * (n % 4)
XLO = lambda b, i: 24 + 8 * b + 4 * i
XHI = lambda i: 40 + 4 * (i - 2)
AC = lambda j, i: 48 + (j * 4 + i) * 4


PERM = {True: [8, 9, 10, 11, 0, 1, 2, 3, 12, 4, 5, 6, 7], False: [4, 5, 6, 7, 8, 9, 10, 11, 12, 0, 1, 2, 3]}


def p1_wread(t, j, n):
    slot = (t % 4) * WSLOT
    if j < 12:
        return [f"ds_read_b64_tr_b16 v[{WB(n)+2*w}:{WB(n)+2*w+1}], v{VW} offset:{slot + (j//4)*UNIT + (j%4)*32 + w*256}" for w in range(2)]
    return [f"ds_read_b64_tr_b16 v[{WB(n)+2*w}:{WB(n)+2*w+1}], v{VQ} offset:{slot + w*256}" for w in range(2)]


def p1_xreg(par, i):
    return XLO(par % 2, i) if i < 2 else XHI(i)


def p1_xread(t, i, par, vx=VX):
    return f"ds_read_b128 {vr(p1_xreg(par,i))}, v{vx} offset:{(i>>1)*UNIT + (i&1)*512 + (t%2)*64}"


def pass_order(nt):
    s = [(0, 0), (0, 1), (1, 1), (1, 0), (1, 2), (1, 3), (0, 3), (0, 2)]
    for j in range(2, nt - 2):
        s += [(j, i) for i in ([2, 3, 0, 1] if j % 2 == 0 else [1, 0, 3, 2])]
    u, v = nt - 2, nt - 1
    return s + [(u, 2), (u, 3), (v, 3), (v, 2), (v, 1), (v, 0), (u, 0), (u, 1)]


def p1_mfma(kv, tile, i, wreg, xreg):
    return mfma(AC(tile, i), xreg, wreg) if (kv and tile < 8) else mfma(AC(tile, i), wreg, xreg)


Q0 = [('W', 0, 0), ('W', 0, 0), ('X', 0, 0), ('X', 0, 1), ('W', 0, 1), ('W', 0, 1), ('X', 0, 2), ('X', 0, 3)]


def p1_loop(g, kv):
    a = g.a
    P = PERM[kv]
    L = g.lab("p1")
    seq = []
    for t in range(4):
        s = pass_order(13)
        post = [[] for _ in s]
        rd = lambda j, tt=t: [('W', tt, j, x) for x in p1_wread(tt, P[j], 13 * tt + j)]
        r = rd(2); post[0].append(r[0]); post[1].append(r[1])
        r = rd(3); post[2].append(r[0]); post[3].append(r[1])
        r = rd(4); post[8].append(r[0]); post[9].append(r[1])
        r = rd(5); post[10].append(r[0]); post[11].append(r[1])
        for j in range(3, 10):
            base = 8 + (j - 2) * 4
            r = rd(j + 3); post[base].append(r[0]); post[base + 1].append(r[1])
        b10 = 40
        if t % 2 == 1:
            post[b10 - 2].append(('S', f"s_add_u32 s46, s46, {XSLOT}"))
            post[b10 - 2].append(('S', f"s_cmp_eq_u32 s46, {XRING}"))
            post[b10 - 1].append(('S', f"s_cselect_b32 s47, s48, s49"))
            post[b10 - 1].append(('S', f"s_cselect_b32 s46, 0, s46"))
            post[b10].append(('S', f"v_add_u32 v{VX}, s47, v{VX}"))
        post[b10 + 2].append(('BAR',))
        tn = t + 1
        r0, r1 = rd(0, tn), rd(1, tn)
        post[b10 + 3] += [r0[0], r0[1]]
        post[44] += [('X', tn, 0, p1_xread(tn, 0, tn)), ('X', tn, 1, p1_xread(tn, 1, tn))]
        post[45] += [r1[0]]
        post[46] += [r1[1]]
        post[47] += [('X', tn, 2, p1_xread(tn, 2, tn))]
        post[48] += [('X', tn, 3, p1_xread(tn, 3, tn))]
        if t == 3:
            post[49].append(('S', "s_sub_u32 s45, s45, 1"))
            post[50].append(('S', "s_cmp_lg_u32 s45, 0"))
        for (j, i), p in zip(s, post):
            seq.append(((t, j, i), p))
    for x in p1_wread(0, P[0], 0): a(x)
    a(p1_xread(0, 0, 0)); a(p1_xread(0, 1, 0))
    for x in p1_wread(0, P[1], 1): a(x)
    a(p1_xread(0, 2, 0)); a(p1_xread(0, 3, 0))
    q = list(Q0)
    a(f".p2align 6\n{L}:")
    for (t, j, i), p in seq:
        need = [k for k, e in enumerate(q) if e == ('W', t, j) or e == ('X', t, i)]
        if need:
            k = max(need)
            a(f"s_waitcnt lgkmcnt({len(q)-1-k})")
            q = q[k + 1:]
        a(p1_mfma(kv, P[j], i, WB(13 * t + j), p1_xreg(t, i)))
        for e in p:
            if e[0] == 'S':
                a(e[1])
            elif e[0] == 'BAR':
                a("s_waitcnt lgkmcnt(0)\ns_barrier"); q = []
            else:
                a(e[3]); q.append((e[0], e[1] % 4, e[2]))
    assert q == Q0
    a(f"s_cbranch_scc1 {L}")


def p1_tail(g, kv, extra, extra2, flag):
    a = g.a
    P = PERM[kv]
    auto = g.o['pol'] is None
    if auto: a(f"v_mov_b32 v5, {LDS_SEL}\nds_read_b32 v6, v5")
    a(f"v_add_u32 v5, {(-2*XSLOT) & 0xffffffff}, v{VX}")
    if auto: extra = ["v_xor_b32 v7, v6, v7"] + (["v_readfirstlane_b32 s33, v6"] if g.o['nearf'] else []) + ["v_mov_b32 v6, 1"] + (["s_xor_b32 s59, s59, s33", "s_xor_b32 s60, s60, s33"] if g.o['nearf'] else []) + extra
    passes = [(t, grp) for grp in (P[:4], P[4:9], P[9:]) for t in range(28, 32)]
    M = []; start = []; n0 = 0; last = {}
    reads = []
    for p, (t, tiles) in enumerate(passes):
        start.append(len(M))
        o = pass_order(len(tiles))
        base = len(M)
        for j, tile in enumerate(tiles):
            first = base + min(k for k, e in enumerate(o) if e[0] == j)
            if not (p == 0 and j < 2):
                for x in p1_wread(t, tile, n0 + j):
                    reads.append(dict(key=('W', p, j), text=x, after=last.get(WB(n0 + j), -1), first=first, t=t))
            last[WB(n0 + j)] = base + max(k for k, e in enumerate(o) if e[0] == j)
        for i in range(4):
            first = base + min(k for k, e in enumerate(o) if e[1] == i)
            if p > 0:
                reads.append(dict(key=('X', p, i), text=p1_xread(t, i, p, VX if t < 30 else 5), after=max(last.get(p1_xreg(p, i), -1), first - 14), first=first, t=t))
            last[p1_xreg(p, i)] = base + max(k for k, e in enumerate(o) if e[1] == i)
        for (j, i) in o:
            M.append((p, j, i, p1_mfma(kv, tiles[j], i, WB(n0 + j), p1_xreg(p, i))))
        n0 += len(tiles)
    V1, V2 = start[1] + 3, start[2] + 5
    R1, R2 = start[10] - 3, len(M) - 5
    for r in reads:
        if r['t'] == 30: r['after'] = max(r['after'], V1)
        if r['t'] == 31: r['after'] = max(r['after'], V2)
    reads.sort(key=lambda r: r['first'])
    q = list(Q0) + ([('S', 0, 0)] if auto else []); since = 0; nst2 = 0; held = []; nexts = 0; first = True
    dens = g.o.get('tdens', 3)
    def wait(pred):
        nonlocal q
        need = [k for k, e in enumerate(q) if pred(e)]
        if need:
            a(f"s_waitcnt lgkmcnt({len(q)-1-max(need)})"); q = q[max(need) + 1:]
            return 1
        return 0
    for k, (p, j, i, txt) in enumerate(M):
        assert not [r for r in reads if r['first'] <= k], "read scheduled too late"
        w = wait(lambda e: e == ('W', p, j) or e == ('X', p, i))
        a(txt); since += 1 + w
        used = 0
        if k in (V1, V2): a("s_barrier"); used += 1
        if k in (R1, R2):
            lim = 9 if k == R1 else 11
            assert not [r for r in reads if r['key'][1] <= lim]
            used += 1 + wait(lambda e: e[1] <= lim); a("s_barrier")
        nr = 0
        while used < 2:
            c = [r for r in reads if r['after'] <= k]
            if not c or (nr and c[0]['first'] - k > 9): break
            a(c[0]['text']); q.append(c[0]['key']); reads.remove(c[0]); used += 1; nr += 1
        since += used
        if held and k >= nexts:
            a(held.pop(0)); used += 2; nexts = k + g.o['s1sp']; nst2 = 0
        if k == start[8] + g.o.get('fpos', 10):
            assert not held
            a(f"s_waitcnt vmcnt({nst2})\n" + flag); used += 2
        if k == start[8] + 3:
            assert not extra
            extra = extra2; dens = g.o.get('tdens2', 3); first = False
        if k >= start[4] + 3:
            while used < dens and extra:
                if extra[0] is None: break
                x = extra.pop(0)
                if first and x.startswith("s_add_u32 s56"): sadd = x; continue
                if first and x.startswith("buffer_store"): held.append(sadd + "\n" + x); continue
                a(x); used += 2 if x.startswith("v_exp") else 1
                if x.startswith("buffer_store"): nst2 += 1
    assert not held
    return extra


def h_cvt(d, a0, a1):
    src = [a0, a0 + 2] + ([a1, a1 + 2] if a1 is not None else [])
    return [f"v_cvt_pk_bf16_f32 v{d+r}, v{x}, v{x+1}" for r, x in enumerate(src)] + [f"v_pk_max_i16 v{d+r}, v{d+r}, 0" for r in range(len(src))]


HF = ['sc1', 'sc1']
def h_line_store(j0, soff):
    o = []
    for i in (2, 3, 0, 1):
        o.append(f"s_add_u32 s56, s{soff}, {MT(i)}")
        for p in range(2):
            d = AC(j0 + 2 * p, i)
            o += h_cvt(d, d, AC(j0 + 2 * p + 1, i))
            o.append(f"buffer_store_dwordx4 {vr(d)}, v7, {W}, s56 offen offset:{p*2048} {HF[0]}")
    return o


def phi_regs(regs, tmp, pk=False):
    if pk:
        o = [f"v_pk_mul_f32 v[{tmp+k}:{tmp+k+1}], v[{regs[k]}:{regs[k]+1}], s[50:51] op_sel_hi:[1,0]" for k in range(0, 8, 2)]
        for k, r in enumerate(regs): o += [f"v_exp_f32 v{tmp+k}, v{tmp+k} clamp", f"v_max_f32 v{r}, s51, v{r}"]
        return o + [f"v_pk_add_f32 v[{regs[k]}:{regs[k]+1}], v[{regs[k]}:{regs[k]+1}], v[{tmp+k}:{tmp+k+1}]" for k in range(0, 8, 2)]
    o = [f"v_mul_f32 v{tmp+k}, s50, v{r}" for k, r in enumerate(regs)]
    for k, r in enumerate(regs): o += [f"v_exp_f32 v{tmp+k}, v{tmp+k} clamp", f"v_max_f32 v{r}, s51, v{r}"]
    return o + [f"v_add_f32 v{r}, v{r}, v{tmp+k}" for k, r in enumerate(regs)]


def pack8(d, e):
    return [f"v_cvt_pk_bf16_f32 v{d}, v{d}, v{d+1}", f"v_cvt_pk_bf16_f32 v{d+1}, v{d+2}, v{d+3}",
            f"v_cvt_pk_bf16_f32 v{d+2}, v{e}, v{e+1}", f"v_cvt_pk_bf16_f32 v{d+3}, v{e+2}, v{e+3}"]


def flagops(one, *soffs):
    return "s_mov_b64 exec, 1\n" + "".join(f"buffer_store_dword v{one}, off, {W}, s{so} sc1\n" for so in soffs) + "s_mov_b64 exec, -1"


VA0, VW2, VA1, VWD = 1, 2, 3, 5
ORD = ORD1 + ORD2
AB = lambda u, i: ((24, 112, 96, 72)[u] if u < 4 else (24, 112, 96, 72, 40, 56)[(u - 4) % 6]) + 4 * i
ACC = lambda j, i: 128 + (j * 4 + i) * 4
JORD = [4, 5, 6, 7, 0, 1, 2, 3]
ND = 8
NA = (16 - ND) // 4
NS = 10 + NA
assert NS == 12
XA = [96, 72, 24, 112]
WP = lambda gi: (88, 8, 16)[(gi + 1) % 3]
ADP = [XA[3], XA[3] + 8, ACC(5, 2), ACC(7, 2), ACC(4, 2), ACC(6, 2), ACC(1, 2), ACC(3, 2), ACC(0, 2), ACC(2, 2), 8, 16, XA[0], XA[0] + 8, XA[1], XA[1] + 8]
WD = lambda k: 40 + 4 * k
PQ = lambda i, h: AC(2 * h, i)
PP = lambda p, f: ((XA[2], XA[2] + 8), (ACC(4, 0), ACC(6, 0)), (ACC(5, 0), ACC(7, 0)))[p - 1][f >> 1] + 4 * (f & 1)
VFL, VPO, GG, VOUT, SEL0 = 2, 3, 94, 4, 88
slot2 = lambda m: ((m + 2) % NSL) * P2SLOT


def ord_table(g, lo, tmp=None):
    pk = lambda o: sum(x << (4 * k) for k, x in enumerate(o))
    g.a(f"s_mov_b32 s{lo}, {hex(pk(ORD) & 0xffffffff)}\ns_mov_b32 s{lo+1}, {hex(pk(ORD) >> 32)}")
    for t8, own in {1: (1,), 2: (2, 3), 3: (4, 5), 4: (7,), 5: (8,), 6: (9, 10), 7: (11, 12)}.items():
        o = list(own) + [x for x in ORD if x not in own]
        g.a(f"s_cmp_eq_u32 s{S_CB}, {t8 ^ g.o['cbx']}\ns_cselect_b32 s{lo}, {hex(pk(o) & 0xffffffff)}, s{lo}\ns_cselect_b32 s{lo+1}, {hex(pk(o) >> 32)}, s{lo+1}")


def line_ops(n):
    return [f"s_bfe_u32 s54, s{4+n//8}, {hex((4<<16) | (4*(n%8)))}", "s_lshl_b32 s54, s54, 17", "s_add_u32 s54, s54, s46", "s_add_u32 s53, s54, 4096"]


def c_wread(n):
    u, j = n // 8, JORD[n % 8]
    return [(('W', n), f"ds_read_b64_tr_b16 v[{WB(n)+2*w}:{WB(n)+2*w+1}], v{VW2} offset:{((j>>2)*2+(u&1))*UNIT + (j&3)*32 + w*256}") for w in range(2)]


def c_loads(u, vm):
    o = []
    if u % 2 == 0: o += line_ops(u // 2)
    for i in range(4):
        o.append((f"buffer_load_dwordx4 {vr(AB(u,i))}, v{VA1 if i>>1 else VA0}, {W}, s{53 if i&1 else 54} offen offset:{(u&1)*2048} {HF[1]}", vm, ('A', u)))
    return o


def u_base(v):
    return slot2(NS + v % 4) + (2 * UNIT if v % 8 < 4 else 0) if v < 16 else slot2(NS + 4 + (v - 16) // 2) + (v & 1) * 2 * UNIT


def u_reads(v):
    return [(('U', v, k & 3), f"ds_read_b64_tr_b16 v[{WD(k)+2*w}:{WD(k)+2*w+1}], v{VWD} offset:{(k>>2)*UNIT + (k&3)*32 + w*256}") for k in (4, 0, 5, 1, 6, 2, 7, 3) for w in range(2)]


def u_areg(v, kk, mi):
    if v >= 16: return ADP[2 * (v - 16) + kk] + 4 * mi
    return (XA if v < 8 else [8] + XA[:3])[v % 4] + 8 * kk + 4 * mi


def u_loads(v, vm):
    if v < 16:
        sb, ln = (46, ORD[NS + v % 4]) if NS + v % 4 < 14 else (45, ND + NS + v % 4 - 14)
        o = [f"s_add_u32 s54, s{sb}, {ln<<17}", f"s_add_u32 s53, s{sb}, {(ln<<17)+4096}"]
    else: o = [f"s_mov_b32 s54, {OREG+((v-16)<<17)}", f"s_mov_b32 s53, {OREG+((v-16)<<17)+4096}"]
    for kk in range(2):
        for mi in range(2): o.append((f"buffer_load_dwordx4 {vr(u_areg(v,kk,mi))}, v{VA1 if v < 8 else VA0}, {W}, s{54-mi} offen offset:{kk*2048} {HF[1] if v < 16 and v % 4 < 2 else 'sc1'}", vm, ('B', v, kk)))
    return o


class Stage:
    def __init__(self, g, q, extra, dens):
        self.g = g; self.q = list(q); self.extra = extra; self.dens = dens; self.carry = 0
    def a(self, x):
        self.g.a(x); self.g.st['since'] += 1
    def wait(self, key):
        need = [k for k, e in enumerate(self.q) if key is None or e == key]
        if need:
            n = min(14, len(self.q) - 1 - max(need))
            self.a(f"s_waitcnt lgkmcnt({n})"); self.q = self.q[len(self.q) - n:]
    def read(self, r):
        self.a(r[1]); self.q.append(r[0])
    def op(self, x):
        if isinstance(x, tuple): x[1].op(x[0], x[2]); self.g.st['since'] += 1
        else: self.a(x)
    def fill(self, used):
        ex, st = self.extra, self.g.st
        while used < self.dens and ex:
            if isinstance(ex[0], int):
                if st['since'] >= ex[0]: ex.pop(0); continue
                return
            if ex[0] == 'XW':
                if 'x' in self.q: return
                ex.pop(0); continue
            x = ex.pop(0)
            if callable(x): x(); used += 2; st['since'] = 0; continue
            if isinstance(x, tuple): x[1].op(x[0], x[2]); x = x[0]
            else: self.g.a(x)
            if x.startswith("ds_"): self.q.append('x')
            st['since'] = 0
            used = 0 if x.startswith("v_mfma") else used + (2 if x.startswith(("v_exp", "v_rcp")) else 1)


def c_slab(g, u, vm, q, extra=None, dens=2, own=False):
    S = Stage(g, q, extra, dens)
    UL = 2 * NS - 1
    ld = c_loads(u + 3, vm) if u < 4 else u_loads(2, vm) if u == UL else []
    pr = p_wread(0) + p_wread(1)[:2] if u == 3 else []
    dr = u_reads(0) if u == UL else []
    if u == 0: ld = [] if own else c_loads(2, vm) + ld
    ab = (lambda i: 40 + 16 * (u - 2) + 4 * i) if own and u in (2, 3) else (lambda i: AB(u, i))
    late = own and u == 1
    vm.wait(('A', u))
    for jj in range(8):
        n = 8 * u + jj
        R = [] if n + 3 >= 16 * NS else c_wread(n + 3) if (n + 3 < 32 or u > 3) else [pr.pop(0), pr.pop(0)]
        for k, i in enumerate(range(4) if jj % 2 == 0 else range(3, -1, -1)):
            S.wait(('W', n))
            S.a(mfma(ACC(JORD[jj], i), WB(n), ab(i), "0" if u == 0 else None))
            used = 1 if k == 3 else 0
            if R: S.read(R.pop(0)); used += 1
            if u % 2 == 1 and u < UL and jj == 4 and k == 2:
                S.a(f"v_add_u32 v{VW2}, {(slot2(u//2+1)-slot2(u//2)) & 0xffffffff}, v{VW2}"); used += 1
                if u // 2 + 1 not in g.o['sk']: S.a("s_barrier"); used = 2
            elif u == UL and jj == 1 and k == 2:
                S.a(f"v_add_u32 v{VWD}, {(u_base(0)-slot2(NS-1)) & 0xffffffff}, v{VW2}"); S.a("s_barrier"); used = 2
            elif dr and jj >= 2 and used < 2 and (k >= 2 or jj >= 5):
                S.read(dr.pop(0)); used += 1
            if ld and used < 2 and (((jj >= 5 and k in (1, 2)) if late else k in (1, 2) if u == 0 else (k == 2 and (jj % 2 == g.o['aspread'] - 1 or not g.o['aspread'] or (u % 2 == 1 and jj == 5))) if u < UL else ((jj >= 2 or NA > 2) and k < 2)) or isinstance(ld[0], str)):
                S.op(ld.pop(0)); used += 1
            S.fill(used)
    assert not ld and not dr
    return S.q


def p_wread(gi):
    j = JORD[gi % 8]
    return [(('P', gi, kk), f"ds_read_b64_tr_b16 v[{WP(gi)+4*kk+2*w}:{WP(gi)+4*kk+2*w+1}], v{VW2} offset:{((j>>2)*2+kk)*UNIT + (j&3)*32 + w*256}") for kk in range(2) for w in range(2)]


def c_pair(g, n, vm, q, extra=None, dens=2):
    S = Stage(g, q, extra, dens)
    ld = (c_loads(7, vm) if n == 2 else []) + (c_loads(2 * n + 4, vm) + c_loads(2 * n + 5, vm) if n < 10 else u_loads(0, vm) + u_loads(1, vm))
    vm.wait(('A', 2 * n), ('A', 2 * n + 1))
    for jj in range(8):
        gi = 8 * (n - 2) + jj
        R = (p_wread(1)[2:] if gi == 0 else []) + (p_wread(gi + 2) if gi + 2 < 72 else c_wread(176) + c_wread(177) if gi == 70 else c_wread(178))
        k = 0
        for i in (range(4) if jj % 2 == 0 else range(3, -1, -1)):
            for kk in ((0, 1) if k % 4 == 0 else (1, 0)):
                S.wait(('P', gi, 1))
                S.a(mfma(ACC(JORD[jj], i), WP(gi) + 4 * kk, AB(2 * n + kk, i)))
                used = 1 if k == 7 else 0
                if R: S.read(R.pop(0)); used += 1
                if jj == 5 and k == 5:
                    S.a(f"v_add_u32 v{VW2}, {(slot2(n+1)-slot2(n)) & 0xffffffff}, v{VW2}"); used += 1
                    if n + 1 not in g.o['sk']: S.a("s_barrier"); used = 2
                if ld and used < 2 and (k in g.o['pk'] or isinstance(ld[0], str)):
                    S.op(ld.pop(0)); used += 1
                S.fill(used)
                k += 1
        assert not R
    assert not ld
    return S.q


def unit(g, v, vm, q, extra, dens=2):
    S = Stage(g, q, extra, dens)
    R = u_reads(v + 1) if v < 15 + ND else []
    t = {0: 3, 2: 8, 5: 9, 6: 10, 7: 11}
    for n, w in enumerate(g.o['dld']):
        assert w >= (8, 8, 8, 10, 12, 13, 14, 15)[n]
        t[w] = 16 + n
    t = t.get(v)
    ld = u_loads(t, vm) if t is not None else []
    m = 0
    vm.wait(('B', v, 0), ('B', v, 1))
    for s in range(4):
        for kk, mi in (((0, 0), (1, 0), (1, 1), (0, 1)) if s % 2 == 0 else ((0, 1), (1, 1), (1, 0), (0, 0))):
            S.wait(('U', v, s))
            acc = ACC((4 if v % 8 < 4 else 0) + s, mi + (2 if v < 8 else 0)) if v < 16 else ACC(s, mi)
            S.a(mfma(acc, WD(4 * kk + s), u_areg(v, kk, mi)))
            used = 1 if m % 4 == 3 else 0
            if R and m == 0:
                S.a(f"v_add_u32 v{VWD}, {(u_base(v+1)-u_base(v)) & 0xffffffff}, v{VWD}"); used += 1
                if v in (3, 12, g.o['r1']): S.a("s_barrier"); used += 1
            elif R and m >= 2:
                S.read(R.pop(0)); used += 1
                if m >= 14: S.read(R.pop(0)); used += 1
            if ld and m in (1, 2, 4, 6, 9, 13):
                S.op(ld.pop(0)); used += 1
            S.fill(used)
            m += 1
    assert not R and not ld
    return S.q


def spaced(lst, n):
    o = []
    for x in lst: o += [x, n]
    return o


def strs(ex):
    return [x for x in ex if not isinstance(x, int)]


def compute(g):
    a = g.a
    a("L_compute:")
    a("v_and_b32 v4, 15, v0\nv_lshrrev_b32 v5, 4, v0")
    a("v_bfe_u32 v6, v4, 3, 1\nv_bfe_u32 v7, v4, 1, 1\nv_lshl_add_u32 v6, v6, 1, v7")
    a(f"v_mul_u32_u24 v{VX}, {BLK}, v6")
    a("v_bfe_u32 v6, v4, 2, 1\nv_and_b32 v7, 1, v4\nv_lshl_add_u32 v6, v6, 1, v7")
    a(f"v_lshl_add_u32 v{VX}, v6, 7, v{VX}\nv_lshl_add_u32 v{VX}, v5, 4, v{VX}")
    a(f"s_mul_i32 s45, s{S_WAVE}, {2*UNIT}\nv_add_u32 v{VX}, s45, v{VX}")
    a("v_and_b32 v6, 1, v5\nv_bfe_u32 v7, v4, 3, 1\nv_lshl_add_u32 v6, v6, 1, v7")
    a(f"v_mul_u32_u24 v{VW}, {BLK}, v6")
    a("v_lshrrev_b32 v6, 1, v5\nv_bfe_u32 v7, v4, 2, 1\nv_lshl_add_u32 v6, v6, 2, v7")
    a(f"v_lshl_add_u32 v{VW}, v6, 7, v{VW}\nv_and_b32 v6, 3, v4\nv_lshl_add_u32 v{VW}, v6, 3, v{VW}")
    a(f"v_add_u32 v{VW}, {WBASE}, v{VW}")
    a(f"v_lshrrev_b32 v6, 5, v0\nv_and_b32 v7, 31, v0\nv_lshlrev_b32 v7, 3, v7\nv_lshl_add_u32 v{VQ}, v6, 9, v7")
    a(f"v_add_u32 v{VQ}, {WBASE+3*UNIT}, v{VQ}")
    for r in range(48, 256, 2): a(f"v_mov_b64 v[{r}:{r+1}], 0")
    a(f"s_mov_b32 s45, 7\ns_mov_b32 s46, 0\ns_mov_b32 s48, {(-2*XSLOT) & 0xffffffff}\ns_mov_b32 s49, {XSLOT}")
    a("s_mov_b32 s50, 0x3fb8aa3b\ns_mov_b32 s51, 0x358637bd")
    a(f"s_and_b32 s52, s{S_MB8}, 3\ns_lshl_b32 s52, s52, 21\ns_lshl_b32 s53, s{S_WAVE}, 15\ns_add_u32 s52, s52, s53")
    a(f"s_and_b32 s53, s{S_QD}, 1\ns_mul_i32 s53, s53, 7\ns_lshl_b32 s55, s32, 6\ns_add_u32 s53, s53, s55")
    a(f"s_add_u32 s66, s53, 6\ns_lshl_b32 s66, s66, 17\ns_add_u32 s66, s66, s52")
    a(f"s_lshr_b32 s55, s{S_C}, 1\ns_lshl_b32 s55, s55, 11\ns_add_u32 s66, s66, s55")
    a(f"s_and_b32 s55, s{S_C}, 1\ns_lshl_b32 s55, s55, 10\ns_add_u32 s66, s66, s55")
    a("s_add_u32 s67, s66, 16384")
    a(f"s_lshr_b32 s57, s{S_WAVE}, 1\ns_and_b32 s58, s{S_WAVE}, 1")
    a(f"s_lshl_b32 s59, s2, 11\ns_lshl_b32 s55, s{S_WAVE}, 7\ns_add_u32 s59, s59, s55\ns_add_u32 s59, s59, {WS_FLAG}")
    a(f"s_add_u32 s60, s59, {F_H2}\ns_add_u32 s61, s59, {F_X}")
    a("v_lshlrev_b32 v4, 4, v0\nv_mov_b32 v6, 1")
    lane_goodcol(g, 7, 5)
    a("s_waitcnt lgkmcnt(0)")
    srd(g, SRD_WS, 26, 0x10000000)
    ord_table(g, 4)
    a(f"s_lshl_b32 s6, s{S_RH}, 14\ns_xor_b32 s7, s6, 16384\ns_add_u32 s6, s6, s52\ns_add_u32 s7, s7, s52\ns_lshl_b32 s8, s32, 23\ns_mul_i32 s9, s32, {NA<<17}\ns_add_u32 s9, s9, {OREG}")
    a(f"s_lshl_b32 s16, s{S_WAVE}, 13\ns_lshl_b32 s17, s{S_WAVE}, 10\ns_add_u32 s17, s17, {P2END}")
    if g.o.get('prio'): a(f"s_setprio {g.o['prio']}")
    a("s_waitcnt vmcnt(0)\ns_barrier")
    g.stamp(1)

    def em(lst):
        for x in lst: a(x)
    def p2_setup():
        a(f"v_add_u32 v{VA0}, s6, v7\nv_add_u32 v{VA1}, s7, v7\ns_mov_b32 s46, s8\ns_mov_b32 s45, s9\nv_add_u32 v{VW2}, {(slot2(0)-WBASE) & 0xffffffff}, v{VW2}")
    def moves(dst, tile):
        l0, l1 = g.lab("mv"), g.lab("mv")
        f = lambda x: "\n".join(f"v_mov_b64 v[{d+4*i+r}:{d+4*i+r+1}], v[{AC(t,i^x)+r}:{AC(t,i^x)+r+1}]" for d, t in zip(dst, tile) for i in range(4) for r in (0, 2))
        return [f"s_cmp_lg_u32 s{S_RH}, 0\ns_cbranch_scc1 {l0}\n{f(0)}\ns_branch {l1}\n{l0}:\n{f(2)}\n{l1}:"]
    def c_begin(vm, mv=()):
        g.stamp(4)
        a("s_waitcnt lgkmcnt(0)")
        em(mv)
        a("s_barrier")
        g.stamp(5)
        R = c_wread(0) + c_wread(1) + c_wread(2)
        for _, x in R: a(x)
        return [k for k, _ in R]
    def flag_ex(vm, tag, so):
        return lambda: (vm.wait(tag), a(flagops(6, so)), vm.mark('f', 1))
    def quarter(tmp):
        o = [f"v_bfe_u32 v{VQ}, v0, 4, 1", f"v_mul_u32_u24 v{VQ}, 3584, v{VQ}", f"v_lshrrev_b32 v{tmp}, 5, v0", f"v_lshlrev_b32 v{tmp}, 9, v{tmp}",
             f"v_sub_u32 v{VQ}, v{VQ}, v{tmp}", f"v_add_u32 v{VQ}, v{VQ}, v7"]
        for p in (1, 0):
            d = AC(12, 2 * p)
            o += h_cvt(d, d, d + 4)
        for p in (1, 0):
            d = AC(12, 2 * p)
            o += [f"s_nop 1\nv_permlane16_swap_b32 v{d}, v{d+2}", f"v_permlane16_swap_b32 v{d+1}, v{d+3}",
                  f"buffer_store_dwordx4 {vr(d)}, v{VQ}, {W}, s{66+p} offen {HF[0]}"]
        return o

    a(f"s_cmp_ge_u32 s{S_C}, 2\ns_cbranch_scc1 L_cq")
    a(f"s_add_u32 s55, s53, s{S_C}\ns_lshl_b32 s55, s55, 17\ns_add_u32 s55, s55, s52")
    p1_loop(g, True)
    SEL = lambda t: 224 + 4 * t
    T = lambda t: (176 + 4 * t) if t < 4 else (240 + 4 * (t - 4)) if t < 8 else 204
    ex2 = ["v_and_b32 v201, 3, v0", "v_mov_b32 v202, 0x3f803f80"]
    for t in range(4):
        ex2 += [f"v_cmp_eq_u32 vcc, {t}, v201\ns_nop 1\nv_cndmask_b32 v{SEL(t)}, 0, v202, vcc"] + [f"v_mov_b32 v{SEL(t)+r}, v{SEL(t)}" for r in (1, 2, 3)]
    ex2 += quarter(200)
    for s_ in range(4):
        for p in range(2):
            ex2 += phi_regs(list(range(AC(s_, 2 * p), AC(s_, 2 * p) + 8)), 192, 2 * s_ + p >= g.o.get('pk0', 2)) + pack8(AC(s_, 2 * p), AC(s_, 2 * p + 1))
        if s_ == 1: ex2.append(None)
    rest = p1_tail(g, True, h_line_store(8, 55), ex2, flagops(6, 59))
    g.stamp(2)
    k = rest.index(None)
    em(rest[:k]); rest = rest[k + 1:]
    em(moves((24,), (8,)))
    for s_ in range(4, 8):
        for p in (1, 0): em(pack8(AC(s_, 2 * p), AC(s_, 2 * p + 1)))
    def kv_mfmas(h):
        o = []
        for p in range(2):
            for dt in range(2):
                for e in range(2): o.append(mfma(T((h * 2 + e) * 2 + dt), AC(2 * h + dt, 2 * p), AC(4 + 2 * h + e, 2 * p), "0" if p == 0 else None))
                o.append(mfma(T(8), AC(2 * h + dt, 2 * p), SEL(2 * h + dt), "0" if (h, p, dt) == (0, 0, 0) else None))
        return o
    wr = lambda t: f"ds_write_b128 v5, {vr(T(t))} offset:{t*1024}"
    a("v_add_u32 v5, s16, v4\ns_waitcnt vmcnt(0)")
    a(flagops(6, *((60,) if g.o['fpos'] < 64 else (59, 60))))
    for x in kv_mfmas(0):
        a(x); em(rest[:3]); rest = rest[3:]
    vm = VM(a)
    for t in range(4): em(rest[:10]); rest = rest[10:]; a(wr(t))
    em(moves((112,), (10,))); em(rest)
    a("s_nop 1")
    em(kv_mfmas(1))
    p2_setup()
    a("v_add_u32 v88, s17, v4\ns_nop 0")
    for t in (4, 6, 5, 7): a(wr(t))
    a(f"ds_write_b128 v88, {vr(T(8))}")
    g.stamp(3)
    q = c_begin(vm)
    JU = 4
    for u in range(JU): q = c_slab(g, u, vm, q)
    qj, vj = list(q), list(vm.q)
    a("s_branch L_c2join")
    a("L_cq:")
    a(f"s_lshl_b32 s55, s{S_C}, 1\ns_add_u32 s55, s55, s53\ns_sub_u32 s55, s55, 2\ns_lshl_b32 s55, s55, 17\ns_add_u32 s55, s55, s52")
    a("s_add_u32 s62, s55, 0x20000")
    p1_loop(g, False)
    b2 = quarter(AC(5, 0)) + [x for x in h_line_store(8, 62) if x.startswith("v_")]
    mv = moves((40, 56), (8, 10))
    late2 = [f"buffer_store_dwordx4 {vr(40+16*p+4*i)}, v{VA1 if i>>1 else VA0}, {W}, s{63 if i&1 else 62} offen offset:{p*2048} {HF[0]}" for p in range(2) for i in range(4)]
    em(p1_tail(g, False, h_line_store(4, 55), b2, flagops(6, 59)))
    g.stamp(2)
    vm = VM(a, ['h2'])
    hand_q = []
    for h in range(2):
        for i in (2, 3, 0, 1): hand_q.append(pack8(AC(2 * h, i), AC(2 * h + 1, i)) + [f"ds_write_b128 v5, {vr(PQ(i,h))} offset:{(i*2+h)*1024}"])
    a(f"s_lshl_b32 s55, s{S_WAVE}, 13\nv_add_u32 v5, s55, v4")
    phg = g.o.get('phig', 4)
    for x in hand_q: em(x)
    p2_setup()
    a("s_sub_u32 s62, s62, s52\ns_add_u32 s63, s62, 4096")
    em(moves((24, 112), (4, 6)))
    g.stamp(3)
    q = c_begin(vm, mv + (["s_waitcnt vmcnt(0)\n" + flagops(6, 59)] if g.o['fpos'] >= 64 else []))
    ex = []
    for x in late2: ex += [(x, vm, 'h2'), g.o['st2sp']]
    for u in range(JU): q = c_slab(g, u, vm, q, ex, own=True)
    ex = strs(ex)
    qq = [x for x in vm.q if x not in ('f', 'h2')]
    assert not ex and q == qj and qq == vj[len(vj) - len(qq):]
    a("L_c2join:")
    vm.q = list(vj)
    pre = (inbox(68, 56, S_WAVE) +
           "".join(f"s_xor_b32 s{61+p}, s68, {hex(p<<18)}\ns_add_u32 s{61+p}, s{61+p}, {WS_PART+((p-1)<<16)}\ns_add_u32 s{64+p}, s{61+p}, 4096\n" for p in (1, 2, 3)) +
           f"s_add_u32 s59, s59, {F_P}\ns_lshl_b32 s68, s{S_WAVE}, 12\ns_add_u32 s68, s68, {P2END}\n"
           f"s_add_u32 s69, s{S_WAVE}, {NS+2}\ns_and_b32 s69, s69, {NSL-1}\ns_mul_i32 s69, s69, {P2SLOT}\ns_add_u32 s69, s69, {2*UNIT}\n"
           f"s_mov_b32 s28, s18\ns_mov_b32 s29, s19\ns_mov_b32 s30, {hex(2048*1024*2)}\ns_mov_b32 s31, 0x20000\n"
           f"s_lshl_b32 s55, s{S_MB8}, 2\ns_add_u32 s55, s55, s{S_WAVE}\ns_lshl_b32 s55, s55, 17\ns_lshl_b32 s56, s{S_RH}, 16\ns_add_u32 s55, s55, s56\n"
           f"s_lshl_b32 s56, s{S_CB}, 8\ns_add_u32 s55, s55, s56\ns_lshl_b32 s56, s{S_KH}, 7\ns_add_u32 s55, s55, s56\n"
           f"s_lshl_b32 s50, s{S_WAVE}, 1\ns_add_u32 s50, s50, s{S_RH}\ns_lshl_b32 s50, s50, 7\ns_add_u32 s50, s50, {LDS_G}\n"
           f"v_and_b32 v{SEL0+6}, 15, v0\nv_lshrrev_b32 v{SEL0+7}, 4, v0\nv_lshlrev_b32 v{SEL0+7}, 2, v{SEL0+7}\nv_sub_u32 v{SEL0+6}, v{SEL0+6}, v{SEL0+7}\n"
           f"v_and_b32 v{SEL0+7}, 1, v0\nv_lshlrev_b32 v{SEL0+7}, 4, v{SEL0+7}\nv_mov_b32 v{SEL0}, 0x3f80\nv_lshlrev_b32 v{SEL0+7}, v{SEL0+7}, v{SEL0}\nv_lshrrev_b32 v{SEL0+6}, 1, v{SEL0+6}").split("\n")
    pre += [f"v_cmp_eq_u32 vcc, {k}, v{SEL0+6}\ns_nop 1\nv_cndmask_b32 v{SEL0+2+k}, 0, v{SEL0+7}, vcc" for k in range(2)]
    pre += [f"v_mov_b32 v{SEL0+r}, 0" for r in (0, 1, 4, 5)]
    ex = [x for x in pre if x.startswith("s_")]
    for n in range(2, NS - 1):
        if n == 3:
            vm.wait(('A', 7)); a(flagops(6, 60)); vm.mark('f', 1)
        q = c_pair(g, n, vm, q, ex)
    assert not ex
    ex = [x for x in pre if not x.startswith("s_")]
    for u in (2 * NS - 2, 2 * NS - 1): q = c_slab(g, u, vm, q, ex)
    def send(p, sp, mi):
        j, i = 4 * (p >> 1) + 2 * sp, 2 * (p & 1) + mi
        return pack8(ACC(j, i), ACC(j + 1, i)) + [(f"buffer_store_dwordx4 {vr(ACC(j,i))}, v7, {W}, s{61+p+3*mi} offen offset:{sp*2048} sc1", vm, ('ps', p))]
    def rdp(p):
        return [f"ds_read_b128 {vr(PP(p,f))}, v{VFL if p == 3 else VPO} offset:{(4096 if p == 2 else 0)+f*1024}" for f in range(4)]
    def addp(p):
        return [mfma(ACC(2 * sp + t, mi), SEL0 + 2 - 2 * t, PP(p, mi * 2 + sp)) for mi in range(2) for sp in range(2) for t in range(2)]
    XF = g.o['xf']
    PO = (3, 1, 2)
    for v in range(17 + ND):
        if v == 1:
            assert not ex
            ex += (f"v_add_u32 v{VFL}, s68, v4\nv_add_u32 v{VPO}, s69, v4\nv_and_b32 v{VOUT}, 15, v0\nv_lshl_add_u32 v{GG}, v{VOUT}, 2, s50\n"
                   f"v_lshlrev_b32 v{VOUT}, 11, v{VOUT}\nv_bfe_u32 v{GG+1}, v0, 4, 1\nv_lshl_add_u32 v{VOUT}, v{GG+1}, 5, v{VOUT}\n"
                   f"v_lshrrev_b32 v{GG+1}, 5, v0\nv_lshl_add_u32 v{VOUT}, v{GG+1}, 4, v{VOUT}\n"
                   f"ds_read_b32 v{GG+1}, v{GG} offset:64\nds_read_b32 v{GG}, v{GG}").split("\n")
            ex += ['XW', f"v_add_f32 v{GG}, 1.0, v{GG}", f"v_add_f32 v{GG+1}, 1.0, v{GG+1}", f"v_rcp_f32 v{GG}, v{GG}", f"v_rcp_f32 v{GG+1}, v{GG+1}"]
        if 4 <= v < 16:
            if v % 4 == 0:
                snd = [send(PO[v // 4 - 1], sp, mi) for sp in range(2) for mi in range(2)]
                g.st['since'] = 0; ex.append(6)
            if v >= 12 and g.o.get('fast2', 1):
                if v % 4 < 2: ex += snd[2 * (v % 4)] + snd[2 * (v % 4) + 1]
            elif v % 4 < 2: ex += snd[2 * (v % 4)][:4] + [snd[v % 4][4]] + snd[2 * (v % 4) + 1][:4]
            else: ex += [snd[v % 4][4]]
        if v == 16: g.stamp(6)
        if v == g.o['r1'] + 1: g.stamp(3)
        if v == 14: g.stamp(4)
        if v in (0, 4, 8, 12, 20): g.stamp({0: 11, 4: 12, 8: 13, 12: 14, 20: 15}[v])
        for r in range(3):
            if v == XF[r]:
                assert v >= (8, 12, 14 if g.o.get('fast2', 1) else 16)[r]
                vm.wait(('ps', PO[r])); a(flagops(6, 59)); vm.mark('f', 1); a(f"v_mov_b32 v6, {r+2}")
        if v == g.o['r1']:
            assert v >= 16 and not ex
            g.st['since'] = 0
            ex += [4] + rdp(3) + rdp(1) + ['XW'] + addp(3) + addp(1)
        if v < 16 + ND: q = unit(g, v, vm, q, ex, dens=g.o.get('ydens', 3) if v < 16 else g.o.get('ddens', 3))
        if 4 <= v < 16: assert not [x for x in ex if (isinstance(x, tuple) and x[2][0] == 'ps') or (isinstance(x, str) and x.startswith("v_cvt"))]
    assert not ex
    g.stamp(9)
    a("s_barrier")
    g.stamp(10)
    if g.o['r1'] == 99:
        em(rdp(3) + rdp(1) + rdp(2))
        for k, p in enumerate((3, 1)):
            ad = addp(p)
            for f in range(4): a(f"s_waitcnt lgkmcnt({11-4*k-f})"); em(ad[2 * f:2 * f + 2])
    else: em(rdp(2))
    ad = addp(2)
    for f in range(4): a(f"s_waitcnt lgkmcnt({3-f})"); em(ad[2 * f:2 * f + 2])
    g.stamp(7)
    for mi in range(2):
        for hf in range(2):
            for j in range(2):
                for r in range(0, 4, 2): a(f"v_pk_mul_f32 v[{ACC(2*hf+j,mi)+r}:{ACC(2*hf+j,mi)+r+1}], v[{ACC(2*hf+j,mi)+r}:{ACC(2*hf+j,mi)+r+1}], v[{GG}:{GG+1}] op_sel:[0,{mi}] op_sel_hi:[1,{mi}]")
            d = ACC(2 * hf, mi)
            em(pack8(d, ACC(2 * hf + 1, mi)))
            a(f"s_add_u32 s56, s55, {0x8000*mi + 64*hf}\ns_nop 0\nv_permlane16_swap_b32 v{d}, v{d+2}\nv_permlane16_swap_b32 v{d+1}, v{d+3}")
            a(f"buffer_store_dwordx4 {vr(d)}, v{VOUT}, s[28:31], s56 offen {g.o.get('outflag','')}")
    if g.o['prof']:
        a("s_waitcnt vmcnt(0)")
        g.stamp(8)
    if g.o.get('probe') is not None:
        k = g.o['probe']
        if k == 'xcc':
            k = 0
            a("s_waitcnt lgkmcnt(0)\ns_getreg_b32 s55, hwreg(HW_REG_XCC_ID)\ns_sub_u32 s55, s55, s2\ns_and_b32 s55, s55, 7\ns_mul_i32 s55, s55, 500\ns_add_u32 s70, s70, s55")
        if k == 'min':
            k = 0
            srd(g, 28, 24, 256)
            a("buffer_load_dword v5, off, s[28:31], 0 offset:4 sc1\ns_waitcnt vmcnt(0) lgkmcnt(0)\nv_readfirstlane_b32 s70, v5\ns_nop 3\ns_not_b32 s70, s70")
        a(f"s_waitcnt lgkmcnt(0)\ns_add_u32 s55, s{70+2*k}, 6000\nL_probe:\ns_memrealtime s[56:57]\ns_waitcnt lgkmcnt(0)\ns_sub_u32 s56, s56, s55\ns_cmp_lt_i32 s56, 0\ns_cbranch_scc1 L_probe\ns_endpgm")
    prof_dump(g, 0, 0)
    a("s_endpgm")


def q_call(g, n):
    K1 = g.o['k1']
    k = f"p{n}" if n < len(g.o['pch']) else 4 + n - K1 if K1 <= n <= K1 + g.o['noc'] else None
    if k is None: return
    l = g.lab("qc")
    if n == 0: g.a("s_call_b64 s[84:85], L_qp0"); return
    g.a(f"s_cmp_lt_u32 s{S_C}, 2\ns_cbranch_scc1 {l}\ns_call_b64 s[84:85], L_q{k}\n{l}:")


def q_chunks(g):
    a = g.a
    QR = lambda f: 128 + 4 * f
    def phi(f):
        if g.o.get('nophi'): return
        for r in range(4): a(f"v_lshlrev_b32 v{160+2*r}, 16, v{QR(f)+r}\nv_and_b32 v{161+2*r}, 0xffff0000, v{QR(f)+r}")
        for r in range(8): a(f"v_mul_f32 v{168+r}, 0x3fb8aa3b, v{160+r}")
        for r in range(8): a(f"v_exp_f32 v{168+r}, v{168+r} clamp\nv_max_f32 v{160+r}, 0x358637bd, v{160+r}")
        for r in range(8): a(f"v_add_f32 v{160+r}, v{160+r}, v{168+r}")
        for r in range(4): a(f"v_cvt_pk_bf16_f32 v{QR(f)+r}, v{160+2*r}, v{161+2*r}")
    nf = 0
    assert sum(g.o['pch']) == 8 and len(g.o['pch']) <= g.o['k0']
    a("L_k0:\ns_setprio 2")
    a(f"s_lshl_b32 s82, s86, 11\nv_lshl_add_u32 v224, v0, 4, s82\nv_lshlrev_b32 v225, 4, v0\nv_add_u32 v226, {P2END}, v225")
    for w in range(4):
        for t in range(2): a(f"ds_read_b128 {vr(128+8*w+4*t)}, v224 offset:{w*8192+t*1024}")
    for w in range(4): a(f"ds_read_b128 {vr(160+4*w)}, v226 offset:{w*1024}")
    a(f"s_lshl_b32 s83, s{S_PAIR}, 3\ns_add_u32 s83, s83, s{S_MB8}\ns_mul_i32 s83, s83, 9216\ns_add_u32 s83, s83, {WS_KVP}\ns_add_u32 s82, s82, s83")
    a("s_add_u32 s83, s83, 8192\ns_cmp_eq_u32 s86, 0\ns_cselect_b32 s83, s83, 0x10000000\ns_waitcnt lgkmcnt(4)")
    for r in range(16): a(f"v_add_f32 v{128+r}, v{128+r}, v{144+r}")
    for r in range(8): a(f"v_add_f32 v{128+r}, v{128+r}, v{136+r}")
    for t in range(2): a(f"buffer_store_dwordx4 {vr(128+4*t)}, v225, {W}, s82 offen offset:{t*1024} sc1")
    a("s_waitcnt lgkmcnt(0)")
    for r in range(8): a(f"v_add_f32 v{160+r}, v{160+r}, v{168+r}")
    for r in range(4): a(f"v_add_f32 v{160+r}, v{160+r}, v{164+r}")
    a(f"buffer_store_dwordx4 v[160:163], v225, {W}, s83 offen sc1\ns_setprio 0\ns_setpc_b64 s[84:85]")
    for k in range(len(g.o['pch'])):
        a(f"L_qp{k}:")
        if k == 0: a(f"s_sub_u32 s86, s{S_WAVE}, 4\ns_cmp_lt_u32 s{S_C}, 2\ns_cbranch_scc1 L_k0")
        if g.o.get('pprio'): a(f"s_setprio {g.o['pprio']}")
        if k == 0:
            a(f"s_sub_u32 s86, s{S_WAVE}, 4\ns_lshl_b32 s82, s86, 13\nv_lshl_add_u32 v224, v0, 4, s82")
            for f in range(8): a(f"ds_read_b128 {vr(QR(f))}, v224 offset:{f*1024}")
            a(f"s_lshl_b32 s83, s2, 11\ns_add_u32 s83, s83, {WS_FLAG+F_X}\ns_xor_b32 s83, s83, s79")
            a(f"s_and_b32 s82, s{S_MB8}, 3\ns_lshl_b32 s82, s82, 4\ns_add_u32 s82, s82, s{S_PAIR}\ns_lshl_b32 s82, s82, 2\ns_add_u32 s82, s82, s86\ns_lshl_b32 s82, s82, 15\ns_add_u32 s82, s82, {OREG}")
            a(f"v_lshlrev_b32 v224, 4, v0\nv_add_u32 v224, {P2END}, v224\nv_mov_b32 v226, 0\nds_write_b32 v224, v226 offset:8192\nv_mov_b32 v226, 1\ns_waitcnt lgkmcnt(0)")
        for _ in range(g.o['pch'][k]): phi(nf); nf += 1
        a("s_setpc_b64 s[84:85]")
    noc = g.o['noc']
    tiles = {2: [(0, 1), (2, 3)], 3: [(0,), (1, 2), (3,)], 4: [(0,), (1,), (2,), (3,)]}[noc]
    for k in range(noc):
        a(f"L_q{4+k}:")
        if g.o.get('qprio'): a(f"s_setprio {g.o['qprio']}")
        lane_goodcol(g, 225, 227)
        if k == 0:
            for f in range(6): a(f"ds_read_b128 {vr(176+4*f)}, v224 offset:{f*1024}")
            a(f"s_lshl_b32 s86, s{S_WAVE}, 8\ns_add_u32 s86, s86, {LDS_G-1024}\nv_and_b32 v227, 15, v0\nv_lshl_add_u32 v227, v227, 2, s86")
            for i in range(4): a(f"ds_read_b32 v{228+i}, v227 offset:{i*64}")
            a("s_waitcnt lgkmcnt(0)")
        for i in tiles[k]:
            for h in range(2):
                for e in (2, 0, 1): a(mfma(200 + 12 * h + 4 * e, 176 + 4 * (3 * h + e), QR(2 * i + h), "0"))
            a(f"s_add_u32 s86, s82, {MT(i)}\ns_nop 3")
            for h in range(2):
                t = 200 + 12 * h
                a(f"v_add_f32 v{t+8}, 0x358637bd, v{t+8}\nv_rcp_f32 v{t+8}, v{t+8}\ns_nop 0\nv_mul_f32 v{t+8}, v{228+i}, v{t+8}")
                for r in range(8): a(f"v_mul_f32 v{t+r}, v{t+r}, v{t+8}")
                for r in range(4): a(f"v_cvt_pk_bf16_f32 v{QR(2*i+h)+r}, v{t+2*r}, v{t+2*r+1}")
                a(f"buffer_store_dwordx4 {vr(QR(2*i+h))}, v225, {W}, s86 offen offset:{h*2048} sc1")
        if g.o.get('qprio'): a("s_setprio 0")
        a("s_setpc_b64 s[84:85]")
    a(f"L_q{4+noc}:\ns_waitcnt vmcnt(0)\nds_add_rtn_u32 v227, v224, v226 offset:8192\ns_waitcnt lgkmcnt(0)\nv_cmp_eq_u32 vcc, 3, v227\ns_cbranch_vccz L_qret")
    a(flagops(226, 83) + "\nL_qret:\ns_mov_b64 vcc, -1\ns_setpc_b64 s[84:85]")


def aux_sel(g):
    if g.o['pol'] is None: g.a(f"v_mov_b32 v227, {LDS_SEL}\nds_read_b32 v227, v227\ns_waitcnt lgkmcnt(0)\nv_readfirstlane_b32 s79, v227\ns_nop 1\ns_xor_b32 s{S_SEL}, s{S_SEL}, s79")
    if g.o['pol'] is not None or not g.o['nearf']: g.a("s_mov_b32 s79, 0")


def aux_rx(g):
    a = g.a
    a("L_rx:")
    lane_goodcol(g, 225, 227)
    a(f"v_add_u32 v224, 1024, v225\ns_sub_u32 s86, s{S_WAVE}, 4")
    a(inbox(82, 83, 86) + f"s_add_u32 s82, s82, {WS_PART}")
    a(f"s_lshl_b32 s83, s2, 11\ns_lshl_b32 s47, s86, 7\ns_add_u32 s83, s83, s47\ns_xor_b32 s83, s83, s79")
    a(f"s_lshl_b32 s84, s86, 12\ns_add_u32 s84, s84, {P2END}")
    a(f"s_add_u32 s85, s86, {NS+2}\ns_and_b32 s85, s85, {NSL-1}\ns_mul_i32 s85, s85, {P2SLOT}\ns_add_u32 s85, s85, {2*UNIT}")
    a("s_waitcnt vmcnt(0) lgkmcnt(0)\ns_barrier")
    for r, p in enumerate((3, 1, 2)):
        a(f"s_xor_b32 s47, s83, {p<<11}\ns_add_u32 s47, s47, {WS_FLAG+F_P}")
        iss = lambda: a(f"buffer_load_dword v226, off, {W}, s47 sc1")
        if r == 2 and g.o['r1'] != 99: a("s_waitcnt vmcnt(0)"); iss(); a("s_barrier")
        else: iss()
        poll_check(g, iss, 226, 1, r + 1, "gt")
        for mi in range(2):
            a(f"s_add_u32 m0, s{84 if p == 3 else 85}, {(4096 if p == 2 else 0)+mi*2048}\ns_add_u32 s47, s82, {((p-1)<<16)+mi*4096}")
            a(f"buffer_load_dwordx4 v225, {W}, s47 offen sc1 lds\nbuffer_load_dwordx4 v224, {W}, s47 offen offset:1024 sc1 lds")
    a("s_waitcnt vmcnt(0)\ns_endpgm")


def loader(g):
    def a(x):
        if not g.o.get('trace'): return g.a(x)
        for ln in x.split("\n"):
            g.a(ln)
            if ln.strip() == "s_barrier":
                g.a(("s_memtime" if g.o['trace'] == 'cyc' else "s_memrealtime") + " s[100:101]\ns_waitcnt lgkmcnt(0)\ns_mov_b32 m0, s44\ns_add_u32 s44, s44, 1\nv_writelane_b32 v32, s100, m0\ns_cmp_lg_u32 s44, 33\ns_cbranch_scc1 1\nv_mov_b32 v33, v32")
    if g.o.get('trace'): a("s_mov_b32 s44, 0\nv_mov_b32 v32, 0\nv_mov_b32 v33, 0")
    LW = 45
    if g.o.get('sprio'): a(f"s_setprio {g.o['sprio']}")
    a(f"s_sub_u32 s{LW}, s{S_WAVE}, 4")
    a("v_lshrrev_b32 v1, 5, v0\nv_bfe_u32 v2, v0, 4, 1\nv_lshlrev_b32 v1, 4, v1\nv_lshl_add_u32 v1, v2, 2, v1\nv_bfe_u32 v2, v0, 3, 1\nv_add_u32 v1, v1, v2")
    a(f"s_lshl_b32 s61, s{LW}, 3\nv_add_u32 v1, s61, v1\nv_and_b32 v2, 7, v0\nv_lshlrev_b32 v2, 4, v2")
    a(f"s_lshl_b32 s61, s{S_MB8}, 19\nv_lshl_add_u32 v4, v1, 11, v2\nv_add_u32 v4, s61, v4\nv_add_u32 v5, {4096-BLK}, v4")
    a(f"s_mul_i32 s66, s{LW}, {2*BLK}")
    a(f"s_mov_b32 s61, s66\ns_mov_b32 s62, 0\ns_mov_b32 s63, 0\ns_mov_b32 s64, 0\ns_add_u32 s65, s66, {WBASE}")
    a(f"s_add_u32 s67, s66, {XRING}\ns_add_u32 s68, s66, {WBASE+4*WSLOT}")
    a(f"s_lshl_b32 s69, s{LW}, 9\ns_sub_u32 s69, s69, s66\ns_add_u32 s69, s69, {3*UNIT}")
    a(f"s_mov_b32 s30, {hex(2048*1024*2)}\ns_mov_b32 s31, 0x20000\ns_mov_b32 s50, {hex(1024*3072*2)}\ns_mov_b32 s51, 0x20000")
    a(f"s_mov_b32 s58, {hex(1024*3584*2)}\ns_mov_b32 s59, 0x20000\ns_mov_b32 s55, 0x20000")
    if g.o.get('ldump'): a("s_memrealtime s[90:91]")
    a("s_waitcnt lgkmcnt(0)")
    a("s_mov_b64 s[28:29], s[4:5]\ns_mov_b64 s[48:49], s[6:7]\ns_mov_b64 s[56:57], s[12:13]")
    a(f"s_cmp_ge_u32 s{S_C}, 2")
    a("s_cselect_b64 s[52:53], s[12:13], s[6:7]\ns_cselect_b32 s54, s58, s50")

    def wsetup():
        a(f"s_movk_i32 s60, 6144\ns_cmp_ge_u32 s{S_C}, 2\ns_cselect_b32 s60, 7168, s60")
        a(f"s_cselect_b32 s82, 0, 2048\ns_lshl_b32 s83, s{S_PAIR}, 7\ns_add_u32 s82, s82, s83")
        a(f"v_mul_u32_u24 v6, 6144, v1\nv_add3_u32 v6, v6, v2, s82\nv_add_u32 v7, {12288-BLK}, v6")
        a(f"s_mul_i32 s84, s{S_QD}, 7\ns_lshl_b32 s85, s{S_C}, 1\ns_add_u32 s85, s85, s84\ns_sub_u32 s86, s85, 2\ns_lshl_b32 s86, s86, 7\ns_add_u32 s83, s83, 4096")
        a(f"s_cmp_ge_u32 s{S_C}, 2\ns_cselect_b32 s82, s86, s83")
        a(f"v_mul_lo_u32 v8, v1, s60\nv_add3_u32 v8, v8, v2, s82\ns_lshl_b32 s83, s60, 1\ns_sub_u32 s83, s83, {BLK}\nv_add_u32 v9, s83, v8")
        a(f"s_sub_u32 s85, s85, 1\ns_add_u32 s86, s84, s{S_C}\ns_cmp_ge_u32 s{S_C}, 2\ns_cselect_b32 s82, s85, s86\ns_lshl_b32 s82, s82, 7")
        a(f"v_mul_u32_u24 v10, 7168, v1\nv_add3_u32 v10, v10, v2, s82\nv_add_u32 v11, {14336-BLK}, v10")
        a("v_bfe_u32 v12, v0, 4, 1\nv_bfe_u32 v13, v0, 3, 1\nv_lshlrev_b32 v12, 2, v12\nv_lshl_add_u32 v12, v13, 3, v12\nv_bfe_u32 v13, v0, 1, 2\nv_add_u32 v12, v12, v13")
        a(f"s_lshl_b32 s82, s{LW}, 4\nv_add_u32 v12, s82, v12\nv_mul_u32_u24 v12, 7168, v12\nv_and_b32 v13, 1, v0\nv_lshl_add_u32 v12, v13, 4, v12")
        a(f"s_add_u32 s82, s84, 6\ns_lshl_b32 s82, s82, 7\ns_lshl_b32 s83, s{S_C}, 5\ns_add_u32 s82, s82, s83\nv_add_u32 v12, s82, v12")
        a("s_lshl_b32 s60, s60, 5")

    def xhalf():
        a("s_mov_b32 m0, s61\ns_add_u32 s46, s62, s63")
        for u in range(4):
            if u: a(f"s_add_u32 m0, m0, {UNIT}\ns_add_u32 s46, s46, 0x10000")
            a("buffer_load_dwordx4 v4, s[28:31], s46 offen lds")
            a(f"buffer_load_dwordx4 v5, s[28:31], s46 offen offset:{BLK} lds")
        a(f"s_add_u32 s61, s61, {4*UNIT}\ns_cmp_eq_u32 s61, s67\ns_cselect_b32 s61, s66, s61")
        a("s_xor_b32 s63, s63, 0x40000\ns_cselect_b32 s47, 0, 128\ns_add_u32 s62, s62, s47\ns_and_b32 s62, s62, 2047")

    def wslab():
        for ln, (sr, ld) in enumerate([(48, 32 * 6144), (52, "s60"), (56, 32 * 7168)]):
            a(f"s_add_u32 m0, s65, {ln*UNIT}\ns_mul_i32 s35, s64, {ld}")
            a(f"buffer_load_dwordx4 v{6+2*ln}, s[{sr}:{sr+3}], s35 offen lds")
            a(f"buffer_load_dwordx4 v{7+2*ln}, s[{sr}:{sr+3}], s35 offen offset:{BLK} lds")
        a("s_add_u32 m0, s65, s69\ns_mov_b32 exec_hi, 0")
        a("buffer_load_dwordx4 v12, s[56:59], s35 offen lds")
        a("s_mov_b32 exec_hi, -1")
        a(f"s_add_u32 s65, s65, {WSLOT}\ns_cmp_eq_u32 s65, s68\ns_cselect_b32 s65, s67, s65")
        a("s_add_u32 s64, s64, 1\ns_and_b32 s64, s64, 31")

    if not g.o.get('xfirst'): wsetup()
    g.stamp(1)
    xhalf()
    if g.o.get('xfirst') == 2: xhalf()
    if g.o.get('xfirst'): wsetup()
    wslab()
    if g.o.get('xfirst') != 2: xhalf()
    wslab(); g.stamp(2)
    if g.o.get('sprio'): a("s_setprio 0")
    a("s_waitcnt vmcnt(7)"); g.stamp(3)
    a("s_barrier")
    SM = g.o.get('smooth', 1)
    if SM:
        xhalf(); xhalf(); wslab()
        a("s_waitcnt vmcnt(23)\ns_barrier")
        wslab(); xhalf(); wslab()
        a("s_waitcnt vmcnt(22)\ns_barrier")
        xhalf(); wslab(); xhalf()
    else:
        xhalf(); wslab(); xhalf(); wslab(); xhalf()
    real_a, buf = g.a, []
    g.a = lambda x: buf.extend(x.split("\n"))
    srd(g, SRD_WS, 26, 0x10000000)
    a(f"s_mov_b32 s10, {hex(1024*1024*2)}\ns_mov_b32 s11, 0x20000")
    a(f"s_mov_b64 s[12:13], s[14:15]\ns_mov_b32 s14, {hex(3584*1024*2)}\ns_mov_b32 s15, 0x20000")
    a("v_lshrrev_b32 v1, 5, v0\nv_bfe_u32 v3, v0, 4, 1\nv_lshlrev_b32 v1, 3, v1\nv_lshl_add_u32 v1, v3, 4, v1\nv_bfe_u32 v3, v0, 3, 1\nv_add_u32 v1, v1, v3")
    a(f"s_lshl_b32 s4, s{LW}, 2\nv_add_u32 v1, s4, v1")
    a(f"s_lshl_b32 s4, s{S_CB}, 8\ns_lshl_b32 s5, s{S_KH}, 7\ns_add_u32 s4, s4, s5")
    a("v_lshl_add_u32 v14, v1, 11, v2\nv_add_u32 v14, s4, v14\nv_xor_b32 v16, 128, v14")
    a(f"v_add_u32 v15, {4096-BLK}, v14\nv_add_u32 v17, {4096-BLK}, v16")
    a(f"s_lshl_b32 s5, s{S_MB8}, 19\ns_sub_u32 s4, s4, s5")
    a(f"v_add_u32 v24, s4, v4\nv_xor_b32 v26, 128, v24\nv_add_u32 v25, {4096-BLK}, v24\nv_add_u32 v27, {4096-BLK}, v26")
    a(f"s_mul_i32 s6, s32, {14<<17}\ns_mul_i32 s7, s32, {NA<<17}")
    a("s_mov_b64 s[24:25], s[12:13]\ns_mov_b32 s26, s14\ns_mov_b32 s27, 0x20000")
    ord_table(g, 4)
    g.a = real_a
    cut = max(i for i, x in enumerate(buf) if x.startswith("s_mov_b64 s[24:25], s[12:13]"))
    NU = 6
    a(f"s_mov_b32 s34, {27-NU-2*SM}")
    a("L_l1:")
    a("s_waitcnt vmcnt(30)\ns_barrier")
    wslab(); xhalf()
    a("s_sub_u32 s34, s34, 1\ns_cmp_lg_u32 s34, 0\ns_cbranch_scc1 L_l1")
    t0 = 27 - NU
    vm = VM(a, [('I', t0 - 3)] * 15 + [('I', t0 - 2)] * 15 + [('I', t0 - 1)] * 15)
    busy = [False]
    def wstage(m, part=range(4)):
        if m < 14: a(f"s_bfe_u32 s16, s{4+m//8}, {hex((4<<16) | (4*(m%8)))}\ns_lshl_b32 s16, s16, 17\ns_add_u32 s16, s16, s6")
        for ln in range(2):
            for kk in range(2):
                if ln * 2 + kk not in part: continue
                if g.o.get('wpace') and m >= 3 and (ln or kk):
                    a(f"s_cbranch_vccnz 1\ns_sleep {g.o['wpace']}" if busy[0] else f"s_sleep {g.o['wpace']}")
                a(f"s_add_u32 m0, s66, {slot2(m)+(ln*2+kk)*UNIT}")
                if m < 14:
                    vb, sr = (24 if ORD[m] % 7 == 6 else 14) + 2 * ln, 24 if ln else 12
                    a(f"s_add_u32 s47, s16, {kk<<16}")
                elif m < NS + 4:
                    vb, sr = 14 + 2 * ln, 8
                    a(f"s_add_u32 s47, s7, {((ND+m-14)<<17)+(kk<<16)}")
                else:
                    vb, sr = 14, 8
                    a(f"s_mov_b32 s47, {((2*(m-NS-4)+ln)<<17)+(kk<<16)}")
                for jb in range(2):
                    vm.op(f"buffer_load_dwordx4 v{vb+jb}, s[{sr}:{sr+3}], s47 offen offset:{jb*BLK} sc1 lds", m)
    for t in range(t0, 27):
        vm.wait(('I', t - 3)); a("s_barrier")
        wslab(); xhalf(); vm.mark(('I', t), 15)
        k = t - t0
        for x in (buf[k * cut // 5:(k + 1) * cut // 5] if k < 5 else buf[cut:]): a(x)
    vm.wait(('I', 25)); a("s_barrier")
    wslab(); vm.mark(('I', 27), 7)
    vm.wait(('I', 26)); a("s_barrier")
    wstage(0)
    vm.wait(('I', 27)); a("s_barrier")
    wstage(1)
    aux_sel(g)
    a("s_barrier")
    nxt = 2
    for _ in range(g.o.get('w31', 1)): wstage(nxt); nxt += 1
    a("s_barrier")
    g.stamp(5)
    for _ in range(g.o.get('w32', 0)): wstage(nxt); nxt += 1
    a(f"s_cmp_ge_u32 s{S_C}, 2\ns_cselect_b64 vcc, -1, 0")
    sched = g.o.get('wsched', [4, 4, 5, 5, 6, 5, 6, 4, 4, 6, 6, 5, 4, 4]); sub = 0
    for n in range(0, NS + 2):
        SK = g.o['sk']
        if n not in SK:
            need = n
            while need + 1 in SK: need += 1
            if n >= NS: need = NS + 3
            lim = {0: 5}.get(n, n + 6)
            assert nxt > need
            vm.wait(need); a("s_barrier")
        else: vm.wait(nxt - 1)
        fl = n == g.o['k1'] + g.o['noc']
        fl = fl or (n == 0 and g.o.get('k0first', 1))
        if fl: q_call(g, n)
        busy[0] = n < len(g.o['pch']) or g.o['k1'] <= n <= g.o['k1'] + g.o['noc']
        left = sched[n]
        while left:
            assert nxt <= lim
            k = min(left, 4 - sub)
            wstage(nxt, range(sub, sub + k)); left -= k; sub += k
            if sub == 4: nxt += 1; sub = 0
        if not fl: q_call(g, n)
    assert nxt == NS + 4 + ND // 2
    if g.o.get('trace'):
        l = g.lab("tr")
        a(f"s_cmp_lg_u32 s{S_WAVE}, 4\ns_cbranch_scc1 {l}\ns_lshl_b32 s33, s2, 9\ns_add_u32 s33, s33, {WS_PROF+0x20000}\nv_lshlrev_b32 v5, 2, v0")
        a(f"buffer_store_dword v33, v5, {W}, s33 offen\nbuffer_store_dword v32, v5, {W}, s33 offen offset:256\n{l}:")
    if g.o.get('ldump'): prof_dump(g, 4, 1)
    aux_rx(g)


def pf_item(g, wait=False):
    a = g.a
    a(f"s_mul_hi_u32 s47, s68, {(2**32+16)//17}\ns_mul_i32 s33, s47, 17\ns_sub_u32 s33, s68, s33")
    a("s_lshl_b32 s50, s47, 1\ns_add_u32 s50, s50, s87\ns_lshl_b32 s50, s50, 5")
    a("s_mul_i32 s51, s32, 7\ns_add_u32 s51, s51, s33\ns_sub_u32 s51, s51, 10")
    a("s_sub_u32 s35, s33, 4\ns_lshr_b32 s54, s35, 1\ns_lshl_b32 s54, s54, 2\ns_add_u32 s54, s54, s32\ns_lshl_b32 s54, s54, 1\ns_and_b32 s35, s35, 1\ns_add_u32 s35, s35, s54")
    a(f"s_movk_i32 s55, 7168\ns_mov_b32 s54, {hex(1024*3584*2)}\ns_cmp_lt_u32 s33, 10\ns_cselect_b32 s51, s35, s51\ns_cselect_b32 s35, 6144, s55\ns_cselect_b32 s54, {hex(1024*3072*2)}, s54")
    a("s_mul_i32 s50, s50, s35\ns_lshl_b32 s51, s51, 8\ns_add_u32 s50, s50, s51")
    a(f"s_lshl_b32 s51, s{S_XCD}, 2\ns_add_u32 s51, s51, s33\ns_lshl_b32 s51, s51, 17\ns_lshl_b32 s47, s47, 7\ns_add_u32 s47, s47, s51")
    a(f"s_cmp_lt_u32 s33, 4\ns_cselect_b32 s47, s47, s50\ns_cselect_b32 s35, 4096, s35\ns_cselect_b32 s50, 11, 7\ns_cselect_b32 s54, {hex(2048*1024*2)}, s54\ns_mov_b32 s55, 0x20000")
    a("v_lshrrev_b32 v10, 1, v0\nv_and_b32 v11, 1, v0\nv_mul_lo_u32 v10, v10, s35\nv_lshl_add_u32 v10, v11, s50, v10")
    if wait: a("s_waitcnt lgkmcnt(0)")
    a("s_cmp_lt_u32 s33, 10\ns_cselect_b64 s[52:53], s[6:7], s[12:13]\ns_cmp_lt_u32 s33, 4\ns_cselect_b64 s[52:53], s[4:5], s[52:53]")
    a("buffer_load_dword v9, v10, s[52:55], s47 offen")


def helper(g):
    a = g.a
    a("L_helper:")
    HW = 45
    def bars(n):
        for _ in range(n): a("s_barrier")
    if g.o.get('hprio'): a(f"s_setprio {g.o['hprio']}")
    a(f"s_sub_u32 s{HW}, s{S_WAVE}, 6")
    a("v_lshlrev_b32 v4, 4, v0\nv_lshlrev_b32 v5, 2, v0\nv_mov_b32 v6, 0\nv_mov_b32 v7, 1\nv_lshlrev_b32 v8, 7, v0")
    if not g.o.get('cpf0', 1): a("s_mov_b64 exec, 0xffff\nbuffer_load_dword v9, v8, s[96:99], s100 offen\ns_mov_b64 exec, -1")
    a(f"s_lshl_b32 s46, s32, 3\ns_add_u32 s46, s46, s{S_CB}\ns_lshl_b32 s47, s{S_MB8}, 5\ns_add_u32 s46, s46, s47")
    a("s_waitcnt lgkmcnt(0)")
    srd(g, SRD_WS, 26, 0x10000000)
    srd(g, 28, 4, 2048 * 1024 * 2)
    srd(g, 92, 24, 256)
    for r in range(12, 16): a(f"v_mov_b32 v{r}, -1")
    a(f"s_mov_b32 s33, 0x10000000\ns_lshl_b32 s88, s{S_PAIR}, 3\ns_add_u32 s88, s88, s{S_MB8}\ns_mul_i32 s88, s88, 9216\ns_add_u32 s88, s88, {WS_KVP}")
    a(f"s_mul_i32 s89, s{S_PAIR}, 6144\ns_lshl_b32 s47, s{S_MB8}, 10\ns_add_u32 s89, s89, s47\ns_add_u32 s89, s89, {WS_KVF}")
    a(f"s_cmp_ge_u32 s{S_MB8}, 6\ns_cselect_b32 s89, s33, s89\ns_cmp_ge_u32 s{S_C}, 2\ns_cselect_b32 s88, s33, s88\ns_cselect_b32 s89, s33, s89")
    def init0(k):
        if k == 0:
            for r in range(16, 20): a(f"v_mov_b32 v{r}, 0")
            a(f"s_lshl_b32 s47, s2, 11\ns_add_u32 s47, s47, {WS_FLAG}")
            a(f"buffer_store_dwordx4 v[16:19], v4, {W}, s47 offen sc1\nbuffer_store_dwordx4 v[16:19], v4, {W}, s47 offen offset:1024 sc1")
        elif k == 1:
            a(f"buffer_store_dwordx4 v[12:15], v4, {W}, s89 offen sc1")
            a(f"s_mov_b64 exec, 0xff\ns_lshl_b32 s47, s46, 7\ns_add_u32 s47, s47, {WS_FLAG+F_G}")
            a(f"buffer_store_dwordx4 v[12:15], v4, {W}, s47 offen sc1\ns_mov_b64 exec, -1")
        else:
            a(f"buffer_store_dwordx4 v[12:15], v4, {W}, s88 offen sc1\ns_add_u32 s88, s88, 1024")
    issd = lambda: a("buffer_load_dword v23, off, s[92:95], 0 sc1")
    def init3():
        ok = g.lab("rdy")
        a(f"v_cmp_eq_u32 vcc, 0, v23\ns_cbranch_vccz {ok}")
        issd(); poll_check(g, issd, 23, 1, 0, "eq")
        a(f"{ok}:\nv_and_b32 v23, 0x2000, v23\nv_mov_b32 v22, {LDS_SEL}\nds_write_b32 v22, v23\ns_lshr_b32 s47, s2, 2\ns_lshl_b32 s47, s47, 7\ns_and_b32 s33, s2, 3\ns_lshl_b32 s33, s33, 2\ns_add_u32 s47, s47, s33\ns_add_u32 s47, s47, {WS_FLAG+F_RDY}")
        a(flagops(7, 47) + "\ns_waitcnt lgkmcnt(0)")
    lz = g.lab("z")
    a(f"s_or_b32 s33, s2, s{HW}\ns_cbranch_scc1 {lz}")
    for r in range(16, 20): a(f"v_mov_b32 v{r}, 0")
    a(f"s_mov_b32 s47, {WS_FLAG+F_RDY}\ns_mov_b32 s33, {WS_FLAG+F_RDY+4096}")
    for k in range(8): a(f"buffer_store_dwordx4 v[16:19], v4, {W}, s{33 if k>>2 else 47} offen offset:{(k&3)*1024} sc1")
    a(f"s_mov_b32 s47, {WS_PROBE}\ns_mov_b32 s33, {WS_PROBE+8192}")
    a(f"buffer_store_dwordx4 v[16:19], v4, {W}, s47 offen sc1\nbuffer_store_dwordx4 v[16:19], v4, {W}, s33 offen sc1\n{lz}:")
    a("s_mov_b32 s90, -1\ns_mov_b32 s91, -1")
    def wg0(f):
        l = g.lab("w0")
        a(f"s_cmp_lg_u32 s2, 0\ns_cbranch_scc1 {l}"); f(); a(f"{l}:")
    def probe(k):
        a(f"s_mov_b32 s47, {WS_PROBE+(k&1)*8192+(k>>1)*128}\ns_memtime s[48:49]\ns_waitcnt lgkmcnt(0)\ns_load_dword s33, s[26:27], s47\ns_waitcnt lgkmcnt(0)")
        a(f"s_memtime s[50:51]\ns_waitcnt lgkmcnt(0)\ns_sub_u32 s33, s50, s48\ns_min_u32 s{90+(k&1)}, s{90+(k&1)}, s33")
    def announce():
        a("s_cmp_lt_u32 s91, s90\ns_cselect_b32 s33, 0x2001, 1\nv_mov_b32 v23, s33\ns_mov_b64 exec, 1\nbuffer_store_dword v23, off, s[92:95], 0 sc1")
        if g.o.get('showp'): a("v_mov_b32 v22, s90\nbuffer_store_dword v22, off, s[92:95], 0 offset:4\nv_mov_b32 v21, s91\nbuffer_store_dword v21, off, s[92:95], 0 offset:8")
        a("s_mov_b64 exec, -1")
    srd(g, 60, 14, 3584 * 1024 * 2)
    srd(g, 64, 8, 1024 * 1024 * 2)
    def w2item():
        l, lo = g.lab("pw"), g.lab("pw")
        a(f"s_cmp_ge_u32 s69, 112\ns_cbranch_scc1 {lo}\ns_lshr_b32 s47, s69, 3\ns_lshl_b32 s47, s47, 2\ns_lshr_b64 s[50:51], s[48:49], s47\ns_and_b32 s50, s50, 15")
        a(f"s_mul_i32 s47, s32, 14\ns_add_u32 s47, s47, s50\ns_lshl_b32 s47, s47, 1\ns_add_u32 s47, s47, s87\ns_lshl_b32 s47, s47, 3\ns_and_b32 s50, s69, 7\ns_add_u32 s47, s47, s50\ns_lshl_b32 s47, s47, 13")
        a(f"buffer_load_dword v9, v8, s[60:63], s47 offen\ns_branch {l}")
        a(f"{lo}:\ns_sub_u32 s47, s69, 112\ns_lshl_b32 s47, s47, 3\ns_add_u32 s47, s47, s{S_XCD}\ns_lshl_b32 s47, s47, 13\nbuffer_load_dword v9, v8, s[64:67], s47 offen\n{l}:\ns_add_u32 s69, s69, 32")
    a(f"s_cmp_lg_u32 s{HW}, 0\ns_cbranch_scc1 L_h_one")
    iss0 = lambda: a(f"s_mov_b32 s47, {WS_FLAG+F_RDY}\nbuffer_load_dwordx4 v[16:19], v8, {W}, s47 offen sc1")
    for t in range(0, 29):
        a("s_barrier")
        if t == 1: a("s_waitcnt vmcnt(0)")
        if 3 <= t < 14: a(f"s_sleep {g.o['hdel']}"); init0(t - 3)
        if 2 <= t < 12 and g.o['pol'] is None: wg0(lambda: probe(t - 2))
        if t == 11: wg0(announce)
        if t == 14: issd()
        if t == 16: a("s_waitcnt vmcnt(0)"); init3()
        if t == 22: iss0()
        if t == 24: poll_check(g, iss0, 14, 64, 1, "ne", lambda: a("v_and_b32 v14, v16, v17\nv_and_b32 v15, v18, v19\nv_and_b32 v14, v14, v15"))
        if t == g.o.get('cpf1', 99): a("s_mov_b64 exec, 0xffff\nbuffer_load_dword v9, v8, s[96:99], s100 offen\ns_mov_b64 exec, -1")
    bars(2)
    aux_sel(g)
    lane_h(g, 11, 12, 52)
    a(f"s_add_u32 s54, s52, {F_H2}")
    a("v_and_b32 v12, 1, v0\nv_lshlrev_b32 v12, 16, v12\nv_bfe_u32 v16, v0, 1, 1\nv_lshl_add_u32 v12, v16, 18, v12")
    a(f"v_bfe_u32 v16, v0, 2, 2\nv_lshl_add_u32 v12, v16, 11, v12\ns_andn2_b32 s56, s52, 0x1800\ns_add_u32 s56, s56, {F_X + (2<<16)}")
    a(f"s_lshl_b32 s57, s{S_MB8}, 12\ns_add_u32 s57, s57, {WS_FLAG+F_G}")
    a(f"v_lshrrev_b32 v19, 1, v0\nv_and_b32 v16, 1, v0\nv_lshlrev_b32 v16, 4, v16\nv_lshl_add_u32 v19, v19, 7, v16\nv_add_u32 v13, {LDS_G}, v4")
    tb = sum(x << (4 * k) for k, x in enumerate(ORD))
    wl = g.o.get('wl')
    if wl: a(f"s_lshr_b32 s69, s2, 3\ns_and_b32 s68, s69, {wl[2]-1}\ns_add_u32 s69, s69, {32*wl[0]}\ns_mov_b32 s48, {hex(tb & 0xffffffff)}\ns_mov_b32 s49, {hex(tb >> 32)}")
    bars(1)
    bars(1)
    def pol(soff, areg):
        m = "0xffff" if areg == 12 else "0xffffffff"
        return lambda: a(f"s_mov_b64 exec, {m}\nbuffer_load_dword v14, v{areg}, {W}, s{soff} offen sc1\ns_mov_b64 exec, -1")
    issg = lambda: a(f"buffer_load_dwordx4 v[24:27], v19, {W}, s57 offen sc1")
    assert g.o['k1'] >= 6
    def role(kv, f):
        l = g.lab("ro")
        a(f"s_cmp_ge_u32 s{S_C}, 2\ns_cbranch_scc{1 if kv else 0} {l}"); f(); a(f"{l}:")
    role(True, lambda: (a(f"s_sleep {g.o.get('gsl', 16)}"), pol(52, 11)(), poll_check(g, pol(52, 11), 14, 32, 1)))
    SK = g.o['sk']
    assert not set(SK) & {0, 1, 6, g.o['k1'], 12, 13}
    cnt = lambda n: len([x for x in range(n) if x not in SK])
    for n in range(12):
        if n not in SK: a("s_barrier")
        if n == g.o.get('cpf2'): a("s_mov_b64 exec, 0xffff\nbuffer_load_dword v9, v8, s[96:99], s100 offen\ns_mov_b64 exec, -1")
        if n == 0: role(False, pol(52, 11))
        if n == 3: issg()
        if n == 4:
            poll_check(g, issg, 14, 64, -1, "eq", lambda: a("v_max3_u32 v14, v24, v25, v26\nv_max_u32 v14, v14, v27"))
            a("ds_write_b128 v13, v[24:27]"); pol(54, 11)()
        if n == 5: poll_check(g, pol(54, 11), 14, 32, 1); a("s_waitcnt lgkmcnt(0)")
        q_call(g, n)
        if n == 0: role(False, lambda: poll_check(g, pol(52, 11), 14, 32, 1))
        if wl and wl[1] <= n < wl[1] + wl[2]:
            l = g.lab("wl")
            a(f"s_cmp_lg_u32 s68, {n-wl[1]}\ns_cbranch_scc1 {l}")
            for _ in range(5 - wl[0]): w2item()
            a(f"{l}:")
        if n == g.o.get('fop', 11):
            if g.o.get('fosl'): a(f"s_sleep {g.o['fosl']}")
            pol(56, 12)()
        if n == 11: poll_check(g, pol(56, 12), 14, 16, 1)
    bars(NS - 10); a("s_branch L_rx")
    a("L_h_one:")
    tb = sum(x << (4 * k) for k, x in enumerate(ORD))
    a(f"s_mov_b32 s34, 0\ns_lshr_b32 s69, s2, 3\ns_mov_b32 s48, {hex(tb & 0xffffffff)}\ns_mov_b32 s49, {hex(tb >> 32)}")
    a(f"s_lshr_b32 s33, s68, 5\ns_lshr_b32 s90, {hex(g.o.get('wmask', 0x1f0))}, s33")
    if g.o.get('nopf1'): a("s_mov_b32 s68, 0x10000")
    l0, l1, l2, lx, lq = [g.lab("pf") for _ in range(5)]
    if g.o.get('skip0'): a(f"s_branch {l1}")
    a(f"{l0}:\ns_add_u32 s47, s34, {g.o['lead']}\ns_mul_i32 s47, s47, 17\ns_lshr_b32 s47, s47, 1\ns_min_u32 s47, s47, {16*17}\ns_cmp_ge_u32 s68, s47\ns_cbranch_scc1 {l1}")
    pf_item(g)
    a("s_add_u32 s68, s68, 32")
    a(f"{l2}:\ns_lshr_b32 s90, s90, 1\ns_bitcmp1_b32 s90, 0\ns_cbranch_scc0 {l0}")
    w2item()
    a(f"s_branch {l0}\n{l1}:")
    if g.o.get('wrate'):
        l3 = g.lab("pf")
        a(f"s_sub_u32 s47, s34, {g.o.get('w0', 2)}\ns_cbranch_scc1 {l3}\ns_mul_i32 s47, s47, {g.o['wrate']}\ns_min_u32 s47, s47, 144\ns_cmp_ge_u32 s69, s47\ns_cbranch_scc1 {l3}")
        w2item()
        a(f"{l3}:")
    a(f"s_barrier\ns_sleep {g.o['hdel']}\ns_add_u32 s34, s34, 1\ns_cmp_lt_u32 s34, 27\ns_cbranch_scc1 {l0}")
    srd(g, 52, 16, 2048)
    gl = ["s_lshl_b32 s47, s46, 14\n" + "\n".join(f"buffer_load_dwordx4 {vr(24+4*hf)}, v4, s[52:55], 0 offen offset:{hf*1024}" for hf in range(2))]
    for r in range(8):
        gl.append("\n".join(f"buffer_load_dwordx4 {vr(40+8*r+4*hf)}, v4, s[28:31], s47 offen offset:{(r&1)*2048+hf*1024}" for hf in range(2)) + ("\ns_add_u32 s47, s47, 4096" if r & 1 else ""))
    for t in range(26, 31):
        if t > 26: a("s_barrier")
        n = g.o['gsch'][t - 26]
        if n and t in (27, 28): a(f"s_sleep {g.o['hdel']}")
        for x in gl[:n]: a(x)
        gl = gl[n:]
    assert not gl
    aux_sel(g)
    for r in range(32, 40): a(f"v_mov_b32 v{r}, 0")
    bars(2)
    a("s_waitcnt vmcnt(0)")
    for k in range(8):
        for r in range(8): a(f"v_dot2_f32_bf16 v{32+r}, v{40+8*r+k}, v{24+k}, v{32+r}")
    a("s_barrier\ns_nop 0")
    for pat in ["quad_perm:[1,0,3,2] row_mask:0xf", "quad_perm:[2,3,0,1] row_mask:0xf", "row_half_mirror row_mask:0xf", "row_mirror row_mask:0xf",
                "row_bcast:15 row_mask:0xa", "row_bcast:31 row_mask:0xc"]:
        for r in range(32, 40): a(f"v_add_f32_dpp v{r}, v{r}, v{r} {pat} bank_mask:0xf")
    for r in range(8): a(f"v_readlane_b32 s{52+r}, v{32+r}, 63")
    a("s_nop 1")
    for r in range(8): a(f"v_writelane_b32 v16, s{52+r}, {r}")
    a("s_nop 0\nv_min_f32 v16, 0x41f00000, v16\nv_mul_f32 v16, 0x3fb8aa3b, v16\nv_exp_f32 v16, v16")
    a(f"s_lshl_b32 s47, s46, 7\ns_add_u32 s47, s47, {WS_FLAG+F_G}\ns_mov_b64 exec, 0xff")
    a(f"buffer_store_dword v16, v5, {W}, s47 offen sc1\ns_mov_b64 exec, -1")
    q_call(g, 0)
    a(f"s_mov_b32 s34, 1\ns_cmp_ge_u32 s{S_C}, 2\ns_cbranch_scc1 L_h1_q\ns_cmp_ge_u32 s{S_MB8}, 6\ns_cbranch_scc1 L_h1_end")
    H1 = g.o['h1']
    def retry(issue, mx, first, last, work=False):
        l0, l1 = g.lab("try"), g.lab("try")
        for n in range(first):
            if n and n not in SK: a("s_barrier")
            if work and n: q_call(g, n)
        first, last = cnt(first), cnt(last)
        if g.o.get('rsame', 1) & (1 if work else 2):
            l2 = g.lab("try")
            a(f"s_setprio 2\ns_mov_b32 s34, {first}\n{l0}:")
            issue(); a("s_waitcnt vmcnt(0)"); mx()
            a(f"v_cmp_eq_u32 vcc, -1, v14\ns_cbranch_vccz {l1}")
            a(f"s_cmp_ge_u32 s34, {last}\ns_cbranch_scc1 {l2}\ns_barrier\ns_add_u32 s34, s34, 1\ns_branch {l0}\n{l2}:")
        else:
            a(f"s_setprio 2\ns_mov_b32 s34, {first}\n{l0}:")
            if g.o.get('hsl'): a(f"s_sleep {g.o['hsl']}")
            issue()
            a("s_barrier\ns_add_u32 s34, s34, 1\ns_waitcnt vmcnt(0)")
            mx()
            a(f"v_cmp_eq_u32 vcc, -1, v14\ns_nop 1\ns_cmp_lg_u64 vcc, 0\ns_cbranch_scc0 {l1}")
            a(f"s_cmp_le_u32 s34, {last-1}\ns_cbranch_scc1 {l0}")
        issue(); poll_check(g, issue, 14, 64, -1, "eq", mx)
        a(f"{l1}:")
    def upto(n):
        l0, l1 = g.lab("up"), g.lab("up")
        a(f"{l0}:\ns_cmp_ge_u32 s34, {cnt(n)}\ns_cbranch_scc1 {l1}\ns_barrier\ns_add_u32 s34, s34, 1\ns_branch {l0}\n{l1}:")
    def vmax(lo, hi):
        a(f"v_max_u32 v14, v{lo}, v{lo+1}")
        for r in range(lo + 2, hi, 2): a(f"v_max3_u32 v14, v14, v{r}, v{r+1}")
    a(f"s_cmp_ge_u32 s{S_MB8}, 3\ns_cselect_b32 s55, 1, 0\ns_sub_u32 s56, s{S_MB8}, s55\ns_lshl_b32 s56, s56, 11\nv_add_u32 v10, s56, v4\nv_add_u32 v11, 1024, v10")
    a(f"s_cmp_eq_u32 s{S_MB8}, 2\ns_cbranch_scc1 L_h1_z\ns_cmp_eq_u32 s{S_MB8}, 5\ns_cbranch_scc0 L_h1_nz\nL_h1_z:")
    a("s_lshl_b32 s55, s55, 5\ns_add_u32 s55, s55, 8192\nv_and_b32 v10, 0x300, v4\nv_add_u32 v10, s55, v10\nv_add_u32 v11, 16, v10\nL_h1_nz:")
    def kvp_issue():
        a(f"s_mul_i32 s47, s{S_PAIR}, {8*9216}\ns_add_u32 s47, s47, {WS_KVP}")
        for m in range(8):
            for dt in range(2): a(f"buffer_load_dwordx4 {vr(32+(m*2+dt)*4)}, v{10+dt}, {W}, s47 offen sc1")
            if m < 7: a("s_add_u32 s47, s47, 9216")
    retry(kvp_issue, lambda: vmax(32, 96), H1 + 1, 9)
    g.stamp(5)
    if g.o['prof']: a("s_mov_b32 s88, s34")
    for st in (32, 16, 8):
        for r in range(st): a(f"v_add_f32 v{32+r}, v{32+r}, v{32+st+r}")
    for r in range(4): a(f"v_cvt_pk_bf16_f32 v{32+r}, v{32+2*r}, v{33+2*r}")
    a(f"s_mul_i32 s47, s{S_PAIR}, 6144\ns_lshl_b32 s46, s{S_MB8}, 10\ns_add_u32 s47, s47, s46\ns_add_u32 s47, s47, {WS_KVF}")
    a(f"buffer_store_dwordx4 v[32:35], v4, {W}, s47 offen sc1")
    a("L_h1_end:")
    upto(NS + 2)
    a("s_branch L_rx")
    a("L_h1_q:")
    K1 = g.o['k1']
    a(f"s_mul_i32 s55, s{S_PAIR}, 6144\ns_add_u32 s55, s55, {WS_KVF}\ns_add_u32 s56, s55, 4096\nv_add_u32 v12, {P2END}, v4")
    def kvf_issue():
        for f in range(6): a(f"buffer_load_dwordx4 {vr(32+4*f)}, v4, {W}, s{55+(f>>2)} offen offset:{(f&3)*1024} sc1")
    retry(kvf_issue, lambda: vmax(32, 56), g.o['k0'], K1, True)
    g.stamp(5)
    if g.o['prof']: a("s_mov_b32 s88, s34")
    for f in range(6): a(f"ds_write_b128 v12, {vr(32+4*f)} offset:{f*1024}")
    upto(K1)
    a("s_waitcnt lgkmcnt(0)")
    for n in range(K1, K1 + g.o['noc'] + 1):
        if n not in SK: a("s_barrier")
        q_call(g, n)
    a(f"s_mov_b32 s34, {cnt(K1+g.o['noc']+1)}\ns_branch L_h1_end")
    q_chunks(g)


HEADER = open("gated_mix__linear_attn_block__dense_activation_relu__prompt.s.ref").read().split("; Override")[0] \
    if __name__ == "__main__" else ""


def build(**opt):
    g = G(**opt)
    VM.skip = g.o.get('skip', ())
    HF[0] = g.o.get('hflag', 'sc1'); HF[1] = g.o.get('lflag', 'sc1')
    g.L.append(f"; @launch grid=(256,1,1) block=(512,1,1) lds={LDS_TOTAL}")
    g.a(f'.amdgcn_target "amdgcn-amd-amdhsa--gfx950"\n.text\n.globl {NAME}\n.p2align 8\n.type {NAME},@function\n{NAME}:')
    prologue(g)
    loader(g)
    helper(g)
    compute(g)
    g.a("L_exit:\ns_endpgm\nL_codeend:")
    g.L.append(f""".section .rodata,"a"
.p2align 6
.amdhsa_kernel {NAME}
  .amdhsa_next_free_vgpr 256
  .amdhsa_next_free_sgpr 102
  .amdhsa_accum_offset 256
  .amdhsa_group_segment_fixed_size 0
  .amdhsa_kernarg_size 80
  .amdhsa_user_sgpr_count 2
  .amdhsa_user_sgpr_kernarg_segment_ptr 1
  .amdhsa_system_sgpr_workgroup_id_x 1
.end_amdhsa_kernel""")
    return g.text()


if __name__ == "__main__":
    out = sys.argv[1]
    opt = {}
    for kv in sys.argv[2:]:
        k, v = kv.split("=")
        opt[k] = eval(v)
    open(out, "w").write(HEADER + build(**opt))
```

```python
import sys

NAME = "gated_mix__linear_attn_block__dense_activation_relu__prompt_kernel"

OREG = 4 << 23
MT = lambda i: ((i & 1) << 12) | ((i >> 1) << 14)
WS_PART = 0x3000000
WS_KVP = 0x2800000
WS_KVF = 0x2980000
WS_FLAG = 0x2C00000
F_H1, F_H2, F_X, F_P = 0, 512, 1024, 1536
F_G = 0x80000
F_RDY = 0x90000
WS_PROF = 0x2B00000
WS_PROBE = 0x2CC0000
LDS_SEL = 163832
WS_W2C = 0x2800000
ORD1 = [0, 1, 2, 4, 7, 8, 9, 11]
ORD2 = [3, 5, 10, 12, 6, 13]

UNIT = 4224; BLK = 1056
XSLOT = 8 * UNIT
XRING = 3 * XSLOT
WSLOT = 3 * UNIT + 1024
WBASE = XRING
LDS_G = 162816
P2SLOT = 4 * UNIT
NSL = 8
P2END = NSL * P2SLOT
LDS_TOTAL = 163840

SPIN = 100000


class G:
    def __init__(self, **opt):
        self.L = []
        self.o = dict(prof=False, krot=False, pfw=True, pf1=True, lead=6, pfs0=0, hdel=0, pfw0=2, pfwr=54, early2=0, late=(4, 4, 4), sp0=22, spn=2, swin=4, gsch=(5, 4, 0, 0, 0), fpos=50, s1sp=12, tdens=2, st2n=0, st2sp=14, ju=5, pch=(1, 2, 2, 2, 1), pf0=0, wx=1, xfirst=2, prio=1, pol=None, nearf=1, pk=(4, 6), sk=(), cbx=2, aspread=0, wpace=0, kdens=4, hsl=0, gsl=0, noc=2, qprio=2, k1=7, k0=6, rsp=6, h1=1, xf=(10, 14, 16), r1=99, dld=(11, 12, 13, 14, 15, 16, 17, 18), psleep=2, cpf1=24, cpf2=99, odens=3, b16=True, ddens=3, psp=30, d1=7, d2=10, d2b=12, d3=16)
        self.o.update(opt)
        self.uid = 0
        self.info = {}
        self.st = {'since': 0}

    def a(self, s):
        for ln in s.split("\n"):
            ln = ln.strip()
            if ln == "s_sleep 0": continue
            if ln:
                self.L.append(ln if ln.endswith(":") or ln.startswith(".") else "    " + ln)

    def lab(self, p):
        self.uid += 1
        return f"L_{p}_{self.uid}"

    def stamp(self, n):
        if self.o['prof'] == 'min' and n not in (0, 8): return
        if self.o['prof']:
            self.a(f"{'s_memtime' if self.o['prof']=='cyc' else 's_memrealtime'} s[{70+2*n}:{71+2*n}]")

    def text(self):
        j = self.o.get('jitter')
        if j:
            import random
            rnd = random.Random(j[0]); o = []
            for ln in self.L:
                o.append(ln)
                t = ln.strip()
                if (t == "s_barrier" or t.startswith("s_waitcnt vmcnt")) and rnd.random() < j[1]:
                    w = rnd.randrange(8)
                    src = "s3" if rnd.random() < 0.7 else "s44"
                    o.append(f"    s_cselect_b32 s101, 1, 0\n    s_cmp_lg_u32 {src}, {w}\n    s_cbranch_scc1 1\n    s_sleep {rnd.randrange(1, j[2])}\n    s_cmp_lg_u32 s101, 0")
            return "\n".join(o) + "\n"
        return "\n".join(self.L) + "\n"


class VM:
    def __init__(self, a, init=()):
        self.a = a; self.q = list(init)
    skip = ()
    def op(self, text, tag):
        if (tag[0] if isinstance(tag, tuple) else tag) in VM.skip: return
        self.a(text); self.q.append(tag)
        assert len(self.q) <= 63, "vmcnt overflow"
    def mark(self, tag, n):
        self.q += [tag] * n
        assert len(self.q) <= 63, "vmcnt overflow"
    def wait(self, *tags):
        k = max([i for i, t in enumerate(self.q) if t in tags], default=-1)
        if k >= 0:
            self.a(f"s_waitcnt vmcnt({len(self.q)-1-k})"); self.q = self.q[k + 1:]


def vr(b, n=4):
    return f"v[{b}:{b+n-1}]"


def mfma(d, a, b, c=None):
    return f"v_mfma_f32_16x16x32_bf16 {vr(d)}, {vr(a)}, {vr(b)}, {vr(d) if c is None else c}"


S_WAVE, S_MB8, S_QD, S_C, S_PAIR, S_RH, S_CB, S_KH, S_SEL, S_XCD = 3, 36, 37, 38, 39, 40, 41, 42, 43, 44
SRD_WS = 20


def srd(g, d, base, nbytes):
    g.a(f"s_mov_b32 s{d}, s{base}\ns_mov_b32 s{d+1}, s{base+1}\ns_mov_b32 s{d+2}, {hex(nbytes)}\ns_mov_b32 s{d+3}, 0x20000")


def prof_dump(g, wave, row):
    if not g.o['prof'] or g.o.get('probe') is not None or (row and (g.o['prof'] == 'min' or g.o.get('trace'))): return
    a = g.a
    l = g.lab("pd")
    a(f"s_waitcnt lgkmcnt(0)\ns_cmp_lg_u32 s{S_WAVE}, {wave}\ns_cbranch_scc1 {l}")
    a(f"s_lshl_b32 s33, s2, 6\ns_add_u32 s33, s33, {WS_PROF + row*16384}\nv_mov_b32 v5, 0")
    for n in range(16):
        a(f"v_mov_b32 v6, s{70+2*n}\nbuffer_store_dword v6, v5, s[{SRD_WS}:{SRD_WS+3}], s33 offen offset:{4*n}\ns_nop 1")
    a(f"{l}:")


def prologue(g):
    a = g.a
    a("s_cmp_ge_u32 s2, 256\ns_cbranch_scc1 L_exit")
    g.stamp(0)
    a("s_load_dwordx16 s[4:19], s[0:1], 0")
    a(f"s_getpc_b64 s[96:97]\nL_pc:\ns_mov_b32 s98, L_codeend-L_pc\ns_mov_b32 s99, 0x20000\ns_lshr_b32 s30, s2, 3\ns_lshl_b32 s100, s30, 11\nv_lshlrev_b32 v1, 2, v0")
    if g.o.get('cpf0', 1): a("buffer_load_dword v47, v1, s[96:99], s100 offen")
    a("s_load_dwordx4 s[24:27], s[0:1], 64")
    a("v_lshrrev_b32 v1, 6, v0\nv_and_b32 v0, 63, v0")
    a(f"s_and_b32 s{S_XCD}, s2, 7")
    a(f"v_readfirstlane_b32 s{S_WAVE}, v1")
    a(f"s_lshr_b32 s31, s{S_XCD}, 2\ns_and_b32 s32, s{S_XCD}, 3")
    if g.o.get('wx'): a(f"s_xor_b32 s{S_WAVE}, s{S_WAVE}, 4")
    a(f"s_and_b32 s33, s30, 3\ns_lshl_b32 s{S_MB8}, s31, 2\ns_add_u32 s{S_MB8}, s{S_MB8}, s33")
    a("s_lshr_b32 s33, s30, 2")
    a(f"s_lshr_b32 s34, s33, 2\ns_lshl_b32 s{S_QD}, s32, 1\ns_add_u32 s{S_QD}, s{S_QD}, s34")
    a(f"s_and_b32 s{S_C}, s33, 3")
    a(f"s_and_b32 s34, s33, 1\ns_lshl_b32 s{S_PAIR}, s{S_QD}, 1\ns_add_u32 s{S_PAIR}, s{S_PAIR}, s34")
    a(f"s_and_b32 s{S_RH}, s32, 1")
    a(f"s_xor_b32 s{S_CB}, s33, {g.o['cbx']}")
    a(f"s_lshr_b32 s{S_KH}, s32, 1")
    if g.o['pol'] == 'mix': a(f"s_lshl_b32 s{S_SEL}, s31, 13")
    else: a(f"s_xor_b32 s34, s31, s{S_MB8}\ns_xor_b32 s34, s34, {g.o['pol'] or 0}\ns_and_b32 s34, s34, 1\ns_lshl_b32 s{S_SEL}, s34, 13")
    a(f"s_cmp_lt_u32 s{S_WAVE}, 4\ns_cbranch_scc1 L_compute")
    a(f"s_cmp_lt_u32 s{S_WAVE}, 6\ns_cbranch_scc1 L_loader")
    a("s_mov_b32 s68, s30\ns_mov_b32 s87, s31")
    if g.o.get('pf0'):
        a(f"s_cmp_eq_u32 s{S_WAVE}, 6\ns_cbranch_scc1 L_helper\ns_add_u32 s68, s68, {g.o.get('pf0off', 0)}")
        pf_item(g, True)
        a("s_add_u32 s68, s68, 32")
    a("s_branch L_helper\nL_loader:")


W = f"s[{SRD_WS}:{SRD_WS+3}]"


def lane_goodcol(g, d, t):
    g.a(f"v_lshrrev_b32 v{d}, 4, v0\nv_and_b32 v{t}, 15, v0\nv_lshlrev_b32 v{t}, 4, v{t}\nv_lshl_add_u32 v{d}, v{d}, 9, v{t}\nv_or_b32 v{d}, s{S_SEL}, v{d}")


def inbox(so, t, w):
    return (f"s_lshr_b32 s{so}, s2, 6\ns_lshl_b32 s{so}, s{so}, 2\ns_bfe_u32 s{t}, s2, 0x20003\ns_add_u32 s{so}, s{so}, s{t}\ns_lshl_b32 s{so}, s{so}, 1\n"
            f"s_bfe_u32 s{t}, s2, 0x10005\ns_add_u32 s{so}, s{so}, s{t}\ns_lshl_b32 s{so}, s{so}, 2\ns_add_u32 s{so}, s{so}, s32\ns_lshl_b32 s{so}, s{so}, 4\n"
            f"s_add_u32 s{so}, s{so}, s{w}\ns_lshl_b32 s{so}, s{so}, 14\n")


def lane_h(g, d, t, so):
    g.a(f"v_bfe_u32 v{d}, v0, 2, 3\nv_and_b32 v{t}, 3, v0\nv_lshlrev_b32 v{t}, 7, v{t}\nv_lshl_add_u32 v{d}, v{d}, 16, v{t}")
    g.a(f"s_and_b32 s{so}, s2, 31\ns_lshl_b32 s{so}, s{so}, 11\ns_add_u32 s{so}, s{so}, {WS_FLAG}\ns_xor_b32 s{so}, s{so}, s79")


def poll_check(g, issue, reg, nl, val, cmp="ne", pre=None):
    a = g.a
    l0, l1 = g.lab("poll"), g.lab("pollok")
    a(f"s_mov_b32 s35, {SPIN}\n{l0}:\ns_waitcnt vmcnt(0)")
    if pre: pre()
    a(f"v_cmp_{cmp}_u32 vcc, {val}, v{reg}\ns_nop 1")
    if nl == 64: a("s_cmp_lg_u64 vcc, 0")
    else: a(f"s_and_b32 s33, vcc_lo, {hex((1<<nl)-1)}")
    a(f"s_cbranch_scc0 {l1}")
    a(f"s_sub_u32 s35, s35, 1\ns_cbranch_scc1 {l1}")
    if g.o.get('psleep'): a(f"s_sleep {g.o['psleep']}")
    issue()
    a(f"s_branch {l0}\n{l1}:")


def setflags(g, one, *soffs):
    g.a("s_mov_b64 exec, 1")
    for so in soffs: g.a(f"buffer_store_dword v{one}, off, {W}, s{so} sc1")
    g.a("s_mov_b64 exec, -1")


VX, VW, VQ = 1, 2, 3
WB = lambda n: 8 + 4 * (n % 4)
XLO = lambda b, i: 24 + 8 * b + 4 * i
XHI = lambda i: 40 + 4 * (i - 2)
AC = lambda j, i: 48 + (j * 4 + i) * 4


PERM = {True: [8, 9, 10, 11, 0, 1, 2, 3, 12, 4, 5, 6, 7], False: [4, 5, 6, 7, 8, 9, 10, 11, 12, 0, 1, 2, 3]}


def p1_wread(t, j, n):
    slot = (t % 4) * WSLOT
    if j < 12:
        return [f"ds_read_b64_tr_b16 v[{WB(n)+2*w}:{WB(n)+2*w+1}], v{VW} offset:{slot + (j//4)*UNIT + (j%4)*32 + w*256}" for w in range(2)]
    return [f"ds_read_b64_tr_b16 v[{WB(n)+2*w}:{WB(n)+2*w+1}], v{VQ} offset:{slot + w*256}" for w in range(2)]


def p1_xreg(par, i):
    return XLO(par % 2, i) if i < 2 else XHI(i)


def p1_xread(t, i, par, vx=VX):
    return f"ds_read_b128 {vr(p1_xreg(par,i))}, v{vx} offset:{(i>>1)*UNIT + (i&1)*512 + (t%2)*64}"


def pass_order(nt):
    s = [(0, 0), (0, 1), (1, 1), (1, 0), (1, 2), (1, 3), (0, 3), (0, 2)]
    for j in range(2, nt - 2):
        s += [(j, i) for i in ([2, 3, 0, 1] if j % 2 == 0 else [1, 0, 3, 2])]
    u, v = nt - 2, nt - 1
    return s + [(u, 2), (u, 3), (v, 3), (v, 2), (v, 1), (v, 0), (u, 0), (u, 1)]


def p1_mfma(kv, tile, i, wreg, xreg):
    return mfma(AC(tile, i), xreg, wreg) if (kv and tile < 8) else mfma(AC(tile, i), wreg, xreg)


Q0 = [('W', 0, 0), ('W', 0, 0), ('X', 0, 0), ('X', 0, 1), ('W', 0, 1), ('W', 0, 1), ('X', 0, 2), ('X', 0, 3)]


def p1_loop(g, kv):
    a = g.a
    P = PERM[kv]
    L = g.lab("p1")
    seq = []
    for t in range(4):
        s = pass_order(13)
        post = [[] for _ in s]
        rd = lambda j, tt=t: [('W', tt, j, x) for x in p1_wread(tt, P[j], 13 * tt + j)]
        r = rd(2); post[0].append(r[0]); post[1].append(r[1])
        r = rd(3); post[2].append(r[0]); post[3].append(r[1])
        r = rd(4); post[8].append(r[0]); post[9].append(r[1])
        r = rd(5); post[10].append(r[0]); post[11].append(r[1])
        for j in range(3, 10):
            base = 8 + (j - 2) * 4
            r = rd(j + 3); post[base].append(r[0]); post[base + 1].append(r[1])
        b10 = 40
        if t % 2 == 1:
            post[b10 - 2].append(('S', f"s_add_u32 s46, s46, {XSLOT}"))
            post[b10 - 2].append(('S', f"s_cmp_eq_u32 s46, {XRING}"))
            post[b10 - 1].append(('S', f"s_cselect_b32 s47, s48, s49"))
            post[b10 - 1].append(('S', f"s_cselect_b32 s46, 0, s46"))
            post[b10].append(('S', f"v_add_u32 v{VX}, s47, v{VX}"))
        post[b10 + 2].append(('BAR',))
        tn = t + 1
        r0, r1 = rd(0, tn), rd(1, tn)
        post[b10 + 3] += [r0[0], r0[1]]
        post[44] += [('X', tn, 0, p1_xread(tn, 0, tn)), ('X', tn, 1, p1_xread(tn, 1, tn))]
        post[45] += [r1[0]]
        post[46] += [r1[1]]
        post[47] += [('X', tn, 2, p1_xread(tn, 2, tn))]
        post[48] += [('X', tn, 3, p1_xread(tn, 3, tn))]
        if t == 3:
            post[49].append(('S', "s_sub_u32 s45, s45, 1"))
            post[50].append(('S', "s_cmp_lg_u32 s45, 0"))
        for (j, i), p in zip(s, post):
            seq.append(((t, j, i), p))
    for x in p1_wread(0, P[0], 0): a(x)
    a(p1_xread(0, 0, 0)); a(p1_xread(0, 1, 0))
    for x in p1_wread(0, P[1], 1): a(x)
    a(p1_xread(0, 2, 0)); a(p1_xread(0, 3, 0))
    q = list(Q0)
    a(f".p2align 6\n{L}:")
    for (t, j, i), p in seq:
        need = [k for k, e in enumerate(q) if e == ('W', t, j) or e == ('X', t, i)]
        if need:
            k = max(need)
            a(f"s_waitcnt lgkmcnt({len(q)-1-k})")
            q = q[k + 1:]
        a(p1_mfma(kv, P[j], i, WB(13 * t + j), p1_xreg(t, i)))
        for e in p:
            if e[0] == 'S':
                a(e[1])
            elif e[0] == 'BAR':
                a("s_waitcnt lgkmcnt(0)\ns_barrier"); q = []
            else:
                a(e[3]); q.append((e[0], e[1] % 4, e[2]))
    assert q == Q0
    a(f"s_cbranch_scc1 {L}")


def p1_tail(g, kv, extra, extra2, flag):
    a = g.a
    P = PERM[kv]
    auto = g.o['pol'] is None
    if auto: a(f"v_mov_b32 v5, {LDS_SEL}\nds_read_b32 v6, v5")
    a(f"v_add_u32 v5, {(-2*XSLOT) & 0xffffffff}, v{VX}")
    if auto: extra = ["v_xor_b32 v7, v6, v7"] + (["v_readfirstlane_b32 s33, v6"] if g.o['nearf'] else []) + ["v_mov_b32 v6, 1"] + (["s_xor_b32 s59, s59, s33", "s_xor_b32 s60, s60, s33"] if g.o['nearf'] else []) + extra
    passes = [(t, grp) for grp in (P[:4], P[4:9], P[9:]) for t in range(28, 32)]
    M = []; start = []; n0 = 0; last = {}
    reads = []
    for p, (t, tiles) in enumerate(passes):
        start.append(len(M))
        o = pass_order(len(tiles))
        base = len(M)
        for j, tile in enumerate(tiles):
            first = base + min(k for k, e in enumerate(o) if e[0] == j)
            if not (p == 0 and j < 2):
                for x in p1_wread(t, tile, n0 + j):
                    reads.append(dict(key=('W', p, j), text=x, after=last.get(WB(n0 + j), -1), first=first, t=t))
            last[WB(n0 + j)] = base + max(k for k, e in enumerate(o) if e[0] == j)
        for i in range(4):
            first = base + min(k for k, e in enumerate(o) if e[1] == i)
            if p > 0:
                reads.append(dict(key=('X', p, i), text=p1_xread(t, i, p, VX if t < 30 else 5), after=max(last.get(p1_xreg(p, i), -1), first - 14), first=first, t=t))
            last[p1_xreg(p, i)] = base + max(k for k, e in enumerate(o) if e[1] == i)
        for (j, i) in o:
            M.append((p, j, i, p1_mfma(kv, tiles[j], i, WB(n0 + j), p1_xreg(p, i))))
        n0 += len(tiles)
    V1, V2 = start[1] + 3, start[2] + 5
    R1, R2 = start[10] - 3, len(M) - 5
    for r in reads:
        if r['t'] == 30: r['after'] = max(r['after'], V1)
        if r['t'] == 31: r['after'] = max(r['after'], V2)
    reads.sort(key=lambda r: r['first'])
    q = list(Q0) + ([('S', 0, 0)] if auto else []); since = 0; nst2 = 0; held = []; nexts = 0; first = True
    dens = g.o.get('tdens', 3)
    def wait(pred):
        nonlocal q
        need = [k for k, e in enumerate(q) if pred(e)]
        if need:
            a(f"s_waitcnt lgkmcnt({len(q)-1-max(need)})"); q = q[max(need) + 1:]
            return 1
        return 0
    for k, (p, j, i, txt) in enumerate(M):
        assert not [r for r in reads if r['first'] <= k], "read scheduled too late"
        w = wait(lambda e: e == ('W', p, j) or e == ('X', p, i))
        a(txt); since += 1 + w
        used = 0
        if k in (V1, V2): a("s_barrier"); used += 1
        if k in (R1, R2):
            lim = 9 if k == R1 else 11
            assert not [r for r in reads if r['key'][1] <= lim]
            used += 1 + wait(lambda e: e[1] <= lim); a("s_barrier")
        nr = 0
        while used < 2:
            c = [r for r in reads if r['after'] <= k]
            if not c or (nr and c[0]['first'] - k > 9): break
            a(c[0]['text']); q.append(c[0]['key']); reads.remove(c[0]); used += 1; nr += 1
        since += used
        if held and k >= nexts:
            a(held.pop(0)); used += 2; nexts = k + g.o['s1sp']; nst2 = 0
        if k == start[8] + g.o.get('fpos', 10):
            assert not held
            a(f"s_waitcnt vmcnt({nst2})\n" + flag); used += 2
        if k == start[8] + 3:
            assert not extra
            extra = extra2; dens = g.o.get('tdens2', 3); first = False
        if k >= start[4] + 3:
            while used < dens and extra:
                if extra[0] is None: break
                x = extra.pop(0)
                if first and x.startswith("s_add_u32 s56"): sadd = x; continue
                if first and x.startswith("buffer_store"): held.append(sadd + "\n" + x); continue
                a(x); used += 2 if x.startswith("v_exp") else 1
                if x.startswith("buffer_store"): nst2 += 1
    assert not held
    return extra


def h_cvt(d, a0, a1):
    src = [a0, a0 + 2] + ([a1, a1 + 2] if a1 is not None else [])
    return [f"v_cvt_pk_bf16_f32 v{d+r}, v{x}, v{x+1}" for r, x in enumerate(src)] + [f"v_pk_max_i16 v{d+r}, v{d+r}, 0" for r in range(len(src))]


HF = ['sc1', 'sc1']
def h_line_store(j0, soff):
    o = []
    for i in (2, 3, 0, 1):
        o.append(f"s_add_u32 s56, s{soff}, {MT(i)}")
        for p in range(2):
            d = AC(j0 + 2 * p, i)
            o += h_cvt(d, d, AC(j0 + 2 * p + 1, i))
            o.append(f"buffer_store_dwordx4 {vr(d)}, v7, {W}, s56 offen offset:{p*2048} {HF[0]}")
    return o


def phi_regs(regs, tmp, pk=False):
    if pk:
        o = [f"v_pk_mul_f32 v[{tmp+k}:{tmp+k+1}], v[{regs[k]}:{regs[k]+1}], s[50:51] op_sel_hi:[1,0]" for k in range(0, 8, 2)]
        for k, r in enumerate(regs): o += [f"v_exp_f32 v{tmp+k}, v{tmp+k} clamp", f"v_max_f32 v{r}, s51, v{r}"]
        return o + [f"v_pk_add_f32 v[{regs[k]}:{regs[k]+1}], v[{regs[k]}:{regs[k]+1}], v[{tmp+k}:{tmp+k+1}]" for k in range(0, 8, 2)]
    o = [f"v_mul_f32 v{tmp+k}, s50, v{r}" for k, r in enumerate(regs)]
    for k, r in enumerate(regs): o += [f"v_exp_f32 v{tmp+k}, v{tmp+k} clamp", f"v_max_f32 v{r}, s51, v{r}"]
    return o + [f"v_add_f32 v{r}, v{r}, v{tmp+k}" for k, r in enumerate(regs)]


def pack8(d, e):
    return [f"v_cvt_pk_bf16_f32 v{d}, v{d}, v{d+1}", f"v_cvt_pk_bf16_f32 v{d+1}, v{d+2}, v{d+3}",
            f"v_cvt_pk_bf16_f32 v{d+2}, v{e}, v{e+1}", f"v_cvt_pk_bf16_f32 v{d+3}, v{e+2}, v{e+3}"]


def flagops(one, *soffs):
    return "s_mov_b64 exec, 1\n" + "".join(f"buffer_store_dword v{one}, off, {W}, s{so} sc1\n" for so in soffs) + "s_mov_b64 exec, -1"


VA0, VW2, VA1, VWD = 1, 2, 3, 5
ORD = ORD1 + ORD2
AB = lambda u, i: ((24, 112, 96, 72)[u] if u < 4 else (24, 112, 96, 72, 40, 56)[(u - 4) % 6]) + 4 * i
ACC = lambda j, i: 128 + (j * 4 + i) * 4
JORD = [4, 5, 6, 7, 0, 1, 2, 3]
ND = 8
NA = (16 - ND) // 4
NS = 10 + NA
assert NS == 12
XA = [96, 72, 24, 112]
WP = lambda gi: (88, 8, 16)[(gi + 1) % 3]
ADP = [XA[3], XA[3] + 8, ACC(5, 2), ACC(7, 2), ACC(4, 2), ACC(6, 2), ACC(1, 2), ACC(3, 2), ACC(0, 2), ACC(2, 2), 8, 16, XA[0], XA[0] + 8, XA[1], XA[1] + 8]
WD = lambda k: 40 + 4 * k
PQ = lambda i, h: AC(2 * h, i)
PP = lambda p, f: ((XA[2], XA[2] + 8), (ACC(4, 0), ACC(6, 0)), (ACC(5, 0), ACC(7, 0)))[p - 1][f >> 1] + 4 * (f & 1)
VFL, VPO, GG, VOUT, SEL0 = 2, 3, 94, 4, 88
slot2 = lambda m: ((m + 2) % NSL) * P2SLOT


def ord_table(g, lo, tmp=None):
    pk = lambda o: sum(x << (4 * k) for k, x in enumerate(o))
    g.a(f"s_mov_b32 s{lo}, {hex(pk(ORD) & 0xffffffff)}\ns_mov_b32 s{lo+1}, {hex(pk(ORD) >> 32)}")
    for t8, own in {1: (1,), 2: (2, 3), 3: (4, 5), 4: (7,), 5: (8,), 6: (9, 10), 7: (11, 12)}.items():
        o = list(own) + [x for x in ORD if x not in own]
        g.a(f"s_cmp_eq_u32 s{S_CB}, {t8 ^ g.o['cbx']}\ns_cselect_b32 s{lo}, {hex(pk(o) & 0xffffffff)}, s{lo}\ns_cselect_b32 s{lo+1}, {hex(pk(o) >> 32)}, s{lo+1}")


def line_ops(n):
    return [f"s_bfe_u32 s54, s{4+n//8}, {hex((4<<16) | (4*(n%8)))}", "s_lshl_b32 s54, s54, 17", "s_add_u32 s54, s54, s46", "s_add_u32 s53, s54, 4096"]


def c_wread(n):
    u, j = n // 8, JORD[n % 8]
    return [(('W', n), f"ds_read_b64_tr_b16 v[{WB(n)+2*w}:{WB(n)+2*w+1}], v{VW2} offset:{((j>>2)*2+(u&1))*UNIT + (j&3)*32 + w*256}") for w in range(2)]


def c_loads(u, vm):
    o = []
    if u % 2 == 0: o += line_ops(u // 2)
    for i in range(4):
        o.append((f"buffer_load_dwordx4 {vr(AB(u,i))}, v{VA1 if i>>1 else VA0}, {W}, s{53 if i&1 else 54} offen offset:{(u&1)*2048} {HF[1]}", vm, ('A', u)))
    return o


def u_base(v):
    return slot2(NS + v % 4) + (2 * UNIT if v % 8 < 4 else 0) if v < 16 else slot2(NS + 4 + (v - 16) // 2) + (v & 1) * 2 * UNIT


def u_reads(v):
    return [(('U', v, k & 3), f"ds_read_b64_tr_b16 v[{WD(k)+2*w}:{WD(k)+2*w+1}], v{VWD} offset:{(k>>2)*UNIT + (k&3)*32 + w*256}") for k in (4, 0, 5, 1, 6, 2, 7, 3) for w in range(2)]


def u_areg(v, kk, mi):
    if v >= 16: return ADP[2 * (v - 16) + kk] + 4 * mi
    return (XA if v < 8 else [8] + XA[:3])[v % 4] + 8 * kk + 4 * mi


def u_loads(v, vm):
    if v < 16:
        sb, ln = (46, ORD[NS + v % 4]) if NS + v % 4 < 14 else (45, ND + NS + v % 4 - 14)
        o = [f"s_add_u32 s54, s{sb}, {ln<<17}", f"s_add_u32 s53, s{sb}, {(ln<<17)+4096}"]
    else: o = [f"s_mov_b32 s54, {OREG+((v-16)<<17)}", f"s_mov_b32 s53, {OREG+((v-16)<<17)+4096}"]
    for kk in range(2):
        for mi in range(2): o.append((f"buffer_load_dwordx4 {vr(u_areg(v,kk,mi))}, v{VA1 if v < 8 else VA0}, {W}, s{54-mi} offen offset:{kk*2048} {HF[1] if v < 16 and v % 4 < 2 else 'sc1'}", vm, ('B', v, kk)))
    return o


class Stage:
    def __init__(self, g, q, extra, dens):
        self.g = g; self.q = list(q); self.extra = extra; self.dens = dens; self.carry = 0
    def a(self, x):
        self.g.a(x); self.g.st['since'] += 1
    def wait(self, key):
        need = [k for k, e in enumerate(self.q) if key is None or e == key]
        if need:
            n = min(14, len(self.q) - 1 - max(need))
            self.a(f"s_waitcnt lgkmcnt({n})"); self.q = self.q[len(self.q) - n:]
    def read(self, r):
        self.a(r[1]); self.q.append(r[0])
    def op(self, x):
        if isinstance(x, tuple): x[1].op(x[0], x[2]); self.g.st['since'] += 1
        else: self.a(x)
    def fill(self, used):
        ex, st = self.extra, self.g.st
        while used < self.dens and ex:
            if isinstance(ex[0], int):
                if st['since'] >= ex[0]: ex.pop(0); continue
                return
            if ex[0] == 'XW':
                if 'x' in self.q: return
                ex.pop(0); continue
            x = ex.pop(0)
            if callable(x): x(); used += 2; st['since'] = 0; continue
            if isinstance(x, tuple): x[1].op(x[0], x[2]); x = x[0]
            else: self.g.a(x)
            if x.startswith("ds_"): self.q.append('x')
            st['since'] = 0
            used = 0 if x.startswith("v_mfma") else used + (2 if x.startswith(("v_exp", "v_rcp")) else 1)


def c_slab(g, u, vm, q, extra=None, dens=2, own=False):
    S = Stage(g, q, extra, dens)
    UL = 2 * NS - 1
    ld = c_loads(u + 3, vm) if u < 4 else u_loads(2, vm) if u == UL else []
    pr = p_wread(0) + p_wread(1)[:2] if u == 3 else []
    dr = u_reads(0) if u == UL else []
    if u == 0: ld = [] if own else c_loads(2, vm) + ld
    ab = (lambda i: 40 + 16 * (u - 2) + 4 * i) if own and u in (2, 3) else (lambda i: AB(u, i))
    late = own and u == 1
    vm.wait(('A', u))
    for jj in range(8):
        n = 8 * u + jj
        R = [] if n + 3 >= 16 * NS else c_wread(n + 3) if (n + 3 < 32 or u > 3) else [pr.pop(0), pr.pop(0)]
        for k, i in enumerate(range(4) if jj % 2 == 0 else range(3, -1, -1)):
            S.wait(('W', n))
            S.a(mfma(ACC(JORD[jj], i), WB(n), ab(i), "0" if u == 0 else None))
            used = 1 if k == 3 else 0
            if R: S.read(R.pop(0)); used += 1
            if u % 2 == 1 and u < UL and jj == 4 and k == 2:
                S.a(f"v_add_u32 v{VW2}, {(slot2(u//2+1)-slot2(u//2)) & 0xffffffff}, v{VW2}"); used += 1
                if u // 2 + 1 not in g.o['sk']: S.a("s_barrier"); used = 2
            elif u == UL and jj == 1 and k == 2:
                S.a(f"v_add_u32 v{VWD}, {(u_base(0)-slot2(NS-1)) & 0xffffffff}, v{VW2}"); S.a("s_barrier"); used = 2
            elif dr and jj >= 2 and used < 2 and (k >= 2 or jj >= 5):
                S.read(dr.pop(0)); used += 1
            if ld and used < 2 and (((jj >= 5 and k in (1, 2)) if late else k in (1, 2) if u == 0 else (k == 2 and (jj % 2 == g.o['aspread'] - 1 or not g.o['aspread'] or (u % 2 == 1 and jj == 5))) if u < UL else ((jj >= 2 or NA > 2) and k < 2)) or isinstance(ld[0], str)):
                S.op(ld.pop(0)); used += 1
            S.fill(used)
    assert not ld and not dr
    return S.q


def p_wread(gi):
    j = JORD[gi % 8]
    return [(('P', gi, kk), f"ds_read_b64_tr_b16 v[{WP(gi)+4*kk+2*w}:{WP(gi)+4*kk+2*w+1}], v{VW2} offset:{((j>>2)*2+kk)*UNIT + (j&3)*32 + w*256}") for kk in range(2) for w in range(2)]


def c_pair(g, n, vm, q, extra=None, dens=2):
    S = Stage(g, q, extra, dens)
    ld = (c_loads(7, vm) if n == 2 else []) + (c_loads(2 * n + 4, vm) + c_loads(2 * n + 5, vm) if n < 10 else u_loads(0, vm) + u_loads(1, vm))
    vm.wait(('A', 2 * n), ('A', 2 * n + 1))
    for jj in range(8):
        gi = 8 * (n - 2) + jj
        R = (p_wread(1)[2:] if gi == 0 else []) + (p_wread(gi + 2) if gi + 2 < 72 else c_wread(176) + c_wread(177) if gi == 70 else c_wread(178))
        k = 0
        for i in (range(4) if jj % 2 == 0 else range(3, -1, -1)):
            for kk in ((0, 1) if k % 4 == 0 else (1, 0)):
                S.wait(('P', gi, 1))
                S.a(mfma(ACC(JORD[jj], i), WP(gi) + 4 * kk, AB(2 * n + kk, i)))
                used = 1 if k == 7 else 0
                if R: S.read(R.pop(0)); used += 1
                if jj == 5 and k == 5:
                    S.a(f"v_add_u32 v{VW2}, {(slot2(n+1)-slot2(n)) & 0xffffffff}, v{VW2}"); used += 1
                    if n + 1 not in g.o['sk']: S.a("s_barrier"); used = 2
                if ld and used < 2 and (k in g.o['pk'] or isinstance(ld[0], str)):
                    S.op(ld.pop(0)); used += 1
                S.fill(used)
                k += 1
        assert not R
    assert not ld
    return S.q


def unit(g, v, vm, q, extra, dens=2):
    S = Stage(g, q, extra, dens)
    R = u_reads(v + 1) if v < 15 + ND else []
    t = {0: 3, 2: 8, 5: 9, 6: 10, 7: 11}
    for n, w in enumerate(g.o['dld']):
        assert w >= (8, 8, 8, 10, 12, 13, 14, 15)[n]
        t[w] = 16 + n
    t = t.get(v)
    ld = u_loads(t, vm) if t is not None else []
    m = 0
    vm.wait(('B', v, 0), ('B', v, 1))
    for s in range(4):
        for kk, mi in (((0, 0), (1, 0), (1, 1), (0, 1)) if s % 2 == 0 else ((0, 1), (1, 1), (1, 0), (0, 0))):
            S.wait(('U', v, s))
            acc = ACC((4 if v % 8 < 4 else 0) + s, mi + (2 if v < 8 else 0)) if v < 16 else ACC(s, mi)
            S.a(mfma(acc, WD(4 * kk + s), u_areg(v, kk, mi)))
            used = 1 if m % 4 == 3 else 0
            if R and m == 0:
                S.a(f"v_add_u32 v{VWD}, {(u_base(v+1)-u_base(v)) & 0xffffffff}, v{VWD}"); used += 1
                if v in (3, 12, g.o['r1']): S.a("s_barrier"); used += 1
            elif R and m >= 2:
                S.read(R.pop(0)); used += 1
                if m >= 14: S.read(R.pop(0)); used += 1
            if ld and m in (1, 2, 4, 6, 9, 13):
                S.op(ld.pop(0)); used += 1
            S.fill(used)
            m += 1
    assert not R and not ld
    return S.q


def spaced(lst, n):
    o = []
    for x in lst: o += [x, n]
    return o


def strs(ex):
    return [x for x in ex if not isinstance(x, int)]


def compute(g):
    a = g.a
    a("L_compute:")
    a("v_and_b32 v4, 15, v0\nv_lshrrev_b32 v5, 4, v0")
    a("v_bfe_u32 v6, v4, 3, 1\nv_bfe_u32 v7, v4, 1, 1\nv_lshl_add_u32 v6, v6, 1, v7")
    a(f"v_mul_u32_u24 v{VX}, {BLK}, v6")
    a("v_bfe_u32 v6, v4, 2, 1\nv_and_b32 v7, 1, v4\nv_lshl_add_u32 v6, v6, 1, v7")
    a(f"v_lshl_add_u32 v{VX}, v6, 7, v{VX}\nv_lshl_add_u32 v{VX}, v5, 4, v{VX}")
    a(f"s_mul_i32 s45, s{S_WAVE}, {2*UNIT}\nv_add_u32 v{VX}, s45, v{VX}")
    a("v_and_b32 v6, 1, v5\nv_bfe_u32 v7, v4, 3, 1\nv_lshl_add_u32 v6, v6, 1, v7")
    a(f"v_mul_u32_u24 v{VW}, {BLK}, v6")
    a("v_lshrrev_b32 v6, 1, v5\nv_bfe_u32 v7, v4, 2, 1\nv_lshl_add_u32 v6, v6, 2, v7")
    a(f"v_lshl_add_u32 v{VW}, v6, 7, v{VW}\nv_and_b32 v6, 3, v4\nv_lshl_add_u32 v{VW}, v6, 3, v{VW}")
    a(f"v_add_u32 v{VW}, {WBASE}, v{VW}")
    a(f"v_lshrrev_b32 v6, 5, v0\nv_and_b32 v7, 31, v0\nv_lshlrev_b32 v7, 3, v7\nv_lshl_add_u32 v{VQ}, v6, 9, v7")
    a(f"v_add_u32 v{VQ}, {WBASE+3*UNIT}, v{VQ}")
    for r in range(48, 256, 2): a(f"v_mov_b64 v[{r}:{r+1}], 0")
    a(f"s_mov_b32 s45, 7\ns_mov_b32 s46, 0\ns_mov_b32 s48, {(-2*XSLOT) & 0xffffffff}\ns_mov_b32 s49, {XSLOT}")
    a("s_mov_b32 s50, 0x3fb8aa3b\ns_mov_b32 s51, 0x358637bd")
    a(f"s_and_b32 s52, s{S_MB8}, 3\ns_lshl_b32 s52, s52, 21\ns_lshl_b32 s53, s{S_WAVE}, 15\ns_add_u32 s52, s52, s53")
    a(f"s_and_b32 s53, s{S_QD}, 1\ns_mul_i32 s53, s53, 7\ns_lshl_b32 s55, s32, 6\ns_add_u32 s53, s53, s55")
    a(f"s_add_u32 s66, s53, 6\ns_lshl_b32 s66, s66, 17\ns_add_u32 s66, s66, s52")
    a(f"s_lshr_b32 s55, s{S_C}, 1\ns_lshl_b32 s55, s55, 11\ns_add_u32 s66, s66, s55")
    a(f"s_and_b32 s55, s{S_C}, 1\ns_lshl_b32 s55, s55, 10\ns_add_u32 s66, s66, s55")
    a("s_add_u32 s67, s66, 16384")
    a(f"s_lshr_b32 s57, s{S_WAVE}, 1\ns_and_b32 s58, s{S_WAVE}, 1")
    a(f"s_lshl_b32 s59, s2, 11\ns_lshl_b32 s55, s{S_WAVE}, 7\ns_add_u32 s59, s59, s55\ns_add_u32 s59, s59, {WS_FLAG}")
    a(f"s_add_u32 s60, s59, {F_H2}\ns_add_u32 s61, s59, {F_X}")
    a("v_lshlrev_b32 v4, 4, v0\nv_mov_b32 v6, 1")
    lane_goodcol(g, 7, 5)
    a("s_waitcnt lgkmcnt(0)")
    srd(g, SRD_WS, 26, 0x10000000)
    ord_table(g, 4)
    a(f"s_lshl_b32 s6, s{S_RH}, 14\ns_xor_b32 s7, s6, 16384\ns_add_u32 s6, s6, s52\ns_add_u32 s7, s7, s52\ns_lshl_b32 s8, s32, 23\ns_mul_i32 s9, s32, {NA<<17}\ns_add_u32 s9, s9, {OREG}")
    a(f"s_lshl_b32 s16, s{S_WAVE}, 13\ns_lshl_b32 s17, s{S_WAVE}, 10\ns_add_u32 s17, s17, {P2END}")
    if g.o.get('prio'): a(f"s_setprio {g.o['prio']}")
    a("s_waitcnt vmcnt(0)\ns_barrier")
    g.stamp(1)

    def em(lst):
        for x in lst: a(x)
    def p2_setup():
        a(f"v_add_u32 v{VA0}, s6, v7\nv_add_u32 v{VA1}, s7, v7\ns_mov_b32 s46, s8\ns_mov_b32 s45, s9\nv_add_u32 v{VW2}, {(slot2(0)-WBASE) & 0xffffffff}, v{VW2}")
    def moves(dst, tile):
        l0, l1 = g.lab("mv"), g.lab("mv")
        f = lambda x: "\n".join(f"v_mov_b64 v[{d+4*i+r}:{d+4*i+r+1}], v[{AC(t,i^x)+r}:{AC(t,i^x)+r+1}]" for d, t in zip(dst, tile) for i in range(4) for r in (0, 2))
        return [f"s_cmp_lg_u32 s{S_RH}, 0\ns_cbranch_scc1 {l0}\n{f(0)}\ns_branch {l1}\n{l0}:\n{f(2)}\n{l1}:"]
    def c_begin(vm, mv=()):
        g.stamp(4)
        a("s_waitcnt lgkmcnt(0)")
        em(mv)
        a("s_barrier")
        g.stamp(5)
        R = c_wread(0) + c_wread(1) + c_wread(2)
        for _, x in R: a(x)
        return [k for k, _ in R]
    def flag_ex(vm, tag, so):
        return lambda: (vm.wait(tag), a(flagops(6, so)), vm.mark('f', 1))
    def quarter(tmp):
        o = [f"v_bfe_u32 v{VQ}, v0, 4, 1", f"v_mul_u32_u24 v{VQ}, 3584, v{VQ}", f"v_lshrrev_b32 v{tmp}, 5, v0", f"v_lshlrev_b32 v{tmp}, 9, v{tmp}",
             f"v_sub_u32 v{VQ}, v{VQ}, v{tmp}", f"v_add_u32 v{VQ}, v{VQ}, v7"]
        for p in (1, 0):
            d = AC(12, 2 * p)
            o += h_cvt(d, d, d + 4)
        for p in (1, 0):
            d = AC(12, 2 * p)
            o += [f"s_nop 1\nv_permlane16_swap_b32 v{d}, v{d+2}", f"v_permlane16_swap_b32 v{d+1}, v{d+3}",
                  f"buffer_store_dwordx4 {vr(d)}, v{VQ}, {W}, s{66+p} offen {HF[0]}"]
        return o

    a(f"s_cmp_ge_u32 s{S_C}, 2\ns_cbranch_scc1 L_cq")
    a(f"s_add_u32 s55, s53, s{S_C}\ns_lshl_b32 s55, s55, 17\ns_add_u32 s55, s55, s52")
    p1_loop(g, True)
    SEL = lambda t: 224 + 4 * t
    T = lambda t: (176 + 4 * t) if t < 4 else (240 + 4 * (t - 4)) if t < 8 else 204
    ex2 = ["v_and_b32 v201, 3, v0", "v_mov_b32 v202, 0x3f803f80"]
    for t in range(4):
        ex2 += [f"v_cmp_eq_u32 vcc, {t}, v201\ns_nop 1\nv_cndmask_b32 v{SEL(t)}, 0, v202, vcc"] + [f"v_mov_b32 v{SEL(t)+r}, v{SEL(t)}" for r in (1, 2, 3)]
    ex2 += quarter(200)
    for s_ in range(4):
        for p in range(2):
            ex2 += phi_regs(list(range(AC(s_, 2 * p), AC(s_, 2 * p) + 8)), 192, 2 * s_ + p >= g.o.get('pk0', 2)) + pack8(AC(s_, 2 * p), AC(s_, 2 * p + 1))
        if s_ == 1: ex2.append(None)
    rest = p1_tail(g, True, h_line_store(8, 55), ex2, flagops(6, 59))
    g.stamp(2)
    k = rest.index(None)
    em(rest[:k]); rest = rest[k + 1:]
    em(moves((24,), (8,)))
    for s_ in range(4, 8):
        for p in (1, 0): em(pack8(AC(s_, 2 * p), AC(s_, 2 * p + 1)))
    def kv_mfmas(h):
        o = []
        for p in range(2):
            for dt in range(2):
                for e in range(2): o.append(mfma(T((h * 2 + e) * 2 + dt), AC(2 * h + dt, 2 * p), AC(4 + 2 * h + e, 2 * p), "0" if p == 0 else None))
                o.append(mfma(T(8), AC(2 * h + dt, 2 * p), SEL(2 * h + dt), "0" if (h, p, dt) == (0, 0, 0) else None))
        return o
    wr = lambda t: f"ds_write_b128 v5, {vr(T(t))} offset:{t*1024}"
    a("v_add_u32 v5, s16, v4\ns_waitcnt vmcnt(0)")
    a(flagops(6, *((60,) if g.o['fpos'] < 64 else (59, 60))))
    for x in kv_mfmas(0):
        a(x); em(rest[:3]); rest = rest[3:]
    vm = VM(a)
    for t in range(4): em(rest[:10]); rest = rest[10:]; a(wr(t))
    em(moves((112,), (10,))); em(rest)
    a("s_nop 1")
    em(kv_mfmas(1))
    p2_setup()
    a("v_add_u32 v88, s17, v4\ns_nop 0")
    for t in (4, 6, 5, 7): a(wr(t))
    a(f"ds_write_b128 v88, {vr(T(8))}")
    g.stamp(3)
    q = c_begin(vm)
    JU = 4
    for u in range(JU): q = c_slab(g, u, vm, q)
    qj, vj = list(q), list(vm.q)
    a("s_branch L_c2join")
    a("L_cq:")
    a(f"s_lshl_b32 s55, s{S_C}, 1\ns_add_u32 s55, s55, s53\ns_sub_u32 s55, s55, 2\ns_lshl_b32 s55, s55, 17\ns_add_u32 s55, s55, s52")
    a("s_add_u32 s62, s55, 0x20000")
    p1_loop(g, False)
    b2 = quarter(AC(5, 0)) + [x for x in h_line_store(8, 62) if x.startswith("v_")]
    mv = moves((40, 56), (8, 10))
    late2 = [f"buffer_store_dwordx4 {vr(40+16*p+4*i)}, v{VA1 if i>>1 else VA0}, {W}, s{63 if i&1 else 62} offen offset:{p*2048} {HF[0]}" for p in range(2) for i in range(4)]
    em(p1_tail(g, False, h_line_store(4, 55), b2, flagops(6, 59)))
    g.stamp(2)
    vm = VM(a, ['h2'])
    hand_q = []
    for h in range(2):
        for i in (2, 3, 0, 1): hand_q.append(pack8(AC(2 * h, i), AC(2 * h + 1, i)) + [f"ds_write_b128 v5, {vr(PQ(i,h))} offset:{(i*2+h)*1024}"])
    a(f"s_lshl_b32 s55, s{S_WAVE}, 13\nv_add_u32 v5, s55, v4")
    phg = g.o.get('phig', 4)
    for x in hand_q: em(x)
    p2_setup()
    a("s_sub_u32 s62, s62, s52\ns_add_u32 s63, s62, 4096")
    em(moves((24, 112), (4, 6)))
    g.stamp(3)
    q = c_begin(vm, mv + (["s_waitcnt vmcnt(0)\n" + flagops(6, 59)] if g.o['fpos'] >= 64 else []))
    ex = []
    for x in late2: ex += [(x, vm, 'h2'), g.o['st2sp']]
    for u in range(JU): q = c_slab(g, u, vm, q, ex, own=True)
    ex = strs(ex)
    qq = [x for x in vm.q if x not in ('f', 'h2')]
    assert not ex and q == qj and qq == vj[len(vj) - len(qq):]
    a("L_c2join:")
    vm.q = list(vj)
    pre = (inbox(68, 56, S_WAVE) +
           "".join(f"s_xor_b32 s{61+p}, s68, {hex(p<<18)}\ns_add_u32 s{61+p}, s{61+p}, {WS_PART+((p-1)<<16)}\ns_add_u32 s{64+p}, s{61+p}, 4096\n" for p in (1, 2, 3)) +
           f"s_add_u32 s59, s59, {F_P}\ns_lshl_b32 s68, s{S_WAVE}, 12\ns_add_u32 s68, s68, {P2END}\n"
           f"s_add_u32 s69, s{S_WAVE}, {NS+2}\ns_and_b32 s69, s69, {NSL-1}\ns_mul_i32 s69, s69, {P2SLOT}\ns_add_u32 s69, s69, {2*UNIT}\n"
           f"s_mov_b32 s28, s18\ns_mov_b32 s29, s19\ns_mov_b32 s30, {hex(2048*1024*2)}\ns_mov_b32 s31, 0x20000\n"
           f"s_lshl_b32 s55, s{S_MB8}, 2\ns_add_u32 s55, s55, s{S_WAVE}\ns_lshl_b32 s55, s55, 17\ns_lshl_b32 s56, s{S_RH}, 16\ns_add_u32 s55, s55, s56\n"
           f"s_lshl_b32 s56, s{S_CB}, 8\ns_add_u32 s55, s55, s56\ns_lshl_b32 s56, s{S_KH}, 7\ns_add_u32 s55, s55, s56\n"
           f"s_lshl_b32 s50, s{S_WAVE}, 1\ns_add_u32 s50, s50, s{S_RH}\ns_lshl_b32 s50, s50, 7\ns_add_u32 s50, s50, {LDS_G}\n"
           f"v_and_b32 v{SEL0+6}, 15, v0\nv_lshrrev_b32 v{SEL0+7}, 4, v0\nv_lshlrev_b32 v{SEL0+7}, 2, v{SEL0+7}\nv_sub_u32 v{SEL0+6}, v{SEL0+6}, v{SEL0+7}\n"
           f"v_and_b32 v{SEL0+7}, 1, v0\nv_lshlrev_b32 v{SEL0+7}, 4, v{SEL0+7}\nv_mov_b32 v{SEL0}, 0x3f80\nv_lshlrev_b32 v{SEL0+7}, v{SEL0+7}, v{SEL0}\nv_lshrrev_b32 v{SEL0+6}, 1, v{SEL0+6}").split("\n")
    pre += [f"v_cmp_eq_u32 vcc, {k}, v{SEL0+6}\ns_nop 1\nv_cndmask_b32 v{SEL0+2+k}, 0, v{SEL0+7}, vcc" for k in range(2)]
    pre += [f"v_mov_b32 v{SEL0+r}, 0" for r in (0, 1, 4, 5)]
    ex = [x for x in pre if x.startswith("s_")]
    for n in range(2, NS - 1):
        if n == 3:
            vm.wait(('A', 7)); a(flagops(6, 60)); vm.mark('f', 1)
        q = c_pair(g, n, vm, q, ex)
    assert not ex
    ex = [x for x in pre if not x.startswith("s_")]
    for u in (2 * NS - 2, 2 * NS - 1): q = c_slab(g, u, vm, q, ex)
    def send(p, sp, mi):
        j, i = 4 * (p >> 1) + 2 * sp, 2 * (p & 1) + mi
        return pack8(ACC(j, i), ACC(j + 1, i)) + [(f"buffer_store_dwordx4 {vr(ACC(j,i))}, v7, {W}, s{61+p+3*mi} offen offset:{sp*2048} sc1", vm, ('ps', p))]
    def rdp(p):
        return [f"ds_read_b128 {vr(PP(p,f))}, v{VFL if p == 3 else VPO} offset:{(4096 if p == 2 else 0)+f*1024}" for f in range(4)]
    def addp(p):
        return [mfma(ACC(2 * sp + t, mi), SEL0 + 2 - 2 * t, PP(p, mi * 2 + sp)) for mi in range(2) for sp in range(2) for t in range(2)]
    XF = g.o['xf']
    PO = (3, 1, 2)
    for v in range(17 + ND):
        if v == 1:
            assert not ex
            ex += (f"v_add_u32 v{VFL}, s68, v4\nv_add_u32 v{VPO}, s69, v4\nv_and_b32 v{VOUT}, 15, v0\nv_lshl_add_u32 v{GG}, v{VOUT}, 2, s50\n"
                   f"v_lshrrev_b32 v{VOUT}, 3, v0\nv_and_b32 v{GG+1}, 7, v0\nv_lshlrev_b32 v{GG+1}, 4, v{GG+1}\nv_lshl_add_u32 v{VOUT}, v{VOUT}, 11, v{GG+1}\n"
                   f"ds_read_b32 v{GG+1}, v{GG} offset:64\nds_read_b32 v{GG}, v{GG}").split("\n")
            ex += ['XW', f"v_add_f32 v{GG}, 1.0, v{GG}", f"v_add_f32 v{GG+1}, 1.0, v{GG+1}", f"v_rcp_f32 v{GG}, v{GG}", f"v_rcp_f32 v{GG+1}, v{GG+1}"]
        if 4 <= v < 16:
            if v % 4 == 0:
                snd = [send(PO[v // 4 - 1], sp, mi) for sp in range(2) for mi in range(2)]
                g.st['since'] = 0; ex.append(6)
            if v >= 12 and g.o.get('fast2', 1):
                if v % 4 < 2: ex += snd[2 * (v % 4)] + snd[2 * (v % 4) + 1]
            elif v % 4 < 2: ex += snd[2 * (v % 4)][:4] + [snd[v % 4][4]] + snd[2 * (v % 4) + 1][:4]
            else: ex += [snd[v % 4][4]]
        if v == 16: g.stamp(6)
        if v == g.o['r1'] + 1: g.stamp(3)
        if v == 14: g.stamp(4)
        if v in (0, 4, 8, 12, 20): g.stamp({0: 11, 4: 12, 8: 13, 12: 14, 20: 15}[v])
        for r in range(3):
            if v == XF[r]:
                assert v >= (8, 12, 14 if g.o.get('fast2', 1) else 16)[r]
                vm.wait(('ps', PO[r])); a(flagops(6, 59)); vm.mark('f', 1); a(f"v_mov_b32 v6, {r+2}")
        if v == g.o['r1']:
            assert v >= 16 and not ex
            g.st['since'] = 0
            ex += [4] + rdp(3) + rdp(1) + ['XW'] + addp(3) + addp(1)
        if v < 16 + ND: q = unit(g, v, vm, q, ex, dens=g.o.get('ydens', 3) if v < 16 else g.o.get('ddens', 3))
        if 4 <= v < 16: assert not [x for x in ex if (isinstance(x, tuple) and x[2][0] == 'ps') or (isinstance(x, str) and x.startswith("v_cvt"))]
    assert not ex
    g.stamp(9)
    a("s_barrier")
    g.stamp(10)
    assert g.o['r1'] == 99
    for f in range(4): em([rdp(p)[f] for p in (3, 1, 2)])
    a(f"s_mul_i32 s56, s{S_WAVE}, 4608\ns_add_u32 s56, s56, {slot2(NS+4)}\nv_and_b32 v1, 15, v0\nv_mul_u32_u24 v1, 144, v1\nv_lshrrev_b32 v5, 4, v0\nv_lshlrev_b32 v5, 3, v5\nv_add3_u32 v1, v1, v5, s56")
    a(f"v_lshrrev_b32 v5, 3, v0\nv_mul_u32_u24 v5, 144, v5\nv_and_b32 v6, 0x70, v{VOUT}\nv_add3_u32 v5, v5, v6, s56")
    def fin(f):
        mi, hf = f >> 1, f & 1
        d = ACC(2 * hf, mi)
        o = []
        for j in range(2):
            for r in (0, 2): o.append(f"v_pk_mul_f32 v[{ACC(2*hf+j,mi)+r}:{ACC(2*hf+j,mi)+r+1}], v[{ACC(2*hf+j,mi)+r}:{ACC(2*hf+j,mi)+r+1}], v[{GG}:{GG+1}] op_sel:[0,{mi}] op_sel_hi:[1,{mi}]")
        o += pack8(d, ACC(2 * hf + 1, mi)) + [f"ds_write_b64 v1, v[{d+2*j}:{d+2*j+1}] offset:{mi*2304+hf*64+j*32}" for j in range(2)]
        if hf: o += [f"ds_read_b128 {vr(40+8*mi+4*k)}, v5 offset:{mi*2304+k*1152}" for k in range(2)]
        return o
    st = lambda k: f"s_add_u32 s56, s55, {0x4000*k}\nbuffer_store_dwordx4 {vr(40+4*k)}, v{VOUT}, s[28:31], s56 offen {g.o.get('outflag','')}"
    bg = []
    for f in range(4):
        a(f"s_waitcnt lgkmcnt({(9, 6, 3, 2)[f]})")
        for t in range(2):
            for p in (3, 1, 2):
                a(addp(p)[2 * f + t]); em(bg[:2]); bg = bg[2:]
        assert not bg
        if f: bg = fin(f - 1)
    g.stamp(7)
    em(bg); a("s_waitcnt lgkmcnt(2)"); a(st(0)); a(st(1))
    em(fin(3)); a("s_waitcnt lgkmcnt(1)"); a(st(2)); a("s_waitcnt lgkmcnt(0)"); a(st(3))
    if g.o['prof']:
        a("s_waitcnt vmcnt(0)")
        g.stamp(8)
    if g.o.get('probe') is not None:
        k = g.o['probe']
        if k == 'xcc':
            k = 0
            a("s_waitcnt lgkmcnt(0)\ns_getreg_b32 s55, hwreg(HW_REG_XCC_ID)\ns_sub_u32 s55, s55, s2\ns_and_b32 s55, s55, 7\ns_mul_i32 s55, s55, 500\ns_add_u32 s70, s70, s55")
        if k == 'min':
            k = 0
            srd(g, 28, 24, 256)
            a("buffer_load_dword v5, off, s[28:31], 0 offset:4 sc1\ns_waitcnt vmcnt(0) lgkmcnt(0)\nv_readfirstlane_b32 s70, v5\ns_nop 3\ns_not_b32 s70, s70")
        a(f"s_waitcnt lgkmcnt(0)\ns_add_u32 s55, s{70+2*k}, 6000\nL_probe:\ns_memrealtime s[56:57]\ns_waitcnt lgkmcnt(0)\ns_sub_u32 s56, s56, s55\ns_cmp_lt_i32 s56, 0\ns_cbranch_scc1 L_probe\ns_endpgm")
    prof_dump(g, 0, 0)
    a("s_endpgm")


def q_call(g, n):
    K1 = g.o['k1']
    k = f"p{n}" if n < len(g.o['pch']) else 4 + n - K1 if K1 <= n <= K1 + g.o['noc'] else None
    if k is None: return
    l = g.lab("qc")
    if n == 0: g.a("s_call_b64 s[84:85], L_qp0"); return
    g.a(f"s_cmp_lt_u32 s{S_C}, 2\ns_cbranch_scc1 {l}\ns_call_b64 s[84:85], L_q{k}\n{l}:")


def q_chunks(g):
    a = g.a
    QR = lambda f: 128 + 4 * f
    def phi(f):
        if g.o.get('nophi'): return
        for r in range(4): a(f"v_lshlrev_b32 v{160+2*r}, 16, v{QR(f)+r}\nv_and_b32 v{161+2*r}, 0xffff0000, v{QR(f)+r}")
        for r in range(8): a(f"v_mul_f32 v{168+r}, 0x3fb8aa3b, v{160+r}")
        for r in range(8): a(f"v_exp_f32 v{168+r}, v{168+r} clamp\nv_max_f32 v{160+r}, 0x358637bd, v{160+r}")
        for r in range(8): a(f"v_add_f32 v{160+r}, v{160+r}, v{168+r}")
        for r in range(4): a(f"v_cvt_pk_bf16_f32 v{QR(f)+r}, v{160+2*r}, v{161+2*r}")
    nf = 0
    assert sum(g.o['pch']) == 8 and len(g.o['pch']) <= g.o['k0']
    a("L_k0:\ns_setprio 2")
    a(f"s_lshl_b32 s82, s86, 11\nv_lshl_add_u32 v224, v0, 4, s82\nv_lshlrev_b32 v225, 4, v0\nv_add_u32 v226, {P2END}, v225")
    for w in range(4):
        for t in range(2): a(f"ds_read_b128 {vr(128+8*w+4*t)}, v224 offset:{w*8192+t*1024}")
    for w in range(4): a(f"ds_read_b128 {vr(160+4*w)}, v226 offset:{w*1024}")
    a(f"s_lshl_b32 s83, s{S_PAIR}, 3\ns_add_u32 s83, s83, s{S_MB8}\ns_mul_i32 s83, s83, 9216\ns_add_u32 s83, s83, {WS_KVP}\ns_add_u32 s82, s82, s83")
    a("s_add_u32 s83, s83, 8192\ns_cmp_eq_u32 s86, 0\ns_cselect_b32 s83, s83, 0x10000000\ns_waitcnt lgkmcnt(4)")
    for r in range(16): a(f"v_add_f32 v{128+r}, v{128+r}, v{144+r}")
    for r in range(8): a(f"v_add_f32 v{128+r}, v{128+r}, v{136+r}")
    for t in range(2): a(f"buffer_store_dwordx4 {vr(128+4*t)}, v225, {W}, s82 offen offset:{t*1024} sc1")
    a("s_waitcnt lgkmcnt(0)")
    for r in range(8): a(f"v_add_f32 v{160+r}, v{160+r}, v{168+r}")
    for r in range(4): a(f"v_add_f32 v{160+r}, v{160+r}, v{164+r}")
    a(f"buffer_store_dwordx4 v[160:163], v225, {W}, s83 offen sc1\ns_setprio 0\ns_setpc_b64 s[84:85]")
    for k in range(len(g.o['pch'])):
        a(f"L_qp{k}:")
        if k == 0: a(f"s_sub_u32 s86, s{S_WAVE}, 4\ns_cmp_lt_u32 s{S_C}, 2\ns_cbranch_scc1 L_k0")
        if g.o.get('pprio'): a(f"s_setprio {g.o['pprio']}")
        if k == 0:
            a(f"s_sub_u32 s86, s{S_WAVE}, 4\ns_lshl_b32 s82, s86, 13\nv_lshl_add_u32 v224, v0, 4, s82")
            for f in range(8): a(f"ds_read_b128 {vr(QR(f))}, v224 offset:{f*1024}")
            a(f"s_lshl_b32 s83, s2, 11\ns_add_u32 s83, s83, {WS_FLAG+F_X}\ns_xor_b32 s83, s83, s79")
            a(f"s_and_b32 s82, s{S_MB8}, 3\ns_lshl_b32 s82, s82, 4\ns_add_u32 s82, s82, s{S_PAIR}\ns_lshl_b32 s82, s82, 2\ns_add_u32 s82, s82, s86\ns_lshl_b32 s82, s82, 15\ns_add_u32 s82, s82, {OREG}")
            a(f"v_lshlrev_b32 v224, 4, v0\nv_add_u32 v224, {P2END}, v224\nv_mov_b32 v226, 0\nds_write_b32 v224, v226 offset:8192\nv_mov_b32 v226, 1\ns_waitcnt lgkmcnt(0)")
        for _ in range(g.o['pch'][k]): phi(nf); nf += 1
        a("s_setpc_b64 s[84:85]")
    noc = g.o['noc']
    tiles = {2: [(0, 1), (2, 3)], 3: [(0,), (1, 2), (3,)], 4: [(0,), (1,), (2,), (3,)]}[noc]
    for k in range(noc):
        a(f"L_q{4+k}:")
        if g.o.get('qprio'): a(f"s_setprio {g.o['qprio']}")
        lane_goodcol(g, 225, 227)
        if k == 0:
            for f in range(6): a(f"ds_read_b128 {vr(176+4*f)}, v224 offset:{f*1024}")
            a(f"s_lshl_b32 s86, s{S_WAVE}, 8\ns_add_u32 s86, s86, {LDS_G-1024}\nv_and_b32 v227, 15, v0\nv_lshl_add_u32 v227, v227, 2, s86")
            for i in range(4): a(f"ds_read_b32 v{228+i}, v227 offset:{i*64}")
            a("s_waitcnt lgkmcnt(0)")
        for i in tiles[k]:
            for h in range(2):
                for e in (2, 0, 1): a(mfma(200 + 12 * h + 4 * e, 176 + 4 * (3 * h + e), QR(2 * i + h), "0"))
            a(f"s_add_u32 s86, s82, {MT(i)}\ns_nop 3")
            for h in range(2):
                t = 200 + 12 * h
                a(f"v_add_f32 v{t+8}, 0x358637bd, v{t+8}\nv_rcp_f32 v{t+8}, v{t+8}\ns_nop 0\nv_mul_f32 v{t+8}, v{228+i}, v{t+8}")
                for r in range(8): a(f"v_mul_f32 v{t+r}, v{t+r}, v{t+8}")
                for r in range(4): a(f"v_cvt_pk_bf16_f32 v{QR(2*i+h)+r}, v{t+2*r}, v{t+2*r+1}")
                a(f"buffer_store_dwordx4 {vr(QR(2*i+h))}, v225, {W}, s86 offen offset:{h*2048} sc1")
        if g.o.get('qprio'): a("s_setprio 0")
        a("s_setpc_b64 s[84:85]")
    a(f"L_q{4+noc}:\ns_waitcnt vmcnt(0)\nds_add_rtn_u32 v227, v224, v226 offset:8192\ns_waitcnt lgkmcnt(0)\nv_cmp_eq_u32 vcc, 3, v227\ns_cbranch_vccz L_qret")
    a(flagops(226, 83) + "\nL_qret:\ns_mov_b64 vcc, -1\ns_setpc_b64 s[84:85]")


def aux_sel(g):
    if g.o['pol'] is None: g.a(f"v_mov_b32 v227, {LDS_SEL}\nds_read_b32 v227, v227\ns_waitcnt lgkmcnt(0)\nv_readfirstlane_b32 s79, v227\ns_nop 1\ns_xor_b32 s{S_SEL}, s{S_SEL}, s79")
    if g.o['pol'] is not None or not g.o['nearf']: g.a("s_mov_b32 s79, 0")


def aux_rx(g):
    a = g.a
    a("L_rx:")
    lane_goodcol(g, 225, 227)
    a(f"v_add_u32 v224, 1024, v225\ns_sub_u32 s86, s{S_WAVE}, 4")
    a(inbox(82, 83, 86) + f"s_add_u32 s82, s82, {WS_PART}")
    a(f"s_lshl_b32 s83, s2, 11\ns_lshl_b32 s47, s86, 7\ns_add_u32 s83, s83, s47\ns_xor_b32 s83, s83, s79")
    a(f"s_lshl_b32 s84, s86, 12\ns_add_u32 s84, s84, {P2END}")
    a(f"s_add_u32 s85, s86, {NS+2}\ns_and_b32 s85, s85, {NSL-1}\ns_mul_i32 s85, s85, {P2SLOT}\ns_add_u32 s85, s85, {2*UNIT}")
    a("s_waitcnt vmcnt(0) lgkmcnt(0)\ns_barrier")
    for r, p in enumerate((3, 1, 2)):
        a(f"s_xor_b32 s47, s83, {p<<11}\ns_add_u32 s47, s47, {WS_FLAG+F_P}")
        iss = lambda: a(f"buffer_load_dword v226, off, {W}, s47 sc1")
        if r == 2 and g.o['r1'] != 99: a("s_waitcnt vmcnt(0)"); iss(); a("s_barrier")
        else: iss()
        poll_check(g, iss, 226, 1, r + 1, "gt")
        for mi in range(2):
            a(f"s_add_u32 m0, s{84 if p == 3 else 85}, {(4096 if p == 2 else 0)+mi*2048}\ns_add_u32 s47, s82, {((p-1)<<16)+mi*4096}")
            a(f"buffer_load_dwordx4 v225, {W}, s47 offen sc1 lds\nbuffer_load_dwordx4 v224, {W}, s47 offen offset:1024 sc1 lds")
    a("s_waitcnt vmcnt(0)\ns_endpgm")


def loader(g):
    def a(x):
        if not g.o.get('trace'): return g.a(x)
        for ln in x.split("\n"):
            g.a(ln)
            if ln.strip() == "s_barrier":
                g.a(("s_memtime" if g.o['trace'] == 'cyc' else "s_memrealtime") + " s[100:101]\ns_waitcnt lgkmcnt(0)\ns_mov_b32 m0, s44\ns_add_u32 s44, s44, 1\nv_writelane_b32 v32, s100, m0\ns_cmp_lg_u32 s44, 33\ns_cbranch_scc1 1\nv_mov_b32 v33, v32")
    if g.o.get('trace'): a("s_mov_b32 s44, 0\nv_mov_b32 v32, 0\nv_mov_b32 v33, 0")
    LW = 45
    if g.o.get('sprio'): a(f"s_setprio {g.o['sprio']}")
    a(f"s_sub_u32 s{LW}, s{S_WAVE}, 4")
    a("v_lshrrev_b32 v1, 5, v0\nv_bfe_u32 v2, v0, 4, 1\nv_lshlrev_b32 v1, 4, v1\nv_lshl_add_u32 v1, v2, 2, v1\nv_bfe_u32 v2, v0, 3, 1\nv_add_u32 v1, v1, v2")
    a(f"s_lshl_b32 s61, s{LW}, 3\nv_add_u32 v1, s61, v1\nv_and_b32 v2, 7, v0\nv_lshlrev_b32 v2, 4, v2")
    a(f"s_lshl_b32 s61, s{S_MB8}, 19\nv_lshl_add_u32 v4, v1, 11, v2\nv_add_u32 v4, s61, v4\nv_add_u32 v5, {4096-BLK}, v4")
    a(f"s_mul_i32 s66, s{LW}, {2*BLK}")
    a(f"s_mov_b32 s61, s66\ns_mov_b32 s62, 0\ns_mov_b32 s63, 0\ns_mov_b32 s64, 0\ns_add_u32 s65, s66, {WBASE}")
    a(f"s_add_u32 s67, s66, {XRING}\ns_add_u32 s68, s66, {WBASE+4*WSLOT}")
    a(f"s_lshl_b32 s69, s{LW}, 9\ns_sub_u32 s69, s69, s66\ns_add_u32 s69, s69, {3*UNIT}")
    a(f"s_mov_b32 s30, {hex(2048*1024*2)}\ns_mov_b32 s31, 0x20000\ns_mov_b32 s50, {hex(1024*3072*2)}\ns_mov_b32 s51, 0x20000")
    a(f"s_mov_b32 s58, {hex(1024*3584*2)}\ns_mov_b32 s59, 0x20000\ns_mov_b32 s55, 0x20000")
    if g.o.get('ldump'): a("s_memrealtime s[90:91]")
    a("s_waitcnt lgkmcnt(0)")
    a("s_mov_b64 s[28:29], s[4:5]\ns_mov_b64 s[48:49], s[6:7]\ns_mov_b64 s[56:57], s[12:13]")
    a(f"s_cmp_ge_u32 s{S_C}, 2")
    a("s_cselect_b64 s[52:53], s[12:13], s[6:7]\ns_cselect_b32 s54, s58, s50")

    def wsetup():
        a(f"s_movk_i32 s60, 6144\ns_cmp_ge_u32 s{S_C}, 2\ns_cselect_b32 s60, 7168, s60")
        a(f"s_cselect_b32 s82, 0, 2048\ns_lshl_b32 s83, s{S_PAIR}, 7\ns_add_u32 s82, s82, s83")
        a(f"v_mul_u32_u24 v6, 6144, v1\nv_add3_u32 v6, v6, v2, s82\nv_add_u32 v7, {12288-BLK}, v6")
        a(f"s_mul_i32 s84, s{S_QD}, 7\ns_lshl_b32 s85, s{S_C}, 1\ns_add_u32 s85, s85, s84\ns_sub_u32 s86, s85, 2\ns_lshl_b32 s86, s86, 7\ns_add_u32 s83, s83, 4096")
        a(f"s_cmp_ge_u32 s{S_C}, 2\ns_cselect_b32 s82, s86, s83")
        a(f"v_mul_lo_u32 v8, v1, s60\nv_add3_u32 v8, v8, v2, s82\ns_lshl_b32 s83, s60, 1\ns_sub_u32 s83, s83, {BLK}\nv_add_u32 v9, s83, v8")
        a(f"s_sub_u32 s85, s85, 1\ns_add_u32 s86, s84, s{S_C}\ns_cmp_ge_u32 s{S_C}, 2\ns_cselect_b32 s82, s85, s86\ns_lshl_b32 s82, s82, 7")
        a(f"v_mul_u32_u24 v10, 7168, v1\nv_add3_u32 v10, v10, v2, s82\nv_add_u32 v11, {14336-BLK}, v10")
        a("v_bfe_u32 v12, v0, 4, 1\nv_bfe_u32 v13, v0, 3, 1\nv_lshlrev_b32 v12, 2, v12\nv_lshl_add_u32 v12, v13, 3, v12\nv_bfe_u32 v13, v0, 1, 2\nv_add_u32 v12, v12, v13")
        a(f"s_lshl_b32 s82, s{LW}, 4\nv_add_u32 v12, s82, v12\nv_mul_u32_u24 v12, 7168, v12\nv_and_b32 v13, 1, v0\nv_lshl_add_u32 v12, v13, 4, v12")
        a(f"s_add_u32 s82, s84, 6\ns_lshl_b32 s82, s82, 7\ns_lshl_b32 s83, s{S_C}, 5\ns_add_u32 s82, s82, s83\nv_add_u32 v12, s82, v12")
        a("s_lshl_b32 s60, s60, 5")

    def xhalf():
        a("s_mov_b32 m0, s61\ns_add_u32 s46, s62, s63")
        for u in range(4):
            if u: a(f"s_add_u32 m0, m0, {UNIT}\ns_add_u32 s46, s46, 0x10000")
            a("buffer_load_dwordx4 v4, s[28:31], s46 offen lds")
            a(f"buffer_load_dwordx4 v5, s[28:31], s46 offen offset:{BLK} lds")
        a(f"s_add_u32 s61, s61, {4*UNIT}\ns_cmp_eq_u32 s61, s67\ns_cselect_b32 s61, s66, s61")
        a("s_xor_b32 s63, s63, 0x40000\ns_cselect_b32 s47, 0, 128\ns_add_u32 s62, s62, s47\ns_and_b32 s62, s62, 2047")

    def wslab():
        for ln, (sr, ld) in enumerate([(48, 32 * 6144), (52, "s60"), (56, 32 * 7168)]):
            a(f"s_add_u32 m0, s65, {ln*UNIT}\ns_mul_i32 s35, s64, {ld}")
            a(f"buffer_load_dwordx4 v{6+2*ln}, s[{sr}:{sr+3}], s35 offen lds")
            a(f"buffer_load_dwordx4 v{7+2*ln}, s[{sr}:{sr+3}], s35 offen offset:{BLK} lds")
        a("s_add_u32 m0, s65, s69\ns_mov_b32 exec_hi, 0")
        a("buffer_load_dwordx4 v12, s[56:59], s35 offen lds")
        a("s_mov_b32 exec_hi, -1")
        a(f"s_add_u32 s65, s65, {WSLOT}\ns_cmp_eq_u32 s65, s68\ns_cselect_b32 s65, s67, s65")
        a("s_add_u32 s64, s64, 1\ns_and_b32 s64, s64, 31")

    if not g.o.get('xfirst'): wsetup()
    g.stamp(1)
    xhalf()
    if g.o.get('xfirst') == 2: xhalf()
    if g.o.get('xfirst'): wsetup()
    wslab()
    if g.o.get('xfirst') != 2: xhalf()
    wslab(); g.stamp(2)
    if g.o.get('sprio'): a("s_setprio 0")
    a("s_waitcnt vmcnt(7)"); g.stamp(3)
    a("s_barrier")
    SM = g.o.get('smooth', 1)
    if SM:
        xhalf(); xhalf(); wslab()
        a("s_waitcnt vmcnt(23)\ns_barrier")
        wslab(); xhalf(); wslab()
        a("s_waitcnt vmcnt(22)\ns_barrier")
        xhalf(); wslab(); xhalf()
    else:
        xhalf(); wslab(); xhalf(); wslab(); xhalf()
    real_a, buf = g.a, []
    g.a = lambda x: buf.extend(x.split("\n"))
    srd(g, SRD_WS, 26, 0x10000000)
    a(f"s_mov_b32 s10, {hex(1024*1024*2)}\ns_mov_b32 s11, 0x20000")
    a(f"s_mov_b64 s[12:13], s[14:15]\ns_mov_b32 s14, {hex(3584*1024*2)}\ns_mov_b32 s15, 0x20000")
    a("v_lshrrev_b32 v1, 5, v0\nv_bfe_u32 v3, v0, 4, 1\nv_lshlrev_b32 v1, 3, v1\nv_lshl_add_u32 v1, v3, 4, v1\nv_bfe_u32 v3, v0, 3, 1\nv_add_u32 v1, v1, v3")
    a(f"s_lshl_b32 s4, s{LW}, 2\nv_add_u32 v1, s4, v1")
    a(f"s_lshl_b32 s4, s{S_CB}, 8\ns_lshl_b32 s5, s{S_KH}, 7\ns_add_u32 s4, s4, s5")
    a("v_lshl_add_u32 v14, v1, 11, v2\nv_add_u32 v14, s4, v14\nv_xor_b32 v16, 128, v14")
    a(f"v_add_u32 v15, {4096-BLK}, v14\nv_add_u32 v17, {4096-BLK}, v16")
    a(f"s_lshl_b32 s5, s{S_MB8}, 19\ns_sub_u32 s4, s4, s5")
    a(f"v_add_u32 v24, s4, v4\nv_xor_b32 v26, 128, v24\nv_add_u32 v25, {4096-BLK}, v24\nv_add_u32 v27, {4096-BLK}, v26")
    a(f"s_mul_i32 s6, s32, {14<<17}\ns_mul_i32 s7, s32, {NA<<17}")
    a("s_mov_b64 s[24:25], s[12:13]\ns_mov_b32 s26, s14\ns_mov_b32 s27, 0x20000")
    ord_table(g, 4)
    g.a = real_a
    cut = max(i for i, x in enumerate(buf) if x.startswith("s_mov_b64 s[24:25], s[12:13]"))
    NU = 6
    a(f"s_mov_b32 s34, {27-NU-2*SM}")
    a("L_l1:")
    a("s_waitcnt vmcnt(30)\ns_barrier")
    wslab(); xhalf()
    a("s_sub_u32 s34, s34, 1\ns_cmp_lg_u32 s34, 0\ns_cbranch_scc1 L_l1")
    t0 = 27 - NU
    vm = VM(a, [('I', t0 - 3)] * 15 + [('I', t0 - 2)] * 15 + [('I', t0 - 1)] * 15)
    busy = [False]
    def wstage(m, part=range(4)):
        if m < 14: a(f"s_bfe_u32 s16, s{4+m//8}, {hex((4<<16) | (4*(m%8)))}\ns_lshl_b32 s16, s16, 17\ns_add_u32 s16, s16, s6")
        for ln in range(2):
            for kk in range(2):
                if ln * 2 + kk not in part: continue
                if g.o.get('wpace') and m >= 3 and (ln or kk):
                    a(f"s_cbranch_vccnz 1\ns_sleep {g.o['wpace']}" if busy[0] else f"s_sleep {g.o['wpace']}")
                a(f"s_add_u32 m0, s66, {slot2(m)+(ln*2+kk)*UNIT}")
                if m < 14:
                    vb, sr = (24 if ORD[m] % 7 == 6 else 14) + 2 * ln, 24 if ln else 12
                    a(f"s_add_u32 s47, s16, {kk<<16}")
                elif m < NS + 4:
                    vb, sr = 14 + 2 * ln, 8
                    a(f"s_add_u32 s47, s7, {((ND+m-14)<<17)+(kk<<16)}")
                else:
                    vb, sr = 14, 8
                    a(f"s_mov_b32 s47, {((2*(m-NS-4)+ln)<<17)+(kk<<16)}")
                for jb in range(2):
                    vm.op(f"buffer_load_dwordx4 v{vb+jb}, s[{sr}:{sr+3}], s47 offen offset:{jb*BLK} sc1 lds", m)
    for t in range(t0, 27):
        vm.wait(('I', t - 3)); a("s_barrier")
        wslab(); xhalf(); vm.mark(('I', t), 15)
        k = t - t0
        for x in (buf[k * cut // 5:(k + 1) * cut // 5] if k < 5 else buf[cut:]): a(x)
    vm.wait(('I', 25)); a("s_barrier")
    wslab(); vm.mark(('I', 27), 7)
    vm.wait(('I', 26)); a("s_barrier")
    wstage(0)
    vm.wait(('I', 27)); a("s_barrier")
    wstage(1)
    aux_sel(g)
    a("s_barrier")
    nxt = 2
    for _ in range(g.o.get('w31', 1)): wstage(nxt); nxt += 1
    a("s_barrier")
    g.stamp(5)
    for _ in range(g.o.get('w32', 0)): wstage(nxt); nxt += 1
    a(f"s_cmp_ge_u32 s{S_C}, 2\ns_cselect_b64 vcc, -1, 0")
    sched = g.o.get('wsched', [4, 4, 5, 5, 6, 5, 6, 4, 4, 6, 6, 5, 4, 4]); sub = 0
    for n in range(0, NS + 2):
        SK = g.o['sk']
        if n not in SK:
            need = n
            while need + 1 in SK: need += 1
            if n >= NS: need = NS + 3
            lim = {0: 5}.get(n, n + 6)
            assert nxt > need
            vm.wait(need); a("s_barrier")
        else: vm.wait(nxt - 1)
        fl = n == g.o['k1'] + g.o['noc']
        fl = fl or (n == 0 and g.o.get('k0first', 1))
        if fl: q_call(g, n)
        busy[0] = n < len(g.o['pch']) or g.o['k1'] <= n <= g.o['k1'] + g.o['noc']
        left = sched[n]
        while left:
            assert nxt <= lim
            k = min(left, 4 - sub)
            wstage(nxt, range(sub, sub + k)); left -= k; sub += k
            if sub == 4: nxt += 1; sub = 0
        if not fl: q_call(g, n)
    assert nxt == NS + 4 + ND // 2
    if g.o.get('trace'):
        l = g.lab("tr")
        a(f"s_cmp_lg_u32 s{S_WAVE}, 4\ns_cbranch_scc1 {l}\ns_lshl_b32 s33, s2, 9\ns_add_u32 s33, s33, {WS_PROF+0x20000}\nv_lshlrev_b32 v5, 2, v0")
        a(f"buffer_store_dword v33, v5, {W}, s33 offen\nbuffer_store_dword v32, v5, {W}, s33 offen offset:256\n{l}:")
    if g.o.get('ldump'): prof_dump(g, 4, 1)
    aux_rx(g)


def pf_item(g, wait=False):
    a = g.a
    a(f"s_mul_hi_u32 s47, s68, {(2**32+16)//17}\ns_mul_i32 s33, s47, 17\ns_sub_u32 s33, s68, s33")
    a("s_lshl_b32 s50, s47, 1\ns_add_u32 s50, s50, s87\ns_lshl_b32 s50, s50, 5")
    a("s_mul_i32 s51, s32, 7\ns_add_u32 s51, s51, s33\ns_sub_u32 s51, s51, 10")
    a("s_sub_u32 s35, s33, 4\ns_lshr_b32 s54, s35, 1\ns_lshl_b32 s54, s54, 2\ns_add_u32 s54, s54, s32\ns_lshl_b32 s54, s54, 1\ns_and_b32 s35, s35, 1\ns_add_u32 s35, s35, s54")
    a(f"s_movk_i32 s55, 7168\ns_mov_b32 s54, {hex(1024*3584*2)}\ns_cmp_lt_u32 s33, 10\ns_cselect_b32 s51, s35, s51\ns_cselect_b32 s35, 6144, s55\ns_cselect_b32 s54, {hex(1024*3072*2)}, s54")
    a("s_mul_i32 s50, s50, s35\ns_lshl_b32 s51, s51, 8\ns_add_u32 s50, s50, s51")
    a(f"s_lshl_b32 s51, s{S_XCD}, 2\ns_add_u32 s51, s51, s33\ns_lshl_b32 s51, s51, 17\ns_lshl_b32 s47, s47, 7\ns_add_u32 s47, s47, s51")
    a(f"s_cmp_lt_u32 s33, 4\ns_cselect_b32 s47, s47, s50\ns_cselect_b32 s35, 4096, s35\ns_cselect_b32 s50, 11, 7\ns_cselect_b32 s54, {hex(2048*1024*2)}, s54\ns_mov_b32 s55, 0x20000")
    a("v_lshrrev_b32 v10, 1, v0\nv_and_b32 v11, 1, v0\nv_mul_lo_u32 v10, v10, s35\nv_lshl_add_u32 v10, v11, s50, v10")
    if wait: a("s_waitcnt lgkmcnt(0)")
    a("s_cmp_lt_u32 s33, 10\ns_cselect_b64 s[52:53], s[6:7], s[12:13]\ns_cmp_lt_u32 s33, 4\ns_cselect_b64 s[52:53], s[4:5], s[52:53]")
    a("buffer_load_dword v9, v10, s[52:55], s47 offen")


def helper(g):
    a = g.a
    a("L_helper:")
    HW = 45
    def bars(n):
        for _ in range(n): a("s_barrier")
    if g.o.get('hprio'): a(f"s_setprio {g.o['hprio']}")
    a(f"s_sub_u32 s{HW}, s{S_WAVE}, 6")
    a("v_lshlrev_b32 v4, 4, v0\nv_lshlrev_b32 v5, 2, v0\nv_mov_b32 v6, 0\nv_mov_b32 v7, 1\nv_lshlrev_b32 v8, 7, v0")
    if not g.o.get('cpf0', 1): a("s_mov_b64 exec, 0xffff\nbuffer_load_dword v9, v8, s[96:99], s100 offen\ns_mov_b64 exec, -1")
    a(f"s_lshl_b32 s46, s32, 3\ns_add_u32 s46, s46, s{S_CB}\ns_lshl_b32 s47, s{S_MB8}, 5\ns_add_u32 s46, s46, s47")
    a("s_waitcnt lgkmcnt(0)")
    srd(g, SRD_WS, 26, 0x10000000)
    srd(g, 28, 4, 2048 * 1024 * 2)
    srd(g, 92, 24, 256)
    for r in range(12, 16): a(f"v_mov_b32 v{r}, -1")
    a(f"s_mov_b32 s33, 0x10000000\ns_lshl_b32 s88, s{S_PAIR}, 3\ns_add_u32 s88, s88, s{S_MB8}\ns_mul_i32 s88, s88, 9216\ns_add_u32 s88, s88, {WS_KVP}")
    a(f"s_mul_i32 s89, s{S_PAIR}, 6144\ns_lshl_b32 s47, s{S_MB8}, 10\ns_add_u32 s89, s89, s47\ns_add_u32 s89, s89, {WS_KVF}")
    a(f"s_cmp_ge_u32 s{S_MB8}, 6\ns_cselect_b32 s89, s33, s89\ns_cmp_ge_u32 s{S_C}, 2\ns_cselect_b32 s88, s33, s88\ns_cselect_b32 s89, s33, s89")
    def init0(k):
        if k == 0:
            for r in range(16, 20): a(f"v_mov_b32 v{r}, 0")
            a(f"s_lshl_b32 s47, s2, 11\ns_add_u32 s47, s47, {WS_FLAG}")
            a(f"buffer_store_dwordx4 v[16:19], v4, {W}, s47 offen sc1\nbuffer_store_dwordx4 v[16:19], v4, {W}, s47 offen offset:1024 sc1")
        elif k == 1:
            a(f"buffer_store_dwordx4 v[12:15], v4, {W}, s89 offen sc1")
            a(f"s_mov_b64 exec, 0xff\ns_lshl_b32 s47, s46, 7\ns_add_u32 s47, s47, {WS_FLAG+F_G}")
            a(f"buffer_store_dwordx4 v[12:15], v4, {W}, s47 offen sc1\ns_mov_b64 exec, -1")
        else:
            a(f"buffer_store_dwordx4 v[12:15], v4, {W}, s88 offen sc1\ns_add_u32 s88, s88, 1024")
    issd = lambda: a("buffer_load_dword v23, off, s[92:95], 0 sc1")
    def init3():
        ok = g.lab("rdy")
        a(f"v_cmp_eq_u32 vcc, 0, v23\ns_cbranch_vccz {ok}")
        issd(); poll_check(g, issd, 23, 1, 0, "eq")
        a(f"{ok}:\nv_and_b32 v23, 0x2000, v23\nv_mov_b32 v22, {LDS_SEL}\nds_write_b32 v22, v23\ns_lshr_b32 s47, s2, 2\ns_lshl_b32 s47, s47, 7\ns_and_b32 s33, s2, 3\ns_lshl_b32 s33, s33, 2\ns_add_u32 s47, s47, s33\ns_add_u32 s47, s47, {WS_FLAG+F_RDY}")
        a(flagops(7, 47) + "\ns_waitcnt lgkmcnt(0)")
    lz = g.lab("z")
    a(f"s_or_b32 s33, s2, s{HW}\ns_cbranch_scc1 {lz}")
    for r in range(16, 20): a(f"v_mov_b32 v{r}, 0")
    a(f"s_mov_b32 s47, {WS_FLAG+F_RDY}\ns_mov_b32 s33, {WS_FLAG+F_RDY+4096}")
    for k in range(8): a(f"buffer_store_dwordx4 v[16:19], v4, {W}, s{33 if k>>2 else 47} offen offset:{(k&3)*1024} sc1")
    a(f"s_mov_b32 s47, {WS_PROBE}\ns_mov_b32 s33, {WS_PROBE+8192}")
    a(f"buffer_store_dwordx4 v[16:19], v4, {W}, s47 offen sc1\nbuffer_store_dwordx4 v[16:19], v4, {W}, s33 offen sc1\n{lz}:")
    a("s_mov_b32 s90, -1\ns_mov_b32 s91, -1")
    def wg0(f):
        l = g.lab("w0")
        a(f"s_cmp_lg_u32 s2, 0\ns_cbranch_scc1 {l}"); f(); a(f"{l}:")
    def probe(k):
        a(f"s_mov_b32 s47, {WS_PROBE+(k&1)*8192+(k>>1)*128}\ns_memtime s[48:49]\ns_waitcnt lgkmcnt(0)\ns_load_dword s33, s[26:27], s47\ns_waitcnt lgkmcnt(0)")
        a(f"s_memtime s[50:51]\ns_waitcnt lgkmcnt(0)\ns_sub_u32 s33, s50, s48\ns_min_u32 s{90+(k&1)}, s{90+(k&1)}, s33")
    def announce():
        a("s_cmp_lt_u32 s91, s90\ns_cselect_b32 s33, 0x2001, 1\nv_mov_b32 v23, s33\ns_mov_b64 exec, 1\nbuffer_store_dword v23, off, s[92:95], 0 sc1")
        if g.o.get('showp'): a("v_mov_b32 v22, s90\nbuffer_store_dword v22, off, s[92:95], 0 offset:4\nv_mov_b32 v21, s91\nbuffer_store_dword v21, off, s[92:95], 0 offset:8")
        a("s_mov_b64 exec, -1")
    srd(g, 60, 14, 3584 * 1024 * 2)
    srd(g, 64, 8, 1024 * 1024 * 2)
    def w2item():
        l, lo = g.lab("pw"), g.lab("pw")
        a(f"s_cmp_ge_u32 s69, 112\ns_cbranch_scc1 {lo}\ns_lshr_b32 s47, s69, 3\ns_lshl_b32 s47, s47, 2\ns_lshr_b64 s[50:51], s[48:49], s47\ns_and_b32 s50, s50, 15")
        a(f"s_mul_i32 s47, s32, 14\ns_add_u32 s47, s47, s50\ns_lshl_b32 s47, s47, 1\ns_add_u32 s47, s47, s87\ns_lshl_b32 s47, s47, 3\ns_and_b32 s50, s69, 7\ns_add_u32 s47, s47, s50\ns_lshl_b32 s47, s47, 13")
        a(f"buffer_load_dword v9, v8, s[60:63], s47 offen\ns_branch {l}")
        a(f"{lo}:\ns_sub_u32 s47, s69, 112\ns_lshl_b32 s47, s47, 3\ns_add_u32 s47, s47, s{S_XCD}\ns_lshl_b32 s47, s47, 13\nbuffer_load_dword v9, v8, s[64:67], s47 offen\n{l}:\ns_add_u32 s69, s69, 32")
    a(f"s_cmp_lg_u32 s{HW}, 0\ns_cbranch_scc1 L_h_one")
    iss0 = lambda: a(f"s_mov_b32 s47, {WS_FLAG+F_RDY}\nbuffer_load_dwordx4 v[16:19], v8, {W}, s47 offen sc1")
    for t in range(0, 29):
        a("s_barrier")
        if t == 1: a("s_waitcnt vmcnt(0)")
        if 3 <= t < 14: a(f"s_sleep {g.o['hdel']}"); init0(t - 3)
        if 2 <= t < 12 and g.o['pol'] is None: wg0(lambda: probe(t - 2))
        if t == 11: wg0(announce)
        if t == 14: issd()
        if t == 16: a("s_waitcnt vmcnt(0)"); init3()
        if t == 22: iss0()
        if t == 24: poll_check(g, iss0, 14, 64, 1, "ne", lambda: a("v_and_b32 v14, v16, v17\nv_and_b32 v15, v18, v19\nv_and_b32 v14, v14, v15"))
        if t == g.o.get('cpf1', 99): a("s_mov_b64 exec, 0xffff\nbuffer_load_dword v9, v8, s[96:99], s100 offen\ns_mov_b64 exec, -1")
    bars(2)
    aux_sel(g)
    lane_h(g, 11, 12, 52)
    a(f"s_add_u32 s54, s52, {F_H2}")
    a("v_and_b32 v12, 1, v0\nv_lshlrev_b32 v12, 16, v12\nv_bfe_u32 v16, v0, 1, 1\nv_lshl_add_u32 v12, v16, 18, v12")
    a(f"v_bfe_u32 v16, v0, 2, 2\nv_lshl_add_u32 v12, v16, 11, v12\ns_andn2_b32 s56, s52, 0x1800\ns_add_u32 s56, s56, {F_X + (2<<16)}")
    a(f"s_lshl_b32 s57, s{S_MB8}, 12\ns_add_u32 s57, s57, {WS_FLAG+F_G}")
    a(f"v_lshrrev_b32 v19, 1, v0\nv_and_b32 v16, 1, v0\nv_lshlrev_b32 v16, 4, v16\nv_lshl_add_u32 v19, v19, 7, v16\nv_add_u32 v13, {LDS_G}, v4")
    tb = sum(x << (4 * k) for k, x in enumerate(ORD))
    wl = g.o.get('wl')
    if wl: a(f"s_lshr_b32 s69, s2, 3\ns_and_b32 s68, s69, {wl[2]-1}\ns_add_u32 s69, s69, {32*wl[0]}\ns_mov_b32 s48, {hex(tb & 0xffffffff)}\ns_mov_b32 s49, {hex(tb >> 32)}")
    bars(1)
    bars(1)
    def pol(soff, areg):
        m = "0xffff" if areg == 12 else "0xffffffff"
        return lambda: a(f"s_mov_b64 exec, {m}\nbuffer_load_dword v14, v{areg}, {W}, s{soff} offen sc1\ns_mov_b64 exec, -1")
    issg = lambda: a(f"buffer_load_dwordx4 v[24:27], v19, {W}, s57 offen sc1")
    assert g.o['k1'] >= 6
    def role(kv, f):
        l = g.lab("ro")
        a(f"s_cmp_ge_u32 s{S_C}, 2\ns_cbranch_scc{1 if kv else 0} {l}"); f(); a(f"{l}:")
    role(True, lambda: (a(f"s_sleep {g.o.get('gsl', 16)}"), pol(52, 11)(), poll_check(g, pol(52, 11), 14, 32, 1)))
    SK = g.o['sk']
    assert not set(SK) & {0, 1, 6, g.o['k1'], 12, 13}
    cnt = lambda n: len([x for x in range(n) if x not in SK])
    for n in range(12):
        if n not in SK: a("s_barrier")
        if n == g.o.get('cpf2'): a("s_mov_b64 exec, 0xffff\nbuffer_load_dword v9, v8, s[96:99], s100 offen\ns_mov_b64 exec, -1")
        if n == 0: role(False, pol(52, 11))
        if n == 3: issg()
        if n == 4:
            poll_check(g, issg, 14, 64, -1, "eq", lambda: a("v_max3_u32 v14, v24, v25, v26\nv_max_u32 v14, v14, v27"))
            a("ds_write_b128 v13, v[24:27]"); pol(54, 11)()
        if n == 5: poll_check(g, pol(54, 11), 14, 32, 1); a("s_waitcnt lgkmcnt(0)")
        q_call(g, n)
        if n == 0: role(False, lambda: poll_check(g, pol(52, 11), 14, 32, 1))
        if wl and wl[1] <= n < wl[1] + wl[2]:
            l = g.lab("wl")
            a(f"s_cmp_lg_u32 s68, {n-wl[1]}\ns_cbranch_scc1 {l}")
            for _ in range(5 - wl[0]): w2item()
            a(f"{l}:")
        if n == g.o.get('fop', 11):
            if g.o.get('fosl'): a(f"s_sleep {g.o['fosl']}")
            pol(56, 12)()
        if n == 11: poll_check(g, pol(56, 12), 14, 16, 1)
    bars(NS - 10); a("s_branch L_rx")
    a("L_h_one:")
    tb = sum(x << (4 * k) for k, x in enumerate(ORD))
    a(f"s_mov_b32 s34, 0\ns_lshr_b32 s69, s2, 3\ns_mov_b32 s48, {hex(tb & 0xffffffff)}\ns_mov_b32 s49, {hex(tb >> 32)}")
    a(f"s_lshr_b32 s33, s68, 5\ns_lshr_b32 s90, {hex(g.o.get('wmask', 0x1f0))}, s33")
    if g.o.get('nopf1'): a("s_mov_b32 s68, 0x10000")
    l0, l1, l2, lx, lq = [g.lab("pf") for _ in range(5)]
    if g.o.get('skip0'): a(f"s_branch {l1}")
    a(f"{l0}:\ns_add_u32 s47, s34, {g.o['lead']}\ns_mul_i32 s47, s47, 17\ns_lshr_b32 s47, s47, 1\ns_min_u32 s47, s47, {16*17}\ns_cmp_ge_u32 s68, s47\ns_cbranch_scc1 {l1}")
    pf_item(g)
    a("s_add_u32 s68, s68, 32")
    a(f"{l2}:\ns_lshr_b32 s90, s90, 1\ns_bitcmp1_b32 s90, 0\ns_cbranch_scc0 {l0}")
    w2item()
    a(f"s_branch {l0}\n{l1}:")
    if g.o.get('wrate'):
        l3 = g.lab("pf")
        a(f"s_sub_u32 s47, s34, {g.o.get('w0', 2)}\ns_cbranch_scc1 {l3}\ns_mul_i32 s47, s47, {g.o['wrate']}\ns_min_u32 s47, s47, 144\ns_cmp_ge_u32 s69, s47\ns_cbranch_scc1 {l3}")
        w2item()
        a(f"{l3}:")
    a(f"s_barrier\ns_sleep {g.o['hdel']}\ns_add_u32 s34, s34, 1\ns_cmp_lt_u32 s34, 27\ns_cbranch_scc1 {l0}")
    srd(g, 52, 16, 2048)
    gl = ["s_lshl_b32 s47, s46, 14\n" + "\n".join(f"buffer_load_dwordx4 {vr(24+4*hf)}, v4, s[52:55], 0 offen offset:{hf*1024}" for hf in range(2))]
    for r in range(8):
        gl.append("\n".join(f"buffer_load_dwordx4 {vr(40+8*r+4*hf)}, v4, s[28:31], s47 offen offset:{(r&1)*2048+hf*1024}" for hf in range(2)) + ("\ns_add_u32 s47, s47, 4096" if r & 1 else ""))
    for t in range(26, 31):
        if t > 26: a("s_barrier")
        n = g.o['gsch'][t - 26]
        if n and t in (27, 28): a(f"s_sleep {g.o['hdel']}")
        for x in gl[:n]: a(x)
        gl = gl[n:]
    assert not gl
    aux_sel(g)
    for r in range(32, 40): a(f"v_mov_b32 v{r}, 0")
    bars(2)
    a("s_waitcnt vmcnt(0)")
    for k in range(8):
        for r in range(8): a(f"v_dot2_f32_bf16 v{32+r}, v{40+8*r+k}, v{24+k}, v{32+r}")
    a("s_barrier\ns_nop 0")
    for pat in ["quad_perm:[1,0,3,2] row_mask:0xf", "quad_perm:[2,3,0,1] row_mask:0xf", "row_half_mirror row_mask:0xf", "row_mirror row_mask:0xf",
                "row_bcast:15 row_mask:0xa", "row_bcast:31 row_mask:0xc"]:
        for r in range(32, 40): a(f"v_add_f32_dpp v{r}, v{r}, v{r} {pat} bank_mask:0xf")
    for r in range(8): a(f"v_readlane_b32 s{52+r}, v{32+r}, 63")
    a("s_nop 1")
    for r in range(8): a(f"v_writelane_b32 v16, s{52+r}, {r}")
    a("s_nop 0\nv_min_f32 v16, 0x41f00000, v16\nv_mul_f32 v16, 0x3fb8aa3b, v16\nv_exp_f32 v16, v16")
    a(f"s_lshl_b32 s47, s46, 7\ns_add_u32 s47, s47, {WS_FLAG+F_G}\ns_mov_b64 exec, 0xff")
    a(f"buffer_store_dword v16, v5, {W}, s47 offen sc1\ns_mov_b64 exec, -1")
    q_call(g, 0)
    a(f"s_mov_b32 s34, 1\ns_cmp_ge_u32 s{S_C}, 2\ns_cbranch_scc1 L_h1_q\ns_cmp_ge_u32 s{S_MB8}, 6\ns_cbranch_scc1 L_h1_end")
    H1 = g.o['h1']
    def retry(issue, mx, first, last, work=False):
        l0, l1 = g.lab("try"), g.lab("try")
        for n in range(first):
            if n and n not in SK: a("s_barrier")
            if work and n: q_call(g, n)
        first, last = cnt(first), cnt(last)
        if g.o.get('rsame', 1) & (1 if work else 2):
            l2 = g.lab("try")
            a(f"s_setprio 2\ns_mov_b32 s34, {first}\n{l0}:")
            issue(); a("s_waitcnt vmcnt(0)"); mx()
            a(f"v_cmp_eq_u32 vcc, -1, v14\ns_cbranch_vccz {l1}")
            a(f"s_cmp_ge_u32 s34, {last}\ns_cbranch_scc1 {l2}\ns_barrier\ns_add_u32 s34, s34, 1\ns_branch {l0}\n{l2}:")
        else:
            a(f"s_setprio 2\ns_mov_b32 s34, {first}\n{l0}:")
            if g.o.get('hsl'): a(f"s_sleep {g.o['hsl']}")
            issue()
            a("s_barrier\ns_add_u32 s34, s34, 1\ns_waitcnt vmcnt(0)")
            mx()
            a(f"v_cmp_eq_u32 vcc, -1, v14\ns_nop 1\ns_cmp_lg_u64 vcc, 0\ns_cbranch_scc0 {l1}")
            a(f"s_cmp_le_u32 s34, {last-1}\ns_cbranch_scc1 {l0}")
        issue(); poll_check(g, issue, 14, 64, -1, "eq", mx)
        a(f"{l1}:")
    def upto(n):
        l0, l1 = g.lab("up"), g.lab("up")
        a(f"{l0}:\ns_cmp_ge_u32 s34, {cnt(n)}\ns_cbranch_scc1 {l1}\ns_barrier\ns_add_u32 s34, s34, 1\ns_branch {l0}\n{l1}:")
    def vmax(lo, hi):
        a(f"v_max_u32 v14, v{lo}, v{lo+1}")
        for r in range(lo + 2, hi, 2): a(f"v_max3_u32 v14, v14, v{r}, v{r+1}")
    a(f"s_cmp_ge_u32 s{S_MB8}, 3\ns_cselect_b32 s55, 1, 0\ns_sub_u32 s56, s{S_MB8}, s55\ns_lshl_b32 s56, s56, 11\nv_add_u32 v10, s56, v4\nv_add_u32 v11, 1024, v10")
    a(f"s_cmp_eq_u32 s{S_MB8}, 2\ns_cbranch_scc1 L_h1_z\ns_cmp_eq_u32 s{S_MB8}, 5\ns_cbranch_scc0 L_h1_nz\nL_h1_z:")
    a("s_lshl_b32 s55, s55, 5\ns_add_u32 s55, s55, 8192\nv_and_b32 v10, 0x300, v4\nv_add_u32 v10, s55, v10\nv_add_u32 v11, 16, v10\nL_h1_nz:")
    def kvp_issue():
        a(f"s_mul_i32 s47, s{S_PAIR}, {8*9216}\ns_add_u32 s47, s47, {WS_KVP}")
        for m in range(8):
            for dt in range(2): a(f"buffer_load_dwordx4 {vr(32+(m*2+dt)*4)}, v{10+dt}, {W}, s47 offen sc1")
            if m < 7: a("s_add_u32 s47, s47, 9216")
    retry(kvp_issue, lambda: vmax(32, 96), H1 + 1, 9)
    g.stamp(5)
    if g.o['prof']: a("s_mov_b32 s88, s34")
    for st in (32, 16, 8):
        for r in range(st): a(f"v_add_f32 v{32+r}, v{32+r}, v{32+st+r}")
    for r in range(4): a(f"v_cvt_pk_bf16_f32 v{32+r}, v{32+2*r}, v{33+2*r}")
    a(f"s_mul_i32 s47, s{S_PAIR}, 6144\ns_lshl_b32 s46, s{S_MB8}, 10\ns_add_u32 s47, s47, s46\ns_add_u32 s47, s47, {WS_KVF}")
    a(f"buffer_store_dwordx4 v[32:35], v4, {W}, s47 offen sc1")
    a("L_h1_end:")
    upto(NS + 2)
    a("s_branch L_rx")
    a("L_h1_q:")
    K1 = g.o['k1']
    a(f"s_mul_i32 s55, s{S_PAIR}, 6144\ns_add_u32 s55, s55, {WS_KVF}\ns_add_u32 s56, s55, 4096\nv_add_u32 v12, {P2END}, v4")
    def kvf_issue():
        for f in range(6): a(f"buffer_load_dwordx4 {vr(32+4*f)}, v4, {W}, s{55+(f>>2)} offen offset:{(f&3)*1024} sc1")
    retry(kvf_issue, lambda: vmax(32, 56), g.o['k0'], K1, True)
    g.stamp(5)
    if g.o['prof']: a("s_mov_b32 s88, s34")
    for f in range(6): a(f"ds_write_b128 v12, {vr(32+4*f)} offset:{f*1024}")
    upto(K1)
    a("s_waitcnt lgkmcnt(0)")
    for n in range(K1, K1 + g.o['noc'] + 1):
        if n not in SK: a("s_barrier")
        q_call(g, n)
    a(f"s_mov_b32 s34, {cnt(K1+g.o['noc']+1)}\ns_branch L_h1_end")
    q_chunks(g)


HEADER = open("gated_mix__linear_attn_block__dense_activation_relu__prompt.s.ref").read().split("; Override")[0] \
    if __name__ == "__main__" else ""


def build(**opt):
    g = G(**opt)
    VM.skip = g.o.get('skip', ())
    HF[0] = g.o.get('hflag', 'sc1'); HF[1] = g.o.get('lflag', 'sc1')
    g.L.append(f"; @launch grid=(256,1,1) block=(512,1,1) lds={LDS_TOTAL}")
    g.a(f'.amdgcn_target "amdgcn-amd-amdhsa--gfx950"\n.text\n.globl {NAME}\n.p2align 8\n.type {NAME},@function\n{NAME}:')
    prologue(g)
    loader(g)
    helper(g)
    compute(g)
    g.a("L_exit:\ns_endpgm\nL_codeend:")
    g.L.append(f""".section .rodata,"a"
.p2align 6
.amdhsa_kernel {NAME}
  .amdhsa_next_free_vgpr 256
  .amdhsa_next_free_sgpr 102
  .amdhsa_accum_offset 256
  .amdhsa_group_segment_fixed_size 0
  .amdhsa_kernarg_size 80
  .amdhsa_user_sgpr_count 2
  .amdhsa_user_sgpr_kernarg_segment_ptr 1
  .amdhsa_system_sgpr_workgroup_id_x 1
.end_amdhsa_kernel""")
    return g.text()


if __name__ == "__main__":
    out = sys.argv[1]
    opt = {}
    for kv in sys.argv[2:]:
        k, v = kv.split("=")
        opt[k] = eval(v)
    open(out, "w").write(HEADER + build(**opt))
```

```python
import sys

NAME = "gated_mix__linear_attn_block__dense_activation_relu__prompt_kernel"

OREG = 4 << 23
MT = lambda i: ((i & 1) << 12) | ((i >> 1) << 14)
WS_PART = 0x3000000
WS_KVP = 0x2800000
WS_KVF = 0x2980000
WS_FLAG = 0x2C00000
F_H1, F_H2, F_X, F_P = 0, 512, 1024, 1536
F_G = 0x80000
F_RDY = 0x90000
WS_PROF = 0x2B00000
WS_PROBE = 0x2CC0000
LDS_SEL = 163832
WS_W2C = 0x2800000
ORD1 = [0, 1, 2, 4, 7, 8, 9, 11]
ORD2 = [3, 5, 10, 12, 6, 13]

UNIT = 4224; BLK = 1056
XSLOT = 8 * UNIT
XRING = 3 * XSLOT
WSLOT = 3 * UNIT + 1024
WBASE = XRING
LDS_G = 162816
P2SLOT = 4 * UNIT
NSL = 8
P2END = NSL * P2SLOT
LDS_TOTAL = 163840

SPIN = 100000


class G:
    def __init__(self, **opt):
        self.L = []
        self.o = dict(prof=False, krot=False, pfw=True, pf1=True, lead=6, pfs0=0, hdel=0, pfw0=2, pfwr=54, early2=0, late=(4, 4, 4), sp0=22, spn=2, swin=4, gsch=(5, 4, 0, 0, 0), fpos=50, s1sp=12, tdens=2, st2n=0, st2sp=14, ju=5, pch=(1, 2, 2, 2, 1), pf0=0, wx=1, xfirst=2, prio=1, pol=None, nearf=1, pk=(4, 6), sk=(), cbx=2, aspread=0, wpace=0, kdens=4, hsl=0, gsl=0, noc=2, qprio=2, k1=7, k0=6, rsp=6, h1=1, xf=(10, 14, 16), r1=99, dld=(11, 12, 13, 14, 15, 16, 17, 18), psleep=2, cpf1=24, cpf2=99, odens=3, b16=True, ddens=3, psp=30, d1=7, d2=10, d2b=12, d3=16)
        self.o.update(opt)
        self.uid = 0
        self.info = {}
        self.st = {'since': 0}

    def a(self, s):
        for ln in s.split("\n"):
            ln = ln.strip()
            if ln == "s_sleep 0": continue
            if ln:
                self.L.append(ln if ln.endswith(":") or ln.startswith(".") else "    " + ln)

    def lab(self, p):
        self.uid += 1
        return f"L_{p}_{self.uid}"

    def stamp(self, n):
        if self.o['prof'] == 'min' and n not in (0, 8): return
        if self.o['prof']:
            self.a(f"{'s_memtime' if self.o['prof']=='cyc' else 's_memrealtime'} s[{70+2*n}:{71+2*n}]")

    def text(self):
        j = self.o.get('jitter')
        if j:
            import random
            rnd = random.Random(j[0]); o = []
            for ln in self.L:
                o.append(ln)
                t = ln.strip()
                if (t == "s_barrier" or t.startswith("s_waitcnt vmcnt")) and rnd.random() < j[1]:
                    w = rnd.randrange(8)
                    src = "s3" if rnd.random() < 0.7 else "s44"
                    o.append(f"    s_cselect_b32 s101, 1, 0\n    s_cmp_lg_u32 {src}, {w}\n    s_cbranch_scc1 1\n    s_sleep {rnd.randrange(1, j[2])}\n    s_cmp_lg_u32 s101, 0")
            return "\n".join(o) + "\n"
        return "\n".join(self.L) + "\n"


class VM:
    def __init__(self, a, init=()):
        self.a = a; self.q = list(init)
    skip = ()
    def op(self, text, tag):
        if (tag[0] if isinstance(tag, tuple) else tag) in VM.skip: return
        self.a(text); self.q.append(tag)
        assert len(self.q) <= 63, "vmcnt overflow"
    def mark(self, tag, n):
        self.q += [tag] * n
        assert len(self.q) <= 63, "vmcnt overflow"
    def wait(self, *tags):
        k = max([i for i, t in enumerate(self.q) if t in tags], default=-1)
        if k >= 0:
            self.a(f"s_waitcnt vmcnt({len(self.q)-1-k})"); self.q = self.q[k + 1:]


def vr(b, n=4):
    return f"v[{b}:{b+n-1}]"


def mfma(d, a, b, c=None):
    return f"v_mfma_f32_16x16x32_bf16 {vr(d)}, {vr(a)}, {vr(b)}, {vr(d) if c is None else c}"


S_WAVE, S_MB8, S_QD, S_C, S_PAIR, S_RH, S_CB, S_KH, S_SEL, S_XCD = 3, 36, 37, 38, 39, 40, 41, 42, 43, 44
SRD_WS = 20


def srd(g, d, base, nbytes):
    g.a(f"s_mov_b32 s{d}, s{base}\ns_mov_b32 s{d+1}, s{base+1}\ns_mov_b32 s{d+2}, {hex(nbytes)}\ns_mov_b32 s{d+3}, 0x20000")


def prof_dump(g, wave, row):
    if not g.o['prof'] or g.o.get('probe') is not None or (row and (g.o['prof'] == 'min' or g.o.get('trace'))): return
    a = g.a
    l = g.lab("pd")
    a(f"s_waitcnt lgkmcnt(0)\ns_cmp_lg_u32 s{S_WAVE}, {wave}\ns_cbranch_scc1 {l}")
    a(f"s_lshl_b32 s33, s2, 6\ns_add_u32 s33, s33, {WS_PROF + row*16384}\nv_mov_b32 v5, 0")
    for n in ((0, 8) if g.o['prof'] == 'min' else range(16)):
        a(f"v_mov_b32 v6, s{70+2*n}\nbuffer_store_dword v6, v5, s[{SRD_WS}:{SRD_WS+3}], s33 offen offset:{4*n} sc1\ns_nop 1")
    a(f"{l}:")


def prologue(g):
    a = g.a
    a("s_cmp_ge_u32 s2, 256\ns_cbranch_scc1 L_exit")
    g.stamp(0)
    a("s_load_dwordx16 s[4:19], s[0:1], 0")
    a(f"s_getpc_b64 s[96:97]\nL_pc:\ns_mov_b32 s98, L_codeend-L_pc\ns_mov_b32 s99, 0x20000\ns_lshr_b32 s30, s2, 3\ns_lshl_b32 s100, s30, 11\nv_lshlrev_b32 v1, 2, v0")
    if g.o.get('cpf0', 1): a("buffer_load_dword v47, v1, s[96:99], s100 offen")
    a("s_load_dwordx4 s[24:27], s[0:1], 64")
    a("v_lshrrev_b32 v1, 6, v0\nv_and_b32 v0, 63, v0")
    a(f"s_and_b32 s{S_XCD}, s2, 7")
    a(f"v_readfirstlane_b32 s{S_WAVE}, v1")
    a(f"s_lshr_b32 s31, s{S_XCD}, 2\ns_and_b32 s32, s{S_XCD}, 3")
    if g.o.get('wx'): a(f"s_xor_b32 s{S_WAVE}, s{S_WAVE}, 4")
    a(f"s_and_b32 s33, s30, 3\ns_lshl_b32 s{S_MB8}, s31, 2\ns_add_u32 s{S_MB8}, s{S_MB8}, s33")
    a("s_lshr_b32 s33, s30, 2")
    a(f"s_lshr_b32 s34, s33, 2\ns_lshl_b32 s{S_QD}, s32, 1\ns_add_u32 s{S_QD}, s{S_QD}, s34")
    a(f"s_and_b32 s{S_C}, s33, 3")
    a(f"s_and_b32 s34, s33, 1\ns_lshl_b32 s{S_PAIR}, s{S_QD}, 1\ns_add_u32 s{S_PAIR}, s{S_PAIR}, s34")
    a(f"s_and_b32 s{S_RH}, s32, 1")
    a(f"s_xor_b32 s{S_CB}, s33, {g.o['cbx']}")
    a(f"s_lshr_b32 s{S_KH}, s32, 1")
    if g.o['pol'] == 'mix': a(f"s_lshl_b32 s{S_SEL}, s31, 13")
    else: a(f"s_xor_b32 s34, s31, s{S_MB8}\ns_xor_b32 s34, s34, {g.o['pol'] or 0}\ns_and_b32 s34, s34, 1\ns_lshl_b32 s{S_SEL}, s34, 13")
    a(f"s_cmp_lt_u32 s{S_WAVE}, 4\ns_cbranch_scc1 L_compute")
    a(f"s_cmp_lt_u32 s{S_WAVE}, 6\ns_cbranch_scc1 L_loader")
    a("s_mov_b32 s68, s30\ns_mov_b32 s87, s31")
    if g.o.get('pf0'):
        a(f"s_cmp_eq_u32 s{S_WAVE}, 6\ns_cbranch_scc1 L_helper\ns_add_u32 s68, s68, {g.o.get('pf0off', 0)}")
        pf_item(g, True)
        a("s_add_u32 s68, s68, 32")
    a("s_branch L_helper\nL_loader:")


W = f"s[{SRD_WS}:{SRD_WS+3}]"


def lane_goodcol(g, d, t):
    g.a(f"v_lshrrev_b32 v{d}, 4, v0\nv_and_b32 v{t}, 15, v0\nv_lshlrev_b32 v{t}, 4, v{t}\nv_lshl_add_u32 v{d}, v{d}, 9, v{t}\nv_or_b32 v{d}, s{S_SEL}, v{d}")


def inbox(so, t, w):
    return (f"s_lshr_b32 s{so}, s2, 6\ns_lshl_b32 s{so}, s{so}, 2\ns_bfe_u32 s{t}, s2, 0x20003\ns_add_u32 s{so}, s{so}, s{t}\ns_lshl_b32 s{so}, s{so}, 1\n"
            f"s_bfe_u32 s{t}, s2, 0x10005\ns_add_u32 s{so}, s{so}, s{t}\ns_lshl_b32 s{so}, s{so}, 2\ns_add_u32 s{so}, s{so}, s32\ns_lshl_b32 s{so}, s{so}, 4\n"
            f"s_add_u32 s{so}, s{so}, s{w}\ns_lshl_b32 s{so}, s{so}, 14\n")


def lane_h(g, d, t, so):
    g.a(f"v_bfe_u32 v{d}, v0, 2, 3\nv_and_b32 v{t}, 3, v0\nv_lshlrev_b32 v{t}, 7, v{t}\nv_lshl_add_u32 v{d}, v{d}, 16, v{t}")
    g.a(f"s_and_b32 s{so}, s2, 31\ns_lshl_b32 s{so}, s{so}, 11\ns_add_u32 s{so}, s{so}, {WS_FLAG}\ns_xor_b32 s{so}, s{so}, s79")


def poll_check(g, issue, reg, nl, val, cmp="ne", pre=None):
    a = g.a
    l0, l1 = g.lab("poll"), g.lab("pollok")
    a(f"s_mov_b32 s35, {SPIN}\n{l0}:\ns_waitcnt vmcnt(0)")
    if pre: pre()
    a(f"v_cmp_{cmp}_u32 vcc, {val}, v{reg}\ns_nop 1")
    if nl == 64: a("s_cmp_lg_u64 vcc, 0")
    else: a(f"s_and_b32 s33, vcc_lo, {hex((1<<nl)-1)}")
    a(f"s_cbranch_scc0 {l1}")
    a(f"s_sub_u32 s35, s35, 1\ns_cbranch_scc1 {l1}")
    if g.o.get('psleep'): a(f"s_sleep {g.o['psleep']}")
    issue()
    a(f"s_branch {l0}\n{l1}:")


def setflags(g, one, *soffs):
    g.a("s_mov_b64 exec, 1")
    for so in soffs: g.a(f"buffer_store_dword v{one}, off, {W}, s{so} sc1")
    g.a("s_mov_b64 exec, -1")


VX, VW, VQ = 1, 2, 3
WB = lambda n: 8 + 4 * (n % 4)
XLO = lambda b, i: 24 + 8 * b + 4 * i
XHI = lambda i: 40 + 4 * (i - 2)
AC = lambda j, i: 48 + (j * 4 + i) * 4


PERM = {True: [8, 9, 10, 11, 0, 1, 2, 3, 12, 4, 5, 6, 7], False: [4, 5, 6, 7, 8, 9, 10, 11, 12, 0, 1, 2, 3]}


def p1_wread(t, j, n):
    slot = (t % 4) * WSLOT
    if j < 12:
        return [f"ds_read_b64_tr_b16 v[{WB(n)+2*w}:{WB(n)+2*w+1}], v{VW} offset:{slot + (j//4)*UNIT + (j%4)*32 + w*256}" for w in range(2)]
    return [f"ds_read_b64_tr_b16 v[{WB(n)+2*w}:{WB(n)+2*w+1}], v{VQ} offset:{slot + w*256}" for w in range(2)]


def p1_xreg(par, i):
    return XLO(par % 2, i) if i < 2 else XHI(i)


def p1_xread(t, i, par, vx=VX):
    return f"ds_read_b128 {vr(p1_xreg(par,i))}, v{vx} offset:{(i>>1)*UNIT + (i&1)*512 + (t%2)*64}"


def pass_order(nt):
    s = [(0, 0), (0, 1), (1, 1), (1, 0), (1, 2), (1, 3), (0, 3), (0, 2)]
    for j in range(2, nt - 2):
        s += [(j, i) for i in ([2, 3, 0, 1] if j % 2 == 0 else [1, 0, 3, 2])]
    u, v = nt - 2, nt - 1
    return s + [(u, 2), (u, 3), (v, 3), (v, 2), (v, 1), (v, 0), (u, 0), (u, 1)]


def p1_mfma(kv, tile, i, wreg, xreg):
    return mfma(AC(tile, i), xreg, wreg) if (kv and tile < 8) else mfma(AC(tile, i), wreg, xreg)


Q0 = [('W', 0, 0), ('W', 0, 0), ('X', 0, 0), ('X', 0, 1), ('W', 0, 1), ('W', 0, 1), ('X', 0, 2), ('X', 0, 3)]


def p1_loop(g, kv):
    a = g.a
    P = PERM[kv]
    L = g.lab("p1")
    seq = []
    for t in range(4):
        s = pass_order(13)
        post = [[] for _ in s]
        rd = lambda j, tt=t: [('W', tt, j, x) for x in p1_wread(tt, P[j], 13 * tt + j)]
        r = rd(2); post[0].append(r[0]); post[1].append(r[1])
        r = rd(3); post[2].append(r[0]); post[3].append(r[1])
        r = rd(4); post[8].append(r[0]); post[9].append(r[1])
        r = rd(5); post[10].append(r[0]); post[11].append(r[1])
        for j in range(3, 10):
            base = 8 + (j - 2) * 4
            r = rd(j + 3); post[base].append(r[0]); post[base + 1].append(r[1])
        b10 = 40
        if t % 2 == 1:
            post[b10 - 2].append(('S', f"s_add_u32 s46, s46, {XSLOT}"))
            post[b10 - 2].append(('S', f"s_cmp_eq_u32 s46, {XRING}"))
            post[b10 - 1].append(('S', f"s_cselect_b32 s47, s48, s49"))
            post[b10 - 1].append(('S', f"s_cselect_b32 s46, 0, s46"))
            post[b10].append(('S', f"v_add_u32 v{VX}, s47, v{VX}"))
        post[b10 + 2].append(('BAR',))
        tn = t + 1
        r0, r1 = rd(0, tn), rd(1, tn)
        post[b10 + 3] += [r0[0], r0[1]]
        post[44] += [('X', tn, 0, p1_xread(tn, 0, tn)), ('X', tn, 1, p1_xread(tn, 1, tn))]
        post[45] += [r1[0]]
        post[46] += [r1[1]]
        post[47] += [('X', tn, 2, p1_xread(tn, 2, tn))]
        post[48] += [('X', tn, 3, p1_xread(tn, 3, tn))]
        if t == 3:
            post[49].append(('S', "s_sub_u32 s45, s45, 1"))
            post[50].append(('S', "s_cmp_lg_u32 s45, 0"))
        for (j, i), p in zip(s, post):
            seq.append(((t, j, i), p))
    for x in p1_wread(0, P[0], 0): a(x)
    a(p1_xread(0, 0, 0)); a(p1_xread(0, 1, 0))
    for x in p1_wread(0, P[1], 1): a(x)
    a(p1_xread(0, 2, 0)); a(p1_xread(0, 3, 0))
    q = list(Q0)
    a(f".p2align 6\n{L}:")
    for (t, j, i), p in seq:
        need = [k for k, e in enumerate(q) if e == ('W', t, j) or e == ('X', t, i)]
        if need:
            k = max(need)
            a(f"s_waitcnt lgkmcnt({len(q)-1-k})")
            q = q[k + 1:]
        a(p1_mfma(kv, P[j], i, WB(13 * t + j), p1_xreg(t, i)))
        for e in p:
            if e[0] == 'S':
                a(e[1])
            elif e[0] == 'BAR':
                a("s_waitcnt lgkmcnt(0)\ns_barrier"); q = []
            else:
                a(e[3]); q.append((e[0], e[1] % 4, e[2]))
    assert q == Q0
    a(f"s_cbranch_scc1 {L}")


def p1_tail(g, kv, extra, extra2, flag):
    a = g.a
    P = PERM[kv]
    auto = g.o['pol'] is None
    if auto: a(f"v_mov_b32 v5, {LDS_SEL}\nds_read_b32 v6, v5")
    a(f"v_add_u32 v5, {(-2*XSLOT) & 0xffffffff}, v{VX}")
    if auto: extra = ["v_xor_b32 v7, v6, v7"] + (["v_readfirstlane_b32 s33, v6"] if g.o['nearf'] else []) + ["v_mov_b32 v6, 1"] + (["s_xor_b32 s59, s59, s33", "s_xor_b32 s60, s60, s33"] if g.o['nearf'] else []) + extra
    passes = [(t, grp) for grp in (P[:4], P[4:9], P[9:]) for t in range(28, 32)]
    M = []; start = []; n0 = 0; last = {}
    reads = []
    for p, (t, tiles) in enumerate(passes):
        start.append(len(M))
        o = pass_order(len(tiles))
        base = len(M)
        for j, tile in enumerate(tiles):
            first = base + min(k for k, e in enumerate(o) if e[0] == j)
            if not (p == 0 and j < 2):
                for x in p1_wread(t, tile, n0 + j):
                    reads.append(dict(key=('W', p, j), text=x, after=last.get(WB(n0 + j), -1), first=first, t=t))
            last[WB(n0 + j)] = base + max(k for k, e in enumerate(o) if e[0] == j)
        for i in range(4):
            first = base + min(k for k, e in enumerate(o) if e[1] == i)
            if p > 0:
                reads.append(dict(key=('X', p, i), text=p1_xread(t, i, p, VX if t < 30 else 5), after=max(last.get(p1_xreg(p, i), -1), first - 14), first=first, t=t))
            last[p1_xreg(p, i)] = base + max(k for k, e in enumerate(o) if e[1] == i)
        for (j, i) in o:
            M.append((p, j, i, p1_mfma(kv, tiles[j], i, WB(n0 + j), p1_xreg(p, i))))
        n0 += len(tiles)
    V1, V2 = start[1] + 3, start[2] + 5
    R1, R2 = start[10] - 3, len(M) - 5
    for r in reads:
        if r['t'] == 30: r['after'] = max(r['after'], V1)
        if r['t'] == 31: r['after'] = max(r['after'], V2)
    reads.sort(key=lambda r: r['first'])
    q = list(Q0) + ([('S', 0, 0)] if auto else []); since = 0; nst2 = 0; held = []; nexts = 0; first = True
    dens = g.o.get('tdens', 3)
    def wait(pred):
        nonlocal q
        need = [k for k, e in enumerate(q) if pred(e)]
        if need:
            a(f"s_waitcnt lgkmcnt({len(q)-1-max(need)})"); q = q[max(need) + 1:]
            return 1
        return 0
    for k, (p, j, i, txt) in enumerate(M):
        assert not [r for r in reads if r['first'] <= k], "read scheduled too late"
        w = wait(lambda e: e == ('W', p, j) or e == ('X', p, i))
        a(txt); since += 1 + w
        used = 0
        if k in (V1, V2): a("s_barrier"); used += 1
        if k in (R1, R2):
            lim = 9 if k == R1 else 11
            assert not [r for r in reads if r['key'][1] <= lim]
            used += 1 + wait(lambda e: e[1] <= lim); a("s_barrier")
        nr = 0
        while used < 2:
            c = [r for r in reads if r['after'] <= k]
            if not c or (nr and c[0]['first'] - k > 9): break
            a(c[0]['text']); q.append(c[0]['key']); reads.remove(c[0]); used += 1; nr += 1
        since += used
        if held and k >= nexts:
            a(held.pop(0)); used += 2; nexts = k + g.o['s1sp']; nst2 = 0
        if k == start[8] + g.o.get('fpos', 10):
            assert not held
            if kv:
                assert not [x for x in extra if x and x.startswith("buffer_store")]; nst2 = 0
            a(f"s_waitcnt vmcnt({nst2})\n" + flag); used += 2
        if k == start[8] + 3:
            assert not extra
            extra = extra2; dens = g.o.get('tdens2', 3); first = False
        if k >= start[4] + 3:
            while used < dens and extra:
                if extra[0] is None: break
                x = extra.pop(0)
                if first and x.startswith("s_add_u32 s56"): sadd = x; continue
                if first and x.startswith("buffer_store"): held.append(sadd + "\n" + x); continue
                a(x); used += 2 if x.startswith("v_exp") else 1
                if x.startswith("buffer_store"): nst2 += 1
    assert not held
    return extra


def h_cvt(d, a0, a1):
    src = [a0, a0 + 2] + ([a1, a1 + 2] if a1 is not None else [])
    return [f"v_cvt_pk_bf16_f32 v{d+r}, v{x}, v{x+1}" for r, x in enumerate(src)] + [f"v_pk_max_i16 v{d+r}, v{d+r}, 0" for r in range(len(src))]


HF = ['sc1', 'sc1']
def h_line_store(j0, soff):
    o = []
    for i in (2, 3, 0, 1):
        o.append(f"s_add_u32 s56, s{soff}, {MT(i)}")
        for p in range(2):
            d = AC(j0 + 2 * p, i)
            o += h_cvt(d, d, AC(j0 + 2 * p + 1, i))
            o.append(f"buffer_store_dwordx4 {vr(d)}, v7, {W}, s56 offen offset:{p*2048} {HF[0]}")
    return o


def phi_regs(regs, tmp, pk=False):
    if pk:
        o = [f"v_pk_mul_f32 v[{tmp+k}:{tmp+k+1}], v[{regs[k]}:{regs[k]+1}], s[50:51] op_sel_hi:[1,0]" for k in range(0, 8, 2)]
        for k, r in enumerate(regs): o += [f"v_exp_f32 v{tmp+k}, v{tmp+k} clamp", f"v_max_f32 v{r}, s51, v{r}"]
        return o + [f"v_pk_add_f32 v[{regs[k]}:{regs[k]+1}], v[{regs[k]}:{regs[k]+1}], v[{tmp+k}:{tmp+k+1}]" for k in range(0, 8, 2)]
    o = [f"v_mul_f32 v{tmp+k}, s50, v{r}" for k, r in enumerate(regs)]
    for k, r in enumerate(regs): o += [f"v_exp_f32 v{tmp+k}, v{tmp+k} clamp", f"v_max_f32 v{r}, s51, v{r}"]
    return o + [f"v_add_f32 v{r}, v{r}, v{tmp+k}" for k, r in enumerate(regs)]


def pack8(d, e):
    return [f"v_cvt_pk_bf16_f32 v{d}, v{d}, v{d+1}", f"v_cvt_pk_bf16_f32 v{d+1}, v{d+2}, v{d+3}",
            f"v_cvt_pk_bf16_f32 v{d+2}, v{e}, v{e+1}", f"v_cvt_pk_bf16_f32 v{d+3}, v{e+2}, v{e+3}"]


def flagops(one, *soffs):
    return "s_mov_b64 exec, 1\n" + "".join(f"buffer_store_dword v{one}, off, {W}, s{so} sc1\n" for so in soffs) + "s_mov_b64 exec, -1"


VA0, VW2, VA1, VWD = 1, 2, 3, 5
ORD = ORD1 + ORD2
AB = lambda u, i: ((24, 112, 96, 72)[u] if u < 4 else (24, 112, 96, 72, 40, 56)[(u - 4) % 6]) + 4 * i
ACC = lambda j, i: 128 + (j * 4 + i) * 4
JORD = [4, 5, 6, 7, 0, 1, 2, 3]
ND = 8
NA = (16 - ND) // 4
NS = 10 + NA
assert NS == 12
XA = [96, 72, 24, 112]
WP = lambda gi: (88, 8, 16)[(gi + 1) % 3]
ADP = [XA[3], XA[3] + 8, ACC(5, 2), ACC(7, 2), ACC(4, 2), ACC(6, 2), ACC(1, 2), ACC(3, 2), ACC(0, 2), ACC(2, 2), 8, 16, XA[0], XA[0] + 8, XA[1], XA[1] + 8]
WD = lambda k: 40 + 4 * k
PQ = lambda i, h: AC(2 * h, i)
PP = lambda p, f: ((XA[2], XA[2] + 8), (ACC(4, 0), ACC(6, 0)), (ACC(5, 0), ACC(7, 0)))[p - 1][f >> 1] + 4 * (f & 1)
VFL, VPO, GG, VOUT, SEL0 = 2, 3, 94, 4, 88
slot2 = lambda m: ((m + 2) % NSL) * P2SLOT


def ord_table(g, lo, tmp=None):
    pk = lambda o: sum(x << (4 * k) for k, x in enumerate(o))
    g.a(f"s_mov_b32 s{lo}, {hex(pk(ORD) & 0xffffffff)}\ns_mov_b32 s{lo+1}, {hex(pk(ORD) >> 32)}")
    for t8, own in {1: (1,), 2: (2, 3), 3: (4, 5), 4: (7,), 5: (8,), 6: (9, 10), 7: (11, 12)}.items():
        o = list(own) + [x for x in ORD if x not in own]
        g.a(f"s_cmp_eq_u32 s{S_CB}, {t8 ^ g.o['cbx']}\ns_cselect_b32 s{lo}, {hex(pk(o) & 0xffffffff)}, s{lo}\ns_cselect_b32 s{lo+1}, {hex(pk(o) >> 32)}, s{lo+1}")


def line_ops(n):
    return [f"s_bfe_u32 s54, s{4+n//8}, {hex((4<<16) | (4*(n%8)))}", "s_lshl_b32 s54, s54, 17", "s_add_u32 s54, s54, s46", "s_add_u32 s53, s54, 4096"]


def c_wread(n):
    u, j = n // 8, JORD[n % 8]
    return [(('W', n), f"ds_read_b64_tr_b16 v[{WB(n)+2*w}:{WB(n)+2*w+1}], v{VW2} offset:{((j>>2)*2+(u&1))*UNIT + (j&3)*32 + w*256}") for w in range(2)]


def c_loads(u, vm):
    o = []
    if u % 2 == 0: o += line_ops(u // 2)
    for i in range(4):
        o.append((f"buffer_load_dwordx4 {vr(AB(u,i))}, v{VA1 if i>>1 else VA0}, {W}, s{53 if i&1 else 54} offen offset:{(u&1)*2048} {HF[1]}", vm, ('A', u)))
    return o


def u_base(v):
    return slot2(NS + v % 4) + (2 * UNIT if v % 8 < 4 else 0) if v < 16 else slot2(NS + 4 + (v - 16) // 2) + (v & 1) * 2 * UNIT


def u_reads(v):
    return [(('U', v, k & 3), f"ds_read_b64_tr_b16 v[{WD(k)+2*w}:{WD(k)+2*w+1}], v{VWD} offset:{(k>>2)*UNIT + (k&3)*32 + w*256}") for k in (4, 0, 5, 1, 6, 2, 7, 3) for w in range(2)]


def u_areg(v, kk, mi):
    if v >= 16: return ADP[2 * (v - 16) + kk] + 4 * mi
    return (XA if v < 8 else [8] + XA[:3])[v % 4] + 8 * kk + 4 * mi


def u_loads(v, vm):
    if v < 16:
        sb, ln = (46, ORD[NS + v % 4]) if NS + v % 4 < 14 else (45, ND + NS + v % 4 - 14)
        o = [f"s_add_u32 s54, s{sb}, {ln<<17}", f"s_add_u32 s53, s{sb}, {(ln<<17)+4096}"]
    else: o = [f"s_mov_b32 s54, {OREG+((v-16)<<17)}", f"s_mov_b32 s53, {OREG+((v-16)<<17)+4096}"]
    for kk in range(2):
        for mi in range(2): o.append((f"buffer_load_dwordx4 {vr(u_areg(v,kk,mi))}, v{VA1 if v < 8 else VA0}, {W}, s{54-mi} offen offset:{kk*2048} {HF[1] if v < 16 and v % 4 < 2 else 'sc1'}", vm, ('B', v, kk)))
    return o


class Stage:
    def __init__(self, g, q, extra, dens):
        self.g = g; self.q = list(q); self.extra = extra; self.dens = dens; self.carry = 0
    def a(self, x):
        self.g.a(x); self.g.st['since'] += 1
    def wait(self, key):
        need = [k for k, e in enumerate(self.q) if key is None or e == key]
        if need:
            n = min(14, len(self.q) - 1 - max(need))
            self.a(f"s_waitcnt lgkmcnt({n})"); self.q = self.q[len(self.q) - n:]
    def read(self, r):
        self.a(r[1]); self.q.append(r[0])
    def op(self, x):
        if isinstance(x, tuple): x[1].op(x[0], x[2]); self.g.st['since'] += 1
        else: self.a(x)
    def fill(self, used):
        ex, st = self.extra, self.g.st
        while used < self.dens and ex:
            if isinstance(ex[0], int):
                if st['since'] >= ex[0]: ex.pop(0); continue
                return
            if ex[0] == 'XW':
                if 'x' in self.q: return
                ex.pop(0); continue
            x = ex.pop(0)
            if callable(x): x(); used += 2; st['since'] = 0; continue
            if isinstance(x, tuple): x[1].op(x[0], x[2]); x = x[0]
            else: self.g.a(x)
            if x.startswith("ds_"): self.q.append('x')
            st['since'] = 0
            used = 0 if x.startswith("v_mfma") else used + (2 if x.startswith(("v_exp", "v_rcp")) else 1)


def c_slab(g, u, vm, q, extra=None, dens=2, own=False):
    S = Stage(g, q, extra, dens)
    UL = 2 * NS - 1
    ld = c_loads(u + 3, vm) if u < 4 else u_loads(2, vm) if u == UL else []
    pr = p_wread(0) + p_wread(1)[:2] if u == 3 else []
    dr = u_reads(0) if u == UL else []
    if u == 0: ld = [] if own else c_loads(2, vm) + ld
    ab = (lambda i: 40 + 16 * (u - 2) + 4 * i) if own and u in (2, 3) else (lambda i: AB(u, i))
    late = own and u == 1
    vm.wait(('A', u))
    for jj in range(8):
        n = 8 * u + jj
        R = [] if n + 3 >= 16 * NS else c_wread(n + 3) if (n + 3 < 32 or u > 3) else [pr.pop(0), pr.pop(0)]
        for k, i in enumerate(range(4) if jj % 2 == 0 else range(3, -1, -1)):
            S.wait(('W', n))
            S.a(mfma(ACC(JORD[jj], i), WB(n), ab(i), "0" if u == 0 else None))
            used = 1 if k == 3 else 0
            if R: S.read(R.pop(0)); used += 1
            if u % 2 == 1 and u < UL and jj == 4 and k == 2:
                S.a(f"v_add_u32 v{VW2}, {(slot2(u//2+1)-slot2(u//2)) & 0xffffffff}, v{VW2}"); used += 1
                if u // 2 + 1 not in g.o['sk']: S.a("s_barrier"); used = 2
            elif u == UL and jj == 1 and k == 2:
                S.a(f"v_add_u32 v{VWD}, {(u_base(0)-slot2(NS-1)) & 0xffffffff}, v{VW2}"); S.a("s_barrier"); used = 2
            elif dr and jj >= 2 and used < 2 and (k >= 2 or jj >= 5):
                S.read(dr.pop(0)); used += 1
            if ld and used < 2 and (((jj >= 5 and k in (1, 2)) if late else k in (1, 2) if u == 0 else (k == 2 and (jj % 2 == g.o['aspread'] - 1 or not g.o['aspread'] or (u % 2 == 1 and jj == 5))) if u < UL else ((jj >= 2 or NA > 2) and k < 2)) or isinstance(ld[0], str)):
                S.op(ld.pop(0)); used += 1
            S.fill(used)
    assert not ld and not dr
    return S.q


def p_wread(gi):
    j = JORD[gi % 8]
    return [(('P', gi, kk), f"ds_read_b64_tr_b16 v[{WP(gi)+4*kk+2*w}:{WP(gi)+4*kk+2*w+1}], v{VW2} offset:{((j>>2)*2+kk)*UNIT + (j&3)*32 + w*256}") for kk in range(2) for w in range(2)]


def c_pair(g, n, vm, q, extra=None, dens=2):
    S = Stage(g, q, extra, dens)
    ld = (c_loads(7, vm) if n == 2 else []) + (c_loads(2 * n + 4, vm) + c_loads(2 * n + 5, vm) if n < 10 else u_loads(0, vm) + u_loads(1, vm))
    vm.wait(('A', 2 * n), ('A', 2 * n + 1))
    for jj in range(8):
        gi = 8 * (n - 2) + jj
        R = (p_wread(1)[2:] if gi == 0 else []) + (p_wread(gi + 2) if gi + 2 < 72 else c_wread(176) + c_wread(177) if gi == 70 else c_wread(178))
        k = 0
        for i in (range(4) if jj % 2 == 0 else range(3, -1, -1)):
            for kk in ((0, 1) if k % 4 == 0 else (1, 0)):
                S.wait(('P', gi, 1))
                S.a(mfma(ACC(JORD[jj], i), WP(gi) + 4 * kk, AB(2 * n + kk, i)))
                used = 1 if k == 7 else 0
                if R: S.read(R.pop(0)); used += 1
                if jj == 5 and k == 5:
                    S.a(f"v_add_u32 v{VW2}, {(slot2(n+1)-slot2(n)) & 0xffffffff}, v{VW2}"); used += 1
                    if n + 1 not in g.o['sk']: S.a("s_barrier"); used = 2
                if ld and used < 2 and (k in g.o['pk'] or isinstance(ld[0], str)):
                    S.op(ld.pop(0)); used += 1
                S.fill(used)
                k += 1
        assert not R
    assert not ld
    return S.q


def unit(g, v, vm, q, extra, dens=2):
    S = Stage(g, q, extra, dens)
    R = u_reads(v + 1) if v < 15 + ND else []
    t = {0: 3, 2: 8, 5: 9, 6: 10, 7: 11}
    for n, w in enumerate(g.o['dld']):
        assert w >= (8, 8, 8, 10, 12, 13, 14, 15)[n]
        t[w] = 16 + n
    t = t.get(v)
    ld = u_loads(t, vm) if t is not None else []
    m = 0
    vm.wait(('B', v, 0), ('B', v, 1))
    for s in range(4):
        for kk, mi in (((0, 0), (1, 0), (1, 1), (0, 1)) if s % 2 == 0 else ((0, 1), (1, 1), (1, 0), (0, 0))):
            S.wait(('U', v, s))
            acc = ACC((4 if v % 8 < 4 else 0) + s, mi + (2 if v < 8 else 0)) if v < 16 else ACC(s, mi)
            S.a(mfma(acc, WD(4 * kk + s), u_areg(v, kk, mi)))
            used = 1 if m % 4 == 3 else 0
            if R and m == 0:
                S.a(f"v_add_u32 v{VWD}, {(u_base(v+1)-u_base(v)) & 0xffffffff}, v{VWD}"); used += 1
                if v in (3, 12, g.o['r1']): S.a("s_barrier"); used += 1
            elif R and m >= 2:
                S.read(R.pop(0)); used += 1
                if m >= 14: S.read(R.pop(0)); used += 1
            if ld and m in (1, 2, 4, 6, 9, 13):
                S.op(ld.pop(0)); used += 1
            S.fill(used)
            m += 1
    assert not R and not ld
    return S.q


def spaced(lst, n):
    o = []
    for x in lst: o += [x, n]
    return o


def strs(ex):
    return [x for x in ex if not isinstance(x, int)]


def compute(g):
    a = g.a
    a("L_compute:")
    a("v_and_b32 v4, 15, v0\nv_lshrrev_b32 v5, 4, v0")
    a("v_bfe_u32 v6, v4, 3, 1\nv_bfe_u32 v7, v4, 1, 1\nv_lshl_add_u32 v6, v6, 1, v7")
    a(f"v_mul_u32_u24 v{VX}, {BLK}, v6")
    a("v_bfe_u32 v6, v4, 2, 1\nv_and_b32 v7, 1, v4\nv_lshl_add_u32 v6, v6, 1, v7")
    a(f"v_lshl_add_u32 v{VX}, v6, 7, v{VX}\nv_lshl_add_u32 v{VX}, v5, 4, v{VX}")
    a(f"s_mul_i32 s45, s{S_WAVE}, {2*UNIT}\nv_add_u32 v{VX}, s45, v{VX}")
    a("v_and_b32 v6, 1, v5\nv_bfe_u32 v7, v4, 3, 1\nv_lshl_add_u32 v6, v6, 1, v7")
    a(f"v_mul_u32_u24 v{VW}, {BLK}, v6")
    a("v_lshrrev_b32 v6, 1, v5\nv_bfe_u32 v7, v4, 2, 1\nv_lshl_add_u32 v6, v6, 2, v7")
    a(f"v_lshl_add_u32 v{VW}, v6, 7, v{VW}\nv_and_b32 v6, 3, v4\nv_lshl_add_u32 v{VW}, v6, 3, v{VW}")
    a(f"v_add_u32 v{VW}, {WBASE}, v{VW}")
    a(f"v_lshrrev_b32 v6, 5, v0\nv_and_b32 v7, 31, v0\nv_lshlrev_b32 v7, 3, v7\nv_lshl_add_u32 v{VQ}, v6, 9, v7")
    a(f"v_add_u32 v{VQ}, {WBASE+3*UNIT}, v{VQ}")
    for r in range(48, 256, 2): a(f"v_mov_b64 v[{r}:{r+1}], 0")
    a(f"s_mov_b32 s45, 7\ns_mov_b32 s46, 0\ns_mov_b32 s48, {(-2*XSLOT) & 0xffffffff}\ns_mov_b32 s49, {XSLOT}")
    a("s_mov_b32 s50, 0x3fb8aa3b\ns_mov_b32 s51, 0x358637bd")
    a(f"s_and_b32 s52, s{S_MB8}, 3\ns_lshl_b32 s52, s52, 21\ns_lshl_b32 s53, s{S_WAVE}, 15\ns_add_u32 s52, s52, s53")
    a(f"s_and_b32 s53, s{S_QD}, 1\ns_mul_i32 s53, s53, 7\ns_lshl_b32 s55, s32, 6\ns_add_u32 s53, s53, s55")
    a(f"s_add_u32 s66, s53, 6\ns_lshl_b32 s66, s66, 17\ns_add_u32 s66, s66, s52")
    a(f"s_lshr_b32 s55, s{S_C}, 1\ns_lshl_b32 s55, s55, 11\ns_add_u32 s66, s66, s55")
    a(f"s_and_b32 s55, s{S_C}, 1\ns_lshl_b32 s55, s55, 10\ns_add_u32 s66, s66, s55")
    a("s_add_u32 s67, s66, 16384")
    a(f"s_lshr_b32 s57, s{S_WAVE}, 1\ns_and_b32 s58, s{S_WAVE}, 1")
    a(f"s_lshl_b32 s59, s2, 11\ns_lshl_b32 s55, s{S_WAVE}, 7\ns_add_u32 s59, s59, s55\ns_add_u32 s59, s59, {WS_FLAG}")
    a(f"s_add_u32 s60, s59, {F_H2}\ns_add_u32 s61, s59, {F_X}")
    a("v_lshlrev_b32 v4, 4, v0\nv_mov_b32 v6, 1")
    lane_goodcol(g, 7, 5)
    a("s_waitcnt lgkmcnt(0)")
    srd(g, SRD_WS, 26, 0x10000000)
    ord_table(g, 4)
    a(f"s_lshl_b32 s6, s{S_RH}, 14\ns_xor_b32 s7, s6, 16384\ns_add_u32 s6, s6, s52\ns_add_u32 s7, s7, s52\ns_lshl_b32 s8, s32, 23\ns_mul_i32 s9, s32, {NA<<17}\ns_add_u32 s9, s9, {OREG}")
    a(f"s_lshl_b32 s16, s{S_WAVE}, 13\ns_lshl_b32 s17, s{S_WAVE}, 10\ns_add_u32 s17, s17, {P2END}")
    if g.o.get('prio'): a(f"s_setprio {g.o['prio']}")
    a("s_waitcnt vmcnt(0)\ns_barrier")
    g.stamp(1)

    def em(lst):
        for x in lst: a(x)
    def p2_setup():
        a(f"v_add_u32 v{VA0}, s6, v7\nv_add_u32 v{VA1}, s7, v7\ns_mov_b32 s46, s8\ns_mov_b32 s45, s9\nv_add_u32 v{VW2}, {(slot2(0)-WBASE) & 0xffffffff}, v{VW2}")
    def moves(dst, tile):
        l0, l1 = g.lab("mv"), g.lab("mv")
        f = lambda x: "\n".join(f"v_mov_b64 v[{d+4*i+r}:{d+4*i+r+1}], v[{AC(t,i^x)+r}:{AC(t,i^x)+r+1}]" for d, t in zip(dst, tile) for i in range(4) for r in (0, 2))
        return [f"s_cmp_lg_u32 s{S_RH}, 0\ns_cbranch_scc1 {l0}\n{f(0)}\ns_branch {l1}\n{l0}:\n{f(2)}\n{l1}:"]
    def c_begin(vm, mv=()):
        g.stamp(4)
        a("s_waitcnt lgkmcnt(0)")
        em(mv)
        a("s_barrier")
        g.stamp(5)
        R = c_wread(0) + c_wread(1) + c_wread(2)
        for _, x in R: a(x)
        return [k for k, _ in R]
    def flag_ex(vm, tag, so):
        return lambda: (vm.wait(tag), a(flagops(6, so)), vm.mark('f', 1))
    def quarter(tmp):
        o = [f"v_bfe_u32 v{VQ}, v0, 4, 1", f"v_mul_u32_u24 v{VQ}, 3584, v{VQ}", f"v_lshrrev_b32 v{tmp}, 5, v0", f"v_lshlrev_b32 v{tmp}, 9, v{tmp}",
             f"v_sub_u32 v{VQ}, v{VQ}, v{tmp}", f"v_add_u32 v{VQ}, v{VQ}, v7"]
        for p in (1, 0):
            d = AC(12, 2 * p)
            o += h_cvt(d, d, d + 4)
        for p in (1, 0):
            d = AC(12, 2 * p)
            o += [f"s_nop 1\nv_permlane16_swap_b32 v{d}, v{d+2}", f"v_permlane16_swap_b32 v{d+1}, v{d+3}",
                  f"buffer_store_dwordx4 {vr(d)}, v{VQ}, {W}, s{66+p} offen {HF[0]}"]
        return o

    a(f"s_cmp_ge_u32 s{S_C}, 2\ns_cbranch_scc1 L_cq")
    a(f"s_add_u32 s55, s53, s{S_C}\ns_lshl_b32 s55, s55, 17\ns_add_u32 s55, s55, s52")
    p1_loop(g, True)
    SEL = lambda t: 224 + 4 * t
    T = lambda t: (176 + 4 * t) if t < 4 else (240 + 4 * (t - 4)) if t < 8 else 204
    ex2 = ["v_and_b32 v201, 3, v0", "v_mov_b32 v202, 0x3f803f80"]
    for t in range(4):
        ex2 += [f"v_cmp_eq_u32 vcc, {t}, v201\ns_nop 1\nv_cndmask_b32 v{SEL(t)}, 0, v202, vcc"] + [f"v_mov_b32 v{SEL(t)+r}, v{SEL(t)}" for r in (1, 2, 3)]
    ex2 += quarter(200)
    for n, (s_, p) in enumerate([(0, 0), (0, 1), (1, 0), (1, 1), (2, 0), (3, 0), (2, 1), (3, 1)]):
        ex2 += phi_regs(list(range(AC(s_, 2 * p), AC(s_, 2 * p) + 8)), 192, n >= g.o.get('pk0', 2)) + pack8(AC(s_, 2 * p), AC(s_, 2 * p + 1))
        if n == 3: ex2.append(None)
    rest = p1_tail(g, True, h_line_store(8, 55), ex2, flagops(6, 59, 60))
    g.stamp(2)
    k = rest.index(None)
    em(rest[:k]); rest = rest[k + 1:]
    em(moves((24,), (8,)))
    for s_ in range(4, 8):
        for p in (1, 0): em(pack8(AC(s_, 2 * p), AC(s_, 2 * p + 1)))
    def kv_mfmas(h):
        o = []
        for p in range(2):
            for dt in range(2):
                for e in range(2): o.append(mfma(T((h * 2 + e) * 2 + dt), AC(2 * h + dt, 2 * p), AC(4 + 2 * h + e, 2 * p), "0" if p == 0 else None))
                o.append(mfma(T(8), AC(2 * h + dt, 2 * p), SEL(2 * h + dt), "0" if (h, p, dt) == (0, 0, 0) else None))
        return o
    wr = lambda t: f"ds_write_b128 v5, {vr(T(t))} offset:{t*1024}"
    a("v_add_u32 v5, s16, v4")
    assert g.o['fpos'] < 64
    vm = VM(a)
    gl = len(rest) // 4
    m1 = kv_mfmas(1)
    bgl = {}
    for k, x in enumerate(kv_mfmas(0)): bgl[3 * k] = x
    for t in range(4): bgl[2 * gl - 13 + 4 * t] = wr(t)
    for k in range(6): bgl[2 * gl + 3 + 3 * k] = m1[k]
    for k in range(3): bgl[3 * gl + 3 + 3 * k] = m1[6 + k]
    for k, x in enumerate(rest):
        if k in bgl: a(bgl.pop(k))
        a(x)
    assert not bgl
    a("s_nop 1")
    em(m1[9:])
    em(moves((112,), (10,)))
    p2_setup()
    a("v_add_u32 v88, s17, v4\ns_nop 0")
    for t in (4, 6, 5, 7): a(wr(t))
    a(f"ds_write_b128 v88, {vr(T(8))}")
    g.stamp(3)
    q = c_begin(vm)
    JU = 4
    for u in range(JU): q = c_slab(g, u, vm, q)
    qj, vj = list(q), list(vm.q)
    a("s_branch L_c2join")
    a("L_cq:")
    a(f"s_lshl_b32 s55, s{S_C}, 1\ns_add_u32 s55, s55, s53\ns_sub_u32 s55, s55, 2\ns_lshl_b32 s55, s55, 17\ns_add_u32 s55, s55, s52")
    a("s_add_u32 s62, s55, 0x20000")
    p1_loop(g, False)
    b2 = quarter(AC(5, 0)) + [x for x in h_line_store(8, 62) if x.startswith("v_")]
    mv = moves((40, 56), (8, 10))
    late2 = [f"buffer_store_dwordx4 {vr(40+16*p+4*i)}, v{VA1 if i>>1 else VA0}, {W}, s{63 if i&1 else 62} offen offset:{p*2048} {HF[0]}" for p in range(2) for i in range(4)]
    em(p1_tail(g, False, h_line_store(4, 55), b2, flagops(6, 59)))
    g.stamp(2)
    vm = VM(a, ['h2'])
    hand_q = []
    for h in range(2):
        for i in (2, 3, 0, 1): hand_q.append(pack8(AC(2 * h, i), AC(2 * h + 1, i)) + [f"ds_write_b128 v5, {vr(PQ(i,h))} offset:{(i*2+h)*1024}"])
    a(f"s_lshl_b32 s55, s{S_WAVE}, 13\nv_add_u32 v5, s55, v4")
    phg = g.o.get('phig', 4)
    for x in hand_q: em(x)
    p2_setup()
    a("s_sub_u32 s62, s62, s52\ns_add_u32 s63, s62, 4096")
    em(moves((24, 112), (4, 6)))
    g.stamp(3)
    q = c_begin(vm, mv + (["s_waitcnt vmcnt(0)\n" + flagops(6, 59)] if g.o['fpos'] >= 64 else []))
    ex = []
    for x in late2: ex += [(x, vm, 'h2'), g.o['st2sp']]
    for u in range(JU): q = c_slab(g, u, vm, q, ex, own=True)
    ex = strs(ex)
    qq = [x for x in vm.q if x not in ('f', 'h2')]
    assert not ex and q == qj and qq == vj[len(vj) - len(qq):]
    a("L_c2join:")
    vm.q = list(vj)
    pre = (inbox(68, 56, S_WAVE) +
           "".join(f"s_xor_b32 s{61+p}, s68, {hex(p<<18)}\ns_add_u32 s{61+p}, s{61+p}, {WS_PART+((p-1)<<16)}\ns_add_u32 s{64+p}, s{61+p}, 4096\n" for p in (1, 2, 3)) +
           f"s_add_u32 s59, s59, {F_P}\ns_lshl_b32 s68, s{S_WAVE}, 12\ns_add_u32 s68, s68, {P2END}\n"
           f"s_add_u32 s69, s{S_WAVE}, {NS+2}\ns_and_b32 s69, s69, {NSL-1}\ns_mul_i32 s69, s69, {P2SLOT}\ns_add_u32 s69, s69, {2*UNIT}\n"
           f"s_mov_b32 s28, s18\ns_mov_b32 s29, s19\ns_mov_b32 s30, {hex(2048*1024*2)}\ns_mov_b32 s31, 0x20000\n"
           f"s_lshl_b32 s55, s{S_MB8}, 2\ns_add_u32 s55, s55, s{S_WAVE}\ns_lshl_b32 s55, s55, 17\ns_lshl_b32 s56, s{S_RH}, 16\ns_add_u32 s55, s55, s56\n"
           f"s_lshl_b32 s56, s{S_CB}, 8\ns_add_u32 s55, s55, s56\ns_lshl_b32 s56, s{S_KH}, 7\ns_add_u32 s55, s55, s56\n"
           f"s_lshl_b32 s50, s{S_WAVE}, 1\ns_add_u32 s50, s50, s{S_RH}\ns_lshl_b32 s50, s50, 7\ns_add_u32 s50, s50, {LDS_G}\n"
           f"v_and_b32 v{SEL0+6}, 15, v0\nv_lshrrev_b32 v{SEL0+7}, 4, v0\nv_lshlrev_b32 v{SEL0+7}, 2, v{SEL0+7}\nv_sub_u32 v{SEL0+6}, v{SEL0+6}, v{SEL0+7}\n"
           f"v_and_b32 v{SEL0+7}, 1, v0\nv_lshlrev_b32 v{SEL0+7}, 4, v{SEL0+7}\nv_mov_b32 v{SEL0}, 0x3f80\nv_lshlrev_b32 v{SEL0+7}, v{SEL0+7}, v{SEL0}\nv_lshrrev_b32 v{SEL0+6}, 1, v{SEL0+6}").split("\n")
    pre += [f"v_cmp_eq_u32 vcc, {k}, v{SEL0+6}\ns_nop 1\nv_cndmask_b32 v{SEL0+2+k}, 0, v{SEL0+7}, vcc" for k in range(2)]
    pre += [f"v_mov_b32 v{SEL0+r}, 0" for r in (0, 1, 4, 5)]
    ex = [x for x in pre if x.startswith("s_")]
    for n in range(2, NS - 1):
        if n == 3:
            vm.wait(('A', 7)); a(flagops(6, 60)); vm.mark('f', 1)
        q = c_pair(g, n, vm, q, ex)
    assert not ex
    ex = [x for x in pre if not x.startswith("s_")]
    for u in (2 * NS - 2, 2 * NS - 1): q = c_slab(g, u, vm, q, ex)
    def send(p, sp, mi):
        j, i = 4 * (p >> 1) + 2 * sp, 2 * (p & 1) + mi
        return pack8(ACC(j, i), ACC(j + 1, i)) + [(f"buffer_store_dwordx4 {vr(ACC(j,i))}, v7, {W}, s{61+p+3*mi} offen offset:{sp*2048} sc1", vm, ('ps', p))]
    def rdp(p):
        return [f"ds_read_b128 {vr(PP(p,f))}, v{VFL if p == 3 else VPO} offset:{(4096 if p == 2 else 0)+f*1024}" for f in range(4)]
    def addp(p):
        return [mfma(ACC(2 * sp + t, mi), SEL0 + 2 - 2 * t, PP(p, mi * 2 + sp)) for mi in range(2) for sp in range(2) for t in range(2)]
    XF = g.o['xf']
    PO = (3, 1, 2)
    for v in range(17 + ND):
        if v == 1:
            assert not ex
            ex += (f"v_add_u32 v{VFL}, s68, v4\nv_add_u32 v{VPO}, s69, v4\nv_and_b32 v{VOUT}, 15, v0\nv_lshl_add_u32 v{GG}, v{VOUT}, 2, s50\n"
                   f"v_lshrrev_b32 v{VOUT}, 3, v0\nv_and_b32 v{GG+1}, 7, v0\nv_lshlrev_b32 v{GG+1}, 4, v{GG+1}\nv_lshl_add_u32 v{VOUT}, v{VOUT}, 11, v{GG+1}\n"
                   f"ds_read_b32 v{GG+1}, v{GG} offset:64\nds_read_b32 v{GG}, v{GG}").split("\n")
            ex += ['XW', f"v_add_f32 v{GG}, 1.0, v{GG}", f"v_add_f32 v{GG+1}, 1.0, v{GG+1}", f"v_rcp_f32 v{GG}, v{GG}", f"v_rcp_f32 v{GG+1}, v{GG+1}"]
        if 4 <= v < 16:
            if v % 4 == 0:
                snd = [send(PO[v // 4 - 1], sp, mi) for sp in range(2) for mi in range(2)]
                g.st['since'] = 0; ex.append(6)
            if v >= 12 and g.o.get('fast2', 1):
                if v % 4 < 2: ex += snd[2 * (v % 4)] + snd[2 * (v % 4) + 1]
            elif v % 4 < 2: ex += snd[2 * (v % 4)][:4] + [snd[v % 4][4]] + snd[2 * (v % 4) + 1][:4]
            else: ex += [snd[v % 4][4]]
        if v == 16: g.stamp(6)
        if v == g.o['r1'] + 1: g.stamp(3)
        if v == 14: g.stamp(4)
        if v in (0, 4, 8, 12, 20): g.stamp({0: 11, 4: 12, 8: 13, 12: 14, 20: 15}[v])
        for r in range(3):
            if v == XF[r]:
                assert v >= (8, 12, 14 if g.o.get('fast2', 1) else 16)[r]
                vm.wait(('ps', PO[r])); a(flagops(6, 59)); vm.mark('f', 1); a(f"v_mov_b32 v6, {r+2}")
        if v == g.o['r1']:
            assert v >= 16 and not ex
            g.st['since'] = 0
            ex += [4] + rdp(3) + rdp(1) + ['XW'] + addp(3) + addp(1)
        if v < 16 + ND: q = unit(g, v, vm, q, ex, dens=g.o.get('ydens', 3) if v < 16 else g.o.get('ddens', 3))
        if 4 <= v < 16: assert not [x for x in ex if (isinstance(x, tuple) and x[2][0] == 'ps') or (isinstance(x, str) and x.startswith("v_cvt"))]
    assert not ex
    g.stamp(9)
    a("s_barrier")
    g.stamp(10)
    assert g.o['r1'] == 99
    for f in range(4): em([rdp(p)[f] for p in (3, 1, 2)])
    a(f"s_mul_i32 s56, s{S_WAVE}, 4608\ns_add_u32 s56, s56, {slot2(NS+4)}\nv_and_b32 v1, 15, v0\nv_mul_u32_u24 v1, 144, v1\nv_lshrrev_b32 v5, 4, v0\nv_lshlrev_b32 v5, 3, v5\nv_add3_u32 v1, v1, v5, s56")
    a(f"v_lshrrev_b32 v5, 3, v0\nv_mul_u32_u24 v5, 144, v5\nv_and_b32 v6, 0x70, v{VOUT}\nv_add3_u32 v5, v5, v6, s56")
    def fin(f):
        mi, hf = f >> 1, f & 1
        d = ACC(2 * hf, mi)
        o = []
        for j in range(2):
            for r in (0, 2): o.append(f"v_pk_mul_f32 v[{ACC(2*hf+j,mi)+r}:{ACC(2*hf+j,mi)+r+1}], v[{ACC(2*hf+j,mi)+r}:{ACC(2*hf+j,mi)+r+1}], v[{GG}:{GG+1}] op_sel:[0,{mi}] op_sel_hi:[1,{mi}]")
        o += pack8(d, ACC(2 * hf + 1, mi)) + [f"ds_write_b64 v1, v[{d+2*j}:{d+2*j+1}] offset:{mi*2304+hf*64+j*32}" for j in range(2)]
        if hf: o += [f"ds_read_b128 {vr(40+8*mi+4*k)}, v5 offset:{mi*2304+k*1152}" for k in range(2)]
        return o
    st = lambda k: f"s_add_u32 s56, s55, {0x4000*k}\nbuffer_store_dwordx4 {vr(40+4*k)}, v{VOUT}, s[28:31], s56 offen {g.o.get('outflag', 'sc1')}"
    bg = []
    for f in range(4):
        a(f"s_waitcnt lgkmcnt({(9, 6, 3, 2)[f]})")
        for t in range(2):
            for p in (3, 1, 2):
                a(addp(p)[2 * f + t]); em(bg[:2]); bg = bg[2:]
        assert not bg
        if f: bg = fin(f - 1)
    g.stamp(7)
    em(bg); a("s_waitcnt lgkmcnt(2)"); a(st(0)); a(st(1))
    em(fin(3)); a("s_waitcnt lgkmcnt(1)"); a(st(2)); a("s_waitcnt lgkmcnt(0)"); a(st(3))
    if g.o['prof']:
        a("s_waitcnt vmcnt(0)")
        g.stamp(8)
    if g.o.get('probe') is not None:
        k = g.o['probe']
        if k == 'xcc':
            k = 0
            a("s_waitcnt lgkmcnt(0)\ns_getreg_b32 s55, hwreg(HW_REG_XCC_ID)\ns_sub_u32 s55, s55, s2\ns_and_b32 s55, s55, 7\ns_mul_i32 s55, s55, 500\ns_add_u32 s70, s70, s55")
        if k == 'min':
            k = 0
            srd(g, 28, 24, 256)
            a("buffer_load_dword v5, off, s[28:31], 0 offset:4 sc1\ns_waitcnt vmcnt(0) lgkmcnt(0)\nv_readfirstlane_b32 s70, v5\ns_nop 3\ns_not_b32 s70, s70")
        a(f"s_waitcnt lgkmcnt(0)\ns_add_u32 s55, s{70+2*k}, 6000\nL_probe:\ns_memrealtime s[56:57]\ns_waitcnt lgkmcnt(0)\ns_sub_u32 s56, s56, s55\ns_cmp_lt_i32 s56, 0\ns_cbranch_scc1 L_probe\ns_endpgm")
    prof_dump(g, 0, 0)
    a("s_endpgm")


def q_call(g, n):
    K1 = g.o['k1']
    k = f"p{n}" if n < len(g.o['pch']) else 4 + n - K1 if K1 <= n <= K1 + g.o['noc'] else None
    if k is None: return
    l = g.lab("qc")
    if n == 0: g.a("s_call_b64 s[84:85], L_qp0"); return
    g.a(f"s_cmp_lt_u32 s{S_C}, 2\ns_cbranch_scc1 {l}\ns_call_b64 s[84:85], L_q{k}\n{l}:")


def q_chunks(g):
    a = g.a
    QR = lambda f: 128 + 4 * f
    def phi(f):
        if g.o.get('nophi'): return
        for r in range(4): a(f"v_lshlrev_b32 v{160+2*r}, 16, v{QR(f)+r}\nv_and_b32 v{161+2*r}, 0xffff0000, v{QR(f)+r}")
        for r in range(8): a(f"v_mul_f32 v{168+r}, 0x3fb8aa3b, v{160+r}")
        for r in range(8): a(f"v_exp_f32 v{168+r}, v{168+r} clamp\nv_max_f32 v{160+r}, 0x358637bd, v{160+r}")
        for r in range(8): a(f"v_add_f32 v{160+r}, v{160+r}, v{168+r}")
        for r in range(4): a(f"v_cvt_pk_bf16_f32 v{QR(f)+r}, v{160+2*r}, v{161+2*r}")
    nf = 0
    assert sum(g.o['pch']) == 8 and len(g.o['pch']) <= g.o['k0']
    a("L_k0:\ns_setprio 2")
    a(f"s_lshl_b32 s82, s86, 11\nv_lshl_add_u32 v224, v0, 4, s82\nv_lshlrev_b32 v225, 4, v0\nv_add_u32 v226, {P2END}, v225")
    for w in range(4):
        for t in range(2): a(f"ds_read_b128 {vr(128+8*w+4*t)}, v224 offset:{w*8192+t*1024}")
    for w in range(4): a(f"ds_read_b128 {vr(160+4*w)}, v226 offset:{w*1024}")
    a(f"s_lshl_b32 s83, s{S_PAIR}, 3\ns_add_u32 s83, s83, s{S_MB8}\ns_mul_i32 s83, s83, 9216\ns_add_u32 s83, s83, {WS_KVP}\ns_add_u32 s82, s82, s83")
    a("s_add_u32 s83, s83, 8192\ns_cmp_eq_u32 s86, 0\ns_cselect_b32 s83, s83, 0x10000000\ns_waitcnt lgkmcnt(4)")
    for r in range(16): a(f"v_add_f32 v{128+r}, v{128+r}, v{144+r}")
    for r in range(8): a(f"v_add_f32 v{128+r}, v{128+r}, v{136+r}")
    for t in range(2): a(f"buffer_store_dwordx4 {vr(128+4*t)}, v225, {W}, s82 offen offset:{t*1024} sc1")
    a("s_waitcnt lgkmcnt(0)")
    for r in range(8): a(f"v_add_f32 v{160+r}, v{160+r}, v{168+r}")
    for r in range(4): a(f"v_add_f32 v{160+r}, v{160+r}, v{164+r}")
    a(f"buffer_store_dwordx4 v[160:163], v225, {W}, s83 offen sc1\ns_setprio 0\ns_setpc_b64 s[84:85]")
    for k in range(len(g.o['pch'])):
        a(f"L_qp{k}:")
        if k == 0: a(f"s_sub_u32 s86, s{S_WAVE}, 4\ns_cmp_lt_u32 s{S_C}, 2\ns_cbranch_scc1 L_k0")
        if g.o.get('pprio'): a(f"s_setprio {g.o['pprio']}")
        if k == 0:
            a(f"s_sub_u32 s86, s{S_WAVE}, 4\ns_lshl_b32 s82, s86, 13\nv_lshl_add_u32 v224, v0, 4, s82")
            for f in range(8): a(f"ds_read_b128 {vr(QR(f))}, v224 offset:{f*1024}")
            a(f"s_lshl_b32 s83, s2, 11\ns_add_u32 s83, s83, {WS_FLAG+F_X}\ns_xor_b32 s83, s83, s79")
            a(f"s_and_b32 s82, s{S_MB8}, 3\ns_lshl_b32 s82, s82, 4\ns_add_u32 s82, s82, s{S_PAIR}\ns_lshl_b32 s82, s82, 2\ns_add_u32 s82, s82, s86\ns_lshl_b32 s82, s82, 15\ns_add_u32 s82, s82, {OREG}")
            a(f"v_lshlrev_b32 v224, 4, v0\nv_add_u32 v224, {P2END}, v224\nv_mov_b32 v226, 0\nds_write_b32 v224, v226 offset:8192\nv_mov_b32 v226, 1\ns_waitcnt lgkmcnt(0)")
        for _ in range(g.o['pch'][k]): phi(nf); nf += 1
        a("s_setpc_b64 s[84:85]")
    noc = g.o['noc']
    tiles = {2: [(0, 1), (2, 3)], 3: [(0,), (1, 2), (3,)], 4: [(0,), (1,), (2,), (3,)]}[noc]
    for k in range(noc):
        a(f"L_q{4+k}:")
        if g.o.get('qprio'): a(f"s_setprio {g.o['qprio']}")
        lane_goodcol(g, 225, 227)
        if k == 0:
            for f in range(6): a(f"ds_read_b128 {vr(176+4*f)}, v224 offset:{f*1024}")
            a(f"s_lshl_b32 s86, s{S_WAVE}, 8\ns_add_u32 s86, s86, {LDS_G-1024}\nv_and_b32 v227, 15, v0\nv_lshl_add_u32 v227, v227, 2, s86")
            for i in range(4): a(f"ds_read_b32 v{228+i}, v227 offset:{i*64}")
            a("s_waitcnt lgkmcnt(0)")
        for i in tiles[k]:
            for h in range(2):
                for e in (2, 0, 1): a(mfma(200 + 12 * h + 4 * e, 176 + 4 * (3 * h + e), QR(2 * i + h), "0"))
            a(f"s_add_u32 s86, s82, {MT(i)}\ns_nop 3")
            for h in range(2):
                t = 200 + 12 * h
                a(f"v_add_f32 v{t+8}, 0x358637bd, v{t+8}\nv_rcp_f32 v{t+8}, v{t+8}\ns_nop 0\nv_mul_f32 v{t+8}, v{228+i}, v{t+8}")
                for r in range(8): a(f"v_mul_f32 v{t+r}, v{t+r}, v{t+8}")
                for r in range(4): a(f"v_cvt_pk_bf16_f32 v{QR(2*i+h)+r}, v{t+2*r}, v{t+2*r+1}")
                a(f"buffer_store_dwordx4 {vr(QR(2*i+h))}, v225, {W}, s86 offen offset:{h*2048} sc1")
        if g.o.get('qprio'): a("s_setprio 0")
        a("s_setpc_b64 s[84:85]")
    a(f"L_q{4+noc}:\ns_waitcnt vmcnt(0)\nds_add_rtn_u32 v227, v224, v226 offset:8192\ns_waitcnt lgkmcnt(0)\nv_cmp_eq_u32 vcc, 3, v227\ns_cbranch_vccz L_qret")
    a(flagops(226, 83) + "\nL_qret:\ns_mov_b64 vcc, -1\ns_setpc_b64 s[84:85]")


def aux_sel(g):
    if g.o['pol'] is None: g.a(f"v_mov_b32 v227, {LDS_SEL}\nds_read_b32 v227, v227\ns_waitcnt lgkmcnt(0)\nv_readfirstlane_b32 s79, v227\ns_nop 1\ns_xor_b32 s{S_SEL}, s{S_SEL}, s79")
    if g.o['pol'] is not None or not g.o['nearf']: g.a("s_mov_b32 s79, 0")


def aux_rx(g):
    a = g.a
    a("L_rx:")
    lane_goodcol(g, 225, 227)
    a(f"v_add_u32 v224, 1024, v225\ns_sub_u32 s86, s{S_WAVE}, 4")
    a(inbox(82, 83, 86) + f"s_add_u32 s82, s82, {WS_PART}")
    a(f"s_lshl_b32 s83, s2, 11\ns_lshl_b32 s47, s86, 7\ns_add_u32 s83, s83, s47\ns_xor_b32 s83, s83, s79")
    a(f"s_lshl_b32 s84, s86, 12\ns_add_u32 s84, s84, {P2END}")
    a(f"s_add_u32 s85, s86, {NS+2}\ns_and_b32 s85, s85, {NSL-1}\ns_mul_i32 s85, s85, {P2SLOT}\ns_add_u32 s85, s85, {2*UNIT}")
    a("s_waitcnt vmcnt(0) lgkmcnt(0)\ns_barrier")
    for r, p in enumerate((3, 1, 2)):
        a(f"s_xor_b32 s47, s83, {p<<11}\ns_add_u32 s47, s47, {WS_FLAG+F_P}")
        iss = lambda: a(f"buffer_load_dword v226, off, {W}, s47 sc1")
        if r == 2 and g.o['r1'] != 99: a("s_waitcnt vmcnt(0)"); iss(); a("s_barrier")
        else: iss()
        poll_check(g, iss, 226, 1, r + 1, "gt")
        for mi in range(2):
            a(f"s_add_u32 m0, s{84 if p == 3 else 85}, {(4096 if p == 2 else 0)+mi*2048}\ns_add_u32 s47, s82, {((p-1)<<16)+mi*4096}")
            a(f"buffer_load_dwordx4 v225, {W}, s47 offen sc1 lds\nbuffer_load_dwordx4 v224, {W}, s47 offen offset:1024 sc1 lds")
    a("s_waitcnt vmcnt(0)\ns_endpgm")


def loader(g):
    def a(x):
        if not g.o.get('trace'): return g.a(x)
        for ln in x.split("\n"):
            g.a(ln)
            if ln.strip() == "s_barrier":
                g.a(("s_memtime" if g.o['trace'] == 'cyc' else "s_memrealtime") + " s[100:101]\ns_waitcnt lgkmcnt(0)\ns_mov_b32 m0, s44\ns_add_u32 s44, s44, 1\nv_writelane_b32 v32, s100, m0\ns_cmp_lg_u32 s44, 33\ns_cbranch_scc1 1\nv_mov_b32 v33, v32")
    if g.o.get('trace'): a("s_mov_b32 s44, 0\nv_mov_b32 v32, 0\nv_mov_b32 v33, 0")
    LW = 45
    if g.o.get('sprio'): a(f"s_setprio {g.o['sprio']}")
    a(f"s_sub_u32 s{LW}, s{S_WAVE}, 4")
    a("v_lshrrev_b32 v1, 5, v0\nv_bfe_u32 v2, v0, 4, 1\nv_lshlrev_b32 v1, 4, v1\nv_lshl_add_u32 v1, v2, 2, v1\nv_bfe_u32 v2, v0, 3, 1\nv_add_u32 v1, v1, v2")
    a(f"s_lshl_b32 s61, s{LW}, 3\nv_add_u32 v1, s61, v1\nv_and_b32 v2, 7, v0\nv_lshlrev_b32 v2, 4, v2")
    a(f"s_lshl_b32 s61, s{S_MB8}, 19\nv_lshl_add_u32 v4, v1, 11, v2\nv_add_u32 v4, s61, v4\nv_add_u32 v5, {4096-BLK}, v4")
    a(f"s_mul_i32 s66, s{LW}, {2*BLK}")
    a(f"s_mov_b32 s61, s66\ns_mov_b32 s62, 0\ns_mov_b32 s63, 0\ns_mov_b32 s64, 0\ns_add_u32 s65, s66, {WBASE}")
    a(f"s_add_u32 s67, s66, {XRING}\ns_add_u32 s68, s66, {WBASE+4*WSLOT}")
    a(f"s_lshl_b32 s69, s{LW}, 9\ns_sub_u32 s69, s69, s66\ns_add_u32 s69, s69, {3*UNIT}")
    a(f"s_mov_b32 s30, {hex(2048*1024*2)}\ns_mov_b32 s31, 0x20000\ns_mov_b32 s50, {hex(1024*3072*2)}\ns_mov_b32 s51, 0x20000")
    a(f"s_mov_b32 s58, {hex(1024*3584*2)}\ns_mov_b32 s59, 0x20000\ns_mov_b32 s55, 0x20000")
    if g.o.get('ldump'): a("s_memrealtime s[90:91]")
    a("s_waitcnt lgkmcnt(0)")
    a("s_mov_b64 s[28:29], s[4:5]\ns_mov_b64 s[48:49], s[6:7]\ns_mov_b64 s[56:57], s[12:13]")
    a(f"s_cmp_ge_u32 s{S_C}, 2")
    a("s_cselect_b64 s[52:53], s[12:13], s[6:7]\ns_cselect_b32 s54, s58, s50")

    def wsetup():
        a(f"s_movk_i32 s60, 6144\ns_cmp_ge_u32 s{S_C}, 2\ns_cselect_b32 s60, 7168, s60")
        a(f"s_cselect_b32 s82, 0, 2048\ns_lshl_b32 s83, s{S_PAIR}, 7\ns_add_u32 s82, s82, s83")
        a(f"v_mul_u32_u24 v6, 6144, v1\nv_add3_u32 v6, v6, v2, s82\nv_add_u32 v7, {12288-BLK}, v6")
        a(f"s_mul_i32 s84, s{S_QD}, 7\ns_lshl_b32 s85, s{S_C}, 1\ns_add_u32 s85, s85, s84\ns_sub_u32 s86, s85, 2\ns_lshl_b32 s86, s86, 7\ns_add_u32 s83, s83, 4096")
        a(f"s_cmp_ge_u32 s{S_C}, 2\ns_cselect_b32 s82, s86, s83")
        a(f"v_mul_lo_u32 v8, v1, s60\nv_add3_u32 v8, v8, v2, s82\ns_lshl_b32 s83, s60, 1\ns_sub_u32 s83, s83, {BLK}\nv_add_u32 v9, s83, v8")
        a(f"s_sub_u32 s85, s85, 1\ns_add_u32 s86, s84, s{S_C}\ns_cmp_ge_u32 s{S_C}, 2\ns_cselect_b32 s82, s85, s86\ns_lshl_b32 s82, s82, 7")
        a(f"v_mul_u32_u24 v10, 7168, v1\nv_add3_u32 v10, v10, v2, s82\nv_add_u32 v11, {14336-BLK}, v10")
        a("v_bfe_u32 v12, v0, 4, 1\nv_bfe_u32 v13, v0, 3, 1\nv_lshlrev_b32 v12, 2, v12\nv_lshl_add_u32 v12, v13, 3, v12\nv_bfe_u32 v13, v0, 1, 2\nv_add_u32 v12, v12, v13")
        a(f"s_lshl_b32 s82, s{LW}, 4\nv_add_u32 v12, s82, v12\nv_mul_u32_u24 v12, 7168, v12\nv_and_b32 v13, 1, v0\nv_lshl_add_u32 v12, v13, 4, v12")
        a(f"s_add_u32 s82, s84, 6\ns_lshl_b32 s82, s82, 7\ns_lshl_b32 s83, s{S_C}, 5\ns_add_u32 s82, s82, s83\nv_add_u32 v12, s82, v12")
        a("s_lshl_b32 s60, s60, 5")

    def xhalf():
        a("s_mov_b32 m0, s61\ns_add_u32 s46, s62, s63")
        for u in range(4):
            if u: a(f"s_add_u32 m0, m0, {UNIT}\ns_add_u32 s46, s46, 0x10000")
            a("buffer_load_dwordx4 v4, s[28:31], s46 offen lds")
            a(f"buffer_load_dwordx4 v5, s[28:31], s46 offen offset:{BLK} lds")
        a(f"s_add_u32 s61, s61, {4*UNIT}\ns_cmp_eq_u32 s61, s67\ns_cselect_b32 s61, s66, s61")
        a("s_xor_b32 s63, s63, 0x40000\ns_cselect_b32 s47, 0, 128\ns_add_u32 s62, s62, s47\ns_and_b32 s62, s62, 2047")

    def wslab():
        for ln, (sr, ld) in enumerate([(48, 32 * 6144), (52, "s60"), (56, 32 * 7168)]):
            a(f"s_add_u32 m0, s65, {ln*UNIT}\ns_mul_i32 s35, s64, {ld}")
            a(f"buffer_load_dwordx4 v{6+2*ln}, s[{sr}:{sr+3}], s35 offen lds")
            a(f"buffer_load_dwordx4 v{7+2*ln}, s[{sr}:{sr+3}], s35 offen offset:{BLK} lds")
        a("s_add_u32 m0, s65, s69\ns_mov_b32 exec_hi, 0")
        a("buffer_load_dwordx4 v12, s[56:59], s35 offen lds")
        a("s_mov_b32 exec_hi, -1")
        a(f"s_add_u32 s65, s65, {WSLOT}\ns_cmp_eq_u32 s65, s68\ns_cselect_b32 s65, s67, s65")
        a("s_add_u32 s64, s64, 1\ns_and_b32 s64, s64, 31")

    if not g.o.get('xfirst'): wsetup()
    g.stamp(1)
    xhalf()
    if g.o.get('xfirst') == 2: xhalf()
    if g.o.get('xfirst'): wsetup()
    wslab()
    if g.o.get('xfirst') != 2: xhalf()
    wslab(); g.stamp(2)
    if g.o.get('sprio'): a("s_setprio 0")
    a("s_waitcnt vmcnt(7)"); g.stamp(3)
    a("s_barrier")
    SM = g.o.get('smooth', 1)
    if SM:
        xhalf(); xhalf(); wslab()
        a("s_waitcnt vmcnt(23)\ns_barrier")
        wslab(); xhalf(); wslab()
        a("s_waitcnt vmcnt(22)\ns_barrier")
        xhalf(); wslab(); xhalf()
    else:
        xhalf(); wslab(); xhalf(); wslab(); xhalf()
    real_a, buf = g.a, []
    g.a = lambda x: buf.extend(x.split("\n"))
    srd(g, SRD_WS, 26, 0x10000000)
    a(f"s_mov_b32 s10, {hex(1024*1024*2)}\ns_mov_b32 s11, 0x20000")
    a(f"s_mov_b64 s[12:13], s[14:15]\ns_mov_b32 s14, {hex(3584*1024*2)}\ns_mov_b32 s15, 0x20000")
    a("v_lshrrev_b32 v1, 5, v0\nv_bfe_u32 v3, v0, 4, 1\nv_lshlrev_b32 v1, 3, v1\nv_lshl_add_u32 v1, v3, 4, v1\nv_bfe_u32 v3, v0, 3, 1\nv_add_u32 v1, v1, v3")
    a(f"s_lshl_b32 s4, s{LW}, 2\nv_add_u32 v1, s4, v1")
    a(f"s_lshl_b32 s4, s{S_CB}, 8\ns_lshl_b32 s5, s{S_KH}, 7\ns_add_u32 s4, s4, s5")
    a("v_lshl_add_u32 v14, v1, 11, v2\nv_add_u32 v14, s4, v14\nv_xor_b32 v16, 128, v14")
    a(f"v_add_u32 v15, {4096-BLK}, v14\nv_add_u32 v17, {4096-BLK}, v16")
    a(f"s_lshl_b32 s5, s{S_MB8}, 19\ns_sub_u32 s4, s4, s5")
    a(f"v_add_u32 v24, s4, v4\nv_xor_b32 v26, 128, v24\nv_add_u32 v25, {4096-BLK}, v24\nv_add_u32 v27, {4096-BLK}, v26")
    a(f"s_mul_i32 s6, s32, {14<<17}\ns_mul_i32 s7, s32, {NA<<17}")
    a("s_mov_b64 s[24:25], s[12:13]\ns_mov_b32 s26, s14\ns_mov_b32 s27, 0x20000")
    ord_table(g, 4)
    g.a = real_a
    cut = max(i for i, x in enumerate(buf) if x.startswith("s_mov_b64 s[24:25], s[12:13]"))
    NU = 6
    a(f"s_mov_b32 s34, {27-NU-2*SM}")
    a("L_l1:")
    a("s_waitcnt vmcnt(30)\ns_barrier")
    wslab(); xhalf()
    a("s_sub_u32 s34, s34, 1\ns_cmp_lg_u32 s34, 0\ns_cbranch_scc1 L_l1")
    t0 = 27 - NU
    vm = VM(a, [('I', t0 - 3)] * 15 + [('I', t0 - 2)] * 15 + [('I', t0 - 1)] * 15)
    busy = [False]
    def wstage(m, part=range(4)):
        if m < 14: a(f"s_bfe_u32 s16, s{4+m//8}, {hex((4<<16) | (4*(m%8)))}\ns_lshl_b32 s16, s16, 17\ns_add_u32 s16, s16, s6")
        for ln in range(2):
            for kk in range(2):
                if ln * 2 + kk not in part: continue
                if g.o.get('wpace') and m >= 3 and (ln or kk):
                    a(f"s_cbranch_vccnz 1\ns_sleep {g.o['wpace']}" if busy[0] else f"s_sleep {g.o['wpace']}")
                a(f"s_add_u32 m0, s66, {slot2(m)+(ln*2+kk)*UNIT}")
                if m < 14:
                    vb, sr = (24 if ORD[m] % 7 == 6 else 14) + 2 * ln, 24 if ln else 12
                    a(f"s_add_u32 s47, s16, {kk<<16}")
                elif m < NS + 4:
                    vb, sr = 14 + 2 * ln, 8
                    a(f"s_add_u32 s47, s7, {((ND+m-14)<<17)+(kk<<16)}")
                else:
                    vb, sr = 14, 8
                    a(f"s_mov_b32 s47, {((2*(m-NS-4)+ln)<<17)+(kk<<16)}")
                for jb in range(2):
                    vm.op(f"buffer_load_dwordx4 v{vb+jb}, s[{sr}:{sr+3}], s47 offen offset:{jb*BLK} sc1 lds", m)
    for t in range(t0, 27):
        vm.wait(('I', t - 3)); a("s_barrier")
        wslab(); xhalf(); vm.mark(('I', t), 15)
        k = t - t0
        for x in (buf[k * cut // 5:(k + 1) * cut // 5] if k < 5 else buf[cut:]): a(x)
    vm.wait(('I', 25)); a("s_barrier")
    wslab(); vm.mark(('I', 27), 7)
    vm.wait(('I', 26)); a("s_barrier")
    wstage(0)
    vm.wait(('I', 27)); a("s_barrier")
    wstage(1)
    aux_sel(g)
    a("s_barrier")
    nxt = 2
    for _ in range(g.o.get('w31', 1)): wstage(nxt); nxt += 1
    a("s_barrier")
    g.stamp(5)
    for _ in range(g.o.get('w32', 0)): wstage(nxt); nxt += 1
    a(f"s_cmp_ge_u32 s{S_C}, 2\ns_cselect_b64 vcc, -1, 0")
    sched = g.o.get('wsched', [4, 4, 5, 5, 6, 5, 6, 4, 4, 6, 6, 5, 4, 4]); sub = 0
    for n in range(0, NS + 2):
        SK = g.o['sk']
        if n not in SK:
            need = n
            while need + 1 in SK: need += 1
            if n >= NS: need = NS + 3
            lim = {0: 5}.get(n, n + 6)
            assert nxt > need
            vm.wait(need); a("s_barrier")
        else: vm.wait(nxt - 1)
        fl = n == g.o['k1'] + g.o['noc']
        fl = fl or (n == 0 and g.o.get('k0first', 1))
        if fl: q_call(g, n)
        busy[0] = n < len(g.o['pch']) or g.o['k1'] <= n <= g.o['k1'] + g.o['noc']
        left = sched[n]
        while left:
            assert nxt <= lim
            k = min(left, 4 - sub)
            wstage(nxt, range(sub, sub + k)); left -= k; sub += k
            if sub == 4: nxt += 1; sub = 0
        if not fl: q_call(g, n)
    assert nxt == NS + 4 + ND // 2
    if g.o.get('trace'):
        l = g.lab("tr")
        a(f"s_cmp_lg_u32 s{S_WAVE}, 4\ns_cbranch_scc1 {l}\ns_lshl_b32 s33, s2, 9\ns_add_u32 s33, s33, {WS_PROF+0x20000}\nv_lshlrev_b32 v5, 2, v0")
        a(f"buffer_store_dword v33, v5, {W}, s33 offen\nbuffer_store_dword v32, v5, {W}, s33 offen offset:256\n{l}:")
    if g.o.get('ldump'): prof_dump(g, 4, 1)
    aux_rx(g)


def pf_item(g, wait=False):
    a = g.a
    a(f"s_mul_hi_u32 s47, s68, {(2**32+16)//17}\ns_mul_i32 s33, s47, 17\ns_sub_u32 s33, s68, s33")
    a("s_lshl_b32 s50, s47, 1\ns_add_u32 s50, s50, s87\ns_lshl_b32 s50, s50, 5")
    a("s_mul_i32 s51, s32, 7\ns_add_u32 s51, s51, s33\ns_sub_u32 s51, s51, 10")
    a("s_sub_u32 s35, s33, 4\ns_lshr_b32 s54, s35, 1\ns_lshl_b32 s54, s54, 2\ns_add_u32 s54, s54, s32\ns_lshl_b32 s54, s54, 1\ns_and_b32 s35, s35, 1\ns_add_u32 s35, s35, s54")
    a(f"s_movk_i32 s55, 7168\ns_mov_b32 s54, {hex(1024*3584*2)}\ns_cmp_lt_u32 s33, 10\ns_cselect_b32 s51, s35, s51\ns_cselect_b32 s35, 6144, s55\ns_cselect_b32 s54, {hex(1024*3072*2)}, s54")
    a("s_mul_i32 s50, s50, s35\ns_lshl_b32 s51, s51, 8\ns_add_u32 s50, s50, s51")
    a(f"s_lshl_b32 s51, s{S_XCD}, 2\ns_add_u32 s51, s51, s33\ns_lshl_b32 s51, s51, 17\ns_lshl_b32 s47, s47, 7\ns_add_u32 s47, s47, s51")
    a(f"s_cmp_lt_u32 s33, 4\ns_cselect_b32 s47, s47, s50\ns_cselect_b32 s35, 4096, s35\ns_cselect_b32 s50, 11, 7\ns_cselect_b32 s54, {hex(2048*1024*2)}, s54\ns_mov_b32 s55, 0x20000")
    a("v_lshrrev_b32 v10, 1, v0\nv_and_b32 v11, 1, v0\nv_mul_lo_u32 v10, v10, s35\nv_lshl_add_u32 v10, v11, s50, v10")
    if wait: a("s_waitcnt lgkmcnt(0)")
    a("s_cmp_lt_u32 s33, 10\ns_cselect_b64 s[52:53], s[6:7], s[12:13]\ns_cmp_lt_u32 s33, 4\ns_cselect_b64 s[52:53], s[4:5], s[52:53]")
    a("buffer_load_dword v9, v10, s[52:55], s47 offen")


def helper(g):
    a = g.a
    a("L_helper:")
    HW = 45
    def bars(n):
        for _ in range(n): a("s_barrier")
    if g.o.get('hprio'): a(f"s_setprio {g.o['hprio']}")
    a(f"s_sub_u32 s{HW}, s{S_WAVE}, 6")
    a("v_lshlrev_b32 v4, 4, v0\nv_lshlrev_b32 v5, 2, v0\nv_mov_b32 v6, 0\nv_mov_b32 v7, 1\nv_lshlrev_b32 v8, 7, v0")
    if not g.o.get('cpf0', 1): a("s_mov_b64 exec, 0xffff\nbuffer_load_dword v9, v8, s[96:99], s100 offen\ns_mov_b64 exec, -1")
    a(f"s_lshl_b32 s46, s32, 3\ns_add_u32 s46, s46, s{S_CB}\ns_lshl_b32 s47, s{S_MB8}, 5\ns_add_u32 s46, s46, s47")
    a("s_waitcnt lgkmcnt(0)")
    srd(g, SRD_WS, 26, 0x10000000)
    srd(g, 28, 4, 2048 * 1024 * 2)
    srd(g, 92, 24, 256)
    for r in range(12, 16): a(f"v_mov_b32 v{r}, -1")
    a(f"s_mov_b32 s33, 0x10000000\ns_lshl_b32 s88, s{S_PAIR}, 3\ns_add_u32 s88, s88, s{S_MB8}\ns_mul_i32 s88, s88, 9216\ns_add_u32 s88, s88, {WS_KVP}")
    a(f"s_mul_i32 s89, s{S_PAIR}, 6144\ns_lshl_b32 s47, s{S_MB8}, 10\ns_add_u32 s89, s89, s47\ns_add_u32 s89, s89, {WS_KVF}")
    a(f"s_cmp_ge_u32 s{S_MB8}, 6\ns_cselect_b32 s89, s33, s89\ns_cmp_ge_u32 s{S_C}, 2\ns_cselect_b32 s88, s33, s88\ns_cselect_b32 s89, s33, s89")
    def init0(k):
        if k == 0:
            for r in range(16, 20): a(f"v_mov_b32 v{r}, 0")
            a(f"s_lshl_b32 s47, s2, 11\ns_add_u32 s47, s47, {WS_FLAG}")
            a(f"buffer_store_dwordx4 v[16:19], v4, {W}, s47 offen sc1\nbuffer_store_dwordx4 v[16:19], v4, {W}, s47 offen offset:1024 sc1")
        elif k == 1:
            a(f"buffer_store_dwordx4 v[12:15], v4, {W}, s89 offen sc1")
            a(f"s_mov_b64 exec, 0xff\ns_lshl_b32 s47, s46, 7\ns_add_u32 s47, s47, {WS_FLAG+F_G}")
            a(f"buffer_store_dwordx4 v[12:15], v4, {W}, s47 offen sc1\ns_mov_b64 exec, -1")
        else:
            a(f"buffer_store_dwordx4 v[12:15], v4, {W}, s88 offen sc1\ns_add_u32 s88, s88, 1024")
    issd = lambda: a("buffer_load_dword v23, off, s[92:95], 0 sc1")
    def init3():
        ok = g.lab("rdy")
        a(f"v_cmp_eq_u32 vcc, 0, v23\ns_cbranch_vccz {ok}")
        issd(); poll_check(g, issd, 23, 1, 0, "eq")
        a(f"{ok}:\nv_and_b32 v23, 0x2000, v23\nv_mov_b32 v22, {LDS_SEL}\nds_write_b32 v22, v23\ns_lshr_b32 s47, s2, 2\ns_lshl_b32 s47, s47, 7\ns_and_b32 s33, s2, 3\ns_lshl_b32 s33, s33, 2\ns_add_u32 s47, s47, s33\ns_add_u32 s47, s47, {WS_FLAG+F_RDY}")
        a(flagops(7, 47) + "\ns_waitcnt lgkmcnt(0)")
    lz = g.lab("z")
    a(f"s_or_b32 s33, s2, s{HW}\ns_cbranch_scc1 {lz}")
    for r in range(16, 20): a(f"v_mov_b32 v{r}, 0")
    a(f"s_mov_b32 s47, {WS_FLAG+F_RDY}\ns_mov_b32 s33, {WS_FLAG+F_RDY+4096}")
    for k in range(8): a(f"buffer_store_dwordx4 v[16:19], v4, {W}, s{33 if k>>2 else 47} offen offset:{(k&3)*1024} sc1")
    a(f"s_mov_b32 s47, {WS_PROBE}\ns_mov_b32 s33, {WS_PROBE+8192}")
    a(f"buffer_store_dwordx4 v[16:19], v4, {W}, s47 offen sc1\nbuffer_store_dwordx4 v[16:19], v4, {W}, s33 offen sc1\n{lz}:")
    a("s_mov_b32 s90, -1\ns_mov_b32 s91, -1")
    def wg0(f):
        l = g.lab("w0")
        a(f"s_cmp_lg_u32 s2, 0\ns_cbranch_scc1 {l}"); f(); a(f"{l}:")
    def probe(k):
        a(f"s_mov_b32 s47, {WS_PROBE+(k&1)*8192+(k>>1)*128}\ns_memtime s[48:49]\ns_waitcnt lgkmcnt(0)\ns_load_dword s33, s[26:27], s47\ns_waitcnt lgkmcnt(0)")
        a(f"s_memtime s[50:51]\ns_waitcnt lgkmcnt(0)\ns_sub_u32 s33, s50, s48\ns_min_u32 s{90+(k&1)}, s{90+(k&1)}, s33")
    def announce():
        a("s_cmp_lt_u32 s91, s90\ns_cselect_b32 s33, 0x2001, 1\nv_mov_b32 v23, s33\ns_mov_b64 exec, 1\nbuffer_store_dword v23, off, s[92:95], 0 sc1")
        if g.o.get('showp'): a("v_mov_b32 v22, s90\nbuffer_store_dword v22, off, s[92:95], 0 offset:4\nv_mov_b32 v21, s91\nbuffer_store_dword v21, off, s[92:95], 0 offset:8")
        a("s_mov_b64 exec, -1")
    srd(g, 60, 14, 3584 * 1024 * 2)
    srd(g, 64, 8, 1024 * 1024 * 2)
    def w2item():
        l, lo = g.lab("pw"), g.lab("pw")
        a(f"s_cmp_ge_u32 s69, 112\ns_cbranch_scc1 {lo}\ns_lshr_b32 s47, s69, 3\ns_lshl_b32 s47, s47, 2\ns_lshr_b64 s[50:51], s[48:49], s47\ns_and_b32 s50, s50, 15")
        a(f"s_mul_i32 s47, s32, 14\ns_add_u32 s47, s47, s50\ns_lshl_b32 s47, s47, 1\ns_add_u32 s47, s47, s87\ns_lshl_b32 s47, s47, 3\ns_and_b32 s50, s69, 7\ns_add_u32 s47, s47, s50\ns_lshl_b32 s47, s47, 13")
        a(f"buffer_load_dword v9, v8, s[60:63], s47 offen\ns_branch {l}")
        a(f"{lo}:\ns_sub_u32 s47, s69, 112\ns_lshl_b32 s47, s47, 3\ns_add_u32 s47, s47, s{S_XCD}\ns_lshl_b32 s47, s47, 13\nbuffer_load_dword v9, v8, s[64:67], s47 offen\n{l}:\ns_add_u32 s69, s69, 32")
    a(f"s_cmp_lg_u32 s{HW}, 0\ns_cbranch_scc1 L_h_one")
    iss0 = lambda: a(f"s_mov_b32 s47, {WS_FLAG+F_RDY}\nbuffer_load_dwordx4 v[16:19], v8, {W}, s47 offen sc1")
    for t in range(0, 29):
        a("s_barrier")
        if t == 1: a("s_waitcnt vmcnt(0)")
        if 3 <= t < 14: a(f"s_sleep {g.o['hdel']}"); init0(t - 3)
        if 2 <= t < 12 and g.o['pol'] is None: wg0(lambda: probe(t - 2))
        if t == 11: wg0(announce)
        if t == 14: issd()
        if t == 16: a("s_waitcnt vmcnt(0)"); init3()
        if t == 22: iss0()
        if t == 24: poll_check(g, iss0, 14, 64, 1, "ne", lambda: a("v_and_b32 v14, v16, v17\nv_and_b32 v15, v18, v19\nv_and_b32 v14, v14, v15"))
        if t == g.o.get('cpf1', 99): a("s_mov_b64 exec, 0xffff\nbuffer_load_dword v9, v8, s[96:99], s100 offen\ns_mov_b64 exec, -1")
    bars(2)
    aux_sel(g)
    lane_h(g, 11, 12, 52)
    a(f"s_add_u32 s54, s52, {F_H2}")
    a("v_and_b32 v12, 1, v0\nv_lshlrev_b32 v12, 16, v12\nv_bfe_u32 v16, v0, 1, 1\nv_lshl_add_u32 v12, v16, 18, v12")
    a(f"v_bfe_u32 v16, v0, 2, 2\nv_lshl_add_u32 v12, v16, 11, v12\ns_andn2_b32 s56, s52, 0x1800\ns_add_u32 s56, s56, {F_X + (2<<16)}")
    a(f"s_lshl_b32 s57, s{S_MB8}, 12\ns_add_u32 s57, s57, {WS_FLAG+F_G}")
    a(f"v_lshrrev_b32 v19, 1, v0\nv_and_b32 v16, 1, v0\nv_lshlrev_b32 v16, 4, v16\nv_lshl_add_u32 v19, v19, 7, v16\nv_add_u32 v13, {LDS_G}, v4")
    tb = sum(x << (4 * k) for k, x in enumerate(ORD))
    wl = g.o.get('wl')
    if wl: a(f"s_lshr_b32 s69, s2, 3\ns_and_b32 s68, s69, {wl[2]-1}\ns_add_u32 s69, s69, {32*wl[0]}\ns_mov_b32 s48, {hex(tb & 0xffffffff)}\ns_mov_b32 s49, {hex(tb >> 32)}")
    bars(1)
    bars(1)
    def pol(soff, areg):
        m = "0xffff" if areg == 12 else "0xffffffff"
        return lambda: a(f"s_mov_b64 exec, {m}\nbuffer_load_dword v14, v{areg}, {W}, s{soff} offen sc1\ns_mov_b64 exec, -1")
    issg = lambda: a(f"buffer_load_dwordx4 v[24:27], v19, {W}, s57 offen sc1")
    assert g.o['k1'] >= 6
    def role(kv, f):
        l = g.lab("ro")
        a(f"s_cmp_ge_u32 s{S_C}, 2\ns_cbranch_scc{1 if kv else 0} {l}"); f(); a(f"{l}:")
    role(True, lambda: (a(f"s_sleep {g.o.get('gsl', 16)}"), pol(52, 11)(), poll_check(g, pol(52, 11), 14, 32, 1)))
    SK = g.o['sk']
    assert not set(SK) & {0, 1, 6, g.o['k1'], 12, 13}
    cnt = lambda n: len([x for x in range(n) if x not in SK])
    for n in range(12):
        if n not in SK: a("s_barrier")
        if n == g.o.get('cpf2'): a("s_mov_b64 exec, 0xffff\nbuffer_load_dword v9, v8, s[96:99], s100 offen\ns_mov_b64 exec, -1")
        if n == 0: role(False, pol(52, 11))
        if n == 3: issg()
        if n == 4:
            poll_check(g, issg, 14, 64, -1, "eq", lambda: a("v_max3_u32 v14, v24, v25, v26\nv_max_u32 v14, v14, v27"))
            a("ds_write_b128 v13, v[24:27]"); pol(54, 11)()
        if n == 5: poll_check(g, pol(54, 11), 14, 32, 1); a("s_waitcnt lgkmcnt(0)")
        q_call(g, n)
        if n == 0: role(False, lambda: poll_check(g, pol(52, 11), 14, 32, 1))
        if wl and wl[1] <= n < wl[1] + wl[2]:
            l = g.lab("wl")
            a(f"s_cmp_lg_u32 s68, {n-wl[1]}\ns_cbranch_scc1 {l}")
            for _ in range(5 - wl[0]): w2item()
            a(f"{l}:")
        if n == g.o.get('fop', 11):
            if g.o.get('fosl'): a(f"s_sleep {g.o['fosl']}")
            pol(56, 12)()
        if n == 11: poll_check(g, pol(56, 12), 14, 16, 1)
    bars(NS - 10); a("s_branch L_rx")
    a("L_h_one:")
    tb = sum(x << (4 * k) for k, x in enumerate(ORD))
    a(f"s_mov_b32 s34, 0\ns_lshr_b32 s69, s2, 3\ns_mov_b32 s48, {hex(tb & 0xffffffff)}\ns_mov_b32 s49, {hex(tb >> 32)}")
    a(f"s_lshr_b32 s33, s68, 5\ns_lshr_b32 s90, {hex(g.o.get('wmask', 0x1f0))}, s33")
    if g.o.get('nopf1'): a("s_mov_b32 s68, 0x10000")
    l0, l1, l2, lx, lq = [g.lab("pf") for _ in range(5)]
    if g.o.get('skip0'): a(f"s_branch {l1}")
    a(f"{l0}:\ns_add_u32 s47, s34, {g.o['lead']}\ns_mul_i32 s47, s47, 17\ns_lshr_b32 s47, s47, 1\ns_min_u32 s47, s47, {16*17}\ns_cmp_ge_u32 s68, s47\ns_cbranch_scc1 {l1}")
    pf_item(g)
    a("s_add_u32 s68, s68, 32")
    a(f"{l2}:\ns_lshr_b32 s90, s90, 1\ns_bitcmp1_b32 s90, 0\ns_cbranch_scc0 {l0}")
    w2item()
    a(f"s_branch {l0}\n{l1}:")
    if g.o.get('wrate'):
        l3 = g.lab("pf")
        a(f"s_sub_u32 s47, s34, {g.o.get('w0', 2)}\ns_cbranch_scc1 {l3}\ns_mul_i32 s47, s47, {g.o['wrate']}\ns_min_u32 s47, s47, 144\ns_cmp_ge_u32 s69, s47\ns_cbranch_scc1 {l3}")
        w2item()
        a(f"{l3}:")
    a(f"s_barrier\ns_sleep {g.o['hdel']}\ns_add_u32 s34, s34, 1\ns_cmp_lt_u32 s34, 27\ns_cbranch_scc1 {l0}")
    srd(g, 52, 16, 2048)
    gl = ["s_lshl_b32 s47, s46, 14\n" + "\n".join(f"buffer_load_dwordx4 {vr(24+4*hf)}, v4, s[52:55], 0 offen offset:{hf*1024}" for hf in range(2))]
    for r in range(8):
        gl.append("\n".join(f"buffer_load_dwordx4 {vr(40+8*r+4*hf)}, v4, s[28:31], s47 offen offset:{(r&1)*2048+hf*1024}" for hf in range(2)) + ("\ns_add_u32 s47, s47, 4096" if r & 1 else ""))
    for t in range(26, 31):
        if t > 26: a("s_barrier")
        n = g.o['gsch'][t - 26]
        if n and t in (27, 28): a(f"s_sleep {g.o['hdel']}")
        for x in gl[:n]: a(x)
        gl = gl[n:]
    assert not gl
    aux_sel(g)
    for r in range(32, 40): a(f"v_mov_b32 v{r}, 0")
    bars(2)
    a("s_waitcnt vmcnt(0)")
    for k in range(8):
        for r in range(8): a(f"v_dot2_f32_bf16 v{32+r}, v{40+8*r+k}, v{24+k}, v{32+r}")
    a("s_barrier\ns_nop 0")
    for pat in ["quad_perm:[1,0,3,2] row_mask:0xf", "quad_perm:[2,3,0,1] row_mask:0xf", "row_half_mirror row_mask:0xf", "row_mirror row_mask:0xf",
                "row_bcast:15 row_mask:0xa", "row_bcast:31 row_mask:0xc"]:
        for r in range(32, 40): a(f"v_add_f32_dpp v{r}, v{r}, v{r} {pat} bank_mask:0xf")
    for r in range(8): a(f"v_readlane_b32 s{52+r}, v{32+r}, 63")
    a("s_nop 1")
    for r in range(8): a(f"v_writelane_b32 v16, s{52+r}, {r}")
    a("s_nop 0\nv_min_f32 v16, 0x41f00000, v16\nv_mul_f32 v16, 0x3fb8aa3b, v16\nv_exp_f32 v16, v16")
    a(f"s_lshl_b32 s47, s46, 7\ns_add_u32 s47, s47, {WS_FLAG+F_G}\ns_mov_b64 exec, 0xff")
    a(f"buffer_store_dword v16, v5, {W}, s47 offen sc1\ns_mov_b64 exec, -1")
    q_call(g, 0)
    a(f"s_mov_b32 s34, 1\ns_cmp_ge_u32 s{S_C}, 2\ns_cbranch_scc1 L_h1_q\ns_cmp_ge_u32 s{S_MB8}, 6\ns_cbranch_scc1 L_h1_end")
    H1 = g.o['h1']
    def retry(issue, mx, first, last, work=False):
        l0, l1 = g.lab("try"), g.lab("try")
        for n in range(first):
            if n and n not in SK: a("s_barrier")
            if work and n: q_call(g, n)
        first, last = cnt(first), cnt(last)
        if g.o.get('rsame', 1) & (1 if work else 2):
            l2 = g.lab("try")
            a(f"s_setprio 2\ns_mov_b32 s34, {first}\n{l0}:")
            issue(); a("s_waitcnt vmcnt(0)"); mx()
            a(f"v_cmp_eq_u32 vcc, -1, v14\ns_cbranch_vccz {l1}")
            a(f"s_cmp_ge_u32 s34, {last}\ns_cbranch_scc1 {l2}\ns_barrier\ns_add_u32 s34, s34, 1\ns_branch {l0}\n{l2}:")
        else:
            a(f"s_setprio 2\ns_mov_b32 s34, {first}\n{l0}:")
            if g.o.get('hsl'): a(f"s_sleep {g.o['hsl']}")
            issue()
            a("s_barrier\ns_add_u32 s34, s34, 1\ns_waitcnt vmcnt(0)")
            mx()
            a(f"v_cmp_eq_u32 vcc, -1, v14\ns_nop 1\ns_cmp_lg_u64 vcc, 0\ns_cbranch_scc0 {l1}")
            a(f"s_cmp_le_u32 s34, {last-1}\ns_cbranch_scc1 {l0}")
        issue(); poll_check(g, issue, 14, 64, -1, "eq", mx)
        a(f"{l1}:")
    def upto(n):
        l0, l1 = g.lab("up"), g.lab("up")
        a(f"{l0}:\ns_cmp_ge_u32 s34, {cnt(n)}\ns_cbranch_scc1 {l1}\ns_barrier\ns_add_u32 s34, s34, 1\ns_branch {l0}\n{l1}:")
    def vmax(lo, hi):
        a(f"v_max_u32 v14, v{lo}, v{lo+1}")
        for r in range(lo + 2, hi, 2): a(f"v_max3_u32 v14, v14, v{r}, v{r+1}")
    a(f"s_cmp_ge_u32 s{S_MB8}, 3\ns_cselect_b32 s55, 1, 0\ns_sub_u32 s56, s{S_MB8}, s55\ns_lshl_b32 s56, s56, 11\nv_add_u32 v10, s56, v4\nv_add_u32 v11, 1024, v10")
    a(f"s_cmp_eq_u32 s{S_MB8}, 2\ns_cbranch_scc1 L_h1_z\ns_cmp_eq_u32 s{S_MB8}, 5\ns_cbranch_scc0 L_h1_nz\nL_h1_z:")
    a("s_lshl_b32 s55, s55, 5\ns_add_u32 s55, s55, 8192\nv_and_b32 v10, 0x300, v4\nv_add_u32 v10, s55, v10\nv_add_u32 v11, 16, v10\nL_h1_nz:")
    def kvp_issue():
        a(f"s_mul_i32 s47, s{S_PAIR}, {8*9216}\ns_add_u32 s47, s47, {WS_KVP}")
        for m in range(8):
            for dt in range(2): a(f"buffer_load_dwordx4 {vr(32+(m*2+dt)*4)}, v{10+dt}, {W}, s47 offen sc1")
            if m < 7: a("s_add_u32 s47, s47, 9216")
    retry(kvp_issue, lambda: vmax(32, 96), H1 + 1, 9)
    g.stamp(5)
    if g.o['prof']: a("s_mov_b32 s88, s34")
    for st in (32, 16, 8):
        for r in range(st): a(f"v_add_f32 v{32+r}, v{32+r}, v{32+st+r}")
    for r in range(4): a(f"v_cvt_pk_bf16_f32 v{32+r}, v{32+2*r}, v{33+2*r}")
    a(f"s_mul_i32 s47, s{S_PAIR}, 6144\ns_lshl_b32 s46, s{S_MB8}, 10\ns_add_u32 s47, s47, s46\ns_add_u32 s47, s47, {WS_KVF}")
    a(f"buffer_store_dwordx4 v[32:35], v4, {W}, s47 offen sc1")
    a("L_h1_end:")
    upto(NS + 2)
    a("s_branch L_rx")
    a("L_h1_q:")
    K1 = g.o['k1']
    a(f"s_mul_i32 s55, s{S_PAIR}, 6144\ns_add_u32 s55, s55, {WS_KVF}\ns_add_u32 s56, s55, 4096\nv_add_u32 v12, {P2END}, v4")
    def kvf_issue():
        for f in range(6): a(f"buffer_load_dwordx4 {vr(32+4*f)}, v4, {W}, s{55+(f>>2)} offen offset:{(f&3)*1024} sc1")
    retry(kvf_issue, lambda: vmax(32, 56), g.o['k0'], K1, True)
    g.stamp(5)
    if g.o['prof']: a("s_mov_b32 s88, s34")
    for f in range(6): a(f"ds_write_b128 v12, {vr(32+4*f)} offset:{f*1024}")
    upto(K1)
    a("s_waitcnt lgkmcnt(0)")
    for n in range(K1, K1 + g.o['noc'] + 1):
        if n not in SK: a("s_barrier")
        q_call(g, n)
    a(f"s_mov_b32 s34, {cnt(K1+g.o['noc']+1)}\ns_branch L_h1_end")
    q_chunks(g)


HEADER = open("gated_mix__linear_attn_block__dense_activation_relu__prompt.s.ref").read().split("; Override")[0] \
    if __name__ == "__main__" else ""


DOC = """;
; One persistent launch, 256 workgroups (one per CU) x 8 waves: 4 MFMA waves, 2 LDS-DMA loader waves, 2 helper waves.
;      phi(t) = max(t,1e-6) + min(exp t,1)  (= t+1+1e-6 for t>0, exp t+1e-6 else, up to fp32 rounding).
;  P2  out = (1-g) * ( h @ w2 + (g/(1-g) * o) @ wo ),  g/(1-g) = exp(min(x.gate_w, 30));  256x128 tile, K split 4 ways,
;  Hand-offs between workgroups: sc1 stores, s_waitcnt vmcnt, then a flag (or a sentinel-tagged payload); sc1 loads.  All flags and
;"""


def build(**opt):
    g = G(**opt)
    VM.skip = g.o.get('skip', ())
    HF[0] = g.o.get('hflag', 'sc1'); HF[1] = g.o.get('lflag', 'sc1')
    g.L.append(f"; @launch grid=(256,1,1) block=(512,1,1) lds={LDS_TOTAL}")
    g.L.append(DOC)
    g.a(f'.amdgcn_target "amdgcn-amd-amdhsa--gfx950"\n.text\n.globl {NAME}\n.p2align 8\n.type {NAME},@function\n{NAME}:')
    prologue(g)
    loader(g)
    helper(g)
    compute(g)
    g.a("L_exit:\ns_endpgm\nL_codeend:")
    g.L.append(f""".section .rodata,"a"
.p2align 6
.amdhsa_kernel {NAME}
  .amdhsa_next_free_vgpr 256
  .amdhsa_next_free_sgpr 102
  .amdhsa_accum_offset 256
  .amdhsa_group_segment_fixed_size 0
  .amdhsa_kernarg_size 80
  .amdhsa_user_sgpr_count 2
  .amdhsa_user_sgpr_kernarg_segment_ptr 1
  .amdhsa_system_sgpr_workgroup_id_x 1
.end_amdhsa_kernel""")
    return g.text()


if __name__ == "__main__":
    out = sys.argv[1]
    opt = {}
    for kv in sys.argv[2:]:
        k, v = kv.split("=")
        opt[k] = eval(v)
    open(out, "w").write(HEADER + build(**opt))
```
